```python
import torch

def _softmax(x, axis=-1):
    return torch.softmax(x, dim=axis)
def _gelu(x):
    return torch.nn.functional.gelu(x, approximate="tanh")
def _silu(x):
    return torch.nn.functional.silu(x)
def _sigmoid(x):
    return torch.sigmoid(x)
def _layernorm(x, axis=-1, eps=1e-5):
    m = x.mean(dim=axis, keepdim=True)
    v = x.var(dim=axis, keepdim=True, unbiased=False)
    return (x - m) / torch.sqrt(v + eps)
def _scatter_add(tgt, idx, src, axis=0):
    return tgt.clone().index_add_(axis, idx, src)
def _segment_sum(src, seg, n):
    out = torch.zeros((n,) + src.shape[1:], dtype=src.dtype)
    return out.index_add_(0, seg, src)
def _pad(x, pw):
    flat = tuple(v for pair in reversed(pw) for v in pair)
    return torch.nn.functional.pad(x, flat)

kernel_name = 'parallel_sum__softmax_full_mha__dense_activation_relu__prompt'

def setup_inputs():

    _w = (lambda a: (lambda t: t.to(torch.bfloat16) if t.is_floating_point() else t)(torch.as_tensor(a)))
    def _A_setup():
        B, S, D = 1, 2048, 1024
        return {
            "x": _w((lambda *s: torch.randn(*s, dtype=torch.bfloat16) * 0.05)(B, S, D)),
            "wqkv": _w((lambda *s: torch.randn(*s, dtype=torch.bfloat16) * 0.05)(D, 3 * D)),
            "wo": _w((lambda *s: torch.randn(*s, dtype=torch.bfloat16) * 0.05)(D, D)),
        }
    _A_in = _A_setup()

    def _B_setup():
        B, S, D, Dff = 1, 2048, 1024, 3584
        return {
            "x": _w((lambda *s: torch.randn(*s, dtype=torch.bfloat16) * 0.05)(B, S, D)),
            "w1": _w((lambda *s: torch.randn(*s, dtype=torch.bfloat16) * 0.05)(D, Dff)),
            "w2": _w((lambda *s: torch.randn(*s, dtype=torch.bfloat16) * 0.05)(Dff, D)),
        }
    _B_in = _B_setup()

    return {
        "A_x": _A_in["x"],
        "A_wqkv": _A_in["wqkv"],
        "A_wo": _A_in["wo"],
        "B_x": _B_in["x"],
        "B_w1": _B_in["w1"],
        "B_w2": _B_in["w2"],
    }

def reference(A_x, A_wqkv, A_wo, B_x, B_w1, B_w2):
    def _A_ref(x, wqkv, wo):
        B, S, D = x.shape
        H = 32; Dh = D // H
        qkv = (lambda x, *d: x.permute(*d))((x @ wqkv).reshape(B, S, 3, H, Dh), 2, 0, 3, 1, 4)
        q, k, v = qkv[0], qkv[1], qkv[2]
        scale = Dh ** -0.5
        scores = torch.einsum("bhqd,bhkd->bhqk", q, k) * scale
        p = _softmax(scores, axis=-1)
        o = torch.einsum("bhqk,bhkd->bhqd", p, v)
        return (lambda x, *d: x.permute(*d))(o, 0, 2, 1, 3).reshape(B, S, D) @ wo

    def _B_ref(x, w1, w2):
        h = torch.einsum("bsd,df->bsf", x, w1)
        zero = torch.zeros_like(h)
        h = torch.maximum(h, zero)
        return torch.einsum("bsf,fd->bsd", h, w2)

    x = A_x
    xn = _layernorm(x, axis=-1)
    return x + _A_ref(xn, A_wqkv, A_wo) + _B_ref(xn, B_w1, B_w2)
```

```python
import re

TRANS = ("v_exp_f32", "v_log_f32", "v_rcp_f32", "v_rsq_f32", "v_sqrt_f32", "v_sin_f32", "v_cos_f32",
         "v_exp_f16", "v_rcp_iflag_f32")

def _regs(tok):
    tok = tok.strip()
    tok = re.sub(r"^-|^\|", "", tok)
    tok = tok.replace("abs(", "").replace(")", "").replace("|", "")
    m = re.fullmatch(r"([vas])(\d+)", tok)
    if m:
        return {(m.group(1), int(m.group(2)))}
    m = re.fullmatch(r"([vas])\[(\d+):(\d+)\]", tok)
    if m:
        return {(m.group(1), i) for i in range(int(m.group(2)), int(m.group(3)) + 1)}
    if tok in ("vcc", "vcc_lo", "vcc_hi"):
        return {("x", "vcc")}
    if tok in ("exec", "exec_lo", "exec_hi"):
        return {("x", "exec")}
    if tok == "m0":
        return {("x", "m0")}
    return set()

class Ins:
    def __init__(self, text):
        self.text = text
        t = text.split(";")[0].strip()
        self.label = t.endswith(":")
        self.directive = t.startswith(".")
        self.empty = (t == "")
        self.op = ""
        self.rd = set(); self.wr = set()
        self.A = set(); self.B = set(); self.C = set()
        self.kind = "none"
        self.states = 0
        if self.label or self.directive or self.empty:
            return
        parts = t.split(None, 1)
        op = parts[0]; self.op = op
        rest = parts[1] if len(parts) > 1 else ""
        rest = re.sub(r"(quad_perm|op_sel|op_sel_hi|neg_lo|neg_hi):\[([^\]]*)\]", lambda m: m.group(1) + ":[" + m.group(2).replace(",", "/") + "]", rest)
        ops = [o.strip() for o in rest.split(",")] if rest else []
        mods = ""
        if ops:
            last = ops[-1].split(None, 1)
            ops[-1] = last[0]
            mods = last[1] if len(last) > 1 else ""
        self.mods = mods
        self.ops = ops
        self.states = 1
        R = [_regs(o) for o in ops]
        U = lambda l: set().union(*l) if l else set()
        if op == "s_nop":
            self.kind = "nop"; self.states = int(ops[0], 0) + 1
        elif op.startswith("v_mfma") or op.startswith("v_smfmac"):
            self.kind = "mfma"
            self.wr = R[0]; self.A = R[1]; self.B = R[2]; self.C = R[3]
            if op.startswith("v_smfmac"):
                self.B = R[2] | R[3]; self.C = R[0]
            self.rd = self.A | self.B | self.C
            self.passes = 8 if "32x32" in op else 4
        elif op.startswith("v_cmp"):
            self.kind = "valu"; self.wr = R[0]; self.rd = U(R[1:])
            if op.startswith("v_cmpx"): self.wr |= {("x", "exec")}
        elif op.startswith("v_readfirstlane") or op.startswith("v_readlane"):
            self.kind = "valu"; self.wr = R[0]; self.rd = U(R[1:])
        elif op.startswith("v_permlane") and "swap" in op:
            self.kind = "valu"; self.wr = R[0] | R[1]; self.rd = R[0] | R[1]
        elif op.startswith("v_"):
            self.kind = "valu"; self.wr = R[0]; self.rd = U(R[1:])
            if op.startswith("v_fmac") or op.startswith("v_dot2c") or op.startswith("v_writelane") or "dpp" in op or "row_" in mods or "quad_perm" in mods:
                self.rd |= R[0]
            if "_co_" in op:
                self.wr |= R[1]; self.rd = U(R[2:])
            if op.startswith("v_cndmask") and len(ops) == 3:
                self.rd |= {("x", "vcc")}
        elif op.startswith("ds_read") or op.startswith("ds_bpermute") or op.startswith("ds_swizzle"):
            self.kind = "ds"; self.wr = R[0]; self.rd = U(R[1:])
        elif op.startswith("ds_"):
            self.kind = "ds"; self.rd = U(R)
            if "rtn" in op: self.wr = R[0]; self.rd = U(R[1:])
        elif op.startswith("buffer_load") or op.startswith("global_load"):
            self.kind = "vmem"
            if re.search(r"\blds\b", mods):
                self.rd = U(R) | {("x", "m0")}; self.ldsdma = True
            else:
                self.wr = R[0]; self.rd = U(R[1:])
        elif op.startswith("buffer_store") or op.startswith("global_store") or op.startswith("buffer_atomic") or op.startswith("global_atomic"):
            self.kind = "vmem"; self.rd = U(R)
            self.data = R[0] if op.startswith("buffer") else R[1]
            self.wide = op.endswith("x4") or op.endswith("x3")
        elif op.startswith("buffer_") :
            self.kind = "vmem"
        elif op.startswith("s_"):
            self.kind = "salu"
            if op.startswith("s_cmp") or op.startswith("s_cbranch") or op in ("s_branch", "s_barrier", "s_waitcnt", "s_endpgm", "s_setprio", "s_sleep", "s_bitcmp0_b32", "s_bitcmp1_b32"):
                self.rd = U(R)
            else:
                self.wr = R[0] if R else set(); self.rd = U(R[1:])
                if "saveexec" in op: self.wr |= {("x", "exec")}
        else:
            raise ValueError("unknown op: " + text)

def is_dpp(i):
    return i.kind == "valu" and ("row_" in i.mods or "quad_perm" in i.mods or "_dpp" in i.op or "wave_" in i.mods)

def check_seq(seq, name="", taken=None):
    probs = []
    real = [i for i in seq if i.states > 0]
    n = len(real)
    for j, c in enumerate(real):
        dist = 0
        for k in range(j - 1, -1, -1):
            p = real[k]
            if dist >= 21: break
            if p.op in ("s_branch", "s_endpgm") and p is not taken: break
            need = 0; why = ""
            def req(x, w):
                nonlocal need, why
                if x > need: need, why = x, w
            vw = {r for r in p.wr if r[0] in "va"}
            sw = {r for r in p.wr if r[0] == "s" or r == ("x", "vcc")}
            if p.kind == "valu":
                if c.kind == "mfma" and vw & c.rd: req(2, "VALU->MFMA operand")
                if c.kind == "valu":
                    if p.op in TRANS and c.op not in TRANS and vw & c.rd: req(1, "trans->VALU")
                    if c.op.startswith("v_permlane") and vw & c.rd: req(2, "VALU->permlane")
                    if (c.op.startswith("v_readlane") or c.op.startswith("v_readfirstlane")) and vw & c.rd: req(1, "VALU->readlane")
                    if is_dpp(c) and vw & c.rd: req(2, "VALU->DPP")
                    if sw & c.rd: req(2, "VALU sgpr->VALU")
                    if ("x", "exec") in p.wr and is_dpp(c): req(5, "exec->DPP")
                if c.kind == "vmem" and sw & c.rd: req(5, "VALU sgpr->VMEM")
                if c.kind == "mfma" and ("x", "exec") in p.wr: req(4, "exec->MFMA")
                if c.kind == "salu" and sw & c.rd: req(1, "VALU sgpr->SALU (pad)")
            if p.kind == "mfma":
                big = p.passes == 8
                if c.kind == "mfma":
                    if p.wr & (c.A | c.B): req(12 if big else 8, "MFMA D->A/B")
                    if p.wr & c.C and not (p.wr == c.C and p.passes == c.passes): req(10 if big else 6, "MFMA D->C overlap")
                    if p.wr & c.wr and not (p.wr == c.C) : req(10 if big else 6, "MFMA D->D WAW (conservative)")
                elif c.kind in ("valu",):
                    if p.wr & (c.rd | c.wr): req(12 if big else 8, "MFMA D->VALU")
                    if p.C & c.wr: req(7 if big else 3, "MFMA C WAR")
                elif c.kind in ("vmem", "ds"):
                    if p.wr & (c.rd | c.wr): req(12 if big else 8, "MFMA D->mem")
            if p.kind == "salu" and ("x", "m0") in p.wr and getattr(c, "ldsdma", False): req(1, "m0->DMA")
            if p.kind == "vmem" and getattr(p, "wide", False) and c.kind == "valu" and p.data & c.wr: req(2, "store data WAR")
            if p.kind == "vmem" and getattr(p, "wide", False) and c.kind in ("ds", "vmem", "mfma") and p.data & c.wr: req(1, "store data WAR")
            if dist < need:
                probs.append(f"{name}: need {need} have {dist} ({why}): [{p.text.strip()}] -> [{c.text.strip()}]")
            dist += p.states
    return probs

class Asm:
    def __init__(self):
        self.lines = []
    def __call__(self, text):
        for t in text.split("\n"):
            if t.strip() == "": continue
            self.lines.append(Ins(t.strip()))
    def extend(self, lst):
        for t in lst: self(t)
    def text(self):
        out = []
        for i in self.lines:
            out.append(i.text if (i.label or i.directive) else "    " + i.text)
        return "\n".join(out) + "\n"
    def check(self, name=""):
        probs = check_seq(self.lines, name)
        labels = {i.text.split(":")[0].strip(): k for k, i in enumerate(self.lines) if i.label}
        for k, i in enumerate(self.lines):
            if i.op.startswith("s_cbranch") or i.op == "s_branch":
                tgt = labels.get(i.ops[0])
                if tgt is None: continue
                lo = max(0, k - 40)
                seq = self.lines[lo:k + 1] + self.lines[tgt:tgt + 40]
                probs += check_seq(seq, name + "@" + i.ops[0], taken=i)
        return sorted(set(probs))

def weave(main, extras):
    slots = {}
    for pos, x in extras:
        slots.setdefault(pos, []).extend(x if isinstance(x, list) else [x])
    out = list(slots.get(-1, []))
    for i, m in enumerate(main):
        out.append(m)
        out.extend(slots.get(i, []))
    return out
```

```python
import sys, os
sys.path.insert(0, os.path.dirname(os.path.abspath(__file__)))
from asmdsl import Asm, weave

NAME = "parallel_sum__softmax_full_mha__dense_activation_relu__prompt"
KA_X, KA_WQKV, KA_WO, KA_BX, KA_W1, KA_W2, KA_OUT, KA_DBG, KA_WS = 0, 8, 16, 24, 32, 40, 48, 56, 64
MB = 1 << 20
WS_XN, WS_Q, WS_KV, WS_A2 = 0, 4 * MB, 8 * MB, 16 * MB
SZ_XN, SZ_Q, SZ_KV, SZ_A2 = 4 * MB, 4 * MB, 8 * MB, 144 * 128 * 1024
SRD3 = "0x00020000"

def f2u(x):
    import struct
    return struct.unpack("<I", struct.pack("<f", x))[0]

def srd(a, d, b, off, size):
    if off >= 0:
        a(f"s_add_u32 s{d}, s{b}, {off}")
        a(f"s_addc_u32 s{d+1}, s{b+1}, 0")
    else:
        a(f"s_sub_u32 s{d}, s{b}, {-off}")
        a(f"s_subb_u32 s{d+1}, s{b+1}, 0")
    a(f"s_mov_b32 s{d+2}, {size}")
    a(f"s_mov_b32 s{d+3}, {SRD3}")

def header(a, name):
    a(f".globl {name}")
    a(".p2align 8")
    a(f".type {name},@function")
    a(f"{name}:")

def descriptor(name, nv, acc_off, ns=102):
    return f""".amdhsa_kernel {name}
  .amdhsa_next_free_vgpr {nv}
  .amdhsa_next_free_sgpr {ns}
  .amdhsa_accum_offset {acc_off}
  .amdhsa_group_segment_fixed_size 0
  .amdhsa_kernarg_size 72
  .amdhsa_user_sgpr_count 2
  .amdhsa_user_sgpr_kernarg_segment_ptr 1
  .amdhsa_system_sgpr_workgroup_id_x 1
.end_amdhsa_kernel
"""

def xreduce(a, v, t):
    a(f"s_nop 1")
    a(f"v_add_f32_dpp v{t}, v{v}, v{v} quad_perm:[1,0,3,2] row_mask:0xf bank_mask:0xf")
    a(f"s_nop 1")
    a(f"v_add_f32_dpp v{v}, v{t}, v{t} quad_perm:[2,3,0,1] row_mask:0xf bank_mask:0xf")
    a(f"s_nop 1")
    a(f"v_add_f32_dpp v{t}, v{v}, v{v} row_ror:8 row_mask:0xf bank_mask:0xf")
    a(f"v_mov_b32 v{v}, v{t}")
    a(f"s_nop 1")
    a(f"v_permlane16_swap_b32 v{t}, v{v}")
    a(f"v_add_f32 v{v}, v{t}, v{v}")
    a(f"v_mov_b32 v{t}, v{v}")
    a(f"s_nop 1")
    a(f"v_permlane32_swap_b32 v{t}, v{v}")
    a(f"v_add_f32 v{v}, v{t}, v{v}")

def bf16round(a, v):
    a(f"v_cvt_pk_bf16_f32 v{v}, v{v}, v{v}")
    a(f"v_and_b32 v{v}, 0xffff0000, v{v}")

def gen_ln():
    a = Asm()
    name = "ln_kernel"
    header(a, name)
    a("s_cmp_ge_u32 s2, 256")
    a("s_cbranch_scc1 L_ln_end")
    a(f"s_load_dwordx2 s[4:5], s[0:1], {KA_X}")
    a(f"s_load_dwordx2 s[6:7], s[0:1], {KA_WS}")
    a("v_and_b32 v1, 63, v0")
    a("v_lshrrev_b32 v2, 6, v0")
    a("v_bfe_u32 v3, v1, 2, 1")
    a("v_lshl_add_u32 v3, v2, 1, v3")
    a("s_lshl_b32 s3, s2, 3")
    a("v_add_u32 v3, s3, v3")
    a("v_and_b32 v4, 3, v1")
    a("v_lshrrev_b32 v5, 3, v1")
    a("v_lshlrev_b32 v6, 11, v3")
    a("v_lshl_add_u32 v6, v5, 6, v6")
    a("v_lshl_add_u32 v6, v4, 4, v6")
    a("v_lshrrev_b32 v7, 4, v3")
    a("v_lshl_add_u32 v7, v5, 7, v7")
    a("v_lshlrev_b32 v7, 10, v7")
    a("v_and_b32 v8, 15, v3")
    a("v_lshl_add_u32 v7, v8, 6, v7")
    a("v_bfe_u32 v8, v3, 3, 1")
    a("v_lshlrev_b32 v8, 1, v8")
    a("v_xor_b32 v8, v8, v4")
    a("v_lshl_add_u32 v7, v8, 4, v7")
    a("s_waitcnt lgkmcnt(0)")
    srd(a, 8, 4, 0, 4 * MB)
    srd(a, 12, 6, WS_XN, SZ_XN)
    for i in range(4):
        a(f"buffer_load_dwordx4 v[{16+4*i}:{19+4*i}], v6, s[8:11], 0 offen offset:{i*512}")
    a("s_mov_b32 s16, 0xffff0000")
    F = 32
    for i in range(4):
        a(f"s_waitcnt vmcnt({3-i})")
        for j in range(4):
            r = 16 + 4 * i + j
            a(f"v_lshlrev_b32 v{F+2*(4*i+j)}, 16, v{r}")
            a(f"v_and_b32 v{F+2*(4*i+j)+1}, s16, v{r}")
    a(f"v_pk_add_f32 v[10:11], v[{F}:{F+1}], v[{F+2}:{F+3}]")
    a(f"v_pk_add_f32 v[12:13], v[{F+4}:{F+5}], v[{F+6}:{F+7}]")
    for j in range(4, 16):
        d = 10 + 2 * (j & 1)
        a(f"v_pk_add_f32 v[{d}:{d+1}], v[{d}:{d+1}], v[{F+2*j}:{F+2*j+1}]")
    a("v_pk_add_f32 v[10:11], v[10:11], v[12:13]")
    a("v_add_f32 v10, v10, v11")
    xreduce(a, 10, 11)
    a(f"v_mul_f32 v10, {f2u(1.0/1024):#x}, v10")
    a("v_mov_b32 v14, v10")
    bf16round(a, 14)
    a("v_sub_f32 v10, v10, v14")
    a("v_mov_b32 v15, v14")
    for j in range(16):
        a(f"v_pk_add_f32 v[{F+2*j}:{F+2*j+1}], v[{F+2*j}:{F+2*j+1}], v[14:15] neg_lo:[0,1] neg_hi:[0,1]")
    a(f"v_pk_mul_f32 v[12:13], v[{F}:{F+1}], v[{F}:{F+1}]")
    a(f"v_pk_mul_f32 v[14:15], v[{F+2}:{F+3}], v[{F+2}:{F+3}]")
    for j in range(2, 16):
        d = 12 + 2 * (j & 1)
        a(f"v_pk_fma_f32 v[{d}:{d+1}], v[{F+2*j}:{F+2*j+1}], v[{F+2*j}:{F+2*j+1}], v[{d}:{d+1}]")
    a("v_pk_add_f32 v[12:13], v[12:13], v[14:15]")
    a("v_add_f32 v12, v12, v13")
    for j in range(16):
        a(f"v_cvt_pk_bf16_f32 v{16+j}, v{F+2*j}, v{F+2*j+1}")
    xreduce(a, 12, 13)
    a(f"v_mul_f32 v12, {f2u(1.0/1024):#x}, v12")
    a("v_fma_f32 v12, -v10, v10, v12")
    a("v_max_f32 v12, 0, v12")
    bf16round(a, 12)
    a(f"v_add_f32 v12, {f2u(1e-5):#x}, v12")
    bf16round(a, 12)
    a("v_sqrt_f32 v12, v12")
    a("s_nop 0")
    bf16round(a, 12)
    a("v_rcp_f32 v12, v12")
    for j in range(16):
        a(f"v_lshlrev_b32 v{F+2*j}, 16, v{16+j}")
        a(f"v_and_b32 v{F+2*j+1}, s16, v{16+j}")
    a("v_mov_b32 v13, v12")
    for i in range(4):
        for j in range(4 * i, 4 * i + 4):
            a(f"v_pk_mul_f32 v[{F+2*j}:{F+2*j+1}], v[{F+2*j}:{F+2*j+1}], v[12:13]")
        for j in range(4 * i, 4 * i + 4):
            a(f"v_cvt_pk_bf16_f32 v{16+j}, v{F+2*j}, v{F+2*j+1}")
        a(f"s_mov_b32 s17, {i*8*131072}")
        a(f"buffer_store_dwordx4 v[{16+4*i}:{19+4*i}], v7, s[12:15], s17 offen")
    a("L_ln_end:")
    a("s_endpgm")
    return a, descriptor(name, 64, 64, 32), f"; @launch kernel={name} grid=(256,1,1) block=(256,1,1) lds=0"

QSCALE = (32 ** -0.5) * 1.4426950408889634

def gen_gemm1():
    a = Asm()
    name = "gemm1_kernel"
    header(a, name)
    vA_dma = 224; vW_dma = 225
    vAr = 229
    vWe = 231; vWo = 233; vWs = 235
    T = 240
    sA, sW, sO = 8, 12, 16
    sKA, sKW = 20, 21
    sM0A, sM0W = 22, 23
    sCnt = 24
    sWave, sWr, sWc, sRb, sCt, sXcd = 25, 26, 27, 28, 29, 30
    a("s_cmp_ge_u32 s2, 256")
    a("s_cbranch_scc1 L_g1_end")
    a(f"s_load_dwordx2 s[4:5], s[0:1], {KA_WS}")
    a(f"s_load_dwordx2 s[6:7], s[0:1], {KA_WQKV}")
    a(f"s_load_dwordx2 s[32:33], s[0:1], {KA_W1}")
    a(f"v_lshrrev_b32 v{T}, 6, v0")
    a(f"v_and_b32 v{T+1}, 63, v0")
    a(f"v_readfirstlane_b32 s{sWave}, v{T}")
    a(f"s_and_b32 s{sXcd}, s2, 7")
    a(f"s_lshr_b32 s3, s2, 3")
    a(f"s_and_b32 s{sRb}, s3, 7")
    a(f"s_lshr_b32 s{sCt}, s3, 3")
    a(f"s_lshr_b32 s{sWr}, s{sWave}, 1")
    a(f"s_and_b32 s{sWc}, s{sWave}, 1")
    L = T + 1
    a(f"s_lshl_b32 s34, s{sRb}, 14")
    a(f"s_lshl_b32 s35, s{sWave}, 12")
    a(f"s_add_u32 s34, s34, s35")
    a(f"v_lshl_add_u32 v{vA_dma}, v{L}, 4, s34")
    a(f"s_mov_b32 s{sM0A}, s35")
    a(f"s_add_u32 s{sM0W}, s35, 16384")
    a(f"v_lshrrev_b32 v{T+2}, 5, v{L}")
    a(f"v_bfe_u32 v{T+3}, v{L}, 4, 1")
    a(f"v_bfe_u32 v{T+4}, v{L}, 2, 2")
    a(f"v_and_b32 v{T+5}, 3, v{L}")
    a(f"s_lshl_b32 s34, s{sWr}, 4")
    a(f"s_lshl_b32 s35, s{sWc}, 2")
    a(f"s_add_u32 s34, s34, s35")
    a(f"v_lshl_add_u32 v{T+6}, v{T+3}, 3, v{T+4}")
    a(f"v_add_u32 v{T+6}, s34, v{T+6}")
    a(f"v_lshlrev_b32 v{T+7}, 1, v{T+3}")
    a(f"v_xor_b32 v{T+7}, v{T+7}, v{T+5}")
    a(f"v_lshlrev_b32 v{T+7}, 4, v{T+7}")
    a(f"v_lshl_add_u32 v{T+7}, v{T+2}, 6, v{T+7}")
    a(f"v_xor_b32 v{T+8}, v{T+3}, v{T+5}")
    a(f"v_lshlrev_b32 v{T+8}, 4, v{T+8}")
    a(f"v_lshrrev_b32 v{T+9}, 4, v{L}")
    a(f"v_and_b32 v{T+10}, 15, v{L}")
    a(f"v_lshrrev_b32 v{T+11}, 3, v{T+10}")
    a(f"v_lshlrev_b32 v{T+11}, 1, v{T+11}")
    a(f"v_xor_b32 v{T+11}, v{T+11}, v{T+9}")
    a(f"v_lshlrev_b32 v{T+11}, 4, v{T+11}")
    a(f"v_lshl_add_u32 v{T+11}, v{T+10}, 6, v{T+11}")
    a(f"s_lshl_b32 s34, s{sWr}, 13")
    a(f"v_add_u32 v{vAr}, s34, v{T+11}")
    a(f"v_add_u32 v{vAr+1}, 0x10000, v{vAr}")
    a(f"v_lshlrev_b32 v{T+12}, 13, v{T+2}")
    a(f"v_lshl_add_u32 v{T+12}, v{T+3}, 8, v{T+12}")
    a(f"v_lshl_add_u32 v{T+12}, v{T+4}, 6, v{T+12}")
    a(f"v_lshl_add_u32 v{T+13}, v{T+3}, 5, v{T+12}")
    a(f"v_lshl_add_u32 v{T+13}, v{T+5}, 3, v{T+13}")
    a("s_waitcnt lgkmcnt(0)")
    srd(a, sA, 4, WS_XN, SZ_XN)
    a(f"s_mov_b32 s{sKA}, 0")
    a(f"s_mov_b32 s{sKW}, 0")
    a(f"s_cmp_lt_u32 s{sCt}, 2")
    a("s_cbranch_scc0 L_g1_qkv")

    def body(kind):
        ffn = kind == "ffn"
        NB = 7 if ffn else 6
        RS = 7168 if ffn else 6144
        nW = 4 if ffn else 3
        nd = 4 + nW
        NF = 8 + NB
        def fr(buf, i): return buf * NF * 4 + i * 4
        def acc(tt, ft): return (ft * 8 + tt) * 4
        if ffn:
            srd(a, sW, 32, -4096, 1024 * 7168 + 4096)
            a(f"s_mul_i32 s34, s{sXcd}, 896")
            a(f"s_mul_i32 s35, s{sCt}, 384")
            a(f"s_add_u32 s35, s35, s34")
            a(f"s_lshl_b32 s36, s{sCt}, 6")
            a(f"s_add_u32 s36, s36, s34")
            a(f"s_add_u32 s36, s36, {768 + 4096 - 3072}")
            qstep = 128
        else:
            srd(a, sW, 6, -4096, 1024 * 6144 + 4096)
            a(f"s_lshl_b32 s35, s{sXcd}, 1")
            a(f"s_add_u32 s35, s35, s{sCt}")
            a(f"s_sub_u32 s35, s35, 2")
            a(f"s_mov_b32 s37, s35")
            a(f"s_lshl_b32 s35, s35, 7")
            qstep = 2048
        a(f"s_mov_b32 s38, {RS}")
        a(f"v_mul_lo_u32 v{T+6}, v{T+6}, s38")
        a(f"v_add_u32 v{T+7}, v{T+7}, v{T+6}")
        a(f"v_add_u32 v{T+7}, s35, v{T+7}")
        for q in range(3):
            a(f"v_add_u32 v{vW_dma+q}, {4096 + q*qstep - q*1024}, v{T+7}")
        if ffn:
            a(f"v_add_u32 v{T+8}, v{T+8}, v{T+6}")
            a(f"v_add_u32 v{T+8}, s36, v{T+8}")
            a(f"v_lshlrev_b32 v{T+14}, 30, v{T+2}")
            a(f"v_or_b32 v{vW_dma+3}, v{T+8}, v{T+14}")
        def dma_list(stage):
            l = []
            l.append([f"s_add_u32 m0, s{sM0A}, {stage*32768}"])
            for q in range(4):
                l.append([f"buffer_load_dwordx4 v{vA_dma}, s[{sA}:{sA+3}], s{sKA} offen offset:{q*1024} lds"])
            l.append([f"s_add_u32 m0, s{sM0W}, {stage*32768}", f"s_add_u32 s{sKA}, s{sKA}, 131072"])
            for q in range(nW):
                l.append([f"buffer_load_dwordx4 v{vW_dma+q}, s[{sW}:{sW+3}], s{sKW} offen offset:{q*1024} lds"])
            l.append([f"s_add_u32 s{sKW}, s{sKW}, {32*RS}"])
            return l
        for st in range(4):
            for k, x in enumerate(dma_list(st)):
                a.extend(x)
                if k == 0: a("s_nop 0")
        a(f"s_mul_i32 s34, s{sWc}, {1536 if ffn else 512}")
        a(f"v_add_u32 v{vWe}, s34, v{T+13}")
        a(f"v_add_u32 v{vWe+1}, 0x10000, v{vWe}")
        a(f"v_xor_b32 v{vWo}, 32, v{vWe}")
        a(f"v_xor_b32 v{vWo+1}, 32, v{vWe+1}")
        if ffn:
            a(f"v_and_b32 v{T+14}, 1, v{T+5}")
            a(f"v_lshlrev_b32 v{T+14}, 1, v{T+14}")
            a(f"v_add_u32 v{T+14}, s{sWc}, v{T+14}")
            a(f"v_xor_b32 v{T+14}, v{T+14}, v{T+3}")
            a(f"v_lshl_add_u32 v{T+14}, v{T+14}, 4, v{T+12}")
            a(f"v_lshrrev_b32 v{T+15}, 1, v{T+5}")
            a(f"v_lshl_add_u32 v{vWs}, v{T+15}, 3, v{T+14}")
            a(f"v_add_u32 v{vWs+1}, 0x10000, v{vWs}")
        for i in range(8 * NB * 4):
            a(f"v_mov_b32 v{i}, 0")
        def read_list(stage, buf):
            hi = stage >> 1; so = (stage & 1) * 32768
            l = []
            rb = []
            for ft in range(NB):
                r = fr(buf, 8 + ft)
                if ffn and ft == 6:
                    v = vWs + hi; off = 3072
                else:
                    v = (vWo if ft & 1 else vWe) + hi
                    off = (ft >> 1) * (512 if ffn else 1024)
                rb.append([f"ds_read_b64_tr_b16 a[{r+2*rd}:{r+2*rd+1}], v{v} offset:{so + 16384 + rd*4096 + off}" for rd in range(2)])
            ra = []
            for tt in range(8):
                r = fr(buf, tt)
                ra.append(f"ds_read_b128 a[{r}:{r+3}], v{vAr+hi} offset:{so + tt*1024}")
            l = rb[0] + ra
            for x in rb[1:]: l += x
            return l
        def mfmas(buf):
            l = []
            for ft in range(NB):
                tts = range(8) if ft % 2 == 0 else range(7, -1, -1)
                for tt in tts:
                    c = acc(tt, ft); w = fr(buf, 8 + ft); x = fr(buf, tt)
                    if (not ffn) and ft >= 4: w, x = x, w
                    l.append(f"v_mfma_f32_16x16x32_bf16 v[{c}:{c+3}], a[{w}:{w+3}], a[{x}:{x+3}], v[{c}:{c+3}]")
            return l
        a(f"s_waitcnt vmcnt({3*nd})")
        a("s_barrier")
        a.extend(read_list(0, 0))
        a(f"s_waitcnt vmcnt({2*nd}) lgkmcnt(0)")
        a("s_barrier")
        def step(k4, dma, vm, reads=True, tail=None):
            m = mfmas(k4 & 1)
            n = len(m)
            ex = []
            if reads:
                rl = read_list((k4 + 1) & 3, (k4 + 1) & 1)
                for i, x in enumerate(rl):
                    ex.append(((i * int(n * 0.72)) // len(rl), x))
            if dma:
                dl = dma_list(k4)
                for i, x in enumerate(dl):
                    ex.append((1 + (i * (n - 4)) // len(dl), x))
            ex.sort(key=lambda t: t[0])
            a.extend(weave(m, ex))
            if tail: a.extend(tail)
            if vm is not None:
                a(f"s_waitcnt vmcnt({vm}) lgkmcnt(0)")
                a("s_barrier")
        a(f"s_mov_b32 s{sCnt}, 7")
        a(".p2align 6")
        a(f"L_g1_{kind}_loop:")
        for k4 in range(4):
            step(k4, True, 2 * nd, tail=[f"s_sub_u32 s{sCnt}, s{sCnt}, 1", f"s_cmp_lg_u32 s{sCnt}, 0"] if k4 == 3 else None)
        a(f"s_cbranch_scc1 L_g1_{kind}_loop")
        step(0, False, nd)
        step(1, False, 0)
        step(2, False, 0)
        step(3, False, None, reads=False)
        a("s_nop 7")
        vO = T; P = T + 4
        a(f"v_and_b32 v{L}, 63, v0") if False else None
        if ffn:
            srd(a, sO, 4, WS_A2, SZ_A2)
            a(f"s_lshl_b32 s34, s{sRb}, 14")
            a(f"s_lshl_b32 s35, s{sWr}, 13")
            a(f"s_add_u32 s34, s34, s35")
            a(f"v_lshl_add_u32 v{vO}, v{L}, 4, s34")
            a(f"v_add_u32 v{vO+2}, 4096, v{vO}")
            a(f"s_lshl_b32 s35, s{sWc}, 9")
            a(f"s_add_u32 s34, s34, s35")
            a(f"v_lshrrev_b32 v{T+12}, 5, v{L}")
            a(f"v_lshl_add_u32 v{T+12}, v{T+12}, 8, s34")
            a(f"v_and_b32 v{T+13}, 15, v{L}")
            a(f"v_lshl_add_u32 v{T+12}, v{T+13}, 4, v{T+12}")
            a(f"v_bfe_u32 v{T+13}, v{L}, 4, 1")
            a(f"v_lshl_add_u32 v{T+12}, v{T+13}, 3, v{T+12}")
            a(f"v_add_u32 v{T+13}, 4096, v{T+12}")
            a(f"s_mul_i32 s34, s{sXcd}, 14")
            a(f"s_mul_i32 s35, s{sCt}, 6")
            a(f"s_mul_i32 s36, s{sWc}, 3")
            a(f"s_add_u32 s35, s35, s36")
            a(f"s_add_u32 s35, s35, s34")
            a(f"s_add_u32 s35, s35, 32")
            a(f"s_lshl_b32 s35, s35, 17")
            a(f"s_add_u32 s36, s34, s{sCt}")
            a(f"s_add_u32 s36, s36, 44")
            a(f"s_lshl_b32 s36, s36, 17")
            n = 0
            for p in range(3):
                for tt in range(8):
                    pk = P + 4 * (n & 1); n += 1
                    for e in range(2):
                        c = acc(tt, 2 * p + e)
                        a(f"v_cvt_pk_bf16_f32 v{pk+2*e}, v{c}, v{c+1}")
                        a(f"v_cvt_pk_bf16_f32 v{pk+2*e+1}, v{c+2}, v{c+3}")
                    for e in range(4):
                        a(f"v_pk_max_i16 v{pk+e}, v{pk+e}, 0")
                    a(f"buffer_store_dwordx4 v[{pk}:{pk+3}], v{vO + 2*(tt>>2)}, s[{sO}:{sO+3}], s35 offen offset:{(tt&3)*1024}")
                a(f"s_add_u32 s35, s35, 131072")
            for tt in range(8):
                pk = P + 4 * (n & 1); n += 1
                c = acc(tt, 6)
                a(f"v_cvt_pk_bf16_f32 v{pk}, v{c}, v{c+1}")
                a(f"v_cvt_pk_bf16_f32 v{pk+1}, v{c+2}, v{c+3}")
                a(f"v_pk_max_i16 v{pk}, v{pk}, 0")
                a(f"v_pk_max_i16 v{pk+1}, v{pk+1}, 0")
                a(f"buffer_store_dwordx2 v[{pk}:{pk+1}], v{T+12 + (tt>>2)}, s[{sO}:{sO+3}], s36 offen offset:{(tt&3)*1024}")
            a("s_endpgm")
        else:
            srd(a, sO, 4, WS_Q, SZ_Q + SZ_KV)
            a(f"s_lshl_b32 s37, s37, 1")
            a(f"s_add_u32 s37, s37, s{sWc}")
            a(f"s_lshl_b32 s34, s{sRb}, 3")
            a(f"s_lshl_b32 s35, s{sWr}, 2")
            a(f"s_add_u32 s34, s34, s35")
            a(f"s_lshl_b32 s35, s37, 17")
            a(f"s_lshl_b32 s36, s34, 11")
            a(f"s_add_u32 s35, s35, s36")
            a(f"s_lshl_b32 s36, s35, 1")
            a(f"s_add_u32 s36, s36, {SZ_Q}")
            a(f"v_lshrrev_b32 v{T+12}, 4, v{L}")
            a(f"v_lshlrev_b32 v{T+12}, 9, v{T+12}")
            a(f"v_and_b32 v{T+13}, 15, v{L}")
            a(f"v_lshl_add_u32 v{vO}, v{T+13}, 4, v{T+12}")
            a(f"v_bfe_u32 v{T+13}, v{L}, 3, 1")
            a(f"v_lshl_add_u32 v{T+12}, v{T+13}, 8, v{T+12}")
            a(f"v_and_b32 v{T+13}, 7, v{L}")
            a(f"v_lshl_add_u32 v{vO+2}, v{T+13}, 4, v{T+12}")
            a(f"s_mov_b32 s38, {f2u(QSCALE):#x}")
            n = 0
            for b in range(4):
                for h in range(2):
                    tt = 2 * b + h
                    pk = P + 4 * (n & 1); n += 1
                    for e in range(2):
                        c = acc(tt, 2 + e)
                        a(f"v_cvt_pk_bf16_f32 v{pk+2*e}, v{c}, v{c+1}")
                        a(f"v_cvt_pk_bf16_f32 v{pk+2*e+1}, v{c+2}, v{c+3}")
                    a(f"buffer_store_dwordx4 v[{pk}:{pk+3}], v{vO+2}, s[{sO}:{sO+3}], s36 offen offset:{h*128}")
                for vt in range(2):
                    pk = P + 4 * (n & 1); n += 1
                    for e in range(2):
                        c = acc(2 * b + e, 4 + vt)
                        a(f"v_cvt_pk_bf16_f32 v{pk+2*e}, v{c}, v{c+1}")
                        a(f"v_cvt_pk_bf16_f32 v{pk+2*e+1}, v{c+2}, v{c+3}")
                    a(f"buffer_store_dwordx4 v[{pk}:{pk+3}], v{vO}, s[{sO}:{sO+3}], s36 offen offset:{2048 + vt*256}")
                for h in range(2):
                    tt = 2 * b + h
                    pk = P + 4 * (n & 1); n += 1
                    for e in range(2):
                        c = acc(tt, e)
                        for r in range(4):
                            a(f"v_mul_f32 v{c+r}, s38, v{c+r}")
                        a(f"v_cvt_pk_bf16_f32 v{pk+2*e}, v{c}, v{c+1}")
                        a(f"v_cvt_pk_bf16_f32 v{pk+2*e+1}, v{c+2}, v{c+3}")
                    a(f"buffer_store_dwordx4 v[{pk}:{pk+3}], v{vO}, s[{sO}:{sO+3}], s35 offen offset:{h*256}")
                a(f"s_add_u32 s35, s35, 2048")
                a(f"s_add_u32 s36, s36, 4096")
            a("L_g1_end:")
            a("s_endpgm")
    body("ffn")
    a("L_g1_qkv:")
    body("qkv")
    return a, descriptor(name, 256 + 120, 256, 48), f"; @launch kernel={name} grid=(256,1,1) block=(256,1,1) lds=131072"


def gen_attn():
    a = Asm()
    name = "attn_kernel"
    header(a, name)
    S = [0, 16]
    NM = 32
    O = 48
    Lr = 64
    P = 68
    Q = 76
    Kf = [84, 92]
    Vf = [100, 108]
    ONE = 116
    vL16 = 120
    vDma = 121
    vCur, vPrev = 122, 123
    T = 124
    NV = 128
    sKV, sQ, sO = 8, 12, 16
    sSo, sM0, sCnt, sWave, sHead, sQb, sRing = 20, 21, 22, 23, 24, 25, 26
    a("s_cmp_ge_u32 s2, 256")
    a("s_cbranch_scc1 L_at_end")
    a(f"s_load_dwordx2 s[4:5], s[0:1], {KA_WS}")
    a(f"v_lshrrev_b32 v{T}, 6, v0")
    a(f"v_and_b32 v{T+1}, 63, v0")
    a(f"v_readfirstlane_b32 s{sWave}, v{T}")
    a(f"v_lshlrev_b32 v{vL16}, 4, v{T+1}")
    a(f"s_and_b32 s3, s2, 7")
    a(f"s_lshr_b32 s6, s2, 3")
    a(f"s_and_b32 s7, s6, 3")
    a(f"s_lshl_b32 s{sHead}, s3, 2")
    a(f"s_add_u32 s{sHead}, s{sHead}, s7")
    a(f"s_lshr_b32 s6, s6, 2")
    a(f"s_lshl_b32 s{sQb}, s6, 3")
    a(f"s_add_u32 s{sQb}, s{sQb}, s{sWave}")
    a(f"s_lshl_b32 s{sM0}, s{sWave}, 11")
    a(f"v_add_u32 v{vDma}, s{sM0}, v{vL16}")
    a(f"s_lshl_b32 s{sSo}, s{sHead}, 18")
    a(f"s_lshl_b32 s6, s{sHead}, 17")
    a(f"s_lshl_b32 s7, s{sQb}, 11")
    a(f"s_add_u32 s27, s6, s7")
    a("s_waitcnt lgkmcnt(0)")
    srd(a, sKV, 4, WS_KV, SZ_KV)
    srd(a, sQ, 4, WS_Q, SZ_Q)
    srd(a, sO, 4, WS_A2, SZ_A2)
    a(f"buffer_load_dwordx4 v[{Q}:{Q+3}], v{vL16}, s[{sQ}:{sQ+3}], s27 offen")
    a(f"buffer_load_dwordx4 v[{Q+4}:{Q+7}], v{vL16}, s[{sQ}:{sQ+3}], s27 offen offset:1024")
    for c in range(8):
        a(f"s_add_u32 m0, s{sM0}, {c*16384}")
        a("s_nop 0")
        a(f"buffer_load_dwordx4 v{vDma}, s[{sKV}:{sKV+3}], s{sSo} offen lds")
        a(f"buffer_load_dwordx4 v{vDma}, s[{sKV}:{sKV+3}], s{sSo} offen offset:1024 lds")
        a(f"s_add_u32 s{sSo}, s{sSo}, 16384")
    a(f"v_lshrrev_b32 v{T}, 2, v{T+1}")
    a(f"v_lshrrev_b32 v{T+2}, 4, v{T+1}")
    a(f"v_xor_b32 v{T}, v{T}, v{T+2}")
    a(f"v_and_b32 v{T}, 1, v{T}")
    a(f"v_and_b32 v{T+2}, 3, v{T+1}")
    a(f"v_or_b32 v{T}, v{T}, v{T+2}")
    a(f"v_cmp_eq_u32 vcc, 0, v{T}")
    a(f"v_mov_b32 v{T+2}, 0x3f803f80")
    a("s_nop 0")
    a(f"v_cndmask_b32 v{ONE}, 0, v{T+2}, vcc")
    for i in range(1, 4): a(f"v_mov_b32 v{ONE+i}, v{ONE}")
    for i in range(16): a(f"v_mov_b32 v{O+i}, 0")
    for i in range(4): a(f"v_mov_b32 v{Lr+i}, 0")
    a(f"v_mov_b32 v{vCur}, v{vL16}")
    a(f"s_mov_b32 s{sRing}, 0")

    def rdK(t, v, tl):
        b = Kf[t & 1]
        return [f"ds_read_b128 v[{b}:{b+3}], v{v} offset:{tl*4096}",
                f"ds_read_b128 v[{b+4}:{b+7}], v{v} offset:{tl*4096+1024}"]
    def rdV(t, v, tl):
        b = Vf[t & 1]
        return [f"ds_read_b128 v[{b}:{b+3}], v{v} offset:{tl*4096+2048}",
                f"ds_read_b128 v[{b+4}:{b+7}], v{v} offset:{tl*4096+3072}"]
    def qk(t, c0=None):
        s = S[t & 1]; k = Kf[t & 1]
        c = f"v[{NM}:{NM+15}]" if c0 is None else c0
        return [f"v_mfma_f32_32x32x16_bf16 v[{s}:{s+15}], v[{k}:{k+3}], v[{Q}:{Q+3}], {c}",
                f"v_mfma_f32_32x32x16_bf16 v[{s}:{s+15}], v[{k+4}:{k+7}], v[{Q+4}:{Q+7}], v[{s}:{s+15}]"]
    def it(t, rK=None, rV=None, doqk=True):
        s = S[t & 1]; v = Vf[t & 1]
        a("s_waitcnt lgkmcnt(0)")
        q = qk(t + 1) if doqk else []
        rd = (rdK(t + 2, *rK) if rK else []) + (rdV(t + 1, *rV) if rV else [])
        E = lambda i: f"v_exp_f32 v{s+i}, v{s+i}"
        C = lambda i: f"v_cvt_pk_bf16_f32 v{P+i}, v{s+2*i}, v{s+2*i+1}"
        PV = lambda h: f"v_mfma_f32_32x32x16_bf16 v[{O}:{O+15}], v[{v+4*h}:{v+4*h+3}], v[{P+4*h}:{P+4*h+3}], v[{O}:{O+15}]"
        LS = lambda h: f"v_mfma_f32_16x16x32_bf16 v[{Lr}:{Lr+3}], v[{ONE}:{ONE+3}], v[{P+4*h}:{P+4*h+3}], v[{Lr}:{Lr+3}]"
        seq = []
        if q: seq.append(q[0])
        seq += [E(0)] + rd[0:1] + [E(1)] + rd[1:2] + [E(2), C(0), E(3)]
        if q: seq.append(q[1])
        seq += [E(4), C(1)] + rd[2:3] + [E(5)] + rd[3:4] + [E(6), C(2), E(7), E(8), C(3), E(9), E(10), PV(0), C(4), E(11), E(12), C(5), E(13), LS(0), E(14), C(6), E(15), "s_nop 0", C(7), "s_nop 1", PV(1), LS(1)]
        a.extend(seq)

    a("s_waitcnt vmcnt(14)")
    a("s_barrier")
    a.extend(rdK(0, vCur, 0))
    a.extend(rdK(1, vCur, 1))
    a.extend(rdV(0, vCur, 0))
    a("s_waitcnt lgkmcnt(4)")
    a.extend(qk(0, "0"))
    a("s_nop 15")
    s0 = S[0]
    a(f"v_max3_f32 v{T}, v{s0}, v{s0+1}, v{s0+2}")
    for i in range(3, 15, 2):
        a(f"v_max3_f32 v{T}, v{T}, v{s0+i}, v{s0+i+1}")
    a(f"v_max_f32 v{T}, v{T}, v{s0+15}")
    a(f"v_mov_b32 v{T+2}, v{T}")
    a("s_nop 1")
    a(f"v_permlane32_swap_b32 v{T}, v{T+2}")
    a(f"v_max_f32 v{T}, v{T}, v{T+2}")
    for i in range(16): a(f"v_sub_f32 v{NM+i}, 0, v{T}")
    for i in range(16): a(f"v_sub_f32 v{s0+i}, v{s0+i}, v{T}")
    it(0, (vCur, 2), (vCur, 1))
    it(1, (vCur, 3), (vCur, 2))
    a(f"s_mov_b32 s{sCnt}, 1")
    a(".p2align 6")
    a("L_at_loop:")
    a(f"v_mov_b32 v{vPrev}, v{vCur}")
    a(f"s_add_u32 s{sRing}, s{sRing}, 16384")
    a(f"s_and_b32 s{sRing}, s{sRing}, 0x1ffff")
    a(f"v_add_u32 v{vCur}, s{sRing}, v{vL16}")
    a(f"s_cmp_gt_u32 s{sCnt}, 11")
    a("s_cbranch_scc1 L_at_go")
    a(f"s_cmp_gt_u32 s{sCnt}, 9")
    a("s_cbranch_scc1 L_at_drain")
    a("s_waitcnt vmcnt(10)")
    a("s_barrier")
    a(f"s_cmp_lt_u32 s{sCnt}, 2")
    a("s_cbranch_scc1 L_at_go")
    a(f"s_sub_u32 s27, s{sRing}, 32768")
    a(f"s_and_b32 s27, s27, 0x1ffff")
    a(f"s_add_u32 m0, s27, s{sM0}")
    a("s_nop 0")
    a(f"buffer_load_dwordx4 v{vDma}, s[{sKV}:{sKV+3}], s{sSo} offen lds")
    a(f"buffer_load_dwordx4 v{vDma}, s[{sKV}:{sKV+3}], s{sSo} offen offset:1024 lds")
    a(f"s_add_u32 s{sSo}, s{sSo}, 16384")
    a("s_branch L_at_go")
    a("L_at_drain:")
    a(f"s_cmp_eq_u32 s{sCnt}, 10")
    a("s_cbranch_scc1 L_at_d10")
    a("s_waitcnt vmcnt(0)")
    a("L_at_d10:")
    a("s_waitcnt vmcnt(10)")
    a("s_barrier")
    a("L_at_go:")
    it(2, (vCur, 0), (vPrev, 3))
    it(3, (vCur, 1), (vCur, 0))
    it(4, (vCur, 2), (vCur, 1))
    it(5, (vCur, 3), (vCur, 2))
    a(f"s_add_u32 s{sCnt}, s{sCnt}, 1")
    a(f"s_cmp_lt_u32 s{sCnt}, 16")
    a("s_cbranch_scc1 L_at_loop")
    it(62, None, (vCur, 3))
    it(63, None, None, doqk=False)
    a("s_nop 15")
    a(f"v_mul_f32 v{T}, 0, v{O}")
    for i in range(1, 16):
        a(f"v_fma_f32 v{T}, v{O+i}, 0, v{T}")
    a(f"s_mov_b32 s27, {f2u(2.0**40):#x}")
    a(f"v_cmp_ngt_f32 vcc, s27, v{Lr}")
    a(f"v_cmp_u_f32 s[30:31], v{T}, v{T}")
    a("s_nop 1")
    a("s_or_b64 vcc, vcc, s[30:31]")
    a("s_cbranch_vccnz L_at_slow")
    a("L_at_fin:")
    a(f"v_rcp_f32 v{T}, v{Lr}")
    a("s_nop 0")
    for i in range(16): a(f"v_mul_f32 v{O+i}, v{O+i}, v{T}")
    for u in range(2):
        for e in range(2):
            c = O + 8 * e + 4 * u
            a(f"v_cvt_pk_bf16_f32 v{P+4*u+2*e}, v{c}, v{c+1}")
            a(f"v_cvt_pk_bf16_f32 v{P+4*u+2*e+1}, v{c+2}, v{c+3}")
    a(f"v_lshrrev_b32 v{T+1}, 4, v{vL16}")
    a(f"v_bfe_u32 v{T+2}, v{T+1}, 4, 1")
    a(f"v_lshlrev_b32 v{T+2}, 10, v{T+2}")
    a(f"v_lshrrev_b32 v{T+3}, 5, v{T+1}")
    a(f"v_lshl_add_u32 v{T+2}, v{T+3}, 8, v{T+2}")
    a(f"v_and_b32 v{T+3}, 15, v{T+1}")
    a(f"v_lshl_add_u32 v{T+2}, v{T+3}, 4, v{T+2}")
    a(f"s_lshl_b32 s27, s{sHead}, 17")
    a(f"s_lshl_b32 s28, s{sQb}, 11")
    a(f"s_add_u32 s27, s27, s28")
    a(f"buffer_store_dwordx4 v[{P}:{P+3}], v{T+2}, s[{sO}:{sO+3}], s27 offen")
    a(f"buffer_store_dwordx4 v[{P+4}:{P+7}], v{T+2}, s[{sO}:{sO+3}], s27 offen offset:512")
    a("L_at_end:")
    a("s_endpgm")
    a("L_at_slow:")
    M = NM; AL = NM + 1; MN = NM + 2; LL = NM + 3
    a(f"v_mov_b32 v{M}, 0xff800000")
    a(f"v_mov_b32 v{LL}, 0")
    for i in range(16): a(f"v_mov_b32 v{O+i}, 0")
    a(f"s_lshl_b32 s{sSo}, s{sHead}, 18")
    a(f"s_mov_b32 s{sCnt}, 0")
    a("L_at_sloop:")
    k = Kf[0]; v = Vf[0]; s = S[0]
    a(f"buffer_load_dwordx4 v[{k}:{k+3}], v{vL16}, s[{sKV}:{sKV+3}], s{sSo} offen")
    a(f"buffer_load_dwordx4 v[{k+4}:{k+7}], v{vL16}, s[{sKV}:{sKV+3}], s{sSo} offen offset:1024")
    a(f"buffer_load_dwordx4 v[{v}:{v+3}], v{vL16}, s[{sKV}:{sKV+3}], s{sSo} offen offset:2048")
    a(f"buffer_load_dwordx4 v[{v+4}:{v+7}], v{vL16}, s[{sKV}:{sKV+3}], s{sSo} offen offset:3072")
    a("s_waitcnt vmcnt(0)")
    a.extend(qk(0, "0"))
    a("s_nop 15")
    a(f"v_max3_f32 v{T}, v{s}, v{s+1}, v{s+2}")
    for i in range(3, 15, 2):
        a(f"v_max3_f32 v{T}, v{T}, v{s+i}, v{s+i+1}")
    a(f"v_max_f32 v{T}, v{T}, v{s+15}")
    a(f"v_mov_b32 v{T+2}, v{T}")
    a("s_nop 1")
    a(f"v_permlane32_swap_b32 v{T}, v{T+2}")
    a(f"v_max3_f32 v{MN}, v{T}, v{T+2}, v{M}")
    a(f"v_sub_f32 v{AL}, v{M}, v{MN}")
    a(f"v_exp_f32 v{AL}, v{AL}")
    a(f"v_mov_b32 v{M}, v{MN}")
    for i in range(16): a(f"v_sub_f32 v{s+i}, v{s+i}, v{MN}")
    for i in range(16): a(f"v_exp_f32 v{s+i}, v{s+i}")
    for i in range(16): a(f"v_mul_f32 v{O+i}, v{O+i}, v{AL}")
    for i in range(8): a(f"v_cvt_pk_bf16_f32 v{P+i}, v{s+2*i}, v{s+2*i+1}")
    a(f"v_mul_f32 v{LL}, v{LL}, v{AL}")
    a("s_nop 1")
    a(f"v_mfma_f32_16x16x32_bf16 v[{Lr}:{Lr+3}], v[{ONE}:{ONE+3}], v[{P}:{P+3}], 0")
    a(f"v_mfma_f32_16x16x32_bf16 v[{Lr}:{Lr+3}], v[{ONE}:{ONE+3}], v[{P+4}:{P+7}], v[{Lr}:{Lr+3}]")
    for h in range(2):
        a(f"v_mfma_f32_32x32x16_bf16 v[{O}:{O+15}], v[{v+4*h}:{v+4*h+3}], v[{P+4*h}:{P+4*h+3}], v[{O}:{O+15}]")
    a("s_nop 15")
    a(f"v_add_f32 v{LL}, v{LL}, v{Lr}")
    a(f"s_add_u32 s{sSo}, s{sSo}, 4096")
    a(f"s_add_u32 s{sCnt}, s{sCnt}, 1")
    a(f"s_cmp_lt_u32 s{sCnt}, 64")
    a("s_cbranch_scc1 L_at_sloop")
    a(f"v_mov_b32 v{Lr}, v{LL}")
    a("s_branch L_at_fin")
    return a, descriptor(name, NV, NV, 48), f"; @launch kernel={name} grid=(256,1,1) block=(512,1,1) lds=131072"

def gen_gemm2():
    a = Asm()
    name = "gemm2_kernel"
    header(a, name)
    vA = 128
    vW = 130
    vWe, vWo = 134, 135
    vX = 136
    L = 137
    vRw, vRr = 138, 139
    T = 140
    X = 152
    R = 168
    NV = 200
    sA, sW, sX, sO = 8, 12, 16, 20
    sKA, sKW, sM0, sCnt, sWave, sRb, sCb = 24, 25, 26, 27, 28, 29, 30
    def acc(tt, ft): return (tt * 4 + ft) * 4
    def ab(buf, tt): return buf * 32 + tt * 4
    def wf(buf, ft): return 128 + buf * 16 + ft * 4
    a("s_cmp_ge_u32 s2, 256")
    a("s_cbranch_scc1 L_g2_end")
    a(f"s_load_dwordx2 s[4:5], s[0:1], {KA_WS}")
    a(f"s_load_dwordx2 s[6:7], s[0:1], {KA_WO}")
    a(f"s_load_dwordx2 s[32:33], s[0:1], {KA_W2}")
    a(f"s_load_dwordx2 s[34:35], s[0:1], {KA_X}")
    a(f"s_load_dwordx2 s[36:37], s[0:1], {KA_OUT}")
    a(f"v_lshrrev_b32 v{T}, 6, v0")
    a(f"v_and_b32 v{L}, 63, v0")
    a(f"v_readfirstlane_b32 s{sWave}, v{T}")
    a("s_and_b32 s3, s2, 7")
    a("s_lshr_b32 s38, s2, 3")
    a("s_lshr_b32 s39, s3, 1")
    a("s_lshl_b32 s39, s39, 2")
    a("s_and_b32 s40, s38, 3")
    a(f"s_add_u32 s{sRb}, s39, s40")
    a("s_and_b32 s39, s3, 1")
    a("s_lshl_b32 s39, s39, 3")
    a("s_lshr_b32 s40, s38, 2")
    a(f"s_add_u32 s{sCb}, s39, s40")
    a(f"s_lshl_b32 s38, s{sRb}, 13")
    a(f"v_lshl_add_u32 v{vA}, v{L}, 4, s38")
    a(f"v_add_u32 v{vA+1}, 4096, v{vA}")
    a(f"v_lshrrev_b32 v{T+2}, 5, v{L}")
    a(f"v_bfe_u32 v{T+3}, v{L}, 4, 1")
    a(f"v_bfe_u32 v{T+4}, v{L}, 2, 2")
    a(f"v_and_b32 v{T+5}, 3, v{L}")
    a(f"v_lshl_add_u32 v{T+6}, v{T+3}, 2, v{T+4}")
    a(f"v_lshlrev_b32 v{T+6}, 11, v{T+6}")
    a(f"v_lshlrev_b32 v{T+7}, 1, v{T+3}")
    a(f"v_xor_b32 v{T+7}, v{T+7}, v{T+5}")
    a(f"v_lshl_add_u32 v{T+6}, v{T+7}, 4, v{T+6}")
    a(f"v_lshl_add_u32 v{T+6}, v{T+2}, 6, v{T+6}")
    a(f"s_lshl_b32 s38, s{sCb}, 7")
    a(f"v_add_u32 v{vW}, s38, v{T+6}")
    for pc in range(1, 4):
        a(f"v_add_u32 v{vW+pc}, {pc*(16384-1024)}, v{vW}")
    a(f"s_lshl_b32 s{sM0}, s{sWave}, 14")
    a(f"v_lshl_add_u32 v{T+6}, v{T+2}, 10, s{sM0}")
    a(f"v_lshl_add_u32 v{T+6}, v{T+3}, 8, v{T+6}")
    a(f"v_lshl_add_u32 v{T+6}, v{T+4}, 6, v{T+6}")
    a(f"v_lshl_add_u32 v{T+6}, v{T+3}, 5, v{T+6}")
    a(f"v_lshl_add_u32 v{vWe}, v{T+5}, 3, v{T+6}")
    a(f"v_xor_b32 v{vWo}, 32, v{vWe}")
    a(f"s_lshl_b32 s39, s{sRb}, 7")
    a(f"s_lshl_b32 s40, s{sWave}, 5")
    a(f"s_add_u32 s39, s39, s40")
    a(f"s_lshl_b32 s39, s39, 11")
    a(f"s_add_u32 s39, s39, s38")
    a(f"v_and_b32 v{T+6}, 15, v{L}")
    a(f"v_lshl_add_u32 v{T+6}, v{T+6}, 11, s39")
    a(f"v_lshrrev_b32 v{T+7}, 4, v{L}")
    a(f"v_lshl_add_u32 v{vX}, v{T+7}, 3, v{T+6}")
    a(f"s_lshl_b32 s{sKA}, s{sWave}, 17")
    a(f"s_lshl_b32 s{sKW}, s{sWave}, 16")
    a("s_waitcnt lgkmcnt(0)")
    srd(a, sA, 4, WS_A2, SZ_A2)
    srd(a, sW, 6, 0, 1024 * 2048)
    srd(a, sX, 34, 0, 4 * MB)
    srd(a, sO, 36, 0, 4 * MB)
    a("s_mov_b32 s41, 32768")
    for h in range(2):
        for ft in range(4):
            r = X + (h * 4 + ft) * 2
            a(f"buffer_load_dwordx2 v[{r}:{r+1}], v{vX}, s[{sX}:{sX+3}], {'0' if h == 0 else 's41'} offen offset:{ft*32}")
    def wdma(slot):
        l = [[f"s_add_u32 m0, s{sM0}, {slot*4096}"]]
        for pc in range(4):
            l.append([f"buffer_load_dwordx4 v{vW+pc}, s[{sW}:{sW+3}], s{sKW} offen offset:{pc*1024} lds"])
        l.append([f"s_add_u32 s{sKW}, s{sKW}, {4*65536}"])
        return l
    def aload(buf, tt):
        r = ab(buf, tt)
        return f"buffer_load_dwordx4 a[{r}:{r+3}], v{vA + (tt>>2)}, s[{sA}:{sA+3}], s{sKA} offen offset:{(tt&3)*1024}"
    def wread(slot, buf):
        l = []
        for ft in range(4):
            r = wf(buf, ft)
            for rd in range(2):
                l.append(f"ds_read_b64_tr_b16 a[{r+2*rd}:{r+2*rd+1}], v{vWo if ft&1 else vWe} offset:{slot*4096 + rd*2048 + (ft>>1)*512}")
        return l
    for st in range(4):
        for k, x in enumerate(wdma(st)):
            a.extend(x)
            if k == 0: a("s_nop 0")
        for tt in range(8): a(aload(st, tt))
        a(f"s_add_u32 s{sKA}, s{sKA}, {4*131072}")
    for i in range(128): a(f"v_mov_b32 v{i}, 0")
    a("s_waitcnt vmcnt(44)")
    a.extend(wread(0, 0))
    def step(v, loads, vm, reads=True, tail=None):
        a(f"s_waitcnt vmcnt({vm}) lgkmcnt(0)")
        m = []
        for tt in range(8):
            fts = range(4) if tt % 2 == 0 else range(3, -1, -1)
            for ft in fts:
                c = acc(tt, ft); w = wf(v & 1, ft); x = ab(v, tt)
                m.append(f"v_mfma_f32_16x16x32_bf16 v[{c}:{c+3}], a[{w}:{w+3}], a[{x}:{x+3}], v[{c}:{c+3}]")
        ex = []
        if loads:
            for i, x in enumerate(wdma(v)):
                ex.append((min(i, 2) if i < 2 else i, x))
            for tt in range(8):
                ex.append((max(4 * tt + 3, 6 + tt), aload(v, tt)))
            ex.append((31, f"s_add_u32 s{sKA}, s{sKA}, {4*131072}"))
        if reads:
            for i, x in enumerate(wread((v + 1) & 3, (v + 1) & 1)):
                ex.append((8 + 2 * i, x))
        ex.sort(key=lambda t: t[0])
        a.extend(weave(m, ex))
        if tail: a.extend(tail)
    a(f"s_mov_b32 s{sCnt}, 0")
    a(".p2align 6")
    a("L_g2_loop:")
    for v in range(4):
        step(v, True, 32)
    a(f"s_cmp_lg_u32 s{sCnt}, 0")
    a("s_cbranch_scc1 L_g2_nosw")
    srd(a, sW, 32, 0, 3584 * 2048)
    a(f"s_lshl_b32 s{sKW}, s{sWave}, 16")
    a("L_g2_nosw:")
    a(f"s_add_u32 s{sCnt}, s{sCnt}, 1")
    a(f"s_cmp_lt_u32 s{sCnt}, 8")
    a("s_cbranch_scc1 L_g2_loop")
    step(0, False, 32)
    step(1, False, 20)
    step(2, False, 8)
    step(3, False, 0, reads=False)
    a(f"v_lshlrev_b32 v{vRr}, 4, v{L}")
    a("s_nop 7")
    for d in range(4):
        a(f"s_cmp_eq_u32 s{sWave}, {d}")
        a(f"s_cbranch_scc1 L_g2_skip{d}")
        a(f"s_sub_u32 s38, s{sWave}, {d+1}")
        a(f"s_and_b32 s38, s38, 3")
        a(f"s_lshl_b32 s38, s38, 13")
        a(f"s_add_u32 s38, s38, {65536 + d*24576}")
        a(f"v_add_u32 v{vRw}, s38, v{vRr}")
        for h in range(2):
            for ft in range(4):
                c = acc(2 * d + h, ft)
                a(f"ds_write_b128 v{vRw}, v[{c}:{c+3}] offset:{(h*4+ft)*1024}")
        a(f"L_g2_skip{d}:")
    for d in range(1, 4):
        a(f"s_cmp_lg_u32 s{sWave}, {d}")
        a(f"s_cbranch_scc1 L_g2_mv{d}")
        a("s_waitcnt lgkmcnt(0)")
        for i in range(32): a(f"v_mov_b32 v{i}, v{32*d+i}")
        a(f"L_g2_mv{d}:")
    a(f"s_mul_i32 s38, s{sWave}, 24576")
    a(f"s_add_u32 s38, s38, 65536")
    a(f"v_add_u32 v{vRr}, s38, v{vRr}")
    a("s_waitcnt lgkmcnt(0)")
    a("s_barrier")
    for sl in range(3):
        base = 32 + 32 * sl
        for i in range(8):
            a(f"ds_read_b128 v[{base+4*i}:{base+4*i+3}], v{vRr} offset:{sl*8192 + i*1024}")
    a("s_mov_b32 s38, 0xffff0000")
    for i in range(8):
        r = X + 2 * i
        a(f"v_lshlrev_b32 v{T}, 16, v{r}")
        a(f"v_and_b32 v{T+1}, s38, v{r}")
        a(f"v_lshlrev_b32 v{T+2}, 16, v{r+1}")
        a(f"v_and_b32 v{T+3}, s38, v{r+1}")
        for j in range(4): a(f"v_add_f32 v{4*i+j}, v{4*i+j}, v{T+j}")
    for sl in range(3):
        a(f"s_waitcnt lgkmcnt({min(15, 16 - 8*sl)})" if sl < 2 else "s_waitcnt lgkmcnt(0)") if sl > 0 else a("s_waitcnt lgkmcnt(15)")
        if sl == 0: a("s_waitcnt lgkmcnt(8)")
        for i in range(32): a(f"v_add_f32 v{i}, v{i}, v{32+32*sl+i}")
    for i in range(8):
        a(f"v_cvt_pk_bf16_f32 v{X+2*i}, v{4*i}, v{4*i+1}")
        a(f"v_cvt_pk_bf16_f32 v{X+2*i+1}, v{4*i+2}, v{4*i+3}")
        a(f"buffer_store_dwordx2 v[{X+2*i}:{X+2*i+1}], v{vX}, s[{sO}:{sO+3}], {'0' if i < 4 else 's41'} offen offset:{(i&3)*32}")
    a("L_g2_end:")
    a("s_endpgm")
    return a, descriptor(name, NV + 160, NV, 48), f"; @launch kernel={name} grid=(256,1,1) block=(256,1,1) lds=163840"

def build(kernels, path):
    ref = open(os.path.join(os.path.dirname(os.path.abspath(__file__)), "..", "cdna_kernels", NAME + ".s.ref")).read()
    head = [l for l in ref.split("\n") if l.startswith(";") and "@launch" not in l and "Override" not in l and "grid=ceil" not in l]
    out = "\n".join(head) + "\n"
    for a, d, l in kernels: out += l + "\n"
    out += '.amdgcn_target "amdgcn-amd-amdhsa--gfx950"\n.text\n'
    bad = 0
    for a, d, l in kernels:
        out += a.text()
        for p in a.check(l.split("kernel=")[1].split()[0]):
            print("HAZARD", p); bad += 1
    out += '.section .rodata,"a"\n'
    for a, d, l in kernels:
        out += ".p2align 6\n" + d
    open(path, "w").write(out)
    return bad

if __name__ == "__main__":
    ks = [gen_ln(), gen_gemm1(), gen_attn(), gen_gemm2()]
    path = sys.argv[1] if len(sys.argv) > 1 else "cdna_kernels/" + NAME + ".s"
    bad = build(ks, path)
    print("written", path, "hazards:", bad)
```

```python
import sys, os
sys.path.insert(0, os.path.dirname(os.path.abspath(__file__)))
from asmdsl import Asm, weave

NAME = "parallel_sum__softmax_full_mha__dense_activation_relu__prompt"
KA_X, KA_WQKV, KA_WO, KA_BX, KA_W1, KA_W2, KA_OUT, KA_DBG, KA_WS = 0, 8, 16, 24, 32, 40, 48, 56, 64
MB = 1 << 20
WS_XN, WS_Q, WS_KV, WS_A2 = 0, 4 * MB, 8 * MB, 16 * MB
SZ_XN, SZ_Q, SZ_KV, SZ_A2 = 4 * MB, 4 * MB, 8 * MB, 144 * 128 * 1024
SRD3 = "0x00020000"

def f2u(x):
    import struct
    return struct.unpack("<I", struct.pack("<f", x))[0]

def srd(a, d, b, off, size):
    if off >= 0:
        a(f"s_add_u32 s{d}, s{b}, {off}")
        a(f"s_addc_u32 s{d+1}, s{b+1}, 0")
    else:
        a(f"s_sub_u32 s{d}, s{b}, {-off}")
        a(f"s_subb_u32 s{d+1}, s{b+1}, 0")
    a(f"s_mov_b32 s{d+2}, {size}")
    a(f"s_mov_b32 s{d+3}, {SRD3}")

STAMP = int(os.environ.get("STAMP", "0"))
DMAF = float(os.environ.get("DMAF", "0.5"))
PF2 = int(os.environ.get("PF2", "1"))
WS_ST = 64 * MB
def stamp(a, idx):
    if STAMP:
        a(f"{'s_memtime' if STAMP == 2 else 's_memrealtime'} s[{60+2*idx}:{61+2*idx}]")
def stamp_flush(a, kidx, n, vt, wsptr=(4, 5)):
    if not STAMP: return
    a("s_waitcnt vmcnt(0)")
    stamp(a, n - 1)
    a("s_waitcnt lgkmcnt(0)")
    srd(a, 88, wsptr[0], WS_ST + kidx * MB, MB)
    a("s_lshl_b32 s92, s2, 4")
    a("s_add_u32 s92, s92, s59")
    a("s_lshl_b32 s92, s92, 6")
    a(f"v_mov_b32 v{vt}, 0")
    for i in range(n):
        a(f"v_mov_b32 v{vt+1}, s{60+2*i}")
        a(f"buffer_store_dword v{vt+1}, v{vt}, s[88:91], s92 offen offset:{4*i}")
    a("s_getreg_b32 s93, hwreg(HW_REG_XCC_ID)")
    a(f"v_mov_b32 v{vt+1}, s93")
    a(f"buffer_store_dword v{vt+1}, v{vt}, s[88:91], s92 offen offset:60")

def header(a, name):
    a(f".globl {name}")
    a(".p2align 8")
    a(f".type {name},@function")
    a(f"{name}:")

def descriptor(name, nv, acc_off, ns=102):
    if STAMP: ns = 102
    return f""".amdhsa_kernel {name}
  .amdhsa_next_free_vgpr {nv}
  .amdhsa_next_free_sgpr {ns}
  .amdhsa_accum_offset {acc_off}
  .amdhsa_group_segment_fixed_size 0
  .amdhsa_kernarg_size 72
  .amdhsa_user_sgpr_count 2
  .amdhsa_user_sgpr_kernarg_segment_ptr 1
  .amdhsa_system_sgpr_workgroup_id_x 1
.end_amdhsa_kernel
"""

def xreduce(a, v, t):
    a(f"s_nop 1")
    a(f"v_add_f32_dpp v{t}, v{v}, v{v} quad_perm:[1,0,3,2] row_mask:0xf bank_mask:0xf")
    a(f"s_nop 1")
    a(f"v_add_f32_dpp v{v}, v{t}, v{t} quad_perm:[2,3,0,1] row_mask:0xf bank_mask:0xf")
    a(f"s_nop 1")
    a(f"v_add_f32_dpp v{t}, v{v}, v{v} row_ror:8 row_mask:0xf bank_mask:0xf")
    a(f"v_mov_b32 v{v}, v{t}")
    a(f"s_nop 1")
    a(f"v_permlane16_swap_b32 v{t}, v{v}")
    a(f"v_add_f32 v{v}, v{t}, v{v}")
    a(f"v_mov_b32 v{t}, v{v}")
    a(f"s_nop 1")
    a(f"v_permlane32_swap_b32 v{t}, v{v}")
    a(f"v_add_f32 v{v}, v{t}, v{v}")

def bf16round(a, v):
    a(f"v_cvt_pk_bf16_f32 v{v}, v{v}, v{v}")
    a(f"v_and_b32 v{v}, 0xffff0000, v{v}")

def gen_ln():
    a = Asm()
    name = "ln_kernel"
    header(a, name)
    a("s_cmp_ge_u32 s2, 256")
    a("s_cbranch_scc1 L_ln_end")
    stamp(a, 0)
    a(f"s_load_dwordx2 s[4:5], s[0:1], {KA_X}")
    a(f"s_load_dwordx2 s[6:7], s[0:1], {KA_WS}")
    a("v_and_b32 v1, 63, v0")
    a("v_lshrrev_b32 v2, 6, v0")
    a("v_bfe_u32 v3, v1, 2, 1")
    if STAMP: a("v_readfirstlane_b32 s59, v2")
    a("v_lshl_add_u32 v3, v2, 1, v3")
    a("s_lshl_b32 s3, s2, 3")
    a("v_add_u32 v3, s3, v3")
    a("v_and_b32 v4, 3, v1")
    a("v_lshrrev_b32 v5, 3, v1")
    a("v_lshlrev_b32 v6, 11, v3")
    a("v_lshl_add_u32 v6, v5, 6, v6")
    a("v_lshl_add_u32 v6, v4, 4, v6")
    a("v_lshrrev_b32 v7, 4, v3")
    a("v_lshl_add_u32 v7, v5, 7, v7")
    a("v_lshlrev_b32 v7, 10, v7")
    a("v_and_b32 v8, 15, v3")
    a("v_lshl_add_u32 v7, v8, 6, v7")
    a("v_bfe_u32 v8, v3, 3, 1")
    a("v_lshlrev_b32 v8, 1, v8")
    a("v_xor_b32 v8, v8, v4")
    a("v_lshl_add_u32 v7, v8, 4, v7")
    a("s_waitcnt lgkmcnt(0)")
    srd(a, 8, 4, 0, 4 * MB)
    srd(a, 12, 6, WS_XN, SZ_XN)
    for i in range(4):
        a(f"buffer_load_dwordx4 v[{16+4*i}:{19+4*i}], v6, s[8:11], 0 offen offset:{i*512}")
    a("s_mov_b32 s16, 0xffff0000")
    F = 32
    for i in range(4):
        a(f"s_waitcnt vmcnt({3-i})")
        for j in range(4):
            r = 16 + 4 * i + j
            a(f"v_lshlrev_b32 v{F+2*(4*i+j)}, 16, v{r}")
            a(f"v_and_b32 v{F+2*(4*i+j)+1}, s16, v{r}")
    stamp(a, 1)
    a(f"v_pk_add_f32 v[10:11], v[{F}:{F+1}], v[{F+2}:{F+3}]")
    a(f"v_pk_add_f32 v[12:13], v[{F+4}:{F+5}], v[{F+6}:{F+7}]")
    for j in range(4, 16):
        d = 10 + 2 * (j & 1)
        a(f"v_pk_add_f32 v[{d}:{d+1}], v[{d}:{d+1}], v[{F+2*j}:{F+2*j+1}]")
    a("v_pk_add_f32 v[10:11], v[10:11], v[12:13]")
    a("v_add_f32 v10, v10, v11")
    xreduce(a, 10, 11)
    a(f"v_mul_f32 v10, {f2u(1.0/1024):#x}, v10")
    a("v_mov_b32 v14, v10")
    bf16round(a, 14)
    a("v_sub_f32 v10, v10, v14")
    a("v_mov_b32 v15, v14")
    for j in range(16):
        a(f"v_pk_add_f32 v[{F+2*j}:{F+2*j+1}], v[{F+2*j}:{F+2*j+1}], v[14:15] neg_lo:[0,1] neg_hi:[0,1]")
    a(f"v_pk_mul_f32 v[12:13], v[{F}:{F+1}], v[{F}:{F+1}]")
    a(f"v_pk_mul_f32 v[14:15], v[{F+2}:{F+3}], v[{F+2}:{F+3}]")
    for j in range(2, 16):
        d = 12 + 2 * (j & 1)
        a(f"v_pk_fma_f32 v[{d}:{d+1}], v[{F+2*j}:{F+2*j+1}], v[{F+2*j}:{F+2*j+1}], v[{d}:{d+1}]")
    a("v_pk_add_f32 v[12:13], v[12:13], v[14:15]")
    a("v_add_f32 v12, v12, v13")
    for j in range(16):
        a(f"v_cvt_pk_bf16_f32 v{16+j}, v{F+2*j}, v{F+2*j+1}")
    xreduce(a, 12, 13)
    a(f"v_mul_f32 v12, {f2u(1.0/1024):#x}, v12")
    a("v_fma_f32 v12, -v10, v10, v12")
    a("v_max_f32 v12, 0, v12")
    bf16round(a, 12)
    a(f"v_add_f32 v12, {f2u(1e-5):#x}, v12")
    bf16round(a, 12)
    a("v_sqrt_f32 v12, v12")
    a("s_nop 0")
    bf16round(a, 12)
    a("v_rcp_f32 v12, v12")
    for j in range(16):
        a(f"v_lshlrev_b32 v{F+2*j}, 16, v{16+j}")
        a(f"v_and_b32 v{F+2*j+1}, s16, v{16+j}")
    a("v_mov_b32 v13, v12")
    for i in range(4):
        for j in range(4 * i, 4 * i + 4):
            a(f"v_pk_mul_f32 v[{F+2*j}:{F+2*j+1}], v[{F+2*j}:{F+2*j+1}], v[12:13]")
        for j in range(4 * i, 4 * i + 4):
            a(f"v_cvt_pk_bf16_f32 v{16+j}, v{F+2*j}, v{F+2*j+1}")
        a(f"s_mov_b32 s17, {i*8*131072}")
        a(f"buffer_store_dwordx4 v[{16+4*i}:{19+4*i}], v7, s[12:15], s17 offen")
    stamp(a, 2)
    stamp_flush(a, 0, 4, 8, (6, 7))
    a("L_ln_end:")
    a("s_endpgm")
    return a, descriptor(name, 64, 64, 32), f"; @launch kernel={name} grid=(256,1,1) block=(256,1,1) lds=0"

QSCALE = (32 ** -0.5) * 1.4426950408889634

def gen_gemm1():
    a = Asm()
    name = "gemm1_kernel"
    header(a, name)
    vA_dma = 224; vW_dma = 225
    vAr = 229
    vWe = 231; vWo = 233; vWs = 235
    T = 240
    sA, sW, sO = 8, 12, 16
    sKA, sKW = 20, 21
    sM0A, sM0W = 22, 23
    sCnt = 24
    sWave, sWr, sWc, sRb, sCt, sXcd = 25, 26, 27, 28, 29, 30
    a("s_cmp_ge_u32 s2, 256")
    a("s_cbranch_scc1 L_g1_end")
    stamp(a, 0)
    a(f"s_load_dwordx2 s[4:5], s[0:1], {KA_WS}")
    a(f"s_load_dwordx2 s[6:7], s[0:1], {KA_WQKV}")
    a(f"s_load_dwordx2 s[32:33], s[0:1], {KA_W1}")
    a(f"v_lshrrev_b32 v{T}, 6, v0")
    a(f"v_and_b32 v{T+1}, 63, v0")
    a(f"v_readfirstlane_b32 s{sWave}, v{T}")
    a(f"s_and_b32 s{sXcd}, s2, 7")
    if STAMP: a(f"s_mov_b32 s59, s{sWave}")
    a(f"s_lshr_b32 s3, s2, 3")
    a(f"s_and_b32 s{sRb}, s3, 7")
    a(f"s_lshr_b32 s{sCt}, s3, 3")
    a(f"s_lshr_b32 s{sWr}, s{sWave}, 1")
    a(f"s_and_b32 s{sWc}, s{sWave}, 1")
    L = T + 1
    a(f"s_lshl_b32 s34, s{sRb}, 14")
    a(f"s_lshl_b32 s35, s{sWave}, 12")
    a(f"s_add_u32 s34, s34, s35")
    a(f"v_lshl_add_u32 v{vA_dma}, v{L}, 4, s34")
    a(f"s_mov_b32 s{sM0A}, s35")
    a(f"s_add_u32 s{sM0W}, s35, 16384")
    a(f"v_lshrrev_b32 v{T+2}, 5, v{L}")
    a(f"v_bfe_u32 v{T+3}, v{L}, 4, 1")
    a(f"v_bfe_u32 v{T+4}, v{L}, 2, 2")
    a(f"v_and_b32 v{T+5}, 3, v{L}")
    a(f"s_lshl_b32 s34, s{sWr}, 4")
    a(f"s_lshl_b32 s35, s{sWc}, 2")
    a(f"s_add_u32 s34, s34, s35")
    a(f"v_lshl_add_u32 v{T+6}, v{T+3}, 3, v{T+4}")
    a(f"v_add_u32 v{T+6}, s34, v{T+6}")
    a(f"v_lshlrev_b32 v{T+7}, 1, v{T+3}")
    a(f"v_xor_b32 v{T+7}, v{T+7}, v{T+5}")
    a(f"v_lshlrev_b32 v{T+7}, 4, v{T+7}")
    a(f"v_lshl_add_u32 v{T+7}, v{T+2}, 6, v{T+7}")
    a(f"v_xor_b32 v{T+8}, v{T+3}, v{T+5}")
    a(f"v_lshlrev_b32 v{T+8}, 4, v{T+8}")
    a(f"v_lshrrev_b32 v{T+9}, 4, v{L}")
    a(f"v_and_b32 v{T+10}, 15, v{L}")
    a(f"v_lshrrev_b32 v{T+11}, 3, v{T+10}")
    a(f"v_lshlrev_b32 v{T+11}, 1, v{T+11}")
    a(f"v_xor_b32 v{T+11}, v{T+11}, v{T+9}")
    a(f"v_lshlrev_b32 v{T+11}, 4, v{T+11}")
    a(f"v_lshl_add_u32 v{T+11}, v{T+10}, 6, v{T+11}")
    a(f"s_lshl_b32 s34, s{sWr}, 13")
    a(f"v_add_u32 v{vAr}, s34, v{T+11}")
    a(f"v_add_u32 v{vAr+1}, 0x10000, v{vAr}")
    a(f"v_lshlrev_b32 v{T+12}, 13, v{T+2}")
    a(f"v_lshl_add_u32 v{T+12}, v{T+3}, 8, v{T+12}")
    a(f"v_lshl_add_u32 v{T+12}, v{T+4}, 6, v{T+12}")
    a(f"v_lshl_add_u32 v{T+13}, v{T+3}, 5, v{T+12}")
    a(f"v_lshl_add_u32 v{T+13}, v{T+5}, 3, v{T+13}")
    a("s_waitcnt lgkmcnt(0)")
    srd(a, sA, 4, WS_XN, SZ_XN)
    a(f"s_mov_b32 s{sKA}, 0")
    a(f"s_mov_b32 s{sKW}, 0")
    a(f"s_cmp_lt_u32 s{sCt}, 2")
    a("s_cbranch_scc0 L_g1_qkv")

    def body(kind):
        ffn = kind == "ffn"
        NB = 7 if ffn else 6
        RS = 7168 if ffn else 6144
        nW = 4 if ffn else 3
        nd = 4 + nW
        NF = 8 + NB
        def fr(buf, i): return buf * NF * 4 + i * 4
        def acc(tt, ft): return (ft * 8 + tt) * 4
        if ffn:
            srd(a, sW, 32, -4096, 1024 * 7168 + 4096)
            a(f"s_mul_i32 s34, s{sXcd}, 896")
            a(f"s_mul_i32 s35, s{sCt}, 384")
            a(f"s_add_u32 s35, s35, s34")
            a(f"s_lshl_b32 s36, s{sCt}, 6")
            a(f"s_add_u32 s36, s36, s34")
            a(f"s_add_u32 s36, s36, {768 + 4096 - 3072}")
            qstep = 128
        else:
            srd(a, sW, 6, -4096, 1024 * 6144 + 4096)
            a(f"s_lshl_b32 s35, s{sXcd}, 1")
            a(f"s_add_u32 s35, s35, s{sCt}")
            a(f"s_sub_u32 s35, s35, 2")
            a(f"s_mov_b32 s37, s35")
            a(f"s_lshl_b32 s35, s35, 7")
            qstep = 2048
        a(f"s_mov_b32 s38, {RS}")
        a(f"v_mul_lo_u32 v{T+6}, v{T+6}, s38")
        a(f"v_add_u32 v{T+7}, v{T+7}, v{T+6}")
        a(f"v_add_u32 v{T+7}, s35, v{T+7}")
        for q in range(3):
            a(f"v_add_u32 v{vW_dma+q}, {4096 + q*qstep - q*1024}, v{T+7}")
        if ffn:
            a(f"v_add_u32 v{T+8}, v{T+8}, v{T+6}")
            a(f"v_add_u32 v{T+8}, s36, v{T+8}")
            a(f"v_lshlrev_b32 v{T+14}, 30, v{T+2}")
            a(f"v_or_b32 v{vW_dma+3}, v{T+8}, v{T+14}")
        def dma_list(stage):
            l = []
            l.append([f"s_add_u32 m0, s{sM0W}, {stage*32768}"])
            for q in range(nW):
                l.append([f"buffer_load_dwordx4 v{vW_dma+q}, s[{sW}:{sW+3}], s{sKW} offen offset:{q*1024} lds"])
            l.append([f"s_add_u32 m0, s{sM0A}, {stage*32768}", f"s_add_u32 s{sKW}, s{sKW}, {32*RS}"])
            for q in range(4):
                l.append([f"buffer_load_dwordx4 v{vA_dma}, s[{sA}:{sA+3}], s{sKA} offen offset:{q*1024} lds"])
            l.append([f"s_add_u32 s{sKA}, s{sKA}, 131072"])
            return l
        for st in range(4):
            for k, x in enumerate(dma_list(st)):
                a.extend(x)
                if k == 0: a("s_nop 0")
        a(f"s_mul_i32 s34, s{sWc}, {1536 if ffn else 512}")
        a(f"v_add_u32 v{vWe}, s34, v{T+13}")
        a(f"v_add_u32 v{vWe+1}, 0x10000, v{vWe}")
        a(f"v_xor_b32 v{vWo}, 32, v{vWe}")
        a(f"v_xor_b32 v{vWo+1}, 32, v{vWe+1}")
        if ffn:
            a(f"v_and_b32 v{T+14}, 1, v{T+5}")
            a(f"v_lshlrev_b32 v{T+14}, 1, v{T+14}")
            a(f"v_add_u32 v{T+14}, s{sWc}, v{T+14}")
            a(f"v_xor_b32 v{T+14}, v{T+14}, v{T+3}")
            a(f"v_lshl_add_u32 v{T+14}, v{T+14}, 4, v{T+12}")
            a(f"v_lshrrev_b32 v{T+15}, 1, v{T+5}")
            a(f"v_lshl_add_u32 v{vWs}, v{T+15}, 3, v{T+14}")
            a(f"v_add_u32 v{vWs+1}, 0x10000, v{vWs}")
        for i in range(8 * NB * 4):
            a(f"v_mov_b32 v{i}, 0")
        def read_list(stage, buf):
            hi = stage >> 1; so = (stage & 1) * 32768
            l = []
            rb = []
            for ft in range(NB):
                r = fr(buf, 8 + ft)
                if ffn and ft == 6:
                    v = vWs + hi; off = 3072
                else:
                    v = (vWo if ft & 1 else vWe) + hi
                    off = (ft >> 1) * (512 if ffn else 1024)
                rb.append([f"ds_read_b64_tr_b16 a[{r+2*rd}:{r+2*rd+1}], v{v} offset:{so + 16384 + rd*4096 + off}" for rd in range(2)])
            ra = []
            for tt in range(8):
                r = fr(buf, tt)
                ra.append(f"ds_read_b128 a[{r}:{r+3}], v{vAr+hi} offset:{so + tt*1024}")
            l = rb[0] + ra
            for x in rb[1:]: l += x
            return l
        def mfmas(buf):
            l = []
            for ft in range(NB):
                tts = range(8) if ft % 2 == 0 else range(7, -1, -1)
                for tt in tts:
                    c = acc(tt, ft); w = fr(buf, 8 + ft); x = fr(buf, tt)
                    if (not ffn) and ft >= 4: w, x = x, w
                    l.append(f"v_mfma_f32_16x16x32_bf16 v[{c}:{c+3}], a[{w}:{w+3}], a[{x}:{x+3}], v[{c}:{c+3}]")
            return l
        a(f"s_waitcnt vmcnt({3*nd})")
        a("s_barrier")
        a.extend(read_list(0, 0))
        a(f"s_waitcnt vmcnt({2*nd}) lgkmcnt(0)")
        a("s_barrier")
        def step(k4, dma, vm, reads=True, tail=None):
            m = mfmas(k4 & 1)
            n = len(m)
            ex = []
            if reads:
                rl = read_list((k4 + 1) & 3, (k4 + 1) & 1)
                for i, x in enumerate(rl):
                    ex.append(((i * int(n * 0.72)) // len(rl), x))
            if dma:
                dl = dma_list(k4)
                for i, x in enumerate(dl):
                    ex.append((0 + (i * int(n * DMAF)) // len(dl), x))
            ex.sort(key=lambda t: t[0])
            a.extend(weave(m, ex))
            if tail: a.extend(tail)
            if vm is not None:
                a(f"s_waitcnt vmcnt({vm}) lgkmcnt(0)")
                a("s_barrier")
        stamp(a, 1)
        a(f"s_mov_b32 s{sCnt}, 7")
        a(".p2align 6")
        a(f"L_g1_{kind}_loop:")
        for k4 in range(4):
            step(k4, True, 2 * nd, tail=[f"s_sub_u32 s{sCnt}, s{sCnt}, 1", f"s_cmp_lg_u32 s{sCnt}, 0"] if k4 == 3 else None)
        a(f"s_cbranch_scc1 L_g1_{kind}_loop")
        step(0, False, nd)
        step(1, False, 0)
        step(2, False, 0)
        step(3, False, None, reads=False)
        stamp(a, 2)
        a("s_nop 7")
        vO = T; P = T + 4
        a(f"v_and_b32 v{L}, 63, v0") if False else None
        if ffn:
            srd(a, sO, 4, WS_A2, SZ_A2)
            a(f"s_lshl_b32 s34, s{sRb}, 14")
            a(f"s_lshl_b32 s35, s{sWr}, 13")
            a(f"s_add_u32 s34, s34, s35")
            a(f"v_lshl_add_u32 v{vO}, v{L}, 4, s34")
            a(f"v_add_u32 v{vO+2}, 4096, v{vO}")
            a(f"s_lshl_b32 s35, s{sWc}, 9")
            a(f"s_add_u32 s34, s34, s35")
            a(f"v_lshrrev_b32 v{T+12}, 5, v{L}")
            a(f"v_lshl_add_u32 v{T+12}, v{T+12}, 8, s34")
            a(f"v_and_b32 v{T+13}, 15, v{L}")
            a(f"v_lshl_add_u32 v{T+12}, v{T+13}, 4, v{T+12}")
            a(f"v_bfe_u32 v{T+13}, v{L}, 4, 1")
            a(f"v_lshl_add_u32 v{T+12}, v{T+13}, 3, v{T+12}")
            a(f"v_add_u32 v{T+13}, 4096, v{T+12}")
            a(f"s_mul_i32 s34, s{sXcd}, 14")
            a(f"s_mul_i32 s35, s{sCt}, 6")
            a(f"s_mul_i32 s36, s{sWc}, 3")
            a(f"s_add_u32 s35, s35, s36")
            a(f"s_add_u32 s35, s35, s34")
            a(f"s_add_u32 s35, s35, 32")
            a(f"s_lshl_b32 s35, s35, 17")
            a(f"s_add_u32 s36, s34, s{sCt}")
            a(f"s_add_u32 s36, s36, 44")
            a(f"s_lshl_b32 s36, s36, 17")
            n = 0
            for p in range(3):
                for tt in range(8):
                    pk = P + 4 * (n & 1); n += 1
                    for e in range(2):
                        c = acc(tt, 2 * p + e)
                        a(f"v_cvt_pk_bf16_f32 v{pk+2*e}, v{c}, v{c+1}")
                        a(f"v_cvt_pk_bf16_f32 v{pk+2*e+1}, v{c+2}, v{c+3}")
                    for e in range(4):
                        a(f"v_pk_max_i16 v{pk+e}, v{pk+e}, 0")
                    a(f"buffer_store_dwordx4 v[{pk}:{pk+3}], v{vO + 2*(tt>>2)}, s[{sO}:{sO+3}], s35 offen offset:{(tt&3)*1024}")
                a(f"s_add_u32 s35, s35, 131072")
            for tt in range(8):
                pk = P + 4 * (n & 1); n += 1
                c = acc(tt, 6)
                a(f"v_cvt_pk_bf16_f32 v{pk}, v{c}, v{c+1}")
                a(f"v_cvt_pk_bf16_f32 v{pk+1}, v{c+2}, v{c+3}")
                a(f"v_pk_max_i16 v{pk}, v{pk}, 0")
                a(f"v_pk_max_i16 v{pk+1}, v{pk+1}, 0")
                a(f"buffer_store_dwordx2 v[{pk}:{pk+1}], v{T+12 + (tt>>2)}, s[{sO}:{sO+3}], s36 offen offset:{(tt&3)*1024}")
            stamp(a, 3)
            stamp_flush(a, 1, 5, 0)
            a("s_endpgm")
        else:
            srd(a, sO, 4, WS_Q, SZ_Q + SZ_KV)
            a(f"s_lshl_b32 s37, s37, 1")
            a(f"s_add_u32 s37, s37, s{sWc}")
            a(f"s_lshl_b32 s34, s{sRb}, 3")
            a(f"s_lshl_b32 s35, s{sWr}, 2")
            a(f"s_add_u32 s34, s34, s35")
            a(f"s_lshl_b32 s35, s37, 17")
            a(f"s_lshl_b32 s36, s34, 11")
            a(f"s_add_u32 s35, s35, s36")
            a(f"s_lshl_b32 s36, s35, 1")
            a(f"s_add_u32 s36, s36, {SZ_Q}")
            a(f"v_lshrrev_b32 v{T+12}, 4, v{L}")
            a(f"v_lshlrev_b32 v{T+12}, 9, v{T+12}")
            a(f"v_and_b32 v{T+13}, 15, v{L}")
            a(f"v_lshl_add_u32 v{vO}, v{T+13}, 4, v{T+12}")
            a(f"v_bfe_u32 v{T+13}, v{L}, 2, 2")
            a(f"v_lshl_add_u32 v{T+12}, v{T+13}, 7, v{T+12}")
            a(f"v_and_b32 v{T+13}, 3, v{L}")
            a(f"v_lshl_add_u32 v{vO+2}, v{T+13}, 4, v{T+12}")
            a(f"s_mov_b32 s38, {f2u(QSCALE):#x}")
            n = 0
            for b in range(4):
                for h in range(2):
                    tt = 2 * b + h
                    pk = P + 4 * (n & 1); n += 1
                    for e in range(2):
                        c = acc(tt, 2 + e)
                        a(f"v_cvt_pk_bf16_f32 v{pk+2*e}, v{c}, v{c+1}")
                        a(f"v_cvt_pk_bf16_f32 v{pk+2*e+1}, v{c+2}, v{c+3}")
                    a(f"buffer_store_dwordx4 v[{pk}:{pk+3}], v{vO+2}, s[{sO}:{sO+3}], s36 offen offset:{h*64}")
                for vt in range(2):
                    pk = P + 4 * (n & 1); n += 1
                    for e in range(2):
                        c = acc(2 * b + e, 4 + vt)
                        a(f"v_cvt_pk_bf16_f32 v{pk+2*e}, v{c}, v{c+1}")
                        a(f"v_cvt_pk_bf16_f32 v{pk+2*e+1}, v{c+2}, v{c+3}")
                    a(f"buffer_store_dwordx4 v[{pk}:{pk+3}], v{vO}, s[{sO}:{sO+3}], s36 offen offset:{2048 + vt*256}")
                for h in range(2):
                    tt = 2 * b + h
                    pk = P + 4 * (n & 1); n += 1
                    for e in range(2):
                        c = acc(tt, e)
                        for r in range(4):
                            a(f"v_mul_f32 v{c+r}, s38, v{c+r}")
                        a(f"v_cvt_pk_bf16_f32 v{pk+2*e}, v{c}, v{c+1}")
                        a(f"v_cvt_pk_bf16_f32 v{pk+2*e+1}, v{c+2}, v{c+3}")
                    a(f"buffer_store_dwordx4 v[{pk}:{pk+3}], v{vO}, s[{sO}:{sO+3}], s35 offen offset:{h*256}")
                a(f"s_add_u32 s35, s35, 2048")
                a(f"s_add_u32 s36, s36, 4096")
            stamp(a, 3)
            stamp_flush(a, 1, 5, 0)
            a("L_g1_end:")
            a("s_endpgm")
    body("ffn")
    a("L_g1_qkv:")
    body("qkv")
    return a, descriptor(name, 256 + 120, 256, 48), f"; @launch kernel={name} grid=(256,1,1) block=(256,1,1) lds=131072"


def gen_attn():
    a = Asm()
    name = "attn_kernel"
    header(a, name)
    S = [0, 16]; NM = [32, 48]; O = [64, 80]; Lr = [96, 100]; D = [104, 120]
    Q = [136, 144]; Kf = [152, 160]; Vf = [168, 176]; ONE = 184
    vL16, vDma, vCur, IDX = 188, 189, 190, 191
    T = 192
    NV = 200
    sKV, sQ, sO = 8, 12, 16
    sSo, sM0, sCnt, sWave, sHead, sQb, sRing, sMb = 20, 21, 22, 23, 24, 25, 26, 29
    a("s_cmp_ge_u32 s2, 256")
    a("s_cbranch_scc1 L_at_end")
    stamp(a, 0)
    a(f"s_load_dwordx2 s[4:5], s[0:1], {KA_WS}")
    a(f"s_load_dwordx2 s[32:33], s[0:1], {KA_W2}")
    a(f"s_load_dwordx2 s[34:35], s[0:1], {KA_WO}")
    a(f"v_lshrrev_b32 v{T}, 6, v0")
    a(f"v_and_b32 v{T+1}, 63, v0")
    a(f"v_readfirstlane_b32 s{sWave}, v{T}")
    a(f"v_lshlrev_b32 v{vL16}, 4, v{T+1}")
    a(f"s_and_b32 s3, s2, 7")
    if STAMP: a(f"s_mov_b32 s59, s{sWave}")
    a(f"s_lshr_b32 s6, s2, 3")
    a(f"s_and_b32 s7, s6, 3")
    a(f"s_lshl_b32 s{sHead}, s3, 2")
    a(f"s_add_u32 s{sHead}, s{sHead}, s7")
    a(f"s_lshr_b32 s6, s6, 2")
    a(f"s_lshl_b32 s{sQb}, s6, 2")
    a(f"s_add_u32 s{sQb}, s{sQb}, s{sWave}")
    a(f"s_lshl_b32 s{sM0}, s{sWave}, 12")
    a(f"v_add_u32 v{vDma}, s{sM0}, v{vL16}")
    a(f"s_lshl_b32 s{sSo}, s{sHead}, 18")
    a(f"s_lshl_b32 s6, s{sHead}, 17")
    a(f"s_lshl_b32 s7, s{sQb}, 12")
    a(f"s_add_u32 s27, s6, s7")
    a("s_waitcnt lgkmcnt(0)")
    srd(a, sKV, 4, WS_KV, SZ_KV)
    srd(a, sQ, 4, WS_Q, SZ_Q)
    def dma(q):
        return f"buffer_load_dwordx4 v{vDma}, s[{sKV}:{sKV+3}], s{sSo} offen offset:{(q&3)*1024} lds"
    for c in range(7):
        a(f"s_add_u32 m0, s{sM0}, {c*16384}")
        a("s_nop 0")
        for q in range(4 if c < 6 else 1): a(dma(q))
        if c < 6: a(f"s_add_u32 s{sSo}, s{sSo}, 16384")
        if c == 0:
            for x in range(2):
                for h in range(2):
                    a(f"buffer_load_dwordx4 v[{Q[x]+4*h}:{Q[x]+4*h+3}], v{vL16}, s[{sQ}:{sQ+3}], s27 offen offset:{x*2048+h*1024}")
    a(f"s_add_u32 s{sMb}, s{sM0}, {6*16384}")
    NPF = 0
    if PF2:
        srd(a, 36, 32, 0, 3584 * 2048)
        srd(a, 40, 34, 0, 1024 * 2048)
        a(f"s_lshl_b32 s44, s2, 2")
        a(f"s_add_u32 s44, s44, s{sWave}")
        a(f"s_mul_i32 s45, s44, 7168")
        a(f"s_lshl_b32 s44, s44, 11")
        for q in range(2):
            a(f"buffer_load_dwordx4 v[{T+4}:{T+7}], v{vL16}, s[40:43], s44 offen offset:{q*1024}")
        for q in range(7):
            if q == 4: a("s_add_u32 s45, s45, 4096")
            a(f"buffer_load_dwordx4 v[{T+4}:{T+7}], v{vL16}, s[36:39], s45 offen offset:{(q&3)*1024}")
        NPF = 9
    srd(a, sO, 4, WS_A2, SZ_A2)
    a(f"v_and_b32 v{T}, 7, v{T+1}")
    a(f"v_cmp_eq_u32 vcc, 0, v{T}")
    a(f"v_cmp_eq_u32 s[30:31], 4, v{T}")
    a(f"v_mov_b32 v{T+2}, 0x3f803f80")
    a(f"v_mov_b32 v{IDX}, 0xdddddddd")
    a(f"v_cndmask_b32 v{ONE}, 0, v{T+2}, vcc")
    a(f"v_cndmask_b32 v{ONE+2}, 0, v{T+2}, s[30:31]")
    a(f"v_mov_b32 v{ONE+1}, v{ONE}")
    a(f"v_mov_b32 v{ONE+3}, v{ONE+2}")
    for i in range(40): a(f"v_mov_b32 v{O[0]+i}, 0")
    for i in range(8): a(f"v_mov_b32 v{D[1]+8+i}, 0")
    for i in range(4): a(f"v_mov_b32 v{Vf[1]+4+i}, 0")
    a(f"v_mov_b32 v{vCur}, v{vL16}")
    a(f"s_mov_b32 s{sRing}, 0")
    a(f"s_mov_b32 s{sCnt}, 0")

    def rdK(t, tl):
        b = Kf[t & 1]
        return [f"ds_read_b128 v[{b}:{b+3}], v{vCur} offset:{tl*4096}",
                f"ds_read_b128 v[{b+4}:{b+7}], v{vCur} offset:{tl*4096+1024}"]
    def rdV(t, tl):
        b = Vf[t & 1]
        return [f"ds_read_b128 v[{b}:{b+3}], v{vCur} offset:{tl*4096+2048}",
                f"ds_read_b128 v[{b+4}:{b+7}], v{vCur} offset:{tl*4096+3072}"]
    def qk(x, t, c0=None):
        s = S[x]; k = Kf[t & 1]; q = Q[x]
        c = f"v[{NM[x]}:{NM[x]+15}]" if c0 is None else c0
        return [f"v_mfma_f32_32x32x16_bf16 v[{s}:{s+15}], v[{k}:{k+3}], v[{q}:{q+3}], {c}",
                f"v_mfma_f32_32x32x16_bf16 v[{s}:{s+15}], v[{k+4}:{k+7}], v[{q+4}:{q+7}], v[{s}:{s+15}]"]
    def PV(x, t, h):
        v = Vf[t & 1]
        return f"v_smfmac_f32_32x32x32_bf16 v[{O[x]}:{O[x]+15}], v[{v+4*h}:{v+4*h+3}], v[{D[x]+8*h}:{D[x]+8*h+7}], v{IDX}"
    def LS(x, h):
        return f"v_smfmac_f32_16x16x64_bf16 v[{Lr[x]}:{Lr[x]+3}], v[{ONE}:{ONE+3}], v[{D[x]+8*h}:{D[x]+8*h+7}], v{IDX}"
    def phase(x, t, doqk=True, f=None):
        y = 1 - x
        f = f or {}
        E = lambda i: f"v_exp_f32 v{D[x]+i}, v{S[x]+i}"
        q = qk(y, t + x) if doqk else [None, None]
        g = lambda k: f.get(k, [])
        seq = [q[0]] + g(0) + [E(0), E(1), E(2), q[1]] + g(1) + [E(3), E(4), E(5), PV(y, t - 1 + x, 1)] + g(2) + [E(6), E(7), E(8),
               LS(y, 1)] + g(3) + [E(9), E(10), PV(x, t, 0)] + g(4) + [E(11), E(12), E(13), LS(x, 0)] + g(5) + [E(14), E(15)]
        a.extend([z for z in seq if z])
    W0 = "s_waitcnt lgkmcnt(0)"
    def it(j):
        t = j + 1
        k = rdK(t + 1, j); v = rdV(t + 1, j)
        fa = {0: [k[0]], 1: [k[1]], 5: [W0]}
        fb = {0: [v[0]], 1: [v[1]], 5: [W0]}
        if j == 0:
            fa[2] = [f"s_mov_b32 m0, s{sMb}", f"s_cmp_gt_u32 s{sCnt}, 4"]
            fa[3] = [f"s_cselect_b32 s{sKV+2}, 0, {SZ_KV}"]
        if j == 4:
            fa[2] = [f"s_add_u32 m0, s{sMb}, 16384", f"s_add_u32 s{sSo}, s{sSo}, 16384"]
        fa[4] = [dma(j)]
        if j == 7:
            fb[2] = [f"s_add_u32 s{sSo}, s{sSo}, 16384", f"s_add_u32 s{sMb}, s{sRing}, s{sM0}"]
            fb[3] = [f"s_add_u32 s{sRing}, s{sRing}, 32768", f"s_and_b32 s{sRing}, s{sRing}, 0x1ffff"]
            fb[4] = [f"s_add_u32 s{sCnt}, s{sCnt}, 1", f"s_cmp_lt_u32 s{sCnt}, 8"]
            fb[5] = ["s_waitcnt vmcnt(16) lgkmcnt(0)", "s_barrier", f"v_add_u32 v{vCur}, s{sRing}, v{vL16}"]
        phase(0, t, f=fa)
        phase(1, t, f=fb)

    a(f"s_waitcnt vmcnt({17+NPF})")
    a("s_barrier")
    stamp(a, 1)
    a.extend(rdK(0, 0))
    a.extend(rdV(0, 0))
    a("s_waitcnt lgkmcnt(0)")
    a.extend(qk(0, 0, "0"))
    a.extend(qk(1, 0, "0"))
    a("s_nop 15")
    for x in range(2):
        s0 = S[x]
        a(f"v_max3_f32 v{T}, v{s0}, v{s0+1}, v{s0+2}")
        for i in range(3, 15, 2):
            a(f"v_max3_f32 v{T}, v{T}, v{s0+i}, v{s0+i+1}")
        a(f"v_max_f32 v{T}, v{T}, v{s0+15}")
        a(f"v_mov_b32 v{T+2}, v{T}")
        a("s_nop 1")
        a(f"v_permlane32_swap_b32 v{T}, v{T+2}")
        a(f"v_max_f32 v{T}, v{T}, v{T+2}")
        for i in range(16): a(f"v_sub_f32 v{NM[x]+i}, 0, v{T}")
        if x == 0:
            for i in range(16): a(f"v_sub_f32 v{s0+i}, v{s0+i}, v{T}")
    a("s_nop 0")
    a("s_branch L_at_in")
    a(".p2align 6")
    a("L_at_loop:")
    it(0)
    a("L_at_in:")
    for j in range(1, 8): it(j)
    a("s_cbranch_scc1 L_at_loop")
    phase(0, 63)
    phase(1, 63, doqk=False)
    a("s_nop 1")
    a(PV(1, 63, 1)); a(LS(1, 1))
    a("s_nop 15")
    stamp(a, 2)
    a(f"v_mul_f32 v{T}, 0, v{O[0]}")
    for i in range(1, 32):
        a(f"v_fma_f32 v{T}, v{O[0]+i}, 0, v{T}")
    a(f"v_add_f32 v{T+1}, v{Lr[0]}, v{Lr[1]}")
    a(f"v_add_f32 v{T}, v{T}, v{T+1}")
    a(f"s_mov_b32 s28, {f2u(2.0**40):#x}")
    a(f"v_cmp_ngt_f32 vcc, s28, v{T}")
    a("s_nop 1")
    a("s_cbranch_vccnz L_at_slow")
    a("L_at_fin:")
    a(f"v_lshrrev_b32 v{T+1}, 4, v{vL16}")
    a(f"v_bfe_u32 v{T+2}, v{T+1}, 4, 1")
    a(f"v_lshlrev_b32 v{T+2}, 10, v{T+2}")
    a(f"v_lshrrev_b32 v{T+3}, 5, v{T+1}")
    a(f"v_lshl_add_u32 v{T+2}, v{T+3}, 8, v{T+2}")
    a(f"v_and_b32 v{T+3}, 15, v{T+1}")
    a(f"v_lshl_add_u32 v{T+2}, v{T+3}, 4, v{T+2}")
    for x in range(2):
        a(f"v_rcp_f32 v{T}, v{Lr[x]}")
        a("s_nop 0")
        for i in range(16): a(f"v_mul_f32 v{O[x]+i}, v{O[x]+i}, v{T}")
        for u in range(2):
            for e in range(2):
                c = O[x] + 8 * e + 4 * u
                a(f"v_cvt_pk_bf16_f32 v{D[x]+4*u+2*e}, v{c}, v{c+1}")
                a(f"v_cvt_pk_bf16_f32 v{D[x]+4*u+2*e+1}, v{c+2}, v{c+3}")
            a(f"buffer_store_dwordx4 v[{D[x]+4*u}:{D[x]+4*u+3}], v{T+2}, s[{sO}:{sO+3}], s27 offen offset:{x*2048+u*512}")
    stamp(a, 3)
    stamp_flush(a, 2, 5, 0)
    a("L_at_end:")
    a("s_endpgm")
    a("L_at_slow:")
    a(f"s_mov_b32 s{sKV+2}, {SZ_KV}")
    for x in range(2):
        a(f"v_mov_b32 v{NM[x]}, 0xff800000")
    for i in range(40): a(f"v_mov_b32 v{O[0]+i}, 0")
    a(f"s_lshl_b32 s{sSo}, s{sHead}, 18")
    a(f"s_mov_b32 s{sCnt}, 0")
    a("L_at_sloop:")
    k = Kf[0]; v = Vf[0]
    a(f"buffer_load_dwordx4 v[{k}:{k+3}], v{vL16}, s[{sKV}:{sKV+3}], s{sSo} offen")
    a(f"buffer_load_dwordx4 v[{k+4}:{k+7}], v{vL16}, s[{sKV}:{sKV+3}], s{sSo} offen offset:1024")
    a(f"buffer_load_dwordx4 v[{v}:{v+3}], v{vL16}, s[{sKV}:{sKV+3}], s{sSo} offen offset:2048")
    a(f"buffer_load_dwordx4 v[{v+4}:{v+7}], v{vL16}, s[{sKV}:{sKV+3}], s{sSo} offen offset:3072")
    a("s_waitcnt vmcnt(0)")
    for x in range(2):
        M = NM[x]; AL = NM[x] + 1; MN = NM[x] + 2; s = S[x]
        a.extend(qk(x, 0, "0"))
        a("s_nop 15")
        a(f"v_max3_f32 v{T}, v{s}, v{s+1}, v{s+2}")
        for i in range(3, 15, 2):
            a(f"v_max3_f32 v{T}, v{T}, v{s+i}, v{s+i+1}")
        a(f"v_max_f32 v{T}, v{T}, v{s+15}")
        a(f"v_mov_b32 v{T+2}, v{T}")
        a("s_nop 1")
        a(f"v_permlane32_swap_b32 v{T}, v{T+2}")
        a(f"v_max3_f32 v{MN}, v{T}, v{T+2}, v{M}")
        a(f"v_sub_f32 v{AL}, v{M}, v{MN}")
        a(f"v_exp_f32 v{AL}, v{AL}")
        a(f"v_mov_b32 v{M}, v{MN}")
        for i in range(16): a(f"v_sub_f32 v{s+i}, v{s+i}, v{MN}")
        for i in range(16): a(f"v_exp_f32 v{D[x]+i}, v{s+i}")
        for i in range(16): a(f"v_mul_f32 v{O[x]+i}, v{O[x]+i}, v{AL}")
        a(f"v_mul_f32 v{Lr[x]}, v{Lr[x]}, v{AL}")
        a("s_nop 1")
        a(LS(x, 0)); a(LS(x, 1))
        a(PV(x, 0, 0)); a(PV(x, 0, 1))
        a("s_nop 15")
    a(f"s_add_u32 s{sSo}, s{sSo}, 4096")
    a(f"s_add_u32 s{sCnt}, s{sCnt}, 1")
    a(f"s_cmp_lt_u32 s{sCnt}, 64")
    a("s_cbranch_scc1 L_at_sloop")
    a("s_branch L_at_fin")
    return a, descriptor(name, NV, NV, 48), f"; @launch kernel={name} grid=(256,1,1) block=(256,1,1) lds=131072"

def gen_gemm2():
    a = Asm()
    name = "gemm2_kernel"
    header(a, name)
    vA = 128
    vW = 130
    vWe, vWo = 134, 135
    vX = 136
    L = 137
    vRw, vRr = 138, 139
    T = 140
    X = 152
    R = 168
    NV = 200
    sA, sW, sX, sO = 8, 12, 16, 20
    sKA, sKW, sM0, sCnt, sWave, sRb, sCb = 24, 25, 26, 27, 28, 29, 30
    def acc(tt, ft): return (tt * 4 + ft) * 4
    def ab(buf, tt): return buf * 32 + tt * 4
    def wf(buf, ft): return 128 + buf * 16 + ft * 4
    a("s_cmp_ge_u32 s2, 256")
    a("s_cbranch_scc1 L_g2_end")
    stamp(a, 0)
    a(f"s_load_dwordx2 s[4:5], s[0:1], {KA_WS}")
    a(f"s_load_dwordx2 s[6:7], s[0:1], {KA_WO}")
    a(f"s_load_dwordx2 s[32:33], s[0:1], {KA_W2}")
    a(f"s_load_dwordx2 s[34:35], s[0:1], {KA_X}")
    a(f"s_load_dwordx2 s[36:37], s[0:1], {KA_OUT}")
    a(f"v_lshrrev_b32 v{T}, 6, v0")
    a(f"v_and_b32 v{L}, 63, v0")
    a(f"v_readfirstlane_b32 s{sWave}, v{T}")
    a("s_and_b32 s3, s2, 7")
    if STAMP: a(f"s_mov_b32 s59, s{sWave}")
    a("s_lshr_b32 s38, s2, 3")
    a("s_lshr_b32 s39, s3, 1")
    a("s_lshl_b32 s39, s39, 2")
    a("s_and_b32 s40, s38, 3")
    a(f"s_add_u32 s{sRb}, s39, s40")
    a("s_and_b32 s39, s3, 1")
    a("s_lshl_b32 s39, s39, 3")
    a("s_lshr_b32 s40, s38, 2")
    a(f"s_add_u32 s{sCb}, s39, s40")
    a(f"s_lshl_b32 s38, s{sRb}, 13")
    a(f"v_lshl_add_u32 v{vA}, v{L}, 4, s38")
    a(f"v_add_u32 v{vA+1}, 4096, v{vA}")
    a(f"v_lshrrev_b32 v{T+2}, 5, v{L}")
    a(f"v_bfe_u32 v{T+3}, v{L}, 4, 1")
    a(f"v_bfe_u32 v{T+4}, v{L}, 2, 2")
    a(f"v_and_b32 v{T+5}, 3, v{L}")
    a(f"v_lshl_add_u32 v{T+6}, v{T+3}, 2, v{T+4}")
    a(f"v_lshlrev_b32 v{T+6}, 11, v{T+6}")
    a(f"v_lshlrev_b32 v{T+7}, 1, v{T+3}")
    a(f"v_xor_b32 v{T+7}, v{T+7}, v{T+5}")
    a(f"v_lshl_add_u32 v{T+6}, v{T+7}, 4, v{T+6}")
    a(f"v_lshl_add_u32 v{T+6}, v{T+2}, 6, v{T+6}")
    a(f"s_lshl_b32 s38, s{sCb}, 7")
    a(f"v_add_u32 v{vW}, s38, v{T+6}")
    for pc in range(1, 4):
        a(f"v_add_u32 v{vW+pc}, {pc*(16384-1024)}, v{vW}")
    a(f"s_lshl_b32 s{sM0}, s{sWave}, 14")
    a(f"v_lshl_add_u32 v{T+6}, v{T+2}, 10, s{sM0}")
    a(f"v_lshl_add_u32 v{T+6}, v{T+3}, 8, v{T+6}")
    a(f"v_lshl_add_u32 v{T+6}, v{T+4}, 6, v{T+6}")
    a(f"v_lshl_add_u32 v{T+6}, v{T+3}, 5, v{T+6}")
    a(f"v_lshl_add_u32 v{vWe}, v{T+5}, 3, v{T+6}")
    a(f"v_xor_b32 v{vWo}, 32, v{vWe}")
    a(f"s_lshl_b32 s39, s{sRb}, 7")
    a(f"s_lshl_b32 s40, s{sWave}, 5")
    a(f"s_add_u32 s39, s39, s40")
    a(f"s_lshl_b32 s39, s39, 11")
    a(f"s_add_u32 s39, s39, s38")
    a(f"v_and_b32 v{T+6}, 15, v{L}")
    a(f"v_lshl_add_u32 v{T+6}, v{T+6}, 11, s39")
    a(f"v_lshrrev_b32 v{T+7}, 4, v{L}")
    a(f"v_lshl_add_u32 v{vX}, v{T+7}, 3, v{T+6}")
    a(f"s_lshl_b32 s{sKA}, s{sWave}, 17")
    a(f"s_lshl_b32 s{sKW}, s{sWave}, 16")
    a("s_waitcnt lgkmcnt(0)")
    srd(a, sA, 4, WS_A2, SZ_A2)
    srd(a, sW, 6, 0, 1024 * 2048)
    srd(a, sX, 34, 0, 4 * MB)
    srd(a, sO, 36, 0, 4 * MB)
    a("s_mov_b32 s41, 32768")
    def xloads():
        l = []
        for h in range(2):
            for ft in range(4):
                r = X + (h * 4 + ft) * 2
                l.append(f"buffer_load_dwordx2 v[{r}:{r+1}], v{vX}, s[{sX}:{sX+3}], {'0' if h == 0 else 's41'} offen offset:{ft*32}")
        return l
    def wdma(slot):
        l = [[f"s_add_u32 m0, s{sM0}, {slot*4096}"]]
        for pc in range(4):
            l.append([f"buffer_load_dwordx4 v{vW+pc}, s[{sW}:{sW+3}], s{sKW} offen offset:{pc*1024} lds"])
        l.append([f"s_add_u32 s{sKW}, s{sKW}, {4*65536}"])
        return l
    def aload(buf, tt):
        r = ab(buf, tt)
        return f"buffer_load_dwordx4 a[{r}:{r+3}], v{vA + (tt>>2)}, s[{sA}:{sA+3}], s{sKA} offen offset:{(tt&3)*1024}"
    def wread(slot, buf):
        l = []
        for ft in range(4):
            r = wf(buf, ft)
            for rd in range(2):
                l.append(f"ds_read_b64_tr_b16 a[{r+2*rd}:{r+2*rd+1}], v{vWo if ft&1 else vWe} offset:{slot*4096 + rd*2048 + (ft>>1)*512}")
        return l
    for st in range(4):
        for k, x in enumerate(wdma(st)):
            a.extend(x)
            if k == 0: a("s_nop 0")
        for tt in range(8): a(aload(st, tt))
        a(f"s_add_u32 s{sKA}, s{sKA}, {4*131072}")
    for i in range(128): a(f"v_mov_b32 v{i}, 0")
    a("s_waitcnt vmcnt(44)")
    stamp(a, 1)
    a.extend(wread(0, 0))
    def step(v, loads, vm, reads=True, tail=None):
        a(f"s_waitcnt vmcnt({vm}) lgkmcnt(0)")
        m = []
        for tt in range(8):
            fts = range(4) if tt % 2 == 0 else range(3, -1, -1)
            for ft in fts:
                c = acc(tt, ft); w = wf(v & 1, ft); x = ab(v, tt)
                m.append(f"v_mfma_f32_16x16x32_bf16 v[{c}:{c+3}], a[{w}:{w+3}], a[{x}:{x+3}], v[{c}:{c+3}]")
        ex = []
        if loads:
            for i, x in enumerate(wdma(v)):
                ex.append((min(i, 2) if i < 2 else i, x))
            for tt in range(8):
                ex.append((max(4 * tt + 3, 6 + tt), aload(v, tt)))
            ex.append((31, f"s_add_u32 s{sKA}, s{sKA}, {4*131072}"))
        if reads:
            for i, x in enumerate(wread((v + 1) & 3, (v + 1) & 1)):
                ex.append((8 + 2 * i, x))
        ex.sort(key=lambda t: t[0])
        a.extend(weave(m, ex))
        if tail: a.extend(tail)
    a(f"s_mov_b32 s{sCnt}, 0")
    a(".p2align 6")
    a("L_g2_loop:")
    for v in range(4):
        step(v, True, 32)
    a(f"s_cmp_lg_u32 s{sCnt}, 0")
    a("s_cbranch_scc1 L_g2_nosw")
    srd(a, sW, 32, 0, 3584 * 2048)
    a(f"s_lshl_b32 s{sKW}, s{sWave}, 16")
    a("L_g2_nosw:")
    a(f"s_add_u32 s{sCnt}, s{sCnt}, 1")
    a(f"s_cmp_lt_u32 s{sCnt}, 8")
    a("s_cbranch_scc1 L_g2_loop")
    step(0, False, 32, tail=xloads())
    step(1, False, 28)
    step(2, False, 16)
    step(3, False, 8, reads=False)
    stamp(a, 2)
    if STAMP: a("s_waitcnt lgkmcnt(0)")
    a(f"v_lshlrev_b32 v{vRr}, 4, v{L}")
    a("s_nop 7")
    for d in range(4):
        a(f"s_cmp_eq_u32 s{sWave}, {d}")
        a(f"s_cbranch_scc1 L_g2_skip{d}")
        a(f"s_sub_u32 s38, s{sWave}, {d+1}")
        a(f"s_and_b32 s38, s38, 3")
        a(f"s_lshl_b32 s38, s38, 13")
        a(f"s_add_u32 s38, s38, {65536 + d*24576}")
        a(f"v_add_u32 v{vRw}, s38, v{vRr}")
        for h in range(2):
            for ft in range(4):
                c = acc(2 * d + h, ft)
                a(f"ds_write_b128 v{vRw}, v[{c}:{c+3}] offset:{(h*4+ft)*1024}")
        a(f"L_g2_skip{d}:")
    for d in range(1, 4):
        a(f"s_cmp_lg_u32 s{sWave}, {d}")
        a(f"s_cbranch_scc1 L_g2_mv{d}")
        a("s_waitcnt lgkmcnt(0)")
        for i in range(32): a(f"v_mov_b32 v{i}, v{32*d+i}")
        a(f"L_g2_mv{d}:")
    a(f"s_mul_i32 s38, s{sWave}, 24576")
    a(f"s_add_u32 s38, s38, 65536")
    a(f"v_add_u32 v{vRr}, s38, v{vRr}")
    a("s_waitcnt lgkmcnt(0)")
    a("s_barrier")
    for sl in range(3):
        base = 32 + 32 * sl
        for i in range(8):
            a(f"ds_read_b128 v[{base+4*i}:{base+4*i+3}], v{vRr} offset:{sl*8192 + i*1024}")
    a("s_mov_b32 s38, 0xffff0000")
    a("s_waitcnt vmcnt(0)")
    for i in range(8):
        r = X + 2 * i
        a(f"v_lshlrev_b32 v{T}, 16, v{r}")
        a(f"v_and_b32 v{T+1}, s38, v{r}")
        a(f"v_lshlrev_b32 v{T+2}, 16, v{r+1}")
        a(f"v_and_b32 v{T+3}, s38, v{r+1}")
        for j in range(4): a(f"v_add_f32 v{4*i+j}, v{4*i+j}, v{T+j}")
    for sl in range(3):
        a(f"s_waitcnt lgkmcnt({min(15, 16 - 8*sl)})" if sl < 2 else "s_waitcnt lgkmcnt(0)") if sl > 0 else a("s_waitcnt lgkmcnt(15)")
        if sl == 0: a("s_waitcnt lgkmcnt(8)")
        for i in range(32): a(f"v_add_f32 v{i}, v{i}, v{32+32*sl+i}")
    for i in range(8):
        a(f"v_cvt_pk_bf16_f32 v{X+2*i}, v{4*i}, v{4*i+1}")
        a(f"v_cvt_pk_bf16_f32 v{X+2*i+1}, v{4*i+2}, v{4*i+3}")
        a(f"buffer_store_dwordx2 v[{X+2*i}:{X+2*i+1}], v{vX}, s[{sO}:{sO+3}], {'0' if i < 4 else 's41'} offen offset:{(i&3)*32}")
    stamp(a, 3)
    stamp_flush(a, 3, 5, 0)
    a("L_g2_end:")
    a("s_endpgm")
    return a, descriptor(name, NV + 160, NV, 48), f"; @launch kernel={name} grid=(256,1,1) block=(256,1,1) lds=163840"

def build(kernels, path):
    ref = open(os.path.join(os.path.dirname(os.path.abspath(__file__)), "..", "cdna_kernels", NAME + ".s.ref")).read()
    head = [l for l in ref.split("\n") if l.startswith(";") and "@launch" not in l and "Override" not in l and "grid=ceil" not in l]
    out = "\n".join(head) + "\n"
    for a, d, l in kernels: out += l + "\n"
    out += '.amdgcn_target "amdgcn-amd-amdhsa--gfx950"\n.text\n'
    bad = 0
    for a, d, l in kernels:
        out += a.text()
        for p in a.check(l.split("kernel=")[1].split()[0]):
            print("HAZARD", p); bad += 1
    out += '.section .rodata,"a"\n'
    for a, d, l in kernels:
        out += ".p2align 6\n" + d
    open(path, "w").write(out)
    return bad

if __name__ == "__main__":
    ks = [gen_ln(), gen_gemm1(), gen_attn(), gen_gemm2()]
    path = sys.argv[1] if len(sys.argv) > 1 else "cdna_kernels/" + NAME + ".s"
    bad = build(ks, path)
    print("written", path, "hazards:", bad)
```

```python
import sys, os
sys.path.insert(0, os.path.dirname(os.path.abspath(__file__)))
from asmdsl import Asm, weave
import gen as G
from gen import *

WS_FL = 40 * MB
WS_END = 41 * MB
FQ, FH, FO, TX = 0, 2048, 4096, 5120
ND = int(os.environ.get("ND", "8"))
SPP = int(os.environ.get("SPP", "2"))
PUBAT = int(os.environ.get("PUBAT", "10"))
POLLAT = int(os.environ.get("POLLAT", "5"))
QPLAIN = int(os.environ.get("QPLAIN", "0"))
NC = int(os.environ.get("NC", "5"))
PF1 = int(os.environ.get("PF1", "32"))
SC = os.environ.get("SC", "sc1")
WNT = os.environ.get("WNT", "")
W2NT = os.environ.get("W2NT", "")
PFNT = os.environ.get("PFNT", "")
PFAT = int(os.environ.get("PFAT", "1"))
LNNT = os.environ.get("LNNT", "nt")
KSC = os.environ.get("KSC", "sc1")
PFG1 = int(os.environ.get("PFG1", "2"))
HSC = os.environ.get("HSC", "sc1")
QSC0 = os.environ.get("QSC0", "sc1")
ASC = os.environ.get("ASC", "sc1")
VMF = float(os.environ.get("VMF", "2"))
JROT = int(os.environ.get("JROT", "0"))
XROT = int(os.environ.get("XROT", "0"))
assert not (XROT and QPLAIN)
PFROW = int(os.environ.get("PFROW", "256"))
POLLSTEP = int(os.environ.get("POLLSTEP", "2"))

def gen_ln2():
    from asmdsl import Ins
    a, d, l = gen_ln()
    L = a.lines
    i = next(k for k, x in enumerate(L) if x.op == "s_load_dwordx2")
    L[i:i] = [Ins(f"s_load_dwordx2 s[20:21], s[0:1], {KA_WQKV}"), Ins(f"s_load_dwordx2 s[22:23], s[0:1], {KA_W1}")]
    idx = max(k for k, x in enumerate(L) if x.op == "buffer_load_dwordx4")
    b = Asm()
    b("v_readfirstlane_b32 s18, v2")
    srd(b, 24, 20, 0, 1024 * 6144)
    srd(b, 28, 22, 0, 1024 * 7168)
    b("s_lshr_b32 s19, s2, 3")
    if PF1 < 32:
        b(f"s_cmp_ge_u32 s19, {PF1}")
        b(f"s_cselect_b32 s26, 0, s26")
        b(f"s_cselect_b32 s30, 0, s30")
    b("s_lshl_b32 s19, s19, 2")
    b("s_add_u32 s19, s19, s18")
    b("s_lshl_b32 s19, s19, 3")
    b("s_and_b32 s32, s2, 7")
    b("s_mul_i32 s33, s19, 6144")
    b("s_lshl_b32 s34, s32, 8")
    b("s_add_u32 s33, s33, s34")
    b("s_mul_i32 s34, s19, 7168")
    b("s_mul_i32 s35, s32, 896")
    b("s_add_u32 s34, s34, s35")
    b("v_min_u32 v68, 47, v1")
    b("v_lshrrev_b32 v69, 4, v68")
    b("v_and_b32 v68, 15, v68")
    b("v_lshlrev_b32 v68, 4, v68")
    b("v_lshl_add_u32 v68, v69, 11, v68")
    b("v_min_u32 v69, 55, v1")
    b("v_lshlrev_b32 v69, 4, v69")
    for i in range(8):
        b("buffer_load_dwordx4 v[64:67], v69, s[28:31], s34 offen " + LNNT)
        b("buffer_load_dwordx4 v[64:67], v68, s[24:27], s33 offen " + LNNT)
        b("s_add_u32 s34, s34, 7168")
        b("s_add_u32 s33, s33, 6144")
    L[idx + 1:idx + 1] = b.lines
    n = 0
    for k in range(idx + 1, len(L)):
        if L[k].text.startswith("s_waitcnt vmcnt(") and n < 4:
            L[k] = Ins(f"s_waitcnt vmcnt({16 + 3 - n})"); n += 1
    idx = max(k for k, x in enumerate(L) if x.op == "buffer_store_dwordx4")
    b = Asm()
    b("s_cmp_ge_u32 s2, 6")
    b("s_cbranch_scc1 L_ln_nf")
    b("s_cmp_lg_u32 s18, 0")
    b("s_cbranch_scc1 L_ln_nf")
    srd(b, 36, 6, WS_FL, 6144)
    for i in range(4): b(f"v_mov_b32 v{72+i}, 0")
    b("v_lshlrev_b32 v70, 4, v1")
    b("s_lshl_b32 s19, s2, 10")
    b("buffer_store_dwordx4 v[72:75], v70, s[36:39], s19 offen")
    b("L_ln_nf:")
    L[idx + 1:idx + 1] = b.lines
    return a, descriptor("ln_kernel", 80, 80, 48), l

STAMPS = os.environ.get("STAMPS", "start,g1loop,g1end,atentry,atloop,pureend,fhok,atend,ostored,fopoll,fook,g2end,outst").split(",")
def stp(a, name):
    if name in STAMPS: stamp(a, STAMPS.index(name))

def gen_main():
    a = Asm()
    name = "main_kernel"
    header(a, name)
    sWS, sW, sKV, sX, sOut = 8, 12, 16, 20, 24
    pW1, pW2, pWO, pX, pOut = 28, 30, 32, 34, 36
    sWave, sXcd, sSlot = 38, 39, 40
    sKA, sKW, sM0A, sM0W, sCnt, sWr, sWc, sRb, sCt = 41, 42, 43, 44, 45, 46, 47, 48, 49
    t0, t1, t2, t3, t4, t5 = 50, 51, 52, 53, 54, 55
    sSo, sM0k, sCntA, sRing, sMb, sQO, sHead, sPub = 94, 95, 96, 97, 98, 99, 100, 101
    sM0g, sRb2, sCb = 43, 44, 46
    WSR = f"s[{sWS}:{sWS+3}]"
    vA_dma = 224; vW_dma = 225; vAr = 229; vWe1 = 231; vWo1 = 233; vWs1 = 235
    vFa = 239; vTa = 238
    sXcc = 3; sH1, sH2 = 47, 48; sPf = 49; sPf1 = 58; sPfA = 56; sPfB = 57
    T = 240; L = 241; vFl = 243; vL16 = 254; vDma = 255
    S = [0, 16]; NM = [32, 48]; O = [64, 80]; Lr = [96, 100]; D = [104, 120]
    Kf = [136, 144]; Vf = [152, 160]; ONE = 168; WF = [172, 188]
    vCur, IDX, vA, vW, vWe, vWo, vFa2, vX = 204, 205, 206, 208, 212, 213, 214, 215
    U = 216
    Q = [224, 232]
    npoll = [0]
    def poll(areg, first_done):
        n = npoll[0]; npoll[0] += 1
        a(f"s_mov_b32 s{t5}, 0")
        if first_done: a(f"s_branch L_pc{n}")
        a(f"L_pl{n}:")
        a(f"buffer_load_dword v{vFl}, v{areg}, {WSR}, 0 offen sc1")
        a("s_waitcnt vmcnt(0)")
        a(f"L_pc{n}:")
        a(f"v_cmp_ne_u32 vcc, 1, v{vFl}")
        a(f"s_add_u32 s{t5}, s{t5}, 1")
        a("s_nop 0")
        a(f"s_cbranch_vccz L_pd{n}")
        a("s_sleep 2")
        a(f"s_cmp_lt_u32 s{t5}, 0x40000")
        a(f"s_cbranch_scc1 L_pl{n}")
        a(f"L_pd{n}:")
    def publish(soff_reg, tmp, val="1"):
        n = npoll[0]; npoll[0] += 1
        a(f"s_cmp_lg_u32 s{sWave}, 0")
        a(f"s_cbranch_scc1 L_pb{n}")
        a(f"v_mov_b32 v{tmp}, {val}")
        a(f"buffer_store_dword v{tmp}, off, {WSR}, s{soff_reg} sc1")
        a(f"L_pb{n}:")

    a("s_cmp_ge_u32 s2, 256")
    a("s_cbranch_scc1 L_end")
    stp(a, "start")
    a(f"s_load_dwordx2 s[4:5], s[0:1], {KA_WS}")
    a(f"s_load_dwordx2 s[6:7], s[0:1], {KA_WQKV}")
    a(f"s_load_dwordx4 s[{pW1}:{pW1+3}], s[0:1], {KA_W1}")
    a(f"s_load_dwordx2 s[{pWO}:{pWO+1}], s[0:1], {KA_WO}")
    a(f"s_load_dwordx2 s[{pX}:{pX+1}], s[0:1], {KA_X}")
    a(f"s_load_dwordx2 s[{pOut}:{pOut+1}], s[0:1], {KA_OUT}")
    a(f"v_lshrrev_b32 v{T}, 6, v0")
    a(f"v_and_b32 v{L}, 63, v0")
    a(f"v_readfirstlane_b32 s{sWave}, v{T}")
    a(f"v_lshlrev_b32 v{vL16}, 4, v{L}")
    a(f"s_and_b32 s{sXcd}, s2, 7")
    if STAMP: a(f"s_mov_b32 s59, s{sWave}")
    a(f"s_lshr_b32 s{sSlot}, s2, 3")
    a(f"s_and_b32 s{sRb}, s{sSlot}, 7")
    a(f"s_lshr_b32 s{sCt}, s{sSlot}, 3")
    a(f"s_lshr_b32 s{sWr}, s{sWave}, 1")
    a(f"s_and_b32 s{sWc}, s{sWave}, 1")
    a(f"s_lshl_b32 s{t0}, s{sRb}, 14")
    a(f"s_lshl_b32 s{sM0A}, s{sWave}, 12")
    a(f"s_add_u32 s{t0}, s{t0}, s{sM0A}")
    a(f"v_add_u32 v{vA_dma}, s{t0}, v{vL16}")
    a(f"s_add_u32 s{sM0W}, s{sM0A}, 16384")
    a(f"v_lshrrev_b32 v{T+2}, 5, v{L}")
    a(f"v_bfe_u32 v{T+4}, v{L}, 4, 1")
    a(f"v_bfe_u32 v{T+5}, v{L}, 2, 2")
    a(f"v_and_b32 v{T+6}, 3, v{L}")
    ftp, gb, jj, qc = T + 2, T + 4, T + 5, T + 6
    a(f"s_lshl_b32 s{t0}, s{sWr}, 4")
    a(f"s_lshl_b32 s{t1}, s{sWc}, 2")
    a(f"s_add_u32 s{t0}, s{t0}, s{t1}")
    a(f"v_lshl_add_u32 v{T+7}, v{gb}, 3, v{jj}")
    a(f"v_add_u32 v{T+7}, s{t0}, v{T+7}")
    a(f"v_lshlrev_b32 v{T+8}, 1, v{gb}")
    a(f"v_xor_b32 v{T+8}, v{T+8}, v{qc}")
    a(f"v_lshlrev_b32 v{T+8}, 4, v{T+8}")
    a(f"v_lshl_add_u32 v{T+8}, v{ftp}, 6, v{T+8}")
    a(f"v_xor_b32 v{T+9}, v{gb}, v{qc}")
    a(f"v_lshlrev_b32 v{T+9}, 4, v{T+9}")
    a("s_waitcnt lgkmcnt(0)")
    srd(a, sWS, 4, 0, WS_END)
    a(f"s_mov_b32 s{sKA}, {WS_XN}")
    a(f"s_mov_b32 s{sKW}, 0")
    a(f"s_cmp_lt_u32 s{sCt}, 2")
    a("s_cbranch_scc0 L_g1_qkv")

    def at_scalars():
        a(f"s_and_b32 s{t0}, s{sSlot}, 3")
        a(f"s_lshl_b32 s{sHead}, s{sXcd}, 2")
        a(f"s_add_u32 s{sHead}, s{sHead}, s{t0}")
        a(f"s_and_b32 s{t0}, s{sSlot}, 28")
        a(f"s_add_u32 s{t0}, s{t0}, s{sWave}")
        a(f"s_lshl_b32 s{t0}, s{t0}, 12")
        a(f"s_lshl_b32 s{t1}, s{sHead}, 17")
        a(f"s_add_u32 s{sQO}, s{t0}, s{t1}")
        a(f"s_lshl_b32 s{sSo}, s{sHead}, 18")
        a(f"s_lshl_b32 s{sM0k}, s{sWave}, 12")
        a(f"v_add_u32 v{vDma}, s{sM0k}, v{vL16}")
        srd(a, sKV, 4, WS_KV, SZ_KV)
        a(f"s_lshr_b32 s{t0}, s{sHead}, 1")
        a(f"v_lshrrev_b32 v{vFa}, 3, v{L}")
        a(f"v_min_u32 v{vFa}, 2, v{vFa}")
        a(f"v_mul_u32_u24 v{vFa}, {XROT}, v{vFa}")
        a(f"v_sub_u32 v{vFa}, s{t0}, v{vFa}")
        a(f"v_and_b32 v{vFa}, 15, v{vFa}")
        a(f"v_lshlrev_b32 v{vFa}, 7, v{vFa}")
        a(f"v_and_b32 v{vTa}, 7, v{L}")
        a(f"v_lshl_add_u32 v{vFa}, v{vTa}, 2, v{vFa}")
        a(f"v_add_u32 v{vFa}, {WS_FL + FQ}, v{vFa}")
        a(f"s_getreg_b32 s{sXcc}, hwreg(HW_REG_XCC_ID)")
        a(f"s_and_b32 s{sXcc}, s{sXcc}, 0xff")
        a(f"s_add_u32 s{sXcc}, s{sXcc}, 1")
        a(f"s_lshl_b32 s{t0}, s{sXcd}, 7")
        a(f"s_add_u32 s{t0}, s{t0}, {WS_FL + TX}")
        a(f"v_and_b32 v{vTa}, 31, v{L}")
        a(f"v_lshl_add_u32 v{vTa}, v{vTa}, 2, s{t0}")
        a(f"s_lshl_b32 s{t1}, s{sSlot}, 2")
        a(f"s_add_u32 s{t0}, s{t0}, s{t1}")
        publish(t0, vFl, f"s{sXcc}")
    def kvdma(q):
        return f"buffer_load_dwordx4 v{vDma}, s[{sKV}:{sKV+3}], s{sSo} offen offset:{(q&3)*1024} {KSC} lds"
    def at_loads():
        a(f"s_add_u32 s{t0}, s{sQO}, {WS_Q}")
        for c in range(5):
            a(f"s_add_u32 m0, s{sM0k}, {c*16384}")
            a("s_nop 0")
            for q in range(4 if c < 4 else 1): a(kvdma(q))
            if c < 4: a(f"s_add_u32 s{sSo}, s{sSo}, 16384")
            if c == 0:
                for x in range(2):
                    for h in range(2):
                        a(f"buffer_load_dwordx4 v[{Q[x]+4*h}:{Q[x]+4*h+3}], v{vL16}, {WSR}, s{t0} offen offset:{x*2048+h*1024} {KSC}")

    def hstore(u, data):
        OR = f"s[{sOut}:{sOut+3}]"
        if u < 8:
            return [f"buffer_store_dwordx2 {data}, v{T+12 + (u>>2)}, {OR}, s{sH2} offen offset:{(u&3)*1024} {HSC}"]
        p, tt = divmod(u - 8, 8)
        l = [f"buffer_store_dwordx4 {data}, v{T + 2*(tt>>2)}, {OR}, s{sH1} offen offset:{(tt&3)*1024} {HSC}"]
        if tt == 7: l.append(f"s_add_u32 s{sH1}, s{sH1}, 131072")
        return l
    def g1(kind):
        ffn = kind == "ffn"
        NB = 7 if ffn else 6
        RS = 7168 if ffn else 6144
        nW = 4 if ffn else 3
        nd = 4 + nW
        NF = 8 + NB
        def fr(buf, i): return buf * NF * 4 + i * 4
        def acc(tt, ft): return (ft * 8 + tt) * 4
        if ffn:
            srd(a, sW, pW1, -4096, 1024 * 7168 + 4096)
            a(f"s_mul_i32 s{t0}, s{sXcd}, 896")
            a(f"s_mul_i32 s{t1}, s{sCt}, 384")
            a(f"s_add_u32 s{t1}, s{t1}, s{t0}")
            a(f"s_lshl_b32 s{t2}, s{sCt}, 6")
            a(f"s_add_u32 s{t2}, s{t2}, s{t0}")
            a(f"s_add_u32 s{t2}, s{t2}, {768 + 4096 - 3072}")
            qstep = 128
        else:
            srd(a, sW, 6, -4096, 1024 * 6144 + 4096)
            a(f"s_lshl_b32 s{t1}, s{sXcd}, 1")
            a(f"s_add_u32 s{t1}, s{t1}, s{sCt}")
            a(f"s_sub_u32 s{sCt}, s{t1}, 2")
            if JROT:
                a(f"s_add_u32 s{sCt}, s{sCt}, {JROT}")
                a(f"s_and_b32 s{sCt}, s{sCt}, 15")
            a(f"s_lshl_b32 s{t1}, s{sCt}, 7")
            qstep = 2048
        a(f"s_mov_b32 s{t3}, {RS}")
        a(f"v_mul_lo_u32 v{T+7}, v{T+7}, s{t3}")
        a(f"v_add_u32 v{T+8}, v{T+8}, v{T+7}")
        if ffn or not XROT:
            a(f"v_add_u32 v{T+8}, s{t1}, v{T+8}")
            for q in range(3):
                a(f"v_add_u32 v{vW_dma+q}, {4096 + q*qstep - q*1024}, v{T+8}")
        else:
            for q in range(3):
                a(f"s_add_u32 s{t1}, s{sCt}, {q*XROT}")
                a(f"s_and_b32 s{t1}, s{t1}, 15")
                a(f"s_lshl_b32 s{t1}, s{t1}, 7")
                a(f"s_add_u32 s{t1}, s{t1}, {4096 + q*qstep - q*1024}")
                a(f"v_add_u32 v{vW_dma+q}, s{t1}, v{T+8}")
        if ffn:
            a(f"v_add_u32 v{T+9}, v{T+9}, v{T+7}")
            a(f"v_add_u32 v{T+9}, s{t2}, v{T+9}")
            a(f"v_lshlrev_b32 v{T+10}, 30, v{ftp}")
            a(f"v_or_b32 v{vW_dma+3}, v{T+9}, v{T+10}")
        def dma_list(stage):
            l = []
            l.append([f"s_add_u32 m0, s{sM0W}, {stage*32768}"])
            for q in range(nW):
                l.append([f"buffer_load_dwordx4 v{vW_dma+q}, s[{sW}:{sW+3}], s{sKW} offen offset:{q*1024} {WNT} lds"])
            l.append([f"s_add_u32 m0, s{sM0A}, {stage*32768}", f"s_add_u32 s{sKW}, s{sKW}, {32*RS}"])
            for q in range(4):
                l.append([f"buffer_load_dwordx4 v{vA_dma}, {WSR}, s{sKA} offen offset:{q*1024} lds"])
            l.append([f"s_add_u32 s{sKA}, s{sKA}, 131072"])
            return l
        for st in range(4):
            for k, x in enumerate(dma_list(st)):
                a.extend(x)
                if k == 0: a("s_nop 0")
        if ffn: srd(a, sOut, 6, 0, 1024 * 6144)
        else: srd(a, sOut, pW1, 0, 1024 * 7168)
        srd(a, sX, pW2, 0, 3584 * 2048)
        a(f"s_lshl_b32 s{sPf1}, s2, 2")
        a(f"s_add_u32 s{sPf1}, s{sPf1}, s{sWave}")
        a(f"s_lshl_b32 s{sPf1}, s{sPf1}, 10")
        a(f"s_add_u32 s{sPfA}, s{sPf1}, {PFROW * RS + 4096}")
        a(f"s_add_u32 s{sPfB}, s{sPf1}, {PFROW * (13312 - RS)}")
        pf = [[f"buffer_load_dwordx4 a[120:123], v{vL16}, s[{r}:{r+3}], s{o} offen", f"s_add_u32 s{o}, s{o}, {MB}"]
              for r, o in ((sW, sPfA), (sOut, sPfB), (sX, sPf1))]
        if PFG1 == 2:
            a.extend(pf[0]); a.extend(pf[1])
        a(f"v_lshrrev_b32 v{T+9}, 4, v{L}")
        a(f"v_and_b32 v{T+10}, 15, v{L}")
        a(f"v_lshrrev_b32 v{T+11}, 3, v{T+10}")
        a(f"v_lshlrev_b32 v{T+11}, 1, v{T+11}")
        a(f"v_xor_b32 v{T+11}, v{T+11}, v{T+9}")
        a(f"v_lshlrev_b32 v{T+11}, 4, v{T+11}")
        a(f"v_lshl_add_u32 v{T+11}, v{T+10}, 6, v{T+11}")
        a(f"s_lshl_b32 s{t0}, s{sWr}, 13")
        a(f"v_add_u32 v{vAr}, s{t0}, v{T+11}")
        a(f"v_add_u32 v{vAr+1}, 0x10000, v{vAr}")
        a(f"v_lshlrev_b32 v{T+12}, 13, v{ftp}")
        a(f"v_lshl_add_u32 v{T+12}, v{gb}, 8, v{T+12}")
        a(f"v_lshl_add_u32 v{T+12}, v{jj}, 6, v{T+12}")
        a(f"v_lshl_add_u32 v{T+13}, v{gb}, 5, v{T+12}")
        a(f"v_lshl_add_u32 v{T+13}, v{qc}, 3, v{T+13}")
        a(f"s_mul_i32 s{t0}, s{sWc}, {1536 if ffn else 512}")
        a(f"v_add_u32 v{vWe1}, s{t0}, v{T+13}")
        a(f"v_add_u32 v{vWe1+1}, 0x10000, v{vWe1}")
        a(f"v_xor_b32 v{vWo1}, 32, v{vWe1}")
        a(f"v_xor_b32 v{vWo1+1}, 32, v{vWe1+1}")
        if ffn:
            a(f"v_and_b32 v{T+10}, 1, v{qc}")
            a(f"v_lshlrev_b32 v{T+10}, 1, v{T+10}")
            a(f"v_add_u32 v{T+10}, s{sWc}, v{T+10}")
            a(f"v_xor_b32 v{T+10}, v{T+10}, v{gb}")
            a(f"v_lshl_add_u32 v{T+10}, v{T+10}, 4, v{T+12}")
            a(f"v_lshrrev_b32 v{T+11}, 1, v{qc}")
            a(f"v_lshl_add_u32 v{vWs1}, v{T+11}, 3, v{T+10}")
            a(f"v_add_u32 v{vWs1+1}, 0x10000, v{vWs1}")
        at_scalars()
        for i in range(8 * NB * 4): a(f"v_mov_b32 v{i}, 0")
        for i in range(128): a(f"v_accvgpr_write_b32 a{128+i}, 0")
        def read_list(stage, buf):
            hi = stage >> 1; so = (stage & 1) * 32768
            rb = []
            for ft in range(NB):
                r = fr(buf, 8 + ft)
                if ffn and ft == 6:
                    v = vWs1 + hi; off = 3072
                else:
                    v = (vWo1 if ft & 1 else vWe1) + hi
                    off = (ft >> 1) * (512 if ffn else 1024)
                rb.append([f"ds_read_b64_tr_b16 a[{r+2*rd}:{r+2*rd+1}], v{v} offset:{so + 16384 + rd*4096 + off}" for rd in range(2)])
            ra = []
            for tt in range(8):
                r = fr(buf, tt)
                ra.append(f"ds_read_b128 a[{r}:{r+3}], v{vAr+hi} offset:{so + tt*1024}")
            l = rb[0] + ra
            for x in rb[1:]: l += x
            return l
        def mfmas(buf):
            l = []
            for ft in range(NB):
                tts = range(8) if ft % 2 == 0 else range(7, -1, -1)
                for tt in tts:
                    c = acc(tt, ft); w = fr(buf, 8 + ft); x = fr(buf, tt)
                    if (not ffn) and ft >= 4: w, x = x, w
                    l.append(f"v_mfma_f32_16x16x32_bf16 v[{c}:{c+3}], a[{w}:{w+3}], a[{x}:{x+3}], v[{c}:{c+3}]")
            return l
        e0 = 2 if PFG1 == 2 else 0
        a(f"s_waitcnt vmcnt({3*nd + e0})")
        a("s_barrier")
        a.extend(read_list(0, 0))
        a(f"s_waitcnt vmcnt({2*nd + e0}) lgkmcnt(0)")
        a("s_barrier")
        def step(k4, dma, vm, reads=True, tail=None, extra=()):
            m = mfmas(k4 & 1)
            n = len(m)
            ex = list(extra)
            if reads:
                rl = read_list((k4 + 1) & 3, (k4 + 1) & 1)
                for i, x in enumerate(rl):
                    ex.append(((i * int(n * 0.72)) // len(rl), x))
            if dma:
                dl = dma_list(k4)
                for i, x in enumerate(dl):
                    ex.append(((i * int(n * DMAF)) // len(dl), x))
            ex.sort(key=lambda t: t[0])
            a.extend(weave(m, ex))
            if tail: a.extend(tail)
            if vm is not None:
                a(f"s_waitcnt vmcnt({vm}) lgkmcnt(0)")
                a("s_barrier")
        stp(a, "g1loop")
        a(f"s_mov_b32 s{sCnt}, 7")
        a(".p2align 6")
        a(f"L_g1_{kind}_loop:")
        for k4 in range(4):
            has = {0: [], 1: [2], 2: [0, 1, 2]}[PFG1]
            npf = sum(1 for d in range(3) if ((k4 - d) & 3) in has)
            step(k4, True, int(VMF * nd) + npf, tail=[f"s_sub_u32 s{sCnt}, s{sCnt}, 1", f"s_cmp_lg_u32 s{sCnt}, 0"] if k4 == 3 else None,
                 extra=[(40, pf[k4])] if k4 in has else ())
        a(f"s_cbranch_scc1 L_g1_{kind}_loop")
        step(0, False, nd)
        step(1, False, 0)
        step(2, False, 63, extra=[(28, f"buffer_load_dword v{vFl}, v{vFa if ffn else vTa}, {WSR}, 0 offen sc1")])
        step(3, False, None, reads=False)
        stp(a, "g1end")
        vO = T; P = T + 4
        if ffn:
            a("s_waitcnt vmcnt(0)")
            stp(a, "e1"); stp(a, "e2"); stp(a, "e3")
            poll(vFa, True)
            stp(a, "e4")
            at_loads()
            stp(a, "e5")
            a(f"s_lshl_b32 s{t0}, s{sRb}, 14")
            a(f"s_lshl_b32 s{t1}, s{sWr}, 13")
            a(f"s_add_u32 s{t0}, s{t0}, s{t1}")
            a(f"v_add_u32 v{vO}, s{t0}, v{vL16}")
            a(f"v_add_u32 v{vO+2}, 4096, v{vO}")
            a(f"s_lshl_b32 s{t1}, s{sWc}, 9")
            a(f"s_add_u32 s{t0}, s{t0}, s{t1}")
            a(f"v_lshrrev_b32 v{T+12}, 5, v{L}")
            a(f"v_lshl_add_u32 v{T+12}, v{T+12}, 8, s{t0}")
            a(f"v_and_b32 v{T+13}, 15, v{L}")
            a(f"v_lshl_add_u32 v{T+12}, v{T+13}, 4, v{T+12}")
            a(f"v_bfe_u32 v{T+13}, v{L}, 4, 1")
            a(f"v_lshl_add_u32 v{T+12}, v{T+13}, 3, v{T+12}")
            a(f"v_add_u32 v{T+13}, 4096, v{T+12}")
            a(f"s_mul_i32 s{t0}, s{sXcd}, 14")
            a(f"s_mul_i32 s{t1}, s{sCt}, 6")
            a(f"s_mul_i32 s{t2}, s{sWc}, 3")
            a(f"s_add_u32 s{t1}, s{t1}, s{t2}")
            a(f"s_add_u32 s{t1}, s{t1}, s{t0}")
            a(f"s_add_u32 s{t1}, s{t1}, {32 + WS_A2 // 131072}")
            a(f"s_lshl_b32 s{t1}, s{t1}, 17")
            a(f"s_add_u32 s{t2}, s{t0}, s{sCt}")
            a(f"s_add_u32 s{t2}, s{t2}, {44 + WS_A2 // 131072}")
            a(f"s_lshl_b32 s{t2}, s{t2}, 17")
            a(f"s_lshl_b32 s{sPub}, s{sXcd}, 1")
            a(f"s_add_u32 s{sPub}, s{sPub}, s{sCt}")
            a(f"s_lshl_b32 s{sPub}, s{sPub}, 2")
            a(f"s_lshl_b32 s{t0}, s{sRb}, 7")
            a(f"s_add_u32 s{sPub}, s{sPub}, s{t0}")
            a(f"s_add_u32 s{sPub}, s{sPub}, {WS_FL + FH}")
            a(f"s_mov_b32 s{sH1}, s{t1}")
            a(f"s_mov_b32 s{sH2}, s{t2}")
            srd(a, sOut, 4, 0, WS_END)
            n = 0
            order = []
            dl_, pl_ = list(range(ND)), list(range(ND, 32))
            while dl_ or pl_:
                if dl_ and (not pl_ or len(dl_) * (32 - ND) >= len(pl_) * ND): order.append(dl_.pop(0))
                else: order.append(pl_.pop(0))
            for u in order:
                pk = P + 4 * (n & 1); n += 1
                if u < 8:
                    c = acc(u, 6); w = 2
                    a(f"v_cvt_pk_bf16_f32 v{pk}, v{c}, v{c+1}")
                    a(f"v_cvt_pk_bf16_f32 v{pk+1}, v{c+2}, v{c+3}")
                else:
                    p, tt = divmod(u - 8, 8); w = 4
                    for e in range(2):
                        c = acc(tt, 2 * p + e)
                        a(f"v_cvt_pk_bf16_f32 v{pk+2*e}, v{c}, v{c+1}")
                        a(f"v_cvt_pk_bf16_f32 v{pk+2*e+1}, v{c+2}, v{c+3}")
                for e in range(w):
                    a(f"v_pk_max_i16 v{pk+e}, v{pk+e}, 0")
                if u < ND:
                    a.extend(hstore(u, f"v[{pk}:{pk+w-1}]"))
                else:
                    for e in range(w):
                        a(f"v_accvgpr_write_b32 a{4*(u-ND)+e}, v{pk+e}")
            stp(a, "e6")
            a(f"s_waitcnt vmcnt({9 + ND})")
            a("s_branch L_at_entry")
        else:
            QSC = "" if QPLAIN else QSC0
            a("s_nop 3")
            a(f"s_lshl_b32 s{t0}, s{sRb}, 3")
            a(f"s_lshl_b32 s{t1}, s{sWr}, 2")
            a(f"s_add_u32 s{t0}, s{t0}, s{t1}")
            a(f"s_lshl_b32 s{t0}, s{t0}, 11")
            for X, dst in enumerate((t1, t2, t5)):
                a(f"s_add_u32 s{t3}, s{sCt}, {X*XROT}")
                a(f"s_and_b32 s{t3}, s{t3}, 15")
                a(f"s_lshl_b32 s{t3}, s{t3}, 1")
                a(f"s_add_u32 s{t3}, s{t3}, s{sWc}")
                a(f"s_lshl_b32 s{t3}, s{t3}, 17")
                a(f"s_add_u32 s{dst}, s{t3}, s{t0}")
                if X: a(f"s_lshl_b32 s{dst}, s{dst}, 1")
                a(f"s_add_u32 s{dst}, s{dst}, {WS_KV if X else WS_Q}")
            a(f"v_lshrrev_b32 v{T+12}, 4, v{L}")
            a(f"v_lshlrev_b32 v{T+12}, 9, v{T+12}")
            a(f"v_and_b32 v{T+13}, 15, v{L}")
            a(f"v_lshl_add_u32 v{vO}, v{T+13}, 4, v{T+12}")
            a(f"v_bfe_u32 v{T+13}, v{L}, 2, 2")
            a(f"v_lshl_add_u32 v{T+12}, v{T+13}, 7, v{T+12}")
            a(f"v_and_b32 v{T+13}, 3, v{L}")
            a(f"v_lshl_add_u32 v{vO+2}, v{T+13}, 4, v{T+12}")
            a(f"s_mov_b32 s{t4}, {f2u(QSCALE):#x}")
            n = 0
            for b in range(4):
                for h in range(2):
                    tt = 2 * b + h
                    pk = P + 4 * (n & 1); n += 1
                    for e in range(2):
                        c = acc(tt, 2 + e)
                        a(f"v_cvt_pk_bf16_f32 v{pk+2*e}, v{c}, v{c+1}")
                        a(f"v_cvt_pk_bf16_f32 v{pk+2*e+1}, v{c+2}, v{c+3}")
                    a(f"buffer_store_dwordx4 v[{pk}:{pk+3}], v{vO+2}, {WSR}, s{t2} offen offset:{h*64} {QSC}")
                for vt in range(2):
                    pk = P + 4 * (n & 1); n += 1
                    for e in range(2):
                        c = acc(2 * b + e, 4 + vt)
                        a(f"v_cvt_pk_bf16_f32 v{pk+2*e}, v{c}, v{c+1}")
                        a(f"v_cvt_pk_bf16_f32 v{pk+2*e+1}, v{c+2}, v{c+3}")
                    a(f"buffer_store_dwordx4 v[{pk}:{pk+3}], v{vO}, {WSR}, s{t5} offen offset:{2048 + vt*256} {QSC}")
                for h in range(2):
                    tt = 2 * b + h
                    pk = P + 4 * (n & 1); n += 1
                    for e in range(2):
                        c = acc(tt, e)
                        for r in range(4):
                            a(f"v_mul_f32 v{c+r}, s{t4}, v{c+r}")
                        a(f"v_cvt_pk_bf16_f32 v{pk+2*e}, v{c}, v{c+1}")
                        a(f"v_cvt_pk_bf16_f32 v{pk+2*e+1}, v{c+2}, v{c+3}")
                    a(f"buffer_store_dwordx4 v[{pk}:{pk+3}], v{vO}, {WSR}, s{t1} offen offset:{h*256} {QSC}")
                a(f"s_add_u32 s{t1}, s{t1}, 2048")
                a(f"s_add_u32 s{t2}, s{t2}, 4096")
                a(f"s_add_u32 s{t5}, s{t5}, 4096")
            stp(a, "e1")
            a(f"s_lshl_b32 s{t0}, s{sCt}, 7")
            a(f"s_lshl_b32 s{t1}, s{sRb}, 2")
            a(f"s_add_u32 s{t0}, s{t0}, s{t1}")
            a(f"s_add_u32 s{t0}, s{t0}, {WS_FL + FQ}")
            a(f"s_mov_b32 s{sPub}, 0")
            a("s_waitcnt vmcnt(0)")
            a("s_barrier")
            stp(a, "e2")
            if QPLAIN:
                a(f"v_cmp_ne_u32 vcc, s{sXcc}, v{vFl}")
                a(f"s_cmp_lg_u32 s{sWave}, 0")
                a("s_cbranch_scc1 L_q_local")
                a("s_cbranch_vccz L_q_local")
                a("buffer_wbl2 sc1")
                a("s_waitcnt vmcnt(0)")
                a("L_q_local:")
            publish(t0, T)
            stp(a, "e3")
            poll(vFa, False)
            stp(a, "e4")
            at_loads()
            stp(a, "e5")
            srd(a, sOut, 4, 0, 0)
            a(f"s_mov_b32 s{sH1}, 0")
            a(f"s_mov_b32 s{sH2}, 0")
            stp(a, "e6")
            a("s_waitcnt vmcnt(9)")
    g1("ffn")
    a("L_g1_qkv:")
    g1("qkv")

    a("L_at_entry:")
    stp(a, "atentry")
    a("s_barrier")
    a(f"v_mov_b32 v{vCur}, v{vL16}")
    def rdK(t, tl):
        b = Kf[t & 1]
        return [f"ds_read_b128 v[{b}:{b+3}], v{vCur} offset:{tl*4096}",
                f"ds_read_b128 v[{b+4}:{b+7}], v{vCur} offset:{tl*4096+1024}"]
    def rdV(t, tl):
        b = Vf[t & 1]
        return [f"ds_read_b128 v[{b}:{b+3}], v{vCur} offset:{tl*4096+2048}",
                f"ds_read_b128 v[{b+4}:{b+7}], v{vCur} offset:{tl*4096+3072}"]
    def qk(x, t, c0=None):
        s = S[x]; k = Kf[t & 1]; q = Q[x]
        c = f"v[{NM[x]}:{NM[x]+15}]" if c0 is None else c0
        return [f"v_mfma_f32_32x32x16_bf16 v[{s}:{s+15}], v[{k}:{k+3}], v[{q}:{q+3}], {c}",
                f"v_mfma_f32_32x32x16_bf16 v[{s}:{s+15}], v[{k+4}:{k+7}], v[{q+4}:{q+7}], v[{s}:{s+15}]"]
    def PV(x, t, h):
        v = Vf[t & 1]
        return f"v_smfmac_f32_32x32x32_bf16 v[{O[x]}:{O[x]+15}], v[{v+4*h}:{v+4*h+3}], v[{D[x]+8*h}:{D[x]+8*h+7}], v{IDX}"
    def LS(x, h):
        return f"v_smfmac_f32_16x16x64_bf16 v[{Lr[x]}:{Lr[x]+3}], v[{ONE}:{ONE+3}], v[{D[x]+8*h}:{D[x]+8*h+7}], v{IDX}"
    a.extend(rdK(0, 0))
    a.extend(rdV(0, 0))
    a(f"v_and_b32 v{U}, 7, v{L}")
    a(f"v_cmp_eq_u32 vcc, 0, v{U}")
    a(f"v_cmp_eq_u32 s[56:57], 4, v{U}")
    a(f"v_mov_b32 v{U+2}, 0x3f803f80")
    a(f"v_mov_b32 v{IDX}, 0xdddddddd")
    a(f"v_cndmask_b32 v{ONE}, 0, v{U+2}, vcc")
    a(f"v_cndmask_b32 v{ONE+2}, 0, v{U+2}, s[56:57]")
    a(f"v_mov_b32 v{ONE+1}, v{ONE}")
    a(f"v_mov_b32 v{ONE+3}, v{ONE+2}")
    a(f"s_add_u32 s{sMb}, s{sM0k}, 65536")
    a(f"s_mov_b32 s{sRing}, 0")
    a(f"s_mov_b32 s{sCntA}, 0")
    a("s_waitcnt lgkmcnt(0)")
    a.extend(qk(0, 0, "0"))
    a.extend(qk(1, 0, "0"))
    for i in range(40): a(f"v_mov_b32 v{O[0]+i}, 0")
    for i in range(8): a(f"v_mov_b32 v{D[1]+8+i}, 0")
    for i in range(4): a(f"v_mov_b32 v{Vf[1]+4+i}, 0")
    a(f"s_lshr_b32 s{t0}, s{sXcd}, 1")
    a(f"s_lshl_b32 s{t0}, s{t0}, 2")
    a(f"s_and_b32 s{t1}, s{sSlot}, 3")
    a(f"s_add_u32 s{sRb2}, s{t0}, s{t1}")
    a(f"s_lshr_b32 s{t0}, s{sRb2}, 1")
    a(f"s_lshl_b32 s{t0}, s{t0}, 7")
    a(f"s_add_u32 s{t0}, s{t0}, {WS_FL + FH}")
    a(f"v_and_b32 v{U}, 15, v{L}")
    a(f"v_lshl_add_u32 v{vFa2}, v{U}, 2, s{t0}")
    srd(a, sW, pW2, 0, 3584 * 2048)
    srd(a, sX, pWO, 0, 1024 * 2048)
    a(f"s_lshl_b32 s{sPf}, s2, 2")
    a(f"s_add_u32 s{sPf}, s{sPf}, s{sWave}")
    a(f"s_lshl_b32 s{sPf}, s{sPf}, 10")
    pfl = []
    for q in range(0 if PFG1 else 7):
        pfl.append([f"buffer_load_dwordx4 v[{U+4}:{U+7}], v{vL16}, s[{sW}:{sW+3}], s{sPf} offen {PFNT}",
                    f"s_add_u32 s{sPf}, s{sPf}, {MB}" if q < 6 else f"s_sub_u32 s{sPf}, s{sPf}, {6*MB}"])
    for q in range(2):
        pfl.append([f"buffer_load_dwordx4 v[{U+4}:{U+7}], v{vL16}, s[{sX}:{sX+3}], s{sPf} offen {PFNT}", f"s_add_u32 s{sPf}, s{sPf}, {MB}"])
    def g2_setup():
        a(f"s_lshr_b32 s{t0}, s{sXcd}, 1")
        a(f"s_lshl_b32 s{t0}, s{t0}, 2")
        a(f"s_and_b32 s{t1}, s{sSlot}, 3")
        a(f"s_add_u32 s{sRb2}, s{t0}, s{t1}")
        a(f"s_and_b32 s{t0}, s{sXcd}, 1")
        a(f"s_lshl_b32 s{t0}, s{t0}, 3")
        a(f"s_lshr_b32 s{t1}, s{sSlot}, 2")
        a(f"s_add_u32 s{sCb}, s{t0}, s{t1}")
        a(f"s_lshl_b32 s{t0}, s{sRb2}, 13")
        a(f"v_add_u32 v{vA}, s{t0}, v{vL16}")
        a(f"v_add_u32 v{vA+1}, 4096, v{vA}")
        a(f"v_lshrrev_b32 v{U}, 5, v{L}")
        a(f"v_bfe_u32 v{U+1}, v{L}, 4, 1")
        a(f"v_bfe_u32 v{U+2}, v{L}, 2, 2")
        a(f"v_and_b32 v{U+3}, 3, v{L}")
        a(f"v_lshl_add_u32 v{vW}, v{U+1}, 2, v{U+2}")
        a(f"v_lshlrev_b32 v{vW}, 11, v{vW}")
        a(f"v_lshlrev_b32 v{vW+1}, 1, v{U+1}")
        a(f"v_xor_b32 v{vW+1}, v{vW+1}, v{U+3}")
        a(f"v_lshl_add_u32 v{vW}, v{vW+1}, 4, v{vW}")
        a(f"v_lshl_add_u32 v{vW}, v{U}, 6, v{vW}")
        a(f"s_lshl_b32 s{t0}, s{sCb}, 7")
        a(f"v_add_u32 v{vW}, s{t0}, v{vW}")
        for pc in range(1, 4):
            a(f"v_add_u32 v{vW+pc}, {pc*(16384-1024)}, v{vW}")
        a(f"s_lshl_b32 s{sM0g}, s{sWave}, 14")
        a(f"s_add_u32 s{sM0g}, s{sM0g}, 98304")
        a(f"v_lshl_add_u32 v{vWe}, v{U}, 10, s{sM0g}")
        a(f"v_lshl_add_u32 v{vWe}, v{U+1}, 8, v{vWe}")
        a(f"v_lshl_add_u32 v{vWe}, v{U+2}, 6, v{vWe}")
        a(f"v_lshl_add_u32 v{vWe}, v{U+1}, 5, v{vWe}")
        a(f"v_lshl_add_u32 v{vWe}, v{U+3}, 3, v{vWe}")
        a(f"v_xor_b32 v{vWo}, 32, v{vWe}")
        a(f"s_lshl_b32 s{t1}, s{sRb2}, 7")
        a(f"s_lshl_b32 s{t2}, s{sWave}, 5")
        a(f"s_add_u32 s{t1}, s{t1}, s{t2}")
        a(f"s_lshl_b32 s{t1}, s{t1}, 11")
        a(f"s_add_u32 s{t1}, s{t1}, s{t0}")
        a(f"v_and_b32 v{U}, 15, v{L}")
        a(f"v_lshl_add_u32 v{vX}, v{U}, 11, s{t1}")
        a(f"v_lshrrev_b32 v{U+1}, 4, v{L}")
        a(f"v_lshl_add_u32 v{vX}, v{U+1}, 3, v{vX}")
        a(f"s_lshr_b32 s{t0}, s{sRb2}, 1")
        a(f"s_lshl_b32 s{t0}, s{t0}, 7")
        a(f"s_add_u32 s{t0}, s{t0}, {WS_FL + FH}")
        a(f"v_lshl_add_u32 v{vFa2}, v{U}, 2, s{t0}")
        a(f"s_lshl_b32 s{sKA}, s{sWave}, 17")
        a(f"s_add_u32 s{sKA}, s{sKA}, {WS_A2 + 32*131072}")
        a(f"s_lshl_b32 s{sKW}, s{sWave}, 16")
        srd(a, sW, pW2, 0, 3584 * 2048)
    for x in range(2):
        s0 = S[x]
        a(f"v_max3_f32 v{U}, v{s0}, v{s0+1}, v{s0+2}")
        for i in range(3, 15, 2):
            a(f"v_max3_f32 v{U}, v{U}, v{s0+i}, v{s0+i+1}")
        a(f"v_max_f32 v{U}, v{U}, v{s0+15}")
        a(f"v_mov_b32 v{U+2}, v{U}")
        a("s_nop 1")
        a(f"v_permlane32_swap_b32 v{U}, v{U+2}")
        a(f"v_max_f32 v{U}, v{U}, v{U+2}")
        for i in range(16): a(f"v_sub_f32 v{NM[x]+i}, 0, v{U}")
        if x == 0:
            for i in range(16): a(f"v_sub_f32 v{s0+i}, v{s0+i}, v{U}")
    a(f"s_mov_b32 m0, s{sMb}")
    a("s_nop 0")
    stp(a, "atloop")

    def acc2(tt, ft): return 128 + (tt * 4 + ft) * 4
    def ab(buf, tt): return buf * 32 + tt * 4
    def gm(v, tt, ft):
        c = acc2(tt, ft); w = WF[v & 1] + ft * 4; x = ab(v, tt)
        return f"v_mfma_f32_16x16x32_bf16 a[{c}:{c+3}], v[{w}:{w+3}], a[{x}:{x+3}], a[{c}:{c+3}]"
    def aload(buf, tt):
        r = ab(buf, tt)
        return f"buffer_load_dwordx4 a[{r}:{r+3}], v{vA + (tt>>2)}, {WSR}, s{sKA} offen offset:{(tt&3)*1024} {ASC}"
    def wdma(pc):
        return f"buffer_load_dwordx4 v{vW+pc}, s[{sW}:{sW+3}], s{sKW} offen offset:{pc*1024} {W2NT} lds"
    def wread(slot, buf, ft):
        r = WF[buf] + ft * 4
        return [f"ds_read_b64_tr_b16 v[{r+2*rd}:{r+2*rd+1}], v{vWo if ft&1 else vWe} offset:{slot*4096 + rd*2048 + (ft>>1)*512}" for rd in range(2)]
    W0 = "s_waitcnt lgkmcnt(0)"
    def phase(x, t, doqk=True, f=None):
        y = 1 - x
        f = f or {}
        E = lambda i: f"v_exp_f32 v{D[x]+i}, v{S[x]+i}"
        q = qk(y, t + x) if doqk else [None, None]
        g = lambda k: f.get(k, [])
        seq = [q[0]] + g(0) + [E(0), E(1), E(2), q[1]] + g(1) + [E(3), E(4), E(5), PV(y, t - 1 + x, 1)] + g(2) + [E(6), E(7), E(8),
               LS(y, 1)] + g(3) + [E(9), E(10), PV(x, t, 0)] + g(4) + [E(11), E(12), E(13), LS(x, 0)] + g(5) + [E(14), E(15)]
        a.extend([z for z in seq if z])
    ring_adv = [f"s_add_u32 s{sMb}, s{sRing}, s{sM0k}", f"s_add_u32 s{sRing}, s{sRing}, 32768", f"s_cmp_eq_u32 s{sRing}, 98304",
                f"s_cselect_b32 s{sRing}, 0, s{sRing}"]
    kv_sel = [f"s_cmp_gt_u32 s{sCntA}, 5", f"s_cselect_b32 s{sKV+2}, 0, {SZ_KV}"]
    hq = list(range(ND, 32))
    ops = [0]
    def it_pure(c, j, lastpure):
        t = j + 1
        k = rdK(t + 1, j); v = rdV(t + 1, j)
        fa = {0: [k[0]], 1: [k[1]], 5: [W0]}
        fb = {0: [v[0]], 1: [v[1]], 5: [W0]}
        if j == 0:
            fa[2] = [f"s_mov_b32 m0, s{sMb}"]
            if c > 5: fa[3] = [f"s_mov_b32 s{sKV+2}, 0"]
        if j == 4:
            fa[2] = [f"s_add_u32 m0, s{sMb}, 16384", f"s_add_u32 s{sSo}, s{sSo}, 16384"]
        fa[4] = [kvdma(j)]
        if j == 7:
            fa[2] = ring_adv[0:2]; fa[3] = ring_adv[2:4]
            fb[2] = [f"s_add_u32 s{sSo}, s{sSo}, 16384"]
        for f in (fa, fb):
            for sl in (2, 3)[:SPP]:
                if hq:
                    u = hq.pop(0); w = 2 if u < 8 else 4
                    f[sl] = f.get(sl, []) + hstore(u, f"a[{4*(u-ND)}:{4*(u-ND)+w-1}]")
        if pfl and 8 * c + j >= PFAT: fb[4] = pfl.pop(0)
        if lastpure and j == POLLAT:
            fb[4] = fb.get(4, []) + [f"buffer_load_dword v{vFl}, v{vFa2}, {WSR}, 0 offen sc1"]
        return fa, fb, t
    def count_vm(lst):
        return sum(1 for z in lst if z.startswith("buffer_"))
    def kv_m0(j):
        return f"s_mov_b32 m0, s{sMb}" if j < 4 else f"s_add_u32 m0, s{sMb}, 16384"
    def trip_sa(j, x):
        l = []
        if j == 0 and x == 0: l += kv_sel
        if j == 3 and x == 1: l += [f"s_add_u32 s{sSo}, s{sSo}, 16384"]
        if j == 7 and x == 1: l += [f"s_add_u32 s{sSo}, s{sSo}, 16384"] + ring_adv
        if (j & 1) == 0 and x == 0 : pass
        return l
    def kstep_adv():
        return [f"s_add_u32 s{sKA}, s{sKA}, {4*131072}", f"s_add_u32 s{sKW}, s{sKW}, {4*65536}"]
    def it_load(j):
        t = j + 1; v = j >> 1
        for x in range(2):
            ph = 2 * (j & 1) + x
            kv = rdK(t + 1, j) if x == 0 else rdV(t + 1, j)
            tr = wread(0, 0, ph) if v == 3 else []
            sa = trip_sa(j, x)
            wait = "s_waitcnt vmcnt(28) lgkmcnt(0)" if ph == 3 else W0
            f = {0: [kv[0], kv[1]], 1: sa[0:2] + tr, 2: [f"s_add_u32 m0, s{sM0g}, {v*4096}", aload(v, 2 * ph)], 3: sa[2:] + [wdma(ph)],
                 4: ([kv_m0(j)] if x == 0 else []), 5: [wait, aload(v, 2 * ph + 1)] + ([kvdma(j)] if x == 0 else [])}
            if ph == 3: f[5] += kstep_adv()
            if j == 7 and x == 1:
                f[4] = [f"s_add_u32 s{sCntA}, s{sCntA}, 1"]
                f[5] += ["s_barrier", f"v_add_u32 v{vCur}, s{sRing}, v{vL16}"]
            phase(x, t, f=f)
    def it_comb(j):
        t = j + 1; v = j >> 1
        for x in range(2):
            y = 1 - x
            ph = 2 * (j & 1) + x
            E = lambda i: f"v_exp_f32 v{D[x]+i}, v{S[x]+i}"
            q = qk(y, t + x)
            kv = rdK(t + 1, j) if x == 0 else rdV(t + 1, j)
            tr = wread((v + 1) & 3, (v + 1) & 1, ph)
            Gm = [gm(v, 2 * ph, ft) for ft in range(4)] + [gm(v, 2 * ph + 1, ft) for ft in range(3, -1, -1)]
            sa = trip_sa(j, x) + [None] * 5
            wait = "s_waitcnt vmcnt(28) lgkmcnt(0)" if ph == 3 else W0
            last = (j == 7 and x == 1)
            seq = [Gm[0], kv[0], kv[1], q[0], sa[0], E(0), E(1), E(2), Gm[1], sa[1], E(3), q[1], sa[2], E(4), E(5), E(6), Gm[2], sa[3], E(7),
                   PV(y, t - 1 + x, 1), tr[0], E(8), E(9), LS(y, 1), tr[1], Gm[3], sa[4], E(10), PV(x, t, 0), aload(v, 2 * ph), E(11), E(12),
                   Gm[4], f"s_add_u32 m0, s{sM0g}, {v*4096}", E(13), LS(x, 0), wdma(ph), Gm[5],
                   kv_m0(j) if x == 0 else (f"s_add_u32 s{sCntA}, s{sCntA}, 1" if last else None), E(14), Gm[6], wait,
                   "s_barrier" if last else None, E(15), Gm[7], aload(v, 2 * ph + 1), kvdma(j) if x == 0 else None]
            if ph == 3: seq += kstep_adv()
            if last: seq += [f"v_add_u32 v{vCur}, s{sRing}, v{vL16}", f"s_cmp_lt_u32 s{sCntA}, 8"]
            a.extend([z for z in seq if z])

    NPURE = 7 - NC
    seqs = []
    for c in range(NPURE):
        for j in range(1 if c == 0 else 0, 8):
            seqs.append((c, j) + it_pure(c, j, c == NPURE - 1))
    assert not pfl
    assert not hq, "deferred h stores do not fit in the pure trips"
    log = []
    for (c, j, fa, fb, t) in seqs:
        for f in (fa, fb):
            for sl in range(5):
                for z in f.get(sl, []):
                    if z.startswith("buffer_"):
                        log.append("kv%d" % c if " lds" in z else ("st" if "store" in z else ("poll" if "dword " in z else "pf")))
        def younger(pred):
            idx = [i for i, tag in enumerate(log) if pred(tag)]
            return len(log) - 1 - idx[-1] if idx else len(log)
        need = 63
        pub = (8 * c + j == PUBAT)
        if j == 7: need = min(need, younger(lambda g: g == "kv%d" % (c - 1)))
        if pub: need = min(need, younger(lambda g: g == "st"))
        if j == 7 or pub:
            fb[5] = [f"s_waitcnt vmcnt({need}) lgkmcnt(0)", "s_barrier"]
            if j == 7: fb[5].append(f"v_add_u32 v{vCur}, s{sRing}, v{vL16}")
        phase(0, t, f=fa)
        phase(1, t, f=fb)
        if pub:
            assert log.count("st") == 32 - ND
            a(f"s_cmp_eq_u32 s{sPub}, 0")
            a("s_cbranch_scc1 L_at_np")
            publish(sPub, U)
            a("L_at_np:")
    stp(a, "pureend")
    a(f"s_mov_b32 s{sCntA}, {NPURE}")
    g2_setup()
    a(f"s_waitcnt vmcnt({younger(lambda g: g == 'poll')})")
    poll(vFa2, True)
    stp(a, "fhok")
    for j in range(8): it_load(j)
    if NC:
        a(".p2align 6")
        a("L_cb_loop:")
        for j in range(8): it_comb(j)
        a("s_cbranch_scc1 L_cb_loop")
    phase(0, 63)
    phase(1, 63, doqk=False)
    a("s_nop 1")
    a(PV(1, 63, 1)); a(LS(1, 1))
    stp(a, "atend")
    a(f"v_bfe_u32 v{U+2}, v{L}, 4, 1")
    a(f"v_lshlrev_b32 v{U+2}, 10, v{U+2}")
    a(f"v_lshrrev_b32 v{U+3}, 5, v{L}")
    a(f"v_lshl_add_u32 v{U+2}, v{U+3}, 8, v{U+2}")
    a(f"v_and_b32 v{U+3}, 15, v{L}")
    a(f"v_lshl_add_u32 v{U+2}, v{U+3}, 4, v{U+2}")
    a(f"s_lshr_b32 s{t0}, s{sRb2}, 1")
    a(f"s_lshl_b32 s{t0}, s{t0}, 7")
    a(f"s_add_u32 s{t0}, s{t0}, {WS_FL + FO}")
    a(f"v_and_b32 v{U+3}, 31, v{L}")
    a(f"v_lshl_add_u32 v{vFa2}, v{U+3}, 2, s{t0}")
    a(f"s_lshr_b32 s{t0}, s{sSlot}, 2")
    a(f"s_lshl_b32 s{t0}, s{t0}, 7")
    a(f"s_lshl_b32 s{sPub}, s{sHead}, 2")
    a(f"s_add_u32 s{sPub}, s{sPub}, s{t0}")
    a(f"s_add_u32 s{sPub}, s{sPub}, {WS_FL + FO}")
    a(f"s_add_u32 s{sQO}, s{sQO}, {WS_A2}")
    a(f"v_mul_f32 v{U}, 0, v{O[0]}")
    for i in range(1, 32):
        a(f"v_fma_f32 v{U}, v{O[0]+i}, 0, v{U}")
    a(f"v_add_f32 v{U+1}, v{Lr[0]}, v{Lr[1]}")
    a(f"v_add_f32 v{U}, v{U}, v{U+1}")
    a(f"s_mov_b32 s{t0}, {f2u(2.0**40):#x}")
    a(f"v_cmp_ngt_f32 vcc, s{t0}, v{U}")
    a("s_nop 1")
    a("s_cbranch_vccnz L_at_slow")
    a("L_at_fin:")
    for x in range(2):
        a(f"v_rcp_f32 v{U}, v{Lr[x]}")
        a("s_nop 0")
        for i in range(16): a(f"v_mul_f32 v{O[x]+i}, v{O[x]+i}, v{U}")
        for u in range(2):
            for e in range(2):
                c = O[x] + 8 * e + 4 * u
                a(f"v_cvt_pk_bf16_f32 v{D[x]+4*u+2*e}, v{c}, v{c+1}")
                a(f"v_cvt_pk_bf16_f32 v{D[x]+4*u+2*e+1}, v{c+2}, v{c+3}")
            a(f"buffer_store_dwordx4 v[{D[x]+4*u}:{D[x]+4*u+3}], v{U+2}, {WSR}, s{sQO} offen offset:{x*2048+u*512} {SC}")
    stp(a, "ostored")

    X = 128
    def xloads():
        l = []
        for h in range(2):
            for ft in range(4):
                r = X + (h * 4 + ft) * 2
                l.append(f"buffer_load_dwordx2 v[{r}:{r+1}], v{vX}, s[{sX}:{sX+3}], {'0' if h == 0 else 's58'} offen offset:{ft*32}")
        return l
    def step2(v, loads, vm, reads=True, tail=None, extra=()):
        a(f"s_waitcnt vmcnt({vm}) lgkmcnt(0)")
        m = []
        for tt in range(8):
            for ft in (range(4) if tt % 2 == 0 else range(3, -1, -1)):
                m.append(gm(v, tt, ft))
        ex = list(extra)
        if loads:
            ex.append((0, f"s_add_u32 m0, s{sM0g}, {v*4096}"))
            for pc in range(4): ex.append((1 + pc, wdma(pc)))
            for tt in range(8):
                ex.append((max(4 * tt + 3, 6 + tt), aload(v, tt)))
            ex.append((31, kstep_adv()))
        if reads:
            rl = []
            for ft in range(4): rl += wread((v + 1) & 3, (v + 1) & 1, ft)
            for i, x in enumerate(rl): ex.append((8 + 2 * i, x))
        ex.sort(key=lambda t: t[0])
        a.extend(weave(m, ex))
        if tail: a.extend(tail)
    srd(a, sX, pX, 0, 4 * MB)
    srd(a, sOut, pOut, 0, 4 * MB)
    a("s_mov_b32 s58, 32768")
    NH = 6 - NC
    pollld = f"buffer_load_dword v{vFl}, v{vFa2}, {WSR}, 0 offen sc1"
    step2(0, True, 32)
    a("s_waitcnt vmcnt(12)")
    a("s_barrier")
    publish(sPub, U)
    a(f"s_mov_b32 s{sCnt}, {NH + 2}")
    a("s_branch L_g2_in")
    a(".p2align 6")
    a("L_g2_loop:")
    step2(0, True, 32)
    a("L_g2_in:")
    for v in range(1, 4):
        step2(v, True, 32, extra=[(-1, pollld)] if v == POLLSTEP else ())
    a(f"s_sub_u32 s{sCnt}, s{sCnt}, 1")
    a(f"s_cmp_lg_u32 s{sCnt}, 2")
    a("s_cbranch_scc1 L_g2_nosw")
    stp(a, "fopoll")
    a(f"s_waitcnt vmcnt({12*(4-POLLSTEP)})")
    poll(vFa2, True)
    stp(a, "fook")
    srd(a, sW, pWO, 0, 1024 * 2048)
    a(f"s_lshl_b32 s{sKW}, s{sWave}, 16")
    a(f"s_lshl_b32 s{sKA}, s{sWave}, 17")
    a(f"s_add_u32 s{sKA}, s{sKA}, {WS_A2}")
    a("L_g2_nosw:")
    a(f"s_cmp_lg_u32 s{sCnt}, 0")
    a("s_cbranch_scc1 L_g2_loop")
    step2(0, False, 32, tail=xloads())
    step2(1, False, 28)
    step2(2, False, 16)
    step2(3, False, 8, reads=False)
    stp(a, "g2end")
    if STAMP: a("s_waitcnt lgkmcnt(0)")
    vRw, vRr = U, U + 1
    a("s_nop 7")
    for d in range(4):
        a(f"s_cmp_eq_u32 s{sWave}, {d}")
        a(f"s_cbranch_scc1 L_g2_own{d}")
        a(f"s_sub_u32 s{t0}, s{sWave}, {d+1}")
        a(f"s_and_b32 s{t0}, s{t0}, 3")
        a(f"s_lshl_b32 s{t0}, s{t0}, 13")
        a(f"s_add_u32 s{t0}, s{t0}, {d*24576}")
        a(f"v_add_u32 v{vRw}, s{t0}, v{vL16}")
        for i in range(8):
            c = 128 + 32 * d + 4 * i
            a(f"ds_write_b128 v{vRw}, a[{c}:{c+3}] offset:{i*1024}")
        a(f"s_branch L_g2_nx{d}")
        a(f"L_g2_own{d}:")
        for i in range(32): a(f"v_accvgpr_read_b32 v{i}, a{128+32*d+i}")
        a(f"L_g2_nx{d}:")
    a(f"s_mul_i32 s{t0}, s{sWave}, 24576")
    a(f"v_add_u32 v{vRr}, s{t0}, v{vL16}")
    a(f"s_mov_b32 s{t0}, 0xffff0000")
    a("s_waitcnt vmcnt(0)")
    for i in range(8):
        r = X + 2 * i
        a(f"v_lshlrev_b32 v{U+4}, 16, v{r}")
        a(f"v_and_b32 v{U+5}, s{t0}, v{r}")
        a(f"v_lshlrev_b32 v{U+6}, 16, v{r+1}")
        a(f"v_and_b32 v{U+7}, s{t0}, v{r+1}")
        for j in range(4): a(f"v_add_f32 v{4*i+j}, v{4*i+j}, v{U+4+j}")
    a("s_waitcnt lgkmcnt(0)")
    a("s_barrier")
    for i in range(8):
        for sl in range(3):
            base = 32 + 32 * sl
            a(f"ds_read_b128 v[{base+4*i}:{base+4*i+3}], v{vRr} offset:{sl*8192 + i*1024}")
    for i in range(8):
        a(f"s_waitcnt lgkmcnt({min(15, 21 - 3*i)})")
        for j in range(4): a(f"v_add_f32 v{32+4*i+j}, v{32+4*i+j}, v{64+4*i+j}")
        for j in range(4): a(f"v_add_f32 v{4*i+j}, v{4*i+j}, v{96+4*i+j}")
        for j in range(4): a(f"v_add_f32 v{4*i+j}, v{4*i+j}, v{32+4*i+j}")
        a(f"v_cvt_pk_bf16_f32 v{X+2*i}, v{4*i}, v{4*i+1}")
        a(f"v_cvt_pk_bf16_f32 v{X+2*i+1}, v{4*i+2}, v{4*i+3}")
        a(f"buffer_store_dwordx2 v[{X+2*i}:{X+2*i+1}], v{vX}, s[{sOut}:{sOut+3}], {'0' if i < 4 else 's58'} offen offset:{(i&3)*32}")
    stp(a, "outst")
    stamp_flush(a, 1, len(STAMPS) + 1, 0)
    a("L_end:")
    a("s_endpgm")
    a("L_at_slow:")
    a(f"s_mov_b32 s{sKV+2}, {SZ_KV}")
    for x in range(2): a(f"v_mov_b32 v{NM[x]}, 0xff800000")
    for i in range(40): a(f"v_mov_b32 v{O[0]+i}, 0")
    a(f"s_lshl_b32 s{sSo}, s{sHead}, 18")
    a(f"s_mov_b32 s{sCntA}, 0")
    a("L_at_sloop:")
    k = Kf[0]; v = Vf[0]
    a(f"buffer_load_dwordx4 v[{k}:{k+3}], v{vL16}, s[{sKV}:{sKV+3}], s{sSo} offen {SC}")
    a(f"buffer_load_dwordx4 v[{k+4}:{k+7}], v{vL16}, s[{sKV}:{sKV+3}], s{sSo} offen offset:1024 {SC}")
    a(f"buffer_load_dwordx4 v[{v}:{v+3}], v{vL16}, s[{sKV}:{sKV+3}], s{sSo} offen offset:2048 {SC}")
    a(f"buffer_load_dwordx4 v[{v+4}:{v+7}], v{vL16}, s[{sKV}:{sKV+3}], s{sSo} offen offset:3072 {SC}")
    a("s_waitcnt vmcnt(0)")
    for x in range(2):
        M = NM[x]; AL = NM[x] + 1; MN = NM[x] + 2; s = S[x]
        a.extend(qk(x, 0, "0"))
        a("s_nop 15")
        a(f"v_max3_f32 v{U}, v{s}, v{s+1}, v{s+2}")
        for i in range(3, 15, 2):
            a(f"v_max3_f32 v{U}, v{U}, v{s+i}, v{s+i+1}")
        a(f"v_max_f32 v{U}, v{U}, v{s+15}")
        a(f"v_mov_b32 v{U+1}, v{U}")
        a("s_nop 1")
        a(f"v_permlane32_swap_b32 v{U}, v{U+1}")
        a(f"v_max3_f32 v{MN}, v{U}, v{U+1}, v{M}")
        a(f"v_sub_f32 v{AL}, v{M}, v{MN}")
        a(f"v_exp_f32 v{AL}, v{AL}")
        a(f"v_mov_b32 v{M}, v{MN}")
        for i in range(16): a(f"v_sub_f32 v{s+i}, v{s+i}, v{MN}")
        for i in range(16): a(f"v_exp_f32 v{D[x]+i}, v{s+i}")
        for i in range(16): a(f"v_mul_f32 v{O[x]+i}, v{O[x]+i}, v{AL}")
        a(f"v_mul_f32 v{Lr[x]}, v{Lr[x]}, v{AL}")
        a("s_nop 1")
        a(LS(x, 0)); a(LS(x, 1))
        a(PV(x, 0, 0)); a(PV(x, 0, 1))
        a("s_nop 15")
    a(f"s_add_u32 s{sSo}, s{sSo}, 4096")
    a(f"s_add_u32 s{sCntA}, s{sCntA}, 1")
    a(f"s_cmp_lt_u32 s{sCntA}, 64")
    a("s_cbranch_scc1 L_at_sloop")
    a("s_branch L_at_fin")
    return a, descriptor(name, 512, 256, 102), f"; @launch kernel={name} grid=(256,1,1) block=(256,1,1) lds=163840"

if __name__ == "__main__":
    ks = [gen_ln2(), gen_main()]
    path = sys.argv[1] if len(sys.argv) > 1 else "cdna_kernels/" + NAME + ".s"
    bad = build(ks, path)
    print("written", path, "hazards:", bad)
```

```python
import sys, os
sys.path.insert(0, os.path.dirname(os.path.abspath(__file__)))
from asmdsl import Asm, weave
import gen as G
from gen import *

WS_FL = 40 * MB
WS_END = 41 * MB
FQ, FH, FO, TX = 0, 2048, 4096, 5120
ND = int(os.environ.get("ND", "8"))
SPP = int(os.environ.get("SPP", "2"))
PUBAT = int(os.environ.get("PUBAT", "10"))
POLLAT = int(os.environ.get("POLLAT", "5"))
QPLAIN = int(os.environ.get("QPLAIN", "0"))
NC = int(os.environ.get("NC", "5"))
PF1 = int(os.environ.get("PF1", "32"))
SC = os.environ.get("SC", "sc1")
WNT = os.environ.get("WNT", "")
W2NT = os.environ.get("W2NT", "")
PFNT = os.environ.get("PFNT", "")
PFAT = int(os.environ.get("PFAT", "1"))
LNNT = os.environ.get("LNNT", "nt")
KSC = os.environ.get("KSC", "sc1")
PFG1 = int(os.environ.get("PFG1", "2"))
HSC = os.environ.get("HSC", "sc1")
QSC0 = os.environ.get("QSC0", "sc1")
ASC = os.environ.get("ASC", "sc1")
VMF = float(os.environ.get("VMF", "2"))
JROT = int(os.environ.get("JROT", "0"))
XROT = int(os.environ.get("XROT", "0"))
assert not (XROT and QPLAIN)
PFROW = int(os.environ.get("PFROW", "256"))
DBGST = int(os.environ.get("DBGST", "0"))
POLLSTEP = int(os.environ.get("POLLSTEP", "2"))

def gen_ln2():
    from asmdsl import Ins
    a, d, l = gen_ln()
    L = a.lines
    i = next(k for k, x in enumerate(L) if x.op == "s_load_dwordx2")
    L[i:i] = [Ins(f"s_load_dwordx2 s[20:21], s[0:1], {KA_WQKV}"), Ins(f"s_load_dwordx2 s[22:23], s[0:1], {KA_W1}")]
    idx = max(k for k, x in enumerate(L) if x.op == "buffer_load_dwordx4")
    b = Asm()
    b("v_readfirstlane_b32 s18, v2")
    srd(b, 24, 20, 0, 1024 * 6144)
    srd(b, 28, 22, 0, 1024 * 7168)
    b("s_lshr_b32 s19, s2, 3")
    if PF1 < 32:
        b(f"s_cmp_ge_u32 s19, {PF1}")
        b(f"s_cselect_b32 s26, 0, s26")
        b(f"s_cselect_b32 s30, 0, s30")
    b("s_lshl_b32 s19, s19, 2")
    b("s_add_u32 s19, s19, s18")
    b("s_lshl_b32 s19, s19, 3")
    b("s_and_b32 s32, s2, 7")
    b("s_mul_i32 s33, s19, 6144")
    b("s_lshl_b32 s34, s32, 8")
    b("s_add_u32 s33, s33, s34")
    b("s_mul_i32 s34, s19, 7168")
    b("s_mul_i32 s35, s32, 896")
    b("s_add_u32 s34, s34, s35")
    b("v_min_u32 v68, 47, v1")
    b("v_lshrrev_b32 v69, 4, v68")
    b("v_and_b32 v68, 15, v68")
    b("v_lshlrev_b32 v68, 4, v68")
    b("v_lshl_add_u32 v68, v69, 11, v68")
    b("v_min_u32 v69, 55, v1")
    b("v_lshlrev_b32 v69, 4, v69")
    for i in range(8):
        b("buffer_load_dwordx4 v[64:67], v69, s[28:31], s34 offen " + LNNT)
        b("buffer_load_dwordx4 v[64:67], v68, s[24:27], s33 offen " + LNNT)
        b("s_add_u32 s34, s34, 7168")
        b("s_add_u32 s33, s33, 6144")
    L[idx + 1:idx + 1] = b.lines
    n = 0
    for k in range(idx + 1, len(L)):
        if L[k].text.startswith("s_waitcnt vmcnt(") and n < 4:
            L[k] = Ins(f"s_waitcnt vmcnt({16 + 3 - n})"); n += 1
    idx = max(k for k, x in enumerate(L) if x.op == "buffer_store_dwordx4")
    b = Asm()
    b("s_cmp_ge_u32 s2, 6")
    b("s_cbranch_scc1 L_ln_nf")
    b("s_cmp_lg_u32 s18, 0")
    b("s_cbranch_scc1 L_ln_nf")
    srd(b, 36, 6, WS_FL, 6144)
    for i in range(4): b(f"v_mov_b32 v{72+i}, 0")
    b("v_lshlrev_b32 v70, 4, v1")
    b("s_lshl_b32 s19, s2, 10")
    b("buffer_store_dwordx4 v[72:75], v70, s[36:39], s19 offen")
    b("L_ln_nf:")
    L[idx + 1:idx + 1] = b.lines
    return a, descriptor("ln_kernel", 80, 80, 48), l

STAMPS = os.environ.get("STAMPS", "start,g1loop,g1end,atentry,atloop,pureend,fhok,atend,ostored,fopoll,fook,g2end,outst").split(",")
def stp(a, name):
    if name in STAMPS: stamp(a, STAMPS.index(name))

def gen_main():
    a = Asm()
    name = "main_kernel"
    header(a, name)
    sWS, sW, sKV, sX, sOut = 8, 12, 16, 20, 24
    pW1, pW2, pWO, pX, pOut = 28, 30, 32, 34, 36
    sWave, sXcd, sSlot = 38, 39, 40
    sKA, sKW, sM0A, sM0W, sCnt, sWr, sWc, sRb, sCt = 41, 42, 43, 44, 45, 46, 47, 48, 49
    t0, t1, t2, t3, t4, t5 = 50, 51, 52, 53, 54, 55
    sSo, sM0k, sCntA, sRing, sMb, sQO, sHead, sPub = 94, 95, 96, 97, 98, 99, 100, 101
    sM0g, sRb2, sCb = 43, 44, 46
    WSR = f"s[{sWS}:{sWS+3}]"
    vA_dma = 224; vW_dma = 225; vAr = 229; vWe1 = 231; vWo1 = 233; vWs1 = 235
    vFa = 239; vTa = 238
    sXcc = 3; sH1, sH2 = 47, 48; sPf = 49; sPf1 = 58; sPfA = 56; sPfB = 57
    T = 240; L = 241; vFl = 243; vL16 = 254; vDma = 255
    S = [0, 16]; NM = [32, 48]; O = [64, 80]; Lr = [96, 100]; D = [104, 120]
    Kf = [136, 144]; Vf = [152, 160]; ONE = 168; WF = [172, 188]
    vCur, IDX, vA, vW, vWe, vWo, vFa2, vX = 204, 205, 206, 208, 212, 213, 214, 215
    U = 216
    Q = [224, 232]
    npoll = [0]
    def poll(areg, first_done):
        n = npoll[0]; npoll[0] += 1
        a(f"s_mov_b32 s{t5}, 0")
        if first_done: a(f"s_branch L_pc{n}")
        a(f"L_pl{n}:")
        a(f"buffer_load_dword v{vFl}, v{areg}, {WSR}, 0 offen sc1")
        a("s_waitcnt vmcnt(0)")
        a(f"L_pc{n}:")
        a(f"v_cmp_ne_u32 vcc, 1, v{vFl}")
        a(f"s_add_u32 s{t5}, s{t5}, 1")
        a("s_nop 0")
        a(f"s_cbranch_vccz L_pd{n}")
        a("s_sleep 2")
        a(f"s_cmp_lt_u32 s{t5}, 0x40000")
        a(f"s_cbranch_scc1 L_pl{n}")
        a(f"L_pd{n}:")
    def publish(soff_reg, tmp, val="1"):
        n = npoll[0]; npoll[0] += 1
        a(f"s_cmp_lg_u32 s{sWave}, 0")
        a(f"s_cbranch_scc1 L_pb{n}")
        a(f"v_mov_b32 v{tmp}, {val}")
        a(f"buffer_store_dword v{tmp}, off, {WSR}, s{soff_reg} sc1")
        a(f"L_pb{n}:")

    a("s_cmp_ge_u32 s2, 256")
    a("s_cbranch_scc1 L_end")
    stp(a, "start")
    a(f"s_load_dwordx2 s[4:5], s[0:1], {KA_WS}")
    a(f"s_load_dwordx2 s[6:7], s[0:1], {KA_WQKV}")
    a(f"s_load_dwordx4 s[{pW1}:{pW1+3}], s[0:1], {KA_W1}")
    a(f"s_load_dwordx2 s[{pWO}:{pWO+1}], s[0:1], {KA_WO}")
    a(f"s_load_dwordx2 s[{pX}:{pX+1}], s[0:1], {KA_X}")
    a(f"s_load_dwordx2 s[{pOut}:{pOut+1}], s[0:1], {KA_OUT}")
    a(f"v_lshrrev_b32 v{T}, 6, v0")
    a(f"v_and_b32 v{L}, 63, v0")
    a(f"v_readfirstlane_b32 s{sWave}, v{T}")
    a(f"v_lshlrev_b32 v{vL16}, 4, v{L}")
    a(f"s_and_b32 s{sXcd}, s2, 7")
    if STAMP: a(f"s_mov_b32 s59, s{sWave}")
    a(f"s_lshr_b32 s{sSlot}, s2, 3")
    a(f"s_and_b32 s{sRb}, s{sSlot}, 7")
    a(f"s_lshr_b32 s{sCt}, s{sSlot}, 3")
    a(f"s_lshr_b32 s{sWr}, s{sWave}, 1")
    a(f"s_and_b32 s{sWc}, s{sWave}, 1")
    a(f"s_lshl_b32 s{t0}, s{sRb}, 14")
    a(f"s_lshl_b32 s{sM0A}, s{sWave}, 12")
    a(f"s_add_u32 s{t0}, s{t0}, s{sM0A}")
    a(f"v_add_u32 v{vA_dma}, s{t0}, v{vL16}")
    a(f"s_add_u32 s{sM0W}, s{sM0A}, 16384")
    a(f"v_lshrrev_b32 v{T+2}, 5, v{L}")
    a(f"v_bfe_u32 v{T+4}, v{L}, 4, 1")
    a(f"v_bfe_u32 v{T+5}, v{L}, 2, 2")
    a(f"v_and_b32 v{T+6}, 3, v{L}")
    ftp, gb, jj, qc = T + 2, T + 4, T + 5, T + 6
    a(f"s_lshl_b32 s{t0}, s{sWr}, 4")
    a(f"s_lshl_b32 s{t1}, s{sWc}, 2")
    a(f"s_add_u32 s{t0}, s{t0}, s{t1}")
    a(f"v_lshl_add_u32 v{T+7}, v{gb}, 3, v{jj}")
    a(f"v_add_u32 v{T+7}, s{t0}, v{T+7}")
    a(f"v_lshlrev_b32 v{T+8}, 1, v{gb}")
    a(f"v_xor_b32 v{T+8}, v{T+8}, v{qc}")
    a(f"v_lshlrev_b32 v{T+8}, 4, v{T+8}")
    a(f"v_lshl_add_u32 v{T+8}, v{ftp}, 6, v{T+8}")
    a(f"v_xor_b32 v{T+9}, v{gb}, v{qc}")
    a(f"v_lshlrev_b32 v{T+9}, 4, v{T+9}")
    a("s_waitcnt lgkmcnt(0)")
    srd(a, sWS, 4, 0, WS_END)
    a(f"s_mov_b32 s{sKA}, {WS_XN}")
    a(f"s_mov_b32 s{sKW}, 0")
    a(f"s_cmp_lt_u32 s{sCt}, 2")
    a("s_cbranch_scc0 L_g1_qkv")

    def at_scalars():
        a(f"s_and_b32 s{t0}, s{sSlot}, 3")
        a(f"s_lshl_b32 s{sHead}, s{sXcd}, 2")
        a(f"s_add_u32 s{sHead}, s{sHead}, s{t0}")
        a(f"s_and_b32 s{t0}, s{sSlot}, 28")
        a(f"s_add_u32 s{t0}, s{t0}, s{sWave}")
        a(f"s_lshl_b32 s{t0}, s{t0}, 12")
        a(f"s_lshl_b32 s{t1}, s{sHead}, 17")
        a(f"s_add_u32 s{sQO}, s{t0}, s{t1}")
        a(f"s_lshl_b32 s{sSo}, s{sHead}, 18")
        a(f"s_lshl_b32 s{sM0k}, s{sWave}, 12")
        a(f"v_add_u32 v{vDma}, s{sM0k}, v{vL16}")
        srd(a, sKV, 4, WS_KV, SZ_KV)
        a(f"s_lshr_b32 s{t0}, s{sHead}, 1")
        a(f"v_lshrrev_b32 v{vFa}, 3, v{L}")
        a(f"v_min_u32 v{vFa}, 2, v{vFa}")
        a(f"v_mul_u32_u24 v{vFa}, {XROT}, v{vFa}")
        a(f"v_sub_u32 v{vFa}, s{t0}, v{vFa}")
        a(f"v_and_b32 v{vFa}, 15, v{vFa}")
        a(f"v_lshlrev_b32 v{vFa}, 7, v{vFa}")
        a(f"v_and_b32 v{vTa}, 7, v{L}")
        a(f"v_lshl_add_u32 v{vFa}, v{vTa}, 2, v{vFa}")
        a(f"v_add_u32 v{vFa}, {WS_FL + FQ}, v{vFa}")
        a(f"s_getreg_b32 s{sXcc}, hwreg(HW_REG_XCC_ID)")
        a(f"s_and_b32 s{sXcc}, s{sXcc}, 0xff")
        a(f"s_add_u32 s{sXcc}, s{sXcc}, 1")
        a(f"s_lshl_b32 s{t0}, s{sXcd}, 7")
        a(f"s_add_u32 s{t0}, s{t0}, {WS_FL + TX}")
        a(f"v_and_b32 v{vTa}, 31, v{L}")
        a(f"v_lshl_add_u32 v{vTa}, v{vTa}, 2, s{t0}")
        a(f"s_lshl_b32 s{t1}, s{sSlot}, 2")
        a(f"s_add_u32 s{t0}, s{t0}, s{t1}")
        publish(t0, vFl, f"s{sXcc}")
    def kvdma(q):
        return f"buffer_load_dwordx4 v{vDma}, s[{sKV}:{sKV+3}], s{sSo} offen offset:{(q&3)*1024} {KSC} lds"
    def at_loads():
        a(f"s_add_u32 s{t0}, s{sQO}, {WS_Q}")
        for c in range(5):
            a(f"s_add_u32 m0, s{sM0k}, {c*16384}")
            a("s_nop 0")
            for q in range(4 if c < 4 else 1): a(kvdma(q))
            if c < 4: a(f"s_add_u32 s{sSo}, s{sSo}, 16384")
            if c == 0:
                for x in range(2):
                    for h in range(2):
                        a(f"buffer_load_dwordx4 v[{Q[x]+4*h}:{Q[x]+4*h+3}], v{vL16}, {WSR}, s{t0} offen offset:{x*2048+h*1024} {KSC}")

    def hstore(u, data):
        OR = f"s[{sOut}:{sOut+3}]"
        if u < 8:
            return [f"buffer_store_dwordx2 {data}, v{T+12 + (u>>2)}, {OR}, s{sH2} offen offset:{(u&3)*1024} {HSC}"]
        p, tt = divmod(u - 8, 8)
        l = [f"buffer_store_dwordx4 {data}, v{T + 2*(tt>>2)}, {OR}, s{sH1} offen offset:{(tt&3)*1024} {HSC}"]
        if tt == 7: l.append(f"s_add_u32 s{sH1}, s{sH1}, 131072")
        return l
    def g1(kind):
        ffn = kind == "ffn"
        NB = 7 if ffn else 6
        RS = 7168 if ffn else 6144
        nW = 4 if ffn else 3
        nd = 4 + nW
        NF = 8 + NB
        def fr(buf, i): return buf * NF * 4 + i * 4
        def acc(tt, ft): return (ft * 8 + tt) * 4
        if ffn:
            srd(a, sW, pW1, -4096, 1024 * 7168 + 4096)
            a(f"s_mul_i32 s{t0}, s{sXcd}, 896")
            a(f"s_mul_i32 s{t1}, s{sCt}, 384")
            a(f"s_add_u32 s{t1}, s{t1}, s{t0}")
            a(f"s_lshl_b32 s{t2}, s{sCt}, 6")
            a(f"s_add_u32 s{t2}, s{t2}, s{t0}")
            a(f"s_add_u32 s{t2}, s{t2}, {768 + 4096 - 3072}")
            qstep = 128
        else:
            srd(a, sW, 6, -4096, 1024 * 6144 + 4096)
            a(f"s_lshl_b32 s{t1}, s{sXcd}, 1")
            a(f"s_add_u32 s{t1}, s{t1}, s{sCt}")
            a(f"s_sub_u32 s{sCt}, s{t1}, 2")
            if JROT:
                a(f"s_add_u32 s{sCt}, s{sCt}, {JROT}")
                a(f"s_and_b32 s{sCt}, s{sCt}, 15")
            a(f"s_lshl_b32 s{t1}, s{sCt}, 7")
            qstep = 2048
        a(f"s_mov_b32 s{t3}, {RS}")
        a(f"v_mul_lo_u32 v{T+7}, v{T+7}, s{t3}")
        a(f"v_add_u32 v{T+8}, v{T+8}, v{T+7}")
        if ffn or not XROT:
            a(f"v_add_u32 v{T+8}, s{t1}, v{T+8}")
            for q in range(3):
                a(f"v_add_u32 v{vW_dma+q}, {4096 + q*qstep - q*1024}, v{T+8}")
        else:
            for q in range(3):
                a(f"s_add_u32 s{t1}, s{sCt}, {q*XROT}")
                a(f"s_and_b32 s{t1}, s{t1}, 15")
                a(f"s_lshl_b32 s{t1}, s{t1}, 7")
                a(f"s_add_u32 s{t1}, s{t1}, {4096 + q*qstep - q*1024}")
                a(f"v_add_u32 v{vW_dma+q}, s{t1}, v{T+8}")
        if ffn:
            a(f"v_add_u32 v{T+9}, v{T+9}, v{T+7}")
            a(f"v_add_u32 v{T+9}, s{t2}, v{T+9}")
            a(f"v_lshlrev_b32 v{T+10}, 30, v{ftp}")
            a(f"v_or_b32 v{vW_dma+3}, v{T+9}, v{T+10}")
        def dma_list(stage):
            l = []
            l.append([f"s_add_u32 m0, s{sM0W}, {stage*32768}"])
            for q in range(nW):
                l.append([f"buffer_load_dwordx4 v{vW_dma+q}, s[{sW}:{sW+3}], s{sKW} offen offset:{q*1024} {WNT} lds"])
            l.append([f"s_add_u32 m0, s{sM0A}, {stage*32768}", f"s_add_u32 s{sKW}, s{sKW}, {32*RS}"])
            for q in range(4):
                l.append([f"buffer_load_dwordx4 v{vA_dma}, {WSR}, s{sKA} offen offset:{q*1024} lds"])
            l.append([f"s_add_u32 s{sKA}, s{sKA}, 131072"])
            return l
        for st in range(4):
            for k, x in enumerate(dma_list(st)):
                a.extend(x)
                if k == 0: a("s_nop 0")
        if ffn: srd(a, sOut, 6, 0, 1024 * 6144)
        else: srd(a, sOut, pW1, 0, 1024 * 7168)
        srd(a, sX, pW2, 0, 3584 * 2048)
        a(f"s_lshl_b32 s{sPf1}, s2, 2")
        a(f"s_add_u32 s{sPf1}, s{sPf1}, s{sWave}")
        a(f"s_lshl_b32 s{sPf1}, s{sPf1}, 10")
        a(f"s_add_u32 s{sPfA}, s{sPf1}, {PFROW * RS + 4096}")
        a(f"s_add_u32 s{sPfB}, s{sPf1}, {PFROW * (13312 - RS)}")
        pf = [[f"buffer_load_dwordx4 a[120:123], v{vL16}, s[{r}:{r+3}], s{o} offen", f"s_add_u32 s{o}, s{o}, {MB}"]
              for r, o in ((sW, sPfA), (sOut, sPfB), (sX, sPf1))]
        if PFG1 == 2:
            a.extend(pf[0]); a.extend(pf[1])
        a(f"v_lshrrev_b32 v{T+9}, 4, v{L}")
        a(f"v_and_b32 v{T+10}, 15, v{L}")
        a(f"v_lshrrev_b32 v{T+11}, 3, v{T+10}")
        a(f"v_lshlrev_b32 v{T+11}, 1, v{T+11}")
        a(f"v_xor_b32 v{T+11}, v{T+11}, v{T+9}")
        a(f"v_lshlrev_b32 v{T+11}, 4, v{T+11}")
        a(f"v_lshl_add_u32 v{T+11}, v{T+10}, 6, v{T+11}")
        a(f"s_lshl_b32 s{t0}, s{sWr}, 13")
        a(f"v_add_u32 v{vAr}, s{t0}, v{T+11}")
        a(f"v_add_u32 v{vAr+1}, 0x10000, v{vAr}")
        a(f"v_lshlrev_b32 v{T+12}, 13, v{ftp}")
        a(f"v_lshl_add_u32 v{T+12}, v{gb}, 8, v{T+12}")
        a(f"v_lshl_add_u32 v{T+12}, v{jj}, 6, v{T+12}")
        a(f"v_lshl_add_u32 v{T+13}, v{gb}, 5, v{T+12}")
        a(f"v_lshl_add_u32 v{T+13}, v{qc}, 3, v{T+13}")
        a(f"s_mul_i32 s{t0}, s{sWc}, {1536 if ffn else 512}")
        a(f"v_add_u32 v{vWe1}, s{t0}, v{T+13}")
        a(f"v_add_u32 v{vWe1+1}, 0x10000, v{vWe1}")
        a(f"v_xor_b32 v{vWo1}, 32, v{vWe1}")
        a(f"v_xor_b32 v{vWo1+1}, 32, v{vWe1+1}")
        if ffn:
            a(f"v_and_b32 v{T+10}, 1, v{qc}")
            a(f"v_lshlrev_b32 v{T+10}, 1, v{T+10}")
            a(f"v_add_u32 v{T+10}, s{sWc}, v{T+10}")
            a(f"v_xor_b32 v{T+10}, v{T+10}, v{gb}")
            a(f"v_lshl_add_u32 v{T+10}, v{T+10}, 4, v{T+12}")
            a(f"v_lshrrev_b32 v{T+11}, 1, v{qc}")
            a(f"v_lshl_add_u32 v{vWs1}, v{T+11}, 3, v{T+10}")
            a(f"v_add_u32 v{vWs1+1}, 0x10000, v{vWs1}")
        at_scalars()
        for i in range(8 * NB * 4): a(f"v_mov_b32 v{i}, 0")
        for i in range(128): a(f"v_accvgpr_write_b32 a{128+i}, 0")
        def read_list(stage, buf):
            hi = stage >> 1; so = (stage & 1) * 32768
            rb = []
            for ft in range(NB):
                r = fr(buf, 8 + ft)
                if ffn and ft == 6:
                    v = vWs1 + hi; off = 3072
                else:
                    v = (vWo1 if ft & 1 else vWe1) + hi
                    off = (ft >> 1) * (512 if ffn else 1024)
                rb.append([f"ds_read_b64_tr_b16 a[{r+2*rd}:{r+2*rd+1}], v{v} offset:{so + 16384 + rd*4096 + off}" for rd in range(2)])
            ra = []
            for tt in range(8):
                r = fr(buf, tt)
                ra.append(f"ds_read_b128 a[{r}:{r+3}], v{vAr+hi} offset:{so + tt*1024}")
            l = rb[0] + ra
            for x in rb[1:]: l += x
            return l
        def mfmas(buf):
            l = []
            for ft in range(NB):
                tts = range(8) if ft % 2 == 0 else range(7, -1, -1)
                for tt in tts:
                    c = acc(tt, ft); w = fr(buf, 8 + ft); x = fr(buf, tt)
                    if (not ffn) and ft >= 4: w, x = x, w
                    l.append(f"v_mfma_f32_16x16x32_bf16 v[{c}:{c+3}], a[{w}:{w+3}], a[{x}:{x+3}], v[{c}:{c+3}]")
            return l
        e0 = 2 if PFG1 == 2 else 0
        a(f"s_waitcnt vmcnt({3*nd + e0})")
        a("s_barrier")
        a.extend(read_list(0, 0))
        a(f"s_waitcnt vmcnt({2*nd + e0}) lgkmcnt(0)")
        a("s_barrier")
        def step(k4, dma, vm, reads=True, tail=None, extra=()):
            m = mfmas(k4 & 1)
            n = len(m)
            ex = list(extra)
            if reads:
                rl = read_list((k4 + 1) & 3, (k4 + 1) & 1)
                for i, x in enumerate(rl):
                    ex.append(((i * int(n * 0.72)) // len(rl), x))
            if dma:
                dl = dma_list(k4)
                for i, x in enumerate(dl):
                    ex.append(((i * int(n * DMAF)) // len(dl), x))
            ex.sort(key=lambda t: t[0])
            a.extend(weave(m, ex))
            if tail: a.extend(tail)
            if vm is not None:
                a(f"s_waitcnt vmcnt({vm}) lgkmcnt(0)")
                a("s_barrier")
        stp(a, "g1loop")
        a(f"s_mov_b32 s{sCnt}, 7")
        a(".p2align 6")
        a(f"L_g1_{kind}_loop:")
        for k4 in range(4):
            has = {0: [], 1: [2], 2: [0, 1, 2]}[PFG1]
            npf = sum(1 for d in range(3) if ((k4 - d) & 3) in has)
            step(k4, True, int(VMF * nd) + npf, tail=[f"s_sub_u32 s{sCnt}, s{sCnt}, 1", f"s_cmp_lg_u32 s{sCnt}, 0"] if k4 == 3 else None,
                 extra=[(40, pf[k4])] if k4 in has else ())
        a(f"s_cbranch_scc1 L_g1_{kind}_loop")
        step(0, False, nd)
        step(1, False, 0)
        step(2, False, 63, extra=[(28, f"buffer_load_dword v{vFl}, v{vFa if ffn else vTa}, {WSR}, 0 offen sc1")])
        step(3, False, None, reads=False)
        stp(a, "g1end")
        vO = T; P = T + 4
        if ffn:
            a("s_waitcnt vmcnt(0)")
            stp(a, "e1"); stp(a, "e2"); stp(a, "e3")
            poll(vFa, True)
            stp(a, "e4")
            at_loads()
            stp(a, "e5")
            a(f"s_lshl_b32 s{t0}, s{sRb}, 14")
            a(f"s_lshl_b32 s{t1}, s{sWr}, 13")
            a(f"s_add_u32 s{t0}, s{t0}, s{t1}")
            a(f"v_add_u32 v{vO}, s{t0}, v{vL16}")
            a(f"v_add_u32 v{vO+2}, 4096, v{vO}")
            a(f"s_lshl_b32 s{t1}, s{sWc}, 9")
            a(f"s_add_u32 s{t0}, s{t0}, s{t1}")
            a(f"v_lshrrev_b32 v{T+12}, 5, v{L}")
            a(f"v_lshl_add_u32 v{T+12}, v{T+12}, 8, s{t0}")
            a(f"v_and_b32 v{T+13}, 15, v{L}")
            a(f"v_lshl_add_u32 v{T+12}, v{T+13}, 4, v{T+12}")
            a(f"v_bfe_u32 v{T+13}, v{L}, 4, 1")
            a(f"v_lshl_add_u32 v{T+12}, v{T+13}, 3, v{T+12}")
            a(f"v_add_u32 v{T+13}, 4096, v{T+12}")
            a(f"s_mul_i32 s{t0}, s{sXcd}, 14")
            a(f"s_mul_i32 s{t1}, s{sCt}, 6")
            a(f"s_mul_i32 s{t2}, s{sWc}, 3")
            a(f"s_add_u32 s{t1}, s{t1}, s{t2}")
            a(f"s_add_u32 s{t1}, s{t1}, s{t0}")
            a(f"s_add_u32 s{t1}, s{t1}, {32 + WS_A2 // 131072}")
            a(f"s_lshl_b32 s{t1}, s{t1}, 17")
            a(f"s_add_u32 s{t2}, s{t0}, s{sCt}")
            a(f"s_add_u32 s{t2}, s{t2}, {44 + WS_A2 // 131072}")
            a(f"s_lshl_b32 s{t2}, s{t2}, 17")
            a(f"s_lshl_b32 s{sPub}, s{sXcd}, 1")
            a(f"s_add_u32 s{sPub}, s{sPub}, s{sCt}")
            a(f"s_lshl_b32 s{sPub}, s{sPub}, 2")
            a(f"s_lshl_b32 s{t0}, s{sRb}, 7")
            a(f"s_add_u32 s{sPub}, s{sPub}, s{t0}")
            a(f"s_add_u32 s{sPub}, s{sPub}, {WS_FL + FH}")
            a(f"s_mov_b32 s{sH1}, s{t1}")
            a(f"s_mov_b32 s{sH2}, s{t2}")
            srd(a, sOut, 4, 0, WS_END)
            n = 0
            order = []
            dl_, pl_ = list(range(ND)), list(range(ND, 32))
            while dl_ or pl_:
                if dl_ and (not pl_ or len(dl_) * (32 - ND) >= len(pl_) * ND): order.append(dl_.pop(0))
                else: order.append(pl_.pop(0))
            for u in order:
                pk = P + 4 * (n & 1); n += 1
                if u < 8:
                    c = acc(u, 6); w = 2
                    a(f"v_cvt_pk_bf16_f32 v{pk}, v{c}, v{c+1}")
                    a(f"v_cvt_pk_bf16_f32 v{pk+1}, v{c+2}, v{c+3}")
                else:
                    p, tt = divmod(u - 8, 8); w = 4
                    for e in range(2):
                        c = acc(tt, 2 * p + e)
                        a(f"v_cvt_pk_bf16_f32 v{pk+2*e}, v{c}, v{c+1}")
                        a(f"v_cvt_pk_bf16_f32 v{pk+2*e+1}, v{c+2}, v{c+3}")
                for e in range(w):
                    a(f"v_pk_max_i16 v{pk+e}, v{pk+e}, 0")
                if u < ND:
                    a.extend(hstore(u, f"v[{pk}:{pk+w-1}]"))
                else:
                    for e in range(w):
                        a(f"v_accvgpr_write_b32 a{4*(u-ND)+e}, v{pk+e}")
            stp(a, "e6")
            a(f"s_waitcnt vmcnt({9 + ND})")
            a("s_branch L_at_entry")
        else:
            QSC = "" if QPLAIN else QSC0
            a("s_nop 3")
            a(f"s_lshl_b32 s{t0}, s{sRb}, 3")
            a(f"s_lshl_b32 s{t1}, s{sWr}, 2")
            a(f"s_add_u32 s{t0}, s{t0}, s{t1}")
            a(f"s_lshl_b32 s{t0}, s{t0}, 11")
            for X, dst in enumerate((t1, t2, t5)):
                a(f"s_add_u32 s{t3}, s{sCt}, {X*XROT}")
                a(f"s_and_b32 s{t3}, s{t3}, 15")
                a(f"s_lshl_b32 s{t3}, s{t3}, 1")
                a(f"s_add_u32 s{t3}, s{t3}, s{sWc}")
                a(f"s_lshl_b32 s{t3}, s{t3}, 17")
                a(f"s_add_u32 s{dst}, s{t3}, s{t0}")
                if X: a(f"s_lshl_b32 s{dst}, s{dst}, 1")
                a(f"s_add_u32 s{dst}, s{dst}, {WS_KV if X else WS_Q}")
            a(f"v_lshrrev_b32 v{T+12}, 4, v{L}")
            a(f"v_lshlrev_b32 v{T+12}, 9, v{T+12}")
            a(f"v_and_b32 v{T+13}, 15, v{L}")
            a(f"v_lshl_add_u32 v{vO}, v{T+13}, 4, v{T+12}")
            a(f"v_bfe_u32 v{T+13}, v{L}, 2, 2")
            a(f"v_lshl_add_u32 v{T+12}, v{T+13}, 7, v{T+12}")
            a(f"v_and_b32 v{T+13}, 3, v{L}")
            a(f"v_lshl_add_u32 v{vO+2}, v{T+13}, 4, v{T+12}")
            a(f"s_mov_b32 s{t4}, {f2u(QSCALE):#x}")
            n = 0
            for b in range(4):
                for h in range(2):
                    tt = 2 * b + h
                    pk = P + 4 * (n & 1); n += 1
                    for e in range(2):
                        c = acc(tt, 2 + e)
                        a(f"v_cvt_pk_bf16_f32 v{pk+2*e}, v{c}, v{c+1}")
                        a(f"v_cvt_pk_bf16_f32 v{pk+2*e+1}, v{c+2}, v{c+3}")
                    a(f"buffer_store_dwordx4 v[{pk}:{pk+3}], v{vO+2}, {WSR}, s{t2} offen offset:{h*64} {QSC}")
                for vt in range(2):
                    pk = P + 4 * (n & 1); n += 1
                    for e in range(2):
                        c = acc(2 * b + e, 4 + vt)
                        a(f"v_cvt_pk_bf16_f32 v{pk+2*e}, v{c}, v{c+1}")
                        a(f"v_cvt_pk_bf16_f32 v{pk+2*e+1}, v{c+2}, v{c+3}")
                    a(f"buffer_store_dwordx4 v[{pk}:{pk+3}], v{vO}, {WSR}, s{t5} offen offset:{2048 + vt*256} {QSC}")
                for h in range(2):
                    tt = 2 * b + h
                    pk = P + 4 * (n & 1); n += 1
                    for e in range(2):
                        c = acc(tt, e)
                        for r in range(4):
                            a(f"v_mul_f32 v{c+r}, s{t4}, v{c+r}")
                        a(f"v_cvt_pk_bf16_f32 v{pk+2*e}, v{c}, v{c+1}")
                        a(f"v_cvt_pk_bf16_f32 v{pk+2*e+1}, v{c+2}, v{c+3}")
                    a(f"buffer_store_dwordx4 v[{pk}:{pk+3}], v{vO}, {WSR}, s{t1} offen offset:{h*256} {QSC}")
                a(f"s_add_u32 s{t1}, s{t1}, 2048")
                a(f"s_add_u32 s{t2}, s{t2}, 4096")
                a(f"s_add_u32 s{t5}, s{t5}, 4096")
            stp(a, "e1")
            a(f"s_lshl_b32 s{t0}, s{sCt}, 7")
            a(f"s_lshl_b32 s{t1}, s{sRb}, 2")
            a(f"s_add_u32 s{t0}, s{t0}, s{t1}")
            a(f"s_add_u32 s{t0}, s{t0}, {WS_FL + FQ}")
            a(f"s_mov_b32 s{sPub}, 0")
            a("s_waitcnt vmcnt(0)")
            a("s_barrier")
            stp(a, "e2")
            if QPLAIN:
                a(f"v_cmp_ne_u32 vcc, s{sXcc}, v{vFl}")
                a(f"s_cmp_lg_u32 s{sWave}, 0")
                a("s_cbranch_scc1 L_q_local")
                a("s_cbranch_vccz L_q_local")
                a("buffer_wbl2 sc1")
                a("s_waitcnt vmcnt(0)")
                a("L_q_local:")
            publish(t0, T)
            stp(a, "e3")
            poll(vFa, False)
            stp(a, "e4")
            at_loads()
            stp(a, "e5")
            srd(a, sOut, 4, 0, 0)
            a(f"s_mov_b32 s{sH1}, 0")
            a(f"s_mov_b32 s{sH2}, 0")
            stp(a, "e6")
            a("s_waitcnt vmcnt(9)")
    g1("ffn")
    a("L_g1_qkv:")
    g1("qkv")

    a("L_at_entry:")
    stp(a, "atentry")
    a("s_barrier")
    a(f"v_mov_b32 v{vCur}, v{vL16}")
    def rdK(t, tl):
        b = Kf[t & 1]
        return [f"ds_read_b128 v[{b}:{b+3}], v{vCur} offset:{tl*4096}",
                f"ds_read_b128 v[{b+4}:{b+7}], v{vCur} offset:{tl*4096+1024}"]
    def rdV(t, tl):
        b = Vf[t & 1]
        return [f"ds_read_b128 v[{b}:{b+3}], v{vCur} offset:{tl*4096+2048}",
                f"ds_read_b128 v[{b+4}:{b+7}], v{vCur} offset:{tl*4096+3072}"]
    def qk(x, t, c0=None):
        s = S[x]; k = Kf[t & 1]; q = Q[x]
        c = f"v[{NM[x]}:{NM[x]+15}]" if c0 is None else c0
        return [f"v_mfma_f32_32x32x16_bf16 v[{s}:{s+15}], v[{k}:{k+3}], v[{q}:{q+3}], {c}",
                f"v_mfma_f32_32x32x16_bf16 v[{s}:{s+15}], v[{k+4}:{k+7}], v[{q+4}:{q+7}], v[{s}:{s+15}]"]
    def PV(x, t, h):
        v = Vf[t & 1]
        return f"v_smfmac_f32_32x32x32_bf16 v[{O[x]}:{O[x]+15}], v[{v+4*h}:{v+4*h+3}], v[{D[x]+8*h}:{D[x]+8*h+7}], v{IDX}"
    def LS(x, h):
        return f"v_smfmac_f32_16x16x64_bf16 v[{Lr[x]}:{Lr[x]+3}], v[{ONE}:{ONE+3}], v[{D[x]+8*h}:{D[x]+8*h+7}], v{IDX}"
    a.extend(rdK(0, 0))
    a.extend(rdV(0, 0))
    a(f"v_and_b32 v{U}, 7, v{L}")
    a(f"v_cmp_eq_u32 vcc, 0, v{U}")
    a(f"v_cmp_eq_u32 s[56:57], 4, v{U}")
    a(f"v_mov_b32 v{U+2}, 0x3f803f80")
    a(f"v_mov_b32 v{IDX}, 0xdddddddd")
    a(f"v_cndmask_b32 v{ONE}, 0, v{U+2}, vcc")
    a(f"v_cndmask_b32 v{ONE+2}, 0, v{U+2}, s[56:57]")
    a(f"v_mov_b32 v{ONE+1}, v{ONE}")
    a(f"v_mov_b32 v{ONE+3}, v{ONE+2}")
    a(f"s_add_u32 s{sMb}, s{sM0k}, 65536")
    a(f"s_mov_b32 s{sRing}, 0")
    a(f"s_mov_b32 s{sCntA}, 0")
    a("s_waitcnt lgkmcnt(0)")
    a.extend(qk(0, 0, "0"))
    a.extend(qk(1, 0, "0"))
    for i in range(40): a(f"v_mov_b32 v{O[0]+i}, 0")
    for i in range(8): a(f"v_mov_b32 v{D[1]+8+i}, 0")
    for i in range(4): a(f"v_mov_b32 v{Vf[1]+4+i}, 0")
    a(f"s_lshr_b32 s{t0}, s{sXcd}, 1")
    a(f"s_lshl_b32 s{t0}, s{t0}, 2")
    a(f"s_and_b32 s{t1}, s{sSlot}, 3")
    a(f"s_add_u32 s{sRb2}, s{t0}, s{t1}")
    a(f"s_lshr_b32 s{t0}, s{sRb2}, 1")
    a(f"s_lshl_b32 s{t0}, s{t0}, 7")
    a(f"s_add_u32 s{t0}, s{t0}, {WS_FL + FH}")
    a(f"v_and_b32 v{U}, 15, v{L}")
    a(f"v_lshl_add_u32 v{vFa2}, v{U}, 2, s{t0}")
    srd(a, sW, pW2, 0, 3584 * 2048)
    srd(a, sX, pWO, 0, 1024 * 2048)
    a(f"s_lshl_b32 s{sPf}, s2, 2")
    a(f"s_add_u32 s{sPf}, s{sPf}, s{sWave}")
    a(f"s_lshl_b32 s{sPf}, s{sPf}, 10")
    pfl = []
    for q in range(0 if PFG1 else 7):
        pfl.append([f"buffer_load_dwordx4 v[{U+4}:{U+7}], v{vL16}, s[{sW}:{sW+3}], s{sPf} offen {PFNT}",
                    f"s_add_u32 s{sPf}, s{sPf}, {MB}" if q < 6 else f"s_sub_u32 s{sPf}, s{sPf}, {6*MB}"])
    for q in range(2):
        pfl.append([f"buffer_load_dwordx4 v[{U+4}:{U+7}], v{vL16}, s[{sX}:{sX+3}], s{sPf} offen {PFNT}", f"s_add_u32 s{sPf}, s{sPf}, {MB}"])
    def g2_setup():
        a(f"s_lshr_b32 s{t0}, s{sXcd}, 1")
        a(f"s_lshl_b32 s{t0}, s{t0}, 2")
        a(f"s_and_b32 s{t1}, s{sSlot}, 3")
        a(f"s_add_u32 s{sRb2}, s{t0}, s{t1}")
        a(f"s_and_b32 s{t0}, s{sXcd}, 1")
        a(f"s_lshl_b32 s{t0}, s{t0}, 3")
        a(f"s_lshr_b32 s{t1}, s{sSlot}, 2")
        a(f"s_add_u32 s{sCb}, s{t0}, s{t1}")
        a(f"s_lshl_b32 s{t0}, s{sRb2}, 13")
        a(f"v_add_u32 v{vA}, s{t0}, v{vL16}")
        a(f"v_add_u32 v{vA+1}, 4096, v{vA}")
        a(f"v_lshrrev_b32 v{U}, 5, v{L}")
        a(f"v_bfe_u32 v{U+1}, v{L}, 4, 1")
        a(f"v_bfe_u32 v{U+2}, v{L}, 2, 2")
        a(f"v_and_b32 v{U+3}, 3, v{L}")
        a(f"v_lshl_add_u32 v{vW}, v{U+1}, 2, v{U+2}")
        a(f"v_lshlrev_b32 v{vW}, 11, v{vW}")
        a(f"v_lshlrev_b32 v{vW+1}, 1, v{U+1}")
        a(f"v_xor_b32 v{vW+1}, v{vW+1}, v{U+3}")
        a(f"v_lshl_add_u32 v{vW}, v{vW+1}, 4, v{vW}")
        a(f"v_lshl_add_u32 v{vW}, v{U}, 6, v{vW}")
        a(f"s_lshl_b32 s{t0}, s{sCb}, 7")
        a(f"v_add_u32 v{vW}, s{t0}, v{vW}")
        for pc in range(1, 4):
            a(f"v_add_u32 v{vW+pc}, {pc*(16384-1024)}, v{vW}")
        a(f"s_lshl_b32 s{sM0g}, s{sWave}, 14")
        a(f"s_add_u32 s{sM0g}, s{sM0g}, 98304")
        a(f"v_lshl_add_u32 v{vWe}, v{U}, 10, s{sM0g}")
        a(f"v_lshl_add_u32 v{vWe}, v{U+1}, 8, v{vWe}")
        a(f"v_lshl_add_u32 v{vWe}, v{U+2}, 6, v{vWe}")
        a(f"v_lshl_add_u32 v{vWe}, v{U+1}, 5, v{vWe}")
        a(f"v_lshl_add_u32 v{vWe}, v{U+3}, 3, v{vWe}")
        a(f"v_xor_b32 v{vWo}, 32, v{vWe}")
        a(f"s_lshl_b32 s{t1}, s{sRb2}, 7")
        a(f"s_lshl_b32 s{t2}, s{sWave}, 5")
        a(f"s_add_u32 s{t1}, s{t1}, s{t2}")
        a(f"s_lshl_b32 s{t1}, s{t1}, 11")
        a(f"s_add_u32 s{t1}, s{t1}, s{t0}")
        a(f"v_and_b32 v{U}, 15, v{L}")
        a(f"v_lshl_add_u32 v{vX}, v{U}, 11, s{t1}")
        a(f"v_lshrrev_b32 v{U+1}, 4, v{L}")
        a(f"v_lshl_add_u32 v{vX}, v{U+1}, 3, v{vX}")
        a(f"s_lshr_b32 s{t0}, s{sRb2}, 1")
        a(f"s_lshl_b32 s{t0}, s{t0}, 7")
        a(f"s_add_u32 s{t0}, s{t0}, {WS_FL + FH}")
        a(f"v_lshl_add_u32 v{vFa2}, v{U}, 2, s{t0}")
        a(f"s_lshl_b32 s{sKA}, s{sWave}, 17")
        a(f"s_add_u32 s{sKA}, s{sKA}, {WS_A2 + 32*131072}")
        a(f"s_lshl_b32 s{sKW}, s{sWave}, 16")
        srd(a, sW, pW2, 0, 3584 * 2048)
    for x in range(2):
        s0 = S[x]
        a(f"v_max3_f32 v{U}, v{s0}, v{s0+1}, v{s0+2}")
        for i in range(3, 15, 2):
            a(f"v_max3_f32 v{U}, v{U}, v{s0+i}, v{s0+i+1}")
        a(f"v_max_f32 v{U}, v{U}, v{s0+15}")
        a(f"v_mov_b32 v{U+2}, v{U}")
        a("s_nop 1")
        a(f"v_permlane32_swap_b32 v{U}, v{U+2}")
        a(f"v_max_f32 v{U}, v{U}, v{U+2}")
        for i in range(16): a(f"v_sub_f32 v{NM[x]+i}, 0, v{U}")
        if x == 0:
            for i in range(16): a(f"v_sub_f32 v{s0+i}, v{s0+i}, v{U}")
    a(f"s_mov_b32 m0, s{sMb}")
    a("s_nop 0")
    stp(a, "atloop")

    def acc2(tt, ft): return 128 + (tt * 4 + ft) * 4
    def ab(buf, tt): return buf * 32 + tt * 4
    def gm(v, tt, ft):
        c = acc2(tt, ft); w = WF[v & 1] + ft * 4; x = ab(v, tt)
        return f"v_mfma_f32_16x16x32_bf16 a[{c}:{c+3}], v[{w}:{w+3}], a[{x}:{x+3}], a[{c}:{c+3}]"
    def aload(buf, tt):
        r = ab(buf, tt)
        return f"buffer_load_dwordx4 a[{r}:{r+3}], v{vA + (tt>>2)}, {WSR}, s{sKA} offen offset:{(tt&3)*1024} {ASC}"
    def wdma(pc):
        return f"buffer_load_dwordx4 v{vW+pc}, s[{sW}:{sW+3}], s{sKW} offen offset:{pc*1024} {W2NT} lds"
    def wread(slot, buf, ft):
        r = WF[buf] + ft * 4
        return [f"ds_read_b64_tr_b16 v[{r+2*rd}:{r+2*rd+1}], v{vWo if ft&1 else vWe} offset:{slot*4096 + rd*2048 + (ft>>1)*512}" for rd in range(2)]
    W0 = "s_waitcnt lgkmcnt(0)"
    def phase(x, t, doqk=True, f=None):
        y = 1 - x
        f = f or {}
        E = lambda i: f"v_exp_f32 v{D[x]+i}, v{S[x]+i}"
        q = qk(y, t + x) if doqk else [None, None]
        g = lambda k: f.get(k, [])
        seq = [q[0]] + g(0) + [E(0), E(1), E(2), q[1]] + g(1) + [E(3), E(4), E(5), PV(y, t - 1 + x, 1)] + g(2) + [E(6), E(7), E(8),
               LS(y, 1)] + g(3) + [E(9), E(10), PV(x, t, 0)] + g(4) + [E(11), E(12), E(13), LS(x, 0)] + g(5) + [E(14), E(15)]
        a.extend([z for z in seq if z])
    ring_adv = [f"s_add_u32 s{sMb}, s{sRing}, s{sM0k}", f"s_add_u32 s{sRing}, s{sRing}, 32768", f"s_cmp_eq_u32 s{sRing}, 98304",
                f"s_cselect_b32 s{sRing}, 0, s{sRing}"]
    kv_sel = [f"s_cmp_gt_u32 s{sCntA}, 5", f"s_cselect_b32 s{sKV+2}, 0, {SZ_KV}"]
    hq = list(range(ND, 32))
    ops = [0]
    def it_pure(c, j, lastpure):
        t = j + 1
        k = rdK(t + 1, j); v = rdV(t + 1, j)
        fa = {0: [k[0]], 1: [k[1]], 5: [W0]}
        fb = {0: [v[0]], 1: [v[1]], 5: [W0]}
        if j == 0:
            fa[2] = [f"s_mov_b32 m0, s{sMb}"]
            if c > 5: fa[3] = [f"s_mov_b32 s{sKV+2}, 0"]
        if j == 4:
            fa[2] = [f"s_add_u32 m0, s{sMb}, 16384", f"s_add_u32 s{sSo}, s{sSo}, 16384"]
        fa[4] = [kvdma(j)]
        if j == 7:
            fa[2] = ring_adv[0:2]; fa[3] = ring_adv[2:4]
            fb[2] = [f"s_add_u32 s{sSo}, s{sSo}, 16384"]
        for f in (fa, fb):
            for sl in (2, 3)[:SPP]:
                if hq:
                    u = hq.pop(0); w = 2 if u < 8 else 4
                    f[sl] = f.get(sl, []) + hstore(u, f"a[{4*(u-ND)}:{4*(u-ND)+w-1}]")
        if pfl and 8 * c + j >= PFAT: fb[4] = pfl.pop(0)
        if lastpure and j == POLLAT:
            fb[4] = fb.get(4, []) + [f"buffer_load_dword v{vFl}, v{vFa2}, {WSR}, 0 offen sc1"]
        return fa, fb, t
    def count_vm(lst):
        return sum(1 for z in lst if z.startswith("buffer_"))
    def kv_m0(j):
        return f"s_mov_b32 m0, s{sMb}" if j < 4 else f"s_add_u32 m0, s{sMb}, 16384"
    def trip_sa(j, x):
        l = []
        if j == 0 and x == 0: l += kv_sel
        if j == 3 and x == 1: l += [f"s_add_u32 s{sSo}, s{sSo}, 16384"]
        if j == 7 and x == 1: l += [f"s_add_u32 s{sSo}, s{sSo}, 16384"] + ring_adv
        if (j & 1) == 0 and x == 0 : pass
        return l
    def kstep_adv():
        return [f"s_add_u32 s{sKA}, s{sKA}, {4*131072}", f"s_add_u32 s{sKW}, s{sKW}, {4*65536}"]
    def it_load(j):
        t = j + 1; v = j >> 1
        for x in range(2):
            ph = 2 * (j & 1) + x
            kv = rdK(t + 1, j) if x == 0 else rdV(t + 1, j)
            tr = wread(0, 0, ph) if v == 3 else []
            sa = trip_sa(j, x)
            wait = "s_waitcnt vmcnt(28) lgkmcnt(0)" if ph == 3 else W0
            f = {0: [kv[0], kv[1]], 1: sa[0:2] + tr, 2: [f"s_add_u32 m0, s{sM0g}, {v*4096}", aload(v, 2 * ph)], 3: sa[2:] + [wdma(ph)],
                 4: ([kv_m0(j)] if x == 0 else []), 5: [wait, aload(v, 2 * ph + 1)] + ([kvdma(j)] if x == 0 else [])}
            if ph == 3: f[5] += kstep_adv()
            if j == 7 and x == 1:
                f[4] = [f"s_add_u32 s{sCntA}, s{sCntA}, 1"]
                f[5] += ["s_barrier", f"v_add_u32 v{vCur}, s{sRing}, v{vL16}"]
            phase(x, t, f=f)
    def it_comb(j):
        t = j + 1; v = j >> 1
        for x in range(2):
            y = 1 - x
            ph = 2 * (j & 1) + x
            E = lambda i: f"v_exp_f32 v{D[x]+i}, v{S[x]+i}"
            q = qk(y, t + x)
            kv = rdK(t + 1, j) if x == 0 else rdV(t + 1, j)
            tr = wread((v + 1) & 3, (v + 1) & 1, ph)
            Gm = [gm(v, 2 * ph, ft) for ft in range(4)] + [gm(v, 2 * ph + 1, ft) for ft in range(3, -1, -1)]
            sa = trip_sa(j, x) + [None] * 5
            wait = "s_waitcnt vmcnt(28) lgkmcnt(0)" if ph == 3 else W0
            last = (j == 7 and x == 1)
            seq = [Gm[0], kv[0], kv[1], q[0], sa[0], E(0), E(1), E(2), Gm[1], sa[1], E(3), q[1], sa[2], E(4), E(5), E(6), Gm[2], sa[3], E(7),
                   PV(y, t - 1 + x, 1), tr[0], E(8), E(9), LS(y, 1), tr[1], Gm[3], sa[4], E(10), PV(x, t, 0), aload(v, 2 * ph), E(11), E(12),
                   Gm[4], f"s_add_u32 m0, s{sM0g}, {v*4096}", E(13), LS(x, 0), wdma(ph), Gm[5],
                   kv_m0(j) if x == 0 else (f"s_add_u32 s{sCntA}, s{sCntA}, 1" if last else None), E(14), Gm[6], wait,
                   "s_barrier" if last else None, E(15), Gm[7], aload(v, 2 * ph + 1), kvdma(j) if x == 0 else None]
            if ph == 3: seq += kstep_adv()
            if last: seq += [f"v_add_u32 v{vCur}, s{sRing}, v{vL16}", f"s_cmp_lt_u32 s{sCntA}, 8"]
            a.extend([z for z in seq if z])

    NPURE = 7 - NC
    seqs = []
    for c in range(NPURE):
        for j in range(1 if c == 0 else 0, 8):
            seqs.append((c, j) + it_pure(c, j, c == NPURE - 1))
    assert not pfl
    assert not hq, "deferred h stores do not fit in the pure trips"
    log = []
    for (c, j, fa, fb, t) in seqs:
        for f in (fa, fb):
            for sl in range(5):
                for z in f.get(sl, []):
                    if z.startswith("buffer_"):
                        log.append("kv%d" % c if " lds" in z else ("st" if "store" in z else ("poll" if "dword " in z else "pf")))
        def younger(pred):
            idx = [i for i, tag in enumerate(log) if pred(tag)]
            return len(log) - 1 - idx[-1] if idx else len(log)
        need = 63
        pub = (8 * c + j == PUBAT)
        if j == 7: need = min(need, younger(lambda g: g == "kv%d" % (c - 1)))
        if pub: need = min(need, younger(lambda g: g == "st"))
        if j == 7 or pub:
            fb[5] = [f"s_waitcnt vmcnt({need}) lgkmcnt(0)", "s_barrier"]
            if j == 7: fb[5].append(f"v_add_u32 v{vCur}, s{sRing}, v{vL16}")
        phase(0, t, f=fa)
        phase(1, t, f=fb)
        if pub:
            assert log.count("st") == 32 - ND
            a(f"s_cmp_eq_u32 s{sPub}, 0")
            a("s_cbranch_scc1 L_at_np")
            publish(sPub, U)
            a("L_at_np:")
    stp(a, "pureend")
    a(f"s_mov_b32 s{sCntA}, {NPURE}")
    g2_setup()
    a(f"s_waitcnt vmcnt({younger(lambda g: g == 'poll')})")
    poll(vFa2, True)
    stp(a, "fhok")
    for j in range(8): it_load(j)
    if NC:
        a(".p2align 6")
        a("L_cb_loop:")
        for j in range(8): it_comb(j)
        a("s_cbranch_scc1 L_cb_loop")
    phase(0, 63)
    phase(1, 63, doqk=False)
    a("s_nop 1")
    a(PV(1, 63, 1)); a(LS(1, 1))
    stp(a, "atend")
    a(f"v_bfe_u32 v{U+2}, v{L}, 4, 1")
    a(f"v_lshlrev_b32 v{U+2}, 10, v{U+2}")
    a(f"v_lshrrev_b32 v{U+3}, 5, v{L}")
    a(f"v_lshl_add_u32 v{U+2}, v{U+3}, 8, v{U+2}")
    a(f"v_and_b32 v{U+3}, 15, v{L}")
    a(f"v_lshl_add_u32 v{U+2}, v{U+3}, 4, v{U+2}")
    a(f"s_lshr_b32 s{t0}, s{sRb2}, 1")
    a(f"s_lshl_b32 s{t0}, s{t0}, 7")
    a(f"s_add_u32 s{t0}, s{t0}, {WS_FL + FO}")
    a(f"v_and_b32 v{U+3}, 31, v{L}")
    a(f"v_lshl_add_u32 v{vFa2}, v{U+3}, 2, s{t0}")
    a(f"s_lshr_b32 s{t0}, s{sSlot}, 2")
    a(f"s_lshl_b32 s{t0}, s{t0}, 7")
    a(f"s_lshl_b32 s{sPub}, s{sHead}, 2")
    a(f"s_add_u32 s{sPub}, s{sPub}, s{t0}")
    a(f"s_add_u32 s{sPub}, s{sPub}, {WS_FL + FO}")
    a(f"s_add_u32 s{sQO}, s{sQO}, {WS_A2}")
    a(f"v_mul_f32 v{U}, 0, v{O[0]}")
    for i in range(1, 32):
        a(f"v_fma_f32 v{U}, v{O[0]+i}, 0, v{U}")
    a(f"v_add_f32 v{U+1}, v{Lr[0]}, v{Lr[1]}")
    a(f"v_add_f32 v{U}, v{U}, v{U+1}")
    a(f"s_mov_b32 s{t0}, {f2u(2.0**40):#x}")
    a(f"v_cmp_ngt_f32 vcc, s{t0}, v{U}")
    a("s_nop 1")
    a("s_cbranch_vccnz L_at_slow")
    a("L_at_fin:")
    for x in range(2):
        a(f"v_rcp_f32 v{U}, v{Lr[x]}")
        a("s_nop 0")
        for i in range(16): a(f"v_mul_f32 v{O[x]+i}, v{O[x]+i}, v{U}")
        for u in range(2):
            for e in range(2):
                c = O[x] + 8 * e + 4 * u
                a(f"v_cvt_pk_bf16_f32 v{D[x]+4*u+2*e}, v{c}, v{c+1}")
                a(f"v_cvt_pk_bf16_f32 v{D[x]+4*u+2*e+1}, v{c+2}, v{c+3}")
            a(f"buffer_store_dwordx4 v[{D[x]+4*u}:{D[x]+4*u+3}], v{U+2}, {WSR}, s{sQO} offen offset:{x*2048+u*512} {SC}")
    stp(a, "ostored")

    X = 128
    def xloads():
        l = []
        for h in range(2):
            for ft in range(4):
                r = X + (h * 4 + ft) * 2
                l.append(f"buffer_load_dwordx2 v[{r}:{r+1}], v{vX}, s[{sX}:{sX+3}], {'0' if h == 0 else 's58'} offen offset:{ft*32}")
        return l
    def step2(v, loads, vm, reads=True, tail=None, extra=()):
        a(f"s_waitcnt vmcnt({vm}) lgkmcnt(0)")
        m = []
        for tt in range(8):
            for ft in (range(4) if tt % 2 == 0 else range(3, -1, -1)):
                m.append(gm(v, tt, ft))
        ex = list(extra)
        if loads:
            ex.append((0, f"s_add_u32 m0, s{sM0g}, {v*4096}"))
            for pc in range(4): ex.append((1 + pc, wdma(pc)))
            for tt in range(8):
                ex.append((max(4 * tt + 3, 6 + tt), aload(v, tt)))
            ex.append((31, kstep_adv()))
        if reads:
            rl = []
            for ft in range(4): rl += wread((v + 1) & 3, (v + 1) & 1, ft)
            for i, x in enumerate(rl): ex.append((8 + 2 * i, x))
        ex.sort(key=lambda t: t[0])
        a.extend(weave(m, ex))
        if tail: a.extend(tail)
    srd(a, sX, pX, 0, 4 * MB)
    srd(a, sOut, pOut, 0, 4 * MB)
    a("s_mov_b32 s58, 32768")
    NH = 6 - NC
    pollld = f"buffer_load_dword v{vFl}, v{vFa2}, {WSR}, 0 offen sc1"
    step2(0, True, 32)
    a("s_waitcnt vmcnt(12)")
    a("s_barrier")
    publish(sPub, U)
    a(f"s_mov_b32 s{sCnt}, {NH + 2}")
    a("s_branch L_g2_in")
    a(".p2align 6")
    a("L_g2_loop:")
    step2(0, True, 32)
    a("L_g2_in:")
    for v in range(1, 4):
        step2(v, True, 32, extra=[(-1, pollld)] if v == POLLSTEP else ())
    a(f"s_sub_u32 s{sCnt}, s{sCnt}, 1")
    a(f"s_cmp_lg_u32 s{sCnt}, 2")
    a("s_cbranch_scc1 L_g2_nosw")
    stp(a, "fopoll")
    a(f"s_waitcnt vmcnt({12*(4-POLLSTEP)})")
    poll(vFa2, True)
    stp(a, "fook")
    srd(a, sW, pWO, 0, 1024 * 2048)
    a(f"s_lshl_b32 s{sKW}, s{sWave}, 16")
    a(f"s_lshl_b32 s{sKA}, s{sWave}, 17")
    a(f"s_add_u32 s{sKA}, s{sKA}, {WS_A2}")
    a("L_g2_nosw:")
    a(f"s_cmp_lg_u32 s{sCnt}, 0")
    a("s_cbranch_scc1 L_g2_loop")
    step2(0, False, 32, tail=xloads())
    step2(1, False, 28)
    step2(2, False, 16)
    step2(3, False, 8, reads=False)
    stp(a, "g2end")
    if STAMP: a("s_waitcnt lgkmcnt(0)")
    vRw, vRr = U, U + 1
    a("s_nop 7")
    for d in range(4):
        a(f"s_cmp_eq_u32 s{sWave}, {d}")
        a(f"s_cbranch_scc1 L_g2_own{d}")
        a(f"s_sub_u32 s{t0}, s{sWave}, {d+1}")
        a(f"s_and_b32 s{t0}, s{t0}, 3")
        a(f"s_lshl_b32 s{t0}, s{t0}, 13")
        a(f"s_add_u32 s{t0}, s{t0}, {d*24576}")
        a(f"v_add_u32 v{vRw}, s{t0}, v{vL16}")
        for i in range(8):
            c = 128 + 32 * d + 4 * i
            a(f"ds_write_b128 v{vRw}, a[{c}:{c+3}] offset:{i*1024}")
        a(f"s_branch L_g2_nx{d}")
        a(f"L_g2_own{d}:")
        for i in range(32): a(f"v_accvgpr_read_b32 v{i}, a{128+32*d+i}")
        a(f"L_g2_nx{d}:")
    a(f"s_mul_i32 s{t0}, s{sWave}, 24576")
    a(f"v_add_u32 v{vRr}, s{t0}, v{vL16}")
    a(f"s_mov_b32 s{t0}, 0xffff0000")
    a("s_waitcnt vmcnt(0)")
    for i in range(8):
        r = X + 2 * i
        a(f"v_lshlrev_b32 v{U+4}, 16, v{r}")
        a(f"v_and_b32 v{U+5}, s{t0}, v{r}")
        a(f"v_lshlrev_b32 v{U+6}, 16, v{r+1}")
        a(f"v_and_b32 v{U+7}, s{t0}, v{r+1}")
        for j in range(4): a(f"v_add_f32 v{4*i+j}, v{4*i+j}, v{U+4+j}")
    a("s_waitcnt lgkmcnt(0)")
    a("s_barrier")
    for i in range(8):
        for sl in range(3):
            base = 32 + 32 * sl
            a(f"ds_read_b128 v[{base+4*i}:{base+4*i+3}], v{vRr} offset:{sl*8192 + i*1024}")
    for i in range(8):
        a(f"s_waitcnt lgkmcnt({min(15, 21 - 3*i)})")
        for j in range(4): a(f"v_add_f32 v{32+4*i+j}, v{32+4*i+j}, v{64+4*i+j}")
        for j in range(4): a(f"v_add_f32 v{4*i+j}, v{4*i+j}, v{96+4*i+j}")
        for j in range(4): a(f"v_add_f32 v{4*i+j}, v{4*i+j}, v{32+4*i+j}")
        a(f"v_cvt_pk_bf16_f32 v{X+2*i}, v{4*i}, v{4*i+1}")
        a(f"v_cvt_pk_bf16_f32 v{X+2*i+1}, v{4*i+2}, v{4*i+3}")
        a(f"buffer_store_dwordx2 v[{X+2*i}:{X+2*i+1}], v{vX}, s[{sOut}:{sOut+3}], {'0' if i < 4 else 's58'} offen offset:{(i&3)*32}")
    stp(a, "outst")
    if DBGST:
        n = len(STAMPS) + 1
        a("s_waitcnt vmcnt(0)")
        stamp(a, n - 1)
        a(f"s_cmp_lg_u32 s2, {DBGST - 1}")
        a("s_cbranch_scc1 L_end")
        a(f"s_cmp_lg_u32 s{sWave}, 0")
        a("s_cbranch_scc1 L_end")
        a(f"s_load_dwordx2 s[88:89], s[0:1], {KA_DBG}")
        a("s_waitcnt lgkmcnt(0)")
        srd(a, 88, 88, 0, 256)
        for i in range(n):
            a(f"s_sub_u32 s92, s{60+2*i}, s60")
            a(f"v_mov_b32 v1, s92")
            a(f"buffer_store_dword v1, off, s[88:91], 0 offset:{4*i}")
    else:
        stamp_flush(a, 1, len(STAMPS) + 1, 0)
    a("L_end:")
    a("s_endpgm")
    a("L_at_slow:")
    a(f"s_mov_b32 s{sKV+2}, {SZ_KV}")
    for x in range(2): a(f"v_mov_b32 v{NM[x]}, 0xff800000")
    for i in range(40): a(f"v_mov_b32 v{O[0]+i}, 0")
    a(f"s_lshl_b32 s{sSo}, s{sHead}, 18")
    a(f"s_mov_b32 s{sCntA}, 0")
    a("L_at_sloop:")
    k = Kf[0]; v = Vf[0]
    a(f"buffer_load_dwordx4 v[{k}:{k+3}], v{vL16}, s[{sKV}:{sKV+3}], s{sSo} offen {SC}")
    a(f"buffer_load_dwordx4 v[{k+4}:{k+7}], v{vL16}, s[{sKV}:{sKV+3}], s{sSo} offen offset:1024 {SC}")
    a(f"buffer_load_dwordx4 v[{v}:{v+3}], v{vL16}, s[{sKV}:{sKV+3}], s{sSo} offen offset:2048 {SC}")
    a(f"buffer_load_dwordx4 v[{v+4}:{v+7}], v{vL16}, s[{sKV}:{sKV+3}], s{sSo} offen offset:3072 {SC}")
    a("s_waitcnt vmcnt(0)")
    for x in range(2):
        M = NM[x]; AL = NM[x] + 1; MN = NM[x] + 2; s = S[x]
        a.extend(qk(x, 0, "0"))
        a("s_nop 15")
        a(f"v_max3_f32 v{U}, v{s}, v{s+1}, v{s+2}")
        for i in range(3, 15, 2):
            a(f"v_max3_f32 v{U}, v{U}, v{s+i}, v{s+i+1}")
        a(f"v_max_f32 v{U}, v{U}, v{s+15}")
        a(f"v_mov_b32 v{U+1}, v{U}")
        a("s_nop 1")
        a(f"v_permlane32_swap_b32 v{U}, v{U+1}")
        a(f"v_max3_f32 v{MN}, v{U}, v{U+1}, v{M}")
        a(f"v_sub_f32 v{AL}, v{M}, v{MN}")
        a(f"v_exp_f32 v{AL}, v{AL}")
        a(f"v_mov_b32 v{M}, v{MN}")
        for i in range(16): a(f"v_sub_f32 v{s+i}, v{s+i}, v{MN}")
        for i in range(16): a(f"v_exp_f32 v{D[x]+i}, v{s+i}")
        for i in range(16): a(f"v_mul_f32 v{O[x]+i}, v{O[x]+i}, v{AL}")
        a(f"v_mul_f32 v{Lr[x]}, v{Lr[x]}, v{AL}")
        a("s_nop 1")
        a(LS(x, 0)); a(LS(x, 1))
        a(PV(x, 0, 0)); a(PV(x, 0, 1))
        a("s_nop 15")
    a(f"s_add_u32 s{sSo}, s{sSo}, 4096")
    a(f"s_add_u32 s{sCntA}, s{sCntA}, 1")
    a(f"s_cmp_lt_u32 s{sCntA}, 64")
    a("s_cbranch_scc1 L_at_sloop")
    a("s_branch L_at_fin")
    return a, descriptor(name, 512, 256, 102), f"; @launch kernel={name} grid=(256,1,1) block=(256,1,1) lds=163840"

if __name__ == "__main__":
    ks = [gen_ln2(), gen_main()]
    path = sys.argv[1] if len(sys.argv) > 1 else "cdna_kernels/" + NAME + ".s"
    bad = build(ks, path)
    print("written", path, "hazards:", bad)
```

```python
import sys, os
sys.path.insert(0, os.path.dirname(os.path.abspath(__file__)))
from asmdsl import Asm, weave
from gen import (NAME, KA_X, KA_WQKV, KA_WO, KA_W1, KA_W2, KA_OUT, KA_DBG, KA_WS, MB, f2u, srd, header, descriptor,
                 stamp, stamp_flush, STAMP, xreduce, bf16round, QSCALE)

def env(k, d): return type(d)(os.environ.get(k, d))
WS_Q, WS_KV, WS_A2 = 4 * MB, 8 * MB, 16 * MB
SZ_KV = 8 * MB
WS_FL = 0
FQ, FH, FO, TX = 0, 2048, 4096, 5120
WS_STAT = 8192
WS_CS = 65536
WS_END = 35 * MB
LDS_W1 = 98304
LDS_SCR = 90112
NC = env("NC", 5); ND = env("ND", 16); SPP = env("SPP", 1); PUBAT = env("PUBAT", 10); POLLAT = env("POLLAT", 5)
QPLAIN = env("QPLAIN", 0); WNT = env("WNT", ""); PFG1 = env("PFG1", 1); DMAF = env("DMAF", 0.5)
POLLSTEP = env("POLLSTEP", 2); PUBSTEP = env("PUBSTEP", 0); DBGST = env("DBGST", 0); EPOLL = env("EPOLL", 14)
SC = "sc1"
STAMPS = env("STAMPS", "start,g1loop,g1end,e4,atentry,atloop,pureend,fhok,atend,fopoll,fook,g2end,outst").split(",")
def stp(a, name):
    if name in STAMPS: stamp(a, STAMPS.index(name))

def gen_main():
    a = Asm()
    name = NAME + "_kernel"
    header(a, name)
    sWS, sW, sKV, sX, sOut = 8, 12, 16, 20, 24
    pW1, pW2, pWO, pX, pOut, pDbg = 28, 30, 32, 34, 36, 38
    sWave, sXcd, sSlot = 40, 41, 42
    sKA, sKW, sM0A, sM0W, sCnt, sWr, sWc, sRb, sCt = 43, 44, 45, 46, 47, 48, 49, 50, 51
    t0, t1, t2, t3, t4, t5 = 52, 53, 54, 55, 56, 57
    sPf = 58; sXcc = 3
    sSo, sM0k, sCntA, sRing, sMb, sQO, sHead, sPub = 94, 95, 96, 97, 98, 99, 100, 101
    sAw, sArd, sCs, sTile = 96, 97, 98, 101
    sM0g, sRb2, sCb, sH1, sH2 = 45, 46, 48, 49, 50
    WSR = f"s[{sWS}:{sWS+3}]"
    def R(s): return f"s[{s}:{s+3}]"
    vAd, vWd, vAr, vArB, vWe1, vWo1, vWs1 = 224, 228, 232, 234, 235, 236, 237
    T = 238
    L, vL16, vDma, vFa, vTa, vFl = 250, 251, 252, 253, 254, 255
    ST = 224; vO = 240
    Q = [0, 8]; S = [16, 32]; NM = [48, 64]; O = [80, 96]; Lr = [112, 116]; D = [120, 136]
    Kf = [152, 160]; Vf = [168, 176]; ONE = 184; WF = [188, 204]
    vCur, IDX, vA, vW, vWe, vWo, vFa2, vX = 220, 221, 222, 224, 228, 229, 230, 231
    U = 232; vSig = 244; vRs2 = 246
    lab = [0]
    def poll(areg, first_done, srdr=WSR, val="1"):
        n = lab[0]; lab[0] += 1
        a(f"s_mov_b32 s{t5}, 0")
        if first_done: a(f"s_branch L_pc{n}")
        a(f"L_pl{n}:")
        a(f"buffer_load_dword v{vFl}, {areg}, {srdr}, 0 {'offen' if areg != 'off' else ''} sc1")
        a("s_waitcnt vmcnt(0)")
        a(f"L_pc{n}:")
        a(f"v_cmp_ne_u32 vcc, {val}, v{vFl}")
        a(f"s_add_u32 s{t5}, s{t5}, 1")
        a("s_nop 0")
        a(f"s_cbranch_vccz L_pd{n}")
        a("s_sleep 1")
        a(f"s_cmp_lt_u32 s{t5}, 0x40000")
        a(f"s_cbranch_scc1 L_pl{n}")
        a(f"L_pd{n}:")
    def publish(soff_reg, tmp, val="1"):
        n = lab[0]; lab[0] += 1
        a(f"s_cmp_lg_u32 s{sWave}, 0")
        a(f"s_cbranch_scc1 L_pb{n}")
        a(f"v_mov_b32 v{tmp}, {val}")
        a(f"buffer_store_dword v{tmp}, off, {WSR}, s{soff_reg} sc1")
        a(f"L_pb{n}:")

    a("s_cmp_ge_u32 s2, 256")
    a("s_cbranch_scc1 L_end")
    stp(a, "start")
    a(f"s_load_dwordx2 s[{pX}:{pX+1}], s[0:1], {KA_X}")
    a(f"s_load_dwordx2 s[6:7], s[0:1], {KA_WQKV}")
    a(f"s_load_dwordx4 s[{pW1}:{pW1+3}], s[0:1], {KA_W1}")
    a(f"s_load_dwordx2 s[4:5], s[0:1], {KA_WS}")
    a(f"s_load_dwordx2 s[{pWO}:{pWO+1}], s[0:1], {KA_WO}")
    a(f"s_load_dwordx4 s[{pOut}:{pOut+3}], s[0:1], {KA_OUT}")
    a(f"v_lshrrev_b32 v{T}, 6, v0")
    a(f"v_and_b32 v{L}, 63, v0")
    a(f"v_readfirstlane_b32 s{sWave}, v{T}")
    a(f"v_lshlrev_b32 v{vL16}, 4, v{L}")
    a(f"s_and_b32 s{sXcd}, s2, 7")
    if STAMP: a(f"s_mov_b32 s59, s{sWave}")
    a(f"s_lshr_b32 s{sSlot}, s2, 3")
    a(f"s_and_b32 s{sRb}, s{sSlot}, 7")
    a(f"s_lshr_b32 s{sCt}, s{sSlot}, 3")
    a(f"s_lshr_b32 s{sWr}, s{sWave}, 1")
    a(f"s_and_b32 s{sWc}, s{sWave}, 1")
    a(f"v_bfe_u32 v3, v{L}, 2, 1")
    a(f"v_lshl_add_u32 v3, v{T}, 1, v3")
    a(f"s_lshl_b32 s{t0}, s2, 3")
    a(f"v_add_u32 v3, s{t0}, v3")
    a(f"v_and_b32 v4, 3, v{L}")
    a(f"v_lshrrev_b32 v5, 3, v{L}")
    a("v_lshlrev_b32 v6, 11, v3")
    a("v_lshl_add_u32 v6, v5, 6, v6")
    a("v_lshl_add_u32 v6, v4, 4, v6")
    a(f"v_lshrrev_b32 v{T+1}, 4, v{L}")
    a(f"v_and_b32 v{T+2}, 7, v{L}")
    a(f"v_xor_b32 v{T+2}, v{T+2}, v{T+1}")
    a(f"v_lshlrev_b32 v{T+2}, 4, v{T+2}")
    a(f"v_lshl_add_u32 v{T+2}, v5, 11, v{T+2}")
    a(f"s_lshl_b32 s{t0}, s{sRb}, 19")
    a(f"s_lshl_b32 s{t1}, s{sWave}, 17")
    a(f"s_add_u32 s{t0}, s{t0}, s{t1}")
    a(f"v_add_u32 v{vAd}, s{t0}, v{T+2}")
    a(f"v_xor_b32 v{vAd+1}, 64, v{vAd}")
    a(f"v_add_u32 v{vAd+3}, {3*15360}, v{vAd+1}")
    a(f"v_add_u32 v{vAd+1}, 15360, v{vAd+1}")
    a(f"v_add_u32 v{vAd+2}, {2*15360}, v{vAd}")
    a(f"s_lshl_b32 s{sM0A}, s{sWave}, 13")
    a(f"s_lshl_b32 s{sM0W}, s{sWave}, 12")
    a(f"s_add_u32 s{sM0W}, s{sM0W}, {LDS_W1}")
    a(f"s_lshl_b32 s{sKA}, s{sRb}, 8")
    a(f"s_mov_b32 s{sAw}, 0")
    ftp, gb, jj, qc = T + 3, T + 4, T + 5, 4
    a(f"v_lshrrev_b32 v{ftp}, 5, v{L}")
    a(f"v_bfe_u32 v{gb}, v{L}, 4, 1")
    a(f"v_bfe_u32 v{jj}, v{L}, 2, 2")
    a(f"s_lshl_b32 s{t0}, s{sWr}, 4")
    a(f"s_lshl_b32 s{t1}, s{sWc}, 2")
    a(f"s_add_u32 s{t0}, s{t0}, s{t1}")
    a(f"v_lshl_add_u32 v{T+6}, v{gb}, 3, v{jj}")
    a(f"v_add_u32 v{T+6}, s{t0}, v{T+6}")
    a(f"v_lshlrev_b32 v{T+7}, 1, v{gb}")
    a(f"v_xor_b32 v{T+7}, v{T+7}, v{qc}")
    a(f"v_lshlrev_b32 v{T+7}, 4, v{T+7}")
    a(f"v_lshl_add_u32 v{T+7}, v{ftp}, 6, v{T+7}")
    a(f"v_xor_b32 v{T+8}, v{gb}, v{qc}")
    a(f"v_lshlrev_b32 v{T+8}, 4, v{T+8}")
    a("s_waitcnt lgkmcnt(0)")
    srd(a, sX, pX, 0, 4 * MB)
    for i in range(4):
        a(f"buffer_load_dwordx4 v[{16+4*i}:{19+4*i}], v6, {R(sX)}, 0 offen offset:{i*512}")
    a(f"s_cmp_lt_u32 s{sCt}, 2")
    a("s_cbranch_scc0 L_g1_qkv")

    def kvdma(q):
        return f"buffer_load_dwordx4 v{vDma}, {R(sKV)}, s{sSo} offen offset:{(q&3)*1024} {SC} lds"
    def at_load_groups():
        g = []
        for c in range(5):
            for q in range(4 if c < 4 else 1):
                pre = [f"s_add_u32 m0, s{sM0k}, {c*16384}", "s_nop 0"] if q == 0 else []
                post = [f"s_add_u32 s{sSo}, s{sSo}, 16384"] if (q == 3) else []
                g.append(pre + [kvdma(q)] + post)
            if c == 0:
                for x in range(2):
                    for h in range(2):
                        g.append([f"buffer_load_dwordx4 v[{Q[x]+4*h}:{Q[x]+4*h+3}], v{vL16}, {WSR}, s{sQO} offen offset:{x*2048+h*1024} {SC}"])
        return g
    def hstore(u, data):
        if u < 8:
            return [f"buffer_store_dwordx2 {data}, v{vO+2 + (u>>2)}, {R(sOut)}, s{sH2} offen offset:{(u&3)*1024} {SC}"]
        p, tt = divmod(u - 8, 8)
        return [f"buffer_store_dwordx4 {data}, v{vO + (tt>>2)}, {R(sOut)}, s{(sH1, t3, t4)[p]} offen offset:{(tt&3)*1024} {SC}"]
    direct = set(range(8)) | set(8 + (i * 24) // max(1, ND - 8) for i in range(max(0, ND - 8)))
    parked = [u for u in range(32) if u not in direct]
    ool = []

    def g1(kind):
        ffn = kind == "ffn"
        NB = 7 if ffn else 6
        RS = 7168 if ffn else 6144
        nW = 4 if ffn else 3
        NF = 8 + NB
        def fr(buf, i): return buf * NF * 4 + i * 4
        def acc(tt, ft): return (ft * 8 + tt) * 4
        if ffn:
            srd(a, sW, pW1, -4096, 1024 * 7168 + 4096)
            a(f"s_mul_i32 s{t0}, s{sXcd}, 896")
            a(f"s_mul_i32 s{t1}, s{sCt}, 384")
            a(f"s_add_u32 s{t1}, s{t1}, s{t0}")
            a(f"s_lshl_b32 s{t2}, s{sCt}, 6")
            a(f"s_add_u32 s{t2}, s{t2}, s{t0}")
            a(f"s_add_u32 s{t2}, s{t2}, {768 + 4096 - 3072}")
            qstep = 128
        else:
            srd(a, sW, 6, -4096, 1024 * 6144 + 4096)
            a(f"s_lshl_b32 s{t1}, s{sXcd}, 1")
            a(f"s_add_u32 s{t1}, s{t1}, s{sCt}")
            a(f"s_sub_u32 s{t1}, s{t1}, 2")
            a(f"s_lshl_b32 s{t1}, s{t1}, 7")
            qstep = 2048
        a(f"s_mul_i32 s{sKW}, s{sRb}, {128 * RS}")
        a(f"v_mul_u32_u24 v{T+6}, {RS}, v{T+6}")
        a(f"v_add3_u32 v{T+7}, v{T+7}, v{T+6}, s{t1}")
        for q in range(3):
            a(f"v_add_u32 v{vWd+q}, {4096 + q*qstep - q*1024}, v{T+7}")
        if ffn:
            a(f"v_add3_u32 v{T+8}, v{T+8}, v{T+6}, s{t2}")
            a(f"v_lshlrev_b32 v{T+9}, 30, v{ftp}")
            a(f"v_or_b32 v{vWd+3}, v{T+8}, v{T+9}")
        def wdma_list(stage):
            l = [[f"s_add_u32 m0, s{sM0W}, {stage*16384}"]]
            for q in range(nW):
                l.append([f"buffer_load_dwordx4 v{vWd+q}, {R(sW)}, s{sKW} offen offset:{q*1024} {WNT} lds"])
            l.append([f"s_add_u32 s{sKW}, s{sKW}, {32*RS}"])
            return l
        def adma_list():
            l = [[f"s_add_u32 m0, s{sM0A}, s{sAw}", f"s_add_u32 s{t5}, s{sKA}, 65536"]]
            for p in range(8):
                if p == 4: l.append([f"s_add_u32 m0, m0, 4096"])
                l.append([f"buffer_load_dwordx4 v{vAd+(p&3)}, {R(sX)}, s{sKA if p < 4 else t5} offen offset:{(p&3)*1024} lds"])
            l.append([f"s_add_u32 s{sKA}, s{sKA}, 128", f"s_and_b32 s{sKA}, s{sKA}, 2047"])
            l.append([f"s_add_u32 s{sAw}, s{sAw}, 32768", f"s_cmp_eq_u32 s{sAw}, 98304", f"s_cselect_b32 s{sAw}, 0, s{sAw}"])
            return l
        wrap = [f"s_cmp_eq_u32 s{sKW}, {1024 * RS}", f"s_cselect_b32 s{sKW}, 0, s{sKW}"]
        def flat(l):
            out = []
            for x in l:
                out += x
                if x[-1].startswith("s_add_u32 m0"): out.append("s_nop 0")
            return out
        a.extend(flat(wdma_list(0))); a.extend(flat(adma_list())); a.extend(flat(wdma_list(1)))
        for i in range(4): a(f"v_mov_b32 v{12+i}, 0")
        a("s_nop 1")
        z = [f"v_mfma_f32_32x32x16_bf16 a[{128+16*i}:{143+16*i}], v[12:15], v[12:15], 0" for i in range(8)]
        z += [f"v_mfma_f32_32x32x16_bf16 v[{16*i}:{16*i+15}], v[12:15], v[12:15], 0" for i in range(4, 2 * NB)]
        rest = flat(wdma_list(2)) + flat(adma_list()) + flat(wdma_list(3)) + flat(adma_list()) + wrap
        k = 0
        for x in rest:
            a(x)
            if x.startswith("buffer_") and k < len(z): a(z[k]); k += 1
        for x in z[k:]: a(x)
        nPro = 4 * nW + 24
        srd(a, sWS, 4, 0, WS_END)
        a(f"v_and_b32 v{T+9}, 15, v{L}")
        a(f"v_lshrrev_b32 v{T+10}, 1, v{T+9}")
        a(f"v_xor_b32 v{T+10}, v{T+10}, v{T+1}")
        a(f"v_lshlrev_b32 v{T+10}, 4, v{T+10}")
        a(f"v_lshl_add_u32 v{T+10}, v{T+9}, 7, v{T+10}")
        a(f"s_lshl_b32 s{t0}, s{sWr}, 14")
        a(f"v_add_u32 v{vArB}, s{t0}, v{T+10}")
        a(f"v_mov_b32 v{vAr}, v{vArB}")
        a(f"v_xor_b32 v{vAr+1}, 64, v{vArB}")
        a(f"s_mov_b32 s{sArd}, 0")
        a(f"v_lshlrev_b32 v{T+10}, 13, v{ftp}")
        a(f"v_lshl_add_u32 v{T+10}, v{gb}, 8, v{T+10}")
        a(f"v_lshl_add_u32 v{T+10}, v{jj}, 6, v{T+10}")
        a(f"v_add_u32 v{T+10}, {LDS_W1}, v{T+10}")
        a(f"v_lshl_add_u32 v{T+11}, v{gb}, 5, v{T+10}")
        a(f"v_lshl_add_u32 v{T+11}, v{qc}, 3, v{T+11}")
        a(f"s_mul_i32 s{t0}, s{sWc}, {1536 if ffn else 512}")
        a(f"v_add_u32 v{vWe1}, s{t0}, v{T+11}")
        a(f"v_xor_b32 v{vWo1}, 32, v{vWe1}")
        if ffn:
            a(f"v_and_b32 v{T+11}, 1, v{qc}")
            a(f"v_lshlrev_b32 v{T+11}, 1, v{T+11}")
            a(f"v_add_u32 v{T+11}, s{sWc}, v{T+11}")
            a(f"v_xor_b32 v{T+11}, v{T+11}, v{gb}")
            a(f"v_lshl_add_u32 v{T+11}, v{T+11}, 4, v{T+10}")
            a(f"v_lshrrev_b32 v{T+10}, 1, v{qc}")
            a(f"v_lshl_add_u32 v{vWs1}, v{T+10}, 3, v{T+11}")
        a(f"v_mov_b32 v{T+10}, 0x3f803f80")
        for i in range(4): a(f"v_accvgpr_write_b32 a{124+i}, v{T+10}")
        a(f"s_lshl_b32 s{sTile}, s{sXcd}, 2")
        a(f"s_add_u32 s{sTile}, s{sTile}, s{sCt}")
        a(f"s_add_u32 s{sCs}, s{sWr}, 1")
        a(f"s_and_b32 s{t0}, s{sSlot}, 3")
        a(f"s_lshl_b32 s{sHead}, s{sXcd}, 2")
        a(f"s_add_u32 s{sHead}, s{sHead}, s{t0}")
        a(f"s_and_b32 s{t0}, s{sSlot}, 28")
        a(f"s_add_u32 s{t0}, s{t0}, s{sWave}")
        a(f"s_lshl_b32 s{t0}, s{t0}, 12")
        a(f"s_lshl_b32 s{t1}, s{sHead}, 17")
        a(f"s_add_u32 s{sQO}, s{t0}, s{t1}")
        a(f"s_add_u32 s{sQO}, s{sQO}, {WS_Q}")
        a(f"s_lshl_b32 s{sSo}, s{sHead}, 18")
        a(f"s_lshl_b32 s{sM0k}, s{sWave}, 12")
        a(f"v_add_u32 v{vDma}, s{sM0k}, v{vL16}")
        srd(a, sKV, 4, WS_KV, SZ_KV)
        a(f"s_lshr_b32 s{t0}, s{sHead}, 1")
        a(f"s_lshl_b32 s{t0}, s{t0}, 7")
        a(f"v_and_b32 v{vFa}, 7, v{L}")
        a(f"v_lshl_add_u32 v{vFa}, v{vFa}, 2, s{t0}")
        srd(a, sOut, pW2, 0, 3584 * 2048)
        a(f"s_lshl_b32 s{sPf}, s2, 2")
        a(f"s_add_u32 s{sPf}, s{sPf}, s{sWave}")
        a(f"s_lshl_b32 s{sPf}, s{sPf}, 10")
        F = 32
        a(f"s_mov_b32 s{t0}, 0xffff0000")
        a(f"s_waitcnt vmcnt({nPro})")
        for j in range(16):
            a(f"v_lshlrev_b32 v{F+2*j}, 16, v{16+j}")
            a(f"v_and_b32 v{F+2*j+1}, s{t0}, v{16+j}")
        a(f"v_pk_add_f32 v[8:9], v[{F}:{F+1}], v[{F+2}:{F+3}]")
        a(f"v_pk_add_f32 v[10:11], v[{F+4}:{F+5}], v[{F+6}:{F+7}]")
        for j in range(4, 16):
            d = 8 + 2 * (j & 1)
            a(f"v_pk_add_f32 v[{d}:{d+1}], v[{d}:{d+1}], v[{F+2*j}:{F+2*j+1}]")
        a("v_pk_add_f32 v[8:9], v[8:9], v[10:11]")
        a("v_add_f32 v8, v8, v9")
        xreduce(a, 8, 9)
        a(f"v_mul_f32 v8, {f2u(-1.0/1024):#x}, v8")
        for j in range(16):
            a(f"v_pk_add_f32 v[{F+2*j}:{F+2*j+1}], v[{F+2*j}:{F+2*j+1}], v[8:9] op_sel_hi:[1,0]")
        a(f"v_pk_mul_f32 v[10:11], v[{F}:{F+1}], v[{F}:{F+1}]")
        a(f"v_pk_mul_f32 v[16:17], v[{F+2}:{F+3}], v[{F+2}:{F+3}]")
        for j in range(2, 16):
            d = (10, 16)[j & 1]
            a(f"v_pk_fma_f32 v[{d}:{d+1}], v[{F+2*j}:{F+2*j+1}], v[{F+2*j}:{F+2*j+1}], v[{d}:{d+1}]")
        a("v_pk_add_f32 v[10:11], v[10:11], v[16:17]")
        a("v_add_f32 v10, v10, v11")
        xreduce(a, 10, 11)
        a(f"v_mul_f32 v10, {f2u(1.0/1024):#x}, v10")
        bf16round(a, 8)
        bf16round(a, 10)
        a(f"v_add_f32 v10, {f2u(1e-5):#x}, v10")
        bf16round(a, 10)
        a("v_sqrt_f32 v10, v10")
        a(f"v_and_b32 v5, 0x3b, v{L}")
        a("v_lshlrev_b32 v5, 25, v5")
        bf16round(a, 10)
        a("v_lshl_add_u32 v5, v3, 2, v5")
        a("v_rcp_f32 v9, v10")
        a(f"s_mov_b32 s{t0}, {WS_STAT}")
        a(f"s_mov_b32 s{t1}, {WS_STAT + 8192}")
        a(f"s_mov_b32 s{t2}, {WS_STAT + 16384}")
        a(f"v_mov_b32 v{T+9}, v8"); a(f"v_mov_b32 v{T+10}, v9"); a(f"v_mov_b32 v{T+11}, v10"); a(f"v_mov_b32 v{T+8}, v5")
        srd(a, 88, 4, 0, WS_STAT + 24576)
        a(f"buffer_store_dword v{T+9}, v{T+8}, s[88:91], s{t0} offen sc1")
        a(f"buffer_store_dword v{T+10}, v{T+8}, s[88:91], s{t1} offen sc1")
        a(f"buffer_store_dword v{T+11}, v{T+8}, s[88:91], s{t2} offen sc1")
        for i in range(4): a(f"v_mfma_f32_32x32x16_bf16 v[{16*i}:{16*i+15}], a[128:131], a[128:131], 0")
        if ffn:
            a(f"s_lshl_b32 s{t0}, s{sXcd}, 1")
            a(f"s_add_u32 s{t0}, s{t0}, s{sCt}")
            a(f"s_lshl_b32 s{t0}, s{t0}, 2")
            a(f"s_lshl_b32 s{t1}, s{sRb}, 7")
            a(f"s_add_u32 s{t0}, s{t0}, s{t1}")
            a(f"s_add_u32 s92, s{t0}, {WS_FL + FH}")
        else:
            a(f"s_lshl_b32 s{t0}, s{sXcd}, 1")
            a(f"s_add_u32 s{t0}, s{t0}, s{sCt}")
            a(f"s_sub_u32 s{sCt}, s{t0}, 2")
            a(f"s_lshl_b32 s{t0}, s{sCt}, 7")
            a(f"s_lshl_b32 s{t1}, s{sRb}, 2")
            a(f"s_add_u32 s92, s{t0}, s{t1}")
        a(f"s_lshr_b32 s{t0}, s{sSlot}, 2")
        a(f"s_lshl_b32 s{t0}, s{t0}, 7")
        a(f"s_lshl_b32 s93, s{sHead}, 2")
        a(f"s_add_u32 s93, s93, s{t0}")
        a(f"s_add_u32 s93, s93, {WS_FL + FO}")
        a(f"s_getreg_b32 s{sXcc}, hwreg(HW_REG_XCC_ID)")
        a(f"s_and_b32 s{sXcc}, s{sXcc}, 0xff")
        a(f"s_lshl_b32 s{t0}, s{sXcd}, 7")
        a(f"s_add_u32 s{t0}, s{t0}, {WS_FL + TX}")
        a(f"v_and_b32 v{vTa}, 31, v{L}")
        a(f"v_lshl_add_u32 v{vTa}, v{vTa}, 2, s{t0}")
        a(f"s_lshl_b32 s{t1}, s{sSlot}, 2")
        a(f"s_add_u32 s{t0}, s{t0}, s{t1}")
        a(f"s_cmp_lg_u32 s{sWave}, 0")
        a(f"s_cbranch_scc1 L_nf_{kind}")
        a(f"v_mov_b32 v{T}, 0")
        a(f"v_mov_b32 v{T+1}, s{sXcc}")
        a(f"buffer_store_dword v{T}, off, {WSR}, s92 sc1")
        a(f"buffer_store_dword v{T}, off, {WSR}, s93 sc1")
        a(f"buffer_store_dword v{T+1}, off, {WSR}, s{t0} sc1")
        a(f"L_nf_{kind}:")

        def read_list(step):
            buf = step & 1; so = (step & 3) * 16384
            rb = []
            for ft in range(NB):
                r = fr(buf, 8 + ft)
                if ffn and ft == 6: v = vWs1; off = 3072
                else:
                    v = vWo1 if ft & 1 else vWe1
                    off = (ft >> 1) * (512 if ffn else 1024)
                rb.append([f"ds_read_b64_tr_b16 a[{r+2*rd}:{r+2*rd+1}], v{v} offset:{so + rd*4096 + off}" for rd in range(2)])
            ra = [f"ds_read_b128 a[{fr(buf, tt)}:{fr(buf, tt)+3}], v{vAr + (step & 1)} offset:{tt*2048}" for tt in range(8)]
            l = rb[0] + ra
            for x in rb[1:]: l += x
            return l
        def mfmas(buf):
            l = []
            for ft in range(NB):
                for tt in (range(8) if ft % 2 == 0 else range(7, -1, -1)):
                    c = acc(tt, ft); w = fr(buf, 8 + ft); x = fr(buf, tt)
                    if (not ffn) and ft >= 4: w, x = x, w
                    l.append(f"v_mfma_f32_16x16x32_bf16 v[{c}:{c+3}], a[{w}:{w+3}], a[{x}:{x+3}], v[{c}:{c+3}]")
            return l
        ard_adv = [f"s_add_u32 s{sArd}, s{sArd}, 32768", f"s_cmp_eq_u32 s{sArd}, 98304", f"s_cselect_b32 s{sArd}, 0, s{sArd}"]
        ard_set = [f"v_add_u32 v{vAr}, s{sArd}, v{vArB}", f"v_xor_b32 v{vAr+1}, 64, v{vAr}"]
        a(f"s_waitcnt vmcnt({3*nW + 16 + 3})")
        a("s_barrier")
        a.extend(read_list(0))
        a(f"s_waitcnt vmcnt({nW + 8 + 3 + nW + 8}) lgkmcnt(0)")
        a("s_barrier")
        def step(k4, dma, vm, reads=True, tail=(), extra=(), cs=False):
            m = mfmas(k4 & 1)
            n = len(m)
            ex = list(extra)
            if reads:
                rl = read_list(k4 + 1)
                for i, x in enumerate(rl):
                    ex.append(((i * int(n * 0.72)) // len(rl), x))
                if k4 % 2 == 0:
                    ex.append((n - 8, ard_adv)); ex.append((n - 6, ard_set[0])); ex.append((n - 5, ard_set[1]))
            if dma:
                dl = wdma_list(k4) + (adma_list() if k4 & 1 else [])
                span = int(n * (0.8 if k4 & 1 else DMAF))
                for i, x in enumerate(dl):
                    ex.append(((i * span) // len(dl), x))
            ex.sort(key=lambda t: t[0])
            a.extend(weave(m, ex))
            if cs:
                a(f"s_cmp_lg_u32 s{sCs}, 0")
                a(f"s_cbranch_scc1 L_cs_{kind}{k4}")
                a(f"L_csr_{kind}{k4}:")
                o = [f"L_cs_{kind}{k4}:", f"s_cmp_eq_u32 s{sCs}, 2", f"s_cbranch_scc1 L_cs2_{kind}{k4}"]
                h0 = (NB + 1) // 2
                for half in range(2):
                    if half: o.append(f"L_cs2_{kind}{k4}:")
                    for i, ft in enumerate(range(h0) if half == 0 else range(h0, NB)):
                        w = fr(k4 & 1, 8 + ft)
                        o.append(f"v_mfma_f32_16x16x32_bf16 a[{128+4*i}:{131+4*i}], a[{w}:{w+3}], a[124:127], a[{128+4*i}:{131+4*i}]")
                    o.append(f"s_branch L_csr_{kind}{k4}")
                ool.extend(o)
            a.extend(tail)
            if vm is not None:
                a(f"s_waitcnt vmcnt({vm}) lgkmcnt(0)")
                a("s_barrier")
        stp(a, "g1loop")
        a(f"s_mov_b32 s{sCnt}, 7")
        a(".p2align 6")
        a(f"L_g1_{kind}_loop:")
        pf = [f"buffer_load_dwordx4 a[120:123], v{vL16}, {R(sOut)}, s{sPf} offen", f"s_add_u32 s{sPf}, s{sPf}, {MB}"]
        for k4 in range(4):
            vm = 2 * nW + (16 if k4 & 1 else 8) + (1 if (PFG1 and k4 < 3) else 0)
            ex = []
            if k4 == 0 and PFG1: ex.append((40, pf))
            if k4 == 2: ex.append((30, [f"s_cmp_eq_u32 s{sCnt}, 1", f"s_cselect_b32 s{sX+2}, 0, s{sX+2}"]))
            step(k4, True, vm, cs=True, extra=ex, tail=(wrap + [f"s_sub_u32 s{sCnt}, s{sCnt}, 1", f"s_bitcmp1_b32 0x66, s{sCnt}"]) if k4 == 3 else ())
        a(f"s_cbranch_scc1 L_hook_{kind}")
        a(f"L_hookr_{kind}:")
        a(f"s_cmp_lg_u32 s{sCnt}, 0")
        a(f"s_cbranch_scc1 L_g1_{kind}_loop")
        b = Asm(); sv = a.lines; a.lines = b.lines
        h0 = (NB + 1) // 2
        a(f"L_hook_{kind}:")
        a(f"s_cmp_lg_u32 s{sCnt}, 6")
        a(f"s_cbranch_scc1 L_hk5_{kind}")
        a(f"s_mov_b32 s{sCs}, 0")
        a(f"s_lshl_b32 s{t0}, s{sTile}, 13")
        a(f"s_lshl_b32 s{t1}, s{sRb}, 10")
        a(f"s_add_u32 s{t0}, s{t0}, s{t1}")
        a(f"s_mul_i32 s{t1}, s{sWc}, {NB*64}")
        a(f"s_add_u32 s{t0}, s{t0}, s{t1}")
        a(f"s_mul_i32 s{t1}, s{sWr}, {h0*64}")
        a(f"s_add_u32 s{t0}, s{t0}, s{t1}")
        a(f"s_add_u32 s{t0}, s{t0}, {WS_CS}")
        a(f"v_and_b32 v{T}, 15, v{L}")
        a(f"v_lshlrev_b32 v{T}, 27, v{T}")
        a(f"v_and_b32 v{T+1}, 48, v{L}")
        a(f"v_or_b32 v{T}, v{T}, v{T+1}")
        for i in range(h0):
            if i == NB - h0:
                a(f"s_cmp_lg_u32 s{sWr}, 0")
                a(f"s_cbranch_scc1 L_hk6b_{kind}")
            a(f"buffer_store_dwordx4 a[{128+4*i}:{131+4*i}], v{T}, {WSR}, s{t0} offen offset:{i*64} sc1")
        a(f"L_hk6b_{kind}:")
        a(f"s_branch L_hookr_{kind}")
        a(f"L_hk5_{kind}:")
        a(f"s_cmp_lg_u32 s{sCnt}, 5")
        a(f"s_cbranch_scc1 L_hk2_{kind}")
        a(f"v_mfma_f32_32x32x16_bf16 a[128:143], a[144:147], a[144:147], 0")
        srd(a, 88, pDbg, 0, 256)
        a(f"s_cmp_lg_u32 s{sWave}, 0")
        a(f"s_cbranch_scc1 L_hookr_{kind}")
        a(f"v_mov_b32 v{T}, 1")
        a(f"v_lshlrev_b32 v{T+1}, 8, v{L}")
        a(f"buffer_atomic_add v{T}, v{T+1}, s[88:91], 0 offen offset:252 sc1")
        a(f"s_branch L_hookr_{kind}")
        a(f"L_hk2_{kind}:")
        srd(a, 88, pDbg, 252, 4)
        a(f"s_cmp_lg_u32 s{sCnt}, 2")
        a(f"s_cbranch_scc1 L_hk1_{kind}")
        a(f"buffer_load_dword v{vFl}, off, s[88:91], 0 sc1")
        a(f"s_branch L_hookr_{kind}")
        a(f"L_hk1_{kind}:")
        a(f"s_movk_i32 s{t0}, 256")
        poll("off", True, "s[88:91]", f"s{t0}")
        a(f"s_lshl_b32 s{t0}, s{sWave}, 8")
        a(f"v_lshl_add_u32 v{T}, v{L}, 2, s{t0}")
        a(f"s_lshl_b32 s{t0}, s{sTile}, 13")
        a(f"s_add_u32 s{t0}, s{t0}, {WS_CS}")
        a(f"s_add_u32 s{t1}, s{t0}, 4096")
        for i in range(8):
            a(f"buffer_load_dword v{T+2+i}, v{T}, {WSR}, s{t0 if i < 4 else t1} offen offset:{(i&3)*1024} sc1")
        a(f"s_lshl_b32 s{t0}, s{sRb}, 10")
        a(f"s_add_u32 s{t0}, s{t0}, {WS_STAT}")
        a(f"s_add_u32 s{t1}, s{t0}, 8192")
        a(f"buffer_load_dword v{T+10}, v{T}, {WSR}, s{t0} offen sc1")
        a(f"buffer_load_dword v{T+11}, v{T}, {WSR}, s{t1} offen sc1")
        if not ffn: a(f"buffer_load_dword v{vFl}, v{vTa}, {WSR}, 0 offen sc1")
        a(f"s_branch L_hookr_{kind}")
        ool.extend([x.text for x in b.lines]); a.lines = sv
        adds = [f"v_add_f32 v{T+2+2*i}, v{T+2+2*i}, v{T+3+2*i}" for i in range(4)] + \
               [f"v_add_f32 v{T+2}, v{T+2}, v{T+4}", f"v_add_f32 v{T+6}, v{T+6}, v{T+8}", f"v_add_f32 v{T+2}, v{T+2}, v{T+6}",
                f"v_add_u32 v{T}, {LDS_SCR}, v{T}"]
        step(0, False, nW + 8, extra=[(2 + 3 * i, x) for i, x in enumerate(adds)])
        step(1, False, 8, extra=[(40, f"ds_write_b32 v{T}, v{T+2}"), (42, f"ds_write_b32 v{T}, v{T+10} offset:1024"), (44, f"ds_write_b32 v{T}, v{T+11} offset:2048")])
        e = Asm(); sv = a.lines; a.lines = e.lines
        if ffn:
            a(f"s_lshl_b32 s{t0}, s{sRb}, 14")
            a(f"s_lshl_b32 s{t1}, s{sWr}, 13")
            a(f"s_add_u32 s{t0}, s{t0}, s{t1}")
            a(f"v_add_u32 v{vO}, s{t0}, v{vL16}")
            a(f"v_add_u32 v{vO+1}, 4096, v{vO}")
            a(f"s_lshl_b32 s{t1}, s{sWc}, 9")
            a(f"s_add_u32 s{t0}, s{t0}, s{t1}")
            a(f"v_lshrrev_b32 v{vO+2}, 5, v{L}")
            a(f"v_lshl_add_u32 v{vO+2}, v{vO+2}, 8, s{t0}")
            a(f"v_and_b32 v{vO+3}, 15, v{L}")
            a(f"v_lshl_add_u32 v{vO+2}, v{vO+3}, 4, v{vO+2}")
            a(f"v_bfe_u32 v{vO+3}, v{L}, 4, 1")
            a(f"v_lshl_add_u32 v{vO+2}, v{vO+3}, 3, v{vO+2}")
            a(f"v_add_u32 v{vO+3}, 4096, v{vO+2}")
            a(f"s_mul_i32 s{t0}, s{sXcd}, 14")
            a(f"s_mul_i32 s{t1}, s{sCt}, 6")
            a(f"s_mul_i32 s{t2}, s{sWc}, 3")
            a(f"s_add_u32 s{t1}, s{t1}, s{t2}")
            a(f"s_add_u32 s{t1}, s{t1}, s{t0}")
            a(f"s_add_u32 s{t1}, s{t1}, {32 + WS_A2 // 131072}")
            a(f"s_lshl_b32 s{t1}, s{t1}, 17")
            a(f"s_add_u32 s{t2}, s{t0}, s{sCt}")
            a(f"s_add_u32 s{t2}, s{t2}, {44 + WS_A2 // 131072}")
            a(f"s_lshl_b32 s{t2}, s{t2}, 17")
            a(f"s_add_u32 s{t3}, s{t1}, 131072")
            a(f"s_add_u32 s{t4}, s{t1}, 262144")
        else:
            a(f"s_lshl_b32 s{t0}, s{sRb}, 3")
            a(f"s_lshl_b32 s{t1}, s{sWr}, 2")
            a(f"s_add_u32 s{t0}, s{t0}, s{t1}")
            a(f"s_lshl_b32 s{t0}, s{t0}, 11")
            a(f"s_lshl_b32 s{t3}, s{sCt}, 1")
            a(f"s_add_u32 s{t3}, s{t3}, s{sWc}")
            a(f"s_lshl_b32 s{t3}, s{t3}, 17")
            a(f"s_add_u32 s{t1}, s{t3}, s{t0}")
            a(f"s_lshl_b32 s{t2}, s{t1}, 1")
            a(f"s_add_u32 s{t2}, s{t2}, {WS_KV}")
            a(f"s_add_u32 s{t1}, s{t1}, {WS_Q}")
            a(f"v_lshrrev_b32 v{vO+2}, 4, v{L}")
            a(f"v_lshlrev_b32 v{vO+2}, 9, v{vO+2}")
            a(f"v_and_b32 v{vO+3}, 15, v{L}")
            a(f"v_lshl_add_u32 v{vO}, v{vO+3}, 4, v{vO+2}")
            a(f"v_bfe_u32 v{vO+3}, v{L}, 2, 2")
            a(f"v_lshl_add_u32 v{vO+2}, v{vO+3}, 7, v{vO+2}")
            a(f"v_and_b32 v{vO+3}, 3, v{L}")
            a(f"v_lshl_add_u32 v{vO+1}, v{vO+3}, 4, v{vO+2}")
            a(f"s_mov_b32 s{t4}, {f2u(QSCALE):#x}")
        a(f"s_mul_i32 s{t5}, s{sWc}, {NB*64}")
        a(f"s_add_u32 s{t5}, s{t5}, {LDS_SCR}")
        a(f"v_and_b32 v248, 48, v{L}")
        a(f"v_add_u32 v248, s{t5}, v248")
        a(f"s_lshl_b32 s{t0}, s{sWr}, 9")
        a(f"s_add_u32 s{t0}, s{t0}, {LDS_SCR + 1024}")
        a(f"v_and_b32 v249, 15, v{L}")
        a(f"v_lshl_add_u32 v249, v249, 2, s{t0}")
        if not ffn:
            a(f"v_and_b32 v222, 15, v{L}")
            a(f"v_lshl_add_u32 v222, v222, 2, s{t5}")
            a(f"v_and_b32 v223, 48, v{L}")
            a(f"v_add_u32 v223, s{t0}, v223")
        el = [x.text for x in e.lines]; a.lines = sv
        n = 8 * NB
        step(2, False, 0, extra=[(2 + (i * (n - 12)) // len(el), x) for i, x in enumerate(el)])
        rds = []
        for tt in range(8):
            rds.append(f"ds_read_b32 v{ST+2*tt}, v249 offset:{tt*64}")
            if not ffn: rds.append(f"ds_read_b32 v{ST+2*tt+1}, v249 offset:{1024 + tt*64}")
        if ffn:
            rds.append(f"ds_read_b128 v[244:247], v248 offset:{6*64}")
            rds.append(f"buffer_load_dword v{vFl}, v{vFa}, {WSR}, 0 offen sc1") if False else None
        else:
            for ft in range(4): rds.append(f"ds_read_b128 v[{192+4*ft}:{195+4*ft}], v248 offset:{ft*64}")
            for vt in range(2): rds.append(f"ds_read_b32 v{208+2*vt}, v222 offset:{(4+vt)*64}")
        step(3, False, None, reads=False, extra=[(2 + 2 * i, x) for i, x in enumerate(rds)])
        stp(a, "g1end")
        BC = "op_sel_hi:[1,0,1]"
        if ffn:
            a(f"buffer_load_dword v{vFl}, v{vFa}, {WSR}, 0 offen sc1")
            a(f"s_mov_b32 s{sH1}, s{t1}")
            a(f"s_mov_b32 s{sH2}, s{t2}")
            a(f"s_mov_b32 s{sPub}, s92")
            srd(a, sOut, 4, 0, WS_END)
            a("s_waitcnt lgkmcnt(0)")
            nst = 0
            for u in range(8):
                c = acc(u, 6)
                for h in range(2):
                    a(f"v_pk_fma_f32 v[{c+2*h}:{c+2*h+1}], v[{244+2*h}:{245+2*h}], v[{ST+2*u}:{ST+2*u+1}], v[{c+2*h}:{c+2*h+1}] {BC}")
                a(f"v_cvt_pk_bf16_f32 v{c}, v{c}, v{c+1}")
                a(f"v_cvt_pk_bf16_f32 v{c+1}, v{c+2}, v{c+3}")
                a(f"v_pk_max_i16 v{c}, v{c}, 0")
                a(f"v_pk_max_i16 v{c+1}, v{c+1}, 0")
                a.extend(hstore(u, f"v[{c}:{c+1}]")); nst += 1
                if u == 0:
                    pass
            CSR = [194, 198, 202, 206, 210, 214]
            a("s_nop 0")
            groups = at_load_groups()
            nld = 0; polled = False
            for u in range(8, 32):
                p, tt = divmod(u - 8, 8)
                if tt == 0:
                    a(f"ds_read_b128 v[244:247], v248 offset:{2*p*64}")
                    a(f"ds_read_b64 v[194:195], v248 offset:{(2*p+1)*64}")
                    a(f"ds_read_b64 v[198:199], v248 offset:{(2*p+1)*64+8}")
                    a("s_waitcnt lgkmcnt(0)")
                c0, c1 = acc(tt, 2 * p), acc(tt, 2 * p + 1)
                for c, cs in ((c0, (244, 246)), (c1, (194, 198))):
                    for h in range(2):
                        a(f"v_pk_fma_f32 v[{c+2*h}:{c+2*h+1}], v[{cs[h]}:{cs[h]+1}], v[{ST+2*tt}:{ST+2*tt+1}], v[{c+2*h}:{c+2*h+1}] {BC}")
                a(f"v_cvt_pk_bf16_f32 v{c0}, v{c0}, v{c0+1}")
                a(f"v_cvt_pk_bf16_f32 v{c0+1}, v{c0+2}, v{c0+3}")
                a(f"v_cvt_pk_bf16_f32 v{c0+2}, v{c1}, v{c1+1}")
                a(f"v_cvt_pk_bf16_f32 v{c0+3}, v{c1+2}, v{c1+3}")
                for e_ in range(4): a(f"v_pk_max_i16 v{c1+e_}, v{c0+e_}, 0")
                if u in direct:
                    a.extend(hstore(u, f"v[{c1}:{c1+3}]")); nst += 1; nld += 1 if polled and not groups[9:] == groups[9:] else 0
                    if polled: after.append("st")
                else:
                    for e_ in range(4): a(f"v_accvgpr_write_b32 a{4*parked.index(u)+e_}, v{c1+e_}")
                if u == EPOLL:
                    a(f"s_waitcnt vmcnt({nst})")
                    poll(f"v{vFa}", True)
                    stp(a, "e4")
                    polled = True; after = []
                elif polled:
                    for _ in range(2):
                        if groups:
                            a.extend(groups.pop(0)); after.append("ld")
            while groups:
                a.extend(groups.pop(0)); after.append("ld")
            idx = [i for i, z in enumerate(after) if z == "ld"][11]
            a(f"s_waitcnt vmcnt({len(after) - 1 - idx})")
            a("s_branch L_at_entry")
        else:
            QSC = "" if QPLAIN else SC
            a(f"s_mov_b32 s{sPub}, 0")
            a("s_waitcnt lgkmcnt(0)")
            a("s_nop 4")
            for b_ in range(4):
                for e_ in range(2):
                    a(f"ds_read_b128 v[{212+4*e_}:{215+4*e_}], v223 offset:{(2*b_+e_)*64}")
                a(f"ds_read_b128 v[244:247], v223 offset:{1024 + (2*b_)*64}")
                a(f"ds_read_b64 v[220:221], v223 offset:{1024 + (2*b_+1)*64}")
                a(f"ds_read_b64 v[242:243], v223 offset:{1024 + (2*b_+1)*64 + 8}")
                for X in (1, 0):
                    for h in range(2):
                        tt = 2 * b_ + h
                        st_ = f"v[{ST+2*tt}:{ST+2*tt+1}]"
                        if X == 0: a(f"v_mul_f32 v{ST+2*tt+1}, s{t4}, v{ST+2*tt+1}")
                        c0 = acc(tt, 2 * X)
                        for e_ in range(2):
                            c = acc(tt, 2 * X + e_); cs = 192 + 4 * (2 * X + e_)
                            for h2 in range(2):
                                a(f"v_pk_fma_f32 v[{c+2*h2}:{c+2*h2+1}], v[{cs+2*h2}:{cs+2*h2+1}], {st_}, v[{c+2*h2}:{c+2*h2+1}] {BC}")
                            for h2 in range(2):
                                a(f"v_pk_mul_f32 v[{c+2*h2}:{c+2*h2+1}], v[{c+2*h2}:{c+2*h2+1}], {st_} op_sel:[0,1]")
                        c1 = acc(tt, 2 * X + 1)
                        a(f"v_cvt_pk_bf16_f32 v{c0}, v{c0}, v{c0+1}")
                        a(f"v_cvt_pk_bf16_f32 v{c0+1}, v{c0+2}, v{c0+3}")
                        a(f"v_cvt_pk_bf16_f32 v{c0+2}, v{c1}, v{c1+1}")
                        a(f"v_cvt_pk_bf16_f32 v{c0+3}, v{c1+2}, v{c1+3}")
                        if X: a(f"buffer_store_dwordx4 v[{c0}:{c0+3}], v{vO+1}, {WSR}, s{t2} offen offset:{h*64} {QSC}")
                        else: a(f"buffer_store_dwordx4 v[{c0}:{c0+3}], v{vO}, {WSR}, s{t1} offen offset:{h*256} {QSC}")
                a("s_waitcnt lgkmcnt(0)")
                for vt in range(2):
                    c0 = acc(2 * b_, 4 + vt)
                    for e_ in range(2):
                        c = acc(2 * b_ + e_, 4 + vt)
                        rs = ((244, 246), (220, 242))[e_]
                        for h2 in range(2):
                            a(f"v_pk_fma_f32 v[{c+2*h2}:{c+2*h2+1}], v[{212+4*e_+2*h2}:{213+4*e_+2*h2}], v[{208+2*vt}:{209+2*vt}], v[{c+2*h2}:{c+2*h2+1}] {BC}")
                        for h2 in range(2):
                            a(f"v_pk_mul_f32 v[{c+2*h2}:{c+2*h2+1}], v[{c+2*h2}:{c+2*h2+1}], v[{rs[h2]}:{rs[h2]+1}]")
                    c1 = acc(2 * b_ + 1, 4 + vt)
                    a(f"v_cvt_pk_bf16_f32 v{c0}, v{c0}, v{c0+1}")
                    a(f"v_cvt_pk_bf16_f32 v{c0+1}, v{c0+2}, v{c0+3}")
                    a(f"v_cvt_pk_bf16_f32 v{c0+2}, v{c1}, v{c1+1}")
                    a(f"v_cvt_pk_bf16_f32 v{c0+3}, v{c1+2}, v{c1+3}")
                    a(f"buffer_store_dwordx4 v[{c0}:{c0+3}], v{vO}, {WSR}, s{t2} offen offset:{2048 + vt*256} {QSC}")
                a(f"s_add_u32 s{t1}, s{t1}, 2048")
                a(f"s_add_u32 s{t2}, s{t2}, 4096")
            a("s_waitcnt vmcnt(0)")
            a("s_barrier")
            if QPLAIN:
                a(f"v_cmp_ne_u32 vcc, s{sXcc}, v{vFl}")
                a(f"s_cmp_lg_u32 s{sWave}, 0")
                a("s_cbranch_scc1 L_q_local")
                a("s_cbranch_vccz L_q_local")
                a("buffer_wbl2 sc1")
                a("s_waitcnt vmcnt(0)")
                a("L_q_local:")
            publish(92, T)
            poll(f"v{vFa}", False)
            stp(a, "e4")
            for g_ in at_load_groups(): a.extend(g_)
            srd(a, sOut, 4, 0, 0)
            for r in (sH1, sH2, t3, t4): a(f"s_mov_b32 s{r}, 0")
            a("s_waitcnt vmcnt(9)")
    g1("ffn")
    a("L_g1_qkv:")
    g1("qkv")

    a("L_at_entry:")
    stp(a, "atentry")
    a("s_barrier")
    a(f"v_mov_b32 v{vCur}, v{vL16}")
    def rdK(t, tl):
        b = Kf[t & 1]
        return [f"ds_read_b128 v[{b}:{b+3}], v{vCur} offset:{tl*4096}", f"ds_read_b128 v[{b+4}:{b+7}], v{vCur} offset:{tl*4096+1024}"]
    def rdV(t, tl):
        b = Vf[t & 1]
        return [f"ds_read_b128 v[{b}:{b+3}], v{vCur} offset:{tl*4096+2048}", f"ds_read_b128 v[{b+4}:{b+7}], v{vCur} offset:{tl*4096+3072}"]
    def qk(x, t, c0=None):
        s = S[x]; k = Kf[t & 1]; q = Q[x]
        c = f"v[{NM[x]}:{NM[x]+15}]" if c0 is None else c0
        return [f"v_mfma_f32_32x32x16_bf16 v[{s}:{s+15}], v[{k}:{k+3}], v[{q}:{q+3}], {c}",
                f"v_mfma_f32_32x32x16_bf16 v[{s}:{s+15}], v[{k+4}:{k+7}], v[{q+4}:{q+7}], v[{s}:{s+15}]"]
    def PV(x, t, h):
        v = Vf[t & 1]
        return f"v_smfmac_f32_32x32x32_bf16 v[{O[x]}:{O[x]+15}], v[{v+4*h}:{v+4*h+3}], v[{D[x]+8*h}:{D[x]+8*h+7}], v{IDX}"
    def LS(x, h):
        return f"v_smfmac_f32_16x16x64_bf16 v[{Lr[x]}:{Lr[x]+3}], v[{ONE}:{ONE+3}], v[{D[x]+8*h}:{D[x]+8*h+7}], v{IDX}"
    a.extend(rdK(0, 0))
    a.extend(rdV(0, 0))
    for x in range(2): a(f"v_mfma_f32_32x32x16_bf16 v[{O[x]}:{O[x]+15}], a[128:131], a[128:131], 0")
    a(f"v_and_b32 v{U}, 7, v{L}")
    a(f"v_cmp_eq_u32 vcc, 0, v{U}")
    a(f"v_cmp_eq_u32 s[88:89], 4, v{U}")
    a(f"v_mov_b32 v{U+2}, 0x3f803f80")
    a(f"v_mov_b32 v{IDX}, 0xdddddddd")
    a(f"v_cndmask_b32 v{ONE}, 0, v{U+2}, vcc")
    a(f"v_cndmask_b32 v{ONE+2}, 0, v{U+2}, s[88:89]")
    a(f"v_mov_b32 v{ONE+1}, v{ONE}")
    a(f"v_mov_b32 v{ONE+3}, v{ONE+2}")
    a(f"s_add_u32 s{sMb}, s{sM0k}, 65536")
    a(f"s_mov_b32 s{sRing}, 0")
    a("s_waitcnt lgkmcnt(0)")
    a.extend(qk(0, 0, "0"))
    a.extend(qk(1, 0, "0"))
    for i in range(0, 8, 2): a(f"v_mov_b64 v[{Lr[0]+i}:{Lr[0]+i+1}], 0")
    for i in range(0, 8, 2): a(f"v_mov_b64 v[{D[1]+8+i}:{D[1]+9+i}], 0")
    for i in range(0, 4, 2): a(f"v_mov_b64 v[{Vf[1]+4+i}:{Vf[1]+5+i}], 0")
    a(f"s_lshr_b32 s{t0}, s{sXcd}, 1")
    a(f"s_lshl_b32 s{t0}, s{t0}, 2")
    a(f"s_and_b32 s{t1}, s{sSlot}, 3")
    a(f"s_add_u32 s{sRb2}, s{t0}, s{t1}")
    a(f"s_lshr_b32 s{t0}, s{sRb2}, 1")
    a(f"s_lshl_b32 s{t0}, s{t0}, 7")
    a(f"s_add_u32 s{t0}, s{t0}, {WS_FL + FH}")
    a(f"v_and_b32 v{U}, 15, v{L}")
    a(f"v_lshl_add_u32 v{vFa2}, v{U}, 2, s{t0}")
    srd(a, sW, pW2, 0, 3584 * 2048)
    srd(a, sX, pWO, 0, 1024 * 2048)
    a(f"s_and_b32 s{sPf}, s{sPf}, {MB - 1}")
    pfl = []
    for q in range(0 if PFG1 else 7):
        pfl.append([f"buffer_load_dwordx4 v[{U+4}:{U+7}], v{vL16}, {R(sW)}, s{sPf} offen",
                    f"s_add_u32 s{sPf}, s{sPf}, {MB}" if q < 6 else f"s_sub_u32 s{sPf}, s{sPf}, {6*MB}"])
    for q in range(2):
        pfl.append([f"buffer_load_dwordx4 v[{U+4}:{U+7}], v{vL16}, {R(sX)}, s{sPf} offen", f"s_add_u32 s{sPf}, s{sPf}, {MB}"])
    def g2_setup():
        a(f"s_and_b32 s{t0}, s{sXcd}, 1")
        a(f"s_lshl_b32 s{t0}, s{t0}, 3")
        a(f"s_lshr_b32 s{t1}, s{sSlot}, 2")
        a(f"s_add_u32 s{sCb}, s{t0}, s{t1}")
        a(f"s_lshl_b32 s{t0}, s{sRb2}, 13")
        a(f"v_add_u32 v{vA}, s{t0}, v{vL16}")
        a(f"v_add_u32 v{vA+1}, 4096, v{vA}")
        a(f"v_lshrrev_b32 v{U}, 5, v{L}")
        a(f"v_bfe_u32 v{U+1}, v{L}, 4, 1")
        a(f"v_bfe_u32 v{U+2}, v{L}, 2, 2")
        a(f"v_and_b32 v{U+3}, 3, v{L}")
        a(f"v_lshl_add_u32 v{vW}, v{U+1}, 2, v{U+2}")
        a(f"v_lshlrev_b32 v{vW}, 11, v{vW}")
        a(f"v_lshlrev_b32 v{vW+1}, 1, v{U+1}")
        a(f"v_xor_b32 v{vW+1}, v{vW+1}, v{U+3}")
        a(f"v_lshl_add_u32 v{vW}, v{vW+1}, 4, v{vW}")
        a(f"v_lshl_add_u32 v{vW}, v{U}, 6, v{vW}")
        a(f"s_lshl_b32 s{t0}, s{sCb}, 7")
        a(f"v_add_u32 v{vW}, s{t0}, v{vW}")
        for pc in range(1, 4): a(f"v_add_u32 v{vW+pc}, {pc*(16384-1024)}, v{vW}")
        a(f"s_lshl_b32 s{sM0g}, s{sWave}, 14")
        a(f"s_add_u32 s{sM0g}, s{sM0g}, {LDS_W1}")
        a(f"v_lshl_add_u32 v{vWe}, v{U}, 10, s{sM0g}")
        a(f"v_lshl_add_u32 v{vWe}, v{U+1}, 8, v{vWe}")
        a(f"v_lshl_add_u32 v{vWe}, v{U+2}, 6, v{vWe}")
        a(f"v_lshl_add_u32 v{vWe}, v{U+1}, 5, v{vWe}")
        a(f"v_lshl_add_u32 v{vWe}, v{U+3}, 3, v{vWe}")
        a(f"v_xor_b32 v{vWo}, 32, v{vWe}")
        a(f"s_lshl_b32 s{t1}, s{sRb2}, 7")
        a(f"s_lshl_b32 s{t2}, s{sWave}, 5")
        a(f"s_add_u32 s{t1}, s{t1}, s{t2}")
        a(f"s_lshl_b32 s{t2}, s{t1}, 2")
        a(f"s_add_u32 s{t2}, s{t2}, {WS_STAT + 8192}")
        a(f"s_lshl_b32 s{t1}, s{t1}, 11")
        a(f"s_add_u32 s{t1}, s{t1}, s{t0}")
        a(f"v_and_b32 v{U}, 15, v{L}")
        a(f"v_lshl_add_u32 v{vX}, v{U}, 11, s{t1}")
        a(f"v_lshrrev_b32 v{U+1}, 4, v{L}")
        a(f"v_lshl_add_u32 v{vX}, v{U+1}, 3, v{vX}")
        a(f"v_lshlrev_b32 v{U}, 2, v{U}")
        a(f"s_and_b32 s{t0}, s{sSlot}, 28")
        a(f"s_add_u32 s{t0}, s{t0}, s{sWave}")
        a(f"s_lshl_b32 s{t0}, s{t0}, 8")
        a(f"s_add_u32 s{t0}, s{t0}, {WS_STAT + 16384}")
        a(f"v_and_b32 v{U+1}, 31, v{L}")
        a(f"v_lshlrev_b32 v{U+1}, 2, v{U+1}")
        for x in range(2):
            a(f"buffer_load_dword v{vSig+x}, v{U+1}, {WSR}, s{t0} offen offset:{x*128} sc1")
            a(f"buffer_load_dword v{vRs2+x}, v{U}, {WSR}, s{t2} offen offset:{x*64} sc1")
        a(f"s_lshl_b32 s{sKA}, s{sWave}, 17")
        a(f"s_add_u32 s{sKA}, s{sKA}, {WS_A2 + 32*131072}")
        a(f"s_lshl_b32 s{sKW}, s{sWave}, 16")
    for x in range(2):
        s0 = S[x]
        a(f"v_max3_f32 v{U}, v{s0}, v{s0+1}, v{s0+2}")
        for i in range(3, 15, 2): a(f"v_max3_f32 v{U}, v{U}, v{s0+i}, v{s0+i+1}")
        a(f"v_max_f32 v{U}, v{U}, v{s0+15}")
        a(f"v_mov_b32 v{U+2}, v{U}")
        a("s_nop 1")
        a(f"v_permlane32_swap_b32 v{U}, v{U+2}")
        a(f"v_max_f32 v{U}, v{U}, v{U+2}")
        a(f"v_sub_f32 v{NM[x]}, 0, v{U}")
        a(f"v_sub_f32 v{NM[x]+1}, 0, v{U}")
        for i in range(2, 16, 2): a(f"v_mov_b64 v[{NM[x]+i}:{NM[x]+i+1}], v[{NM[x]}:{NM[x]+1}]")
        if x == 0:
            for i in range(0, 16, 2): a(f"v_pk_add_f32 v[{s0+i}:{s0+i+1}], v[{s0+i}:{s0+i+1}], v[{NM[x]}:{NM[x]+1}]")
    a(f"s_mov_b32 m0, s{sMb}")
    a("s_nop 0")
    stp(a, "atloop")

    def acc2(tt, ft): return 128 + (tt * 4 + ft) * 4
    def ab(buf, tt): return buf * 32 + tt * 4
    def gm(v, tt, ft):
        c = acc2(tt, ft); w = WF[v & 1] + ft * 4; x = ab(v, tt)
        return f"v_mfma_f32_16x16x32_bf16 a[{c}:{c+3}], v[{w}:{w+3}], a[{x}:{x+3}], a[{c}:{c+3}]"
    def aload(buf, tt):
        r = ab(buf, tt)
        return f"buffer_load_dwordx4 a[{r}:{r+3}], v{vA + (tt>>2)}, {WSR}, s{sKA} offen offset:{(tt&3)*1024} {SC}"
    def wdma(pc):
        return f"buffer_load_dwordx4 v{vW+pc}, {R(sW)}, s{sKW} offen offset:{pc*1024} lds"
    def wread(slot, buf, ft):
        r = WF[buf] + ft * 4
        return [f"ds_read_b64_tr_b16 v[{r+2*rd}:{r+2*rd+1}], v{vWo if ft&1 else vWe} offset:{slot*4096 + rd*2048 + (ft>>1)*512}" for rd in range(2)]
    W0 = "s_waitcnt lgkmcnt(0)"
    def phase(x, t, doqk=True, f=None):
        y = 1 - x
        f = f or {}
        E = lambda i: f"v_exp_f32 v{D[x]+i}, v{S[x]+i}"
        q = qk(y, t + x) if doqk else [None, None]
        g = lambda k: f.get(k, [])
        seq = [q[0]] + g(0) + [E(0), E(1), E(2), q[1]] + g(1) + [E(3), E(4), E(5), PV(y, t - 1 + x, 1)] + g(2) + [E(6), E(7), E(8),
               LS(y, 1)] + g(3) + [E(9), E(10), PV(x, t, 0)] + g(4) + [E(11), E(12), E(13), LS(x, 0)] + g(5) + [E(14), E(15)]
        a.extend([z for z in seq if z])
    ring_adv = [f"s_add_u32 s{sMb}, s{sRing}, s{sM0k}", f"s_add_u32 s{sRing}, s{sRing}, 32768", f"s_cmp_eq_u32 s{sRing}, 98304",
                f"s_cselect_b32 s{sRing}, 0, s{sRing}"]
    kv_sel = [f"s_cmp_gt_u32 s{sCntA}, 5", f"s_cselect_b32 s{sKV+2}, 0, {SZ_KV}"]
    hq = list(parked)
    def it_pure(c, j, lastpure):
        t = j + 1
        k = rdK(t + 1, j); v = rdV(t + 1, j)
        fa = {0: [k[0]], 1: [k[1]], 5: [W0]}
        fb = {0: [v[0]], 1: [v[1]], 5: [W0]}
        if j == 0:
            fa[2] = [f"s_mov_b32 m0, s{sMb}"]
            if c > 5: fa[3] = [f"s_mov_b32 s{sKV+2}, 0"]
        if j == 4:
            fa[2] = [f"s_add_u32 m0, s{sMb}, 16384", f"s_add_u32 s{sSo}, s{sSo}, 16384"]
        fa[4] = [kvdma(j)]
        if j == 7:
            fa[2] = ring_adv[0:2]; fa[3] = ring_adv[2:4]
            fb[2] = [f"s_add_u32 s{sSo}, s{sSo}, 16384"]
        for f in (fa, fb):
            for sl in (2, 3)[:SPP]:
                if hq:
                    u = hq.pop(0); r = 4 * parked.index(u)
                    f[sl] = f.get(sl, []) + hstore(u, f"a[{r}:{r+3}]")
        if pfl and not hq: fb[4] = pfl.pop(0)
        if lastpure and j == POLLAT:
            fb[4] = fb.get(4, []) + [f"buffer_load_dword v{vFl}, v{vFa2}, {WSR}, 0 offen sc1"]
        return fa, fb, t
    def kv_m0(j):
        return f"s_mov_b32 m0, s{sMb}" if j < 4 else f"s_add_u32 m0, s{sMb}, 16384"
    def trip_sa(j, x):
        l = []
        if j == 0 and x == 0: l += kv_sel
        if j == 3 and x == 1: l += [f"s_add_u32 s{sSo}, s{sSo}, 16384"]
        if j == 7 and x == 1: l += [f"s_add_u32 s{sSo}, s{sSo}, 16384"] + ring_adv
        return l
    def kstep_adv():
        return [f"s_add_u32 s{sKA}, s{sKA}, {4*131072}", f"s_add_u32 s{sKW}, s{sKW}, {4*65536}"]
    def it_load(j):
        t = j + 1; v = j >> 1
        for x in range(2):
            ph = 2 * (j & 1) + x
            kv = rdK(t + 1, j) if x == 0 else rdV(t + 1, j)
            tr = wread(0, 0, ph) if v == 3 else []
            sa = trip_sa(j, x)
            wait = "s_waitcnt vmcnt(28) lgkmcnt(0)" if ph == 3 else W0
            f = {0: [kv[0], kv[1]], 1: sa[0:2] + tr, 2: [f"s_add_u32 m0, s{sM0g}, {v*4096}", aload(v, 2 * ph)], 3: sa[2:] + [wdma(ph)],
                 4: ([kv_m0(j)] if x == 0 else []), 5: [wait, aload(v, 2 * ph + 1)] + ([kvdma(j)] if x == 0 else [])}
            if ph == 3: f[5] += kstep_adv()
            if j == 7 and x == 1:
                f[4] = [f"s_add_u32 s{sCntA}, s{sCntA}, 1"]
                f[5] += ["s_barrier", f"v_add_u32 v{vCur}, s{sRing}, v{vL16}"]
            phase(x, t, f=f)
    def it_comb(j):
        t = j + 1; v = j >> 1
        for x in range(2):
            y = 1 - x
            ph = 2 * (j & 1) + x
            E = lambda i: f"v_exp_f32 v{D[x]+i}, v{S[x]+i}"
            q = qk(y, t + x)
            kv = rdK(t + 1, j) if x == 0 else rdV(t + 1, j)
            tr = wread((v + 1) & 3, (v + 1) & 1, ph)
            Gm = [gm(v, 2 * ph, ft) for ft in range(4)] + [gm(v, 2 * ph + 1, ft) for ft in range(3, -1, -1)]
            sa = trip_sa(j, x) + [None] * 5
            wait = "s_waitcnt vmcnt(28) lgkmcnt(0)" if ph == 3 else W0
            last = (j == 7 and x == 1)
            seq = [Gm[0], kv[0], kv[1], q[0], sa[0], E(0), E(1), E(2), Gm[1], sa[1], E(3), q[1], sa[2], E(4), E(5), E(6), Gm[2], sa[3], E(7),
                   PV(y, t - 1 + x, 1), tr[0], E(8), E(9), LS(y, 1), tr[1], Gm[3], sa[4], E(10), PV(x, t, 0), aload(v, 2 * ph), E(11), E(12),
                   Gm[4], f"s_add_u32 m0, s{sM0g}, {v*4096}", E(13), LS(x, 0), wdma(ph), Gm[5],
                   kv_m0(j) if x == 0 else (f"s_add_u32 s{sCntA}, s{sCntA}, 1" if last else None), E(14), Gm[6], wait,
                   "s_barrier" if last else None, E(15), Gm[7], aload(v, 2 * ph + 1), kvdma(j) if x == 0 else None]
            if ph == 3: seq += kstep_adv()
            if last: seq += [f"v_add_u32 v{vCur}, s{sRing}, v{vL16}", f"s_cmp_lt_u32 s{sCntA}, 8"]
            a.extend([z for z in seq if z])

    NPURE = 7 - NC
    seqs = []
    for c in range(NPURE):
        for j in range(1 if c == 0 else 0, 8):
            seqs.append((c, j) + it_pure(c, j, c == NPURE - 1))
    assert not pfl and not hq
    log = []
    def younger(pred):
        idx = [i for i, tag in enumerate(log) if pred(tag)]
        return len(log) - 1 - idx[-1] if idx else len(log)
    for (c, j, fa, fb, t) in seqs:
        for f in (fa, fb):
            for sl in range(5):
                for z in f.get(sl, []):
                    if z.startswith("buffer_"):
                        log.append("kv%d" % c if " lds" in z else ("st" if "store" in z else ("poll" if "dword " in z else "pf")))
        need = 63
        pub = (8 * c + j == PUBAT)
        if j == 7: need = min(need, younger(lambda g: g == "kv%d" % (c - 1)))
        if pub: need = min(need, younger(lambda g: g == "st"))
        if j == 7 or pub:
            fb[5] = [f"s_waitcnt vmcnt({need}) lgkmcnt(0)", "s_barrier"]
            if j == 7: fb[5].append(f"v_add_u32 v{vCur}, s{sRing}, v{vL16}")
        phase(0, t, f=fa)
        phase(1, t, f=fb)
        if pub:
            assert log.count("st") == len(parked)
            a(f"s_cmp_eq_u32 s{sPub}, 0")
            a("s_cbranch_scc1 L_at_np")
            publish(sPub, U)
            a("L_at_np:")
    stp(a, "pureend")
    a(f"s_mov_b32 s{sCntA}, {NPURE}")
    g2_setup()
    a(f"s_waitcnt vmcnt({younger(lambda g: g == 'poll') + 4})")
    poll(f"v{vFa2}", True)
    stp(a, "fhok")
    for j in range(8): it_load(j)
    if NC:
        a(".p2align 6")
        a("L_cb_loop:")
        for j in range(8): it_comb(j)
        a("s_cbranch_scc1 L_cb_loop")
    phase(0, 63)
    phase(1, 63, doqk=False)
    a("s_nop 1")
    a(PV(1, 63, 1)); a(LS(1, 1))
    stp(a, "atend")
    a(f"v_bfe_u32 v{U+2}, v{L}, 4, 1")
    a(f"v_lshlrev_b32 v{U+2}, 10, v{U+2}")
    a(f"v_lshrrev_b32 v{U+3}, 5, v{L}")
    a(f"v_lshl_add_u32 v{U+2}, v{U+3}, 8, v{U+2}")
    a(f"v_and_b32 v{U+3}, 15, v{L}")
    a(f"v_lshl_add_u32 v{U+2}, v{U+3}, 4, v{U+2}")
    a(f"s_lshr_b32 s{t0}, s{sRb2}, 1")
    a(f"s_lshl_b32 s{t0}, s{t0}, 7")
    a(f"s_add_u32 s{t0}, s{t0}, {WS_FL + FO}")
    a(f"v_and_b32 v{U+3}, 31, v{L}")
    a(f"v_lshl_add_u32 v{vFa2}, v{U+3}, 2, s{t0}")
    a(f"s_add_u32 s{sQO}, s{sQO}, {WS_A2 - WS_Q}")
    a(f"s_mov_b32 s{t0}, {f2u(2.0**40):#x}")
    a(f"v_pk_mul_f32 v[{U}:{U+1}], v[{O[0]}:{O[0]+1}], 0 op_sel_hi:[1,0]")
    for i in range(2, 32, 2):
        a(f"v_pk_fma_f32 v[{U}:{U+1}], v[{O[0]+i}:{O[0]+i+1}], 0, v[{U}:{U+1}] op_sel_hi:[1,0,1]")
    a(f"v_add_f32 v{U}, v{U}, v{U+1}")
    a(f"v_add3_u32 v{U+1}, 0, 0, 0") if False else None
    a(f"v_add_f32 v{U+1}, v{Lr[0]}, v{Lr[1]}")
    a(f"v_add_f32 v{U}, v{U}, v{U+1}")
    a(f"v_cmp_ngt_f32 vcc, s{t0}, v{U}")
    a("s_nop 1")
    a("s_cbranch_vccnz L_at_slow")
    a("L_at_fin:")
    for x in range(2):
        a(f"v_rcp_f32 v{U}, v{Lr[x]}")
        a("s_nop 0")
        a(f"v_mul_f32 v{U}, v{U}, v{vSig+x}")
        for i in range(0, 16, 2): a(f"v_pk_mul_f32 v[{O[x]+i}:{O[x]+i+1}], v[{O[x]+i}:{O[x]+i+1}], v[{U}:{U+1}] op_sel_hi:[1,0]")
        for u in range(2):
            for e in range(2):
                c = O[x] + 8 * e + 4 * u
                a(f"v_cvt_pk_bf16_f32 v{D[x]+4*u+2*e}, v{c}, v{c+1}")
                a(f"v_cvt_pk_bf16_f32 v{D[x]+4*u+2*e+1}, v{c+2}, v{c+3}")
            a(f"buffer_store_dwordx4 v[{D[x]+4*u}:{D[x]+4*u+3}], v{U+2}, {WSR}, s{sQO} offen offset:{x*2048+u*512} {SC}")

    X = 152
    def xloads():
        return [f"buffer_load_dwordx2 v[{X+(h*4+ft)*2}:{X+(h*4+ft)*2+1}], v{vX}, {R(sX)}, {'0' if h == 0 else f's{sPf}'} offen offset:{ft*32}"
                for h in range(2) for ft in range(4)]
    def step2(v, loads, vm, reads=True, tail=(), extra=()):
        a(f"s_waitcnt vmcnt({vm}) lgkmcnt(0)")
        m = [gm(v, tt, ft) for tt in range(8) for ft in (range(4) if tt % 2 == 0 else range(3, -1, -1))]
        ex = list(extra)
        if loads:
            ex.append((0, f"s_add_u32 m0, s{sM0g}, {v*4096}"))
            for pc in range(4): ex.append((1 + pc, wdma(pc)))
            for tt in range(8): ex.append((max(4 * tt + 3, 6 + tt), aload(v, tt)))
            ex.append((31, kstep_adv()))
        if reads:
            rl = []
            for ft in range(4): rl += wread((v + 1) & 3, (v + 1) & 1, ft)
            for i, x in enumerate(rl): ex.append((8 + 2 * i, x))
        ex.sort(key=lambda t: t[0])
        a.extend(weave(m, ex))
        a.extend(tail)
    srd(a, sX, pX, 0, 4 * MB)
    srd(a, sOut, pOut, 0, 4 * MB)
    a(f"s_mov_b32 s{sPf}, 32768")
    NH = 6 - NC
    pollld = f"buffer_load_dword v{vFl}, v{vFa2}, {WSR}, 0 offen sc1"
    for v in range(PUBSTEP + 1): step2(v, True, 32)
    a(f"s_waitcnt vmcnt({12*(PUBSTEP+1)})")
    a("s_barrier")
    publish(93, U)
    a(f"s_mov_b32 s{sCnt}, {NH + 2}")
    a("s_branch L_g2_in")
    a(".p2align 6")
    a("L_g2_loop:")
    for v in range(4):
        if v == PUBSTEP + 1: a("L_g2_in:")
        step2(v, True, 32, extra=[(-1, pollld)] if v == POLLSTEP else ())
    a(f"s_sub_u32 s{sCnt}, s{sCnt}, 1")
    a(f"s_cmp_lg_u32 s{sCnt}, 2")
    a("s_cbranch_scc1 L_g2_nosw")
    stp(a, "fopoll")
    a(f"s_waitcnt vmcnt({12*(4-POLLSTEP)})")
    poll(f"v{vFa2}", True)
    stp(a, "fook")
    srd(a, sW, pWO, 0, 1024 * 2048)
    a(f"s_lshl_b32 s{sKW}, s{sWave}, 16")
    a(f"s_lshl_b32 s{sKA}, s{sWave}, 17")
    a(f"s_add_u32 s{sKA}, s{sKA}, {WS_A2}")
    a("L_g2_nosw:")
    a(f"s_cmp_lg_u32 s{sCnt}, 0")
    a("s_cbranch_scc1 L_g2_loop")
    step2(0, False, 32, tail=xloads())
    step2(1, False, 28)
    step2(2, False, 16)
    step2(3, False, 8, reads=False)
    stp(a, "g2end")
    if STAMP: a("s_waitcnt lgkmcnt(0)")
    vRw, vRr = U, U + 1
    a("s_nop 7")
    for d in range(4):
        a(f"s_cmp_eq_u32 s{sWave}, {d}")
        a(f"s_cbranch_scc1 L_g2_own{d}")
        a(f"s_sub_u32 s{t0}, s{sWave}, {d+1}")
        a(f"s_and_b32 s{t0}, s{t0}, 3")
        a(f"s_lshl_b32 s{t0}, s{t0}, 13")
        a(f"s_add_u32 s{t0}, s{t0}, {d*24576}")
        a(f"v_add_u32 v{vRw}, s{t0}, v{vL16}")
        for i in range(8):
            c = 128 + 32 * d + 4 * i
            a(f"ds_write_b128 v{vRw}, a[{c}:{c+3}] offset:{i*1024}")
        a(f"s_branch L_g2_nx{d}")
        a(f"L_g2_own{d}:")
        for i in range(32): a(f"v_accvgpr_read_b32 v{i}, a{128+32*d+i}")
        a(f"L_g2_nx{d}:")
    a(f"s_mul_i32 s{t0}, s{sWave}, 24576")
    a(f"v_add_u32 v{vRr}, s{t0}, v{vL16}")
    a(f"s_mov_b32 s{t0}, 0xffff0000")
    a("s_waitcnt vmcnt(0)")
    XF = 168
    for i in range(16):
        a(f"v_lshlrev_b32 v{XF+2*i}, 16, v{X+i}")
        a(f"v_and_b32 v{XF+2*i+1}, s{t0}, v{X+i}")
    a("s_waitcnt lgkmcnt(0)")
    a("s_barrier")
    for i in range(8):
        for sl in range(3):
            base = 32 + 32 * sl
            a(f"ds_read_b128 v[{base+4*i}:{base+4*i+3}], v{vRr} offset:{sl*8192 + i*1024}")
    for i in range(8):
        a(f"s_waitcnt lgkmcnt({min(15, 21 - 3*i)})")
        for j in (0, 2): a(f"v_pk_add_f32 v[{32+4*i+j}:{33+4*i+j}], v[{32+4*i+j}:{33+4*i+j}], v[{64+4*i+j}:{65+4*i+j}]")
        for j in (0, 2): a(f"v_pk_add_f32 v[{4*i+j}:{4*i+j+1}], v[{4*i+j}:{4*i+j+1}], v[{96+4*i+j}:{97+4*i+j}]")
        for j in (0, 2): a(f"v_pk_add_f32 v[{4*i+j}:{4*i+j+1}], v[{4*i+j}:{4*i+j+1}], v[{32+4*i+j}:{33+4*i+j}]")
        for j in range(4): a(f"v_fma_f32 v{4*i+j}, v{4*i+j}, v{vRs2 + (i>>2)}, v{XF+4*i+j}")
        a(f"v_cvt_pk_bf16_f32 v{X+2*i}, v{4*i}, v{4*i+1}")
        a(f"v_cvt_pk_bf16_f32 v{X+2*i+1}, v{4*i+2}, v{4*i+3}")
        a(f"buffer_store_dwordx2 v[{X+2*i}:{X+2*i+1}], v{vX}, {R(sOut)}, {'0' if i < 4 else f's{sPf}'} offen offset:{(i&3)*32}")
    stp(a, "outst")
    if DBGST:
        n = len(STAMPS) + 1
        a("s_waitcnt vmcnt(0)")
        stamp(a, n - 1)
        a(f"s_cmp_lg_u32 s2, {DBGST - 1}")
        a("s_cbranch_scc1 L_end")
        a(f"s_cmp_lg_u32 s{sWave}, 0")
        a("s_cbranch_scc1 L_end")
        a("s_waitcnt lgkmcnt(0)")
        srd(a, 88, pDbg, 0, 256)
        for i in range(n):
            a(f"s_sub_u32 s92, s{60+2*i}, s60")
            a(f"v_mov_b32 v1, s92")
            a(f"buffer_store_dword v1, off, s[88:91], 0 offset:{4*i}")
    else:
        stamp_flush(a, 1, len(STAMPS) + 1, 0)
    a("L_end:")
    a("s_endpgm")
    a("L_at_slow:")
    a(f"s_mov_b32 s{sKV+2}, {SZ_KV}")
    for x in range(2): a(f"v_mov_b32 v{NM[x]}, 0xff800000")
    for i in range(40): a(f"v_mov_b32 v{O[0]+i}, 0")
    a(f"s_lshl_b32 s{sSo}, s{sHead}, 18")
    a(f"s_mov_b32 s{sCntA}, 0")
    a("L_at_sloop:")
    k = Kf[0]; v = Vf[0]
    a(f"buffer_load_dwordx4 v[{k}:{k+3}], v{vL16}, {R(sKV)}, s{sSo} offen {SC}")
    a(f"buffer_load_dwordx4 v[{k+4}:{k+7}], v{vL16}, {R(sKV)}, s{sSo} offen offset:1024 {SC}")
    a(f"buffer_load_dwordx4 v[{v}:{v+3}], v{vL16}, {R(sKV)}, s{sSo} offen offset:2048 {SC}")
    a(f"buffer_load_dwordx4 v[{v+4}:{v+7}], v{vL16}, {R(sKV)}, s{sSo} offen offset:3072 {SC}")
    a("s_waitcnt vmcnt(0)")
    for x in range(2):
        M = NM[x]; AL = NM[x] + 1; MN = NM[x] + 2; s = S[x]
        a.extend(qk(x, 0, "0"))
        a("s_nop 15")
        a(f"v_max3_f32 v{U}, v{s}, v{s+1}, v{s+2}")
        for i in range(3, 15, 2): a(f"v_max3_f32 v{U}, v{U}, v{s+i}, v{s+i+1}")
        a(f"v_max_f32 v{U}, v{U}, v{s+15}")
        a(f"v_mov_b32 v{U+1}, v{U}")
        a("s_nop 1")
        a(f"v_permlane32_swap_b32 v{U}, v{U+1}")
        a(f"v_max3_f32 v{MN}, v{U}, v{U+1}, v{M}")
        a(f"v_sub_f32 v{AL}, v{M}, v{MN}")
        a(f"v_exp_f32 v{AL}, v{AL}")
        a(f"v_mov_b32 v{M}, v{MN}")
        for i in range(16): a(f"v_sub_f32 v{s+i}, v{s+i}, v{MN}")
        for i in range(16): a(f"v_exp_f32 v{D[x]+i}, v{s+i}")
        for i in range(16): a(f"v_mul_f32 v{O[x]+i}, v{O[x]+i}, v{AL}")
        a(f"v_mul_f32 v{Lr[x]}, v{Lr[x]}, v{AL}")
        a("s_nop 1")
        a(LS(x, 0)); a(LS(x, 1))
        a(PV(x, 0, 0)); a(PV(x, 0, 1))
        a("s_nop 15")
    a(f"s_add_u32 s{sSo}, s{sSo}, 4096")
    a(f"s_add_u32 s{sCntA}, s{sCntA}, 1")
    a(f"s_cmp_lt_u32 s{sCntA}, 64")
    a("s_cbranch_scc1 L_at_sloop")
    a("s_branch L_at_fin")
    a.extend(ool)
    return a, descriptor(name, 512, 256, 102)

if __name__ == "__main__":
    path = sys.argv[1] if len(sys.argv) > 1 else "cdna_kernels/" + NAME + ".s"
    a, d = gen_main()
    ref = open(os.path.join(os.path.dirname(os.path.abspath(__file__)), "..", "cdna_kernels", NAME + ".s.ref")).read()
    head = [l for l in ref.split("\n") if l.startswith(";") and "@launch" not in l and "Override" not in l and "grid=ceil" not in l]
    out = "\n".join(head) + "\n; @launch grid=(256,1,1) block=(256,1,1) lds=163840\n"
    out += '.amdgcn_target "amdgcn-amd-amdhsa--gfx950"\n.text\n' + a.text() + '.section .rodata,"a"\n.p2align 6\n' + d
    open(path, "w").write(out)
    probs = a.check("main")
    for p in probs: print("HAZARD", p)
    print("written", path, "hazards:", len(probs))
```

```python
import re

TRANS = ("v_exp_f32", "v_log_f32", "v_rcp_f32", "v_rsq_f32", "v_sqrt_f32", "v_sin_f32", "v_cos_f32",
         "v_exp_f16", "v_rcp_iflag_f32")

def _regs(tok):
    tok = tok.strip()
    tok = re.sub(r"^-|^\|", "", tok)
    tok = tok.replace("abs(", "").replace(")", "").replace("|", "")
    m = re.fullmatch(r"([vas])(\d+)", tok)
    if m:
        return {(m.group(1), int(m.group(2)))}
    m = re.fullmatch(r"([vas])\[(\d+):(\d+)\]", tok)
    if m:
        return {(m.group(1), i) for i in range(int(m.group(2)), int(m.group(3)) + 1)}
    if tok in ("vcc", "vcc_lo", "vcc_hi"):
        return {("x", "vcc")}
    if tok in ("exec", "exec_lo", "exec_hi"):
        return {("x", "exec")}
    if tok == "m0":
        return {("x", "m0")}
    return set()

class Ins:
    def __init__(self, text):
        self.text = text
        t = text.split(";")[0].strip()
        self.label = t.endswith(":")
        self.directive = t.startswith(".")
        self.empty = (t == "")
        self.op = ""
        self.rd = set(); self.wr = set()
        self.A = set(); self.B = set(); self.C = set()
        self.kind = "none"
        self.states = 0
        if self.label or self.directive or self.empty:
            return
        parts = t.split(None, 1)
        op = parts[0]; self.op = op
        rest = parts[1] if len(parts) > 1 else ""
        rest = re.sub(r"(quad_perm|op_sel|op_sel_hi|neg_lo|neg_hi):\[([^\]]*)\]", lambda m: m.group(1) + ":[" + m.group(2).replace(",", "/") + "]", rest)
        ops = [o.strip() for o in rest.split(",")] if rest else []
        mods = ""
        if ops:
            last = ops[-1].split(None, 1)
            ops[-1] = last[0]
            mods = last[1] if len(last) > 1 else ""
        self.mods = mods
        self.ops = ops
        self.states = 1
        R = [_regs(o) for o in ops]
        U = lambda l: set().union(*l) if l else set()
        if op == "s_nop":
            self.kind = "nop"; self.states = int(ops[0], 0) + 1
        elif op.startswith("v_mfma") or op.startswith("v_smfmac"):
            self.kind = "mfma"
            self.wr = R[0]; self.A = R[1]; self.B = R[2]; self.C = R[3]
            if op.startswith("v_smfmac"):
                self.B = R[2] | R[3]; self.C = R[0]
            self.rd = self.A | self.B | self.C
            self.passes = 8 if "32x32" in op else 4
        elif op.startswith("v_cmp"):
            self.kind = "valu"; self.wr = R[0]; self.rd = U(R[1:])
            if op.startswith("v_cmpx"): self.wr |= {("x", "exec")}
        elif op.startswith("v_readfirstlane") or op.startswith("v_readlane"):
            self.kind = "valu"; self.wr = R[0]; self.rd = U(R[1:])
        elif op.startswith("v_permlane") and "swap" in op:
            self.kind = "valu"; self.wr = R[0] | R[1]; self.rd = R[0] | R[1]
        elif op.startswith("v_"):
            self.kind = "valu"; self.wr = R[0]; self.rd = U(R[1:])
            if op.startswith("v_fmac") or op.startswith("v_dot2c") or op.startswith("v_writelane") or "dpp" in op or "row_" in mods or "quad_perm" in mods:
                self.rd |= R[0]
            if "_co_" in op:
                self.wr |= R[1]; self.rd = U(R[2:])
            if op.startswith("v_cndmask") and len(ops) == 3:
                self.rd |= {("x", "vcc")}
        elif op.startswith("ds_read") or op.startswith("ds_bpermute") or op.startswith("ds_swizzle"):
            self.kind = "ds"; self.wr = R[0]; self.rd = U(R[1:])
        elif op.startswith("ds_"):
            self.kind = "ds"; self.rd = U(R)
            if "rtn" in op: self.wr = R[0]; self.rd = U(R[1:])
        elif op.startswith("buffer_load") or op.startswith("global_load"):
            self.kind = "vmem"
            if re.search(r"\blds\b", mods):
                self.rd = U(R) | {("x", "m0")}; self.ldsdma = True
            else:
                self.wr = R[0]; self.rd = U(R[1:])
        elif op.startswith("buffer_store") or op.startswith("global_store") or op.startswith("buffer_atomic") or op.startswith("global_atomic"):
            self.kind = "vmem"; self.rd = U(R)
            self.data = R[0] if op.startswith("buffer") else R[1]
            self.wide = op.endswith("x4") or op.endswith("x3")
        elif op.startswith("buffer_") :
            self.kind = "vmem"
        elif op.startswith("s_"):
            self.kind = "salu"
            if op.startswith("s_cmp") or op.startswith("s_cbranch") or op in ("s_branch", "s_barrier", "s_waitcnt", "s_endpgm", "s_setprio", "s_sleep", "s_bitcmp0_b32", "s_bitcmp1_b32"):
                self.rd = U(R)
            else:
                self.wr = R[0] if R else set(); self.rd = U(R[1:])
                if "saveexec" in op: self.wr |= {("x", "exec")}
        else:
            raise ValueError("unknown op: " + text)

def is_dpp(i):
    return i.kind == "valu" and ("row_" in i.mods or "quad_perm" in i.mods or "_dpp" in i.op or "wave_" in i.mods)

def check_seq(seq, name="", taken=None):
    probs = []
    real = [i for i in seq if i.states > 0]
    n = len(real)
    for j, c in enumerate(real):
        dist = 0
        for k in range(j - 1, -1, -1):
            p = real[k]
            if dist >= 21: break
            if p.op in ("s_branch", "s_endpgm") and p is not taken: break
            need = 0; why = ""
            def req(x, w):
                nonlocal need, why
                if x > need: need, why = x, w
            vw = {r for r in p.wr if r[0] in "va"}
            sw = {r for r in p.wr if r[0] == "s" or r == ("x", "vcc")}
            if p.kind == "valu":
                if c.kind == "mfma" and vw & c.rd: req(2, "VALU->MFMA operand")
                if c.kind == "valu":
                    if p.op in TRANS and c.op not in TRANS and vw & c.rd: req(1, "trans->VALU")
                    if c.op.startswith("v_permlane") and vw & c.rd: req(2, "VALU->permlane")
                    if (c.op.startswith("v_readlane") or c.op.startswith("v_readfirstlane")) and vw & c.rd: req(1, "VALU->readlane")
                    if is_dpp(c) and vw & c.rd: req(2, "VALU->DPP")
                    if sw & c.rd: req(2, "VALU sgpr->VALU")
                    if ("x", "exec") in p.wr and is_dpp(c): req(5, "exec->DPP")
                if c.kind == "vmem" and sw & c.rd: req(5, "VALU sgpr->VMEM")
                if c.kind == "mfma" and ("x", "exec") in p.wr: req(4, "exec->MFMA")
                if c.kind == "salu" and sw & c.rd: req(1, "VALU sgpr->SALU (pad)")
            if p.op.startswith("v_dot") and vw & (c.rd | c.wr):
                chain = c.op == p.op and c.wr == p.wr and not (vw & set().union(*[_regs(o) for o in c.ops[1:3]]))
                if not chain: req(3, "DL op result")
            if p.kind == "mfma":
                big = p.passes == 8
                if c.kind == "mfma":
                    if p.wr & (c.A | c.B): req(12 if big else 8, "MFMA D->A/B")
                    if p.wr & c.C and not (p.wr == c.C and p.passes == c.passes): req(10 if big else 6, "MFMA D->C overlap")
                    if p.wr & c.wr and not (p.wr == c.C) : req(10 if big else 6, "MFMA D->D WAW (conservative)")
                elif c.kind in ("valu",):
                    if p.wr & (c.rd | c.wr): req(12 if big else 8, "MFMA D->VALU")
                    if p.C & c.wr: req(7 if big else 3, "MFMA C WAR")
                elif c.kind in ("vmem", "ds"):
                    if p.wr & (c.rd | c.wr): req(12 if big else 8, "MFMA D->mem")
            if p.kind == "salu" and ("x", "m0") in p.wr and getattr(c, "ldsdma", False): req(1, "m0->DMA")
            if p.kind == "vmem" and getattr(p, "wide", False) and c.kind == "valu" and p.data & c.wr: req(2, "store data WAR")
            if p.kind == "vmem" and getattr(p, "wide", False) and c.kind in ("ds", "vmem", "mfma") and p.data & c.wr: req(1, "store data WAR")
            if dist < need:
                probs.append(f"{name}: need {need} have {dist} ({why}): [{p.text.strip()}] -> [{c.text.strip()}]")
            dist += p.states
    return probs

class Asm:
    def __init__(self):
        self.lines = []
    def __call__(self, text):
        for t in text.split("\n"):
            if t.strip() == "": continue
            self.lines.append(Ins(t.strip()))
    def extend(self, lst):
        for t in lst: self(t)
    def text(self):
        out = []
        for i in self.lines:
            out.append(i.text if (i.label or i.directive) else "    " + i.text)
        return "\n".join(out) + "\n"
    def check(self, name=""):
        probs = check_seq(self.lines, name)
        labels = {i.text.split(":")[0].strip(): k for k, i in enumerate(self.lines) if i.label}
        for k, i in enumerate(self.lines):
            if i.op.startswith("s_cbranch") or i.op == "s_branch":
                tgt = labels.get(i.ops[0])
                if tgt is None: continue
                lo = max(0, k - 40)
                seq = self.lines[lo:k + 1] + self.lines[tgt:tgt + 40]
                probs += check_seq(seq, name + "@" + i.ops[0], taken=i)
        return sorted(set(probs))

def weave(main, extras):
    slots = {}
    for pos, x in extras:
        slots.setdefault(pos, []).extend(x if isinstance(x, list) else [x])
    out = list(slots.get(-1, []))
    for i, m in enumerate(main):
        out.append(m)
        out.extend(slots.get(i, []))
    return out


def sched(main, streams, budget=8):
    n = len(main)
    used = [0] * n; free_salu = [True] * n; slots = [[] for _ in range(n)]
    items = []
    for si, st in enumerate(streams):
        for k, (pos, g) in enumerate(st):
            items.append((pos, si, k, g if isinstance(g, list) else [g]))
    items.sort(key=lambda t: (t[0], t[1], t[2]))
    last = [0] * len(streams)
    for pos, si, k, g in items:
        p = min(max(pos, last[si]), n - 1)
        while True:
            c = 0; fs = free_salu[p] and not slots[p]
            for z in g:
                if z.startswith("s_") and fs: fs = False
                else: c += 4; fs = False
            bad = slots[p] and " m0," in slots[p][-1] and " lds" in g[0]
            if (used[p] + c <= budget or used[p] == 0 and not slots[p] or p == n - 1) and not (bad and p < n - 1): break
            p += 1
        if bad: slots[p].append("s_nop 0")
        slots[p] += g; used[p] += c; last[si] = p
    out = []
    for i, m in enumerate(main):
        out.append(m); out += slots[i]
    return out
```

```python
import sys, os
sys.path.insert(0, os.path.dirname(os.path.abspath(__file__)))
from asmdsl import Asm, weave, sched
from gen import (NAME, KA_X, KA_WQKV, KA_WO, KA_W1, KA_W2, KA_OUT, KA_DBG, KA_WS, MB, f2u, srd, header, descriptor,
                 stamp, stamp_flush, STAMP, xreduce, bf16round, QSCALE)

def env(k, d): return type(d)(os.environ.get(k, d))
WS_Q, WS_KV, WS_A2 = 4 * MB, 8 * MB, 16 * MB
SZ_KV = 8 * MB
WS_FL = 0
FQ, FH, FO, F0 = 0, 2048, 4096, 8192
WS_STAT = 16384
WS_CS = 65536
WS_END = 35 * MB
LDS_W1 = 98304
LDS_SCR = 90112
NC = env("NC", 5); ND = env("ND", 4); SPP = env("SPP", 2); PUBAT = env("PUBAT", 10); POLLAT = env("POLLAT", 5)
PNT = env("PNT", ""); CPF = env("CPF", 1); QPLAIN = env("QPLAIN", 0); WNT = env("WNT", ""); PFG1 = env("PFG1", 1); DMAF = env("DMAF", 0.6); RDF = env("RDF", 0.75); BUD = env("BUD", 4)
POLLSTEP = env("POLLSTEP", 2); PUBSTEP = env("PUBSTEP", 0); DBGST = env("DBGST", 0); EPOLL = env("EPOLL", 26); ELEAD = env("ELEAD", 10)
SC = "sc1"
STAMPS = env("STAMPS", "start,g1loop,g1end,e4,atentry,atloop,pureend,fhok,atend,fopoll,fook,g2end,outst").split(",")
def stp(a, name):
    if name in STAMPS: stamp(a, STAMPS.index(name))

def gen_main():
    a = Asm()
    name = NAME + "_kernel"
    header(a, name)
    sWS, sW, sKV, sX, sOut = 8, 12, 16, 20, 24
    pW1, pW2, pWO, pX, pOut, pDbg = 28, 30, 32, 34, 36, 38
    sWave, sXcd, sSlot = 40, 41, 42
    sKA, sKW, sM0A, sM0W, sCnt, sWr, sWc, sRb, sCt = 43, 44, 45, 46, 47, 48, 49, 50, 51
    t0, t1, t2, t3, t4, t5 = 52, 53, 54, 55, 56, 57
    sPf = 58; sN = 6
    sSo, sM0k, sCntA, sRing, sMb, sQO, sHead, sPub = 94, 95, 96, 97, 98, 99, 100, 101
    sAw, sArd, sCs, sTile = 96, 97, 98, 101
    sM0g, sRb2, sCb, sH1, sH2 = 45, 46, 48, 49, 50
    WSR = f"s[{sWS}:{sWS+3}]"
    def R(s): return f"s[{s}:{s+3}]"
    vAd, vWd, vAr, vArB, vWe1, vWo1, vWs1 = 224, 228, 232, 234, 235, 236, 237
    T = 238
    L, vL16, vDma, vFa, vFl = 250, 251, 252, 253, 254
    ST = 224; vO = 240
    Q = [0, 8]; S = [16, 32]; NM = [48, 64]; O = [80, 96]; Lr = [112, 116]; D = [120, 136]
    Kf = [152, 160]; Vf = [168, 176]; ONE = 184; WF = [188, 204]
    vCur, IDX, vA, vW, vWe, vWo, vFa2, vX = 220, 221, 222, 224, 228, 229, 230, 231
    U = 232; vSig = 244; vRs2 = 246
    lab = [0]
    def flagld(areg, srdr=WSR):
        return f"buffer_load_dwordx2 v[{vFl}:{vFl+1}], {areg}, {srdr}, 0 {'offen' if areg != 'off' else ''} sc1"
    def poll(areg, first_done, srdr=WSR, val=f"s[{sN}:{sN+1}]", cmp="ne"):
        n = lab[0]; lab[0] += 1
        a(f"s_mov_b32 s{t5}, 0")
        if first_done: a(f"s_branch L_pc{n}")
        a(f"L_pl{n}:")
        a(flagld(areg, srdr))
        a("s_waitcnt vmcnt(0)")
        a(f"L_pc{n}:")
        a(f"v_cmp_{cmp}_u64 vcc, {val}, v[{vFl}:{vFl+1}]")
        a(f"s_add_u32 s{t5}, s{t5}, 1")
        a("s_nop 0")
        a(f"s_cbranch_vccz L_pd{n}")
        a("s_sleep 1")
        a(f"s_cmp_lt_u32 s{t5}, 0x40000")
        a(f"s_cbranch_scc1 L_pl{n}")
        a(f"L_pd{n}:")
    def publish(soff_reg, tmp):
        n = lab[0]; lab[0] += 1
        a(f"s_cmp_lg_u32 s{sWave}, 0")
        a(f"s_cbranch_scc1 L_pb{n}")
        a(f"v_mov_b32 v{tmp}, s{sN}")
        a(f"v_mov_b32 v{tmp+1}, s{sN+1}")
        a(f"buffer_store_dwordx2 v[{tmp}:{tmp+1}], off, {WSR}, s{soff_reg} sc1")
        a(f"L_pb{n}:")

    a("s_cmp_ge_u32 s2, 256")
    a("s_cbranch_scc1 L_end")
    stp(a, "start")
    a(f"s_load_dwordx2 s[{pX}:{pX+1}], s[0:1], {KA_X}")
    a(f"s_load_dwordx2 s[6:7], s[0:1], {KA_WQKV}")
    a(f"s_load_dwordx4 s[{pW1}:{pW1+3}], s[0:1], {KA_W1}")
    a(f"s_load_dwordx2 s[4:5], s[0:1], {KA_WS}")
    a(f"s_load_dwordx2 s[{pWO}:{pWO+1}], s[0:1], {KA_WO}")
    a(f"s_load_dwordx4 s[{pOut}:{pOut+3}], s[0:1], {KA_OUT}")
    a("s_memrealtime s[92:93]")
    a(f"v_lshrrev_b32 v{T}, 6, v0")
    a(f"v_and_b32 v{L}, 63, v0")
    a(f"v_readfirstlane_b32 s{sWave}, v{T}")
    a(f"v_lshlrev_b32 v{vL16}, 4, v{L}")
    a(f"s_and_b32 s{sXcd}, s2, 7")
    if STAMP: a(f"s_mov_b32 s59, s{sWave}")
    a(f"s_lshr_b32 s{sSlot}, s2, 3")
    a(f"s_and_b32 s{sRb}, s{sSlot}, 7")
    a(f"s_lshr_b32 s{sCt}, s{sSlot}, 3")
    a(f"s_lshr_b32 s{sWr}, s{sWave}, 1")
    a(f"s_and_b32 s{sWc}, s{sWave}, 1")
    a(f"v_bfe_u32 v3, v{L}, 2, 1")
    a(f"v_lshl_add_u32 v3, v{T}, 1, v3")
    a(f"s_lshl_b32 s{t0}, s2, 3")
    a(f"v_add_u32 v3, s{t0}, v3")
    a(f"v_and_b32 v4, 3, v{L}")
    a(f"v_lshrrev_b32 v5, 3, v{L}")
    a("v_lshlrev_b32 v6, 11, v3")
    a("v_lshl_add_u32 v6, v5, 6, v6")
    a("v_lshl_add_u32 v6, v4, 4, v6")
    a(f"v_lshrrev_b32 v{T+1}, 4, v{L}")
    a(f"v_and_b32 v{T+2}, 7, v{L}")
    a(f"v_xor_b32 v{T+2}, v{T+2}, v{T+1}")
    a(f"v_lshlrev_b32 v{T+2}, 4, v{T+2}")
    a(f"v_lshl_add_u32 v{T+2}, v5, 11, v{T+2}")
    a(f"s_lshl_b32 s{t0}, s{sRb}, 19")
    a(f"s_lshl_b32 s{t1}, s{sWave}, 17")
    a(f"s_add_u32 s{t0}, s{t0}, s{t1}")
    a(f"v_add_u32 v{vAd}, s{t0}, v{T+2}")
    a(f"v_xor_b32 v{vAd+1}, 64, v{vAd}")
    a(f"v_add_u32 v{vAd+3}, {3*15360}, v{vAd+1}")
    a(f"v_add_u32 v{vAd+1}, 15360, v{vAd+1}")
    a(f"v_add_u32 v{vAd+2}, {2*15360}, v{vAd}")
    a(f"s_lshl_b32 s{sM0A}, s{sWave}, 13")
    a(f"s_lshl_b32 s{sM0W}, s{sWave}, 12")
    a(f"s_add_u32 s{sM0W}, s{sM0W}, {LDS_W1}")
    a(f"s_lshl_b32 s{sKA}, s{sRb}, 8")
    ftp, gb, jj, qc = T + 3, T + 4, T + 5, 4
    a(f"v_lshrrev_b32 v{ftp}, 5, v{L}")
    a(f"v_bfe_u32 v{gb}, v{L}, 4, 1")
    a(f"v_bfe_u32 v{jj}, v{L}, 2, 2")
    a(f"s_lshl_b32 s{t0}, s{sWr}, 4")
    a(f"s_lshl_b32 s{t1}, s{sWc}, 2")
    a(f"s_add_u32 s{t0}, s{t0}, s{t1}")
    a(f"v_lshl_add_u32 v{T+6}, v{gb}, 3, v{jj}")
    a(f"v_add_u32 v{T+6}, s{t0}, v{T+6}")
    a(f"v_lshlrev_b32 v{T+7}, 1, v{gb}")
    a(f"v_xor_b32 v{T+7}, v{T+7}, v{qc}")
    a(f"v_lshlrev_b32 v{T+7}, 4, v{T+7}")
    a(f"v_lshl_add_u32 v{T+7}, v{ftp}, 6, v{T+7}")
    a(f"v_xor_b32 v{T+8}, v{gb}, v{qc}")
    a(f"v_lshlrev_b32 v{T+8}, 4, v{T+8}")
    a("s_waitcnt lgkmcnt(0)")
    stp(a, "p1")
    srd(a, sX, pX, 0, 4 * MB)
    for i in range(4):
        a(f"buffer_load_dwordx4 v[{16+4*i}:{19+4*i}], v6, {R(sX)}, 0 offen offset:{i*512}")
    srd(a, 88, pDbg, 248, 8)
    a(f"s_or_b32 s{t0}, s2, s{sWave}")
    a("s_cbranch_scc1 L_nonon")
    a("s_or_b32 s92, s92, 1")
    a("v_mov_b32 v8, s92")
    a("v_mov_b32 v9, s93")
    a("buffer_store_dwordx2 v[8:9], off, s[88:91], 0 sc1")
    a("L_nonon:")
    a(f"s_cmp_lt_u32 s{sCt}, 2")
    a("s_cbranch_scc0 L_g1_qkv")

    def code_addr(r):
        n = lab[0]; lab[0] += 1
        a(f"s_getpc_b64 s[{t0}:{t1}]")
        a(f"L_pc_{n}:")
        a(f"s_sub_u32 s{t0}, s{t0}, L_pc_{n}-{name}")
        a(f"s_subb_u32 s{t1}, s{t1}, 0")
        a(f"s_lshl_b32 s{t2}, s{sSlot}, 2")
        a(f"s_add_u32 s{t2}, s{t2}, s{sWave}")
        a(f"s_and_b32 s{t2}, s{t2}, 63")
        a(f"s_lshl_b32 s{t2}, s{t2}, 10")
        a(f"v_add_u32 v{r}, s{t2}, v{vL16}")
        a(f"v_min_u32 v{r}, L_code_end-{name}-16, v{r}")
        a(f"v_mov_b32 v{r+1}, s{t1}")
        a(f"v_add_co_u32 v{r}, vcc, s{t0}, v{r}")
        a("s_nop 1")
        a(f"v_addc_co_u32 v{r+1}, vcc, 0, v{r+1}, vcc")
    def code_pf(r):
        code_addr(r)
        a(f"global_load_dwordx4 a[120:123], v[{r}:{r+1}], off")
    def kvdma(q):
        return f"buffer_load_dwordx4 v{vDma}, {R(sKV)}, s{sSo} offen offset:{(q&3)*1024} {SC} lds"
    def kv_groups(h0, h1):
        g = []
        for c in range(h0, h1):
            for q in range(4):
                pre = [f"s_add_u32 m0, s{sM0k}, {c*16384}", "s_nop 0"] if q == 0 else []
                post = [f"s_add_u32 s{sSo}, s{sSo}, 16384"] if (q == 3) else []
                g.append(pre + [kvdma(q)] + post)
        return g
    def at_load_groups():
        g = kv_groups(0, 2)
        g[4:4] = [[f"buffer_load_dwordx4 v[{Q[x]+4*h}:{Q[x]+4*h+3}], v{vL16}, {WSR}, s{sQO} offen offset:{x*2048+h*1024} {SC}"]
                  for x in range(2) for h in range(2)]
        return g
    def at_init():
        a(f"v_mov_b32 v{vCur}, v{vL16}")
        for x in range(2): a(f"v_mfma_f32_32x32x16_bf16 v[{O[x]}:{O[x]+15}], a[128:131], a[128:131], 0")
        a(f"v_and_b32 v{U}, 7, v{L}")
        a(f"v_cmp_eq_u32 vcc, 0, v{U}")
        a(f"v_cmp_eq_u32 s[88:89], 4, v{U}")
        a(f"v_mov_b32 v{U+2}, 0x3f803f80")
        a(f"v_mov_b32 v{IDX}, 0xdddddddd")
        a(f"v_cndmask_b32 v{ONE}, 0, v{U+2}, vcc")
        a(f"v_cndmask_b32 v{ONE+2}, 0, v{U+2}, s[88:89]")
        a(f"v_mov_b32 v{ONE+1}, v{ONE}")
        a(f"v_mov_b32 v{ONE+3}, v{ONE+2}")
        a(f"s_add_u32 s{sMb}, s{sM0k}, 65536")
        a(f"s_mov_b32 s{sRing}, 0")
        for i in range(0, 8, 2): a(f"v_mov_b64 v[{Lr[0]+i}:{Lr[0]+i+1}], 0")
        for i in range(0, 8, 2): a(f"v_mov_b64 v[{D[1]+8+i}:{D[1]+9+i}], 0")
        for i in range(0, 4, 2): a(f"v_mov_b64 v[{Vf[1]+4+i}:{Vf[1]+5+i}], 0")
        a(f"s_lshr_b32 s{t0}, s{sXcd}, 1")
        a(f"s_lshl_b32 s{t0}, s{t0}, 2")
        a(f"s_and_b32 s{t1}, s{sSlot}, 3")
        a(f"s_add_u32 s{sRb2}, s{t0}, s{t1}")
        a(f"s_lshr_b32 s{t0}, s{sRb2}, 1")
        a(f"s_lshl_b32 s{t0}, s{t0}, 7")
        a(f"s_add_u32 s{t0}, s{t0}, {WS_FL + FH}")
        a(f"v_and_b32 v{U}, 15, v{L}")
        a(f"v_lshl_add_u32 v{vFa2}, v{U}, 3, s{t0}")
        srd(a, sW, pW2, 0, 3584 * 2048)
    def hstore(u, data):
        if u < 8:
            return [f"buffer_store_dwordx2 {data}, v{vO+2 + (u>>2)}, {R(sOut)}, s{sH2} offen offset:{(u&3)*1024} {SC}"]
        p, tt = divmod(u - 8, 8)
        return [f"buffer_store_dwordx4 {data}, v{vO + (tt>>2)}, {R(sOut)}, s{(sH1, t3, t4)[p]} offen offset:{(tt&3)*1024} {SC}"]
    direct = set(range(32 - ND, 32))
    parked = [u for u in range(32) if u not in direct]
    ool = []

    def g1(kind):
        ffn = kind == "ffn"
        NB = 7 if ffn else 6
        RS = 7168 if ffn else 6144
        nW = 4 if ffn else 3
        NF = 8 + NB
        def fr(buf, i): return buf * NF * 4 + i * 4
        def acc(tt, ft): return (ft * 8 + tt) * 4
        if ffn:
            srd(a, sW, pW1, -4096, 1024 * 7168 + 4096)
            a(f"s_mul_i32 s{t0}, s{sXcd}, 896")
            a(f"s_mul_i32 s{t1}, s{sCt}, 384")
            a(f"s_add_u32 s{t1}, s{t1}, s{t0}")
            a(f"s_lshl_b32 s{t2}, s{sCt}, 6")
            a(f"s_add_u32 s{t2}, s{t2}, s{t0}")
            a(f"s_add_u32 s{t2}, s{t2}, {768 + 4096 - 3072}")
            qstep = 128
        else:
            srd(a, sW, 6, -4096, 1024 * 6144 + 4096)
            a(f"s_lshl_b32 s{t1}, s{sXcd}, 1")
            a(f"s_add_u32 s{t1}, s{t1}, s{sCt}")
            a(f"s_sub_u32 s{t1}, s{t1}, 2")
            a(f"s_lshl_b32 s{t1}, s{t1}, 7")
            qstep = 2048
        a(f"s_mul_i32 s{sKW}, s{sRb}, {128 * RS}")
        a(f"v_mul_u32_u24 v{T+6}, {RS}, v{T+6}")
        a(f"v_add3_u32 v{T+7}, v{T+7}, v{T+6}, s{t1}")
        for q in range(3):
            a(f"v_add_u32 v{vWd+q}, {4096 + q*qstep - q*1024}, v{T+7}")
        if ffn:
            a(f"v_add3_u32 v{T+8}, v{T+8}, v{T+6}, s{t2}")
            a(f"v_lshlrev_b32 v{T+9}, 30, v{ftp}")
            a(f"v_or_b32 v{vWd+3}, v{T+8}, v{T+9}")
        srd(a, sKV, pX, 65536, 4 * MB - 65536)
        oplog = ["x"] * 4
        def wdma_list(stage, pol=WNT):
            l = [[f"s_add_u32 m0, s{sM0W}, {(stage & 3)*16384}"]]
            for q in range(nW):
                l.append([f"buffer_load_dwordx4 v{vWd+q}, {R(sW)}, s{sKW} offen offset:{q*1024} {pol} lds"])
            l.append([f"s_add_u32 s{sKW}, s{sKW}, {32*RS}"])
            if stage & 3 == 3: l.append([f"s_cmp_eq_u32 s{sKW}, {1024 * RS}", f"s_cselect_b32 s{sKW}, 0, s{sKW}"])
            oplog.extend([f"W{stage}"] * nW)
            return l
        def adma_half(Dn, h):
            if Dn < 3: l = [[f"s_add_u32 m0, s{sM0A}, {Dn*32768 + h*4096}"]]
            else: l = [[f"s_add_u32 m0, s{sAw}, {h*4096}"]]
            for p in range(4):
                l.append([f"buffer_load_dwordx4 v{vAd+p}, {R(sKV if h else sX)}, s{sKA} offen offset:{p*1024} lds"])
            if h:
                l.append([f"s_add_u32 s{sKA}, s{sKA}, 128"])
                if Dn & 1: l.append([f"s_and_b32 s{sKA}, s{sKA}, 2047"])
            oplog.extend([f"A{Dn}"] * 4)
            return l
        def need(*tags):
            idx = max(i for i, t in enumerate(oplog) if t in tags)
            return len(oplog) - 1 - idx
        def flat(l):
            out = []
            for x in l:
                out += x
                if x[-1].startswith("s_add_u32 m0"): out.append("s_nop 0")
            return out
        for i in range(4): a(f"v_mov_b32 v{12+i}, 0")
        z = [f"v_mfma_f32_32x32x16_bf16 a[{128+16*i}:{143+16*i}], v[12:15], v[12:15], 0" for i in range(8)]
        z += [f"v_mfma_f32_32x32x16_bf16 v[{16*i}:{16*i+15}], v[12:15], v[12:15], 0" for i in range(4, 2 * NB)]
        k = 0
        for x in flat(wdma_list(0, PNT) + adma_half(0, 0)):
            a(x)
            if x.startswith("buffer_") and k < len(z): a(z[k]); k += 1
        pre = Asm(); sv0 = a.lines; a.lines = pre.lines
        stp(a, "p2")
        srd(a, sWS, 4, 0, WS_END)
        a(f"v_and_b32 v{T+9}, 15, v{L}")
        a(f"v_lshrrev_b32 v{T+10}, 1, v{T+9}")
        a(f"v_xor_b32 v{T+10}, v{T+10}, v{T+1}")
        a(f"v_lshlrev_b32 v{T+10}, 4, v{T+10}")
        a(f"v_lshl_add_u32 v{T+10}, v{T+9}, 7, v{T+10}")
        a(f"s_lshl_b32 s{t0}, s{sWr}, 14")
        a(f"v_add_u32 v{vArB}, s{t0}, v{T+10}")
        a(f"v_mov_b32 v{vAr}, v{vArB}")
        a(f"v_xor_b32 v{vAr+1}, 64, v{vArB}")
        a(f"s_mov_b32 s{sArd}, 0")
        a(f"v_lshlrev_b32 v{T+10}, 13, v{ftp}")
        a(f"v_lshl_add_u32 v{T+10}, v{gb}, 8, v{T+10}")
        a(f"v_lshl_add_u32 v{T+10}, v{jj}, 6, v{T+10}")
        a(f"v_add_u32 v{T+10}, {LDS_W1}, v{T+10}")
        a(f"v_lshl_add_u32 v{T+11}, v{gb}, 5, v{T+10}")
        a(f"v_lshl_add_u32 v{T+11}, v{qc}, 3, v{T+11}")
        a(f"s_mul_i32 s{t0}, s{sWc}, {1536 if ffn else 512}")
        a(f"v_add_u32 v{vWe1}, s{t0}, v{T+11}")
        a(f"v_xor_b32 v{vWo1}, 32, v{vWe1}")
        if ffn:
            a(f"v_and_b32 v{T+11}, 1, v{qc}")
            a(f"v_lshlrev_b32 v{T+11}, 1, v{T+11}")
            a(f"v_add_u32 v{T+11}, s{sWc}, v{T+11}")
            a(f"v_xor_b32 v{T+11}, v{T+11}, v{gb}")
            a(f"v_lshl_add_u32 v{T+11}, v{T+11}, 4, v{T+10}")
            a(f"v_lshrrev_b32 v{T+10}, 1, v{qc}")
            a(f"v_lshl_add_u32 v{vWs1}, v{T+10}, 3, v{T+11}")
        a(f"v_mov_b32 v{T+10}, 0x3f803f80")
        for i in range(4): a(f"v_accvgpr_write_b32 a{124+i}, v{T+10}")
        a(f"s_lshl_b32 s{sTile}, s{sXcd}, 2")
        a(f"s_add_u32 s{sTile}, s{sTile}, s{sCt}")
        a(f"s_and_b32 s{t0}, s{sSlot}, 3")
        a(f"s_lshl_b32 s{sHead}, s{sXcd}, 2")
        a(f"s_add_u32 s{sHead}, s{sHead}, s{t0}")
        a(f"s_and_b32 s{t0}, s{sSlot}, 28")
        a(f"s_add_u32 s{t0}, s{t0}, s{sWave}")
        a(f"s_lshl_b32 s{t0}, s{t0}, 12")
        a(f"s_lshl_b32 s{t1}, s{sHead}, 17")
        a(f"s_add_u32 s{sQO}, s{t0}, s{t1}")
        a(f"s_add_u32 s{sQO}, s{sQO}, {WS_Q}")
        a(f"s_lshl_b32 s{sSo}, s{sHead}, 18")
        a(f"s_lshl_b32 s{sM0k}, s{sWave}, 12")
        a(f"v_add_u32 v{vDma}, s{sM0k}, v{vL16}")
        a(f"s_lshr_b32 s{t0}, s{sHead}, 1")
        a(f"s_lshl_b32 s{t0}, s{t0}, 7")
        a(f"v_and_b32 v{vFa}, 7, v{L}")
        a(f"v_lshl_add_u32 v{vFa}, v{vFa}, 3, s{t0}")
        srd(a, sOut, pW2, 0, 3584 * 2048)
        a(f"s_lshl_b32 s{sPf}, s2, 2")
        a(f"s_add_u32 s{sPf}, s{sPf}, s{sWave}")
        a(f"s_lshl_b32 s{sPf}, s{sPf}, 10")
        a.lines = sv0
        for i, x in enumerate(pre.lines):
            a.lines.append(x)
            if i % 5 == 4 and k < len(z) and pre.lines[i + 1].op not in ("s_addc_u32", "s_subb_u32"): a(z[k]); k += 1
        for x in z[k:]: a(x)
        a.extend(flat(adma_half(0, 1)))
        F = 32
        a(f"s_mov_b32 s{t0}, 0xffff0000")
        stp(a, "p3")
        a(f"s_waitcnt vmcnt({need('x')})")
        stp(a, "p4")
        pre = Asm(); sv0 = a.lines; a.lines = pre.lines
        for j in range(16):
            a(f"v_lshlrev_b32 v{F+2*j}, 16, v{16+j}")
            a(f"v_and_b32 v{F+2*j+1}, s{t0}, v{16+j}")
        a(f"v_pk_add_f32 v[8:9], v[{F}:{F+1}], v[{F+2}:{F+3}]")
        a(f"v_pk_add_f32 v[10:11], v[{F+4}:{F+5}], v[{F+6}:{F+7}]")
        for j in range(4, 16):
            d = 8 + 2 * (j & 1)
            a(f"v_pk_add_f32 v[{d}:{d+1}], v[{d}:{d+1}], v[{F+2*j}:{F+2*j+1}]")
        a("v_pk_add_f32 v[8:9], v[8:9], v[10:11]")
        a("v_add_f32 v8, v8, v9")
        xreduce(a, 8, 9)
        a(f"v_mul_f32 v8, {f2u(-1.0/1024):#x}, v8")
        for j in range(16):
            a(f"v_pk_add_f32 v[{F+2*j}:{F+2*j+1}], v[{F+2*j}:{F+2*j+1}], v[8:9] op_sel_hi:[1,0]")
        a(f"v_pk_mul_f32 v[10:11], v[{F}:{F+1}], v[{F}:{F+1}]")
        a(f"v_pk_mul_f32 v[16:17], v[{F+2}:{F+3}], v[{F+2}:{F+3}]")
        for j in range(2, 16):
            d = (10, 16)[j & 1]
            a(f"v_pk_fma_f32 v[{d}:{d+1}], v[{F+2*j}:{F+2*j+1}], v[{F+2*j}:{F+2*j+1}], v[{d}:{d+1}]")
        a("v_pk_add_f32 v[10:11], v[10:11], v[16:17]")
        a("v_add_f32 v10, v10, v11")
        xreduce(a, 10, 11)
        a(f"v_mul_f32 v10, {f2u(1.0/1024):#x}, v10")
        bf16round(a, 8)
        bf16round(a, 10)
        a(f"v_add_f32 v10, {f2u(1e-5):#x}, v10")
        bf16round(a, 10)
        a("v_sqrt_f32 v10, v10")
        a(f"v_and_b32 v5, 0x3b, v{L}")
        a("v_min_u32 v5, 1, v5")
        a("v_lshlrev_b32 v5, 30, v5")
        bf16round(a, 10)
        a("v_lshl_add_u32 v5, v3, 2, v5")
        a("v_rcp_f32 v9, v10")
        a.lines = sv0
        more = wdma_list(1, PNT) + wdma_list(2, PNT) + adma_half(1, 0) + adma_half(1, 1)
        gap = len(pre.lines) // (len(more) + 1)
        for i, x in enumerate(pre.lines):
            a.lines.append(x)
            if i % gap == gap - 1 and more: a.extend(more.pop(0))
        assert not more
        a(f"s_mov_b32 s{t0}, {WS_STAT}")
        a(f"s_mov_b32 s{t1}, {WS_STAT + 8192}")
        a(f"s_mov_b32 s{t2}, {WS_STAT + 16384}")
        a(f"v_mov_b32 v{T+9}, v8"); a(f"v_mov_b32 v{T+10}, v9"); a(f"v_mov_b32 v{T+11}, v10"); a(f"v_mov_b32 v{T+8}, v5")
        a(f"buffer_store_dword v{T+9}, v{T+8}, {WSR}, s{t0} offen sc1")
        a(f"buffer_store_dword v{T+10}, v{T+8}, {WSR}, s{t1} offen sc1")
        a(f"buffer_store_dword v{T+11}, v{T+8}, {WSR}, s{t2} offen sc1")
        oplog.extend(["st"] * 3)
        for i in range(4): a(f"v_mfma_f32_32x32x16_bf16 v[{16*i}:{16*i+15}], a[128:131], a[128:131], 0")
        a(f"s_lshl_b32 s{t0}, s{sXcd}, 1")
        a(f"s_add_u32 s{t0}, s{t0}, s{sCt}")
        if ffn:
            a(f"s_lshl_b32 s{t0}, s{t0}, 3")
            a(f"s_lshl_b32 s{t1}, s{sRb}, 7")
            a(f"s_add_u32 s{t0}, s{t0}, s{t1}")
            a(f"s_add_u32 s92, s{t0}, {WS_FL + FH}")
        else:
            a(f"s_sub_u32 s{sCt}, s{t0}, 2")
            a(f"s_lshl_b32 s{t0}, s{sCt}, 7")
            a(f"s_lshl_b32 s{t1}, s{sRb}, 3")
            a(f"s_add_u32 s92, s{t0}, s{t1}")
        a(f"s_lshr_b32 s{t0}, s{sSlot}, 2")
        a(f"s_lshl_b32 s{t0}, s{t0}, 8")
        a(f"s_lshl_b32 s93, s{sHead}, 3")
        a(f"s_add_u32 s93, s93, s{t0}")
        a(f"s_add_u32 s93, s93, {WS_FL + FO}")

        def read_list(step):
            buf = step & 1; so = (step & 3) * 16384
            rb = []
            for ft in range(NB):
                r = fr(buf, 8 + ft)
                if ffn and ft == 6: v = vWs1; off = 3072
                else:
                    v = vWo1 if ft & 1 else vWe1
                    off = (ft >> 1) * (512 if ffn else 1024)
                rb.append([f"ds_read_b64_tr_b16 a[{r+2*rd}:{r+2*rd+1}], v{v} offset:{so + rd*4096 + off}" for rd in range(2)])
            ra = [f"ds_read_b128 a[{fr(buf, tt)}:{fr(buf, tt)+3}], v{vAr + (step & 1)} offset:{tt*2048}" for tt in range(8)]
            l = rb[0] + ra
            for x in rb[1:]: l += x
            return l
        def mfmas(buf):
            l = []
            for ft in range(NB):
                for tt in (range(8) if ft % 2 == 0 else range(7, -1, -1)):
                    c = acc(tt, ft); w = fr(buf, 8 + ft); x = fr(buf, tt)
                    if (not ffn) and ft >= 4: w, x = x, w
                    l.append(f"v_mfma_f32_16x16x32_bf16 v[{c}:{c+3}], a[{w}:{w+3}], a[{x}:{x+3}], v[{c}:{c+3}]")
            return l
        ard_adv = [[f"s_add_u32 s{sAw}, s{sArd}, s{sM0A}"], [f"s_add_u32 s{sArd}, s{sArd}, 32768"], [f"s_cmp_eq_u32 s{sArd}, 98304", f"s_cselect_b32 s{sArd}, 0, s{sArd}"]]
        ard_set = [f"v_add_u32 v{vAr}, s{sArd}, v{vArB}", f"v_xor_b32 v{vAr+1}, 64, v{vAr}"]
        stp(a, "p5")
        a(f"s_waitcnt vmcnt({need('W0', 'A0')})")
        a("s_barrier")
        stp(a, "p6")
        a.extend(read_list(0))
        a(f"s_waitcnt vmcnt({need('W1')}) lgkmcnt(0)")
        a("s_barrier")
        def step(k4, dl, vm, reads=True, extra=(), cs=False, span=DMAF):
            m = mfmas(k4 & 1)
            if cs:
                m = [f"v_mfma_f32_16x16x32_bf16 a[{128+4*ft}:{131+4*ft}], a[{fr(k4 & 1, 8 + ft)}:{fr(k4 & 1, 8 + ft)+3}], a[124:127], a[{128+4*ft}:{131+4*ft}]"
                     for ft in range(NB)] + m
            n = len(m)
            sr = []
            if reads:
                rl = read_list(k4 + 1)
                sr = [((i * int(n * RDF)) // len(rl), x) for i, x in enumerate(rl)]
            sd = [((i * int(n * span)) // len(dl), x) for i, x in enumerate(dl)]
            if reads and k4 % 2 == 0:
                sd += [(n - 12 + 2 * i, x) for i, x in enumerate(ard_adv + ard_set)]
            a.extend(sched(m, [sd, sr, list(extra)], BUD if not extra and span == DMAF else 8))
            if vm is not None:
                a(f"s_waitcnt vmcnt({vm}) lgkmcnt(0)")
                a("s_barrier")
        def std_dl(k):
            return wdma_list(k + 4) + (adma_half((k + 5) // 2, 0) if k & 1 else adma_half((k + 4) // 2, 1))
        def std_need(k):
            return need(f"W{k+2}", f"A{(k+2)//2}")
        stp(a, "g1loop")
        dl = wdma_list(3, PNT) + adma_half(2, 0) + adma_half(2, 1); step(0, dl, std_need(0), cs=True, span=0.85)
        dl = wdma_list(4) + wdma_list(5) + adma_half(3, 0); step(1, dl, std_need(1), cs=True, span=0.85)
        dl = std_dl(2); step(2, dl, std_need(2), cs=True)
        e = [f"s_lshl_b32 s{t0}, s{sTile}, 13", f"s_lshl_b32 s{t1}, s{sRb}, 10", f"s_add_u32 s{t0}, s{t0}, s{t1}", f"s_mul_i32 s{t1}, s{sWc}, {NB*64}",
             f"s_add_u32 s{t0}, s{t0}, s{t1}", f"s_add_u32 s{t0}, s{t0}, {WS_CS}", f"v_and_b32 v{T}, 15, v{L}", f"v_or_b32 v{T}, s{sWr}, v{T}",
             f"v_lshlrev_b32 v{T}, 27, v{T}", f"v_and_b32 v{T+1}, 48, v{L}", f"v_or_b32 v{T}, v{T}, v{T+1}", f"s_mov_b32 s{sCnt}, 6"]
        e += [flagld("off", "s[88:91]")]
        e += [f"buffer_store_dwordx4 a[{128+4*ft}:{131+4*ft}], v{T}, {WSR}, s{t0} offen offset:{ft*64} sc1" for ft in range(NB)]
        dl = std_dl(3); step(3, dl, std_need(3), cs=True, extra=[(12 + 2 * i, x) for i, x in enumerate(e)])
        stp(a, "h6")
        a(".p2align 6")
        a(f"L_g1_{kind}_loop:")
        pf = [f"buffer_load_dwordx4 a[120:123], v{vL16}, {R(sOut)}, s{sPf} offen", f"s_add_u32 s{sPf}, s{sPf}, {MB}"]
        for k4 in range(4):
            dl = std_dl(4 + k4)
            if k4 in (0, 2) and PFG1:
                dl += [[pf[0]], [pf[1]]]; oplog.append("pf")
            if k4 == 3:
                dl = [[f"s_cmp_eq_u32 s{sCnt}, 1", f"s_cselect_b32 s{sX+2}, 0, s{sX+2}"]] + dl + [[f"s_sub_u32 s{sCnt}, s{sCnt}, 1"], [f"s_bitcmp1_b32 0x3d, s{sCnt}"]]
            step(k4, dl, std_need(4 + k4))
        a(f"s_cbranch_scc0 L_g1_{kind}_loop")
        a(f"s_cmp_lg_u32 s{sCnt}, 0")
        a(f"s_cbranch_scc1 L_hk5_{kind}")
        b = Asm(); sv = a.lines; a.lines = b.lines
        a(f"L_hk5_{kind}:")
        a(f"s_cmp_lg_u32 s{sCnt}, 5")
        a(f"s_cbranch_scc1 L_hk4_{kind}")
        stp(a, "h5")
        a(f"v_mfma_f32_32x32x16_bf16 a[128:143], a[160:163], a[160:163], 0")
        a(f"v_mfma_f32_32x32x16_bf16 a[144:159], a[160:163], a[160:163], 0")
        poll("off", True, "s[88:91]", "0", "eq")
        a(f"v_readfirstlane_b32 s{sN}, v{vFl}")
        a(f"v_readfirstlane_b32 s{sN+1}, v{vFl+1}")
        a(f"s_lshl_b32 s{t0}, s2, 5")
        a(f"s_add_u32 s{t0}, s{t0}, {WS_FL + F0}")
        publish(t0, T)
        srd(a, 88, pWO, 0, 1024 * 2048)
        a(f"s_and_b32 s{t0}, s{sPf}, {MB - 1}")
        a(f"s_add_u32 s{t1}, s{t0}, {MB}")
        a(f"buffer_load_dwordx4 a[120:123], v{vL16}, s[88:91], s{t0} offen")
        a(f"buffer_load_dwordx4 a[120:123], v{vL16}, s[88:91], s{t1} offen")
        if CPF: code_pf(T + 2)
        a(f"s_branch L_g1_{kind}_loop")
        a(f"L_hk4_{kind}:")
        a(f"s_cmp_lg_u32 s{sCnt}, 4")
        a(f"s_cbranch_scc1 L_hk3_{kind}")
        a(f"s_lshl_b32 s{t0}, s{sRb}, 5")
        a(f"v_add_u32 v{T}, s{t0}, v{L}")
        a(f"s_and_b32 s{t0}, s2, 0xc7")
        a(f"v_and_b32 v{T+1}, 7, v{L}")
        a(f"v_lshl_add_u32 v{T+1}, v{T+1}, 3, s{t0}")
        a(f"v_cmp_gt_u32 vcc, 32, v{L}")
        a("s_nop 1")
        a(f"v_cndmask_b32 v{T+1}, v{T+1}, v{T}, vcc")
        a(f"v_lshlrev_b32 v{T+1}, 5, v{T+1}")
        a(f"v_add_u32 v{T+1}, {WS_FL + F0}, v{T+1}")
        a(flagld(f"v{T+1}"))
        a(f"s_branch L_g1_{kind}_loop")
        a(f"L_hk3_{kind}:")
        a(f"s_cmp_eq_u32 s{sCnt}, 3")
        a(f"s_cbranch_scc1 L_hk3b_{kind}")
        stp(a, "h2")
        if CPF:
            code_addr(vFl)
            a(f"global_load_dwordx4 a[120:123], v[{vFl}:{vFl+1}], off")
        a(f"s_branch L_g1_{kind}_loop")
        a(f"L_hk3b_{kind}:")
        stp(a, "h1")
        poll(f"v{T+1}", True)
        a(f"s_lshl_b32 s{t0}, s{sWave}, 8")
        a(f"v_lshl_add_u32 v{T}, v{L}, 2, s{t0}")
        a(f"s_lshl_b32 s{t0}, s{sTile}, 13")
        a(f"s_add_u32 s{t0}, s{t0}, {WS_CS}")
        a(f"s_add_u32 s{t1}, s{t0}, 4096")
        for i in range(8):
            a(f"buffer_load_dword v{T+2+i}, v{T}, {WSR}, s{t0 if i < 4 else t1} offen offset:{(i&3)*1024} sc1")
        a(f"s_lshl_b32 s{t0}, s{sRb}, 10")
        a(f"s_add_u32 s{t0}, s{t0}, {WS_STAT}")
        a(f"s_add_u32 s{t1}, s{t0}, 8192")
        a(f"buffer_load_dword v{T+10}, v{T}, {WSR}, s{t0} offen sc1")
        a(f"buffer_load_dword v{T+11}, v{T}, {WSR}, s{t1} offen sc1")
        stp(a, "h1e")
        a(f"s_branch L_g1_{kind}_loop")
        ool.extend([x.text for x in b.lines]); a.lines = sv
        stp(a, "tail")
        adds = [f"v_add_f32 v{T+2+2*i}, v{T+2+2*i}, v{T+3+2*i}" for i in range(4)] + \
               [f"v_add_f32 v{T+2}, v{T+2}, v{T+4}", f"v_add_f32 v{T+6}, v{T+6}, v{T+8}", f"v_add_f32 v{T+2}, v{T+2}, v{T+6}",
                f"v_add_u32 v{T}, {LDS_SCR}, v{T}"]
        step(0, [], nW + 4, extra=[(2 + 3 * i, x) for i, x in enumerate(adds)])
        step(1, [], 4, extra=[(40, f"ds_write_b32 v{T}, v{T+2}"), (42, f"ds_write_b32 v{T}, v{T+10} offset:1024"), (44, f"ds_write_b32 v{T}, v{T+11} offset:2048")])
        e = Asm(); sv = a.lines; a.lines = e.lines
        if ffn:
            a(f"s_lshl_b32 s{t0}, s{sRb}, 14")
            a(f"s_lshl_b32 s{t1}, s{sWr}, 13")
            a(f"s_add_u32 s{t0}, s{t0}, s{t1}")
            a(f"v_add_u32 v{vO}, s{t0}, v{vL16}")
            a(f"v_add_u32 v{vO+1}, 4096, v{vO}")
            a(f"s_lshl_b32 s{t1}, s{sWc}, 9")
            a(f"s_add_u32 s{t0}, s{t0}, s{t1}")
            a(f"v_lshrrev_b32 v{vO+2}, 5, v{L}")
            a(f"v_lshl_add_u32 v{vO+2}, v{vO+2}, 8, s{t0}")
            a(f"v_and_b32 v{vO+3}, 15, v{L}")
            a(f"v_lshl_add_u32 v{vO+2}, v{vO+3}, 4, v{vO+2}")
            a(f"v_bfe_u32 v{vO+3}, v{L}, 4, 1")
            a(f"v_lshl_add_u32 v{vO+2}, v{vO+3}, 3, v{vO+2}")
            a(f"v_add_u32 v{vO+3}, 4096, v{vO+2}")
            a(f"s_mul_i32 s{t0}, s{sXcd}, 14")
            a(f"s_mul_i32 s{t1}, s{sCt}, 6")
            a(f"s_mul_i32 s{t2}, s{sWc}, 3")
            a(f"s_add_u32 s{t1}, s{t1}, s{t2}")
            a(f"s_add_u32 s{t1}, s{t1}, s{t0}")
            a(f"s_add_u32 s{t1}, s{t1}, {32 + WS_A2 // 131072}")
            a(f"s_lshl_b32 s{t1}, s{t1}, 17")
            a(f"s_add_u32 s{t2}, s{t0}, s{sCt}")
            a(f"s_add_u32 s{t2}, s{t2}, {44 + WS_A2 // 131072}")
            a(f"s_lshl_b32 s{t2}, s{t2}, 17")
            a(f"s_add_u32 s{t3}, s{t1}, 131072")
            a(f"s_add_u32 s{t4}, s{t1}, 262144")
        else:
            a(f"s_lshl_b32 s{t0}, s{sRb}, 3")
            a(f"s_lshl_b32 s{t1}, s{sWr}, 2")
            a(f"s_add_u32 s{t0}, s{t0}, s{t1}")
            a(f"s_lshl_b32 s{t0}, s{t0}, 11")
            a(f"s_lshl_b32 s{t3}, s{sCt}, 1")
            a(f"s_add_u32 s{t3}, s{t3}, s{sWc}")
            a(f"s_lshl_b32 s{t3}, s{t3}, 17")
            a(f"s_add_u32 s{t1}, s{t3}, s{t0}")
            a(f"s_lshl_b32 s{t2}, s{t1}, 1")
            a(f"s_add_u32 s{t2}, s{t2}, {WS_KV}")
            a(f"s_add_u32 s{t1}, s{t1}, {WS_Q}")
            a(f"v_lshrrev_b32 v{vO+2}, 4, v{L}")
            a(f"v_lshlrev_b32 v{vO+2}, 9, v{vO+2}")
            a(f"v_and_b32 v{vO+3}, 15, v{L}")
            a(f"v_lshl_add_u32 v{vO}, v{vO+3}, 4, v{vO+2}")
            a(f"v_bfe_u32 v{vO+3}, v{L}, 2, 2")
            a(f"v_lshl_add_u32 v{vO+2}, v{vO+3}, 7, v{vO+2}")
            a(f"v_and_b32 v{vO+3}, 3, v{L}")
            a(f"v_lshl_add_u32 v{vO+1}, v{vO+3}, 4, v{vO+2}")
            a(f"s_mov_b32 s{t4}, {f2u(QSCALE):#x}")
        srd(a, sKV, 4, WS_KV, SZ_KV)
        a(f"s_mul_i32 s{t5}, s{sWc}, {NB*64}")
        a(f"s_add_u32 s{t5}, s{t5}, {LDS_SCR}")
        a(f"v_and_b32 v248, 48, v{L}")
        a(f"v_add_u32 v248, s{t5}, v248")
        a(f"s_lshl_b32 s{t0}, s{sWr}, 9")
        a(f"s_add_u32 s{t0}, s{t0}, {LDS_SCR + 1024}")
        a(f"v_and_b32 v249, 15, v{L}")
        a(f"v_lshl_add_u32 v249, v249, 2, s{t0}")
        if not ffn:
            a(f"v_and_b32 v222, 15, v{L}")
            a(f"v_lshl_add_u32 v222, v222, 2, s{t5}")
            a(f"v_and_b32 v223, 48, v{L}")
            a(f"v_add_u32 v223, s{t0}, v223")
        el = []
        for x in e.lines:
            if x.op in ("s_addc_u32", "s_subb_u32", "s_cselect_b32"): el[-1].append(x.text)
            else: el.append([x.text])
        a.lines = sv
        n = 8 * NB
        step(2, [], 0, extra=[(2 + (i * (n - 12)) // len(el), x) for i, x in enumerate(el)])
        rds = []
        for tt in range(8):
            rds.append(f"ds_read_b32 v{ST+2*tt}, v249 offset:{tt*64}")
            if not ffn: rds.append(f"ds_read_b32 v{ST+2*tt+1}, v249 offset:{1024 + tt*64}")
        if ffn:
            rds.append(f"ds_read_b128 v[244:247], v248 offset:{6*64}")
        else:
            for ft in range(4): rds.append(f"ds_read_b128 v[{192+4*ft}:{195+4*ft}], v248 offset:{ft*64}")
            for vt in range(2): rds.append(f"ds_read_b32 v{208+2*vt}, v222 offset:{(4+vt)*64}")
        step(3, [], None, reads=False, extra=[(2 + 2 * i, x) for i, x in enumerate(rds)])
        stp(a, "g1end")
        BC = "op_sel_hi:[1,0,1]"
        if ffn:
            a("s_nop 0")
            a(f"s_mov_b32 s{sH1}, s{t1}")
            a(f"s_mov_b32 s{sH2}, s{t2}")
            a(f"s_mov_b32 s{sPub}, s92")
            srd(a, sOut, 4, 0, WS_END)
            a("s_waitcnt lgkmcnt(0)")
            pend = []
            for u in range(8):
                c = acc(u, 6)
                for h in range(2):
                    a(f"v_pk_fma_f32 v[{c+2*h}:{c+2*h+1}], v[{244+2*h}:{245+2*h}], v[{ST+2*u}:{ST+2*u+1}], v[{c+2*h}:{c+2*h+1}] {BC}")
                a(f"v_cvt_pk_bf16_f32 v{c}, v{c}, v{c+1}")
                a(f"v_cvt_pk_bf16_f32 v{c+1}, v{c+2}, v{c+3}")
                a(f"v_pk_max_i16 v{c}, v{c}, 0")
                a(f"v_pk_max_i16 v{c+1}, v{c+1}, 0")
                if u in direct: pend.append(hstore(u, f"v[{c}:{c+1}]"))
                else:
                    for e_ in range(2): a(f"v_accvgpr_write_b32 a{4*parked.index(u)+e_}, v{c+e_}")
                if u == 1:
                    a(f"ds_read_b64 v[194:195], v248 offset:64")
                    a(f"ds_read_b64 v[198:199], v248 offset:72")
                if u == 3:
                    a(f"ds_read_b64 v[202:203], v248 offset:0")
                    a(f"ds_read_b64 v[206:207], v248 offset:8")
            for i, r in enumerate((210, 214, 218, 222)):
                a(f"ds_read_b64 v[{r}:{r+1}], v248 offset:{128 + (i>>1)*64 + (i&1)*8}")
            a(f"ds_read_b128 v[244:247], v248 offset:{4*64}")
            CSM = {0: (202, 206), 1: (194, 198), 2: (210, 214), 3: (218, 222), 4: (244, 246), 5: (194, 198)}
            groups = at_load_groups()
            polled = False; after = []
            def drip(k):
                for _ in range(k):
                    if groups:
                        a.extend(groups.pop(0)); after.append("ld")
                    elif pend:
                        a.extend(pend.pop(0)); after.append("st")
            for u in range(8, 32):
                p, tt = divmod(u - 8, 8)
                if u == 8: a("s_waitcnt lgkmcnt(5)")
                if u == 16:
                    a("s_waitcnt lgkmcnt(0)")
                    a(f"ds_read_b64 v[194:195], v248 offset:{5*64}")
                    a(f"ds_read_b64 v[198:199], v248 offset:{5*64+8}")
                if u == 24: a("s_waitcnt lgkmcnt(0)")
                if u == EPOLL - ELEAD: a(flagld(f"v{vFa}"))
                c0, c1 = acc(tt, 2 * p), acc(tt, 2 * p + 1)
                for c, cs in ((c0, CSM[2 * p]), (c1, CSM[2 * p + 1])):
                    for h in range(2):
                        a(f"v_pk_fma_f32 v[{c+2*h}:{c+2*h+1}], v[{cs[h]}:{cs[h]+1}], v[{ST+2*tt}:{ST+2*tt+1}], v[{c+2*h}:{c+2*h+1}] {BC}")
                a(f"v_cvt_pk_bf16_f32 v{c0}, v{c0}, v{c0+1}")
                a(f"v_cvt_pk_bf16_f32 v{c0+1}, v{c0+2}, v{c0+3}")
                a(f"v_cvt_pk_bf16_f32 v{c0+2}, v{c1}, v{c1+1}")
                a(f"v_cvt_pk_bf16_f32 v{c0+3}, v{c1+2}, v{c1+3}")
                for e_ in range(4): a(f"v_pk_max_i16 v{c1+e_}, v{c0+e_}, 0")
                if u in direct: pend.append(hstore(u, f"v[{c1}:{c1+3}]"))
                else:
                    for e_ in range(4): a(f"v_accvgpr_write_b32 a{4*parked.index(u)+e_}, v{c1+e_}")
                if u == EPOLL:
                    stp(a, "e1")
                    a(f"s_waitcnt vmcnt(0)")
                    stp(a, "e2")
                    poll(f"v{vFa}", True)
                    stp(a, "e4")
                    polled = True
                if polled: drip(4)
            drip(64)
            a("s_nop 1")
            at_init()
            idx = [i for i, z in enumerate(after) if z == "ld"][11]
            a(f"s_waitcnt vmcnt({len(after) - 1 - idx})")
            a("s_branch L_at_entry")
        else:
            QSC = SC
            a(f"s_mov_b32 s{sPub}, 0")
            a("s_waitcnt lgkmcnt(0)")
            a("s_nop 4")
            for b_ in range(4):
                for e_ in range(2):
                    a(f"ds_read_b128 v[{212+4*e_}:{215+4*e_}], v223 offset:{(2*b_+e_)*64}")
                a(f"ds_read_b128 v[244:247], v223 offset:{1024 + (2*b_)*64}")
                a(f"ds_read_b64 v[220:221], v223 offset:{1024 + (2*b_+1)*64}")
                a(f"ds_read_b64 v[242:243], v223 offset:{1024 + (2*b_+1)*64 + 8}")
                for X in (1, 0):
                    for h in range(2):
                        tt = 2 * b_ + h
                        st_ = f"v[{ST+2*tt}:{ST+2*tt+1}]"
                        if X == 0: a(f"v_mul_f32 v{ST+2*tt+1}, s{t4}, v{ST+2*tt+1}")
                        c0 = acc(tt, 2 * X)
                        for e_ in range(2):
                            c = acc(tt, 2 * X + e_); cs = 192 + 4 * (2 * X + e_)
                            for h2 in range(2):
                                a(f"v_pk_fma_f32 v[{c+2*h2}:{c+2*h2+1}], v[{cs+2*h2}:{cs+2*h2+1}], {st_}, v[{c+2*h2}:{c+2*h2+1}] {BC}")
                            for h2 in range(2):
                                a(f"v_pk_mul_f32 v[{c+2*h2}:{c+2*h2+1}], v[{c+2*h2}:{c+2*h2+1}], {st_} op_sel:[0,1]")
                        c1 = acc(tt, 2 * X + 1)
                        a(f"v_cvt_pk_bf16_f32 v{c0}, v{c0}, v{c0+1}")
                        a(f"v_cvt_pk_bf16_f32 v{c0+1}, v{c0+2}, v{c0+3}")
                        a(f"v_cvt_pk_bf16_f32 v{c0+2}, v{c1}, v{c1+1}")
                        a(f"v_cvt_pk_bf16_f32 v{c0+3}, v{c1+2}, v{c1+3}")
                        if X: a(f"buffer_store_dwordx4 v[{c0}:{c0+3}], v{vO+1}, {WSR}, s{t2} offen offset:{h*64} {QSC}")
                        else: a(f"buffer_store_dwordx4 v[{c0}:{c0+3}], v{vO}, {WSR}, s{t1} offen offset:{h*256} {QSC}")
                a("s_waitcnt lgkmcnt(0)")
                for vt in range(2):
                    c0 = acc(2 * b_, 4 + vt)
                    for e_ in range(2):
                        c = acc(2 * b_ + e_, 4 + vt)
                        rs = ((244, 246), (220, 242))[e_]
                        for h2 in range(2):
                            a(f"v_pk_fma_f32 v[{c+2*h2}:{c+2*h2+1}], v[{212+4*e_+2*h2}:{213+4*e_+2*h2}], v[{208+2*vt}:{209+2*vt}], v[{c+2*h2}:{c+2*h2+1}] {BC}")
                        for h2 in range(2):
                            a(f"v_pk_mul_f32 v[{c+2*h2}:{c+2*h2+1}], v[{c+2*h2}:{c+2*h2+1}], v[{rs[h2]}:{rs[h2]+1}]")
                    c1 = acc(2 * b_ + 1, 4 + vt)
                    a(f"v_cvt_pk_bf16_f32 v{c0}, v{c0}, v{c0+1}")
                    a(f"v_cvt_pk_bf16_f32 v{c0+1}, v{c0+2}, v{c0+3}")
                    a(f"v_cvt_pk_bf16_f32 v{c0+2}, v{c1}, v{c1+1}")
                    a(f"v_cvt_pk_bf16_f32 v{c0+3}, v{c1+2}, v{c1+3}")
                    a(f"buffer_store_dwordx4 v[{c0}:{c0+3}], v{vO}, {WSR}, s{t2} offen offset:{2048 + vt*256} {QSC}")
                a(f"s_add_u32 s{t1}, s{t1}, 2048")
                a(f"s_add_u32 s{t2}, s{t2}, 4096")
            stp(a, "e1")
            a("s_waitcnt vmcnt(0)")
            a("s_barrier")
            stp(a, "e2")
            publish(92, T)
            poll(f"v{vFa}", False)
            stp(a, "e4")
            for g_ in at_load_groups(): a.extend(g_)
            srd(a, sOut, 4, 0, 0)
            for r in (sH1, sH2, t3, t4): a(f"s_mov_b32 s{r}, 0")
            at_init()
            a("s_waitcnt vmcnt(0)")
    g1("ffn")
    a("L_g1_qkv:")
    g1("qkv")

    a("L_at_entry:")
    stp(a, "atentry")
    a("s_barrier")
    def rdK(t, tl):
        b = Kf[t & 1]
        return [f"ds_read_b128 v[{b}:{b+3}], v{vCur} offset:{tl*4096}", f"ds_read_b128 v[{b+4}:{b+7}], v{vCur} offset:{tl*4096+1024}"]
    def rdV(t, tl):
        b = Vf[t & 1]
        return [f"ds_read_b128 v[{b}:{b+3}], v{vCur} offset:{tl*4096+2048}", f"ds_read_b128 v[{b+4}:{b+7}], v{vCur} offset:{tl*4096+3072}"]
    def qk(x, t, c0=None):
        s = S[x]; k = Kf[t & 1]; q = Q[x]
        c = f"v[{NM[x]}:{NM[x]+15}]" if c0 is None else c0
        return [f"v_mfma_f32_32x32x16_bf16 v[{s}:{s+15}], v[{k}:{k+3}], v[{q}:{q+3}], {c}",
                f"v_mfma_f32_32x32x16_bf16 v[{s}:{s+15}], v[{k+4}:{k+7}], v[{q+4}:{q+7}], v[{s}:{s+15}]"]
    def PV(x, t, h):
        v = Vf[t & 1]
        return f"v_smfmac_f32_32x32x32_bf16 v[{O[x]}:{O[x]+15}], v[{v+4*h}:{v+4*h+3}], v[{D[x]+8*h}:{D[x]+8*h+7}], v{IDX}"
    def LS(x, h):
        return f"v_smfmac_f32_16x16x64_bf16 v[{Lr[x]}:{Lr[x]+3}], v[{ONE}:{ONE+3}], v[{D[x]+8*h}:{D[x]+8*h+7}], v{IDX}"
    a.extend(rdK(0, 0))
    a.extend(rdV(0, 0))
    a("s_waitcnt lgkmcnt(0)")
    a.extend(qk(0, 0, "0"))
    a.extend(qk(1, 0, "0"))
    a("s_nop 7")
    a("s_nop 1")
    def g2_setup():
        a(f"s_and_b32 s{t0}, s{sXcd}, 1")
        a(f"s_lshl_b32 s{t0}, s{t0}, 3")
        a(f"s_lshr_b32 s{t1}, s{sSlot}, 2")
        a(f"s_add_u32 s{sCb}, s{t0}, s{t1}")
        a(f"s_lshl_b32 s{t0}, s{sRb2}, 13")
        a(f"v_add_u32 v{vA}, s{t0}, v{vL16}")
        a(f"v_add_u32 v{vA+1}, 4096, v{vA}")
        a(f"v_lshrrev_b32 v{U}, 5, v{L}")
        a(f"v_bfe_u32 v{U+1}, v{L}, 4, 1")
        a(f"v_bfe_u32 v{U+2}, v{L}, 2, 2")
        a(f"v_and_b32 v{U+3}, 3, v{L}")
        a(f"v_lshl_add_u32 v{vW}, v{U+1}, 2, v{U+2}")
        a(f"v_lshlrev_b32 v{vW}, 11, v{vW}")
        a(f"v_lshlrev_b32 v{vW+1}, 1, v{U+1}")
        a(f"v_xor_b32 v{vW+1}, v{vW+1}, v{U+3}")
        a(f"v_lshl_add_u32 v{vW}, v{vW+1}, 4, v{vW}")
        a(f"v_lshl_add_u32 v{vW}, v{U}, 6, v{vW}")
        a(f"s_lshl_b32 s{t0}, s{sCb}, 7")
        a(f"v_add_u32 v{vW}, s{t0}, v{vW}")
        for pc in range(1, 4): a(f"v_add_u32 v{vW+pc}, {pc*(16384-1024)}, v{vW}")
        a(f"s_lshl_b32 s{sM0g}, s{sWave}, 14")
        a(f"s_add_u32 s{sM0g}, s{sM0g}, {LDS_W1}")
        a(f"v_lshl_add_u32 v{vWe}, v{U}, 10, s{sM0g}")
        a(f"v_lshl_add_u32 v{vWe}, v{U+1}, 8, v{vWe}")
        a(f"v_lshl_add_u32 v{vWe}, v{U+2}, 6, v{vWe}")
        a(f"v_lshl_add_u32 v{vWe}, v{U+1}, 5, v{vWe}")
        a(f"v_lshl_add_u32 v{vWe}, v{U+3}, 3, v{vWe}")
        a(f"v_xor_b32 v{vWo}, 32, v{vWe}")
        a(f"s_lshl_b32 s{t1}, s{sRb2}, 7")
        a(f"s_lshl_b32 s{t2}, s{sWave}, 5")
        a(f"s_add_u32 s{t1}, s{t1}, s{t2}")
        a(f"s_lshl_b32 s{t2}, s{t1}, 2")
        a(f"s_add_u32 s{t2}, s{t2}, {WS_STAT + 8192}")
        a(f"s_lshl_b32 s{t1}, s{t1}, 11")
        a(f"s_add_u32 s{t1}, s{t1}, s{t0}")
        a(f"v_and_b32 v{U}, 15, v{L}")
        a(f"v_lshl_add_u32 v{vX}, v{U}, 11, s{t1}")
        a(f"v_lshrrev_b32 v{U+1}, 4, v{L}")
        a(f"v_lshl_add_u32 v{vX}, v{U+1}, 3, v{vX}")
        a(f"v_lshlrev_b32 v{U}, 2, v{U}")
        a(f"s_and_b32 s{t0}, s{sSlot}, 28")
        a(f"s_add_u32 s{t0}, s{t0}, s{sWave}")
        a(f"s_lshl_b32 s{t0}, s{t0}, 8")
        a(f"s_add_u32 s{t0}, s{t0}, {WS_STAT + 16384}")
        a(f"v_and_b32 v{U+1}, 31, v{L}")
        a(f"v_lshlrev_b32 v{U+1}, 2, v{U+1}")
        for x in range(2):
            a(f"buffer_load_dword v{vSig+x}, v{U+1}, {WSR}, s{t0} offen offset:{x*128} sc1")
            a(f"buffer_load_dword v{vRs2+x}, v{U}, {WSR}, s{t2} offen offset:{x*64} sc1")
        if CPF: code_addr(248)
        a(f"s_lshl_b32 s{sKA}, s{sWave}, 17")
        a(f"s_add_u32 s{sKA}, s{sKA}, {WS_A2 + 32*131072}")
        a(f"s_lshl_b32 s{sKW}, s{sWave}, 16")
    for x in range(2):
        s0 = S[x]
        a(f"v_max3_f32 v{U}, v{s0}, v{s0+1}, v{s0+2}")
        for i in range(3, 15, 2): a(f"v_max3_f32 v{U}, v{U}, v{s0+i}, v{s0+i+1}")
        a(f"v_max_f32 v{U}, v{U}, v{s0+15}")
        a(f"v_mov_b32 v{U+2}, v{U}")
        a("s_nop 1")
        a(f"v_permlane32_swap_b32 v{U}, v{U+2}")
        a(f"v_max_f32 v{U}, v{U}, v{U+2}")
        a(f"v_sub_f32 v{NM[x]}, 0, v{U}")
        a(f"v_sub_f32 v{NM[x]+1}, 0, v{U}")
        for i in range(2, 16, 2): a(f"v_mov_b64 v[{NM[x]+i}:{NM[x]+i+1}], v[{NM[x]}:{NM[x]+1}]")
        if x == 0:
            for i in range(0, 16, 2): a(f"v_pk_add_f32 v[{s0+i}:{s0+i+1}], v[{s0+i}:{s0+i+1}], v[{NM[x]}:{NM[x]+1}]")
    a("s_nop 1")
    stp(a, "atloop")

    def acc2(tt, ft): return 128 + (tt * 4 + ft) * 4
    def ab(buf, tt): return buf * 32 + tt * 4
    def gm(v, tt, ft):
        c = acc2(tt, ft); w = WF[v & 1] + ft * 4; x = ab(v, tt)
        return f"v_mfma_f32_16x16x32_bf16 a[{c}:{c+3}], v[{w}:{w+3}], a[{x}:{x+3}], a[{c}:{c+3}]"
    def aload(buf, tt):
        r = ab(buf, tt)
        return f"buffer_load_dwordx4 a[{r}:{r+3}], v{vA + (tt>>2)}, {WSR}, s{sKA} offen offset:{(tt&3)*1024} {SC}"
    def wdma(pc):
        return f"buffer_load_dwordx4 v{vW+pc}, {R(sW)}, s{sKW} offen offset:{pc*1024} lds"
    def wread(slot, buf, ft):
        r = WF[buf] + ft * 4
        return [f"ds_read_b64_tr_b16 v[{r+2*rd}:{r+2*rd+1}], v{vWo if ft&1 else vWe} offset:{slot*4096 + rd*2048 + (ft>>1)*512}" for rd in range(2)]
    W0 = "s_waitcnt lgkmcnt(0)"
    def phase(x, t, doqk=True, f=None):
        y = 1 - x
        f = f or {}
        E = lambda i: f"v_exp_f32 v{D[x]+i}, v{S[x]+i}"
        q = qk(y, t + x) if doqk else [None, None]
        g = lambda k: f.get(k, [])
        seq = [q[0]] + g(0) + [E(0), E(1), E(2), q[1]] + g(1) + [E(3), E(4), E(5), PV(y, t - 1 + x, 1)] + g(2) + [E(6), E(7), E(8),
               LS(y, 1)] + g(3) + [E(9), E(10), PV(x, t, 0)] + g(4) + [E(11), E(12), E(13), LS(x, 0)] + g(5) + [E(14), E(15)]
        a.extend([z for z in seq if z])
    ring_adv = [f"s_add_u32 s{sMb}, s{sRing}, s{sM0k}", f"s_add_u32 s{sRing}, s{sRing}, 32768", f"s_cmp_eq_u32 s{sRing}, 98304",
                f"s_cselect_b32 s{sRing}, 0, s{sRing}"]
    kv_sel = [f"s_cmp_gt_u32 s{sCntA}, 5", f"s_cselect_b32 s{sKV+2}, 0, {SZ_KV}"]
    hq = list(parked)
    kv0 = kv_groups(2, 6)
    def it_pure(c, j, lastpure):
        t = j + 1
        k = rdK(t + 1, j); v = rdV(t + 1, j)
        fa = {0: [k[0]], 1: [k[1]], 5: [W0]}
        fb = {0: [v[0]], 1: [v[1]], 5: [W0]}
        if j == 0:
            fa[2] = [f"s_mov_b32 m0, s{sMb}"]
            if c > 5: fa[3] = [f"s_mov_b32 s{sKV+2}, 0"]
        if j == 4:
            fa[2] = [f"s_add_u32 m0, s{sMb}, 16384", f"s_add_u32 s{sSo}, s{sSo}, 16384"]
        fa[4] = [kvdma(j)]
        if j == 7:
            fa[2] = ring_adv[0:2]; fa[3] = ring_adv[2:4]
            fb[2] = [f"s_add_u32 s{sSo}, s{sSo}, 16384"]
        if c == 0:
            if j == 4: fa[2] = []
            if j == 7: fb[2] = []
            fa[4] = kv0.pop(0); fb[4] = kv0.pop(0)
            if j <= 2: fb[3] = fb[4]; fb[4] = kv0.pop(0)
        for f in (fa, fb):
            for sl in (2, 3)[:SPP]:
                if hq:
                    u = hq.pop(0); r = 4 * parked.index(u)
                    f[sl] = f.get(sl, []) + hstore(u, f"a[{r}:{r+(1 if u < 8 else 3)}]")
        if lastpure and j == POLLAT:
            fb[4] = fb.get(4, []) + [flagld(f"v{vFa2}")]
        return fa, fb, t
    def kv_m0(j):
        return f"s_mov_b32 m0, s{sMb}" if j < 4 else f"s_add_u32 m0, s{sMb}, 16384"
    def trip_sa(j, x):
        l = []
        if j == 0 and x == 0: l += kv_sel
        if j == 3 and x == 1: l += [f"s_add_u32 s{sSo}, s{sSo}, 16384"]
        if j == 7 and x == 1: l += [f"s_add_u32 s{sSo}, s{sSo}, 16384"] + ring_adv
        return l
    def kstep_adv():
        return [f"s_add_u32 s{sKA}, s{sKA}, {4*131072}", f"s_add_u32 s{sKW}, s{sKW}, {4*65536}"]
    def it_load(j):
        t = j + 1; v = j >> 1
        for x in range(2):
            ph = 2 * (j & 1) + x
            kv = rdK(t + 1, j) if x == 0 else rdV(t + 1, j)
            tr = wread(0, 0, ph) if v == 3 else []
            sa = trip_sa(j, x)
            wait = "s_waitcnt vmcnt(28) lgkmcnt(0)" if ph == 3 else W0
            f = {0: [kv[0], kv[1]], 1: sa[0:2] + tr, 2: [f"s_add_u32 m0, s{sM0g}, {v*4096}", aload(v, 2 * ph)], 3: sa[2:] + [wdma(ph)],
                 4: ([kv_m0(j)] if x == 0 else []), 5: [wait, aload(v, 2 * ph + 1)] + ([kvdma(j)] if x == 0 else [])}
            if ph == 3: f[5] += kstep_adv()
            if j == 7 and x == 1:
                f[4] = [f"s_add_u32 s{sCntA}, s{sCntA}, 1"]
                f[5] += ["s_barrier", f"v_add_u32 v{vCur}, s{sRing}, v{vL16}"]
            phase(x, t, f=f)
    def it_comb(j):
        t = j + 1; v = j >> 1
        for x in range(2):
            y = 1 - x
            ph = 2 * (j & 1) + x
            E = lambda i: f"v_exp_f32 v{D[x]+i}, v{S[x]+i}"
            q = qk(y, t + x)
            kv = rdK(t + 1, j) if x == 0 else rdV(t + 1, j)
            tr = wread((v + 1) & 3, (v + 1) & 1, ph)
            Gm = [gm(v, 2 * ph, ft) for ft in range(4)] + [gm(v, 2 * ph + 1, ft) for ft in range(3, -1, -1)]
            sa = trip_sa(j, x) + [None] * 5
            wait = "s_waitcnt vmcnt(28) lgkmcnt(0)" if ph == 3 else W0
            last = (j == 7 and x == 1)
            seq = [Gm[0], kv[0], kv[1], q[0], sa[0], E(0), E(1), E(2), Gm[1], sa[1], E(3), q[1], sa[2], E(4), E(5), E(6), Gm[2], sa[3], E(7),
                   PV(y, t - 1 + x, 1), tr[0], E(8), E(9), LS(y, 1), tr[1], Gm[3], sa[4], E(10), PV(x, t, 0), aload(v, 2 * ph), E(11), E(12),
                   Gm[4], f"s_add_u32 m0, s{sM0g}, {v*4096}", E(13), LS(x, 0), wdma(ph), Gm[5],
                   kv_m0(j) if x == 0 else (f"s_add_u32 s{sCntA}, s{sCntA}, 1" if last else None), E(14), Gm[6], wait,
                   "s_barrier" if last else None, E(15), Gm[7], aload(v, 2 * ph + 1), kvdma(j) if x == 0 else None]
            if CPF and j == 2 and x == 1: seq.append(f"global_load_dwordx4 v[{U+4}:{U+7}], v[248:249], off")
            if ph == 3: seq += kstep_adv()
            if last: seq += [f"v_add_u32 v{vCur}, s{sRing}, v{vL16}", f"s_cmp_lt_u32 s{sCntA}, 8"]
            a.extend([z for z in seq if z])

    NPURE = 7 - NC
    seqs = []
    for c in range(NPURE):
        for j in range(1 if c == 0 else 0, 8):
            seqs.append((c, j) + it_pure(c, j, c == NPURE - 1))
    assert not hq
    log = []
    def younger(pred):
        idx = [i for i, tag in enumerate(log) if pred(tag)]
        return len(log) - 1 - idx[-1] if idx else len(log)
    for (c, j, fa, fb, t) in seqs:
        for f in (fa, fb):
            for sl in range(5):
                for z in f.get(sl, []):
                    if z.startswith("buffer_"):
                        log.append("kv%d" % (sum(1 for g in log if g.startswith("kv")) // 8 - 1) if " lds" in z else ("st" if "store" in z else "poll"))
        need = 63
        pub = (8 * c + j == PUBAT)
        if j == 7: need = min(need, younger(lambda g: g == "kv%d" % (c - 1)))
        if pub: need = min(need, younger(lambda g: g == "st"))
        if j == 7 or pub:
            fb[5] = [f"s_waitcnt vmcnt({need}) lgkmcnt(0)", "s_barrier"]
            if j == 7: fb[5].append(f"v_add_u32 v{vCur}, s{sRing}, v{vL16}")
        phase(0, t, f=fa)
        phase(1, t, f=fb)
        if pub:
            assert log.count("st") == len(parked)
            a(f"s_cmp_eq_u32 s{sPub}, 0")
            a("s_cbranch_scc1 L_at_np")
            publish(sPub, U)
            a("L_at_np:")
    stp(a, "pureend")
    a(f"s_mov_b32 s{sCntA}, {NPURE}")
    g2_setup()
    a(f"s_waitcnt vmcnt({younger(lambda g: g == 'poll') + 4})")
    poll(f"v{vFa2}", True)
    stp(a, "fhok")
    for j in range(8): it_load(j)
    if NC:
        a(".p2align 6")
        a("L_cb_loop:")
        for j in range(8): it_comb(j)
        a("s_cbranch_scc1 L_cb_loop")
    phase(0, 63)
    phase(1, 63, doqk=False)
    a("s_nop 1")
    a(PV(1, 63, 1)); a(LS(1, 1))
    stp(a, "atend")
    a(f"v_bfe_u32 v{U+2}, v{L}, 4, 1")
    a(f"v_lshlrev_b32 v{U+2}, 10, v{U+2}")
    a(f"v_lshrrev_b32 v{U+3}, 5, v{L}")
    a(f"v_lshl_add_u32 v{U+2}, v{U+3}, 8, v{U+2}")
    a(f"v_and_b32 v{U+3}, 15, v{L}")
    a(f"v_lshl_add_u32 v{U+2}, v{U+3}, 4, v{U+2}")
    a(f"s_lshr_b32 s{t0}, s{sRb2}, 1")
    a(f"s_lshl_b32 s{t0}, s{t0}, 8")
    a(f"s_add_u32 s{t0}, s{t0}, {WS_FL + FO}")
    a(f"v_and_b32 v{U+3}, 31, v{L}")
    a(f"v_lshl_add_u32 v{vFa2}, v{U+3}, 3, s{t0}")
    a(f"s_add_u32 s{sQO}, s{sQO}, {WS_A2 - WS_Q}")
    a(f"s_mov_b32 s{t0}, {f2u(2.0**40):#x}")
    a(f"v_pk_mul_f32 v[{U}:{U+1}], v[{O[0]}:{O[0]+1}], 0 op_sel_hi:[1,0]")
    for i in range(2, 32, 2):
        a(f"v_pk_fma_f32 v[{U}:{U+1}], v[{O[0]+i}:{O[0]+i+1}], 0, v[{U}:{U+1}] op_sel_hi:[1,0,1]")
    a(f"v_add_f32 v{U}, v{U}, v{U+1}")
    a(f"v_add3_u32 v{U+1}, 0, 0, 0") if False else None
    a(f"v_add_f32 v{U+1}, v{Lr[0]}, v{Lr[1]}")
    a(f"v_add_f32 v{U}, v{U}, v{U+1}")
    a(f"v_cmp_ngt_f32 vcc, s{t0}, v{U}")
    a("s_nop 1")
    a("s_cbranch_vccnz L_at_slow")
    a("L_at_fin:")
    for x in range(2):
        a(f"v_rcp_f32 v{U}, v{Lr[x]}")
        a("s_nop 0")
        a(f"v_mul_f32 v{U}, v{U}, v{vSig+x}")
        for i in range(0, 16, 2): a(f"v_pk_mul_f32 v[{O[x]+i}:{O[x]+i+1}], v[{O[x]+i}:{O[x]+i+1}], v[{U}:{U+1}] op_sel_hi:[1,0]")
        for u in range(2):
            for e in range(2):
                c = O[x] + 8 * e + 4 * u
                a(f"v_cvt_pk_bf16_f32 v{D[x]+4*u+2*e}, v{c}, v{c+1}")
                a(f"v_cvt_pk_bf16_f32 v{D[x]+4*u+2*e+1}, v{c+2}, v{c+3}")
            a(f"buffer_store_dwordx4 v[{D[x]+4*u}:{D[x]+4*u+3}], v{U+2}, {WSR}, s{sQO} offen offset:{x*2048+u*512} {SC}")

    X = 152
    def xloads():
        return [f"buffer_load_dwordx2 v[{X+(h*4+ft)*2}:{X+(h*4+ft)*2+1}], v{vX}, {R(sX)}, {'0' if h == 0 else f's{sPf}'} offen offset:{ft*32}"
                for h in range(2) for ft in range(4)]
    def step2(v, loads, vm, reads=True, tail=(), extra=()):
        a(f"s_waitcnt vmcnt({vm}) lgkmcnt(0)")
        m = [gm(v, tt, ft) for tt in range(8) for ft in (range(4) if tt % 2 == 0 else range(3, -1, -1))]
        ex = list(extra)
        if loads:
            ex.append((0, f"s_add_u32 m0, s{sM0g}, {v*4096}"))
            for pc in range(4): ex.append((1 + pc, wdma(pc)))
            for tt in range(8): ex.append((max(4 * tt + 3, 6 + tt), aload(v, tt)))
            ex.append((31, kstep_adv()))
        if reads:
            rl = []
            for ft in range(4): rl += wread((v + 1) & 3, (v + 1) & 1, ft)
            for i, x in enumerate(rl): ex.append((8 + 2 * i, x))
        ex.sort(key=lambda t: t[0])
        a.extend(weave(m, ex))
        a.extend(tail)
    srd(a, sX, pX, 0, 4 * MB)
    srd(a, sOut, pOut, 0, 4 * MB)
    a(f"s_mov_b32 s{sPf}, 32768")
    NH = 6 - NC
    pollld = flagld(f"v{vFa2}")
    for v in range(PUBSTEP + 1): step2(v, True, 32)
    a(f"s_waitcnt vmcnt({12*(PUBSTEP+1)})")
    a("s_barrier")
    publish(93, U)
    a(f"s_mov_b32 s{sCnt}, {NH + 2}")
    a("s_branch L_g2_in")
    a(".p2align 6")
    a("L_g2_loop:")
    for v in range(4):
        if v == PUBSTEP + 1: a("L_g2_in:")
        step2(v, True, 32, extra=[(-1, pollld)] if v == POLLSTEP else ())
    a(f"s_sub_u32 s{sCnt}, s{sCnt}, 1")
    a(f"s_cmp_lg_u32 s{sCnt}, 2")
    a("s_cbranch_scc1 L_g2_nosw")
    stp(a, "fopoll")
    a(f"s_waitcnt vmcnt({12*(4-POLLSTEP)})")
    poll(f"v{vFa2}", True)
    stp(a, "fook")
    srd(a, sW, pWO, 0, 1024 * 2048)
    a(f"s_lshl_b32 s{sKW}, s{sWave}, 16")
    a(f"s_lshl_b32 s{sKA}, s{sWave}, 17")
    a(f"s_add_u32 s{sKA}, s{sKA}, {WS_A2}")
    a("L_g2_nosw:")
    a(f"s_cmp_lg_u32 s{sCnt}, 0")
    a("s_cbranch_scc1 L_g2_loop")
    step2(0, False, 32, tail=xloads())
    step2(1, False, 28)
    step2(2, False, 16)
    step2(3, False, 8, reads=False)
    stp(a, "g2end")
    if STAMP: a("s_waitcnt lgkmcnt(0)")
    vRw, vRr = U, U + 1
    a("s_nop 7")
    for d in range(4):
        a(f"s_cmp_eq_u32 s{sWave}, {d}")
        a(f"s_cbranch_scc1 L_g2_own{d}")
        a(f"s_sub_u32 s{t0}, s{sWave}, {d+1}")
        a(f"s_and_b32 s{t0}, s{t0}, 3")
        a(f"s_lshl_b32 s{t0}, s{t0}, 13")
        a(f"s_add_u32 s{t0}, s{t0}, {d*24576}")
        a(f"v_add_u32 v{vRw}, s{t0}, v{vL16}")
        for i in range(8):
            c = 128 + 32 * d + 4 * i
            a(f"ds_write_b128 v{vRw}, a[{c}:{c+3}] offset:{i*1024}")
        a(f"s_branch L_g2_nx{d}")
        a(f"L_g2_own{d}:")
        for i in range(32): a(f"v_accvgpr_read_b32 v{i}, a{128+32*d+i}")
        a(f"L_g2_nx{d}:")
    a(f"s_mul_i32 s{t0}, s{sWave}, 24576")
    a(f"v_add_u32 v{vRr}, s{t0}, v{vL16}")
    a(f"s_mov_b32 s{t0}, 0xffff0000")
    a("s_waitcnt vmcnt(0)")
    XF = 168
    for i in range(16):
        a(f"v_lshlrev_b32 v{XF+2*i}, 16, v{X+i}")
        a(f"v_and_b32 v{XF+2*i+1}, s{t0}, v{X+i}")
    a("s_waitcnt lgkmcnt(0)")
    a("s_barrier")
    for i in range(8):
        for sl in range(3):
            base = 32 + 32 * sl
            a(f"ds_read_b128 v[{base+4*i}:{base+4*i+3}], v{vRr} offset:{sl*8192 + i*1024}")
    for i in range(8):
        a(f"s_waitcnt lgkmcnt({min(15, 21 - 3*i)})")
        for j in (0, 2): a(f"v_pk_add_f32 v[{32+4*i+j}:{33+4*i+j}], v[{32+4*i+j}:{33+4*i+j}], v[{64+4*i+j}:{65+4*i+j}]")
        for j in (0, 2): a(f"v_pk_add_f32 v[{4*i+j}:{4*i+j+1}], v[{4*i+j}:{4*i+j+1}], v[{96+4*i+j}:{97+4*i+j}]")
        for j in (0, 2): a(f"v_pk_add_f32 v[{4*i+j}:{4*i+j+1}], v[{4*i+j}:{4*i+j+1}], v[{32+4*i+j}:{33+4*i+j}]")
        for j in range(4): a(f"v_fma_f32 v{4*i+j}, v{4*i+j}, v{vRs2 + (i>>2)}, v{XF+4*i+j}")
        a(f"v_cvt_pk_bf16_f32 v{X+2*i}, v{4*i}, v{4*i+1}")
        a(f"v_cvt_pk_bf16_f32 v{X+2*i+1}, v{4*i+2}, v{4*i+3}")
        a(f"buffer_store_dwordx2 v[{X+2*i}:{X+2*i+1}], v{vX}, {R(sOut)}, {'0' if i < 4 else f's{sPf}'} offen offset:{(i&3)*32}")
    stp(a, "outst")
    if DBGST:
        n = len(STAMPS) + 1
        a("s_waitcnt vmcnt(0)")
        stamp(a, n - 1)
        a(f"s_cmp_lg_u32 s2, {DBGST - 1}")
        a("s_cbranch_scc1 L_end")
        a(f"s_cmp_lg_u32 s{sWave}, 0")
        a("s_cbranch_scc1 L_end")
        a("s_waitcnt lgkmcnt(0)")
        srd(a, 88, pDbg, 0, 256)
        for i in range(n):
            a(f"s_sub_u32 s92, s{60+2*i}, s60")
            a(f"v_mov_b32 v1, s92")
            a(f"buffer_store_dword v1, off, s[88:91], 0 offset:{4*i}")
    else:
        stamp_flush(a, 1, len(STAMPS) + 1, 0)
    a("L_end:")
    a("s_endpgm")
    a("L_at_slow:")
    a(f"s_mov_b32 s{sKV+2}, {SZ_KV}")
    for x in range(2): a(f"v_mov_b32 v{NM[x]}, 0xff800000")
    for i in range(40): a(f"v_mov_b32 v{O[0]+i}, 0")
    a(f"s_lshl_b32 s{sSo}, s{sHead}, 18")
    a(f"s_mov_b32 s{sCntA}, 0")
    a("L_at_sloop:")
    k = Kf[0]; v = Vf[0]
    a(f"buffer_load_dwordx4 v[{k}:{k+3}], v{vL16}, {R(sKV)}, s{sSo} offen {SC}")
    a(f"buffer_load_dwordx4 v[{k+4}:{k+7}], v{vL16}, {R(sKV)}, s{sSo} offen offset:1024 {SC}")
    a(f"buffer_load_dwordx4 v[{v}:{v+3}], v{vL16}, {R(sKV)}, s{sSo} offen offset:2048 {SC}")
    a(f"buffer_load_dwordx4 v[{v+4}:{v+7}], v{vL16}, {R(sKV)}, s{sSo} offen offset:3072 {SC}")
    a("s_waitcnt vmcnt(0)")
    for x in range(2):
        M = NM[x]; AL = NM[x] + 1; MN = NM[x] + 2; s = S[x]
        a.extend(qk(x, 0, "0"))
        a("s_nop 15")
        a(f"v_max3_f32 v{U}, v{s}, v{s+1}, v{s+2}")
        for i in range(3, 15, 2): a(f"v_max3_f32 v{U}, v{U}, v{s+i}, v{s+i+1}")
        a(f"v_max_f32 v{U}, v{U}, v{s+15}")
        a(f"v_mov_b32 v{U+1}, v{U}")
        a("s_nop 1")
        a(f"v_permlane32_swap_b32 v{U}, v{U+1}")
        a(f"v_max3_f32 v{MN}, v{U}, v{U+1}, v{M}")
        a(f"v_sub_f32 v{AL}, v{M}, v{MN}")
        a(f"v_exp_f32 v{AL}, v{AL}")
        a(f"v_mov_b32 v{M}, v{MN}")
        for i in range(16): a(f"v_sub_f32 v{s+i}, v{s+i}, v{MN}")
        for i in range(16): a(f"v_exp_f32 v{D[x]+i}, v{s+i}")
        for i in range(16): a(f"v_mul_f32 v{O[x]+i}, v{O[x]+i}, v{AL}")
        a(f"v_mul_f32 v{Lr[x]}, v{Lr[x]}, v{AL}")
        a("s_nop 1")
        a(LS(x, 0)); a(LS(x, 1))
        a(PV(x, 0, 0)); a(PV(x, 0, 1))
        a("s_nop 15")
    a(f"s_add_u32 s{sSo}, s{sSo}, 4096")
    a(f"s_add_u32 s{sCntA}, s{sCntA}, 1")
    a(f"s_cmp_lt_u32 s{sCntA}, 64")
    a("s_cbranch_scc1 L_at_sloop")
    a("s_branch L_at_fin")
    a.extend(ool)
    a(".p2align 4")
    a("L_code_end:")
    return a, descriptor(name, 512, 256, 102)

if __name__ == "__main__":
    path = sys.argv[1] if len(sys.argv) > 1 else "cdna_kernels/" + NAME + ".s"
    a, d = gen_main()
    ref = open(os.path.join(os.path.dirname(os.path.abspath(__file__)), "..", "cdna_kernels", NAME + ".s.ref")).read()
    head = [l for l in ref.split("\n") if l.startswith(";") and "@launch" not in l and "Override" not in l and "grid=ceil" not in l]
    out = "\n".join(head) + "\n; @launch grid=(256,1,1) block=(256,1,1) lds=163840\n"
    out += '.amdgcn_target "amdgcn-amd-amdhsa--gfx950"\n.text\n' + a.text() + '.section .rodata,"a"\n.p2align 6\n' + d
    open(path, "w").write(out)
    probs = a.check("main")
    for p in probs: print("HAZARD", p)
    print("written", path, "hazards:", len(probs))
```

```python
import sys, os
sys.path.insert(0, os.path.dirname(os.path.abspath(__file__)))
from asmdsl import Asm, weave, sched
from gen import (NAME, KA_X, KA_WQKV, KA_WO, KA_W1, KA_W2, KA_OUT, KA_DBG, KA_WS, MB, f2u, srd, header, descriptor,
                 stamp, stamp_flush, STAMP, xreduce, bf16round, QSCALE)

def env(k, d): return type(d)(os.environ.get(k, d))
WS_Q, WS_KV, WS_A2 = 4 * MB, 8 * MB, 16 * MB
SZ_KV = 8 * MB
WS_FL = 0
FQ, FH, FO, F0 = 0, 2048, 4096, 8192
WS_STAT = 16384
WS_CS = 65536
WS_END = 35 * MB
LDS_W1 = 98304
LDS_SCR = 90112
NC = env("NC", 5); ND = env("ND", 4); SPP = env("SPP", 2); PUBAT = env("PUBAT", 10); POLLAT = env("POLLAT", 5)
TPF = env("TPF", 0); PNT = env("PNT", ""); CPF = env("CPF", 1); QPLAIN = env("QPLAIN", 0); WNT = env("WNT", ""); PFG1 = env("PFG1", 1); DMAF = env("DMAF", 0.6); RDF = env("RDF", 0.75); BUD = env("BUD", 4)
POLLSTEP = env("POLLSTEP", 2); PUBSTEP = env("PUBSTEP", 0); DBGST = env("DBGST", 0); EPOLL = env("EPOLL", 30); ELEAD = env("ELEAD", 10)
SC = "sc1"
STAMPS = env("STAMPS", "start,g1loop,g1end,e4,atentry,atloop,pureend,fhok,atend,fopoll,fook,g2end,outst").split(",")
def stp(a, name):
    if name in STAMPS: stamp(a, STAMPS.index(name))

def gen_main():
    a = Asm()
    name = NAME + "_kernel"
    header(a, name)
    sWS, sW, sKV, sX, sOut = 8, 12, 16, 20, 24
    pW1, pW2, pWO, pX, pOut, pDbg = 28, 30, 32, 34, 36, 38
    sWave, sXcd, sSlot = 40, 41, 42
    sKA, sKW, sM0A, sM0W, sCnt, sWr, sWc, sRb, sCt = 43, 44, 45, 46, 47, 48, 49, 50, 51
    t0, t1, t2, t3, t4, t5 = 52, 53, 54, 55, 56, 57
    sPf = 58; sN = 6
    sSo, sM0k, sCntA, sRing, sMb, sQO, sHead, sPub = 94, 95, 96, 97, 98, 99, 100, 101
    sAw, sArd, sCs, sTile = 96, 97, 98, 101
    sM0g, sRb2, sCb, sH1, sH2 = 45, 46, 48, 49, 50
    WSR = f"s[{sWS}:{sWS+3}]"
    def R(s): return f"s[{s}:{s+3}]"
    vAd, vWd, vAr, vArB, vWe1, vWo1, vWs1 = 224, 228, 232, 234, 235, 236, 237
    T = 238
    L, vL16, vDma, vFa, vFl = 250, 251, 252, 253, 254
    ST = 224; vO = 240
    Q = [0, 8]; S = [16, 32]; NM = [48, 64]; O = [80, 96]; Lr = [112, 116]; D = [120, 136]
    Kf = [152, 160]; Vf = [168, 176]; ONE = 184; WF = [188, 204]
    vCur, IDX, vA, vW, vWe, vWo, vFa2, vX = 220, 221, 222, 224, 228, 229, 230, 231
    U = 232; vSig = 244; vRs2 = 246
    lab = [0]
    def flagld(areg, srdr=WSR):
        return f"buffer_load_dwordx2 v[{vFl}:{vFl+1}], {areg}, {srdr}, 0 {'offen' if areg != 'off' else ''} sc1"
    def poll(areg, first_done, srdr=WSR, val=f"s[{sN}:{sN+1}]", cmp="ne"):
        n = lab[0]; lab[0] += 1
        a(f"s_mov_b32 s{t5}, 0")
        if first_done: a(f"s_branch L_pc{n}")
        a(f"L_pl{n}:")
        a(flagld(areg, srdr))
        a("s_waitcnt vmcnt(0)")
        a(f"L_pc{n}:")
        a(f"v_cmp_{cmp}_u64 vcc, {val}, v[{vFl}:{vFl+1}]")
        a(f"s_add_u32 s{t5}, s{t5}, 1")
        a("s_nop 0")
        a(f"s_cbranch_vccz L_pd{n}")
        a("s_sleep 1")
        a(f"s_cmp_lt_u32 s{t5}, 0x40000")
        a(f"s_cbranch_scc1 L_pl{n}")
        a(f"L_pd{n}:")
    def publish(soff_reg, tmp):
        n = lab[0]; lab[0] += 1
        a(f"s_cmp_lg_u32 s{sWave}, 0")
        a(f"s_cbranch_scc1 L_pb{n}")
        a(f"v_mov_b32 v{tmp}, s{sN}")
        a(f"v_mov_b32 v{tmp+1}, s{sN+1}")
        a(f"buffer_store_dwordx2 v[{tmp}:{tmp+1}], off, {WSR}, s{soff_reg} sc1")
        a(f"L_pb{n}:")

    a("s_cmp_ge_u32 s2, 256")
    a("s_cbranch_scc1 L_end")
    stp(a, "start")
    a(f"s_load_dwordx2 s[{pX}:{pX+1}], s[0:1], {KA_X}")
    a(f"s_load_dwordx2 s[6:7], s[0:1], {KA_WQKV}")
    a(f"s_load_dwordx4 s[{pW1}:{pW1+3}], s[0:1], {KA_W1}")
    a(f"s_load_dwordx2 s[4:5], s[0:1], {KA_WS}")
    a(f"s_load_dwordx2 s[{pWO}:{pWO+1}], s[0:1], {KA_WO}")
    a(f"s_load_dwordx4 s[{pOut}:{pOut+3}], s[0:1], {KA_OUT}")
    a("s_memrealtime s[92:93]")
    a(f"v_lshrrev_b32 v{T}, 6, v0")
    a(f"v_and_b32 v{L}, 63, v0")
    a(f"v_readfirstlane_b32 s{sWave}, v{T}")
    a(f"v_lshlrev_b32 v{vL16}, 4, v{L}")
    a(f"s_and_b32 s{sXcd}, s2, 7")
    if STAMP: a(f"s_mov_b32 s59, s{sWave}")
    a(f"s_lshr_b32 s{sSlot}, s2, 3")
    a(f"s_and_b32 s{sRb}, s{sSlot}, 7")
    a(f"s_lshr_b32 s{sCt}, s{sSlot}, 3")
    a(f"s_lshr_b32 s{sWr}, s{sWave}, 1")
    a(f"s_and_b32 s{sWc}, s{sWave}, 1")
    a(f"v_bfe_u32 v3, v{L}, 2, 1")
    a(f"v_lshl_add_u32 v3, v{T}, 1, v3")
    a(f"s_lshl_b32 s{t0}, s2, 3")
    a(f"v_add_u32 v3, s{t0}, v3")
    a(f"v_and_b32 v4, 3, v{L}")
    a(f"v_lshrrev_b32 v5, 3, v{L}")
    a("v_lshlrev_b32 v6, 11, v3")
    a("v_lshl_add_u32 v6, v5, 6, v6")
    a("v_lshl_add_u32 v6, v4, 4, v6")
    a(f"v_lshrrev_b32 v{T+1}, 4, v{L}")
    a(f"v_and_b32 v{T+2}, 7, v{L}")
    a(f"v_xor_b32 v{T+2}, v{T+2}, v{T+1}")
    a(f"v_lshlrev_b32 v{T+2}, 4, v{T+2}")
    a(f"v_lshl_add_u32 v{T+2}, v5, 11, v{T+2}")
    a(f"s_lshl_b32 s{t0}, s{sRb}, 19")
    a(f"s_lshl_b32 s{t1}, s{sWave}, 17")
    a(f"s_add_u32 s{t0}, s{t0}, s{t1}")
    a(f"v_add_u32 v{vAd}, s{t0}, v{T+2}")
    a(f"v_xor_b32 v{vAd+1}, 64, v{vAd}")
    a(f"v_add_u32 v{vAd+3}, {3*15360}, v{vAd+1}")
    a(f"v_add_u32 v{vAd+1}, 15360, v{vAd+1}")
    a(f"v_add_u32 v{vAd+2}, {2*15360}, v{vAd}")
    a(f"s_lshl_b32 s{sM0A}, s{sWave}, 13")
    a(f"s_lshl_b32 s{sM0W}, s{sWave}, 12")
    a(f"s_add_u32 s{sM0W}, s{sM0W}, {LDS_W1}")
    a(f"s_lshl_b32 s{sKA}, s{sRb}, 8")
    ftp, gb, jj, qc = T + 3, T + 4, T + 5, 4
    a(f"v_lshrrev_b32 v{ftp}, 5, v{L}")
    a(f"v_bfe_u32 v{gb}, v{L}, 4, 1")
    a(f"v_bfe_u32 v{jj}, v{L}, 2, 2")
    a(f"s_lshl_b32 s{t0}, s{sWr}, 4")
    a(f"s_lshl_b32 s{t1}, s{sWc}, 2")
    a(f"s_add_u32 s{t0}, s{t0}, s{t1}")
    a(f"v_lshl_add_u32 v{T+6}, v{gb}, 3, v{jj}")
    a(f"v_add_u32 v{T+6}, s{t0}, v{T+6}")
    a(f"v_lshlrev_b32 v{T+7}, 1, v{gb}")
    a(f"v_xor_b32 v{T+7}, v{T+7}, v{qc}")
    a(f"v_lshlrev_b32 v{T+7}, 4, v{T+7}")
    a(f"v_lshl_add_u32 v{T+7}, v{ftp}, 6, v{T+7}")
    a(f"v_xor_b32 v{T+8}, v{gb}, v{qc}")
    a(f"v_lshlrev_b32 v{T+8}, 4, v{T+8}")
    a("s_waitcnt lgkmcnt(0)")
    stp(a, "p1")
    srd(a, sX, pX, 0, 4 * MB)
    for i in range(4):
        a(f"buffer_load_dwordx4 v[{16+4*i}:{19+4*i}], v6, {R(sX)}, 0 offen offset:{i*512}")
    srd(a, 88, pDbg, 248, 8)
    a(f"s_or_b32 s{t0}, s2, s{sWave}")
    a("s_cbranch_scc1 L_nonon")
    a("s_or_b32 s92, s92, 1")
    a("v_mov_b32 v8, s92")
    a("v_mov_b32 v9, s93")
    a("buffer_store_dwordx2 v[8:9], off, s[88:91], 0 sc1")
    a("L_nonon:")
    a(f"s_cmp_lt_u32 s{sCt}, 2")
    a("s_cbranch_scc0 L_g1_qkv")

    def code_addr(r):
        n = lab[0]; lab[0] += 1
        a(f"s_getpc_b64 s[{t0}:{t1}]")
        a(f"L_pc_{n}:")
        a(f"s_sub_u32 s{t0}, s{t0}, L_pc_{n}-{name}")
        a(f"s_subb_u32 s{t1}, s{t1}, 0")
        a(f"s_lshl_b32 s{t2}, s{sSlot}, 2")
        a(f"s_add_u32 s{t2}, s{t2}, s{sWave}")
        a(f"s_and_b32 s{t2}, s{t2}, 63")
        a(f"s_lshl_b32 s{t2}, s{t2}, 10")
        a(f"v_add_u32 v{r}, s{t2}, v{vL16}")
        a(f"v_min_u32 v{r}, L_code_end-{name}-16, v{r}")
        a(f"v_mov_b32 v{r+1}, s{t1}")
        a(f"v_add_co_u32 v{r}, vcc, s{t0}, v{r}")
        a("s_nop 1")
        a(f"v_addc_co_u32 v{r+1}, vcc, 0, v{r+1}, vcc")
    def code_pf(r):
        code_addr(r)
        a(f"global_load_dwordx4 a[120:123], v[{r}:{r+1}], off")
    def kvdma(q):
        return f"buffer_load_dwordx4 v{vDma}, {R(sKV)}, s{sSo} offen offset:{(q&3)*1024} {SC} lds"
    def kv_groups(h0, h1):
        g = []
        for c in range(h0, h1):
            for q in range(4):
                pre = [f"s_add_u32 m0, s{sM0k}, {c*16384}", "s_nop 0"] if q == 0 else []
                post = [f"s_add_u32 s{sSo}, s{sSo}, 16384"] if (q == 3) else []
                g.append(pre + [kvdma(q)] + post)
        return g
    def at_load_groups():
        g = kv_groups(0, 2)
        g[4:4] = [[f"buffer_load_dwordx4 v[{Q[x]+4*h}:{Q[x]+4*h+3}], v{vL16}, {WSR}, s{sQO} offen offset:{x*2048+h*1024} {SC}"]
                  for x in range(2) for h in range(2)]
        return g
    def at_init():
        a(f"v_mov_b32 v{vCur}, v{vL16}")
        for x in range(2): a(f"v_mfma_f32_32x32x16_bf16 v[{O[x]}:{O[x]+15}], a[128:131], a[128:131], 0")
        a(f"v_and_b32 v{U}, 7, v{L}")
        a(f"v_cmp_eq_u32 vcc, 0, v{U}")
        a(f"v_cmp_eq_u32 s[88:89], 4, v{U}")
        a(f"v_mov_b32 v{U+2}, 0x3f803f80")
        a(f"v_mov_b32 v{IDX}, 0xdddddddd")
        a(f"v_cndmask_b32 v{ONE}, 0, v{U+2}, vcc")
        a(f"v_cndmask_b32 v{ONE+2}, 0, v{U+2}, s[88:89]")
        a(f"v_mov_b32 v{ONE+1}, v{ONE}")
        a(f"v_mov_b32 v{ONE+3}, v{ONE+2}")
        a(f"s_add_u32 s{sMb}, s{sM0k}, 65536")
        a(f"s_mov_b32 s{sRing}, 0")
        for i in range(0, 8, 2): a(f"v_mov_b64 v[{Lr[0]+i}:{Lr[0]+i+1}], 0")
        for i in range(0, 8, 2): a(f"v_mov_b64 v[{D[1]+8+i}:{D[1]+9+i}], 0")
        for i in range(0, 4, 2): a(f"v_mov_b64 v[{Vf[1]+4+i}:{Vf[1]+5+i}], 0")
        a(f"s_lshr_b32 s{t0}, s{sXcd}, 1")
        a(f"s_lshl_b32 s{t0}, s{t0}, 2")
        a(f"s_and_b32 s{t1}, s{sSlot}, 3")
        a(f"s_add_u32 s{sRb2}, s{t0}, s{t1}")
        a(f"s_lshr_b32 s{t0}, s{sRb2}, 1")
        a(f"s_lshl_b32 s{t0}, s{t0}, 7")
        a(f"s_add_u32 s{t0}, s{t0}, {WS_FL + FH}")
        a(f"v_and_b32 v{U}, 15, v{L}")
        a(f"v_lshl_add_u32 v{vFa2}, v{U}, 3, s{t0}")
        srd(a, sW, pW2, 0, 3584 * 2048)
    def hstore(u, data):
        if u < 8:
            return [f"buffer_store_dwordx2 {data}, v{vO+2 + (u>>2)}, {R(sOut)}, s{sH2} offen offset:{(u&3)*1024} {SC}"]
        p, tt = divmod(u - 8, 8)
        return [f"buffer_store_dwordx4 {data}, v{vO + (tt>>2)}, {R(sOut)}, s{(sH1, t3, t4)[p]} offen offset:{(tt&3)*1024} {SC}"]
    direct = set(range(32 - ND, 32))
    parked = [u for u in range(32) if u not in direct]
    ool = []

    def g1(kind):
        ffn = kind == "ffn"
        NB = 7 if ffn else 6
        RS = 7168 if ffn else 6144
        nW = 4 if ffn else 3
        NF = 8 + NB
        def fr(buf, i): return buf * NF * 4 + i * 4
        def acc(tt, ft): return (ft * 8 + tt) * 4
        if ffn:
            srd(a, sW, pW1, -4096, 1024 * 7168 + 4096)
            a(f"s_mul_i32 s{t0}, s{sXcd}, 896")
            a(f"s_mul_i32 s{t1}, s{sCt}, 384")
            a(f"s_add_u32 s{t1}, s{t1}, s{t0}")
            a(f"s_lshl_b32 s{t2}, s{sCt}, 6")
            a(f"s_add_u32 s{t2}, s{t2}, s{t0}")
            a(f"s_add_u32 s{t2}, s{t2}, {768 + 4096 - 3072}")
            qstep = 128
        else:
            srd(a, sW, 6, -4096, 1024 * 6144 + 4096)
            a(f"s_lshl_b32 s{t1}, s{sXcd}, 1")
            a(f"s_add_u32 s{t1}, s{t1}, s{sCt}")
            a(f"s_sub_u32 s{t1}, s{t1}, 2")
            a(f"s_lshl_b32 s{t1}, s{t1}, 7")
            qstep = 2048
        a(f"s_mul_i32 s{sKW}, s{sRb}, {128 * RS}")
        a(f"v_mul_u32_u24 v{T+6}, {RS}, v{T+6}")
        a(f"v_add3_u32 v{T+7}, v{T+7}, v{T+6}, s{t1}")
        for q in range(3):
            a(f"v_add_u32 v{vWd+q}, {4096 + q*qstep - q*1024}, v{T+7}")
        if ffn:
            a(f"v_add3_u32 v{T+8}, v{T+8}, v{T+6}, s{t2}")
            a(f"v_lshlrev_b32 v{T+9}, 30, v{ftp}")
            a(f"v_or_b32 v{vWd+3}, v{T+8}, v{T+9}")
        srd(a, sKV, pX, 65536, 4 * MB - 65536)
        oplog = ["x"] * 4
        def wdma_list(stage, pol=WNT):
            l = [[f"s_add_u32 m0, s{sM0W}, {(stage & 3)*16384}"]]
            for q in range(nW):
                l.append([f"buffer_load_dwordx4 v{vWd+q}, {R(sW)}, s{sKW} offen offset:{q*1024} {pol} lds"])
            l.append([f"s_add_u32 s{sKW}, s{sKW}, {32*RS}"])
            if stage & 3 == 3: l.append([f"s_cmp_eq_u32 s{sKW}, {1024 * RS}", f"s_cselect_b32 s{sKW}, 0, s{sKW}"])
            oplog.extend([f"W{stage}"] * nW)
            return l
        def adma_half(Dn, h):
            if Dn < 3: l = [[f"s_add_u32 m0, s{sM0A}, {Dn*32768 + h*4096}"]]
            else: l = [[f"s_add_u32 m0, s{sAw}, {h*4096}"]]
            for p in range(4):
                l.append([f"buffer_load_dwordx4 v{vAd+p}, {R(sKV if h else sX)}, s{sKA} offen offset:{p*1024} lds"])
            if h:
                l.append([f"s_add_u32 s{sKA}, s{sKA}, 128"])
                if Dn & 1: l.append([f"s_and_b32 s{sKA}, s{sKA}, 2047"])
            oplog.extend([f"A{Dn}"] * 4)
            return l
        def need(*tags):
            idx = max(i for i, t in enumerate(oplog) if t in tags)
            return len(oplog) - 1 - idx
        def flat(l):
            out = []
            for x in l:
                out += x
                if x[-1].startswith("s_add_u32 m0"): out.append("s_nop 0")
            return out
        for i in range(4): a(f"v_mov_b32 v{12+i}, 0")
        z = [f"v_mfma_f32_32x32x16_bf16 a[{128+16*i}:{143+16*i}], v[12:15], v[12:15], 0" for i in range(8)]
        z += [f"v_mfma_f32_32x32x16_bf16 v[{16*i}:{16*i+15}], v[12:15], v[12:15], 0" for i in range(4, 2 * NB)]
        k = 0
        for x in flat(wdma_list(0, PNT) + adma_half(0, 0)):
            a(x)
            if x.startswith("buffer_") and k < len(z): a(z[k]); k += 1
        pre = Asm(); sv0 = a.lines; a.lines = pre.lines
        stp(a, "p2")
        srd(a, sWS, 4, 0, WS_END)
        a(f"v_and_b32 v{T+9}, 15, v{L}")
        a(f"v_lshrrev_b32 v{T+10}, 1, v{T+9}")
        a(f"v_xor_b32 v{T+10}, v{T+10}, v{T+1}")
        a(f"v_lshlrev_b32 v{T+10}, 4, v{T+10}")
        a(f"v_lshl_add_u32 v{T+10}, v{T+9}, 7, v{T+10}")
        a(f"s_lshl_b32 s{t0}, s{sWr}, 14")
        a(f"v_add_u32 v{vArB}, s{t0}, v{T+10}")
        a(f"v_mov_b32 v{vAr}, v{vArB}")
        a(f"v_xor_b32 v{vAr+1}, 64, v{vArB}")
        a(f"s_mov_b32 s{sArd}, 0")
        a(f"v_lshlrev_b32 v{T+10}, 13, v{ftp}")
        a(f"v_lshl_add_u32 v{T+10}, v{gb}, 8, v{T+10}")
        a(f"v_lshl_add_u32 v{T+10}, v{jj}, 6, v{T+10}")
        a(f"v_add_u32 v{T+10}, {LDS_W1}, v{T+10}")
        a(f"v_lshl_add_u32 v{T+11}, v{gb}, 5, v{T+10}")
        a(f"v_lshl_add_u32 v{T+11}, v{qc}, 3, v{T+11}")
        a(f"s_mul_i32 s{t0}, s{sWc}, {1536 if ffn else 512}")
        a(f"v_add_u32 v{vWe1}, s{t0}, v{T+11}")
        a(f"v_xor_b32 v{vWo1}, 32, v{vWe1}")
        if ffn:
            a(f"v_and_b32 v{T+11}, 1, v{qc}")
            a(f"v_lshlrev_b32 v{T+11}, 1, v{T+11}")
            a(f"v_add_u32 v{T+11}, s{sWc}, v{T+11}")
            a(f"v_xor_b32 v{T+11}, v{T+11}, v{gb}")
            a(f"v_lshl_add_u32 v{T+11}, v{T+11}, 4, v{T+10}")
            a(f"v_lshrrev_b32 v{T+10}, 1, v{qc}")
            a(f"v_lshl_add_u32 v{vWs1}, v{T+10}, 3, v{T+11}")
        a(f"v_mov_b32 v{T+10}, 0x3f803f80")
        for i in range(4): a(f"v_accvgpr_write_b32 a{124+i}, v{T+10}")
        a(f"s_lshl_b32 s{sTile}, s{sXcd}, 2")
        a(f"s_add_u32 s{sTile}, s{sTile}, s{sCt}")
        a(f"s_and_b32 s{t0}, s{sSlot}, 3")
        a(f"s_lshl_b32 s{sHead}, s{sXcd}, 2")
        a(f"s_add_u32 s{sHead}, s{sHead}, s{t0}")
        a(f"s_and_b32 s{t0}, s{sSlot}, 28")
        a(f"s_add_u32 s{t0}, s{t0}, s{sWave}")
        a(f"s_lshl_b32 s{t0}, s{t0}, 12")
        a(f"s_lshl_b32 s{t1}, s{sHead}, 17")
        a(f"s_add_u32 s{sQO}, s{t0}, s{t1}")
        a(f"s_add_u32 s{sQO}, s{sQO}, {WS_Q}")
        a(f"s_lshl_b32 s{sSo}, s{sHead}, 18")
        a(f"s_lshl_b32 s{sM0k}, s{sWave}, 12")
        a(f"v_add_u32 v{vDma}, s{sM0k}, v{vL16}")
        a(f"s_lshr_b32 s{t0}, s{sHead}, 1")
        a(f"s_lshl_b32 s{t0}, s{t0}, 7")
        a(f"v_and_b32 v{vFa}, 7, v{L}")
        a(f"v_lshl_add_u32 v{vFa}, v{vFa}, 3, s{t0}")
        srd(a, sOut, pW2, 0, 3584 * 2048)
        a(f"s_lshl_b32 s{sPf}, s2, 2")
        a(f"s_add_u32 s{sPf}, s{sPf}, s{sWave}")
        a(f"s_lshl_b32 s{sPf}, s{sPf}, 10")
        a.lines = sv0
        for i, x in enumerate(pre.lines):
            a.lines.append(x)
            if i % 5 == 4 and k < len(z) and pre.lines[i + 1].op not in ("s_addc_u32", "s_subb_u32"): a(z[k]); k += 1
        for x in z[k:]: a(x)
        a.extend(flat(adma_half(0, 1)))
        F = 32
        a(f"s_mov_b32 s{t0}, 0xffff0000")
        stp(a, "p3")
        a(f"s_waitcnt vmcnt({need('x')})")
        stp(a, "p4")
        pre = Asm(); sv0 = a.lines; a.lines = pre.lines
        for j in range(16):
            a(f"v_lshlrev_b32 v{F+2*j}, 16, v{16+j}")
            a(f"v_and_b32 v{F+2*j+1}, s{t0}, v{16+j}")
        a(f"v_pk_add_f32 v[8:9], v[{F}:{F+1}], v[{F+2}:{F+3}]")
        a(f"v_pk_add_f32 v[10:11], v[{F+4}:{F+5}], v[{F+6}:{F+7}]")
        for j in range(4, 16):
            d = 8 + 2 * (j & 1)
            a(f"v_pk_add_f32 v[{d}:{d+1}], v[{d}:{d+1}], v[{F+2*j}:{F+2*j+1}]")
        a("v_pk_add_f32 v[8:9], v[8:9], v[10:11]")
        a("v_add_f32 v8, v8, v9")
        xreduce(a, 8, 9)
        a(f"v_mul_f32 v8, {f2u(-1.0/1024):#x}, v8")
        for j in range(16):
            a(f"v_pk_add_f32 v[{F+2*j}:{F+2*j+1}], v[{F+2*j}:{F+2*j+1}], v[8:9] op_sel_hi:[1,0]")
        a(f"v_pk_mul_f32 v[10:11], v[{F}:{F+1}], v[{F}:{F+1}]")
        a(f"v_pk_mul_f32 v[16:17], v[{F+2}:{F+3}], v[{F+2}:{F+3}]")
        for j in range(2, 16):
            d = (10, 16)[j & 1]
            a(f"v_pk_fma_f32 v[{d}:{d+1}], v[{F+2*j}:{F+2*j+1}], v[{F+2*j}:{F+2*j+1}], v[{d}:{d+1}]")
        a("v_pk_add_f32 v[10:11], v[10:11], v[16:17]")
        a("v_add_f32 v10, v10, v11")
        xreduce(a, 10, 11)
        a(f"v_mul_f32 v10, {f2u(1.0/1024):#x}, v10")
        bf16round(a, 8)
        bf16round(a, 10)
        a(f"v_add_f32 v10, {f2u(1e-5):#x}, v10")
        bf16round(a, 10)
        a("v_sqrt_f32 v10, v10")
        a(f"v_and_b32 v5, 0x3b, v{L}")
        a("v_min_u32 v5, 1, v5")
        a("v_lshlrev_b32 v5, 30, v5")
        bf16round(a, 10)
        a("v_lshl_add_u32 v5, v3, 2, v5")
        a("v_rcp_f32 v9, v10")
        a.lines = sv0
        more = wdma_list(1, PNT) + wdma_list(2, PNT) + adma_half(1, 0) + adma_half(1, 1)
        gap = len(pre.lines) // (len(more) + 1)
        for i, x in enumerate(pre.lines):
            a.lines.append(x)
            if i % gap == gap - 1 and more: a.extend(more.pop(0))
        assert not more
        a(f"s_mov_b32 s{t0}, {WS_STAT}")
        a(f"s_mov_b32 s{t1}, {WS_STAT + 8192}")
        a(f"s_mov_b32 s{t2}, {WS_STAT + 16384}")
        a(f"v_mov_b32 v{T+9}, v8"); a(f"v_mov_b32 v{T+10}, v9"); a(f"v_mov_b32 v{T+11}, v10"); a(f"v_mov_b32 v{T+8}, v5")
        a(f"buffer_store_dword v{T+9}, v{T+8}, {WSR}, s{t0} offen sc1")
        a(f"buffer_store_dword v{T+10}, v{T+8}, {WSR}, s{t1} offen sc1")
        a(f"buffer_store_dword v{T+11}, v{T+8}, {WSR}, s{t2} offen sc1")
        oplog.extend(["st"] * 3)
        for i in range(4): a(f"v_mfma_f32_32x32x16_bf16 v[{16*i}:{16*i+15}], a[128:131], a[128:131], 0")
        a(f"s_lshl_b32 s{t0}, s{sXcd}, 1")
        a(f"s_add_u32 s{t0}, s{t0}, s{sCt}")
        if ffn:
            a(f"s_lshl_b32 s{t0}, s{t0}, 3")
            a(f"s_lshl_b32 s{t1}, s{sRb}, 7")
            a(f"s_add_u32 s{t0}, s{t0}, s{t1}")
            a(f"s_add_u32 s92, s{t0}, {WS_FL + FH}")
        else:
            a(f"s_sub_u32 s{sCt}, s{t0}, 2")
            a(f"s_lshl_b32 s{t0}, s{sCt}, 7")
            a(f"s_lshl_b32 s{t1}, s{sRb}, 3")
            a(f"s_add_u32 s92, s{t0}, s{t1}")
        a(f"s_lshr_b32 s{t0}, s{sSlot}, 2")
        a(f"s_lshl_b32 s{t0}, s{t0}, 8")
        a(f"s_lshl_b32 s93, s{sHead}, 3")
        a(f"s_add_u32 s93, s93, s{t0}")
        a(f"s_add_u32 s93, s93, {WS_FL + FO}")

        def read_list(step):
            buf = step & 1; so = (step & 3) * 16384
            rb = []
            for ft in range(NB):
                r = fr(buf, 8 + ft)
                if ffn and ft == 6: v = vWs1; off = 3072
                else:
                    v = vWo1 if ft & 1 else vWe1
                    off = (ft >> 1) * (512 if ffn else 1024)
                rb.append([f"ds_read_b64_tr_b16 a[{r+2*rd}:{r+2*rd+1}], v{v} offset:{so + rd*4096 + off}" for rd in range(2)])
            ra = [f"ds_read_b128 a[{fr(buf, tt)}:{fr(buf, tt)+3}], v{vAr + (step & 1)} offset:{tt*2048}" for tt in range(8)]
            l = rb[0] + ra
            for x in rb[1:]: l += x
            return l
        def mfmas(buf):
            l = []
            for ft in range(NB):
                for tt in (range(8) if ft % 2 == 0 else range(7, -1, -1)):
                    c = acc(tt, ft); w = fr(buf, 8 + ft); x = fr(buf, tt)
                    if (not ffn) and ft >= 4: w, x = x, w
                    l.append(f"v_mfma_f32_16x16x32_bf16 v[{c}:{c+3}], a[{w}:{w+3}], a[{x}:{x+3}], v[{c}:{c+3}]")
            return l
        ard_adv = [[f"s_add_u32 s{sAw}, s{sArd}, s{sM0A}"], [f"s_add_u32 s{sArd}, s{sArd}, 32768"], [f"s_cmp_eq_u32 s{sArd}, 98304", f"s_cselect_b32 s{sArd}, 0, s{sArd}"]]
        ard_set = [f"v_add_u32 v{vAr}, s{sArd}, v{vArB}", f"v_xor_b32 v{vAr+1}, 64, v{vAr}"]
        stp(a, "p5")
        a(f"s_waitcnt vmcnt({need('W0', 'A0')})")
        a("s_barrier")
        stp(a, "p6")
        a.extend(read_list(0))
        a(f"s_waitcnt vmcnt({need('W1')}) lgkmcnt(0)")
        a("s_barrier")
        def step(k4, dl, vm, reads=True, extra=(), cs=False, span=DMAF):
            m = mfmas(k4 & 1)
            if cs:
                m = [f"v_mfma_f32_16x16x32_bf16 a[{128+4*ft}:{131+4*ft}], a[{fr(k4 & 1, 8 + ft)}:{fr(k4 & 1, 8 + ft)+3}], a[124:127], a[{128+4*ft}:{131+4*ft}]"
                     for ft in range(NB)] + m
            n = len(m)
            sr = []
            if reads:
                rl = read_list(k4 + 1)
                sr = [((i * int(n * RDF)) // len(rl), x) for i, x in enumerate(rl)]
            sd = [((i * int(n * span)) // len(dl), x) for i, x in enumerate(dl)]
            if reads and k4 % 2 == 0:
                sd += [(n - 12 + 2 * i, x) for i, x in enumerate(ard_adv + ard_set)]
            a.extend(sched(m, [sd, sr, list(extra)], BUD if not extra and span == DMAF else 8))
            if vm is not None:
                a(f"s_waitcnt vmcnt({vm}) lgkmcnt(0)")
                a("s_barrier")
        def std_dl(k):
            return wdma_list(k + 4) + (adma_half((k + 5) // 2, 0) if k & 1 else adma_half((k + 4) // 2, 1))
        def std_need(k):
            return need(f"W{k+2}", f"A{(k+2)//2}")
        stp(a, "g1loop")
        dl = wdma_list(3, PNT) + adma_half(2, 0) + adma_half(2, 1); step(0, dl, std_need(0), cs=True, span=0.85)
        dl = wdma_list(4) + wdma_list(5) + adma_half(3, 0); step(1, dl, std_need(1), cs=True, span=0.85)
        dl = std_dl(2); step(2, dl, std_need(2), cs=True)
        e = [f"s_lshl_b32 s{t0}, s{sTile}, 13", f"s_lshl_b32 s{t1}, s{sRb}, 10", f"s_add_u32 s{t0}, s{t0}, s{t1}", f"s_mul_i32 s{t1}, s{sWc}, {NB*64}",
             f"s_add_u32 s{t0}, s{t0}, s{t1}", f"s_add_u32 s{t0}, s{t0}, {WS_CS}", f"v_and_b32 v{T}, 15, v{L}", f"v_or_b32 v{T}, s{sWr}, v{T}",
             f"v_lshlrev_b32 v{T}, 27, v{T}", f"v_and_b32 v{T+1}, 48, v{L}", f"v_or_b32 v{T}, v{T}, v{T+1}", f"s_mov_b32 s{sCnt}, 6"]
        e += [flagld("off", "s[88:91]")]
        e += [f"buffer_store_dwordx4 a[{128+4*ft}:{131+4*ft}], v{T}, {WSR}, s{t0} offen offset:{ft*64} sc1" for ft in range(NB)]
        dl = std_dl(3); step(3, dl, std_need(3), cs=True, extra=[(12 + 2 * i, x) for i, x in enumerate(e)])
        stp(a, "h6")
        a(".p2align 6")
        a(f"L_g1_{kind}_loop:")
        pf = [f"buffer_load_dwordx4 a[120:123], v{vL16}, {R(sOut)}, s{sPf} offen", f"s_add_u32 s{sPf}, s{sPf}, {MB}"]
        for k4 in range(4):
            dl = std_dl(4 + k4)
            if k4 in (0, 2) and PFG1:
                dl += [[pf[0]], [pf[1]]]; oplog.append("pf")
            if k4 == 3:
                dl = [[f"s_cmp_eq_u32 s{sCnt}, 1", f"s_cselect_b32 s{sX+2}, 0, s{sX+2}"]] + dl + [[f"s_sub_u32 s{sCnt}, s{sCnt}, 1"], [f"s_bitcmp1_b32 0x3d, s{sCnt}"]]
            step(k4, dl, std_need(4 + k4))
        a(f"s_cbranch_scc0 L_g1_{kind}_loop")
        a(f"s_cmp_lg_u32 s{sCnt}, 0")
        a(f"s_cbranch_scc1 L_hk5_{kind}")
        b = Asm(); sv = a.lines; a.lines = b.lines
        a(f"L_hk5_{kind}:")
        a(f"s_cmp_lg_u32 s{sCnt}, 5")
        a(f"s_cbranch_scc1 L_hk4_{kind}")
        stp(a, "h5")
        a(f"v_mfma_f32_32x32x16_bf16 a[128:143], a[160:163], a[160:163], 0")
        a(f"v_mfma_f32_32x32x16_bf16 a[144:159], a[160:163], a[160:163], 0")
        poll("off", True, "s[88:91]", "0", "eq")
        a(f"v_readfirstlane_b32 s{sN}, v{vFl}")
        a(f"v_readfirstlane_b32 s{sN+1}, v{vFl+1}")
        a(f"s_lshl_b32 s{t0}, s2, 5")
        a(f"s_add_u32 s{t0}, s{t0}, {WS_FL + F0}")
        publish(t0, T)
        srd(a, 88, pWO, 0, 1024 * 2048)
        a(f"s_and_b32 s{t0}, s{sPf}, {MB - 1}")
        a(f"s_add_u32 s{t1}, s{t0}, {MB}")
        a(f"buffer_load_dwordx4 a[120:123], v{vL16}, s[88:91], s{t0} offen")
        a(f"buffer_load_dwordx4 a[120:123], v{vL16}, s[88:91], s{t1} offen")
        if CPF: code_pf(T + 2)
        a(f"s_branch L_g1_{kind}_loop")
        a(f"L_hk4_{kind}:")
        a(f"s_cmp_lg_u32 s{sCnt}, 4")
        a(f"s_cbranch_scc1 L_hk3_{kind}")
        a(f"s_lshl_b32 s{t0}, s{sRb}, 5")
        a(f"v_add_u32 v{T}, s{t0}, v{L}")
        a(f"s_and_b32 s{t0}, s2, 0xc7")
        a(f"v_and_b32 v{T+1}, 7, v{L}")
        a(f"v_lshl_add_u32 v{T+1}, v{T+1}, 3, s{t0}")
        a(f"v_cmp_gt_u32 vcc, 32, v{L}")
        a("s_nop 1")
        a(f"v_cndmask_b32 v{T+1}, v{T+1}, v{T}, vcc")
        a(f"v_lshlrev_b32 v{T+1}, 5, v{T+1}")
        a(f"v_add_u32 v{T+1}, {WS_FL + F0}, v{T+1}")
        a(flagld(f"v{T+1}"))
        if TPF:
            a(f"v_lshlrev_b32 v{T}, 19, v{L}")
            a(f"s_mov_b32 s{t0}, {WS_Q}")
            a(f"buffer_load_dword v{T+2}, v{T}, {WSR}, s{t0} offen")
            srd(a, 88, pOut, 0, 4 * MB)
            a(f"v_lshlrev_b32 v{T}, 16, v{L}")
            a(f"buffer_load_dword v{T+2}, v{T}, s[88:91], 0 offen")
        a(f"s_branch L_g1_{kind}_loop")
        a(f"L_hk3_{kind}:")
        a(f"s_cmp_eq_u32 s{sCnt}, 3")
        a(f"s_cbranch_scc1 L_hk3b_{kind}")
        stp(a, "h2")
        if CPF:
            code_addr(vFl)
            a(f"global_load_dwordx4 a[120:123], v[{vFl}:{vFl+1}], off")
        a(f"s_branch L_g1_{kind}_loop")
        a(f"L_hk3b_{kind}:")
        stp(a, "h1")
        poll(f"v{T+1}", True)
        a(f"s_lshl_b32 s{t0}, s{sWave}, 8")
        a(f"v_lshl_add_u32 v{T}, v{L}, 2, s{t0}")
        a(f"s_lshl_b32 s{t0}, s{sTile}, 13")
        a(f"s_add_u32 s{t0}, s{t0}, {WS_CS}")
        a(f"s_add_u32 s{t1}, s{t0}, 4096")
        for i in range(8):
            a(f"buffer_load_dword v{T+2+i}, v{T}, {WSR}, s{t0 if i < 4 else t1} offen offset:{(i&3)*1024} sc1")
        a(f"s_lshl_b32 s{t0}, s{sRb}, 10")
        a(f"s_add_u32 s{t0}, s{t0}, {WS_STAT}")
        a(f"s_add_u32 s{t1}, s{t0}, 8192")
        a(f"buffer_load_dword v{T+10}, v{T}, {WSR}, s{t0} offen sc1")
        a(f"buffer_load_dword v{T+11}, v{T}, {WSR}, s{t1} offen sc1")
        stp(a, "h1e")
        a(f"s_branch L_g1_{kind}_loop")
        ool.extend([x.text for x in b.lines]); a.lines = sv
        stp(a, "tail")
        adds = [f"v_add_f32 v{T+2+2*i}, v{T+2+2*i}, v{T+3+2*i}" for i in range(4)] + \
               [f"v_add_f32 v{T+2}, v{T+2}, v{T+4}", f"v_add_f32 v{T+6}, v{T+6}, v{T+8}", f"v_add_f32 v{T+2}, v{T+2}, v{T+6}",
                f"v_add_u32 v{T}, {LDS_SCR}, v{T}"]
        step(0, [], nW + 4, extra=[(2 + 3 * i, x) for i, x in enumerate(adds)])
        step(1, [], 4, extra=[(40, f"ds_write_b32 v{T}, v{T+2}"), (42, f"ds_write_b32 v{T}, v{T+10} offset:1024"), (44, f"ds_write_b32 v{T}, v{T+11} offset:2048")])
        e = Asm(); sv = a.lines; a.lines = e.lines
        if ffn:
            a(f"s_lshl_b32 s{t0}, s{sRb}, 14")
            a(f"s_lshl_b32 s{t1}, s{sWr}, 13")
            a(f"s_add_u32 s{t0}, s{t0}, s{t1}")
            a(f"v_add_u32 v{vO}, s{t0}, v{vL16}")
            a(f"v_add_u32 v{vO+1}, 4096, v{vO}")
            a(f"s_lshl_b32 s{t1}, s{sWc}, 9")
            a(f"s_add_u32 s{t0}, s{t0}, s{t1}")
            a(f"v_lshrrev_b32 v{vO+2}, 5, v{L}")
            a(f"v_lshl_add_u32 v{vO+2}, v{vO+2}, 8, s{t0}")
            a(f"v_and_b32 v{vO+3}, 15, v{L}")
            a(f"v_lshl_add_u32 v{vO+2}, v{vO+3}, 4, v{vO+2}")
            a(f"v_bfe_u32 v{vO+3}, v{L}, 4, 1")
            a(f"v_lshl_add_u32 v{vO+2}, v{vO+3}, 3, v{vO+2}")
            a(f"v_add_u32 v{vO+3}, 4096, v{vO+2}")
            a(f"s_mul_i32 s{t0}, s{sXcd}, 14")
            a(f"s_mul_i32 s{t1}, s{sCt}, 6")
            a(f"s_mul_i32 s{t2}, s{sWc}, 3")
            a(f"s_add_u32 s{t1}, s{t1}, s{t2}")
            a(f"s_add_u32 s{t1}, s{t1}, s{t0}")
            a(f"s_add_u32 s{t1}, s{t1}, {32 + WS_A2 // 131072}")
            a(f"s_lshl_b32 s{t1}, s{t1}, 17")
            a(f"s_add_u32 s{t2}, s{t0}, s{sCt}")
            a(f"s_add_u32 s{t2}, s{t2}, {44 + WS_A2 // 131072}")
            a(f"s_lshl_b32 s{t2}, s{t2}, 17")
            a(f"s_add_u32 s{t3}, s{t1}, 131072")
            a(f"s_add_u32 s{t4}, s{t1}, 262144")
        else:
            a(f"s_lshl_b32 s{t0}, s{sRb}, 3")
            a(f"s_lshl_b32 s{t1}, s{sWr}, 2")
            a(f"s_add_u32 s{t0}, s{t0}, s{t1}")
            a(f"s_lshl_b32 s{t0}, s{t0}, 11")
            a(f"s_lshl_b32 s{t3}, s{sCt}, 1")
            a(f"s_add_u32 s{t3}, s{t3}, s{sWc}")
            a(f"s_lshl_b32 s{t3}, s{t3}, 17")
            a(f"s_add_u32 s{t1}, s{t3}, s{t0}")
            a(f"s_lshl_b32 s{t2}, s{t1}, 1")
            a(f"s_add_u32 s{t2}, s{t2}, {WS_KV}")
            a(f"s_add_u32 s{t1}, s{t1}, {WS_Q}")
            a(f"v_lshrrev_b32 v{vO+2}, 4, v{L}")
            a(f"v_lshlrev_b32 v{vO+2}, 9, v{vO+2}")
            a(f"v_and_b32 v{vO+3}, 15, v{L}")
            a(f"v_lshl_add_u32 v{vO}, v{vO+3}, 4, v{vO+2}")
            a(f"v_bfe_u32 v{vO+3}, v{L}, 2, 2")
            a(f"v_lshl_add_u32 v{vO+2}, v{vO+3}, 7, v{vO+2}")
            a(f"v_and_b32 v{vO+3}, 3, v{L}")
            a(f"v_lshl_add_u32 v{vO+1}, v{vO+3}, 4, v{vO+2}")
            a(f"s_mov_b32 s{t4}, {f2u(QSCALE):#x}")
        srd(a, sKV, 4, WS_KV, SZ_KV)
        a(f"s_mul_i32 s{t5}, s{sWc}, {NB*64}")
        a(f"s_add_u32 s{t5}, s{t5}, {LDS_SCR}")
        a(f"v_and_b32 v248, 48, v{L}")
        a(f"v_add_u32 v248, s{t5}, v248")
        a(f"s_lshl_b32 s{t0}, s{sWr}, 9")
        a(f"s_add_u32 s{t0}, s{t0}, {LDS_SCR + 1024}")
        a(f"v_and_b32 v249, 15, v{L}")
        a(f"v_lshl_add_u32 v249, v249, 2, s{t0}")
        if not ffn:
            a(f"v_and_b32 v222, 15, v{L}")
            a(f"v_lshl_add_u32 v222, v222, 2, s{t5}")
            a(f"v_and_b32 v223, 48, v{L}")
            a(f"v_add_u32 v223, s{t0}, v223")
        el = []
        for x in e.lines:
            if x.op in ("s_addc_u32", "s_subb_u32", "s_cselect_b32"): el[-1].append(x.text)
            else: el.append([x.text])
        a.lines = sv
        n = 8 * NB
        step(2, [], 0, extra=[(2 + (i * (n - 12)) // len(el), x) for i, x in enumerate(el)])
        rds = []
        for tt in range(8):
            rds.append(f"ds_read_b32 v{ST+2*tt}, v249 offset:{tt*64}")
            if not ffn: rds.append(f"ds_read_b32 v{ST+2*tt+1}, v249 offset:{1024 + tt*64}")
        if ffn:
            rds.append(f"ds_read_b128 v[244:247], v248 offset:{6*64}")
        else:
            for ft in range(4): rds.append(f"ds_read_b128 v[{192+4*ft}:{195+4*ft}], v248 offset:{ft*64}")
            for vt in range(2): rds.append(f"ds_read_b32 v{208+2*vt}, v222 offset:{(4+vt)*64}")
        step(3, [], None, reads=False, extra=[(2 + 2 * i, x) for i, x in enumerate(rds)])
        stp(a, "g1end")
        BC = "op_sel_hi:[1,0,1]"
        if ffn:
            a("s_nop 0")
            a(f"s_mov_b32 s{sH1}, s{t1}")
            a(f"s_mov_b32 s{sH2}, s{t2}")
            a(f"s_mov_b32 s{sPub}, s92")
            srd(a, sOut, 4, 0, WS_END)
            a("s_waitcnt lgkmcnt(0)")
            pend = []
            for u in range(8):
                c = acc(u, 6)
                for h in range(2):
                    a(f"v_pk_fma_f32 v[{c+2*h}:{c+2*h+1}], v[{244+2*h}:{245+2*h}], v[{ST+2*u}:{ST+2*u+1}], v[{c+2*h}:{c+2*h+1}] {BC}")
                a(f"v_cvt_pk_bf16_f32 v{c}, v{c}, v{c+1}")
                a(f"v_cvt_pk_bf16_f32 v{c+1}, v{c+2}, v{c+3}")
                a(f"v_pk_max_i16 v{c}, v{c}, 0")
                a(f"v_pk_max_i16 v{c+1}, v{c+1}, 0")
                if u in direct: pend.append(hstore(u, f"v[{c}:{c+1}]"))
                else:
                    for e_ in range(2): a(f"v_accvgpr_write_b32 a{4*parked.index(u)+e_}, v{c+e_}")
                if u == 1:
                    a(f"ds_read_b64 v[194:195], v248 offset:64")
                    a(f"ds_read_b64 v[198:199], v248 offset:72")
                if u == 3:
                    a(f"ds_read_b64 v[202:203], v248 offset:0")
                    a(f"ds_read_b64 v[206:207], v248 offset:8")
            for i, r in enumerate((210, 214, 218, 222)):
                a(f"ds_read_b64 v[{r}:{r+1}], v248 offset:{128 + (i>>1)*64 + (i&1)*8}")
            a(f"ds_read_b128 v[244:247], v248 offset:{4*64}")
            CSM = {0: (202, 206), 1: (194, 198), 2: (210, 214), 3: (218, 222), 4: (244, 246), 5: (194, 198)}
            groups = at_load_groups()
            polled = False; after = []
            def drip(k):
                for _ in range(k):
                    if groups:
                        a.extend(groups.pop(0)); after.append("ld")
                    elif pend:
                        a.extend(pend.pop(0)); after.append("st")
            for u in range(8, 32):
                p, tt = divmod(u - 8, 8)
                if u == 8: a("s_waitcnt lgkmcnt(5)")
                if u == 16:
                    a("s_waitcnt lgkmcnt(0)")
                    a(f"ds_read_b64 v[194:195], v248 offset:{5*64}")
                    a(f"ds_read_b64 v[198:199], v248 offset:{5*64+8}")
                if u == 24: a("s_waitcnt lgkmcnt(0)")
                if u == EPOLL - ELEAD: a(flagld(f"v{vFa}"))
                c0, c1 = acc(tt, 2 * p), acc(tt, 2 * p + 1)
                for c, cs in ((c0, CSM[2 * p]), (c1, CSM[2 * p + 1])):
                    for h in range(2):
                        a(f"v_pk_fma_f32 v[{c+2*h}:{c+2*h+1}], v[{cs[h]}:{cs[h]+1}], v[{ST+2*tt}:{ST+2*tt+1}], v[{c+2*h}:{c+2*h+1}] {BC}")
                a(f"v_cvt_pk_bf16_f32 v{c0}, v{c0}, v{c0+1}")
                a(f"v_cvt_pk_bf16_f32 v{c0+1}, v{c0+2}, v{c0+3}")
                a(f"v_cvt_pk_bf16_f32 v{c0+2}, v{c1}, v{c1+1}")
                a(f"v_cvt_pk_bf16_f32 v{c0+3}, v{c1+2}, v{c1+3}")
                for e_ in range(4): a(f"v_pk_max_i16 v{c1+e_}, v{c0+e_}, 0")
                if u in direct: pend.append(hstore(u, f"v[{c1}:{c1+3}]"))
                else:
                    for e_ in range(4): a(f"v_accvgpr_write_b32 a{4*parked.index(u)+e_}, v{c1+e_}")
                if u == EPOLL:
                    stp(a, "e1")
                    a(f"s_waitcnt vmcnt(0)")
                    stp(a, "e2")
                    poll(f"v{vFa}", True)
                    stp(a, "e4")
                    polled = True
                if polled: drip(4)
            drip(64)
            a("s_nop 1")
            at_init()
            idx = [i for i, z in enumerate(after) if z == "ld"][11]
            a(f"s_waitcnt vmcnt({len(after) - 1 - idx})")
            a("s_branch L_at_entry")
        else:
            QSC = SC
            a(f"s_mov_b32 s{sPub}, 0")
            a("s_waitcnt lgkmcnt(0)")
            a("s_nop 4")
            for b_ in range(4):
                for e_ in range(2):
                    a(f"ds_read_b128 v[{212+4*e_}:{215+4*e_}], v223 offset:{(2*b_+e_)*64}")
                a(f"ds_read_b128 v[244:247], v223 offset:{1024 + (2*b_)*64}")
                a(f"ds_read_b64 v[220:221], v223 offset:{1024 + (2*b_+1)*64}")
                a(f"ds_read_b64 v[242:243], v223 offset:{1024 + (2*b_+1)*64 + 8}")
                for X in (1, 0):
                    for h in range(2):
                        tt = 2 * b_ + h
                        st_ = f"v[{ST+2*tt}:{ST+2*tt+1}]"
                        if X == 0: a(f"v_mul_f32 v{ST+2*tt+1}, s{t4}, v{ST+2*tt+1}")
                        c0 = acc(tt, 2 * X)
                        for e_ in range(2):
                            c = acc(tt, 2 * X + e_); cs = 192 + 4 * (2 * X + e_)
                            for h2 in range(2):
                                a(f"v_pk_fma_f32 v[{c+2*h2}:{c+2*h2+1}], v[{cs+2*h2}:{cs+2*h2+1}], {st_}, v[{c+2*h2}:{c+2*h2+1}] {BC}")
                            for h2 in range(2):
                                a(f"v_pk_mul_f32 v[{c+2*h2}:{c+2*h2+1}], v[{c+2*h2}:{c+2*h2+1}], {st_} op_sel:[0,1]")
                        c1 = acc(tt, 2 * X + 1)
                        a(f"v_cvt_pk_bf16_f32 v{c0}, v{c0}, v{c0+1}")
                        a(f"v_cvt_pk_bf16_f32 v{c0+1}, v{c0+2}, v{c0+3}")
                        a(f"v_cvt_pk_bf16_f32 v{c0+2}, v{c1}, v{c1+1}")
                        a(f"v_cvt_pk_bf16_f32 v{c0+3}, v{c1+2}, v{c1+3}")
                        if X: a(f"buffer_store_dwordx4 v[{c0}:{c0+3}], v{vO+1}, {WSR}, s{t2} offen offset:{h*64} {QSC}")
                        else: a(f"buffer_store_dwordx4 v[{c0}:{c0+3}], v{vO}, {WSR}, s{t1} offen offset:{h*256} {QSC}")
                a("s_waitcnt lgkmcnt(0)")
                for vt in range(2):
                    c0 = acc(2 * b_, 4 + vt)
                    for e_ in range(2):
                        c = acc(2 * b_ + e_, 4 + vt)
                        rs = ((244, 246), (220, 242))[e_]
                        for h2 in range(2):
                            a(f"v_pk_fma_f32 v[{c+2*h2}:{c+2*h2+1}], v[{212+4*e_+2*h2}:{213+4*e_+2*h2}], v[{208+2*vt}:{209+2*vt}], v[{c+2*h2}:{c+2*h2+1}] {BC}")
                        for h2 in range(2):
                            a(f"v_pk_mul_f32 v[{c+2*h2}:{c+2*h2+1}], v[{c+2*h2}:{c+2*h2+1}], v[{rs[h2]}:{rs[h2]+1}]")
                    c1 = acc(2 * b_ + 1, 4 + vt)
                    a(f"v_cvt_pk_bf16_f32 v{c0}, v{c0}, v{c0+1}")
                    a(f"v_cvt_pk_bf16_f32 v{c0+1}, v{c0+2}, v{c0+3}")
                    a(f"v_cvt_pk_bf16_f32 v{c0+2}, v{c1}, v{c1+1}")
                    a(f"v_cvt_pk_bf16_f32 v{c0+3}, v{c1+2}, v{c1+3}")
                    a(f"buffer_store_dwordx4 v[{c0}:{c0+3}], v{vO}, {WSR}, s{t2} offen offset:{2048 + vt*256} {QSC}")
                a(f"s_add_u32 s{t1}, s{t1}, 2048")
                a(f"s_add_u32 s{t2}, s{t2}, 4096")
            stp(a, "e1")
            a("s_waitcnt vmcnt(0)")
            a("s_barrier")
            stp(a, "e2")
            publish(92, T)
            poll(f"v{vFa}", False)
            stp(a, "e4")
            for g_ in at_load_groups(): a.extend(g_)
            srd(a, sOut, 4, 0, 0)
            for r in (sH1, sH2, t3, t4): a(f"s_mov_b32 s{r}, 0")
            at_init()
            a("s_waitcnt vmcnt(0)")
    g1("ffn")
    a("L_g1_qkv:")
    g1("qkv")

    a("L_at_entry:")
    stp(a, "atentry")
    a("s_barrier")
    def rdK(t, tl):
        b = Kf[t & 1]
        return [f"ds_read_b128 v[{b}:{b+3}], v{vCur} offset:{tl*4096}", f"ds_read_b128 v[{b+4}:{b+7}], v{vCur} offset:{tl*4096+1024}"]
    def rdV(t, tl):
        b = Vf[t & 1]
        return [f"ds_read_b128 v[{b}:{b+3}], v{vCur} offset:{tl*4096+2048}", f"ds_read_b128 v[{b+4}:{b+7}], v{vCur} offset:{tl*4096+3072}"]
    def qk(x, t, c0=None):
        s = S[x]; k = Kf[t & 1]; q = Q[x]
        c = f"v[{NM[x]}:{NM[x]+15}]" if c0 is None else c0
        return [f"v_mfma_f32_32x32x16_bf16 v[{s}:{s+15}], v[{k}:{k+3}], v[{q}:{q+3}], {c}",
                f"v_mfma_f32_32x32x16_bf16 v[{s}:{s+15}], v[{k+4}:{k+7}], v[{q+4}:{q+7}], v[{s}:{s+15}]"]
    def PV(x, t, h):
        v = Vf[t & 1]
        return f"v_smfmac_f32_32x32x32_bf16 v[{O[x]}:{O[x]+15}], v[{v+4*h}:{v+4*h+3}], v[{D[x]+8*h}:{D[x]+8*h+7}], v{IDX}"
    def LS(x, h):
        return f"v_smfmac_f32_16x16x64_bf16 v[{Lr[x]}:{Lr[x]+3}], v[{ONE}:{ONE+3}], v[{D[x]+8*h}:{D[x]+8*h+7}], v{IDX}"
    a.extend(rdK(0, 0))
    a.extend(rdV(0, 0))
    a("s_waitcnt lgkmcnt(0)")
    a.extend(qk(0, 0, "0"))
    a.extend(qk(1, 0, "0"))
    a("s_nop 7")
    a("s_nop 1")
    def g2_setup():
        a(f"s_and_b32 s{t0}, s{sXcd}, 1")
        a(f"s_lshl_b32 s{t0}, s{t0}, 3")
        a(f"s_lshr_b32 s{t1}, s{sSlot}, 2")
        a(f"s_add_u32 s{sCb}, s{t0}, s{t1}")
        a(f"s_lshl_b32 s{t0}, s{sRb2}, 13")
        a(f"v_add_u32 v{vA}, s{t0}, v{vL16}")
        a(f"v_add_u32 v{vA+1}, 4096, v{vA}")
        a(f"v_lshrrev_b32 v{U}, 5, v{L}")
        a(f"v_bfe_u32 v{U+1}, v{L}, 4, 1")
        a(f"v_bfe_u32 v{U+2}, v{L}, 2, 2")
        a(f"v_and_b32 v{U+3}, 3, v{L}")
        a(f"v_lshl_add_u32 v{vW}, v{U+1}, 2, v{U+2}")
        a(f"v_lshlrev_b32 v{vW}, 11, v{vW}")
        a(f"v_lshlrev_b32 v{vW+1}, 1, v{U+1}")
        a(f"v_xor_b32 v{vW+1}, v{vW+1}, v{U+3}")
        a(f"v_lshl_add_u32 v{vW}, v{vW+1}, 4, v{vW}")
        a(f"v_lshl_add_u32 v{vW}, v{U}, 6, v{vW}")
        a(f"s_lshl_b32 s{t0}, s{sCb}, 7")
        a(f"v_add_u32 v{vW}, s{t0}, v{vW}")
        for pc in range(1, 4): a(f"v_add_u32 v{vW+pc}, {pc*(16384-1024)}, v{vW}")
        a(f"s_lshl_b32 s{sM0g}, s{sWave}, 14")
        a(f"s_add_u32 s{sM0g}, s{sM0g}, {LDS_W1}")
        a(f"v_lshl_add_u32 v{vWe}, v{U}, 10, s{sM0g}")
        a(f"v_lshl_add_u32 v{vWe}, v{U+1}, 8, v{vWe}")
        a(f"v_lshl_add_u32 v{vWe}, v{U+2}, 6, v{vWe}")
        a(f"v_lshl_add_u32 v{vWe}, v{U+1}, 5, v{vWe}")
        a(f"v_lshl_add_u32 v{vWe}, v{U+3}, 3, v{vWe}")
        a(f"v_xor_b32 v{vWo}, 32, v{vWe}")
        a(f"s_lshl_b32 s{t1}, s{sRb2}, 7")
        a(f"s_lshl_b32 s{t2}, s{sWave}, 5")
        a(f"s_add_u32 s{t1}, s{t1}, s{t2}")
        a(f"s_lshl_b32 s{t2}, s{t1}, 2")
        a(f"s_add_u32 s{t2}, s{t2}, {WS_STAT + 8192}")
        a(f"s_lshl_b32 s{t1}, s{t1}, 11")
        a(f"s_add_u32 s{t1}, s{t1}, s{t0}")
        a(f"v_and_b32 v{U}, 15, v{L}")
        a(f"v_lshl_add_u32 v{vX}, v{U}, 11, s{t1}")
        a(f"v_lshrrev_b32 v{U+1}, 4, v{L}")
        a(f"v_lshl_add_u32 v{vX}, v{U+1}, 3, v{vX}")
        a(f"v_lshlrev_b32 v{U}, 2, v{U}")
        a(f"s_and_b32 s{t0}, s{sSlot}, 28")
        a(f"s_add_u32 s{t0}, s{t0}, s{sWave}")
        a(f"s_lshl_b32 s{t0}, s{t0}, 8")
        a(f"s_add_u32 s{t0}, s{t0}, {WS_STAT + 16384}")
        a(f"v_and_b32 v{U+1}, 31, v{L}")
        a(f"v_lshlrev_b32 v{U+1}, 2, v{U+1}")
        for x in range(2):
            a(f"buffer_load_dword v{vSig+x}, v{U+1}, {WSR}, s{t0} offen offset:{x*128} sc1")
            a(f"buffer_load_dword v{vRs2+x}, v{U}, {WSR}, s{t2} offen offset:{x*64} sc1")
        if CPF: code_addr(248)
        a(f"s_lshl_b32 s{sKA}, s{sWave}, 17")
        a(f"s_add_u32 s{sKA}, s{sKA}, {WS_A2 + 32*131072}")
        a(f"s_lshl_b32 s{sKW}, s{sWave}, 16")
    for x in range(2):
        s0 = S[x]
        a(f"v_max3_f32 v{U}, v{s0}, v{s0+1}, v{s0+2}")
        for i in range(3, 15, 2): a(f"v_max3_f32 v{U}, v{U}, v{s0+i}, v{s0+i+1}")
        a(f"v_max_f32 v{U}, v{U}, v{s0+15}")
        a(f"v_mov_b32 v{U+2}, v{U}")
        a("s_nop 1")
        a(f"v_permlane32_swap_b32 v{U}, v{U+2}")
        a(f"v_max_f32 v{U}, v{U}, v{U+2}")
        a(f"v_sub_f32 v{NM[x]}, 0, v{U}")
        a(f"v_sub_f32 v{NM[x]+1}, 0, v{U}")
        for i in range(2, 16, 2): a(f"v_mov_b64 v[{NM[x]+i}:{NM[x]+i+1}], v[{NM[x]}:{NM[x]+1}]")
        if x == 0:
            for i in range(0, 16, 2): a(f"v_pk_add_f32 v[{s0+i}:{s0+i+1}], v[{s0+i}:{s0+i+1}], v[{NM[x]}:{NM[x]+1}]")
    a("s_nop 1")
    stp(a, "atloop")

    def acc2(tt, ft): return 128 + (tt * 4 + ft) * 4
    def ab(buf, tt): return buf * 32 + tt * 4
    def gm(v, tt, ft):
        c = acc2(tt, ft); w = WF[v & 1] + ft * 4; x = ab(v, tt)
        return f"v_mfma_f32_16x16x32_bf16 a[{c}:{c+3}], v[{w}:{w+3}], a[{x}:{x+3}], a[{c}:{c+3}]"
    def aload(buf, tt):
        r = ab(buf, tt)
        return f"buffer_load_dwordx4 a[{r}:{r+3}], v{vA + (tt>>2)}, {WSR}, s{sKA} offen offset:{(tt&3)*1024} {SC}"
    def wdma(pc):
        return f"buffer_load_dwordx4 v{vW+pc}, {R(sW)}, s{sKW} offen offset:{pc*1024} lds"
    def wread(slot, buf, ft):
        r = WF[buf] + ft * 4
        return [f"ds_read_b64_tr_b16 v[{r+2*rd}:{r+2*rd+1}], v{vWo if ft&1 else vWe} offset:{slot*4096 + rd*2048 + (ft>>1)*512}" for rd in range(2)]
    W0 = "s_waitcnt lgkmcnt(0)"
    def phase(x, t, doqk=True, f=None):
        y = 1 - x
        f = f or {}
        E = lambda i: f"v_exp_f32 v{D[x]+i}, v{S[x]+i}"
        q = qk(y, t + x) if doqk else [None, None]
        g = lambda k: f.get(k, [])
        seq = [q[0]] + g(0) + [E(0), E(1), E(2), q[1]] + g(1) + [E(3), E(4), E(5), PV(y, t - 1 + x, 1)] + g(2) + [E(6), E(7), E(8),
               LS(y, 1)] + g(3) + [E(9), E(10), PV(x, t, 0)] + g(4) + [E(11), E(12), E(13), LS(x, 0)] + g(5) + [E(14), E(15)]
        a.extend([z for z in seq if z])
    ring_adv = [f"s_add_u32 s{sMb}, s{sRing}, s{sM0k}", f"s_add_u32 s{sRing}, s{sRing}, 32768", f"s_cmp_eq_u32 s{sRing}, 98304",
                f"s_cselect_b32 s{sRing}, 0, s{sRing}"]
    kv_sel = [f"s_cmp_gt_u32 s{sCntA}, 5", f"s_cselect_b32 s{sKV+2}, 0, {SZ_KV}"]
    hq = list(parked)
    kv0 = kv_groups(2, 6)
    def it_pure(c, j, lastpure):
        t = j + 1
        k = rdK(t + 1, j); v = rdV(t + 1, j)
        fa = {0: [k[0]], 1: [k[1]], 5: [W0]}
        fb = {0: [v[0]], 1: [v[1]], 5: [W0]}
        if j == 0:
            fa[2] = [f"s_mov_b32 m0, s{sMb}"]
            if c > 5: fa[3] = [f"s_mov_b32 s{sKV+2}, 0"]
        if j == 4:
            fa[2] = [f"s_add_u32 m0, s{sMb}, 16384", f"s_add_u32 s{sSo}, s{sSo}, 16384"]
        fa[4] = [kvdma(j)]
        if j == 7:
            fa[2] = ring_adv[0:2]; fa[3] = ring_adv[2:4]
            fb[2] = [f"s_add_u32 s{sSo}, s{sSo}, 16384"]
        if c == 0:
            if j == 4: fa[2] = []
            if j == 7: fb[2] = []
            fa[4] = kv0.pop(0); fb[4] = kv0.pop(0)
            if j <= 2: fb[3] = fb[4]; fb[4] = kv0.pop(0)
        for f in (fa, fb):
            for sl in (2, 3)[:SPP]:
                if hq:
                    u = hq.pop(0); r = 4 * parked.index(u)
                    f[sl] = f.get(sl, []) + hstore(u, f"a[{r}:{r+(1 if u < 8 else 3)}]")
        if lastpure and j == POLLAT:
            fb[4] = fb.get(4, []) + [flagld(f"v{vFa2}")]
        return fa, fb, t
    def kv_m0(j):
        return f"s_mov_b32 m0, s{sMb}" if j < 4 else f"s_add_u32 m0, s{sMb}, 16384"
    def trip_sa(j, x):
        l = []
        if j == 0 and x == 0: l += kv_sel
        if j == 3 and x == 1: l += [f"s_add_u32 s{sSo}, s{sSo}, 16384"]
        if j == 7 and x == 1: l += [f"s_add_u32 s{sSo}, s{sSo}, 16384"] + ring_adv
        return l
    def kstep_adv():
        return [f"s_add_u32 s{sKA}, s{sKA}, {4*131072}", f"s_add_u32 s{sKW}, s{sKW}, {4*65536}"]
    def it_load(j):
        t = j + 1; v = j >> 1
        for x in range(2):
            ph = 2 * (j & 1) + x
            kv = rdK(t + 1, j) if x == 0 else rdV(t + 1, j)
            tr = wread(0, 0, ph) if v == 3 else []
            sa = trip_sa(j, x)
            wait = "s_waitcnt vmcnt(28) lgkmcnt(0)" if ph == 3 else W0
            f = {0: [kv[0], kv[1]], 1: sa[0:2] + tr, 2: [f"s_add_u32 m0, s{sM0g}, {v*4096}", aload(v, 2 * ph)], 3: sa[2:] + [wdma(ph)],
                 4: ([kv_m0(j)] if x == 0 else []), 5: [wait, aload(v, 2 * ph + 1)] + ([kvdma(j)] if x == 0 else [])}
            if ph == 3: f[5] += kstep_adv()
            if j == 7 and x == 1:
                f[4] = [f"s_add_u32 s{sCntA}, s{sCntA}, 1"]
                f[5] += ["s_barrier", f"v_add_u32 v{vCur}, s{sRing}, v{vL16}"]
            phase(x, t, f=f)
    def it_comb(j):
        t = j + 1; v = j >> 1
        for x in range(2):
            y = 1 - x
            ph = 2 * (j & 1) + x
            E = lambda i: f"v_exp_f32 v{D[x]+i}, v{S[x]+i}"
            q = qk(y, t + x)
            kv = rdK(t + 1, j) if x == 0 else rdV(t + 1, j)
            tr = wread((v + 1) & 3, (v + 1) & 1, ph)
            Gm = [gm(v, 2 * ph, ft) for ft in range(4)] + [gm(v, 2 * ph + 1, ft) for ft in range(3, -1, -1)]
            sa = trip_sa(j, x) + [None] * 5
            wait = "s_waitcnt vmcnt(28) lgkmcnt(0)" if ph == 3 else W0
            last = (j == 7 and x == 1)
            seq = [Gm[0], kv[0], kv[1], q[0], sa[0], E(0), E(1), E(2), Gm[1], sa[1], E(3), q[1], sa[2], E(4), E(5), E(6), Gm[2], sa[3], E(7),
                   PV(y, t - 1 + x, 1), tr[0], E(8), E(9), LS(y, 1), tr[1], Gm[3], sa[4], E(10), PV(x, t, 0), aload(v, 2 * ph), E(11), E(12),
                   Gm[4], f"s_add_u32 m0, s{sM0g}, {v*4096}", E(13), LS(x, 0), wdma(ph), Gm[5],
                   kv_m0(j) if x == 0 else (f"s_add_u32 s{sCntA}, s{sCntA}, 1" if last else None), E(14), Gm[6], wait,
                   "s_barrier" if last else None, E(15), Gm[7], aload(v, 2 * ph + 1), kvdma(j) if x == 0 else None]
            if CPF and j == 2 and x == 1: seq.append(f"global_load_dwordx4 v[{U+4}:{U+7}], v[248:249], off")
            if ph == 3: seq += kstep_adv()
            if last: seq += [f"v_add_u32 v{vCur}, s{sRing}, v{vL16}", f"s_cmp_lt_u32 s{sCntA}, 8"]
            a.extend([z for z in seq if z])

    NPURE = 7 - NC
    seqs = []
    for c in range(NPURE):
        for j in range(1 if c == 0 else 0, 8):
            seqs.append((c, j) + it_pure(c, j, c == NPURE - 1))
    assert not hq
    log = []
    def younger(pred):
        idx = [i for i, tag in enumerate(log) if pred(tag)]
        return len(log) - 1 - idx[-1] if idx else len(log)
    for (c, j, fa, fb, t) in seqs:
        for f in (fa, fb):
            for sl in range(5):
                for z in f.get(sl, []):
                    if z.startswith("buffer_"):
                        log.append("kv%d" % (sum(1 for g in log if g.startswith("kv")) // 8 - 1) if " lds" in z else ("st" if "store" in z else "poll"))
        need = 63
        pub = (8 * c + j == PUBAT)
        if j == 7: need = min(need, younger(lambda g: g == "kv%d" % (c - 1)))
        if pub: need = min(need, younger(lambda g: g == "st"))
        if j == 7 or pub:
            fb[5] = [f"s_waitcnt vmcnt({need}) lgkmcnt(0)", "s_barrier"]
            if j == 7: fb[5].append(f"v_add_u32 v{vCur}, s{sRing}, v{vL16}")
        phase(0, t, f=fa)
        phase(1, t, f=fb)
        if pub:
            assert log.count("st") == len(parked)
            a(f"s_cmp_eq_u32 s{sPub}, 0")
            a("s_cbranch_scc1 L_at_np")
            publish(sPub, U)
            a("L_at_np:")
    stp(a, "pureend")
    a(f"s_mov_b32 s{sCntA}, {NPURE}")
    g2_setup()
    a(f"s_waitcnt vmcnt({younger(lambda g: g == 'poll') + 4})")
    poll(f"v{vFa2}", True)
    stp(a, "fhok")
    for j in range(8): it_load(j)
    if NC:
        a(".p2align 6")
        a("L_cb_loop:")
        for j in range(8): it_comb(j)
        a("s_cbranch_scc1 L_cb_loop")
    phase(0, 63)
    phase(1, 63, doqk=False)
    a("s_nop 1")
    a(PV(1, 63, 1)); a(LS(1, 1))
    stp(a, "atend")
    a(f"v_bfe_u32 v{U+2}, v{L}, 4, 1")
    a(f"v_lshlrev_b32 v{U+2}, 10, v{U+2}")
    a(f"v_lshrrev_b32 v{U+3}, 5, v{L}")
    a(f"v_lshl_add_u32 v{U+2}, v{U+3}, 8, v{U+2}")
    a(f"v_and_b32 v{U+3}, 15, v{L}")
    a(f"v_lshl_add_u32 v{U+2}, v{U+3}, 4, v{U+2}")
    a(f"s_lshr_b32 s{t0}, s{sRb2}, 1")
    a(f"s_lshl_b32 s{t0}, s{t0}, 8")
    a(f"s_add_u32 s{t0}, s{t0}, {WS_FL + FO}")
    a(f"v_and_b32 v{U+3}, 31, v{L}")
    a(f"v_lshl_add_u32 v{vFa2}, v{U+3}, 3, s{t0}")
    a(f"s_add_u32 s{sQO}, s{sQO}, {WS_A2 - WS_Q}")
    a(f"s_mov_b32 s{t0}, {f2u(2.0**40):#x}")
    a(f"v_pk_mul_f32 v[{U}:{U+1}], v[{O[0]}:{O[0]+1}], 0 op_sel_hi:[1,0]")
    for i in range(2, 32, 2):
        a(f"v_pk_fma_f32 v[{U}:{U+1}], v[{O[0]+i}:{O[0]+i+1}], 0, v[{U}:{U+1}] op_sel_hi:[1,0,1]")
    a(f"v_add_f32 v{U}, v{U}, v{U+1}")
    a(f"v_add3_u32 v{U+1}, 0, 0, 0") if False else None
    a(f"v_add_f32 v{U+1}, v{Lr[0]}, v{Lr[1]}")
    a(f"v_add_f32 v{U}, v{U}, v{U+1}")
    a(f"v_cmp_ngt_f32 vcc, s{t0}, v{U}")
    a("s_nop 1")
    a("s_cbranch_vccnz L_at_slow")
    a("L_at_fin:")
    for x in range(2):
        a(f"v_rcp_f32 v{U}, v{Lr[x]}")
        a("s_nop 0")
        a(f"v_mul_f32 v{U}, v{U}, v{vSig+x}")
        for i in range(0, 16, 2): a(f"v_pk_mul_f32 v[{O[x]+i}:{O[x]+i+1}], v[{O[x]+i}:{O[x]+i+1}], v[{U}:{U+1}] op_sel_hi:[1,0]")
        for u in range(2):
            for e in range(2):
                c = O[x] + 8 * e + 4 * u
                a(f"v_cvt_pk_bf16_f32 v{D[x]+4*u+2*e}, v{c}, v{c+1}")
                a(f"v_cvt_pk_bf16_f32 v{D[x]+4*u+2*e+1}, v{c+2}, v{c+3}")
            a(f"buffer_store_dwordx4 v[{D[x]+4*u}:{D[x]+4*u+3}], v{U+2}, {WSR}, s{sQO} offen offset:{x*2048+u*512} {SC}")

    X = 152
    def xloads():
        return [f"buffer_load_dwordx2 v[{X+(h*4+ft)*2}:{X+(h*4+ft)*2+1}], v{vX}, {R(sX)}, {'0' if h == 0 else f's{sPf}'} offen offset:{ft*32}"
                for h in range(2) for ft in range(4)]
    def step2(v, loads, vm, reads=True, tail=(), extra=()):
        a(f"s_waitcnt vmcnt({vm}) lgkmcnt(0)")
        m = [gm(v, tt, ft) for tt in range(8) for ft in (range(4) if tt % 2 == 0 else range(3, -1, -1))]
        ex = list(extra)
        if loads:
            ex.append((0, f"s_add_u32 m0, s{sM0g}, {v*4096}"))
            for pc in range(4): ex.append((1 + pc, wdma(pc)))
            for tt in range(8): ex.append((max(4 * tt + 3, 6 + tt), aload(v, tt)))
            ex.append((31, kstep_adv()))
        if reads:
            rl = []
            for ft in range(4): rl += wread((v + 1) & 3, (v + 1) & 1, ft)
            for i, x in enumerate(rl): ex.append((8 + 2 * i, x))
        ex.sort(key=lambda t: t[0])
        a.extend(weave(m, ex))
        a.extend(tail)
    srd(a, sX, pX, 0, 4 * MB)
    srd(a, sOut, pOut, 0, 4 * MB)
    a(f"s_mov_b32 s{sPf}, 32768")
    NH = 6 - NC
    pollld = flagld(f"v{vFa2}")
    for v in range(PUBSTEP + 1): step2(v, True, 32)
    a(f"s_waitcnt vmcnt({12*(PUBSTEP+1)})")
    a("s_barrier")
    publish(93, U)
    a(f"s_mov_b32 s{sCnt}, {NH + 2}")
    a("s_branch L_g2_in")
    a(".p2align 6")
    a("L_g2_loop:")
    for v in range(4):
        if v == PUBSTEP + 1: a("L_g2_in:")
        step2(v, True, 32, extra=[(-1, pollld)] if v == POLLSTEP else ())
    a(f"s_sub_u32 s{sCnt}, s{sCnt}, 1")
    a(f"s_cmp_lg_u32 s{sCnt}, 2")
    a("s_cbranch_scc1 L_g2_nosw")
    stp(a, "fopoll")
    a(f"s_waitcnt vmcnt({12*(4-POLLSTEP)})")
    poll(f"v{vFa2}", True)
    stp(a, "fook")
    srd(a, sW, pWO, 0, 1024 * 2048)
    a(f"s_lshl_b32 s{sKW}, s{sWave}, 16")
    a(f"s_lshl_b32 s{sKA}, s{sWave}, 17")
    a(f"s_add_u32 s{sKA}, s{sKA}, {WS_A2}")
    a("L_g2_nosw:")
    a(f"s_cmp_lg_u32 s{sCnt}, 0")
    a("s_cbranch_scc1 L_g2_loop")
    step2(0, False, 32, tail=xloads())
    step2(1, False, 28)
    step2(2, False, 16)
    step2(3, False, 8, reads=False)
    stp(a, "g2end")
    if STAMP: a("s_waitcnt lgkmcnt(0)")
    vRw, vRr = U, U + 1
    a("s_nop 7")
    for d in range(4):
        a(f"s_cmp_eq_u32 s{sWave}, {d}")
        a(f"s_cbranch_scc1 L_g2_own{d}")
        a(f"s_sub_u32 s{t0}, s{sWave}, {d+1}")
        a(f"s_and_b32 s{t0}, s{t0}, 3")
        a(f"s_lshl_b32 s{t0}, s{t0}, 13")
        a(f"s_add_u32 s{t0}, s{t0}, {d*24576}")
        a(f"v_add_u32 v{vRw}, s{t0}, v{vL16}")
        for i in range(8):
            c = 128 + 32 * d + 4 * i
            a(f"ds_write_b128 v{vRw}, a[{c}:{c+3}] offset:{i*1024}")
        a(f"s_branch L_g2_nx{d}")
        a(f"L_g2_own{d}:")
        for i in range(32): a(f"v_accvgpr_read_b32 v{i}, a{128+32*d+i}")
        a(f"L_g2_nx{d}:")
    a(f"s_mul_i32 s{t0}, s{sWave}, 24576")
    a(f"v_add_u32 v{vRr}, s{t0}, v{vL16}")
    a(f"s_mov_b32 s{t0}, 0xffff0000")
    a("s_waitcnt vmcnt(0)")
    XF = 168
    for i in range(16):
        a(f"v_lshlrev_b32 v{XF+2*i}, 16, v{X+i}")
        a(f"v_and_b32 v{XF+2*i+1}, s{t0}, v{X+i}")
    a("s_waitcnt lgkmcnt(0)")
    a("s_barrier")
    for i in range(8):
        for sl in range(3):
            base = 32 + 32 * sl
            a(f"ds_read_b128 v[{base+4*i}:{base+4*i+3}], v{vRr} offset:{sl*8192 + i*1024}")
    for i in range(8):
        a(f"s_waitcnt lgkmcnt({min(15, 21 - 3*i)})")
        for j in (0, 2): a(f"v_pk_add_f32 v[{32+4*i+j}:{33+4*i+j}], v[{32+4*i+j}:{33+4*i+j}], v[{64+4*i+j}:{65+4*i+j}]")
        for j in (0, 2): a(f"v_pk_add_f32 v[{4*i+j}:{4*i+j+1}], v[{4*i+j}:{4*i+j+1}], v[{96+4*i+j}:{97+4*i+j}]")
        for j in (0, 2): a(f"v_pk_add_f32 v[{4*i+j}:{4*i+j+1}], v[{4*i+j}:{4*i+j+1}], v[{32+4*i+j}:{33+4*i+j}]")
        for j in range(4): a(f"v_fma_f32 v{4*i+j}, v{4*i+j}, v{vRs2 + (i>>2)}, v{XF+4*i+j}")
        a(f"v_cvt_pk_bf16_f32 v{X+2*i}, v{4*i}, v{4*i+1}")
        a(f"v_cvt_pk_bf16_f32 v{X+2*i+1}, v{4*i+2}, v{4*i+3}")
        a(f"buffer_store_dwordx2 v[{X+2*i}:{X+2*i+1}], v{vX}, {R(sOut)}, {'0' if i < 4 else f's{sPf}'} offen offset:{(i&3)*32}")
    stp(a, "outst")
    if DBGST:
        n = len(STAMPS) + 1
        a("s_waitcnt vmcnt(0)")
        stamp(a, n - 1)
        a(f"s_cmp_lg_u32 s2, {DBGST - 1}")
        a("s_cbranch_scc1 L_end")
        a(f"s_cmp_lg_u32 s{sWave}, 0")
        a("s_cbranch_scc1 L_end")
        a("s_waitcnt lgkmcnt(0)")
        srd(a, 88, pDbg, 0, 256)
        for i in range(n):
            a(f"s_sub_u32 s92, s{60+2*i}, s60")
            a(f"v_mov_b32 v1, s92")
            a(f"buffer_store_dword v1, off, s[88:91], 0 offset:{4*i}")
    else:
        stamp_flush(a, 1, len(STAMPS) + 1, 0)
    a("L_end:")
    a("s_endpgm")
    a("L_at_slow:")
    a(f"s_mov_b32 s{sKV+2}, {SZ_KV}")
    for x in range(2): a(f"v_mov_b32 v{NM[x]}, 0xff800000")
    for i in range(40): a(f"v_mov_b32 v{O[0]+i}, 0")
    a(f"s_lshl_b32 s{sSo}, s{sHead}, 18")
    a(f"s_mov_b32 s{sCntA}, 0")
    a("L_at_sloop:")
    k = Kf[0]; v = Vf[0]
    a(f"buffer_load_dwordx4 v[{k}:{k+3}], v{vL16}, {R(sKV)}, s{sSo} offen {SC}")
    a(f"buffer_load_dwordx4 v[{k+4}:{k+7}], v{vL16}, {R(sKV)}, s{sSo} offen offset:1024 {SC}")
    a(f"buffer_load_dwordx4 v[{v}:{v+3}], v{vL16}, {R(sKV)}, s{sSo} offen offset:2048 {SC}")
    a(f"buffer_load_dwordx4 v[{v+4}:{v+7}], v{vL16}, {R(sKV)}, s{sSo} offen offset:3072 {SC}")
    a("s_waitcnt vmcnt(0)")
    for x in range(2):
        M = NM[x]; AL = NM[x] + 1; MN = NM[x] + 2; s = S[x]
        a.extend(qk(x, 0, "0"))
        a("s_nop 15")
        a(f"v_max3_f32 v{U}, v{s}, v{s+1}, v{s+2}")
        for i in range(3, 15, 2): a(f"v_max3_f32 v{U}, v{U}, v{s+i}, v{s+i+1}")
        a(f"v_max_f32 v{U}, v{U}, v{s+15}")
        a(f"v_mov_b32 v{U+1}, v{U}")
        a("s_nop 1")
        a(f"v_permlane32_swap_b32 v{U}, v{U+1}")
        a(f"v_max3_f32 v{MN}, v{U}, v{U+1}, v{M}")
        a(f"v_sub_f32 v{AL}, v{M}, v{MN}")
        a(f"v_exp_f32 v{AL}, v{AL}")
        a(f"v_mov_b32 v{M}, v{MN}")
        for i in range(16): a(f"v_sub_f32 v{s+i}, v{s+i}, v{MN}")
        for i in range(16): a(f"v_exp_f32 v{D[x]+i}, v{s+i}")
        for i in range(16): a(f"v_mul_f32 v{O[x]+i}, v{O[x]+i}, v{AL}")
        a(f"v_mul_f32 v{Lr[x]}, v{Lr[x]}, v{AL}")
        a("s_nop 1")
        a(LS(x, 0)); a(LS(x, 1))
        a(PV(x, 0, 0)); a(PV(x, 0, 1))
        a("s_nop 15")
    a(f"s_add_u32 s{sSo}, s{sSo}, 4096")
    a(f"s_add_u32 s{sCntA}, s{sCntA}, 1")
    a(f"s_cmp_lt_u32 s{sCntA}, 64")
    a("s_cbranch_scc1 L_at_sloop")
    a("s_branch L_at_fin")
    a.extend(ool)
    a(".p2align 4")
    a("L_code_end:")
    return a, descriptor(name, 512, 256, 102)

if __name__ == "__main__":
    path = sys.argv[1] if len(sys.argv) > 1 else "cdna_kernels/" + NAME + ".s"
    a, d = gen_main()
    ref = open(os.path.join(os.path.dirname(os.path.abspath(__file__)), "..", "cdna_kernels", NAME + ".s.ref")).read()
    head = [l for l in ref.split("\n") if l.startswith(";") and "@launch" not in l and "Override" not in l and "grid=ceil" not in l]
    out = "\n".join(head) + "\n; @launch grid=(256,1,1) block=(256,1,1) lds=163840\n"
    out += '.amdgcn_target "amdgcn-amd-amdhsa--gfx950"\n.text\n' + a.text() + '.section .rodata,"a"\n.p2align 6\n' + d
    open(path, "w").write(out)
    probs = a.check("main")
    for p in probs: print("HAZARD", p)
    print("written", path, "hazards:", len(probs))
```

```python
import sys, os
sys.path.insert(0, os.path.dirname(os.path.abspath(__file__)))
from asmdsl import Asm, weave, sched
from gen import (NAME, KA_X, KA_WQKV, KA_WO, KA_W1, KA_W2, KA_OUT, KA_DBG, KA_WS, MB, f2u, srd, header, descriptor,
                 stamp, stamp_flush, STAMP, xreduce, bf16round, QSCALE)

def env(k, d): return type(d)(os.environ.get(k, d))
WS_Q, WS_KV, WS_A2 = 4 * MB, 8 * MB, 16 * MB
SZ_KV = 262144
WS_FL = 0
FQ, FH, FO, F0 = 0, 2048, 4096, 8192
WS_STAT = 16384
WS_CS = 65536
WS_END = 35 * MB
LDS_W1 = 98304
LDS_SCR = 90112
NC = env("NC", 5); ND = env("ND", 4); SPP = env("SPP", 2); PUBAT = env("PUBAT", 11); POLLAT = env("POLLAT", 5)
L2T = env("L2T", 0); TPF = env("TPF", 0); PNT = env("PNT", ""); CPF = env("CPF", 1); QPLAIN = env("QPLAIN", 0); WNT = env("WNT", ""); PFG1 = env("PFG1", 1); DMAF = env("DMAF", 0.6); RDF = env("RDF", 0.75); BUD = env("BUD", 4)
POLLSTEP = env("POLLSTEP", 2); PUBSTEP = env("PUBSTEP", 0); DBGST = env("DBGST", 0); JLD = env("JLD", 1); JCHK = env("JCHK", 2); POLLW = env("POLLW", 8); CHK = env("CHK", 25); HST = env("HST", 0); EPOLL = env("EPOLL", 31); ELEAD = env("ELEAD", 10)
SC = "sc1"; ASC = env("ASC", "sc1"); G2MAP = env("G2MAP", 0)
STAMPS = env("STAMPS", "start,g1loop,g1end,e4,atentry,atloop,pureend,fhok,atend,fopoll,fook,g2end,outst").split(",")
def stp(a, name):
    if name in STAMPS: stamp(a, STAMPS.index(name))

def gen_main():
    a = Asm()
    name = NAME + "_kernel"
    header(a, name)
    sWS, sW, sKV, sX, sOut = 8, 12, 16, 20, 24
    pW1, pW2, pWO, pX, pOut, pDbg = 28, 30, 32, 34, 36, 38
    sWave, sXcd, sSlot = 40, 41, 42
    sKA, sKW, sM0A, sM0W, sCnt, sWr, sWc, sRb, sCt = 43, 44, 45, 46, 47, 48, 49, 50, 51
    t0, t1, t2, t3, t4, t5 = 52, 53, 54, 55, 56, 57
    sPf = 58; sN = 6; sT = [3, 47, 51]
    sSo, sM0k, sCntA, sRing, sMb, sQO, sHead, sPub = 94, 95, 96, 97, 98, 99, 100, 101
    sAw, sArd, sCs, sTile = 96, 97, 98, 101
    sM0g, sRb2, sCb, sH1, sH2 = 45, 46, 48, 49, 50
    WSR = f"s[{sWS}:{sWS+3}]"
    def R(s): return f"s[{s}:{s+3}]"
    vAd, vWd, vAr, vArB, vWe1, vWo1, vWs1 = 224, 228, 232, 234, 235, 236, 237
    T = 238
    L, vL16, vDma, vFa, vFl = 250, 251, 252, 253, 254
    ST = 224; vO = 240
    Q = [0, 8]; S = [16, 32]; NM = [48, 64]; O = [80, 96]; Lr = [112, 116]; D = [120, 136]
    Kf = [152, 160]; Vf = [168, 176]; ONE = 184; WF = [188, 204]
    vCur, IDX, vW, vWe, vWo, vFa2, vX = 220, 221, 224, 228, 229, 230, 231
    vA = [222, 223, 246, 247]
    U = 232; vSig = 244; vRs2 = 244
    lab = [0]
    def flagld(areg, srdr=WSR):
        return f"buffer_load_dwordx2 v[{vFl}:{vFl+1}], {areg}, {srdr}, 0 {'offen' if areg != 'off' else ''} sc1"
    def poll(areg, first_done, srdr=WSR, val=f"s[{sN}:{sN+1}]", cmp="ne", mask=None):
        n = lab[0]; lab[0] += 1
        a(f"s_mov_b32 s{t5}, 0")
        if first_done: a(f"s_branch L_pc{n}")
        a(f"L_pl{n}:")
        a(flagld(areg, srdr))
        a("s_waitcnt vmcnt(0)")
        a(f"L_pc{n}:")
        a(f"v_cmp_{cmp}_u64 vcc, {val}, v[{vFl}:{vFl+1}]")
        a(f"s_add_u32 s{t5}, s{t5}, 1")
        if mask:
            a(f"s_and_b64 vcc, vcc, {mask}")
            a(f"s_cbranch_scc0 L_pd{n}")
        else:
            a("s_nop 0")
            a(f"s_cbranch_vccz L_pd{n}")
        a("s_sleep 1")
        a(f"s_cmp_lt_u32 s{t5}, 0x40000")
        a(f"s_cbranch_scc1 L_pl{n}")
        a(f"L_pd{n}:")
    def publish(soff_reg, tmp):
        n = lab[0]; lab[0] += 1
        a(f"s_cmp_lg_u32 s{sWave}, 0")
        a(f"s_cbranch_scc1 L_pb{n}")
        a(f"v_mov_b32 v{tmp}, s{sN}")
        a(f"v_mov_b32 v{tmp+1}, s{sN+1}")
        a(f"buffer_store_dwordx2 v[{tmp}:{tmp+1}], off, {WSR}, s{soff_reg} sc1")
        a(f"L_pb{n}:")

    a("s_cmp_ge_u32 s2, 256")
    a("s_cbranch_scc1 L_end")
    stp(a, "start")
    a(f"s_load_dwordx2 s[{pX}:{pX+1}], s[0:1], {KA_X}")
    a(f"s_load_dwordx2 s[6:7], s[0:1], {KA_WQKV}")
    a(f"s_load_dwordx4 s[{pW1}:{pW1+3}], s[0:1], {KA_W1}")
    a(f"s_load_dwordx2 s[4:5], s[0:1], {KA_WS}")
    a(f"s_load_dwordx2 s[{pWO}:{pWO+1}], s[0:1], {KA_WO}")
    a(f"s_load_dwordx4 s[{pOut}:{pOut+3}], s[0:1], {KA_OUT}")
    a("s_memrealtime s[92:93]")
    a(f"v_lshrrev_b32 v{T}, 6, v0")
    a(f"v_and_b32 v{L}, 63, v0")
    a(f"v_readfirstlane_b32 s{sWave}, v{T}")
    a(f"v_lshlrev_b32 v{vL16}, 4, v{L}")
    a(f"s_and_b32 s{sXcd}, s2, 7")
    if STAMP: a(f"s_mov_b32 s59, s{sWave}")
    a(f"s_lshr_b32 s{sSlot}, s2, 3")
    a(f"s_and_b32 s{sRb}, s{sSlot}, 7")
    a(f"s_lshr_b32 s{sCt}, s{sSlot}, 3")
    a(f"s_lshr_b32 s{sWr}, s{sWave}, 1")
    a(f"s_and_b32 s{sWc}, s{sWave}, 1")
    a(f"v_bfe_u32 v3, v{L}, 2, 1")
    a(f"v_lshl_add_u32 v3, v{T}, 1, v3")
    a(f"s_lshl_b32 s{t0}, s2, 3")
    a(f"v_add_u32 v3, s{t0}, v3")
    a(f"v_and_b32 v4, 3, v{L}")
    a(f"v_lshrrev_b32 v5, 3, v{L}")
    a("v_lshlrev_b32 v6, 11, v3")
    a("v_lshl_add_u32 v6, v5, 6, v6")
    a("v_lshl_add_u32 v6, v4, 4, v6")
    a(f"v_lshrrev_b32 v{T+1}, 4, v{L}")
    a(f"v_and_b32 v{T+2}, 7, v{L}")
    a(f"v_xor_b32 v{T+2}, v{T+2}, v{T+1}")
    a(f"v_lshlrev_b32 v{T+2}, 4, v{T+2}")
    a(f"v_lshl_add_u32 v{T+2}, v5, 11, v{T+2}")
    a(f"s_lshl_b32 s{t0}, s{sRb}, 19")
    a(f"s_lshl_b32 s{t1}, s{sWave}, 17")
    a(f"s_add_u32 s{t0}, s{t0}, s{t1}")
    a(f"v_add_u32 v{vAd}, s{t0}, v{T+2}")
    a(f"v_xor_b32 v{vAd+1}, 64, v{vAd}")
    a(f"v_add_u32 v{vAd+3}, {3*15360}, v{vAd+1}")
    a(f"v_add_u32 v{vAd+1}, 15360, v{vAd+1}")
    a(f"v_add_u32 v{vAd+2}, {2*15360}, v{vAd}")
    a(f"s_lshl_b32 s{sM0A}, s{sWave}, 13")
    a(f"s_lshl_b32 s{sM0W}, s{sWave}, 12")
    a(f"s_add_u32 s{sM0W}, s{sM0W}, {LDS_W1}")
    a(f"s_lshl_b32 s{sKA}, s{sRb}, 8")
    ftp, gb, jj, qc = T + 3, T + 4, T + 5, 4
    a(f"v_lshrrev_b32 v{ftp}, 5, v{L}")
    a(f"v_bfe_u32 v{gb}, v{L}, 4, 1")
    a(f"v_bfe_u32 v{jj}, v{L}, 2, 2")
    a(f"s_lshl_b32 s{t0}, s{sWr}, 4")
    a(f"s_lshl_b32 s{t1}, s{sWc}, 2")
    a(f"s_add_u32 s{t0}, s{t0}, s{t1}")
    a(f"v_lshl_add_u32 v{T+6}, v{gb}, 3, v{jj}")
    a(f"v_add_u32 v{T+6}, s{t0}, v{T+6}")
    a(f"v_lshlrev_b32 v{T+7}, 1, v{gb}")
    a(f"v_xor_b32 v{T+7}, v{T+7}, v{qc}")
    a(f"v_lshlrev_b32 v{T+7}, 4, v{T+7}")
    a(f"v_lshl_add_u32 v{T+7}, v{ftp}, 6, v{T+7}")
    a(f"v_xor_b32 v{T+8}, v{gb}, v{qc}")
    a(f"v_lshlrev_b32 v{T+8}, 4, v{T+8}")
    a("s_waitcnt lgkmcnt(0)")
    stp(a, "p1")
    srd(a, sX, pX, 0, 4 * MB)
    for i in range(4):
        a(f"buffer_load_dwordx4 v[{16+4*i}:{19+4*i}], v6, {R(sX)}, 0 offen offset:{i*512}")
    srd(a, 88, pDbg, 248, 8)
    a(f"s_or_b32 s{t0}, s2, s{sWave}")
    a("s_cbranch_scc1 L_nonon")
    a("s_or_b32 s92, s92, 1")
    a("v_mov_b32 v8, s92")
    a("v_mov_b32 v9, s93")
    a("buffer_store_dwordx2 v[8:9], off, s[88:91], 0 sc1")
    a("L_nonon:")
    a(f"s_cmp_lt_u32 s{sCt}, 2")
    a("s_cbranch_scc0 L_g1_qkv")

    def code_addr(r):
        n = lab[0]; lab[0] += 1
        a(f"s_getpc_b64 s[{t0}:{t1}]")
        a(f"L_pc_{n}:")
        a(f"s_sub_u32 s{t0}, s{t0}, L_pc_{n}-{name}")
        a(f"s_subb_u32 s{t1}, s{t1}, 0")
        a(f"s_lshl_b32 s{t2}, s{sSlot}, 2")
        a(f"s_add_u32 s{t2}, s{t2}, s{sWave}")
        a(f"s_and_b32 s{t2}, s{t2}, 63")
        a(f"s_lshl_b32 s{t2}, s{t2}, 10")
        a(f"v_add_u32 v{r}, s{t2}, v{vL16}")
        a(f"v_min_u32 v{r}, L_code_end-{name}-16, v{r}")
        a(f"v_mov_b32 v{r+1}, s{t1}")
        a(f"v_add_co_u32 v{r}, vcc, s{t0}, v{r}")
        a("s_nop 1")
        a(f"v_addc_co_u32 v{r+1}, vcc, 0, v{r+1}, vcc")
    def code_pf(r):
        code_addr(r)
        a(f"global_load_dwordx4 a[120:123], v[{r}:{r+1}], off")
    def kvdma(q):
        return f"buffer_load_dwordx4 v{vDma}, {R(sKV)}, s{sSo} offen offset:{(q&3)*1024} {SC} lds"
    so_wrap = f"s_and_b32 s{sSo}, s{sSo}, {SZ_KV - 1}"
    def kv_groups(h0, h1):
        g = []
        for c in range(h0, h1):
            for q in range(4):
                pre = [f"s_add_u32 m0, s{sM0k}, {c*16384}", "s_nop 0"] if q == 0 else []
                post = [f"s_add_u32 s{sSo}, s{sSo}, 16384"] if (q == 3) else []
                if q == 3 and c & 1: post.append(so_wrap)
                g.append(pre + [kvdma(q)] + post)
        return g
    def at_load_groups():
        g = kv_groups(0, 2)
        g[4:4] = [[f"buffer_load_dwordx4 v[{Q[x]+4*h}:{Q[x]+4*h+3}], v{vL16}, {WSR}, s{sQO} offen offset:{x*2048+h*1024} {SC}"]
                  for x in range(2) for h in range(2)]
        return g
    def at_init():
        a(f"v_mov_b32 v{vCur}, v{vL16}")
        for x in range(2): a(f"v_mfma_f32_32x32x16_bf16 v[{O[x]}:{O[x]+15}], a[128:131], a[128:131], 0")
        a(f"v_and_b32 v{U}, 7, v{L}")
        a(f"v_cmp_eq_u32 vcc, 0, v{U}")
        a(f"v_cmp_eq_u32 s[88:89], 4, v{U}")
        a(f"v_mov_b32 v{U+2}, 0x3f803f80")
        a(f"v_mov_b32 v{IDX}, 0xdddddddd")
        a(f"v_cndmask_b32 v{ONE}, 0, v{U+2}, vcc")
        a(f"v_cndmask_b32 v{ONE+2}, 0, v{U+2}, s[88:89]")
        a(f"v_mov_b32 v{ONE+1}, v{ONE}")
        a(f"v_mov_b32 v{ONE+3}, v{ONE+2}")
        a(f"s_add_u32 s{sMb}, s{sM0k}, 65536")
        a(f"s_mov_b32 s{sRing}, 0")
        for i in range(0, 8, 2): a(f"v_mov_b64 v[{Lr[0]+i}:{Lr[0]+i+1}], 0")
        for i in range(0, 8, 2): a(f"v_mov_b64 v[{D[1]+8+i}:{D[1]+9+i}], 0")
        for i in range(0, 4, 2): a(f"v_mov_b64 v[{Vf[1]+4+i}:{Vf[1]+5+i}], 0")
        a(f"s_lshr_b32 s{t0}, s{sXcd}, 1")
        a(f"s_lshl_b32 s{t0}, s{t0}, 2")
        a(f"s_and_b32 s{t1}, s{sSlot}, 3")
        a(f"s_add_u32 s{sRb2}, s{t0}, s{t1}")
        if G2MAP == 1:
            a(f"s_lshl_b32 s{t0}, s{sXcd}, 1")
            a(f"s_and_b32 s{t1}, s{sSlot}, 1")
            a(f"s_add_u32 s{sRb2}, s{t0}, s{t1}")
        if G2MAP == 2:
            a(f"s_lshr_b32 s{t0}, s{sXcd}, 2")
            a(f"s_lshl_b32 s{t0}, s{t0}, 3")
            a(f"s_and_b32 s{t1}, s{sSlot}, 7")
            a(f"s_add_u32 s{sRb2}, s{t0}, s{t1}")
        a(f"s_lshr_b32 s{t0}, s{sRb2}, 1")
        a(f"s_lshl_b32 s{t0}, s{t0}, 7")
        a(f"s_add_u32 s{t0}, s{t0}, {WS_FL + FH}")
        a(f"v_and_b32 v{U}, 15, v{L}")
        a(f"v_lshl_add_u32 v{vFa2}, v{U}, 3, s{t0}")
        srd(a, sW, pW2, 0, 3584 * 2048)
    def g2_setup():
        a(f"s_and_b32 s{t0}, s{sXcd}, 1")
        a(f"s_lshl_b32 s{t0}, s{t0}, 3")
        a(f"s_lshr_b32 s{t1}, s{sSlot}, 2")
        a(f"s_add_u32 s{sCb}, s{t0}, s{t1}")
        if G2MAP == 1: a(f"s_lshr_b32 s{sCb}, s{sSlot}, 1")
        if G2MAP == 2:
            a(f"s_and_b32 s{t0}, s{sXcd}, 3")
            a(f"s_lshl_b32 s{t0}, s{t0}, 2")
            a(f"s_lshr_b32 s{t1}, s{sSlot}, 3")
            a(f"s_add_u32 s{sCb}, s{t0}, s{t1}")
        a(f"s_lshl_b32 s{t0}, s{sRb2}, 13")
        for pi in range(4):
            a(f"s_add_u32 s{t1}, s{sWave}, {pi + 1}")
            a(f"s_and_b32 s{t1}, s{t1}, 3")
            a(f"s_lshl_b32 s{t1}, s{t1}, 11")
            a(f"s_add_u32 s{t1}, s{t1}, s{t0}")
            a(f"v_add_u32 v{vA[pi]}, s{t1}, v{vL16}")
        a(f"v_lshrrev_b32 v{U}, 5, v{L}")
        a(f"v_bfe_u32 v{U+1}, v{L}, 4, 1")
        a(f"v_bfe_u32 v{U+2}, v{L}, 2, 2")
        a(f"v_and_b32 v{U+3}, 3, v{L}")
        a(f"v_lshl_add_u32 v{vW}, v{U+1}, 2, v{U+2}")
        a(f"v_lshlrev_b32 v{vW}, 11, v{vW}")
        a(f"v_lshlrev_b32 v{vW+1}, 1, v{U+1}")
        a(f"v_xor_b32 v{vW+1}, v{vW+1}, v{U+3}")
        a(f"v_lshl_add_u32 v{vW}, v{vW+1}, 4, v{vW}")
        a(f"v_lshl_add_u32 v{vW}, v{U}, 6, v{vW}")
        a(f"s_lshl_b32 s{t0}, s{sCb}, 7")
        a(f"v_add_u32 v{vW}, s{t0}, v{vW}")
        for pc in range(1, 4): a(f"v_add_u32 v{vW+pc}, {pc*(16384-1024)}, v{vW}")
        a(f"s_lshl_b32 s{sM0g}, s{sWave}, 14")
        a(f"s_add_u32 s{sM0g}, s{sM0g}, {LDS_W1}")
        a(f"v_lshl_add_u32 v{vWe}, v{U}, 10, s{sM0g}")
        a(f"v_lshl_add_u32 v{vWe}, v{U+1}, 8, v{vWe}")
        a(f"v_lshl_add_u32 v{vWe}, v{U+2}, 6, v{vWe}")
        a(f"v_lshl_add_u32 v{vWe}, v{U+1}, 5, v{vWe}")
        a(f"v_lshl_add_u32 v{vWe}, v{U+3}, 3, v{vWe}")
        a(f"v_xor_b32 v{vWo}, 32, v{vWe}")
        a(f"s_and_b32 s{t0}, s{sSlot}, 7")
        a(f"s_lshl_b32 s{t0}, s{t0}, 2")
        a(f"s_add_u32 s{t0}, s{t0}, s{sWave}")
        a(f"s_lshl_b32 s{t0}, s{t0}, 8")
        a(f"s_add_u32 s{t0}, s{t0}, {WS_STAT + 16384}")
        a(f"v_and_b32 v{U+1}, 31, v{L}")
        a(f"v_lshlrev_b32 v{U+1}, 2, v{U+1}")
        for x in range(2):
            a(f"buffer_load_dword v{vSig+x}, v{U+1}, {WSR}, s{t0} offen offset:{x*128} sc1")
        if CPF: code_addr(248)
        a(f"s_lshl_b32 s{sKA}, s{sWave}, 17")
        a(f"s_add_u32 s{sKA}, s{sKA}, {WS_A2 + 32*131072}")
        a(f"s_lshl_b32 s{sKW}, s{sWave}, 16")
    def hstore(u, data):
        if u < 8:
            return [f"buffer_store_dwordx2 {data}, v{vO+2 + (u>>2)}, {R(sOut)}, s{sH2} offen offset:{(u&3)*1024} {SC}"]
        p, tt = divmod(u - 8, 8)
        return [f"buffer_store_dwordx4 {data}, v{vO + (tt>>2)}, {R(sOut)}, s{(sH1, t3, t4)[p]} offen offset:{(tt&3)*1024} {SC}"]
    direct = set(range(8, 8 + ND))
    parked = [u for u in range(32) if u not in direct]
    ool = []

    def g1(kind):
        ffn = kind == "ffn"
        NB = 7 if ffn else 6
        RS = 7168 if ffn else 6144
        nW = 4 if ffn else 3
        NF = 8 + NB
        def fr(buf, i): return buf * NF * 4 + i * 4
        def acc(tt, ft): return (ft * 8 + tt) * 4
        if ffn:
            srd(a, sW, pW1, -4096, 1024 * 7168 + 4096)
            a(f"s_mul_i32 s{t0}, s{sXcd}, 896")
            a(f"s_mul_i32 s{t1}, s{sCt}, 384")
            a(f"s_add_u32 s{t1}, s{t1}, s{t0}")
            a(f"s_lshl_b32 s{t2}, s{sCt}, 6")
            a(f"s_add_u32 s{t2}, s{t2}, s{t0}")
            a(f"s_add_u32 s{t2}, s{t2}, {768 + 4096 - 3072}")
            qstep = 128
        else:
            srd(a, sW, 6, -4096, 1024 * 6144 + 4096)
            a(f"s_lshl_b32 s{t1}, s{sXcd}, 1")
            a(f"s_add_u32 s{t1}, s{t1}, s{sCt}")
            a(f"s_sub_u32 s{t1}, s{t1}, 2")
            a(f"s_lshl_b32 s{t1}, s{t1}, 7")
            qstep = 2048
        a(f"s_mul_i32 s{sKW}, s{sRb}, {128 * RS}")
        a(f"v_mul_u32_u24 v{T+6}, {RS}, v{T+6}")
        a(f"v_add3_u32 v{T+7}, v{T+7}, v{T+6}, s{t1}")
        for q in range(3):
            a(f"v_add_u32 v{vWd+q}, {4096 + q*qstep - q*1024}, v{T+7}")
        if ffn:
            a(f"v_add3_u32 v{T+8}, v{T+8}, v{T+6}, s{t2}")
            a(f"v_lshlrev_b32 v{T+9}, 30, v{ftp}")
            a(f"v_or_b32 v{vWd+3}, v{T+8}, v{T+9}")
        srd(a, sKV, pX, 65536, 4 * MB - 65536)
        oplog = ["x"] * 4
        def wdma_list(stage, pol=WNT):
            l = [[f"s_add_u32 m0, s{sM0W}, {(stage & 3)*16384}"]]
            for q in range(nW):
                l.append([f"buffer_load_dwordx4 v{vWd+q}, {R(sW)}, s{sKW} offen offset:{q*1024} {pol} lds"])
            l.append([f"s_add_u32 s{sKW}, s{sKW}, {32*RS}"])
            if stage & 3 == 3: l.append([f"s_cmp_eq_u32 s{sKW}, {1024 * RS}", f"s_cselect_b32 s{sKW}, 0, s{sKW}"])
            oplog.extend([f"W{stage}"] * nW)
            return l
        def adma_half(Dn, h):
            if Dn < 3: l = [[f"s_add_u32 m0, s{sM0A}, {Dn*32768 + h*4096}"]]
            else: l = [[f"s_add_u32 m0, s{sAw}, {h*4096}"]]
            for p in range(4):
                l.append([f"buffer_load_dwordx4 v{vAd+p}, {R(sKV if h else sX)}, s{sKA} offen offset:{p*1024} lds"])
            if h:
                l.append([f"s_add_u32 s{sKA}, s{sKA}, 128"])
                if Dn & 1: l.append([f"s_and_b32 s{sKA}, s{sKA}, 2047"])
            oplog.extend([f"A{Dn}"] * 4)
            return l
        def need(*tags):
            idx = max(i for i, t in enumerate(oplog) if t in tags)
            return len(oplog) - 1 - idx
        def flat(l):
            out = []
            for x in l:
                out += x
                if x[-1].startswith("s_add_u32 m0"): out.append("s_nop 0")
            return out
        for i in range(4): a(f"v_mov_b32 v{12+i}, 0")
        z = [f"v_mfma_f32_32x32x16_bf16 a[{128+16*i}:{143+16*i}], v[12:15], v[12:15], 0" for i in range(8)]
        z += [f"v_mfma_f32_32x32x16_bf16 v[{16*i}:{16*i+15}], v[12:15], v[12:15], 0" for i in range(4, 2 * NB)]
        k = 0
        for x in flat(wdma_list(0, PNT) + adma_half(0, 0)):
            a(x)
            if x.startswith("buffer_") and k < len(z): a(z[k]); k += 1
        pre = Asm(); sv0 = a.lines; a.lines = pre.lines
        stp(a, "p2")
        srd(a, sWS, 4, 0, WS_END)
        a(f"v_and_b32 v{T+9}, 15, v{L}")
        a(f"v_lshrrev_b32 v{T+10}, 1, v{T+9}")
        a(f"v_xor_b32 v{T+10}, v{T+10}, v{T+1}")
        a(f"v_lshlrev_b32 v{T+10}, 4, v{T+10}")
        a(f"v_lshl_add_u32 v{T+10}, v{T+9}, 7, v{T+10}")
        a(f"s_lshl_b32 s{t0}, s{sWr}, 14")
        a(f"v_add_u32 v{vArB}, s{t0}, v{T+10}")
        a(f"v_mov_b32 v{vAr}, v{vArB}")
        a(f"v_xor_b32 v{vAr+1}, 64, v{vArB}")
        a(f"s_mov_b32 s{sArd}, 0")
        a(f"v_lshlrev_b32 v{T+10}, 13, v{ftp}")
        a(f"v_lshl_add_u32 v{T+10}, v{gb}, 8, v{T+10}")
        a(f"v_lshl_add_u32 v{T+10}, v{jj}, 6, v{T+10}")
        a(f"v_add_u32 v{T+10}, {LDS_W1}, v{T+10}")
        a(f"v_lshl_add_u32 v{T+11}, v{gb}, 5, v{T+10}")
        a(f"v_lshl_add_u32 v{T+11}, v{qc}, 3, v{T+11}")
        a(f"s_mul_i32 s{t0}, s{sWc}, {1536 if ffn else 512}")
        a(f"v_add_u32 v{vWe1}, s{t0}, v{T+11}")
        a(f"v_xor_b32 v{vWo1}, 32, v{vWe1}")
        if ffn:
            a(f"v_and_b32 v{T+11}, 1, v{qc}")
            a(f"v_lshlrev_b32 v{T+11}, 1, v{T+11}")
            a(f"v_add_u32 v{T+11}, s{sWc}, v{T+11}")
            a(f"v_xor_b32 v{T+11}, v{T+11}, v{gb}")
            a(f"v_lshl_add_u32 v{T+11}, v{T+11}, 4, v{T+10}")
            a(f"v_lshrrev_b32 v{T+10}, 1, v{qc}")
            a(f"v_lshl_add_u32 v{vWs1}, v{T+10}, 3, v{T+11}")
        a(f"v_mov_b32 v{T+10}, 0x3f803f80")
        for i in range(4): a(f"v_accvgpr_write_b32 a{124+i}, v{T+10}")
        a(f"s_lshl_b32 s{sTile}, s{sXcd}, 2")
        a(f"s_add_u32 s{sTile}, s{sTile}, s{sCt}")
        a(f"s_and_b32 s{t0}, s{sCt}, 1")
        a(f"s_lshl_b32 s{t0}, s{t0}, 1")
        a(f"s_lshl_b32 s{sHead}, s{sXcd}, 2")
        a(f"s_add_u32 s{sHead}, s{sHead}, s{t0}")
        if ffn: a(f"s_add_u32 s{sHead}, s{sHead}, 1")
        a(f"s_lshl_b32 s{t0}, s{sRb}, 2")
        a(f"s_add_u32 s{t0}, s{t0}, s{sWave}")
        a(f"s_lshl_b32 s{t0}, s{t0}, 12")
        a(f"s_lshl_b32 s{t1}, s{sHead}, 17")
        a(f"s_add_u32 s{sQO}, s{t0}, s{t1}")
        a(f"s_add_u32 s{sQO}, s{sQO}, {WS_Q}")
        a(f"s_lshl_b32 s{sSo}, s{sRb}, 15")
        a(f"s_lshl_b32 s{sM0k}, s{sWave}, 12")
        a(f"v_add_u32 v{vDma}, s{sM0k}, v{vL16}")
        a(f"s_lshr_b32 s{t0}, s{sHead}, 1")
        a(f"s_lshl_b32 s{t0}, s{t0}, 7")
        a(f"v_and_b32 v{vFa}, 7, v{L}")
        a(f"v_lshl_add_u32 v{vFa}, v{vFa}, 3, s{t0}")
        srd(a, sOut, pW2, 0, 3584 * 2048)
        a(f"s_lshl_b32 s{sPf}, s2, 2")
        a(f"s_add_u32 s{sPf}, s{sPf}, s{sWave}")
        a(f"s_lshl_b32 s{sPf}, s{sPf}, 10")
        a.lines = sv0
        for i, x in enumerate(pre.lines):
            a.lines.append(x)
            if i % 5 == 4 and k < len(z) and pre.lines[i + 1].op not in ("s_addc_u32", "s_subb_u32"): a(z[k]); k += 1
        for x in z[k:]: a(x)
        a.extend(flat(adma_half(0, 1)))
        F = 32
        a(f"s_mov_b32 s{t0}, 0xffff0000")
        stp(a, "p3")
        a(f"s_waitcnt vmcnt({need('x')})")
        stp(a, "p4")
        pre = Asm(); sv0 = a.lines; a.lines = pre.lines
        for j in range(16):
            a(f"v_lshlrev_b32 v{F+2*j}, 16, v{16+j}")
            a(f"v_and_b32 v{F+2*j+1}, s{t0}, v{16+j}")
        a(f"v_pk_add_f32 v[8:9], v[{F}:{F+1}], v[{F+2}:{F+3}]")
        a(f"v_pk_add_f32 v[10:11], v[{F+4}:{F+5}], v[{F+6}:{F+7}]")
        for j in range(4, 16):
            d = 8 + 2 * (j & 1)
            a(f"v_pk_add_f32 v[{d}:{d+1}], v[{d}:{d+1}], v[{F+2*j}:{F+2*j+1}]")
        a("v_pk_add_f32 v[8:9], v[8:9], v[10:11]")
        a("v_add_f32 v8, v8, v9")
        xreduce(a, 8, 9)
        a(f"v_mul_f32 v8, {f2u(-1.0/1024):#x}, v8")
        for j in range(16):
            a(f"v_pk_add_f32 v[{F+2*j}:{F+2*j+1}], v[{F+2*j}:{F+2*j+1}], v[8:9] op_sel_hi:[1,0]")
        a(f"v_pk_mul_f32 v[10:11], v[{F}:{F+1}], v[{F}:{F+1}]")
        a(f"v_pk_mul_f32 v[16:17], v[{F+2}:{F+3}], v[{F+2}:{F+3}]")
        for j in range(2, 16):
            d = (10, 16)[j & 1]
            a(f"v_pk_fma_f32 v[{d}:{d+1}], v[{F+2*j}:{F+2*j+1}], v[{F+2*j}:{F+2*j+1}], v[{d}:{d+1}]")
        a("v_pk_add_f32 v[10:11], v[10:11], v[16:17]")
        a("v_add_f32 v10, v10, v11")
        xreduce(a, 10, 11)
        a(f"v_mul_f32 v10, {f2u(1.0/1024):#x}, v10")
        bf16round(a, 8)
        bf16round(a, 10)
        a(f"v_add_f32 v10, {f2u(1e-5):#x}, v10")
        bf16round(a, 10)
        a("v_sqrt_f32 v10, v10")
        a(f"v_and_b32 v5, 0x3b, v{L}")
        a("v_min_u32 v5, 1, v5")
        a("v_lshlrev_b32 v5, 30, v5")
        bf16round(a, 10)
        a("v_lshl_add_u32 v5, v3, 2, v5")
        a("v_rcp_f32 v9, v10")
        a.lines = sv0
        more = wdma_list(1, PNT) + wdma_list(2, PNT) + adma_half(1, 0) + adma_half(1, 1)
        gap = len(pre.lines) // (len(more) + 1)
        for i, x in enumerate(pre.lines):
            a.lines.append(x)
            if i % gap == gap - 1 and more: a.extend(more.pop(0))
        assert not more
        a(f"s_mov_b32 s{t0}, {WS_STAT}")
        a(f"s_mov_b32 s{t1}, {WS_STAT + 8192}")
        a(f"s_mov_b32 s{t2}, {WS_STAT + 16384}")
        a(f"v_mov_b32 v{T+9}, v8"); a(f"v_mov_b32 v{T+10}, v9"); a(f"v_mov_b32 v{T+11}, v10"); a(f"v_mov_b32 v{T+8}, v5")
        a(f"buffer_store_dword v{T+9}, v{T+8}, {WSR}, s{t0} offen sc1")
        a(f"buffer_store_dword v{T+10}, v{T+8}, {WSR}, s{t1} offen sc1")
        a(f"buffer_store_dword v{T+11}, v{T+8}, {WSR}, s{t2} offen sc1")
        oplog.extend(["st"] * 3)
        for i in range(4): a(f"v_mfma_f32_32x32x16_bf16 v[{16*i}:{16*i+15}], a[128:131], a[128:131], 0")
        a(f"s_lshl_b32 s{t0}, s{sXcd}, 1")
        a(f"s_add_u32 s{t0}, s{t0}, s{sCt}")
        if ffn:
            a(f"s_lshl_b32 s{t0}, s{t0}, 3")
            a(f"s_lshl_b32 s{t1}, s{sRb}, 7")
            a(f"s_add_u32 s{t0}, s{t0}, s{t1}")
            a(f"s_add_u32 s92, s{t0}, {WS_FL + FH}")
        else:
            a(f"s_sub_u32 s{sCt}, s{t0}, 2")
            a(f"s_lshl_b32 s{t0}, s{sCt}, 7")
            a(f"s_lshl_b32 s{t1}, s{sRb}, 3")
            a(f"s_add_u32 s92, s{t0}, s{t1}")
        a(f"s_lshl_b32 s{t0}, s{sRb}, 8")
        a(f"s_lshl_b32 s93, s{sHead}, 3")
        a(f"s_add_u32 s93, s93, s{t0}")
        a(f"s_add_u32 s93, s93, {WS_FL + FO}")

        def read_list(step):
            buf = step & 1; so = (step & 3) * 16384
            rb = []
            for ft in range(NB):
                r = fr(buf, 8 + ft)
                if ffn and ft == 6: v = vWs1; off = 3072
                else:
                    v = vWo1 if ft & 1 else vWe1
                    off = (ft >> 1) * (512 if ffn else 1024)
                rb.append([f"ds_read_b64_tr_b16 a[{r+2*rd}:{r+2*rd+1}], v{v} offset:{so + rd*4096 + off}" for rd in range(2)])
            ra = [f"ds_read_b128 a[{fr(buf, tt)}:{fr(buf, tt)+3}], v{vAr + (step & 1)} offset:{tt*2048}" for tt in range(8)]
            l = rb[0] + ra
            for x in rb[1:]: l += x
            return l
        def mfmas(buf):
            l = []
            for ft in range(NB):
                for tt in (range(8) if ft % 2 == 0 else range(7, -1, -1)):
                    c = acc(tt, ft); w = fr(buf, 8 + ft); x = fr(buf, tt)
                    if (not ffn) and ft >= 4: w, x = x, w
                    l.append(f"v_mfma_f32_16x16x32_bf16 v[{c}:{c+3}], a[{w}:{w+3}], a[{x}:{x+3}], v[{c}:{c+3}]")
            return l
        ard_adv = [[f"s_add_u32 s{sAw}, s{sArd}, s{sM0A}"], [f"s_add_u32 s{sArd}, s{sArd}, 32768"], [f"s_cmp_eq_u32 s{sArd}, 98304", f"s_cselect_b32 s{sArd}, 0, s{sArd}"]]
        ard_set = [f"v_add_u32 v{vAr}, s{sArd}, v{vArB}", f"v_xor_b32 v{vAr+1}, 64, v{vAr}"]
        stp(a, "p5")
        a(f"s_waitcnt vmcnt({need('W0', 'A0')})")
        a("s_barrier")
        stp(a, "p6")
        a.extend(read_list(0))
        a(f"s_waitcnt vmcnt({need('W1')}) lgkmcnt(0)")
        a("s_barrier")
        def step(k4, dl, vm, reads=True, extra=(), cs=False, span=DMAF):
            m = mfmas(k4 & 1)
            if cs:
                m = [f"v_mfma_f32_16x16x32_bf16 a[{128+4*ft}:{131+4*ft}], a[{fr(k4 & 1, 8 + ft)}:{fr(k4 & 1, 8 + ft)+3}], a[124:127], a[{128+4*ft}:{131+4*ft}]"
                     for ft in range(NB)] + m
            n = len(m)
            sr = []
            if reads:
                rl = read_list(k4 + 1)
                sr = [((i * int(n * RDF)) // len(rl), x) for i, x in enumerate(rl)]
            sd = [((i * int(n * span)) // len(dl), x) for i, x in enumerate(dl)]
            if reads and k4 % 2 == 0:
                sd += [(n - 12 + 2 * i, x) for i, x in enumerate(ard_adv + ard_set)]
            a.extend(sched(m, [sd, sr, list(extra)], BUD if not extra and span == DMAF else 8))
            if vm is not None:
                a(f"s_waitcnt vmcnt({vm}) lgkmcnt(0)")
                a("s_barrier")
        def std_dl(k):
            return wdma_list(k + 4) + (adma_half((k + 5) // 2, 0) if k & 1 else adma_half((k + 4) // 2, 1))
        def std_need(k):
            return need(f"W{k+2}", f"A{(k+2)//2}")
        stp(a, "g1loop")
        dl = wdma_list(3, PNT) + adma_half(2, 0) + adma_half(2, 1); step(0, dl, std_need(0), cs=True, span=0.85)
        dl = wdma_list(4) + wdma_list(5) + adma_half(3, 0); step(1, dl, std_need(1), cs=True, span=0.85)
        dl = std_dl(2); step(2, dl, std_need(2), cs=True)
        e = [f"s_lshl_b32 s{t0}, s{sTile}, 13", f"s_lshl_b32 s{t1}, s{sRb}, 10", f"s_add_u32 s{t0}, s{t0}, s{t1}", f"s_mul_i32 s{t1}, s{sWc}, {NB*64}",
             f"s_add_u32 s{t0}, s{t0}, s{t1}", f"s_add_u32 s{t0}, s{t0}, {WS_CS}", f"v_and_b32 v{T}, 15, v{L}", f"v_or_b32 v{T}, s{sWr}, v{T}",
             f"v_lshlrev_b32 v{T}, 27, v{T}", f"v_and_b32 v{T+1}, 48, v{L}", f"v_or_b32 v{T}, v{T}, v{T+1}", f"s_mov_b32 s{sCnt}, 6"]
        e += [flagld("off", "s[88:91]")]
        e += [f"buffer_store_dwordx4 a[{128+4*ft}:{131+4*ft}], v{T}, {WSR}, s{t0} offen offset:{ft*64} sc1" for ft in range(NB)]
        dl = std_dl(3); step(3, dl, std_need(3), cs=True, extra=[(12 + 2 * i, x) for i, x in enumerate(e)])
        stp(a, "h6")
        a(".p2align 6")
        a(f"L_g1_{kind}_loop:")
        pf = [f"buffer_load_dwordx4 a[120:123], v{vL16}, {R(sOut)}, s{sPf} offen", f"s_add_u32 s{sPf}, s{sPf}, {MB}"]
        for k4 in range(4):
            dl = std_dl(4 + k4)
            if k4 in (0, 2) and PFG1:
                dl += [[pf[0]], [pf[1]]]; oplog.append("pf")
            if k4 == 3:
                dl = [[f"s_cmp_eq_u32 s{sCnt}, 1", f"s_cselect_b32 s{sX+2}, 0, s{sX+2}"]] + dl + [[f"s_sub_u32 s{sCnt}, s{sCnt}, 1"], [f"s_bitcmp1_b32 0x3d, s{sCnt}"]]
            step(k4, dl, std_need(4 + k4))
        a(f"s_cbranch_scc0 L_g1_{kind}_loop")
        a(f"s_cmp_lg_u32 s{sCnt}, 0")
        a(f"s_cbranch_scc1 L_hk5_{kind}")
        b = Asm(); sv = a.lines; a.lines = b.lines
        a(f"L_hk5_{kind}:")
        a(f"s_cmp_lg_u32 s{sCnt}, 5")
        a(f"s_cbranch_scc1 L_hk4_{kind}")
        stp(a, "h5")
        a(f"v_mfma_f32_32x32x16_bf16 a[128:143], a[160:163], a[160:163], 0")
        a(f"v_mfma_f32_32x32x16_bf16 a[144:159], a[160:163], a[160:163], 0")
        poll("off", True, "s[88:91]", "0", "eq")
        a(f"v_readfirstlane_b32 s{sN}, v{vFl}")
        a(f"v_readfirstlane_b32 s{sN+1}, v{vFl+1}")
        a(f"s_lshl_b32 s{t0}, s2, 5")
        a(f"s_add_u32 s{t0}, s{t0}, {WS_FL + F0}")
        publish(t0, T)
        srd(a, 88, pWO, 0, 1024 * 2048)
        a(f"s_and_b32 s{t0}, s{sPf}, {MB - 1}")
        a(f"s_add_u32 s{t1}, s{t0}, {MB}")
        a(f"buffer_load_dwordx4 a[120:123], v{vL16}, s[88:91], s{t0} offen")
        a(f"buffer_load_dwordx4 a[120:123], v{vL16}, s[88:91], s{t1} offen")
        if CPF: code_pf(T + 2)
        a(f"s_branch L_g1_{kind}_loop")
        a(f"L_hk4_{kind}:")
        a(f"s_cmp_lg_u32 s{sCnt}, 4")
        a(f"s_cbranch_scc1 L_hk3_{kind}")
        a(f"s_lshl_b32 s{t0}, s{sRb}, 5")
        a(f"v_add_u32 v{T}, s{t0}, v{L}")
        a(f"s_and_b32 s{t0}, s2, 0xc7")
        a(f"v_and_b32 v{T+1}, 7, v{L}")
        a(f"v_lshl_add_u32 v{T+1}, v{T+1}, 3, s{t0}")
        a(f"v_cmp_gt_u32 vcc, 32, v{L}")
        a("s_nop 1")
        a(f"v_cndmask_b32 v{T+1}, v{T+1}, v{T}, vcc")
        a(f"v_lshlrev_b32 v{T+1}, 5, v{T+1}")
        a(f"v_add_u32 v{T+1}, {WS_FL + F0}, v{T+1}")
        a(flagld(f"v{T+1}"))
        if TPF:
            a(f"v_lshlrev_b32 v{T}, 19, v{L}")
            a(f"s_mov_b32 s{t0}, {WS_Q}")
            a(f"buffer_load_dword v{T+2}, v{T}, {WSR}, s{t0} offen")
            srd(a, 88, pOut, 0, 4 * MB)
            a(f"v_lshlrev_b32 v{T}, 16, v{L}")
            a(f"buffer_load_dword v{T+2}, v{T}, s[88:91], 0 offen")
        a(f"s_branch L_g1_{kind}_loop")
        a(f"L_hk3_{kind}:")
        a(f"s_cmp_eq_u32 s{sCnt}, 3")
        a(f"s_cbranch_scc1 L_hk3b_{kind}")
        stp(a, "h2")
        if CPF:
            code_addr(vFl)
            a(f"global_load_dwordx4 a[120:123], v[{vFl}:{vFl+1}], off")
        a(f"s_branch L_g1_{kind}_loop")
        a(f"L_hk3b_{kind}:")
        stp(a, "h1")
        poll(f"v{T+1}", True)
        a(f"s_lshl_b32 s{t0}, s{sWave}, 8")
        a(f"v_lshl_add_u32 v{T}, v{L}, 2, s{t0}")
        a(f"s_lshl_b32 s{t0}, s{sTile}, 13")
        a(f"s_add_u32 s{t0}, s{t0}, {WS_CS}")
        a(f"s_add_u32 s{t1}, s{t0}, 4096")
        for i in range(8):
            a(f"buffer_load_dword v{T+2+i}, v{T}, {WSR}, s{t0 if i < 4 else t1} offen offset:{(i&3)*1024} sc1")
        a(f"s_lshl_b32 s{t0}, s{sRb}, 10")
        a(f"s_add_u32 s{t0}, s{t0}, {WS_STAT}")
        a(f"s_add_u32 s{t1}, s{t0}, 8192")
        a(f"buffer_load_dword v{T+10}, v{T}, {WSR}, s{t0} offen sc1")
        a(f"buffer_load_dword v{T+11}, v{T}, {WSR}, s{t1} offen sc1")
        stp(a, "h1e")
        a(f"s_branch L_g1_{kind}_loop")
        ool.extend([x.text for x in b.lines]); a.lines = sv
        stp(a, "tail")
        adds = [f"v_add_f32 v{T+2+2*i}, v{T+2+2*i}, v{T+3+2*i}" for i in range(4)] + \
               [f"v_add_f32 v{T+2}, v{T+2}, v{T+4}", f"v_add_f32 v{T+6}, v{T+6}, v{T+8}", f"v_add_f32 v{T+2}, v{T+2}, v{T+6}",
                f"v_add_u32 v{T}, {LDS_SCR}, v{T}"]
        step(0, [], nW + 4, extra=[(2 + 3 * i, x) for i, x in enumerate(adds)])
        step(1, [], 4, extra=[(40, f"ds_write_b32 v{T}, v{T+2}"), (42, f"ds_write_b32 v{T}, v{T+10} offset:1024"), (44, f"ds_write_b32 v{T}, v{T+11} offset:2048")])
        e = Asm(); sv = a.lines; a.lines = e.lines
        if ffn:
            a(f"s_lshl_b32 s{t0}, s{sRb}, 14")
            a(f"s_lshl_b32 s{t1}, s{sWr}, 13")
            a(f"s_add_u32 s{t0}, s{t0}, s{t1}")
            a(f"v_add_u32 v{vO}, s{t0}, v{vL16}")
            a(f"v_add_u32 v{vO+1}, 4096, v{vO}")
            a(f"s_lshl_b32 s{t1}, s{sWc}, 9")
            a(f"s_add_u32 s{t0}, s{t0}, s{t1}")
            a(f"v_lshrrev_b32 v{vO+2}, 5, v{L}")
            a(f"v_lshl_add_u32 v{vO+2}, v{vO+2}, 8, s{t0}")
            a(f"v_and_b32 v{vO+3}, 15, v{L}")
            a(f"v_lshl_add_u32 v{vO+2}, v{vO+3}, 4, v{vO+2}")
            a(f"v_bfe_u32 v{vO+3}, v{L}, 4, 1")
            a(f"v_lshl_add_u32 v{vO+2}, v{vO+3}, 3, v{vO+2}")
            a(f"v_add_u32 v{vO+3}, 4096, v{vO+2}")
            a(f"s_mul_i32 s{t0}, s{sXcd}, 14")
            a(f"s_mul_i32 s{t1}, s{sCt}, 6")
            a(f"s_mul_i32 s{t2}, s{sWc}, 3")
            a(f"s_add_u32 s{t1}, s{t1}, s{t2}")
            a(f"s_add_u32 s{t1}, s{t1}, s{t0}")
            a(f"s_add_u32 s{t1}, s{t1}, {32 + WS_A2 // 131072}")
            a(f"s_lshl_b32 s{t1}, s{t1}, 17")
            a(f"s_add_u32 s{t2}, s{t0}, s{sCt}")
            a(f"s_add_u32 s{t2}, s{t2}, {44 + WS_A2 // 131072}")
            a(f"s_lshl_b32 s{t2}, s{t2}, 17")
            a(f"s_add_u32 s{t3}, s{t1}, 131072")
            a(f"s_add_u32 s{t4}, s{t1}, 262144")
        else:
            a(f"s_lshl_b32 s{t0}, s{sRb}, 3")
            a(f"s_lshl_b32 s{t1}, s{sWr}, 2")
            a(f"s_add_u32 s{t0}, s{t0}, s{t1}")
            a(f"s_lshl_b32 s{t0}, s{t0}, 11")
            a(f"s_lshl_b32 s{t3}, s{sCt}, 1")
            a(f"s_add_u32 s{t3}, s{t3}, s{sWc}")
            a(f"s_lshl_b32 s{t3}, s{t3}, 17")
            a(f"s_add_u32 s{t1}, s{t3}, s{t0}")
            a(f"s_lshl_b32 s{t2}, s{t1}, 1")
            a(f"s_add_u32 s{t2}, s{t2}, {WS_KV}")
            a(f"s_add_u32 s{t1}, s{t1}, {WS_Q}")
            a(f"v_lshrrev_b32 v{vO+2}, 4, v{L}")
            a(f"v_lshlrev_b32 v{vO+2}, 9, v{vO+2}")
            a(f"v_and_b32 v{vO+3}, 15, v{L}")
            a(f"v_lshl_add_u32 v{vO}, v{vO+3}, 4, v{vO+2}")
            a(f"v_bfe_u32 v{vO+3}, v{L}, 2, 2")
            a(f"v_lshl_add_u32 v{vO+2}, v{vO+3}, 7, v{vO+2}")
            a(f"v_and_b32 v{vO+3}, 3, v{L}")
            a(f"v_lshl_add_u32 v{vO+1}, v{vO+3}, 4, v{vO+2}")
            a(f"s_mov_b32 s{t4}, {f2u(QSCALE):#x}")
        a(f"s_lshl_b32 s{t5}, s{sHead}, 18")
        a(f"s_add_u32 s{t5}, s{t5}, {WS_KV}")
        a(f"s_add_u32 s{sKV}, s4, s{t5}")
        a(f"s_addc_u32 s{sKV+1}, s5, 0")
        a(f"s_mov_b32 s{sKV+2}, {SZ_KV}")
        if ffn:
            a(f"s_lshl_b32 s90, 0x01010101, s{sRb}")
            a(f"s_mov_b32 s91, 0")
        a(f"s_mul_i32 s{t5}, s{sWc}, {NB*64}")
        a(f"s_add_u32 s{t5}, s{t5}, {LDS_SCR}")
        a(f"v_and_b32 v248, 48, v{L}")
        a(f"v_add_u32 v248, s{t5}, v248")
        a(f"s_lshl_b32 s{t0}, s{sWr}, 9")
        a(f"s_add_u32 s{t0}, s{t0}, {LDS_SCR + 1024}")
        a(f"v_and_b32 v249, 15, v{L}")
        a(f"v_lshl_add_u32 v249, v249, 2, s{t0}")
        if not ffn:
            a(f"v_and_b32 v222, 15, v{L}")
            a(f"v_lshl_add_u32 v222, v222, 2, s{t5}")
            a(f"v_and_b32 v223, 48, v{L}")
            a(f"v_add_u32 v223, s{t0}, v223")
        el = []
        for x in e.lines:
            if x.op in ("s_addc_u32", "s_subb_u32", "s_cselect_b32"): el[-1].append(x.text)
            else: el.append([x.text])
        a.lines = sv
        n = 8 * NB
        step(2, [], 0, extra=[(2 + (i * (n - 12)) // len(el), x) for i, x in enumerate(el)])
        rds = []
        for tt in range(8):
            rds.append(f"ds_read_b32 v{ST+2*tt}, v249 offset:{tt*64}")
            if not ffn: rds.append(f"ds_read_b32 v{ST+2*tt+1}, v249 offset:{1024 + tt*64}")
        if ffn:
            rds.append(f"ds_read_b128 v[244:247], v248 offset:{6*64}")
        else:
            for ft in range(4): rds.append(f"ds_read_b128 v[{192+4*ft}:{195+4*ft}], v248 offset:{ft*64}")
            for vt in range(2): rds.append(f"ds_read_b32 v{208+2*vt}, v222 offset:{(4+vt)*64}")
        step(3, [], None, reads=False, extra=[(2 + 2 * i, x) for i, x in enumerate(rds)])
        stp(a, "g1end")
        BC = "op_sel_hi:[1,0,1]"
        if ffn:
            a("s_nop 0")
            a(f"s_mov_b32 s{sH1}, s{t1}")
            a(f"s_mov_b32 s{sH2}, s{t2}")
            a(f"s_mov_b32 s{sPub}, s92")
            srd(a, sOut, 4, 0, WS_END)
            a("s_waitcnt lgkmcnt(0)")
            pend = []
            for u in range(8):
                c = acc(u, 6)
                for h in range(2):
                    a(f"v_pk_fma_f32 v[{c+2*h}:{c+2*h+1}], v[{244+2*h}:{245+2*h}], v[{ST+2*u}:{ST+2*u+1}], v[{c+2*h}:{c+2*h+1}] {BC}")
                a(f"v_cvt_pk_bf16_f32 v{c}, v{c}, v{c+1}")
                a(f"v_cvt_pk_bf16_f32 v{c+1}, v{c+2}, v{c+3}")
                a(f"v_pk_max_i16 v{c}, v{c}, 0")
                a(f"v_pk_max_i16 v{c+1}, v{c+1}, 0")
                if u in direct: pend.append(hstore(u, f"v[{c}:{c+1}]"))
                else:
                    for e_ in range(2): a(f"v_accvgpr_write_b32 a{4*parked.index(u)+e_}, v{c+e_}")
                if u == 1:
                    a(f"ds_read_b64 v[194:195], v248 offset:64")
                    a(f"ds_read_b64 v[198:199], v248 offset:72")
                if u == 3:
                    a(f"ds_read_b64 v[202:203], v248 offset:0")
                    a(f"ds_read_b64 v[206:207], v248 offset:8")
            for i, r in enumerate((210, 214, 218, 222)):
                a(f"ds_read_b64 v[{r}:{r+1}], v248 offset:{128 + (i>>1)*64 + (i&1)*8}")
            a(f"ds_read_b128 v[244:247], v248 offset:{4*64}")
            CSM = {0: (202, 206), 1: (194, 198), 2: (210, 214), 3: (218, 222), 4: (244, 246), 5: (194, 198)}
            groups = at_load_groups()
            polled = False; after = []
            def drip(k):
                for _ in range(k):
                    if groups:
                        a.extend(groups.pop(0)); after.append("ld")
                    elif pend:
                        a.extend(pend.pop(0)); after.append("st")
            for u in range(8, 32):
                p, tt = divmod(u - 8, 8)
                if u == 8: a("s_waitcnt lgkmcnt(5)")
                if u == 16:
                    a("s_waitcnt lgkmcnt(0)")
                    a(f"ds_read_b64 v[194:195], v248 offset:{5*64}")
                    a(f"ds_read_b64 v[198:199], v248 offset:{5*64+8}")
                if u == 24: a("s_waitcnt lgkmcnt(0)")
                if u == EPOLL - ELEAD: a(flagld(f"v{vFa}"))
                c0, c1 = acc(tt, 2 * p), acc(tt, 2 * p + 1)
                for c, cs in ((c0, CSM[2 * p]), (c1, CSM[2 * p + 1])):
                    for h in range(2):
                        a(f"v_pk_fma_f32 v[{c+2*h}:{c+2*h+1}], v[{cs[h]}:{cs[h]+1}], v[{ST+2*tt}:{ST+2*tt+1}], v[{c+2*h}:{c+2*h+1}] {BC}")
                a(f"v_cvt_pk_bf16_f32 v{c0}, v{c0}, v{c0+1}")
                a(f"v_cvt_pk_bf16_f32 v{c0+1}, v{c0+2}, v{c0+3}")
                a(f"v_cvt_pk_bf16_f32 v{c0+2}, v{c1}, v{c1+1}")
                a(f"v_cvt_pk_bf16_f32 v{c0+3}, v{c1+2}, v{c1+3}")
                for e_ in range(4): a(f"v_pk_max_i16 v{c1+e_}, v{c0+e_}, 0")
                if u in direct: pend.append(hstore(u, f"v[{c1}:{c1+3}]"))
                else:
                    for e_ in range(4): a(f"v_accvgpr_write_b32 a{4*parked.index(u)+e_}, v{c1+e_}")
                if u == EPOLL:
                    stp(a, "e1")
                    a(f"s_waitcnt vmcnt(0)")
                    stp(a, "e2")
                    poll(f"v{vFa}", True, mask="s[90:91]")
                    stp(a, "e4")
                    polled = True
                if polled: drip(4)
            drip(64)
            a("s_nop 1")
            at_init(); g2_setup(); after += ["x"] * 2
            idx = [i for i, z in enumerate(after) if z == "ld"][11]
            a(f"s_waitcnt vmcnt({len(after) - 1 - idx})")
            a("s_branch L_at_entry")
        else:
            QSC = SC
            a(f"s_mov_b32 s{sPub}, 0")
            a("s_waitcnt lgkmcnt(0)")
            a("s_nop 4")
            for b_ in range(4):
                for e_ in range(2):
                    a(f"ds_read_b128 v[{212+4*e_}:{215+4*e_}], v223 offset:{(2*b_+e_)*64}")
                a(f"ds_read_b128 v[244:247], v223 offset:{1024 + (2*b_)*64}")
                a(f"ds_read_b64 v[220:221], v223 offset:{1024 + (2*b_+1)*64}")
                a(f"ds_read_b64 v[242:243], v223 offset:{1024 + (2*b_+1)*64 + 8}")
                for X in (1, 0):
                    for h in range(2):
                        tt = 2 * b_ + h
                        st_ = f"v[{ST+2*tt}:{ST+2*tt+1}]"
                        if X == 0: a(f"v_mul_f32 v{ST+2*tt+1}, s{t4}, v{ST+2*tt+1}")
                        c0 = acc(tt, 2 * X)
                        for e_ in range(2):
                            c = acc(tt, 2 * X + e_); cs = 192 + 4 * (2 * X + e_)
                            for h2 in range(2):
                                a(f"v_pk_fma_f32 v[{c+2*h2}:{c+2*h2+1}], v[{cs+2*h2}:{cs+2*h2+1}], {st_}, v[{c+2*h2}:{c+2*h2+1}] {BC}")
                            for h2 in range(2):
                                a(f"v_pk_mul_f32 v[{c+2*h2}:{c+2*h2+1}], v[{c+2*h2}:{c+2*h2+1}], {st_} op_sel:[0,1]")
                        c1 = acc(tt, 2 * X + 1)
                        a(f"v_cvt_pk_bf16_f32 v{c0}, v{c0}, v{c0+1}")
                        a(f"v_cvt_pk_bf16_f32 v{c0+1}, v{c0+2}, v{c0+3}")
                        a(f"v_cvt_pk_bf16_f32 v{c0+2}, v{c1}, v{c1+1}")
                        a(f"v_cvt_pk_bf16_f32 v{c0+3}, v{c1+2}, v{c1+3}")
                        if X: a(f"buffer_store_dwordx4 v[{c0}:{c0+3}], v{vO+1}, {WSR}, s{t2} offen offset:{h*64} {QSC}")
                        else: a(f"buffer_store_dwordx4 v[{c0}:{c0+3}], v{vO}, {WSR}, s{t1} offen offset:{h*256} {QSC}")
                a("s_waitcnt lgkmcnt(0)")
                for vt in range(2):
                    c0 = acc(2 * b_, 4 + vt)
                    for e_ in range(2):
                        c = acc(2 * b_ + e_, 4 + vt)
                        rs = ((244, 246), (220, 242))[e_]
                        for h2 in range(2):
                            a(f"v_pk_fma_f32 v[{c+2*h2}:{c+2*h2+1}], v[{212+4*e_+2*h2}:{213+4*e_+2*h2}], v[{208+2*vt}:{209+2*vt}], v[{c+2*h2}:{c+2*h2+1}] {BC}")
                        for h2 in range(2):
                            a(f"v_pk_mul_f32 v[{c+2*h2}:{c+2*h2+1}], v[{c+2*h2}:{c+2*h2+1}], v[{rs[h2]}:{rs[h2]+1}]")
                    c1 = acc(2 * b_ + 1, 4 + vt)
                    a(f"v_cvt_pk_bf16_f32 v{c0}, v{c0}, v{c0+1}")
                    a(f"v_cvt_pk_bf16_f32 v{c0+1}, v{c0+2}, v{c0+3}")
                    a(f"v_cvt_pk_bf16_f32 v{c0+2}, v{c1}, v{c1+1}")
                    a(f"v_cvt_pk_bf16_f32 v{c0+3}, v{c1+2}, v{c1+3}")
                    a(f"buffer_store_dwordx4 v[{c0}:{c0+3}], v{vO}, {WSR}, s{t2} offen offset:{2048 + vt*256} {QSC}")
                a(f"s_add_u32 s{t1}, s{t1}, 2048")
                a(f"s_add_u32 s{t2}, s{t2}, 4096")
            stp(a, "e1")
            a("s_waitcnt vmcnt(0)")
            a("s_barrier")
            stp(a, "e2")
            publish(92, T)
            stp(a, "e4")
            for g_ in at_load_groups(): a.extend(g_)
            srd(a, sOut, 4, 0, 0)
            for r in (sH1, sH2, t3, t4): a(f"s_mov_b32 s{r}, 0")
            at_init(); g2_setup()
            a("s_waitcnt vmcnt(2)")
    g1("ffn")
    a("L_g1_qkv:")
    g1("qkv")

    a("L_at_entry:")
    stp(a, "atentry")
    a("s_barrier")
    def rdK(t, tl):
        b = Kf[t & 1]
        return [f"ds_read_b128 v[{b}:{b+3}], v{vCur} offset:{tl*4096}", f"ds_read_b128 v[{b+4}:{b+7}], v{vCur} offset:{tl*4096+1024}"]
    def rdV(t, tl):
        b = Vf[t & 1]
        return [f"ds_read_b128 v[{b}:{b+3}], v{vCur} offset:{tl*4096+2048}", f"ds_read_b128 v[{b+4}:{b+7}], v{vCur} offset:{tl*4096+3072}"]
    def qk(x, t, c0=None):
        s = S[x]; k = Kf[t & 1]; q = Q[x]
        c = f"v[{NM[x]}:{NM[x]+15}]" if c0 is None else c0
        return [f"v_mfma_f32_32x32x16_bf16 v[{s}:{s+15}], v[{k}:{k+3}], v[{q}:{q+3}], {c}",
                f"v_mfma_f32_32x32x16_bf16 v[{s}:{s+15}], v[{k+4}:{k+7}], v[{q+4}:{q+7}], v[{s}:{s+15}]"]
    def PV(x, t, h):
        v = Vf[t & 1]
        return f"v_smfmac_f32_32x32x32_bf16 v[{O[x]}:{O[x]+15}], v[{v+4*h}:{v+4*h+3}], v[{D[x]+8*h}:{D[x]+8*h+7}], v{IDX}"
    def LS(x, h):
        return f"v_smfmac_f32_16x16x64_bf16 v[{Lr[x]}:{Lr[x]+3}], v[{ONE}:{ONE+3}], v[{D[x]+8*h}:{D[x]+8*h+7}], v{IDX}"
    a.extend(rdK(0, 0))
    a.extend(rdV(0, 0))
    a("s_waitcnt lgkmcnt(0)")
    a.extend(qk(0, 0, "0"))
    a.extend(qk(1, 0, "0"))
    a("s_nop 7")
    a("s_nop 1")
    for x in range(2):
        s0 = S[x]
        a(f"v_max3_f32 v{U}, v{s0}, v{s0+1}, v{s0+2}")
        for i in range(3, 15, 2): a(f"v_max3_f32 v{U}, v{U}, v{s0+i}, v{s0+i+1}")
        a(f"v_max_f32 v{U}, v{U}, v{s0+15}")
        a(f"v_mov_b32 v{U+2}, v{U}")
        a("s_nop 1")
        a(f"v_permlane32_swap_b32 v{U}, v{U+2}")
        a(f"v_max_f32 v{U}, v{U}, v{U+2}")
        a(f"v_sub_f32 v{NM[x]}, 0, v{U}")
        a(f"v_sub_f32 v{NM[x]+1}, 0, v{U}")
        for i in range(2, 16, 2): a(f"v_mov_b64 v[{NM[x]+i}:{NM[x]+i+1}], v[{NM[x]}:{NM[x]+1}]")
        if x == 0:
            for i in range(0, 16, 2): a(f"v_pk_add_f32 v[{s0+i}:{s0+i+1}], v[{s0+i}:{s0+i+1}], v[{NM[x]}:{NM[x]+1}]")
    a("s_nop 1")
    stp(a, "atloop")

    def acc2(tt, ft): return 128 + (tt * 4 + ft) * 4
    def ab(buf, tt): return buf * 32 + tt * 4
    def gm(v, tt, ft):
        c = acc2(tt, ft); w = WF[v & 1] + ft * 4; x = ab(v, tt)
        return f"v_mfma_f32_16x16x32_bf16 a[{c}:{c+3}], v[{w}:{w+3}], a[{x}:{x+3}], a[{c}:{c+3}]"
    def aload(buf, tt):
        r = ab(buf, tt)
        return f"buffer_load_dwordx4 a[{r}:{r+3}], v{vA[tt>>1]}, {WSR}, s{sKA} offen offset:{(tt&1)*1024} {ASC}"
    def wdma(pc):
        return f"buffer_load_dwordx4 v{vW+pc}, {R(sW)}, s{sKW} offen offset:{pc*1024} lds"
    def wread(slot, buf, ft):
        r = WF[buf] + ft * 4
        return [f"ds_read_b64_tr_b16 v[{r+2*rd}:{r+2*rd+1}], v{vWo if ft&1 else vWe} offset:{slot*4096 + rd*2048 + (ft>>1)*512}" for rd in range(2)]
    W0 = "s_waitcnt lgkmcnt(0)"
    def phase(x, t, doqk=True, f=None):
        y = 1 - x
        f = f or {}
        E = lambda i: f"v_exp_f32 v{D[x]+i}, v{S[x]+i}"
        q = qk(y, t + x) if doqk else [None, None]
        g = lambda k: f.get(k, [])
        seq = [q[0]] + g(0) + [E(0), E(1), E(2), q[1]] + g(1) + [E(3), E(4), E(5), PV(y, t - 1 + x, 1)] + g(2) + [E(6), E(7), E(8),
               LS(y, 1)] + g(3) + [E(9), E(10), PV(x, t, 0)] + g(4) + [E(11), E(12), E(13), LS(x, 0)] + g(5) + [E(14), E(15)]
        a.extend([z for z in seq if z])
    ring_adv = [f"s_add_u32 s{sMb}, s{sRing}, s{sM0k}", f"s_add_u32 s{sRing}, s{sRing}, 32768", f"s_cmp_eq_u32 s{sRing}, 98304",
                f"s_cselect_b32 s{sRing}, 0, s{sRing}"]
    kv_sel = [f"s_cmp_gt_u32 s{sCntA}, 5", f"s_cselect_b32 s{sKV+2}, 0, {SZ_KV}"]
    hq = list(parked)
    kv0 = kv_groups(2, 6)
    def it_pure(c, j, lastpure):
        t = j + 1
        k = rdK(t + 1, j); v = rdV(t + 1, j)
        fa = {0: [k[0]], 1: [k[1]], 5: [W0]}
        fb = {0: [v[0]], 1: [v[1]], 5: [W0]}
        if j == 0:
            fa[2] = [f"s_mov_b32 m0, s{sMb}", so_wrap]
            if c > 5: fa[3] = [f"s_mov_b32 s{sKV+2}, 0"]
        if j == 4:
            fa[2] = [f"s_add_u32 m0, s{sMb}, 16384", f"s_add_u32 s{sSo}, s{sSo}, 16384"]
        fa[4] = [kvdma(j)]
        if j == 7:
            fa[2] = ring_adv[0:2]; fa[3] = ring_adv[2:4]
            fb[2] = [f"s_add_u32 s{sSo}, s{sSo}, 16384"]
        if c == 0:
            if j == 4: fa[2] = []
            if j == 7: fb[2] = []
            fa[4] = []
            if j == JLD: fa[4] = [flagld(f"v{vFa}")]
            if j > JCHK:
                for f in (fa, fb):
                    for sl in (3, 4):
                        if kv0: f[sl] = f.get(sl, []) + kv0.pop(0)
        for f in (fa, fb):
            for sl in (2, 3)[:SPP]:
                if hq and 8 * c + j >= HST and not any(" lds" in z for z in f.get(sl, [])):
                    u = hq.pop(0); r = 4 * parked.index(u)
                    f[sl] = f.get(sl, []) + hstore(u, f"a[{r}:{r+(1 if u < 8 else 3)}]")
        if lastpure and j == POLLAT:
            fb[4] = fb.get(4, []) + [flagld(f"v{vFa2}")]
        return fa, fb, t
    vK = [240, 241, 242, 243]; sStep, sMask = sT[0], sT[1]
    def kvdma2(q):
        return f"buffer_load_dwordx4 v{vK[q&3]}, {R(sKV)}, s{sSo} offen offset:{(q&3)*1024} {SC} lds"
    def kv_m0(j):
        return f"s_mov_b32 m0, s{sMb}" if j < 4 else f"s_add_u32 m0, s{sMb}, 16384"
    def trip_sa(j, x):
        l = []
        if j == 0 and x == 0: l += [f"s_and_b32 s{sSo}, s{sSo}, s{sMask}"]
        if j == 3 and x == 1: l += [f"s_add_u32 s{sSo}, s{sSo}, s{sStep}"]
        if j == 7 and x == 1: l += [f"s_add_u32 s{sSo}, s{sSo}, s{sStep}"] + ring_adv
        return l
    def kstep_adv():
        return [f"s_add_u32 s{sKA}, s{sKA}, {4*131072}", f"s_add_u32 s{sKW}, s{sKW}, {4*65536}"]
    def it_load(j):
        t = j + 1; v = j >> 1
        for x in range(2):
            ph = 2 * (j & 1) + x
            kv = rdK(t + 1, j) if x == 0 else rdV(t + 1, j)
            tr = wread(0, 0, ph) if v == 3 else []
            sa = trip_sa(j, x)
            wait = "s_waitcnt vmcnt(28) lgkmcnt(0)" if ph == 3 else W0
            f = {0: [kv[0], kv[1]], 1: sa[0:2] + tr, 2: [f"s_add_u32 m0, s{sM0g}, {v*4096}", aload(v, 2 * ph)], 3: sa[2:] + [wdma(ph)],
                 4: ([kv_m0(j)] if x == 0 else []), 5: [wait, aload(v, 2 * ph + 1)] + ([kvdma2(j)] if x == 0 else [])}
            if ph == 3: f[5] += kstep_adv()
            if j == 7 and x == 1:
                f[4] = [f"s_add_u32 s{sCntA}, s{sCntA}, 1"]
                f[5] += ["s_barrier", f"v_add_u32 v{vCur}, s{sRing}, v{vL16}"]
            phase(x, t, f=f)
    def it_comb(j):
        t = j + 1; v = j >> 1
        for x in range(2):
            y = 1 - x
            ph = 2 * (j & 1) + x
            E = lambda i: f"v_exp_f32 v{D[x]+i}, v{S[x]+i}"
            q = qk(y, t + x)
            kv = rdK(t + 1, j) if x == 0 else rdV(t + 1, j)
            tr = wread((v + 1) & 3, (v + 1) & 1, ph)
            Gm = [gm(v, 2 * ph, ft) for ft in range(4)] + [gm(v, 2 * ph + 1, ft) for ft in range(3, -1, -1)]
            sa = trip_sa(j, x) + [None] * 5
            wait = "s_waitcnt vmcnt(28) lgkmcnt(0)" if ph == 3 else W0
            last = (j == 7 and x == 1)
            seq = [Gm[0], kv[0], kv[1], q[0], sa[0], E(0), E(1), E(2), Gm[1], sa[1], E(3), q[1], sa[2], E(4), E(5), E(6), Gm[2], sa[3], E(7),
                   PV(y, t - 1 + x, 1), tr[0], E(8), E(9), LS(y, 1), tr[1], Gm[3], sa[4], E(10), PV(x, t, 0), aload(v, 2 * ph), E(11), E(12),
                   Gm[4], f"s_add_u32 m0, s{sM0g}, {v*4096}", E(13), LS(x, 0), wdma(ph), Gm[5],
                   kv_m0(j) if x == 0 else (f"s_add_u32 s{sCntA}, s{sCntA}, 1" if last else None), E(14), Gm[6], wait,
                   "s_barrier" if last else None, E(15), Gm[7], aload(v, 2 * ph + 1), kvdma2(j) if x == 0 else None]
            if CPF and j == 2 and x == 1: seq.append(f"global_load_dwordx4 v[{U+4}:{U+7}], v[248:249], off")
            if ph == 3: seq += kstep_adv()
            if last: seq += [f"v_add_u32 v{vCur}, s{sRing}, v{vL16}", f"s_bitcmp1_b32 0x140, s{sCntA}"]
            a.extend([z for z in seq if z])

    NPURE = 7 - NC
    seqs = []
    for c in range(NPURE):
        for j in range(1 if c == 0 else 0, 8):
            seqs.append((c, j) + it_pure(c, j, c == NPURE - 1))
    assert not hq and not kv0
    log = []
    def younger(pred):
        idx = [i for i, tag in enumerate(log) if pred(tag)]
        return len(log) - 1 - idx[-1] if idx else len(log)
    for (c, j, fa, fb, t) in seqs:
        for f in (fa, fb):
            for sl in range(5):
                for z in f.get(sl, []):
                    if z.startswith("buffer_"):
                        log.append("kv%d" % (sum(1 for g in log if g.startswith("kv")) // 8 - 1) if " lds" in z else ("st" if "store" in z else "poll"))
        need = 63
        pub = (8 * c + j == PUBAT)
        if j == 7: need = min(need, younger(lambda g: g == "kv%d" % (c - 1)))
        if pub: need = min(need, younger(lambda g: g == "st"))
        if j == 7 or pub:
            fb[5] = [f"s_waitcnt vmcnt({need}) lgkmcnt(0)", "s_barrier"]
            if j == 7: fb[5].append(f"v_add_u32 v{vCur}, s{sRing}, v{vL16}")
        phase(0, t, f=fa)
        phase(1, t, f=fb)
        if c == 0 and j == JCHK:
            a(f"s_waitcnt vmcnt({younger(lambda g: g == 'poll')})")
            poll(f"v{vFa}", True)
            stp(a, "fqok")
        if pub:
            assert log.count("st") == len(parked)
            a(f"s_cmp_eq_u32 s{sPub}, 0")
            a("s_cbranch_scc1 L_at_np")
            publish(sPub, U)
            a("L_at_np:")
    stp(a, "pureend")
    a(f"s_mov_b32 s{sCntA}, {NPURE}")
    for q in range(4): a(f"v_mov_b32 v{vK[q]}, v{vDma}")
    a(f"s_mov_b32 s{sStep}, 16384")
    a(f"s_mov_b32 s{sMask}, {SZ_KV - 1}")
    a(f"s_waitcnt vmcnt({younger(lambda g: g == 'poll')})")
    poll(f"v{vFa2}", True)
    stp(a, "fhok")
    for j in range(8): it_load(j)
    if NC:
        a(".p2align 6")
        a("L_cb_loop:")
        for j in range(8): it_comb(j)
        a("s_cbranch_scc0 L_cb_loop")
        a(f"s_cmp_eq_u32 s{sCntA}, 6")
        a("s_cbranch_scc1 L_cb_sw")
        o = Asm(); sv = a.lines; a.lines = o.lines
        a("L_cb_sw:")
        for q in range(4): a(f"v_mov_b32 v{vK[q]}, v{vW+q}")
        srd(a, sKV, pWO, 0, 1024 * 2048)
        a(f"s_lshl_b32 s{sSo}, s{sWave}, 16")
        a(f"s_mov_b32 s{sStep}, {4*65536}")
        a(f"s_mov_b32 s{sMask}, -1")
        a("s_branch L_cb_loop")
        ool.extend([z.text for z in o.lines]); a.lines = sv
    phase(0, 63)
    phase(1, 63, doqk=False)
    a("s_nop 1")
    a(PV(1, 63, 1)); a(LS(1, 1))
    stp(a, "atend")
    a(f"v_bfe_u32 v{U+2}, v{L}, 4, 1")
    a(f"v_lshlrev_b32 v{U+2}, 10, v{U+2}")
    a(f"v_lshrrev_b32 v{U+3}, 5, v{L}")
    a(f"v_lshl_add_u32 v{U+2}, v{U+3}, 8, v{U+2}")
    a(f"v_and_b32 v{U+3}, 15, v{L}")
    a(f"v_lshl_add_u32 v{U+2}, v{U+3}, 4, v{U+2}")
    a(f"s_lshr_b32 s{t0}, s{sRb2}, 1")
    a(f"s_lshl_b32 s{t0}, s{t0}, 8")
    a(f"s_add_u32 s{t0}, s{t0}, {WS_FL + FO}")
    a(f"v_and_b32 v{U+3}, 31, v{L}")
    a(f"v_lshl_add_u32 v{vFa2}, v{U+3}, 3, s{t0}")
    a(f"s_add_u32 s{sQO}, s{sQO}, {WS_A2 - WS_Q}")
    a(f"s_mov_b32 s{t0}, {f2u(2.0**40):#x}")
    a(f"v_pk_mul_f32 v[{U}:{U+1}], v[{O[0]}:{O[0]+1}], 0 op_sel_hi:[1,0]")
    for i in range(2, 32, 2):
        a(f"v_pk_fma_f32 v[{U}:{U+1}], v[{O[0]+i}:{O[0]+i+1}], 0, v[{U}:{U+1}] op_sel_hi:[1,0,1]")
    a(f"v_add_f32 v{U}, v{U}, v{U+1}")
    a(f"v_add3_u32 v{U+1}, 0, 0, 0") if False else None
    a(f"v_add_f32 v{U+1}, v{Lr[0]}, v{Lr[1]}")
    a(f"v_add_f32 v{U}, v{U}, v{U+1}")
    a(f"v_cmp_ngt_f32 vcc, s{t0}, v{U}")
    a("s_nop 1")
    a("s_cbranch_vccnz L_at_slow")
    a("L_at_fin:")
    for x in range(2):
        a(f"v_rcp_f32 v{U}, v{Lr[x]}")
        a("s_nop 0")
        a(f"v_mul_f32 v{U}, v{U}, v{vSig+x}")
        for i in range(0, 16, 2): a(f"v_pk_mul_f32 v[{O[x]+i}:{O[x]+i+1}], v[{O[x]+i}:{O[x]+i+1}], v[{U}:{U+1}] op_sel_hi:[1,0]")
        for u in range(2):
            for e in range(2):
                c = O[x] + 8 * e + 4 * u
                a(f"v_cvt_pk_bf16_f32 v{D[x]+4*u+2*e}, v{c}, v{c+1}")
                a(f"v_cvt_pk_bf16_f32 v{D[x]+4*u+2*e+1}, v{c+2}, v{c+3}")
            a(f"buffer_store_dwordx4 v[{D[x]+4*u}:{D[x]+4*u+3}], v{U+2}, {WSR}, s{sQO} offen offset:{x*2048+u*512} {SC}")

    assert 2 < NC <= 5
    S0 = 4 * NC
    X = 112; WF8 = [0, 16, 32, 48, 64, 80, 96, 128]
    vE = [220, 221, 236, 237]; vRd = [233, 234, 235]; vRw = 238; vXs = 239
    ol = ["old"] + ["ost"] * 4
    def need2(*tags):
        idx = [i for i, t in enumerate(ol) if t in tags or t == "old"]
        return min(63, len(ol) - 1 - idx[-1])
    def abuf(s_, tt):
        r = ab(s_ & 3, tt) if s_ < 28 else ab(tt & 3, s_ - 28)
        return f"a[{r}:{r+3}]"
    def wfr(s_): return WF8[s_ - 28] if s_ >= 28 else WF[s_ & 1]
    def gm2(s_, tt, ft):
        c = acc2(tt, ft); w = wfr(s_) + ft * 4
        return f"v_mfma_f32_16x16x32_bf16 a[{c}:{c+3}], v[{w}:{w+3}], {abuf(s_, tt)}, a[{c}:{c+3}]"
    def wloc(s_):
        if s_ < 28: return ("r", s_ & 3)
        return ("e", (4, 5, 0, 1, 2, 3)[s_ - 28]) if s_ < 34 else ("r", s_ - 34)
    def wrd(s_):
        k, sl = wloc(s_); l = []
        for ft in range(4):
            r = wfr(s_) + ft * 4
            if k == "r": v = vWo if ft & 1 else vWe; o = sl * 4096
            else: v = vE[(ft & 1) + 2 * (sl >> 2)]; o = (sl & 3) * 16384
            l += [f"ds_read_b64_tr_b16 v[{r+2*rd}:{r+2*rd+1}], v{v} offset:{o + rd*2048 + (ft>>1)*512}" for rd in range(2)]
        return l
    def wld(s_):
        k, sl = wloc(s_)
        g = [([f"s_add_u32 m0, s{sM0g}, {sl*4096}" if k == "r" else f"s_add_u32 m0, s{sM0k}, {sl*16384}"], None)]
        for pc in range(4):
            g.append(([f"buffer_load_dwordx4 v{vW+pc}, {R(sW if s_ < 28 else sKV)}, s{sKW if s_ < 28 else sSo} offen offset:{pc*1024} lds"], f"W{s_}"))
        g.append(([f"s_add_u32 s{sKW if s_ < 28 else sSo}, s{sKW if s_ < 28 else sSo}, {4*65536}"], None))
        return g
    sO4 = [t0, t1, t2, t3, 88, 89, 90, 91]
    def ald(s_, tt):
        so = sO4[s_ - 28] if s_ >= 28 else sKA
        return ([f"buffer_load_dwordx4 {abuf(s_, tt)}, v{vA[tt>>1]}, {WSR}, s{so} offen offset:{(tt&1)*1024} {ASC}"], f"A{s_}_{tt}")
    def order(s_): return [(tt, ft) for tt in range(8) for ft in (range(4) if tt % 2 == 0 else range(3, -1, -1))]
    def emit(m, vm_groups, pos, ds=(), misc=(), bud=8, ds2=(), wr=()):
        for g, tag in vm_groups:
            if tag: ol.append(tag)
        sds = [(8 + 2 * i, x) for i, x in enumerate(ds)] + [((i * 26) // max(1, len(ds2)), x) for i, x in enumerate(ds2)] + list(wr)
        a.extend(sched(m, [[(p, g) for p, (g, tag) in zip(pos, vm_groups)], sds, list(misc)], bud))
    def begin(s_):
        stp(a, f"s{s_}")
        a(f"s_waitcnt vmcnt({need2(*([f'A{s_}_{tt}' for tt in range(8)] + [f'W{s_+1}']))}) lgkmcnt(0)")
    e = Asm(); sv = a.lines; a.lines = e.lines
    a(f"s_sub_u32 s{t4}, s{sM0k}, s{sM0g}")
    a(f"v_add_u32 v{vE[0]}, s{t4}, v{vWe}")
    a(f"v_add_u32 v{vE[1]}, s{t4}, v{vWo}")
    a(f"v_add_u32 v{vE[2]}, 0x10000, v{vE[0]}")
    a(f"v_add_u32 v{vE[3]}, 0x10000, v{vE[1]}")
    srd(a, sX, pX, 0, 4 * MB)
    srd(a, sOut, pOut, 0, 4 * MB)
    a(f"s_mov_b32 s{sPf}, 32768")
    a(f"s_lshl_b32 s{t4}, s{sRb2}, 7")
    a(f"s_lshl_b32 s{t5}, s{sWave}, 5")
    a(f"s_add_u32 s{t4}, s{t4}, s{t5}")
    a(f"s_lshl_b32 s{sH1}, s{t4}, 2")
    a(f"s_add_u32 s{sH1}, s{sH1}, {WS_STAT + 8192}")
    a(f"s_lshl_b32 s{t4}, s{t4}, 11")
    a(f"s_lshl_b32 s{t5}, s{sCb}, 7")
    a(f"s_add_u32 s{t4}, s{t4}, s{t5}")
    el1 = [x.text for x in e.lines]; e = Asm(); a.lines = e.lines
    a(f"v_and_b32 v{vRw}, 15, v{L}")
    a(f"v_lshl_add_u32 v{vX}, v{vRw}, 11, s{t4}")
    a(f"v_lshlrev_b32 v{vRd[0]}, 2, v{vRw}")
    a(f"v_bfe_u32 v{vRw}, v{L}, 4, 1")
    a(f"v_lshl_add_u32 v{vXs}, v{vRw}, 5, v{vX}")
    a(f"v_lshrrev_b32 v{vRw}, 5, v{L}")
    a(f"v_lshl_add_u32 v{vXs}, v{vRw}, 4, v{vXs}")
    a(f"v_add_u32 v{vRw}, s{sM0k}, v{vL16}")
    el2 = [x.text for x in e.lines]; e = Asm(); a.lines = e.lines
    for pi in range(3):
        a(f"s_sub_u32 s{t4}, s{sWave}, {pi + 1}")
        a(f"s_and_b32 s{t4}, s{t4}, 3")
        a(f"s_lshl_b32 s{t4}, s{t4}, 12")
        a(f"s_add_u32 s{t4}, s{t4}, {pi * 32768}")
        a(f"v_add_u32 v{vRd[pi]}, s{t4}, v{vL16}")
    a(f"s_lshl_b32 s{t4}, s{sWave}, 17")
    for i in range(8): a(f"s_add_u32 s{sO4[i]}, s{t4}, {WS_A2 + i * 4 * 131072}")
    el3 = [x.text for x in e.lines]; a.lines = sv
    def grp(l):
        out = []
        for z in l:
            if z.split()[0] in ("s_addc_u32", "s_subb_u32"): out[-1].append(z)
            else: out.append([z])
        return out
    for s_ in range(S0, 24):
        if s_ == S0: stp(a, "s20")
        begin(s_) if s_ > S0 else a("s_waitcnt lgkmcnt(0)")
        vg = wld(s_ + 4) + [ald(s_ + 4, tt) for tt in range(8)] + [([f"s_add_u32 s{sKA}, s{sKA}, {4*131072}"], None)]
        pos = [0, 1, 2, 3, 4, 5] + [max(4 * tt + 3, 6 + tt) for tt in range(8)] + [31]
        misc = {S0: grp(el1), S0 + 1: grp(el2)}.get(s_, [])
        emit([gm2(s_, tt, ft) for tt, ft in order(s_)], vg, pos, wrd(s_ + 1), [(i + 1, g) for i, g in enumerate(misc)])
        if s_ == S0 + PUBSTEP:
            stp(a, "pb")
            a(f"s_waitcnt vmcnt({need2('ost')})")
            a("s_barrier")
            publish(93, 184)
        elif s_ < 20 + PUBSTEP:
            pass
    q = []
    for s_ in range(32, 36): q += wld(s_)
    xl = [([f"buffer_load_dwordx4 v[{X+(h*2+p)*4}:{X+(h*2+p)*4+3}], v{vXs}, {R(sX)}, {'0' if h == 0 else f's{sPf}'} offen offset:{p*64}"], "x")
          for h in range(2) for p in range(2)]
    xl += [([f"buffer_load_dword v{vRs2+h}, v{vRd[0]}, {WSR}, s{sH1} offen offset:{h*64} sc1"], "x") for h in range(2)]
    q = xl + q
    k = [i for i, (g, tag) in enumerate(q) if tag][POLLW]
    q.insert(k, ([flagld(f"v{vFa2}")], "poll"))
    def orow(tt): return [ald(s_, tt) for s_ in range(28, 36)]
    nq = CHK - 23
    per = (len(q) + nq - 1) // nq
    assert per >= 19 or nq > 1
    for s_ in range(24, 28):
        begin(s_)
        if s_ <= CHK: vg = q[:per]; q = q[per:]
        else: vg = orow(s_ - CHK - 1)
        ds = (wrd(s_ + 1) if s_ < 27 else []) + wrd(s_ + 4)
        emit([gm2(s_, tt, ft) for tt, ft in order(s_)], vg, [(i * 30) // len(vg) for i in range(len(vg))], [],
             [(i + 1, g) for i, g in enumerate(grp(el3))] if s_ == 25 else [], ds2=ds)
        if s_ == CHK:
            stp(a, "fopoll")
            a(f"s_waitcnt vmcnt({need2('poll')})")
            poll(f"v{vFa2}", True)
            stp(a, "fook")
    nrow = 27 - CHK
    for tt in range(nrow, 3):
        for g, tag in orow(tt): a.extend(g); ol.append(tag)
    a(f"s_waitcnt vmcnt({need2('W35')})")
    for s_ in range(32, 36): a.extend(wrd(s_))
    XF = 144; RB = [176, 0, 32]
    unp = [f"v_permlane16_swap_b32 v{X+4*i+j}, v{X+4*i+j+2}" for i in range(4) for j in range(2)]
    for i in range(16):
        unp += [f"v_lshlrev_b32 v{XF+2*i}, 16, v{X+i}", f"v_and_b32 v{XF+2*i+1}, 0xffff0000, v{X+i}"]
    for tt in range(8):
        stp(a, f"r{tt}")
        a(f"s_waitcnt vmcnt({need2(f'A35_{tt}')})" + (" lgkmcnt(0)" if tt == 0 else ""))
        m = [gm2(s_, tt, ft) for s_ in range(28, 36) for ft in (range(4) if s_ % 2 == 0 else range(3, -1, -1))]
        vg = orow(tt + 3) if tt + 3 < 8 else []
        wr = []
        if 1 <= tt <= 6:
            pt = tt - 1
            wr = [(8 + 4 * ft, f"ds_write_b128 v{vRw}, a[{acc2(pt, ft)}:{acc2(pt, ft)+3}] offset:{(pt & 3)*16384 + ft*1024}") for ft in range(4)]
            if pt == 3: wr.append((24, f"v_add_u32 v{vRw}, 0x10000, v{vRw}"))
        if tt == 6: wr.append((31, ["s_waitcnt lgkmcnt(0)", "s_barrier"]))
        mi = [(2 * i, z) for i, z in enumerate(unp[10 * tt:10 * tt + 10])] if tt < 4 else []
        if tt == 7:
            wr = [(8 * pi + i + (1 if pi else 0), f"ds_read_b128 v[{RB[pi]+4*i}:{RB[pi]+4*i+3}], v{vRd[pi]} offset:{(i >> 2)*16384 + (i & 3)*1024}")
                  for pi in range(3) for i in range(8)]
            mi = [(10 + i, f"v_accvgpr_read_b32 v{112+i}, a{acc2(6, 0)+i}") for i in range(16)]
        emit(m, vg, [4 * i + 1 for i in range(len(vg))], [], mi, ds2=[], wr=wr)
    stp(a, "g2end")
    a("s_waitcnt lgkmcnt(0)")
    for i in range(8):
        o_ = 112 + 4 * i if i < 4 else 64 + 4 * i
        if i == 2:
            for j in range(16): a(f"v_accvgpr_read_b32 v{80+j}, a{acc2(7, 0)+j}")
        for j in (0, 2): a(f"v_pk_add_f32 v[{RB[0]+4*i+j}:{RB[0]+4*i+j+1}], v[{RB[0]+4*i+j}:{RB[0]+4*i+j+1}], v[{RB[1]+4*i+j}:{RB[1]+4*i+j+1}]")
        for j in (0, 2): a(f"v_pk_add_f32 v[{o_+j}:{o_+j+1}], v[{o_+j}:{o_+j+1}], v[{RB[2]+4*i+j}:{RB[2]+4*i+j+1}]")
        for j in (0, 2): a(f"v_pk_add_f32 v[{o_+j}:{o_+j+1}], v[{o_+j}:{o_+j+1}], v[{RB[0]+4*i+j}:{RB[0]+4*i+j+1}]")
        sel = "op_sel_hi:[1,0,1]" if i < 4 else "op_sel:[0,1,0]"
        for j in (0, 2): a(f"v_pk_fma_f32 v[{o_+j}:{o_+j+1}], v[{o_+j}:{o_+j+1}], v[{vRs2}:{vRs2+1}], v[{XF+4*i+j}:{XF+4*i+j+1}] {sel}")
        a(f"v_cvt_pk_bf16_f32 v{128+2*i}, v{o_}, v{o_+1}")
        a(f"v_cvt_pk_bf16_f32 v{128+2*i+1}, v{o_+2}, v{o_+3}")
        if i & 1:
            r = 128 + 2 * (i - 1)
            a("s_nop 1")
            a(f"v_permlane16_swap_b32 v{r}, v{r+2}")
            a(f"v_permlane16_swap_b32 v{r+1}, v{r+3}")
            a(f"buffer_store_dwordx4 v[{r}:{r+3}], v{vXs}, {R(sOut)}, {'0' if i < 4 else f's{sPf}'} offen offset:{((i>>1)&1)*64}")
    stp(a, "outst")
    if DBGST:
        n = len(STAMPS) + 1
        a("s_waitcnt vmcnt(0)")
        stamp(a, n - 1)
        a(f"s_cmp_lg_u32 s2, {DBGST - 1}")
        a("s_cbranch_scc1 L_end")
        a(f"s_cmp_lg_u32 s{sWave}, 0")
        a("s_cbranch_scc1 L_end")
        a("s_waitcnt lgkmcnt(0)")
        srd(a, 88, pDbg, 0, 256)
        for i in range(n):
            a(f"s_sub_u32 s92, s{60+2*i}, s60")
            a(f"v_mov_b32 v1, s92")
            a(f"buffer_store_dword v1, off, s[88:91], 0 offset:{4*i}")
    else:
        stamp_flush(a, 1, len(STAMPS) + 1, 0)
    a("L_end:")
    a("s_endpgm")
    a("L_at_slow:")
    a(f"s_lshl_b32 s{t5}, s{sHead}, 18")
    a(f"s_add_u32 s{t5}, s{t5}, {WS_KV}")
    for x in range(2): a(f"v_mov_b32 v{NM[x]}, 0xff800000")
    for i in range(40): a(f"v_mov_b32 v{O[0]+i}, 0")
    a(f"s_mov_b32 s{sCntA}, 0")
    a("L_at_sloop:")
    k = Kf[0]; v = Vf[0]
    a(f"buffer_load_dwordx4 v[{k}:{k+3}], v{vL16}, {WSR}, s{t5} offen {SC}")
    a(f"buffer_load_dwordx4 v[{k+4}:{k+7}], v{vL16}, {WSR}, s{t5} offen offset:1024 {SC}")
    a(f"buffer_load_dwordx4 v[{v}:{v+3}], v{vL16}, {WSR}, s{t5} offen offset:2048 {SC}")
    a(f"buffer_load_dwordx4 v[{v+4}:{v+7}], v{vL16}, {WSR}, s{t5} offen offset:3072 {SC}")
    a("s_waitcnt vmcnt(0)")
    for x in range(2):
        M = NM[x]; AL = NM[x] + 1; MN = NM[x] + 2; s = S[x]
        a.extend(qk(x, 0, "0"))
        a("s_nop 15")
        a(f"v_max3_f32 v{U}, v{s}, v{s+1}, v{s+2}")
        for i in range(3, 15, 2): a(f"v_max3_f32 v{U}, v{U}, v{s+i}, v{s+i+1}")
        a(f"v_max_f32 v{U}, v{U}, v{s+15}")
        a(f"v_mov_b32 v{U+1}, v{U}")
        a("s_nop 1")
        a(f"v_permlane32_swap_b32 v{U}, v{U+1}")
        a(f"v_max3_f32 v{MN}, v{U}, v{U+1}, v{M}")
        a(f"v_sub_f32 v{AL}, v{M}, v{MN}")
        a(f"v_exp_f32 v{AL}, v{AL}")
        a(f"v_mov_b32 v{M}, v{MN}")
        for i in range(16): a(f"v_sub_f32 v{s+i}, v{s+i}, v{MN}")
        for i in range(16): a(f"v_exp_f32 v{D[x]+i}, v{s+i}")
        for i in range(16): a(f"v_mul_f32 v{O[x]+i}, v{O[x]+i}, v{AL}")
        a(f"v_mul_f32 v{Lr[x]}, v{Lr[x]}, v{AL}")
        a("s_nop 1")
        a(LS(x, 0)); a(LS(x, 1))
        a(PV(x, 0, 0)); a(PV(x, 0, 1))
        a("s_nop 15")
    a(f"s_add_u32 s{t5}, s{t5}, 4096")
    a(f"s_add_u32 s{sCntA}, s{sCntA}, 1")
    a(f"s_cmp_lt_u32 s{sCntA}, 64")
    a("s_cbranch_scc1 L_at_sloop")
    a("s_branch L_at_fin")
    a.extend(ool)
    a(".p2align 4")
    a("L_code_end:")
    return a, descriptor(name, 512, 256, 102)

if __name__ == "__main__":
    path = sys.argv[1] if len(sys.argv) > 1 else "cdna_kernels/" + NAME + ".s"
    a, d = gen_main()
    ref = open(os.path.join(os.path.dirname(os.path.abspath(__file__)), "..", "cdna_kernels", NAME + ".s.ref")).read()
    head = [l for l in ref.split("\n") if l.startswith(";") and "@launch" not in l and "Override" not in l and "grid=ceil" not in l]
    out = "\n".join(head) + "\n; @launch grid=(256,1,1) block=(256,1,1) lds=163840\n"
    out += '.amdgcn_target "amdgcn-amd-amdhsa--gfx950"\n.text\n' + a.text() + '.section .rodata,"a"\n.p2align 6\n' + d
    open(path, "w").write(out)
    probs = a.check("main")
    for p in probs: print("HAZARD", p)
    print("written", path, "hazards:", len(probs))
```

```python
import sys, os
sys.path.insert(0, os.path.dirname(os.path.abspath(__file__)))
from asmdsl import Asm, weave, sched
from gen import (NAME, KA_X, KA_WQKV, KA_WO, KA_W1, KA_W2, KA_OUT, KA_DBG, KA_WS, MB, f2u, srd, header, descriptor,
                 stamp, stamp_flush, STAMP, xreduce, bf16round, QSCALE)

def env(k, d): return type(d)(os.environ.get(k, d))
WS_Q, WS_KV, WS_A2 = 4 * MB, 8 * MB, 16 * MB
SZ_KV = 262144
WS_FL = 0
FQ, FH, FO, F0 = 0, 2048, 4096, 8192
WS_STAT = 16384
WS_CS = 65536
WS_END = 35 * MB
LDS_W1 = 98304
LDS_SCR = 90112
NC = env("NC", 5); ND = env("ND", 4); SPP = env("SPP", 2); PUBAT = env("PUBAT", 11); POLLAT = env("POLLAT", 5)
L2T = env("L2T", 0); TPF = env("TPF", 0); PNT = env("PNT", ""); CPF = env("CPF", 1); QPLAIN = env("QPLAIN", 0); WNT = env("WNT", ""); PFG1 = env("PFG1", 1); DMAF = env("DMAF", 0.6); RDF = env("RDF", 0.75); BUD = env("BUD", 4)
POLLSTEP = env("POLLSTEP", 2); PUBSTEP = env("PUBSTEP", 0); DBGST = env("DBGST", 0); JLD = env("JLD", 1); JCHK = env("JCHK", 2); POLLW = env("POLLW", 8); CHK = env("CHK", 25); HST = env("HST", 0); EPOLL = env("EPOLL", 31); ELEAD = env("ELEAD", 10)
OSC = env("OSC", "sc1"); PRO = env("PRO", 1); XPOS = env("XPOS", 1); XNT = env("XNT", ""); KQ = env("KQ", 1); KS = 1 if KQ else 4; SC = "sc1"; ASC = env("ASC", "sc1"); G2MAP = env("G2MAP", 0)
STAMPS = env("STAMPS", "start,g1loop,g1end,e4,atentry,atloop,pureend,fhok,atend,fopoll,fook,g2end,outst").split(",")
def stp(a, name):
    if name in STAMPS: stamp(a, STAMPS.index(name))

def gen_main():
    a = Asm()
    name = NAME + "_kernel"
    header(a, name)
    sWS, sW, sKV, sX, sOut = 8, 12, 16, 20, 24
    pW1, pW2, pWO, pX, pOut, pDbg = 28, 30, 32, 34, 36, 38
    sWave, sXcd, sSlot = 40, 41, 42
    sKA, sKW, sM0A, sM0W, sCnt, sWr, sWc, sRb, sCt = 43, 44, 45, 46, 47, 48, 49, 50, 51
    t0, t1, t2, t3, t4, t5 = 52, 53, 54, 55, 56, 57
    sPf = 58; sN = 6; sT = [3, 47, 51]
    sSo, sM0k, sCntA, sRing, sMb, sQO, sHead, sPub = 94, 95, 96, 97, 98, 99, 100, 101
    sAw, sArd, sCs, sTile = 96, 97, 98, 101
    sM0g, sRb2, sCb, sH1, sH2 = 45, 46, 48, 49, 50
    WSR = f"s[{sWS}:{sWS+3}]"
    def R(s): return f"s[{s}:{s+3}]"
    vAd, vWd, vAr, vArB, vWe1, vWo1, vWs1 = 224, 228, 232, 234, 235, 236, 237
    T = 238
    L, vL16, vDma, vFa, vFl = 250, 251, 252, 253, 254
    ST = 224; vO = 240
    Q = [0, 8]; S = [16, 32]; NM = [48, 64]; O = [80, 96]; Lr = [112, 116]; D = [120, 136]
    Kf = [152, 160]; Vf = [168, 176]; ONE = 184; WF = [188, 204]
    vCur, IDX, vW, vWe, vWo, vFa2, vX = 220, 221, 224, 228, 229, 230, 231
    vA = [222, 223, 246, 247]
    U = 232; vSig = 244; vRs2 = 244
    lab = [0]
    def flagld(areg, srdr=WSR):
        return f"buffer_load_dwordx2 v[{vFl}:{vFl+1}], {areg}, {srdr}, 0 {'offen' if areg != 'off' else ''} sc1"
    def poll(areg, first_done, srdr=WSR, val=f"s[{sN}:{sN+1}]", cmp="ne", mask=None):
        n = lab[0]; lab[0] += 1
        a(f"s_mov_b32 s{t5}, 0")
        if first_done: a(f"s_branch L_pc{n}")
        a(f"L_pl{n}:")
        a(flagld(areg, srdr))
        a("s_waitcnt vmcnt(0)")
        a(f"L_pc{n}:")
        a(f"v_cmp_{cmp}_u64 vcc, {val}, v[{vFl}:{vFl+1}]")
        a(f"s_add_u32 s{t5}, s{t5}, 1")
        if mask:
            a(f"s_and_b64 vcc, vcc, {mask}")
            a(f"s_cbranch_scc0 L_pd{n}")
        else:
            a("s_nop 0")
            a(f"s_cbranch_vccz L_pd{n}")
        a("s_sleep 1")
        a(f"s_cmp_lt_u32 s{t5}, 0x40000")
        a(f"s_cbranch_scc1 L_pl{n}")
        a(f"L_pd{n}:")
    def publish(soff_reg, tmp):
        n = lab[0]; lab[0] += 1
        a(f"s_cmp_lg_u32 s{sWave}, 0")
        a(f"s_cbranch_scc1 L_pb{n}")
        a(f"v_mov_b32 v{tmp}, s{sN}")
        a(f"v_mov_b32 v{tmp+1}, s{sN+1}")
        a(f"buffer_store_dwordx2 v[{tmp}:{tmp+1}], off, {WSR}, s{soff_reg} sc1")
        a(f"L_pb{n}:")

    a("s_cmp_ge_u32 s2, 256")
    a("s_cbranch_scc1 L_end")
    stp(a, "start")
    a(f"s_load_dwordx2 s[{pX}:{pX+1}], s[0:1], {KA_X}")
    a(f"s_load_dwordx2 s[6:7], s[0:1], {KA_WQKV}")
    a(f"s_load_dwordx4 s[{pW1}:{pW1+3}], s[0:1], {KA_W1}")
    a(f"s_load_dwordx2 s[4:5], s[0:1], {KA_WS}")
    a(f"s_load_dwordx2 s[{pWO}:{pWO+1}], s[0:1], {KA_WO}")
    a(f"s_load_dwordx4 s[{pOut}:{pOut+3}], s[0:1], {KA_OUT}")
    a("s_memrealtime s[92:93]")
    a(f"v_lshrrev_b32 v{T}, 6, v0")
    a(f"v_and_b32 v{L}, 63, v0")
    a(f"v_readfirstlane_b32 s{sWave}, v{T}")
    a(f"v_lshlrev_b32 v{vL16}, 4, v{L}")
    a(f"s_and_b32 s{sXcd}, s2, 7")
    if STAMP: a(f"s_mov_b32 s59, s{sWave}")
    a(f"s_lshr_b32 s{sSlot}, s2, 3")
    a(f"s_and_b32 s{sRb}, s{sSlot}, 7")
    a(f"s_lshr_b32 s{sCt}, s{sSlot}, 3")
    a(f"s_lshr_b32 s{sWr}, s{sWave}, 1")
    a(f"s_and_b32 s{sWc}, s{sWave}, 1")
    a(f"v_bfe_u32 v3, v{L}, 2, 1")
    a(f"v_lshl_add_u32 v3, v{T}, 1, v3")
    a(f"s_lshl_b32 s{t0}, s2, 3")
    a(f"v_add_u32 v3, s{t0}, v3")
    a(f"v_and_b32 v4, 3, v{L}")
    a(f"v_lshrrev_b32 v5, 3, v{L}")
    a("v_lshlrev_b32 v6, 11, v3")
    a("v_lshl_add_u32 v6, v5, 6, v6")
    a("v_lshl_add_u32 v6, v4, 4, v6")
    a(f"v_lshrrev_b32 v{T+1}, 4, v{L}")
    a(f"v_and_b32 v{T+2}, 7, v{L}")
    a(f"v_xor_b32 v{T+2}, v{T+2}, v{T+1}")
    a(f"v_lshlrev_b32 v{T+2}, 4, v{T+2}")
    a(f"v_lshl_add_u32 v{T+2}, v5, 11, v{T+2}")
    a(f"s_lshl_b32 s{t0}, s{sRb}, 19")
    a(f"s_lshl_b32 s{t1}, s{sWave}, 17")
    a(f"s_add_u32 s{t0}, s{t0}, s{t1}")
    a(f"v_add_u32 v{vAd}, s{t0}, v{T+2}")
    a(f"v_xor_b32 v{vAd+1}, 64, v{vAd}")
    a(f"v_add_u32 v{vAd+3}, {3*15360}, v{vAd+1}")
    a(f"v_add_u32 v{vAd+1}, 15360, v{vAd+1}")
    a(f"v_add_u32 v{vAd+2}, {2*15360}, v{vAd}")
    a(f"s_lshl_b32 s{sM0A}, s{sWave}, 13")
    a(f"s_lshl_b32 s{sM0W}, s{sWave}, 12")
    a(f"s_add_u32 s{sM0W}, s{sM0W}, {LDS_W1}")
    a(f"s_lshl_b32 s{sKA}, s{sRb}, 8")
    ftp, gb, jj, qc = T + 3, T + 4, T + 5, 4
    a(f"v_lshrrev_b32 v{ftp}, 5, v{L}")
    a(f"v_bfe_u32 v{gb}, v{L}, 4, 1")
    a(f"v_bfe_u32 v{jj}, v{L}, 2, 2")
    a(f"s_lshl_b32 s{t0}, s{sWr}, 4")
    a(f"s_lshl_b32 s{t1}, s{sWc}, 2")
    a(f"s_add_u32 s{t0}, s{t0}, s{t1}")
    a(f"v_lshl_add_u32 v{T+6}, v{gb}, 3, v{jj}")
    a(f"v_add_u32 v{T+6}, s{t0}, v{T+6}")
    a(f"v_lshlrev_b32 v{T+7}, 1, v{gb}")
    a(f"v_xor_b32 v{T+7}, v{T+7}, v{qc}")
    a(f"v_lshlrev_b32 v{T+7}, 4, v{T+7}")
    a(f"v_lshl_add_u32 v{T+7}, v{ftp}, 6, v{T+7}")
    a(f"v_xor_b32 v{T+8}, v{gb}, v{qc}")
    a(f"v_lshlrev_b32 v{T+8}, 4, v{T+8}")
    a("s_waitcnt lgkmcnt(0)")
    stp(a, "p1")
    srd(a, sX, pX, 0, 4 * MB)
    srd(a, 88, pDbg, 248, 8)
    a(f"s_or_b32 s{t0}, s2, s{sWave}")
    a("s_cbranch_scc1 L_nonon")
    a("s_or_b32 s92, s92, 1")
    a("v_mov_b32 v8, s92")
    a("v_mov_b32 v9, s93")
    a("buffer_store_dwordx2 v[8:9], off, s[88:91], 0 sc1")
    a("L_nonon:")
    a(f"s_cmp_lt_u32 s{sCt}, 2")
    a("s_cbranch_scc0 L_g1_qkv")

    def code_addr(r):
        n = lab[0]; lab[0] += 1
        a(f"s_getpc_b64 s[{t0}:{t1}]")
        a(f"L_pc_{n}:")
        a(f"s_sub_u32 s{t0}, s{t0}, L_pc_{n}-{name}")
        a(f"s_subb_u32 s{t1}, s{t1}, 0")
        a(f"s_lshl_b32 s{t2}, s{sSlot}, 2")
        a(f"s_add_u32 s{t2}, s{t2}, s{sWave}")
        a(f"s_and_b32 s{t2}, s{t2}, 63")
        a(f"s_lshl_b32 s{t2}, s{t2}, 10")
        a(f"v_add_u32 v{r}, s{t2}, v{vL16}")
        a(f"v_min_u32 v{r}, L_code_end-{name}-16, v{r}")
        a(f"v_mov_b32 v{r+1}, s{t1}")
        a(f"v_add_co_u32 v{r}, vcc, s{t0}, v{r}")
        a("s_nop 1")
        a(f"v_addc_co_u32 v{r+1}, vcc, 0, v{r+1}, vcc")
    def code_pf(r):
        code_addr(r)
        a(f"global_load_dwordx4 a[120:123], v[{r}:{r+1}], off")
    def kvdma(q):
        return f"buffer_load_dwordx4 v{vDma}, {R(sKV)}, s{sSo} offen offset:{(q&3)*1024} {SC} lds"
    so_wrap = f"s_and_b32 s{sSo}, s{sSo}, {SZ_KV - 1}"
    def kv_groups(h0, h1):
        g = []
        for c in range(h0, h1):
            for q in range(4):
                pre = [f"s_add_u32 m0, s{sM0k}, {c*16384}", "s_nop 0"] if q == 0 else []
                post = [f"s_add_u32 s{sSo}, s{sSo}, 16384"] if (q == 3) else []
                if q == 3 and c & 1: post.append(so_wrap)
                g.append(pre + [kvdma(q)] + post)
        return g
    def at_load_groups():
        g = kv_groups(0, 2)
        g[4:4] = [[f"buffer_load_dwordx4 v[{Q[x]+4*h}:{Q[x]+4*h+3}], v{vL16}, {WSR}, s{sQO} offen offset:{x*2048+h*1024} {SC}"]
                  for x in range(2) for h in range(2)]
        return g
    def at_init():
        a(f"v_mov_b32 v{vCur}, v{vL16}")
        for x in range(2): a(f"v_mfma_f32_32x32x16_bf16 v[{O[x]}:{O[x]+15}], a[128:131], a[128:131], 0")
        a(f"v_and_b32 v{U}, 7, v{L}")
        a(f"v_cmp_eq_u32 vcc, 0, v{U}")
        a(f"v_cmp_eq_u32 s[88:89], 4, v{U}")
        a(f"v_mov_b32 v{U+2}, 0x3f803f80")
        a(f"v_mov_b32 v{IDX}, 0xdddddddd")
        a(f"v_cndmask_b32 v{ONE}, 0, v{U+2}, vcc")
        a(f"v_cndmask_b32 v{ONE+2}, 0, v{U+2}, s[88:89]")
        a(f"v_mov_b32 v{ONE+1}, v{ONE}")
        a(f"v_mov_b32 v{ONE+3}, v{ONE+2}")
        a(f"s_add_u32 s{sMb}, s{sM0k}, 65536")
        a(f"s_mov_b32 s{sRing}, 0")
        for i in range(0, 8, 2): a(f"v_mov_b64 v[{Lr[0]+i}:{Lr[0]+i+1}], 0")
        for i in range(0, 8, 2): a(f"v_mov_b64 v[{D[1]+8+i}:{D[1]+9+i}], 0")
        for i in range(0, 4, 2): a(f"v_mov_b64 v[{Vf[1]+4+i}:{Vf[1]+5+i}], 0")
        a(f"s_lshr_b32 s{t0}, s{sXcd}, 1")
        a(f"s_lshl_b32 s{t0}, s{t0}, 2")
        a(f"s_and_b32 s{t1}, s{sSlot}, 3")
        a(f"s_add_u32 s{sRb2}, s{t0}, s{t1}")
        if G2MAP == 1:
            a(f"s_lshl_b32 s{t0}, s{sXcd}, 1")
            a(f"s_and_b32 s{t1}, s{sSlot}, 1")
            a(f"s_add_u32 s{sRb2}, s{t0}, s{t1}")
        if G2MAP == 2:
            a(f"s_lshr_b32 s{t0}, s{sXcd}, 2")
            a(f"s_lshl_b32 s{t0}, s{t0}, 3")
            a(f"s_and_b32 s{t1}, s{sSlot}, 7")
            a(f"s_add_u32 s{sRb2}, s{t0}, s{t1}")
        a(f"s_lshr_b32 s{t0}, s{sRb2}, 1")
        a(f"s_lshl_b32 s{t0}, s{t0}, 7")
        a(f"s_add_u32 s{t0}, s{t0}, {WS_FL + FH}")
        a(f"v_and_b32 v{U}, 15, v{L}")
        a(f"v_lshl_add_u32 v{vFa2}, v{U}, 3, s{t0}")
        srd(a, sW, pW2, 0, 3584 * 2048)
    def g2_setup():
        a(f"s_and_b32 s{t0}, s{sXcd}, 1")
        a(f"s_lshl_b32 s{t0}, s{t0}, 3")
        a(f"s_lshr_b32 s{t1}, s{sSlot}, 2")
        a(f"s_add_u32 s{sCb}, s{t0}, s{t1}")
        if G2MAP == 1: a(f"s_lshr_b32 s{sCb}, s{sSlot}, 1")
        if G2MAP == 2:
            a(f"s_and_b32 s{t0}, s{sXcd}, 3")
            a(f"s_lshl_b32 s{t0}, s{t0}, 2")
            a(f"s_lshr_b32 s{t1}, s{sSlot}, 3")
            a(f"s_add_u32 s{sCb}, s{t0}, s{t1}")
        a(f"s_lshl_b32 s{t0}, s{sRb2}, 13")
        for pi in range(4):
            a(f"s_add_u32 s{t1}, s{sWave}, {pi + 1}")
            a(f"s_and_b32 s{t1}, s{t1}, 3")
            a(f"s_lshl_b32 s{t1}, s{t1}, 11")
            a(f"s_add_u32 s{t1}, s{t1}, s{t0}")
            a(f"v_add_u32 v{vA[pi]}, s{t1}, v{vL16}")
        a(f"v_lshrrev_b32 v{U}, 5, v{L}")
        a(f"v_bfe_u32 v{U+1}, v{L}, 4, 1")
        a(f"v_bfe_u32 v{U+2}, v{L}, 2, 2")
        a(f"v_and_b32 v{U+3}, 3, v{L}")
        a(f"v_lshl_add_u32 v{vW}, v{U+1}, 2, v{U+2}")
        a(f"v_lshlrev_b32 v{vW}, 11, v{vW}")
        a(f"v_lshlrev_b32 v{vW+1}, 1, v{U+1}")
        a(f"v_xor_b32 v{vW+1}, v{vW+1}, v{U+3}")
        a(f"v_lshl_add_u32 v{vW}, v{vW+1}, 4, v{vW}")
        a(f"v_lshl_add_u32 v{vW}, v{U}, 6, v{vW}")
        a(f"s_lshl_b32 s{t0}, s{sCb}, 7")
        a(f"v_add_u32 v{vW}, s{t0}, v{vW}")
        for pc in range(1, 4): a(f"v_add_u32 v{vW+pc}, {pc*(16384-1024)}, v{vW}")
        a(f"s_lshl_b32 s{sM0g}, s{sWave}, 14")
        a(f"s_add_u32 s{sM0g}, s{sM0g}, {LDS_W1}")
        a(f"v_lshl_add_u32 v{vWe}, v{U}, 10, s{sM0g}")
        a(f"v_lshl_add_u32 v{vWe}, v{U+1}, 8, v{vWe}")
        a(f"v_lshl_add_u32 v{vWe}, v{U+2}, 6, v{vWe}")
        a(f"v_lshl_add_u32 v{vWe}, v{U+1}, 5, v{vWe}")
        a(f"v_lshl_add_u32 v{vWe}, v{U+3}, 3, v{vWe}")
        a(f"v_xor_b32 v{vWo}, 32, v{vWe}")
        a(f"s_and_b32 s{t0}, s{sSlot}, 7")
        a(f"s_lshl_b32 s{t0}, s{t0}, 2")
        a(f"s_add_u32 s{t0}, s{t0}, s{sWave}")
        a(f"s_lshl_b32 s{t0}, s{t0}, 8")
        a(f"s_add_u32 s{t0}, s{t0}, {WS_STAT + 16384}")
        a(f"v_and_b32 v{U+1}, 31, v{L}")
        a(f"v_lshlrev_b32 v{U+1}, 2, v{U+1}")
        for x in range(2):
            a(f"buffer_load_dword v{vSig+x}, v{U+1}, {WSR}, s{t0} offen offset:{x*128} sc1")
        if CPF: code_addr(248)
        a(f"s_mul_i32 s{sKA}, s{sWave}, {(28 if KQ else 1)*131072}")
        a(f"s_add_u32 s{sKA}, s{sKA}, {WS_A2 + 32*131072}")
        a(f"s_mul_i32 s{sKW}, s{sWave}, {(28 if KQ else 1)*65536}")
    def hstore(u, data):
        if u < 8:
            return [f"buffer_store_dwordx2 {data}, v{vO+2 + (u>>2)}, {R(sOut)}, s{sH2} offen offset:{(u&3)*1024} {SC}"]
        p, tt = divmod(u - 8, 8)
        return [f"buffer_store_dwordx4 {data}, v{vO + (tt>>2)}, {R(sOut)}, s{(sH1, t3, t4)[p]} offen offset:{(tt&3)*1024} {SC}"]
    direct = set(range(8, 8 + ND))
    parked = [u for u in range(32) if u not in direct]
    ool = []

    def g1(kind):
        ffn = kind == "ffn"
        NB = 7 if ffn else 6
        RS = 7168 if ffn else 6144
        nW = 4 if ffn else 3
        NF = 8 + NB
        def fr(buf, i): return buf * NF * 4 + i * 4
        def acc(tt, ft): return (ft * 8 + tt) * 4
        if ffn:
            srd(a, sW, pW1, -4096, 1024 * 7168 + 4096)
            a(f"s_mul_i32 s{t0}, s{sXcd}, 896")
            a(f"s_mul_i32 s{t1}, s{sCt}, 384")
            a(f"s_add_u32 s{t1}, s{t1}, s{t0}")
            a(f"s_lshl_b32 s{t2}, s{sCt}, 6")
            a(f"s_add_u32 s{t2}, s{t2}, s{t0}")
            a(f"s_add_u32 s{t2}, s{t2}, {768 + 4096 - 3072}")
            qstep = 128
        else:
            srd(a, sW, 6, -4096, 1024 * 6144 + 4096)
            a(f"s_lshl_b32 s{t1}, s{sXcd}, 1")
            a(f"s_add_u32 s{t1}, s{t1}, s{sCt}")
            a(f"s_sub_u32 s{t1}, s{t1}, 2")
            a(f"s_lshl_b32 s{t1}, s{t1}, 7")
            qstep = 2048
        a(f"s_mul_i32 s{sKW}, s{sRb}, {128 * RS}")
        a(f"v_mul_u32_u24 v{T+6}, {RS}, v{T+6}")
        a(f"v_add3_u32 v{T+7}, v{T+7}, v{T+6}, s{t1}")
        for q in range(3):
            a(f"v_add_u32 v{vWd+q}, {4096 + q*qstep - q*1024}, v{T+7}")
        if ffn:
            a(f"v_add3_u32 v{T+8}, v{T+8}, v{T+6}, s{t2}")
            a(f"v_lshlrev_b32 v{T+9}, 30, v{ftp}")
            a(f"v_or_b32 v{vWd+3}, v{T+8}, v{T+9}")
        srd(a, sKV, pX, 65536, 4 * MB - 65536)
        oplog = []
        def wdma_list(stage, pol=WNT):
            l = [[f"s_add_u32 m0, s{sM0W}, {(stage & 3)*16384}"]]
            for q in range(nW):
                l.append([f"buffer_load_dwordx4 v{vWd+q}, {R(sW)}, s{sKW} offen offset:{q*1024} {pol} lds"])
            l.append([f"s_add_u32 s{sKW}, s{sKW}, {32*RS}"])
            if stage & 3 == 3: l.append([f"s_cmp_eq_u32 s{sKW}, {1024 * RS}", f"s_cselect_b32 s{sKW}, 0, s{sKW}"])
            oplog.extend([f"W{stage}"] * nW)
            return l
        def adma_half(Dn, h):
            if Dn < 3: l = [[f"s_add_u32 m0, s{sM0A}, {Dn*32768 + h*4096}"]]
            else: l = [[f"s_add_u32 m0, s{sAw}, {h*4096}"]]
            for p in range(4):
                l.append([f"buffer_load_dwordx4 v{vAd+p}, {R(sKV if h else sX)}, s{sKA} offen offset:{p*1024} {XNT} lds"])
            if h:
                l.append([f"s_add_u32 s{sKA}, s{sKA}, 128"])
                if Dn & 1: l.append([f"s_and_b32 s{sKA}, s{sKA}, 2047"])
            oplog.extend([f"A{Dn}"] * 4)
            return l
        def need(*tags):
            idx = max(i for i, t in enumerate(oplog) if t in tags)
            return len(oplog) - 1 - idx
        def flat(l):
            out = []
            for x in l:
                out += x
                if x[-1].startswith("s_add_u32 m0"): out.append("s_nop 0")
            return out
        for i in range(4): a(f"v_mov_b32 v{12+i}, 0")
        z = [f"v_mfma_f32_32x32x16_bf16 a[{128+16*i}:{143+16*i}], v[12:15], v[12:15], 0" for i in range(8) if i != 2]
        z += [f"v_mfma_f32_32x32x16_bf16 v[{16*i}:{16*i+15}], v[12:15], v[12:15], 0" for i in range(1, 2 * NB)]
        k = 0
        for x in flat(wdma_list(0, PNT) + adma_half(0, 0) + adma_half(0, 1)):
            a(x)
            if x.startswith("buffer_") and k < len(z): a(z[k]); k += 1
        pre = Asm(); sv0 = a.lines; a.lines = pre.lines
        stp(a, "p2")
        srd(a, sWS, 4, 0, WS_END)
        a(f"v_and_b32 v{T+9}, 15, v{L}")
        a(f"v_lshrrev_b32 v{T+10}, 1, v{T+9}")
        a(f"v_xor_b32 v{T+10}, v{T+10}, v{T+1}")
        a(f"v_lshlrev_b32 v{T+10}, 4, v{T+10}")
        a(f"v_lshl_add_u32 v{T+10}, v{T+9}, 7, v{T+10}")
        a(f"s_lshl_b32 s{t0}, s{sWr}, 14")
        a(f"v_add_u32 v{vArB}, s{t0}, v{T+10}")
        a(f"v_mov_b32 v{vAr}, v{vArB}")
        a(f"v_xor_b32 v{vAr+1}, 64, v{vArB}")
        a(f"s_mov_b32 s{sArd}, 0")
        a(f"v_lshlrev_b32 v{T+10}, 13, v{ftp}")
        a(f"v_lshl_add_u32 v{T+10}, v{gb}, 8, v{T+10}")
        a(f"v_lshl_add_u32 v{T+10}, v{jj}, 6, v{T+10}")
        a(f"v_add_u32 v{T+10}, {LDS_W1}, v{T+10}")
        a(f"v_lshl_add_u32 v{T+11}, v{gb}, 5, v{T+10}")
        a(f"v_lshl_add_u32 v{T+11}, v{qc}, 3, v{T+11}")
        a(f"s_mul_i32 s{t0}, s{sWc}, {1536 if ffn else 512}")
        a(f"v_add_u32 v{vWe1}, s{t0}, v{T+11}")
        a(f"v_xor_b32 v{vWo1}, 32, v{vWe1}")
        if ffn:
            a(f"v_and_b32 v{T+11}, 1, v{qc}")
            a(f"v_lshlrev_b32 v{T+11}, 1, v{T+11}")
            a(f"v_add_u32 v{T+11}, s{sWc}, v{T+11}")
            a(f"v_xor_b32 v{T+11}, v{T+11}, v{gb}")
            a(f"v_lshl_add_u32 v{T+11}, v{T+11}, 4, v{T+10}")
            a(f"v_lshrrev_b32 v{T+10}, 1, v{qc}")
            a(f"v_lshl_add_u32 v{vWs1}, v{T+10}, 3, v{T+11}")
        a(f"v_mov_b32 v{T+10}, 0x3f803f80")
        for i in range(4): a(f"v_accvgpr_write_b32 a{124+i}, v{T+10}")
        a(f"s_lshl_b32 s{sTile}, s{sXcd}, 2")
        a(f"s_add_u32 s{sTile}, s{sTile}, s{sCt}")
        a(f"s_and_b32 s{t0}, s{sCt}, 1")
        a(f"s_lshl_b32 s{t0}, s{t0}, 1")
        a(f"s_lshl_b32 s{sHead}, s{sXcd}, 2")
        a(f"s_add_u32 s{sHead}, s{sHead}, s{t0}")
        if ffn: a(f"s_add_u32 s{sHead}, s{sHead}, 1")
        a(f"s_lshl_b32 s{t0}, s{sRb}, 2")
        a(f"s_add_u32 s{t0}, s{t0}, s{sWave}")
        a(f"s_lshl_b32 s{t0}, s{t0}, 12")
        a(f"s_lshl_b32 s{t1}, s{sHead}, 17")
        a(f"s_add_u32 s{sQO}, s{t0}, s{t1}")
        a(f"s_add_u32 s{sQO}, s{sQO}, {WS_Q}")
        a(f"s_lshl_b32 s{sSo}, s{sRb}, 15")
        a(f"s_lshl_b32 s{sM0k}, s{sWave}, 12")
        a(f"v_add_u32 v{vDma}, s{sM0k}, v{vL16}")
        a(f"s_lshr_b32 s{t0}, s{sHead}, 1")
        a(f"s_lshl_b32 s{t0}, s{t0}, 7")
        a(f"v_and_b32 v{vFa}, 7, v{L}")
        a(f"v_lshl_add_u32 v{vFa}, v{vFa}, 3, s{t0}")
        srd(a, sOut, pW2, 0, 3584 * 2048)
        a(f"s_lshl_b32 s{sPf}, s2, 2")
        a(f"s_add_u32 s{sPf}, s{sPf}, s{sWave}")
        a(f"s_lshl_b32 s{sPf}, s{sPf}, 10")
        a(f"v_and_b32 v{T+8}, 0x3b, v{L}")
        a(f"v_min_u32 v{T+8}, 1, v{T+8}")
        a(f"v_lshlrev_b32 v{T+8}, 30, v{T+8}")
        a(f"v_lshl_add_u32 v{T+8}, v3, 2, v{T+8}")
        a(f"v_mov_b32 v{T+3}, 0")
        a(f"v_mov_b32 v{T+4}, 0")
        a(f"s_lshl_b32 s{t0}, s{sXcd}, 1")
        a(f"s_add_u32 s{t0}, s{t0}, s{sCt}")
        if ffn:
            a(f"s_lshl_b32 s{t0}, s{t0}, 3")
            a(f"s_lshl_b32 s{t1}, s{sRb}, 7")
            a(f"s_add_u32 s{t0}, s{t0}, s{t1}")
            a(f"s_add_u32 s92, s{t0}, {WS_FL + FH}")
        else:
            a(f"s_sub_u32 s{sCt}, s{t0}, 2")
            a(f"s_lshl_b32 s{t0}, s{sCt}, 7")
            a(f"s_lshl_b32 s{t1}, s{sRb}, 3")
            a(f"s_add_u32 s92, s{t0}, s{t1}")
        a(f"s_lshl_b32 s{t0}, s{sRb}, 8")
        a(f"s_lshl_b32 s93, s{sHead}, 3")
        a(f"s_add_u32 s93, s93, s{t0}")
        a(f"s_add_u32 s93, s93, {WS_FL + FO}")

        a.lines = sv0
        xld = [[f"buffer_load_dwordx4 a[{160+4*i}:{163+4*i}], v6, {R(sX)}, 0 offen offset:{i*512}"] for i in range(4)]
        if PRO:
            more = wdma_list(1, PNT) + xld
            oplog.extend(["x"] * 4)
        elif XPOS == 0:
            oplog.extend(["x"] * 4)
            more = xld + wdma_list(1, PNT) + wdma_list(2, PNT) + adma_half(1, 0) + adma_half(1, 1)
        else:
            more = wdma_list(1, PNT) + wdma_list(2, PNT) + adma_half(1, 0) + adma_half(1, 1) + xld
            oplog.extend(["x"] * 4)
        nmore = len(more)
        gap = len(pre.lines) / (nmore + 1)
        for i, x in enumerate(pre.lines):
            a.lines.append(x)
            nxt = pre.lines[i + 1].op if i + 1 < len(pre.lines) else ""
            if nxt in ("s_addc_u32", "s_subb_u32"): continue
            if i % 5 == 4 and k < len(z): a(z[k]); k += 1
            if more and i + 1 >= gap * (nmore - len(more)): a.extend(more.pop(0))
        a.extend(flat(more))
        for x in z[k:]: a(x)
        a("s_nop 1")
        a(f"v_mfma_f32_32x32x16_bf16 v[0:15], a[128:131], a[128:131], 0")
        st_ = Asm(); a.lines = st_.lines
        SU, SQ, TM = T + 3, T + 4, T + 5
        for j in range(16):
            r = T + 6 + (j & 1)
            a(f"v_accvgpr_read_b32 v{r}, a{160+j}")
            a(f"v_dot2c_f32_bf16 v{SU}, v{r}, v{T+10}")
            a(f"v_dot2c_f32_bf16 v{SQ}, v{r}, v{r}")
        a("s_nop 1")
        xreduce(a, SU, TM)
        xreduce(a, SQ, TM)
        a(f"v_mul_f32 v{SU}, {f2u(-1.0/1024):#x}, v{SU}")
        a(f"v_mul_f32 v{SQ}, {f2u(1.0/1024):#x}, v{SQ}")
        a(f"v_fma_f32 v{SQ}, -v{SU}, v{SU}, v{SQ}")
        a(f"v_max_f32 v{SQ}, 0, v{SQ}")
        bf16round(a, SU)
        bf16round(a, SQ)
        a(f"v_add_f32 v{SQ}, {f2u(1e-5):#x}, v{SQ}")
        bf16round(a, SQ)
        a(f"v_sqrt_f32 v{SQ}, v{SQ}")
        a(f"s_mov_b32 s{t2}, {WS_STAT}")
        bf16round(a, SQ)
        a(f"v_rcp_f32 v{TM}, v{SQ}")
        a(f"s_mov_b32 s{t3}, {WS_STAT + 8192}")
        a(f"s_mov_b32 s{t4}, {WS_STAT + 16384}")
        a(f"buffer_store_dword v{SU}, v{T+8}, {WSR}, s{t2} offen sc1")
        a(f"buffer_store_dword v{TM}, v{T+8}, {WSR}, s{t3} offen sc1")
        a(f"buffer_store_dword v{SQ}, v{T+8}, {WSR}, s{t4} offen sc1")
        a.lines = sv0
        stl = []
        for x in st_.lines:
            if stl and stl[-1][-1].startswith("s_nop"): stl[-1].append(x.text)
            else: stl.append([x.text])

        def read_list(step):
            buf = step & 1; so = (step & 3) * 16384
            rb = []
            for ft in range(NB):
                r = fr(buf, 8 + ft)
                if ffn and ft == 6: v = vWs1; off = 3072
                else:
                    v = vWo1 if ft & 1 else vWe1
                    off = (ft >> 1) * (512 if ffn else 1024)
                rb.append([f"ds_read_b64_tr_b16 a[{r+2*rd}:{r+2*rd+1}], v{v} offset:{so + rd*4096 + off}" for rd in range(2)])
            ra = [f"ds_read_b128 a[{fr(buf, tt)}:{fr(buf, tt)+3}], v{vAr + (step & 1)} offset:{tt*2048}" for tt in range(8)]
            l = rb[0] + ra
            for x in rb[1:]: l += x
            return l
        def mfmas(buf):
            l = []
            for ft in range(NB):
                for tt in (range(8) if ft % 2 == 0 else range(7, -1, -1)):
                    c = acc(tt, ft); w = fr(buf, 8 + ft); x = fr(buf, tt)
                    if (not ffn) and ft >= 4: w, x = x, w
                    l.append(f"v_mfma_f32_16x16x32_bf16 v[{c}:{c+3}], a[{w}:{w+3}], a[{x}:{x+3}], v[{c}:{c+3}]")
            return l
        ard_adv = [[f"s_add_u32 s{sAw}, s{sArd}, s{sM0A}"], [f"s_add_u32 s{sArd}, s{sArd}, 32768"], [f"s_cmp_eq_u32 s{sArd}, 98304", f"s_cselect_b32 s{sArd}, 0, s{sArd}"]]
        ard_set = [f"v_add_u32 v{vAr}, s{sArd}, v{vArB}", f"v_xor_b32 v{vAr+1}, 64, v{vAr}"]
        stp(a, "p5")
        a(f"s_waitcnt vmcnt({need('W0', 'A0')})")
        a("s_barrier")
        stp(a, "p6")
        a.extend(read_list(0))
        a(f"s_waitcnt vmcnt({need('W1')}) lgkmcnt(0)")
        a("s_barrier")
        def step(k4, dl, vm, reads=True, extra=(), cs=False, span=DMAF, tail=()):
            m = mfmas(k4 & 1)
            if cs:
                m = [f"v_mfma_f32_16x16x32_bf16 a[{128+4*ft}:{131+4*ft}], a[{fr(k4 & 1, 8 + ft)}:{fr(k4 & 1, 8 + ft)+3}], a[124:127], a[{128+4*ft}:{131+4*ft}]"
                     for ft in range(NB)] + m
            n = len(m)
            sr = []
            if reads:
                rl = read_list(k4 + 1)
                sr = [((i * int(n * RDF)) // len(rl), x) for i, x in enumerate(rl)]
            sd = [((i * int(n * span)) // len(dl), x) for i, x in enumerate(dl)]
            if reads and k4 % 2 == 0:
                sd += [(n - 12 + 2 * i, x) for i, x in enumerate(ard_adv + ard_set)]
            a.extend(sched(m, [sd, sr, list(extra)], BUD if not extra and span == DMAF else 8))
            a.extend(tail)
            if vm is not None:
                a(f"s_waitcnt vmcnt({vm}) lgkmcnt(0)")
                a("s_barrier")
        def std_dl(k):
            return wdma_list(k + 4) + (adma_half((k + 5) // 2, 0) if k & 1 else adma_half((k + 4) // 2, 1))
        def std_need(k):
            return need(f"W{k+2}", f"A{(k+2)//2}")
        stp(a, "g1loop")
        stt = [x.text for x in st_.lines]
        dl = wdma_list(3, PNT) + adma_half(2, 0) + adma_half(2, 1) if not PRO else \
             wdma_list(2, PNT) + adma_half(1, 0) + adma_half(1, 1) + wdma_list(3, PNT)
        stt = [f"s_waitcnt vmcnt({need('x')})"] + stt
        oplog.extend(["st"] * 3)
        step(0, dl, std_need(0), cs=True, span=0.85, tail=stt)
        stp(a, "k1")
        dl = wdma_list(4) + wdma_list(5) + adma_half(3, 0) if not PRO else adma_half(2, 0) + adma_half(2, 1) + wdma_list(4) + wdma_list(5); step(1, dl, std_need(1), cs=True, span=0.85)
        stp(a, "k2")
        n1 = 9 * NB - 4
        dl = std_dl(2) if not PRO else wdma_list(6) + adma_half(3, 0) + adma_half(3, 1)
        step(2, dl, std_need(2), cs=True, span=0.75 if PRO else DMAF)
        e = [f"s_lshl_b32 s{t0}, s{sTile}, 13", f"s_lshl_b32 s{t1}, s{sRb}, 10", f"s_add_u32 s{t0}, s{t0}, s{t1}", f"s_mul_i32 s{t1}, s{sWc}, {NB*64}",
             f"s_add_u32 s{t0}, s{t0}, s{t1}", f"s_add_u32 s{t0}, s{t0}, {WS_CS}", f"v_and_b32 v{T}, 15, v{L}", f"v_or_b32 v{T}, s{sWr}, v{T}",
             f"v_lshlrev_b32 v{T}, 27, v{T}", f"v_and_b32 v{T+1}, 48, v{L}", f"v_or_b32 v{T}, v{T}, v{T+1}", f"s_mov_b32 s{sCnt}, 6"]
        stp(a, "k3")
        e += [flagld("off", "s[88:91]")]
        e += [f"buffer_store_dwordx4 a[{128+4*ft}:{131+4*ft}], v{T}, {WSR}, s{t0} offen offset:{ft*64} sc1" for ft in range(NB)]
        dl = std_dl(3); step(3, dl, std_need(3), cs=True, extra=[(12 + 2 * i, x) for i, x in enumerate(e)])
        stp(a, "h6")
        a(".p2align 6")
        a(f"L_g1_{kind}_loop:")
        pf = [f"buffer_load_dwordx4 a[120:123], v{vL16}, {R(sOut)}, s{sPf} offen", f"s_add_u32 s{sPf}, s{sPf}, {MB}"]
        for k4 in range(4):
            dl = std_dl(4 + k4)
            if k4 in (0, 2) and PFG1:
                dl += [[pf[0]], [pf[1]]]; oplog.append("pf")
            if k4 == 3:
                dl = [[f"s_cmp_eq_u32 s{sCnt}, 1", f"s_cselect_b32 s{sX+2}, 0, s{sX+2}"]] + dl + [[f"s_sub_u32 s{sCnt}, s{sCnt}, 1"], [f"s_bitcmp1_b32 0x3d, s{sCnt}"]]
            step(k4, dl, std_need(4 + k4))
        a(f"s_cbranch_scc0 L_g1_{kind}_loop")
        a(f"s_cmp_lg_u32 s{sCnt}, 0")
        a(f"s_cbranch_scc1 L_hk5_{kind}")
        b = Asm(); sv = a.lines; a.lines = b.lines
        a(f"L_hk5_{kind}:")
        a(f"s_cmp_lg_u32 s{sCnt}, 5")
        a(f"s_cbranch_scc1 L_hk4_{kind}")
        stp(a, "h5")
        for i in range(3): a(f"v_mfma_f32_32x32x16_bf16 a[{128+16*i}:{143+16*i}], a[176:179], a[176:179], 0")
        poll("off", True, "s[88:91]", "0", "eq")
        a(f"v_readfirstlane_b32 s{sN}, v{vFl}")
        a(f"v_readfirstlane_b32 s{sN+1}, v{vFl+1}")
        a(f"s_lshl_b32 s{t0}, s2, 5")
        a(f"s_add_u32 s{t0}, s{t0}, {WS_FL + F0}")
        publish(t0, T)
        srd(a, 88, pWO, 0, 1024 * 2048)
        a(f"s_and_b32 s{t0}, s{sPf}, {MB - 1}")
        a(f"s_add_u32 s{t1}, s{t0}, {MB}")
        a(f"buffer_load_dwordx4 a[120:123], v{vL16}, s[88:91], s{t0} offen")
        a(f"buffer_load_dwordx4 a[120:123], v{vL16}, s[88:91], s{t1} offen")
        if CPF: code_pf(T + 2)
        a(f"s_branch L_g1_{kind}_loop")
        a(f"L_hk4_{kind}:")
        a(f"s_cmp_lg_u32 s{sCnt}, 4")
        a(f"s_cbranch_scc1 L_hk3_{kind}")
        a(f"s_lshl_b32 s{t0}, s{sRb}, 5")
        a(f"v_add_u32 v{T}, s{t0}, v{L}")
        a(f"s_and_b32 s{t0}, s2, 0xc7")
        a(f"v_and_b32 v{T+1}, 7, v{L}")
        a(f"v_lshl_add_u32 v{T+1}, v{T+1}, 3, s{t0}")
        a(f"v_cmp_gt_u32 vcc, 32, v{L}")
        a("s_nop 1")
        a(f"v_cndmask_b32 v{T+1}, v{T+1}, v{T}, vcc")
        a(f"v_lshlrev_b32 v{T+1}, 5, v{T+1}")
        a(f"v_add_u32 v{T+1}, {WS_FL + F0}, v{T+1}")
        a(flagld(f"v{T+1}"))
        if TPF:
            a(f"v_lshlrev_b32 v{T}, 19, v{L}")
            a(f"s_mov_b32 s{t0}, {WS_Q}")
            a(f"buffer_load_dword v{T+2}, v{T}, {WSR}, s{t0} offen")
            srd(a, 88, pOut, 0, 4 * MB)
            a(f"v_lshlrev_b32 v{T}, 16, v{L}")
            a(f"buffer_load_dword v{T+2}, v{T}, s[88:91], 0 offen")
        a(f"s_branch L_g1_{kind}_loop")
        a(f"L_hk3_{kind}:")
        a(f"s_cmp_eq_u32 s{sCnt}, 3")
        a(f"s_cbranch_scc1 L_hk3b_{kind}")
        stp(a, "h2")
        if CPF:
            code_addr(vFl)
            a(f"global_load_dwordx4 a[120:123], v[{vFl}:{vFl+1}], off")
        a(f"s_branch L_g1_{kind}_loop")
        a(f"L_hk3b_{kind}:")
        stp(a, "h1")
        poll(f"v{T+1}", True)
        a(f"s_lshl_b32 s{t0}, s{sWave}, 8")
        a(f"v_lshl_add_u32 v{T}, v{L}, 2, s{t0}")
        a(f"s_lshl_b32 s{t0}, s{sTile}, 13")
        a(f"s_add_u32 s{t0}, s{t0}, {WS_CS}")
        a(f"s_add_u32 s{t1}, s{t0}, 4096")
        for i in range(8):
            a(f"buffer_load_dword v{T+2+i}, v{T}, {WSR}, s{t0 if i < 4 else t1} offen offset:{(i&3)*1024} sc1")
        a(f"s_lshl_b32 s{t0}, s{sRb}, 10")
        a(f"s_add_u32 s{t0}, s{t0}, {WS_STAT}")
        a(f"s_add_u32 s{t1}, s{t0}, 8192")
        a(f"buffer_load_dword v{T+10}, v{T}, {WSR}, s{t0} offen sc1")
        a(f"buffer_load_dword v{T+11}, v{T}, {WSR}, s{t1} offen sc1")
        stp(a, "h1e")
        a(f"s_branch L_g1_{kind}_loop")
        ool.extend([x.text for x in b.lines]); a.lines = sv
        stp(a, "tail")
        adds = [f"v_add_f32 v{T+2+2*i}, v{T+2+2*i}, v{T+3+2*i}" for i in range(4)] + \
               [f"v_add_f32 v{T+2}, v{T+2}, v{T+4}", f"v_add_f32 v{T+6}, v{T+6}, v{T+8}", f"v_add_f32 v{T+2}, v{T+2}, v{T+6}",
                f"v_add_u32 v{T}, {LDS_SCR}, v{T}"]
        step(0, [], nW + 4, extra=[(2 + 3 * i, x) for i, x in enumerate(adds)])
        step(1, [], 4, extra=[(40, f"ds_write_b32 v{T}, v{T+2}"), (42, f"ds_write_b32 v{T}, v{T+10} offset:1024"), (44, f"ds_write_b32 v{T}, v{T+11} offset:2048")])
        e = Asm(); sv = a.lines; a.lines = e.lines
        if ffn:
            a(f"s_lshl_b32 s{t0}, s{sRb}, 14")
            a(f"s_lshl_b32 s{t1}, s{sWr}, 13")
            a(f"s_add_u32 s{t0}, s{t0}, s{t1}")
            a(f"v_add_u32 v{vO}, s{t0}, v{vL16}")
            a(f"v_add_u32 v{vO+1}, 4096, v{vO}")
            a(f"s_lshl_b32 s{t1}, s{sWc}, 9")
            a(f"s_add_u32 s{t0}, s{t0}, s{t1}")
            a(f"v_lshrrev_b32 v{vO+2}, 5, v{L}")
            a(f"v_lshl_add_u32 v{vO+2}, v{vO+2}, 8, s{t0}")
            a(f"v_and_b32 v{vO+3}, 15, v{L}")
            a(f"v_lshl_add_u32 v{vO+2}, v{vO+3}, 4, v{vO+2}")
            a(f"v_bfe_u32 v{vO+3}, v{L}, 4, 1")
            a(f"v_lshl_add_u32 v{vO+2}, v{vO+3}, 3, v{vO+2}")
            a(f"v_add_u32 v{vO+3}, 4096, v{vO+2}")
            a(f"s_mul_i32 s{t0}, s{sXcd}, 14")
            a(f"s_mul_i32 s{t1}, s{sCt}, 6")
            a(f"s_mul_i32 s{t2}, s{sWc}, 3")
            a(f"s_add_u32 s{t1}, s{t1}, s{t2}")
            a(f"s_add_u32 s{t1}, s{t1}, s{t0}")
            a(f"s_add_u32 s{t1}, s{t1}, {32 + WS_A2 // 131072}")
            a(f"s_lshl_b32 s{t1}, s{t1}, 17")
            a(f"s_add_u32 s{t2}, s{t0}, s{sCt}")
            a(f"s_add_u32 s{t2}, s{t2}, {44 + WS_A2 // 131072}")
            a(f"s_lshl_b32 s{t2}, s{t2}, 17")
            a(f"s_add_u32 s{t3}, s{t1}, 131072")
            a(f"s_add_u32 s{t4}, s{t1}, 262144")
        else:
            a(f"s_lshl_b32 s{t0}, s{sRb}, 3")
            a(f"s_lshl_b32 s{t1}, s{sWr}, 2")
            a(f"s_add_u32 s{t0}, s{t0}, s{t1}")
            a(f"s_lshl_b32 s{t0}, s{t0}, 11")
            a(f"s_lshl_b32 s{t3}, s{sCt}, 1")
            a(f"s_add_u32 s{t3}, s{t3}, s{sWc}")
            a(f"s_lshl_b32 s{t3}, s{t3}, 17")
            a(f"s_add_u32 s{t1}, s{t3}, s{t0}")
            a(f"s_lshl_b32 s{t2}, s{t1}, 1")
            a(f"s_add_u32 s{t2}, s{t2}, {WS_KV}")
            a(f"s_add_u32 s{t1}, s{t1}, {WS_Q}")
            a(f"v_lshrrev_b32 v{vO+2}, 4, v{L}")
            a(f"v_lshlrev_b32 v{vO+2}, 9, v{vO+2}")
            a(f"v_and_b32 v{vO+3}, 15, v{L}")
            a(f"v_lshl_add_u32 v{vO}, v{vO+3}, 4, v{vO+2}")
            a(f"v_bfe_u32 v{vO+3}, v{L}, 2, 2")
            a(f"v_lshl_add_u32 v{vO+2}, v{vO+3}, 7, v{vO+2}")
            a(f"v_and_b32 v{vO+3}, 3, v{L}")
            a(f"v_lshl_add_u32 v{vO+1}, v{vO+3}, 4, v{vO+2}")
            a(f"s_mov_b32 s{t4}, {f2u(QSCALE):#x}")
        a(f"s_lshl_b32 s{t5}, s{sHead}, 18")
        a(f"s_add_u32 s{t5}, s{t5}, {WS_KV}")
        a(f"s_add_u32 s{sKV}, s4, s{t5}")
        a(f"s_addc_u32 s{sKV+1}, s5, 0")
        a(f"s_mov_b32 s{sKV+2}, {SZ_KV}")
        if ffn:
            a(f"s_lshl_b32 s90, 0x01010101, s{sRb}")
            a(f"s_mov_b32 s91, 0")
        a(f"s_mul_i32 s{t5}, s{sWc}, {NB*64}")
        a(f"s_add_u32 s{t5}, s{t5}, {LDS_SCR}")
        a(f"v_and_b32 v248, 48, v{L}")
        a(f"v_add_u32 v248, s{t5}, v248")
        a(f"s_lshl_b32 s{t0}, s{sWr}, 9")
        a(f"s_add_u32 s{t0}, s{t0}, {LDS_SCR + 1024}")
        a(f"v_and_b32 v249, 15, v{L}")
        a(f"v_lshl_add_u32 v249, v249, 2, s{t0}")
        if not ffn:
            a(f"v_and_b32 v222, 15, v{L}")
            a(f"v_lshl_add_u32 v222, v222, 2, s{t5}")
            a(f"v_and_b32 v223, 48, v{L}")
            a(f"v_add_u32 v223, s{t0}, v223")
        el = []
        for x in e.lines:
            if x.op in ("s_addc_u32", "s_subb_u32", "s_cselect_b32"): el[-1].append(x.text)
            else: el.append([x.text])
        a.lines = sv
        n = 8 * NB
        step(2, [], 0, extra=[(2 + (i * (n - 12)) // len(el), x) for i, x in enumerate(el)])
        rds = []
        for tt in range(8):
            rds.append(f"ds_read_b32 v{ST+2*tt}, v249 offset:{tt*64}")
            if not ffn: rds.append(f"ds_read_b32 v{ST+2*tt+1}, v249 offset:{1024 + tt*64}")
        if ffn:
            rds.append(f"ds_read_b128 v[244:247], v248 offset:{6*64}")
        else:
            for ft in range(4): rds.append(f"ds_read_b128 v[{192+4*ft}:{195+4*ft}], v248 offset:{ft*64}")
            for vt in range(2): rds.append(f"ds_read_b32 v{208+2*vt}, v222 offset:{(4+vt)*64}")
        step(3, [], None, reads=False, extra=[(2 + 2 * i, x) for i, x in enumerate(rds)])
        stp(a, "g1end")
        BC = "op_sel_hi:[1,0,1]"
        if ffn:
            a("s_nop 0")
            a(f"s_mov_b32 s{sH1}, s{t1}")
            a(f"s_mov_b32 s{sH2}, s{t2}")
            a(f"s_mov_b32 s{sPub}, s92")
            srd(a, sOut, 4, 0, WS_END)
            a("s_waitcnt lgkmcnt(0)")
            pend = []
            for u in range(8):
                c = acc(u, 6)
                for h in range(2):
                    a(f"v_pk_fma_f32 v[{c+2*h}:{c+2*h+1}], v[{244+2*h}:{245+2*h}], v[{ST+2*u}:{ST+2*u+1}], v[{c+2*h}:{c+2*h+1}] {BC}")
                a(f"v_cvt_pk_bf16_f32 v{c}, v{c}, v{c+1}")
                a(f"v_cvt_pk_bf16_f32 v{c+1}, v{c+2}, v{c+3}")
                a(f"v_pk_max_i16 v{c}, v{c}, 0")
                a(f"v_pk_max_i16 v{c+1}, v{c+1}, 0")
                if u in direct: pend.append(hstore(u, f"v[{c}:{c+1}]"))
                else:
                    for e_ in range(2): a(f"v_accvgpr_write_b32 a{4*parked.index(u)+e_}, v{c+e_}")
                if u == 1:
                    a(f"ds_read_b64 v[194:195], v248 offset:64")
                    a(f"ds_read_b64 v[198:199], v248 offset:72")
                if u == 3:
                    a(f"ds_read_b64 v[202:203], v248 offset:0")
                    a(f"ds_read_b64 v[206:207], v248 offset:8")
            for i, r in enumerate((210, 214, 218, 222)):
                a(f"ds_read_b64 v[{r}:{r+1}], v248 offset:{128 + (i>>1)*64 + (i&1)*8}")
            a(f"ds_read_b128 v[244:247], v248 offset:{4*64}")
            CSM = {0: (202, 206), 1: (194, 198), 2: (210, 214), 3: (218, 222), 4: (244, 246), 5: (194, 198)}
            groups = at_load_groups()
            polled = False; after = []
            def drip(k):
                for _ in range(k):
                    if groups:
                        a.extend(groups.pop(0)); after.append("ld")
                    elif pend:
                        a.extend(pend.pop(0)); after.append("st")
            for u in range(8, 32):
                p, tt = divmod(u - 8, 8)
                if u == 8: a("s_waitcnt lgkmcnt(5)")
                if u == 16:
                    a("s_waitcnt lgkmcnt(0)")
                    a(f"ds_read_b64 v[194:195], v248 offset:{5*64}")
                    a(f"ds_read_b64 v[198:199], v248 offset:{5*64+8}")
                if u == 24: a("s_waitcnt lgkmcnt(0)")
                if u == EPOLL - ELEAD: a(flagld(f"v{vFa}"))
                c0, c1 = acc(tt, 2 * p), acc(tt, 2 * p + 1)
                for c, cs in ((c0, CSM[2 * p]), (c1, CSM[2 * p + 1])):
                    for h in range(2):
                        a(f"v_pk_fma_f32 v[{c+2*h}:{c+2*h+1}], v[{cs[h]}:{cs[h]+1}], v[{ST+2*tt}:{ST+2*tt+1}], v[{c+2*h}:{c+2*h+1}] {BC}")
                a(f"v_cvt_pk_bf16_f32 v{c0}, v{c0}, v{c0+1}")
                a(f"v_cvt_pk_bf16_f32 v{c0+1}, v{c0+2}, v{c0+3}")
                a(f"v_cvt_pk_bf16_f32 v{c0+2}, v{c1}, v{c1+1}")
                a(f"v_cvt_pk_bf16_f32 v{c0+3}, v{c1+2}, v{c1+3}")
                for e_ in range(4): a(f"v_pk_max_i16 v{c1+e_}, v{c0+e_}, 0")
                if u in direct: pend.append(hstore(u, f"v[{c1}:{c1+3}]"))
                else:
                    for e_ in range(4): a(f"v_accvgpr_write_b32 a{4*parked.index(u)+e_}, v{c1+e_}")
                if u == EPOLL:
                    stp(a, "e1")
                    a(f"s_waitcnt vmcnt(0)")
                    stp(a, "e2")
                    poll(f"v{vFa}", True, mask="s[90:91]")
                    stp(a, "e4")
                    polled = True
                if polled: drip(4)
            drip(64)
            a("s_nop 1")
            at_init(); g2_setup(); after += ["x"] * 2
            idx = [i for i, z in enumerate(after) if z == "ld"][11]
            a(f"s_waitcnt vmcnt({len(after) - 1 - idx})")
            a("s_branch L_at_entry")
        else:
            QSC = SC
            a(f"s_mov_b32 s{sPub}, 0")
            a("s_waitcnt lgkmcnt(0)")
            a("s_nop 4")
            for b_ in range(4):
                for e_ in range(2):
                    a(f"ds_read_b128 v[{212+4*e_}:{215+4*e_}], v223 offset:{(2*b_+e_)*64}")
                a(f"ds_read_b128 v[244:247], v223 offset:{1024 + (2*b_)*64}")
                a(f"ds_read_b64 v[220:221], v223 offset:{1024 + (2*b_+1)*64}")
                a(f"ds_read_b64 v[242:243], v223 offset:{1024 + (2*b_+1)*64 + 8}")
                for X in (1, 0):
                    for h in range(2):
                        tt = 2 * b_ + h
                        st_ = f"v[{ST+2*tt}:{ST+2*tt+1}]"
                        if X == 0: a(f"v_mul_f32 v{ST+2*tt+1}, s{t4}, v{ST+2*tt+1}")
                        c0 = acc(tt, 2 * X)
                        for e_ in range(2):
                            c = acc(tt, 2 * X + e_); cs = 192 + 4 * (2 * X + e_)
                            for h2 in range(2):
                                a(f"v_pk_fma_f32 v[{c+2*h2}:{c+2*h2+1}], v[{cs+2*h2}:{cs+2*h2+1}], {st_}, v[{c+2*h2}:{c+2*h2+1}] {BC}")
                            for h2 in range(2):
                                a(f"v_pk_mul_f32 v[{c+2*h2}:{c+2*h2+1}], v[{c+2*h2}:{c+2*h2+1}], {st_} op_sel:[0,1]")
                        c1 = acc(tt, 2 * X + 1)
                        a(f"v_cvt_pk_bf16_f32 v{c0}, v{c0}, v{c0+1}")
                        a(f"v_cvt_pk_bf16_f32 v{c0+1}, v{c0+2}, v{c0+3}")
                        a(f"v_cvt_pk_bf16_f32 v{c0+2}, v{c1}, v{c1+1}")
                        a(f"v_cvt_pk_bf16_f32 v{c0+3}, v{c1+2}, v{c1+3}")
                        if X: a(f"buffer_store_dwordx4 v[{c0}:{c0+3}], v{vO+1}, {WSR}, s{t2} offen offset:{h*64} {QSC}")
                        else: a(f"buffer_store_dwordx4 v[{c0}:{c0+3}], v{vO}, {WSR}, s{t1} offen offset:{h*256} {QSC}")
                a("s_waitcnt lgkmcnt(0)")
                for vt in range(2):
                    c0 = acc(2 * b_, 4 + vt)
                    for e_ in range(2):
                        c = acc(2 * b_ + e_, 4 + vt)
                        rs = ((244, 246), (220, 242))[e_]
                        for h2 in range(2):
                            a(f"v_pk_fma_f32 v[{c+2*h2}:{c+2*h2+1}], v[{212+4*e_+2*h2}:{213+4*e_+2*h2}], v[{208+2*vt}:{209+2*vt}], v[{c+2*h2}:{c+2*h2+1}] {BC}")
                        for h2 in range(2):
                            a(f"v_pk_mul_f32 v[{c+2*h2}:{c+2*h2+1}], v[{c+2*h2}:{c+2*h2+1}], v[{rs[h2]}:{rs[h2]+1}]")
                    c1 = acc(2 * b_ + 1, 4 + vt)
                    a(f"v_cvt_pk_bf16_f32 v{c0}, v{c0}, v{c0+1}")
                    a(f"v_cvt_pk_bf16_f32 v{c0+1}, v{c0+2}, v{c0+3}")
                    a(f"v_cvt_pk_bf16_f32 v{c0+2}, v{c1}, v{c1+1}")
                    a(f"v_cvt_pk_bf16_f32 v{c0+3}, v{c1+2}, v{c1+3}")
                    a(f"buffer_store_dwordx4 v[{c0}:{c0+3}], v{vO}, {WSR}, s{t2} offen offset:{2048 + vt*256} {QSC}")
                a(f"s_add_u32 s{t1}, s{t1}, 2048")
                a(f"s_add_u32 s{t2}, s{t2}, 4096")
            stp(a, "e1")
            a("s_waitcnt vmcnt(0)")
            a("s_barrier")
            stp(a, "e2")
            publish(92, T)
            stp(a, "e4")
            for g_ in at_load_groups(): a.extend(g_)
            srd(a, sOut, 4, 0, 0)
            for r in (sH1, sH2, t3, t4): a(f"s_mov_b32 s{r}, 0")
            at_init(); g2_setup()
            a("s_waitcnt vmcnt(2)")
    g1("ffn")
    a("L_g1_qkv:")
    g1("qkv")

    a("L_at_entry:")
    stp(a, "atentry")
    a("s_barrier")
    def rdK(t, tl):
        b = Kf[t & 1]
        return [f"ds_read_b128 v[{b}:{b+3}], v{vCur} offset:{tl*4096}", f"ds_read_b128 v[{b+4}:{b+7}], v{vCur} offset:{tl*4096+1024}"]
    def rdV(t, tl):
        b = Vf[t & 1]
        return [f"ds_read_b128 v[{b}:{b+3}], v{vCur} offset:{tl*4096+2048}", f"ds_read_b128 v[{b+4}:{b+7}], v{vCur} offset:{tl*4096+3072}"]
    def qk(x, t, c0=None):
        s = S[x]; k = Kf[t & 1]; q = Q[x]
        c = f"v[{NM[x]}:{NM[x]+15}]" if c0 is None else c0
        return [f"v_mfma_f32_32x32x16_bf16 v[{s}:{s+15}], v[{k}:{k+3}], v[{q}:{q+3}], {c}",
                f"v_mfma_f32_32x32x16_bf16 v[{s}:{s+15}], v[{k+4}:{k+7}], v[{q+4}:{q+7}], v[{s}:{s+15}]"]
    def PV(x, t, h):
        v = Vf[t & 1]
        return f"v_smfmac_f32_32x32x32_bf16 v[{O[x]}:{O[x]+15}], v[{v+4*h}:{v+4*h+3}], v[{D[x]+8*h}:{D[x]+8*h+7}], v{IDX}"
    def LS(x, h):
        return f"v_smfmac_f32_16x16x64_bf16 v[{Lr[x]}:{Lr[x]+3}], v[{ONE}:{ONE+3}], v[{D[x]+8*h}:{D[x]+8*h+7}], v{IDX}"
    a.extend(rdK(0, 0))
    a.extend(rdV(0, 0))
    a("s_waitcnt lgkmcnt(0)")
    a.extend(qk(0, 0, "0"))
    a.extend(qk(1, 0, "0"))
    a("s_nop 7")
    a("s_nop 1")
    for x in range(2):
        s0 = S[x]
        a(f"v_max3_f32 v{U}, v{s0}, v{s0+1}, v{s0+2}")
        for i in range(3, 15, 2): a(f"v_max3_f32 v{U}, v{U}, v{s0+i}, v{s0+i+1}")
        a(f"v_max_f32 v{U}, v{U}, v{s0+15}")
        a(f"v_mov_b32 v{U+2}, v{U}")
        a("s_nop 1")
        a(f"v_permlane32_swap_b32 v{U}, v{U+2}")
        a(f"v_max_f32 v{U}, v{U}, v{U+2}")
        a(f"v_sub_f32 v{NM[x]}, 0, v{U}")
        a(f"v_sub_f32 v{NM[x]+1}, 0, v{U}")
        for i in range(2, 16, 2): a(f"v_mov_b64 v[{NM[x]+i}:{NM[x]+i+1}], v[{NM[x]}:{NM[x]+1}]")
        if x == 0:
            for i in range(0, 16, 2): a(f"v_pk_add_f32 v[{s0+i}:{s0+i+1}], v[{s0+i}:{s0+i+1}], v[{NM[x]}:{NM[x]+1}]")
    a("s_nop 1")
    stp(a, "atloop")

    def acc2(tt, ft): return 128 + (tt * 4 + ft) * 4
    def ab(buf, tt): return buf * 32 + tt * 4
    def gm(v, tt, ft):
        c = acc2(tt, ft); w = WF[v & 1] + ft * 4; x = ab(v, tt)
        return f"v_mfma_f32_16x16x32_bf16 a[{c}:{c+3}], v[{w}:{w+3}], a[{x}:{x+3}], a[{c}:{c+3}]"
    def aload(buf, tt):
        r = ab(buf, tt)
        return f"buffer_load_dwordx4 a[{r}:{r+3}], v{vA[tt>>1]}, {WSR}, s{sKA} offen offset:{(tt&1)*1024} {ASC}"
    def wdma(pc):
        return f"buffer_load_dwordx4 v{vW+pc}, {R(sW)}, s{sKW} offen offset:{pc*1024} lds"
    def wread(slot, buf, ft):
        r = WF[buf] + ft * 4
        return [f"ds_read_b64_tr_b16 v[{r+2*rd}:{r+2*rd+1}], v{vWo if ft&1 else vWe} offset:{slot*4096 + rd*2048 + (ft>>1)*512}" for rd in range(2)]
    W0 = "s_waitcnt lgkmcnt(0)"
    def phase(x, t, doqk=True, f=None):
        y = 1 - x
        f = f or {}
        E = lambda i: f"v_exp_f32 v{D[x]+i}, v{S[x]+i}"
        q = qk(y, t + x) if doqk else [None, None]
        g = lambda k: f.get(k, [])
        seq = [q[0]] + g(0) + [E(0), E(1), E(2), q[1]] + g(1) + [E(3), E(4), E(5), PV(y, t - 1 + x, 1)] + g(2) + [E(6), E(7), E(8),
               LS(y, 1)] + g(3) + [E(9), E(10), PV(x, t, 0)] + g(4) + [E(11), E(12), E(13), LS(x, 0)] + g(5) + [E(14), E(15)]
        a.extend([z for z in seq if z])
    ring_adv = [f"s_add_u32 s{sMb}, s{sRing}, s{sM0k}", f"s_add_u32 s{sRing}, s{sRing}, 32768", f"s_cmp_eq_u32 s{sRing}, 98304",
                f"s_cselect_b32 s{sRing}, 0, s{sRing}"]
    kv_sel = [f"s_cmp_gt_u32 s{sCntA}, 5", f"s_cselect_b32 s{sKV+2}, 0, {SZ_KV}"]
    hq = list(parked)
    kv0 = kv_groups(2, 6)
    def it_pure(c, j, lastpure):
        t = j + 1
        k = rdK(t + 1, j); v = rdV(t + 1, j)
        fa = {0: [k[0]], 1: [k[1]], 5: [W0]}
        fb = {0: [v[0]], 1: [v[1]], 5: [W0]}
        if j == 0:
            fa[2] = [f"s_mov_b32 m0, s{sMb}", so_wrap]
            if c > 5: fa[3] = [f"s_mov_b32 s{sKV+2}, 0"]
        if j == 4:
            fa[2] = [f"s_add_u32 m0, s{sMb}, 16384", f"s_add_u32 s{sSo}, s{sSo}, 16384"]
        fa[4] = [kvdma(j)]
        if j == 7:
            fa[2] = ring_adv[0:2]; fa[3] = ring_adv[2:4]
            fb[2] = [f"s_add_u32 s{sSo}, s{sSo}, 16384"]
        if c == 0:
            if j == 4: fa[2] = []
            if j == 7: fb[2] = []
            fa[4] = []
            if j == JLD: fa[4] = [flagld(f"v{vFa}")]
            if j > JCHK:
                for f in (fa, fb):
                    for sl in (3, 4):
                        if kv0: f[sl] = f.get(sl, []) + kv0.pop(0)
        for f in (fa, fb):
            for sl in (2, 3)[:SPP]:
                if hq and 8 * c + j >= HST and not any(" lds" in z for z in f.get(sl, [])):
                    u = hq.pop(0); r = 4 * parked.index(u)
                    f[sl] = f.get(sl, []) + hstore(u, f"a[{r}:{r+(1 if u < 8 else 3)}]")
        if lastpure and j == POLLAT:
            fb[4] = fb.get(4, []) + [flagld(f"v{vFa2}")]
        return fa, fb, t
    vK = [240, 241, 242, 243]; sStep, sMask = sT[0], sT[1]
    def kvdma2(q):
        return f"buffer_load_dwordx4 v{vK[q&3]}, {R(sKV)}, s{sSo} offen offset:{(q&3)*1024} {SC} lds"
    def kv_m0(j):
        return f"s_mov_b32 m0, s{sMb}" if j < 4 else f"s_add_u32 m0, s{sMb}, 16384"
    def trip_sa(j, x):
        l = []
        if j == 0 and x == 0: l += [f"s_and_b32 s{sSo}, s{sSo}, s{sMask}"]
        if j == 3 and x == 1: l += [f"s_add_u32 s{sSo}, s{sSo}, s{sStep}"]
        if j == 7 and x == 1: l += [f"s_add_u32 s{sSo}, s{sSo}, s{sStep}"] + ring_adv
        return l
    def kstep_adv():
        return [f"s_add_u32 s{sKA}, s{sKA}, {KS*131072}", f"s_add_u32 s{sKW}, s{sKW}, {KS*65536}"]
    def it_load(j):
        t = j + 1; v = j >> 1
        for x in range(2):
            ph = 2 * (j & 1) + x
            kv = rdK(t + 1, j) if x == 0 else rdV(t + 1, j)
            tr = wread(0, 0, ph) if v == 3 else []
            sa = trip_sa(j, x)
            wait = "s_waitcnt vmcnt(28) lgkmcnt(0)" if ph == 3 else W0
            f = {0: [kv[0], kv[1]], 1: sa[0:2] + tr, 2: [f"s_add_u32 m0, s{sM0g}, {v*4096}", aload(v, 2 * ph)], 3: sa[2:] + [wdma(ph)],
                 4: ([kv_m0(j)] if x == 0 else []), 5: [wait, aload(v, 2 * ph + 1)] + ([kvdma2(j)] if x == 0 else [])}
            if ph == 3: f[5] += kstep_adv()
            if j == 7 and x == 1:
                f[4] = [f"s_add_u32 s{sCntA}, s{sCntA}, 1"]
                f[5] += ["s_barrier", f"v_add_u32 v{vCur}, s{sRing}, v{vL16}"]
            phase(x, t, f=f)
    def it_comb(j):
        t = j + 1; v = j >> 1
        for x in range(2):
            y = 1 - x
            ph = 2 * (j & 1) + x
            E = lambda i: f"v_exp_f32 v{D[x]+i}, v{S[x]+i}"
            q = qk(y, t + x)
            kv = rdK(t + 1, j) if x == 0 else rdV(t + 1, j)
            tr = wread((v + 1) & 3, (v + 1) & 1, ph)
            Gm = [gm(v, 2 * ph, ft) for ft in range(4)] + [gm(v, 2 * ph + 1, ft) for ft in range(3, -1, -1)]
            sa = trip_sa(j, x) + [None] * 5
            wait = "s_waitcnt vmcnt(28) lgkmcnt(0)" if ph == 3 else W0
            last = (j == 7 and x == 1)
            seq = [Gm[0], kv[0], kv[1], q[0], sa[0], E(0), E(1), E(2), Gm[1], sa[1], E(3), q[1], sa[2], E(4), E(5), E(6), Gm[2], sa[3], E(7),
                   PV(y, t - 1 + x, 1), tr[0], E(8), E(9), LS(y, 1), tr[1], Gm[3], sa[4], E(10), PV(x, t, 0), aload(v, 2 * ph), E(11), E(12),
                   Gm[4], f"s_add_u32 m0, s{sM0g}, {v*4096}", E(13), LS(x, 0), wdma(ph), Gm[5],
                   kv_m0(j) if x == 0 else (f"s_add_u32 s{sCntA}, s{sCntA}, 1" if last else None), E(14), Gm[6], wait,
                   "s_barrier" if last else None, E(15), Gm[7], aload(v, 2 * ph + 1), kvdma2(j) if x == 0 else None]
            if CPF and j == 2 and x == 1: seq.append(f"global_load_dwordx4 v[{U+4}:{U+7}], v[248:249], off")
            if ph == 3: seq += kstep_adv()
            if last: seq += [f"v_add_u32 v{vCur}, s{sRing}, v{vL16}", f"s_bitcmp1_b32 {0x1c0 if L2T == 7 else 0x140}, s{sCntA}"]
            a.extend([z for z in seq if z])

    NPURE = 7 - NC
    seqs = []
    for c in range(NPURE):
        for j in range(1 if c == 0 else 0, 8):
            seqs.append((c, j) + it_pure(c, j, c == NPURE - 1))
    assert not hq and not kv0
    log = []
    def younger(pred):
        idx = [i for i, tag in enumerate(log) if pred(tag)]
        return len(log) - 1 - idx[-1] if idx else len(log)
    for (c, j, fa, fb, t) in seqs:
        for f in (fa, fb):
            for sl in range(5):
                for z in f.get(sl, []):
                    if z.startswith("buffer_"):
                        log.append("kv%d" % (sum(1 for g in log if g.startswith("kv")) // 8 - 1) if " lds" in z else ("st" if "store" in z else "poll"))
        need = 63
        pub = (8 * c + j == PUBAT)
        if j == 7: need = min(need, younger(lambda g: g == "kv%d" % (c - 1)))
        if pub: need = min(need, younger(lambda g: g == "st"))
        if j == 7 or pub:
            fb[5] = [f"s_waitcnt vmcnt({need}) lgkmcnt(0)", "s_barrier"]
            if j == 7: fb[5].append(f"v_add_u32 v{vCur}, s{sRing}, v{vL16}")
        phase(0, t, f=fa)
        phase(1, t, f=fb)
        if c == 0 and j == JCHK:
            a(f"s_waitcnt vmcnt({younger(lambda g: g == 'poll')})")
            poll(f"v{vFa}", True)
            stp(a, "fqok")
        if pub:
            assert log.count("st") == len(parked)
            a(f"s_cmp_eq_u32 s{sPub}, 0")
            a("s_cbranch_scc1 L_at_np")
            publish(sPub, U)
            a("L_at_np:")
    stp(a, "pureend")
    a(f"s_mov_b32 s{sCntA}, {NPURE}")
    for q in range(4): a(f"v_mov_b32 v{vK[q]}, v{vDma}")
    a(f"s_mov_b32 s{sStep}, 16384")
    a(f"s_mov_b32 s{sMask}, {SZ_KV - 1}")
    a(f"s_waitcnt vmcnt({younger(lambda g: g == 'poll')})")
    poll(f"v{vFa2}", True)
    stp(a, "fhok")
    for j in range(8): it_load(j)
    if NC:
        stp(a, "cb0")
        a(".p2align 6")
        a("L_cb_loop:")
        for j in range(8): it_comb(j)
        a("s_cbranch_scc0 L_cb_loop")
        a(f"s_cmp_eq_u32 s{sCntA}, 6")
        a("s_cbranch_scc1 L_cb_sw")
        if L2T == 7:
            a(f"s_cmp_eq_u32 s{sCntA}, 7")
            a("s_cbranch_scc1 L_cb_t")
        o = Asm(); sv = a.lines; a.lines = o.lines
        a("L_cb_sw:")
        for q in range(4): a(f"v_mov_b32 v{vK[q]}, v{vW+q}")
        srd(a, sKV, pWO, 0, 1024 * 2048)
        a(f"s_lshl_b32 s{sSo}, s{sWave}, {19 if KQ else 16}")
        a(f"s_mov_b32 s{sStep}, {KS*65536}")
        a(f"s_mov_b32 s{sMask}, -1")
        if L2T != 6: a("s_branch L_cb_loop")
        if L2T:
            assert KQ and G2MAP == 0
            a("L_cb_t:")
            a(f"v_and_b32 v{U}, 31, v{L}")
            a(f"v_lshlrev_b32 v{U+1}, 11, v{U}")
            a(f"v_lshlrev_b32 v{U}, 7, v{U}")
            a(f"s_and_b32 s{t0}, s{sSlot}, 3")
            a(f"s_lshl_b32 s{t1}, s{sCb}, 7")
            a(f"s_mul_i32 s{t2}, s{sWave}, 28")
            a(f"s_add_u32 s{t2}, s{t2}, 24")
            a(f"s_add_u32 s{t3}, s{t2}, s{t0}")
            a(f"s_lshl_b32 s{t3}, s{t3}, 16")
            a(f"s_add_u32 s{t3}, s{t3}, s{t1}")
            a(f"buffer_load_dword v{U+3}, v{U+1}, {R(sW)}, s{t3} offen")
            a(f"s_lshr_b32 s{t3}, s{sSlot}, 3")
            a(f"s_add_u32 s{t2}, s{t2}, s{t3}")
            a(f"s_lshl_b32 s{t2}, s{t2}, 17")
            a(f"s_lshl_b32 s{t3}, s{sRb2}, 13")
            a(f"s_add_u32 s{t2}, s{t2}, s{t3}")
            a(f"s_and_b32 s{t3}, s{sSlot}, 4")
            a(f"s_lshl_b32 s{t3}, s{t3}, 10")
            a(f"s_add_u32 s{t2}, s{t2}, s{t3}")
            a(f"s_add_u32 s{t2}, s{t2}, {WS_A2 + 32*131072}")
            a(f"buffer_load_dword v{U+3}, v{U}, {WSR}, s{t2} offen sc1")
            a(f"s_lshl_b32 s{t2}, s{sWave}, 3")
            a(f"s_add_u32 s{t2}, s{t2}, s{t0}")
            a(f"s_add_u32 s{t2}, s{t2}, 4")
            a(f"s_lshl_b32 s{t2}, s{t2}, 16")
            a(f"s_add_u32 s{t2}, s{t2}, s{t1}")
            a(f"buffer_load_dword v{U+3}, v{U+1}, {R(sKV)}, s{t2} offen")
            srd(a, sX, pX, 0, 4 * MB)
            a(f"s_lshl_b32 s{t2}, s{sRb2}, 2")
            a(f"s_add_u32 s{t2}, s{t2}, s{sWave}")
            a(f"s_lshl_b32 s{t2}, s{t2}, 16")
            a(f"s_add_u32 s{t2}, s{t2}, s{t1}")
            a(f"buffer_load_dword v{U+3}, v{U+1}, {R(sX)}, s{t2} offen")
            a("s_branch L_cb_loop")
        ool.extend([z.text for z in o.lines]); a.lines = sv
    stp(a, "cb1")
    phase(0, 63)
    phase(1, 63, doqk=False)
    a("s_nop 1")
    a(PV(1, 63, 1)); a(LS(1, 1))
    stp(a, "atend")
    a(f"v_bfe_u32 v{U+2}, v{L}, 4, 1")
    a(f"v_lshlrev_b32 v{U+2}, 10, v{U+2}")
    a(f"v_lshrrev_b32 v{U+3}, 5, v{L}")
    a(f"v_lshl_add_u32 v{U+2}, v{U+3}, 8, v{U+2}")
    a(f"v_and_b32 v{U+3}, 15, v{L}")
    a(f"v_lshl_add_u32 v{U+2}, v{U+3}, 4, v{U+2}")
    a(f"s_lshr_b32 s{t0}, s{sRb2}, 1")
    a(f"s_lshl_b32 s{t0}, s{t0}, 8")
    a(f"s_add_u32 s{t0}, s{t0}, {WS_FL + FO}")
    a(f"v_and_b32 v{U+3}, 31, v{L}")
    a(f"v_lshl_add_u32 v{vFa2}, v{U+3}, 3, s{t0}")
    a(f"s_add_u32 s{sQO}, s{sQO}, {WS_A2 - WS_Q}")
    a(f"s_mov_b32 s{t0}, {f2u(2.0**40):#x}")
    a(f"v_pk_mul_f32 v[{U}:{U+1}], v[{O[0]}:{O[0]+1}], 0 op_sel_hi:[1,0]")
    for i in range(2, 32, 2):
        a(f"v_pk_fma_f32 v[{U}:{U+1}], v[{O[0]+i}:{O[0]+i+1}], 0, v[{U}:{U+1}] op_sel_hi:[1,0,1]")
    a(f"v_add_f32 v{U}, v{U}, v{U+1}")
    a(f"v_add3_u32 v{U+1}, 0, 0, 0") if False else None
    a(f"v_add_f32 v{U+1}, v{Lr[0]}, v{Lr[1]}")
    a(f"v_add_f32 v{U}, v{U}, v{U+1}")
    a(f"v_cmp_ngt_f32 vcc, s{t0}, v{U}")
    a("s_nop 1")
    a("s_cbranch_vccnz L_at_slow")
    a("L_at_fin:")
    for x in range(2):
        a(f"v_rcp_f32 v{U}, v{Lr[x]}")
        a("s_nop 0")
        a(f"v_mul_f32 v{U}, v{U}, v{vSig+x}")
        for i in range(0, 16, 2): a(f"v_pk_mul_f32 v[{O[x]+i}:{O[x]+i+1}], v[{O[x]+i}:{O[x]+i+1}], v[{U}:{U+1}] op_sel_hi:[1,0]")
        for u in range(2):
            for e in range(2):
                c = O[x] + 8 * e + 4 * u
                a(f"v_cvt_pk_bf16_f32 v{D[x]+4*u+2*e}, v{c}, v{c+1}")
                a(f"v_cvt_pk_bf16_f32 v{D[x]+4*u+2*e+1}, v{c+2}, v{c+3}")
            a(f"buffer_store_dwordx4 v[{D[x]+4*u}:{D[x]+4*u+3}], v{U+2}, {WSR}, s{sQO} offen offset:{x*2048+u*512} {SC}")

    assert 2 < NC <= 5
    S0 = 4 * NC
    X = 112; WF8 = [0, 16, 32, 48, 64, 80, 96, 128]
    vE = [220, 221, 236, 237]; vRd = [233, 234, 235]; vRw = 238; vXs = 239
    ol = ["old"] + ["ost"] * 4
    def need2(*tags):
        idx = [i for i, t in enumerate(ol) if t in tags or t == "old"]
        return min(63, len(ol) - 1 - idx[-1])
    def abuf(s_, tt):
        r = ab(s_ & 3, tt) if s_ < 28 else ab(tt & 3, s_ - 28)
        return f"a[{r}:{r+3}]"
    def wfr(s_): return WF8[s_ - 28] if s_ >= 28 else WF[s_ & 1]
    def gm2(s_, tt, ft):
        c = acc2(tt, ft); w = wfr(s_) + ft * 4
        return f"v_mfma_f32_16x16x32_bf16 a[{c}:{c+3}], v[{w}:{w+3}], {abuf(s_, tt)}, a[{c}:{c+3}]"
    def wloc(s_):
        if s_ < 28: return ("r", s_ & 3)
        return ("e", (4, 5, 0, 1, 2, 3)[s_ - 28]) if s_ < 34 else ("r", s_ - 34)
    def wrd(s_):
        k, sl = wloc(s_); l = []
        for ft in range(4):
            r = wfr(s_) + ft * 4
            if k == "r": v = vWo if ft & 1 else vWe; o = sl * 4096
            else: v = vE[(ft & 1) + 2 * (sl >> 2)]; o = (sl & 3) * 16384
            l += [f"ds_read_b64_tr_b16 v[{r+2*rd}:{r+2*rd+1}], v{v} offset:{o + rd*2048 + (ft>>1)*512}" for rd in range(2)]
        return l
    def wld(s_):
        k, sl = wloc(s_)
        g = [([f"s_add_u32 m0, s{sM0g}, {sl*4096}" if k == "r" else f"s_add_u32 m0, s{sM0k}, {sl*16384}"], None)]
        for pc in range(4):
            g.append(([f"buffer_load_dwordx4 v{vW+pc}, {R(sW if s_ < 28 else sKV)}, s{sKW if s_ < 28 else sSo} offen offset:{pc*1024} lds"], f"W{s_}"))
        g.append(([f"s_add_u32 s{sKW if s_ < 28 else sSo}, s{sKW if s_ < 28 else sSo}, {KS*65536}"], None))
        return g
    sO4 = [t0, t1, t2, t3, 88, 89, 90, 91]
    def ald(s_, tt):
        so = sO4[s_ - 28] if s_ >= 28 else sKA
        return ([f"buffer_load_dwordx4 {abuf(s_, tt)}, v{vA[tt>>1]}, {WSR}, s{so} offen offset:{(tt&1)*1024} {ASC}"], f"A{s_}_{tt}")
    def order(s_): return [(tt, ft) for tt in range(8) for ft in (range(4) if tt % 2 == 0 else range(3, -1, -1))]
    def emit(m, vm_groups, pos, ds=(), misc=(), bud=8, ds2=(), wr=()):
        for g, tag in vm_groups:
            if tag: ol.append(tag)
        sds = [(8 + 2 * i, x) for i, x in enumerate(ds)] + [((i * 26) // max(1, len(ds2)), x) for i, x in enumerate(ds2)] + list(wr)
        a.extend(sched(m, [[(p, g) for p, (g, tag) in zip(pos, vm_groups)], sds, list(misc)], bud))
    def begin(s_):
        stp(a, f"s{s_}")
        a(f"s_waitcnt vmcnt({need2(*([f'A{s_}_{tt}' for tt in range(8)] + [f'W{s_+1}']))}) lgkmcnt(0)")
    e = Asm(); sv = a.lines; a.lines = e.lines
    a(f"s_sub_u32 s{t4}, s{sM0k}, s{sM0g}")
    a(f"v_add_u32 v{vE[0]}, s{t4}, v{vWe}")
    a(f"v_add_u32 v{vE[1]}, s{t4}, v{vWo}")
    a(f"v_add_u32 v{vE[2]}, 0x10000, v{vE[0]}")
    a(f"v_add_u32 v{vE[3]}, 0x10000, v{vE[1]}")
    srd(a, sX, pX, 0, 4 * MB)
    srd(a, sOut, pOut, 0, 4 * MB)
    a(f"s_mov_b32 s{sPf}, 32768")
    a(f"s_lshl_b32 s{t4}, s{sRb2}, 7")
    a(f"s_lshl_b32 s{t5}, s{sWave}, 5")
    a(f"s_add_u32 s{t4}, s{t4}, s{t5}")
    a(f"s_lshl_b32 s{sH1}, s{t4}, 2")
    a(f"s_add_u32 s{sH1}, s{sH1}, {WS_STAT + 8192}")
    a(f"s_lshl_b32 s{t4}, s{t4}, 11")
    a(f"s_lshl_b32 s{t5}, s{sCb}, 7")
    a(f"s_add_u32 s{t4}, s{t4}, s{t5}")
    el1 = [x.text for x in e.lines]; e = Asm(); a.lines = e.lines
    a(f"v_and_b32 v{vRw}, 15, v{L}")
    a(f"v_lshl_add_u32 v{vX}, v{vRw}, 11, s{t4}")
    a(f"v_lshlrev_b32 v{vRd[0]}, 2, v{vRw}")
    a(f"v_bfe_u32 v{vRw}, v{L}, 4, 1")
    a(f"v_lshl_add_u32 v{vXs}, v{vRw}, 5, v{vX}")
    a(f"v_lshrrev_b32 v{vRw}, 5, v{L}")
    a(f"v_lshl_add_u32 v{vXs}, v{vRw}, 4, v{vXs}")
    a(f"v_add_u32 v{vRw}, s{sM0k}, v{vL16}")
    el2 = [x.text for x in e.lines]; e = Asm(); a.lines = e.lines
    for pi in range(3):
        a(f"s_sub_u32 s{t4}, s{sWave}, {pi + 1}")
        a(f"s_and_b32 s{t4}, s{t4}, 3")
        a(f"s_lshl_b32 s{t4}, s{t4}, 12")
        a(f"s_add_u32 s{t4}, s{t4}, {pi * 32768}")
        a(f"v_add_u32 v{vRd[pi]}, s{t4}, v{vL16}")
    a(f"s_lshl_b32 s{t4}, s{sWave}, {20 if KQ else 17}")
    for i in range(8): a(f"s_add_u32 s{sO4[i]}, s{t4}, {WS_A2 + i * KS * 131072}")
    el3 = [x.text for x in e.lines]; a.lines = sv
    def grp(l):
        out = []
        for z in l:
            if z.split()[0] in ("s_addc_u32", "s_subb_u32"): out[-1].append(z)
            else: out.append([z])
        return out
    for s_ in range(S0, 24):
        if s_ == S0: stp(a, "s20")
        begin(s_) if s_ > S0 else a("s_waitcnt lgkmcnt(0)")
        vg = wld(s_ + 4) + [ald(s_ + 4, tt) for tt in range(8)] + [([f"s_add_u32 s{sKA}, s{sKA}, {KS*131072}"], None)]
        pos = [0, 1, 2, 3, 4, 5] + [max(4 * tt + 3, 6 + tt) for tt in range(8)] + [31]
        misc = {S0: grp(el1), S0 + 1: grp(el2)}.get(s_, [])
        emit([gm2(s_, tt, ft) for tt, ft in order(s_)], vg, pos, wrd(s_ + 1), [(i + 1, g) for i, g in enumerate(misc)])
        if s_ == S0 + PUBSTEP:
            stp(a, "pb")
            a(f"s_waitcnt vmcnt({need2('ost')})")
            a("s_barrier")
            publish(93, 184)
        elif s_ < 20 + PUBSTEP:
            pass
    q = []
    for s_ in range(32, 36): q += wld(s_)
    xl = [([f"buffer_load_dwordx4 v[{X+(h*2+p)*4}:{X+(h*2+p)*4+3}], v{vXs}, {R(sX)}, {'0' if h == 0 else f's{sPf}'} offen offset:{p*64}"], "x")
          for h in range(2) for p in range(2)]
    xl += [([f"buffer_load_dword v{vRs2+h}, v{vRd[0]}, {WSR}, s{sH1} offen offset:{h*64} sc1"], "x") for h in range(2)]
    q = xl + q
    k = [i for i, (g, tag) in enumerate(q) if tag][POLLW]
    q.insert(k, ([flagld(f"v{vFa2}")], "poll"))
    def orow(tt): return [ald(s_, tt) for s_ in range(28, 36)]
    nq = CHK - 23
    per = (len(q) + nq - 1) // nq
    assert per >= 19 or nq > 1
    for s_ in range(24, 28):
        begin(s_)
        if s_ <= CHK: vg = q[:per]; q = q[per:]
        else: vg = orow(s_ - CHK - 1)
        ds = (wrd(s_ + 1) if s_ < 27 else []) + wrd(s_ + 4)
        emit([gm2(s_, tt, ft) for tt, ft in order(s_)], vg, [(i * 30) // len(vg) for i in range(len(vg))], [],
             [(i + 1, g) for i, g in enumerate(grp(el3))] if s_ == 25 else [], ds2=ds)
        if s_ == CHK:
            stp(a, "fopoll")
            a(f"s_waitcnt vmcnt({need2('poll')})")
            poll(f"v{vFa2}", True)
            stp(a, "fook")
    nrow = 27 - CHK
    for tt in range(nrow, 3):
        for g, tag in orow(tt): a.extend(g); ol.append(tag)
    a(f"s_waitcnt vmcnt({need2('W35')})")
    for s_ in range(32, 36): a.extend(wrd(s_))
    XF = 144; RB = [176, 0, 32]
    unp = [f"v_permlane16_swap_b32 v{X+4*i+j}, v{X+4*i+j+2}" for i in range(4) for j in range(2)]
    for i in range(16):
        unp += [f"v_lshlrev_b32 v{XF+2*i}, 16, v{X+i}", f"v_and_b32 v{XF+2*i+1}, 0xffff0000, v{X+i}"]
    for tt in range(8):
        stp(a, f"r{tt}")
        a(f"s_waitcnt vmcnt({need2(f'A35_{tt}')})" + (" lgkmcnt(0)" if tt == 0 else ""))
        m = [gm2(s_, tt, ft) for s_ in range(28, 36) for ft in (range(4) if s_ % 2 == 0 else range(3, -1, -1))]
        vg = orow(tt + 3) if tt + 3 < 8 else []
        wr = []
        if 1 <= tt <= 6:
            pt = tt - 1
            wr = [(8 + 4 * ft, f"ds_write_b128 v{vRw}, a[{acc2(pt, ft)}:{acc2(pt, ft)+3}] offset:{(pt & 3)*16384 + ft*1024}") for ft in range(4)]
            if pt == 3: wr.append((24, f"v_add_u32 v{vRw}, 0x10000, v{vRw}"))
        if tt == 6: wr.append((31, ["s_waitcnt lgkmcnt(0)", "s_barrier"]))
        mi = [(2 * i, z) for i, z in enumerate(unp[10 * tt:10 * tt + 10])] if tt < 4 else []
        if tt == 7:
            wr = [(8 * pi + i + (1 if pi else 0), f"ds_read_b128 v[{RB[pi]+4*i}:{RB[pi]+4*i+3}], v{vRd[pi]} offset:{(i >> 2)*16384 + (i & 3)*1024}")
                  for pi in range(3) for i in range(8)]
            mi = [(10 + i, f"v_accvgpr_read_b32 v{112+i}, a{acc2(6, 0)+i}") for i in range(16)]
        emit(m, vg, [4 * i + 1 for i in range(len(vg))], [], mi, ds2=[], wr=wr)
    stp(a, "g2end")
    a("s_waitcnt lgkmcnt(0)")
    for i in range(8):
        o_ = 112 + 4 * i if i < 4 else 64 + 4 * i
        if i == 2:
            for j in range(16): a(f"v_accvgpr_read_b32 v{80+j}, a{acc2(7, 0)+j}")
        for j in (0, 2): a(f"v_pk_add_f32 v[{RB[0]+4*i+j}:{RB[0]+4*i+j+1}], v[{RB[0]+4*i+j}:{RB[0]+4*i+j+1}], v[{RB[1]+4*i+j}:{RB[1]+4*i+j+1}]")
        for j in (0, 2): a(f"v_pk_add_f32 v[{o_+j}:{o_+j+1}], v[{o_+j}:{o_+j+1}], v[{RB[2]+4*i+j}:{RB[2]+4*i+j+1}]")
        for j in (0, 2): a(f"v_pk_add_f32 v[{o_+j}:{o_+j+1}], v[{o_+j}:{o_+j+1}], v[{RB[0]+4*i+j}:{RB[0]+4*i+j+1}]")
        sel = "op_sel_hi:[1,0,1]" if i < 4 else "op_sel:[0,1,0]"
        for j in (0, 2): a(f"v_pk_fma_f32 v[{o_+j}:{o_+j+1}], v[{o_+j}:{o_+j+1}], v[{vRs2}:{vRs2+1}], v[{XF+4*i+j}:{XF+4*i+j+1}] {sel}")
        a(f"v_cvt_pk_bf16_f32 v{128+2*i}, v{o_}, v{o_+1}")
        a(f"v_cvt_pk_bf16_f32 v{128+2*i+1}, v{o_+2}, v{o_+3}")
        if i & 1:
            r = 128 + 2 * (i - 1)
            a("s_nop 1")
            a(f"v_permlane16_swap_b32 v{r}, v{r+2}")
            a(f"v_permlane16_swap_b32 v{r+1}, v{r+3}")
            a(f"buffer_store_dwordx4 v[{r}:{r+3}], v{vXs}, {R(sOut)}, {'0' if i < 4 else f's{sPf}'} offen offset:{((i>>1)&1)*64} {OSC}")
    stp(a, "outst")
    if DBGST:
        n = len(STAMPS) + 1
        a("s_waitcnt vmcnt(0)")
        stamp(a, n - 1)
        a(f"s_cmp_lg_u32 s2, {DBGST - 1}")
        a("s_cbranch_scc1 L_end")
        a(f"s_cmp_lg_u32 s{sWave}, 0")
        a("s_cbranch_scc1 L_end")
        a("s_waitcnt lgkmcnt(0)")
        srd(a, 88, pDbg, 0, 256)
        for i in range(n):
            a(f"s_sub_u32 s92, s{60+2*i}, s60")
            a(f"v_mov_b32 v1, s92")
            a(f"buffer_store_dword v1, off, s[88:91], 0 offset:{4*i}")
    else:
        stamp_flush(a, 1, len(STAMPS) + 1, 0)
    a("L_end:")
    a("s_endpgm")
    a("L_at_slow:")
    a(f"s_lshl_b32 s{t5}, s{sHead}, 18")
    a(f"s_add_u32 s{t5}, s{t5}, {WS_KV}")
    for x in range(2): a(f"v_mov_b32 v{NM[x]}, 0xff800000")
    for i in range(40): a(f"v_mov_b32 v{O[0]+i}, 0")
    a(f"s_mov_b32 s{sCntA}, 0")
    a("L_at_sloop:")
    k = Kf[0]; v = Vf[0]
    a(f"buffer_load_dwordx4 v[{k}:{k+3}], v{vL16}, {WSR}, s{t5} offen {SC}")
    a(f"buffer_load_dwordx4 v[{k+4}:{k+7}], v{vL16}, {WSR}, s{t5} offen offset:1024 {SC}")
    a(f"buffer_load_dwordx4 v[{v}:{v+3}], v{vL16}, {WSR}, s{t5} offen offset:2048 {SC}")
    a(f"buffer_load_dwordx4 v[{v+4}:{v+7}], v{vL16}, {WSR}, s{t5} offen offset:3072 {SC}")
    a("s_waitcnt vmcnt(0)")
    for x in range(2):
        M = NM[x]; AL = NM[x] + 1; MN = NM[x] + 2; s = S[x]
        a.extend(qk(x, 0, "0"))
        a("s_nop 15")
        a(f"v_max3_f32 v{U}, v{s}, v{s+1}, v{s+2}")
        for i in range(3, 15, 2): a(f"v_max3_f32 v{U}, v{U}, v{s+i}, v{s+i+1}")
        a(f"v_max_f32 v{U}, v{U}, v{s+15}")
        a(f"v_mov_b32 v{U+1}, v{U}")
        a("s_nop 1")
        a(f"v_permlane32_swap_b32 v{U}, v{U+1}")
        a(f"v_max3_f32 v{MN}, v{U}, v{U+1}, v{M}")
        a(f"v_sub_f32 v{AL}, v{M}, v{MN}")
        a(f"v_exp_f32 v{AL}, v{AL}")
        a(f"v_mov_b32 v{M}, v{MN}")
        for i in range(16): a(f"v_sub_f32 v{s+i}, v{s+i}, v{MN}")
        for i in range(16): a(f"v_exp_f32 v{D[x]+i}, v{s+i}")
        for i in range(16): a(f"v_mul_f32 v{O[x]+i}, v{O[x]+i}, v{AL}")
        a(f"v_mul_f32 v{Lr[x]}, v{Lr[x]}, v{AL}")
        a("s_nop 1")
        a(LS(x, 0)); a(LS(x, 1))
        a(PV(x, 0, 0)); a(PV(x, 0, 1))
        a("s_nop 15")
    a(f"s_add_u32 s{t5}, s{t5}, 4096")
    a(f"s_add_u32 s{sCntA}, s{sCntA}, 1")
    a(f"s_cmp_lt_u32 s{sCntA}, 64")
    a("s_cbranch_scc1 L_at_sloop")
    a("s_branch L_at_fin")
    a.extend(ool)
    a(".p2align 4")
    a("L_code_end:")
    return a, descriptor(name, 512, 256, 102)

if __name__ == "__main__":
    path = sys.argv[1] if len(sys.argv) > 1 else "cdna_kernels/" + NAME + ".s"
    a, d = gen_main()
    ref = open(os.path.join(os.path.dirname(os.path.abspath(__file__)), "..", "cdna_kernels", NAME + ".s.ref")).read()
    head = [l for l in ref.split("\n") if l.startswith(";") and "@launch" not in l and "Override" not in l and "grid=ceil" not in l]
    out = "\n".join(head) + "\n; @launch grid=(256,1,1) block=(256,1,1) lds=163840\n"
    out += '.amdgcn_target "amdgcn-amd-amdhsa--gfx950"\n.text\n' + a.text() + '.section .rodata,"a"\n.p2align 6\n' + d
    open(path, "w").write(out)
    probs = a.check("main")
    for p in probs: print("HAZARD", p)
    print("written", path, "hazards:", len(probs))
```

```python
import sys, os
sys.path.insert(0, os.path.dirname(os.path.abspath(__file__)))
from asmdsl import Asm, weave, sched
from gen import (NAME, KA_X, KA_WQKV, KA_WO, KA_W1, KA_W2, KA_OUT, KA_DBG, KA_WS, MB, f2u, srd, header, descriptor,
                 stamp, stamp_flush, STAMP, xreduce, bf16round, QSCALE)

def env(k, d): return type(d)(os.environ.get(k, d))
WS_Q, WS_KV, WS_A2 = 4 * MB, 8 * MB, 16 * MB
SZ_KV = 262144
WS_FL = 0
FQ, FH, FO, F0 = 0, 2048, 4096, 8192
WS_STAT = 16384
WS_CS = 65536
WS_END = 35 * MB
LDS_W1 = 98304
LDS_SCR = 90112
NC = env("NC", 5); ND = env("ND", 2); SPP = env("SPP", 2); PUBAT = env("PUBAT", 10); POLLAT = env("POLLAT", 5)
L2T = env("L2T", 0); TPF = env("TPF", 0); PNT = env("PNT", ""); CPF = env("CPF", 2); QPLAIN = env("QPLAIN", 0); WNT = env("WNT", ""); PFG1 = env("PFG1", 1); DMAF = env("DMAF", 0.6); RDF = env("RDF", 0.75); BUD = env("BUD", 4)
POLLSTEP = env("POLLSTEP", 2); PUBSTEP = env("PUBSTEP", 0); DBGST = env("DBGST", 0); JLD = env("JLD", 1); JCHK = env("JCHK", 3); POLLW = env("POLLW", 8); CHK = env("CHK", 25); HST = env("HST", 0); EPOLL = env("EPOLL", 31); ELEAD = env("ELEAD", 10)
WARM = env("WARM", 1); KVD = env("KVD", 1); HALF = env("HALF", 1); OWN = env("OWN", 1); XB = env("XB", 0); OSC = env("OSC", "sc1"); PRO = env("PRO", 1); XPOS = env("XPOS", 1); XNT = env("XNT", ""); KQ = env("KQ", 1); KS = 1 if KQ else 4; SC = "sc1"; ASC = env("ASC", "sc1"); G2MAP = env("G2MAP", 0)
STAMPS = env("STAMPS", "start,g1loop,g1end,e4,atentry,atloop,pureend,fhok,atend,fopoll,fook,g2end,outst").split(",")
def stp(a, name):
    if name in STAMPS: stamp(a, STAMPS.index(name))

def gen_main():
    a = Asm()
    name = NAME + "_kernel"
    header(a, name)
    sWS, sW, sKV, sX, sOut = 8, 12, 16, 20, 24
    pW1, pW2, pWO, pX, pOut, pDbg = 28, 30, 32, 34, 36, 38
    sWave, sXcd, sSlot = 40, 41, 42
    sKA, sKW, sM0A, sM0W, sCnt, sWr, sWc, sRb, sCt = 43, 44, 45, 46, 47, 48, 49, 50, 51
    t0, t1, t2, t3, t4, t5 = 52, 53, 54, 55, 56, 57
    sPf = 58; sN = 6; sT = [3, 47, 51]
    sSo, sM0k, sCntA, sRing, sMb, sQO, sHead, sPub = 94, 95, 96, 97, 98, 99, 100, 101
    sAw, sArd, sCs, sTile = 96, 97, 98, 101
    sM0g, sRb2, sCb, sH1, sH2 = 45, 46, 48, 49, 50
    WSR = f"s[{sWS}:{sWS+3}]"
    def R(s): return f"s[{s}:{s+3}]"
    vAd, vWd, vAr, vArB, vWe1, vWo1, vWs1 = 224, 228, 232, 234, 235, 236, 237
    T = 238
    L, vL16, vDma, vFa, vFl = 250, 251, 252, 253, 254
    ST = 224; vO = 240
    Q = [0, 8]; S = [16, 32]; NM = [48, 64]; O = [80, 96]; Lr = [112, 116]; D = [120, 136]
    Kf = [152, 160]; Vf = [168, 176]; ONE = 184; WF = [188, 204]
    vCur, IDX, vW, vWe, vWo, vFa2, vX = 220, 221, 224, 228, 229, 230, 231
    vA = [222, 223, 246, 247]
    U = 232; vSig = 244; vRs2 = 244
    lab = [0]
    def flagld(areg, srdr=WSR):
        return f"buffer_load_dwordx2 v[{vFl}:{vFl+1}], {areg}, {srdr}, 0 {'offen' if areg != 'off' else ''} sc1"
    def poll(areg, first_done, srdr=WSR, val=f"s[{sN}:{sN+1}]", cmp="ne", mask=None):
        n = lab[0]; lab[0] += 1
        a(f"s_mov_b32 s{t5}, 0")
        if first_done: a(f"s_branch L_pc{n}")
        a(f"L_pl{n}:")
        a(flagld(areg, srdr))
        a("s_waitcnt vmcnt(0)")
        a(f"L_pc{n}:")
        a(f"v_cmp_{cmp}_u64 vcc, {val}, v[{vFl}:{vFl+1}]")
        a(f"s_add_u32 s{t5}, s{t5}, 1")
        if mask:
            a(f"s_and_b64 vcc, vcc, {mask}")
            a(f"s_cbranch_scc0 L_pd{n}")
        else:
            a("s_nop 0")
            a(f"s_cbranch_vccz L_pd{n}")
        a("s_sleep 1")
        a(f"s_cmp_lt_u32 s{t5}, 0x40000")
        a(f"s_cbranch_scc1 L_pl{n}")
        a(f"L_pd{n}:")
    def publish(soff_reg, tmp):
        n = lab[0]; lab[0] += 1
        a(f"s_cmp_lg_u32 s{sWave}, 0")
        a(f"s_cbranch_scc1 L_pb{n}")
        a(f"v_mov_b32 v{tmp}, s{sN}")
        a(f"v_mov_b32 v{tmp+1}, s{sN+1}")
        a(f"buffer_store_dwordx2 v[{tmp}:{tmp+1}], off, {WSR}, s{soff_reg} sc1")
        a(f"L_pb{n}:")

    a("s_cmp_ge_u32 s2, 256")
    a("s_cbranch_scc1 L_end")
    stp(a, "start")
    a(f"s_load_dwordx2 s[{pX}:{pX+1}], s[0:1], {KA_X}")
    a(f"s_load_dwordx2 s[6:7], s[0:1], {KA_WQKV}")
    a(f"s_load_dwordx4 s[{pW1}:{pW1+3}], s[0:1], {KA_W1}")
    a(f"s_load_dwordx2 s[4:5], s[0:1], {KA_WS}")
    a(f"s_load_dwordx2 s[{pWO}:{pWO+1}], s[0:1], {KA_WO}")
    a(f"s_load_dwordx4 s[{pOut}:{pOut+3}], s[0:1], {KA_OUT}")
    a("s_memrealtime s[92:93]")
    a(f"v_lshrrev_b32 v{T}, 6, v0")
    a(f"v_and_b32 v{L}, 63, v0")
    a(f"v_readfirstlane_b32 s{sWave}, v{T}")
    a(f"v_lshlrev_b32 v{vL16}, 4, v{L}")
    a(f"s_and_b32 s{sXcd}, s2, 7")
    if STAMP: a(f"s_mov_b32 s59, s{sWave}")
    a(f"s_lshr_b32 s{sSlot}, s2, 3")
    a(f"s_and_b32 s{sRb}, s{sSlot}, 7")
    a(f"s_lshr_b32 s{sCt}, s{sSlot}, 3")
    a(f"s_lshr_b32 s{sWr}, s{sWave}, 1")
    a(f"s_and_b32 s{sWc}, s{sWave}, 1")
    a(f"v_bfe_u32 v3, v{L}, 2, 1")
    a(f"v_lshl_add_u32 v3, v{T}, 1, v3")
    a(f"s_lshl_b32 s{t0}, s2, 3")
    a(f"v_add_u32 v3, s{t0}, v3")
    a(f"v_and_b32 v4, 3, v{L}")
    a(f"v_lshrrev_b32 v5, 3, v{L}")
    a("v_lshlrev_b32 v6, 11, v3")
    a("v_lshl_add_u32 v6, v5, 6, v6")
    a("v_lshl_add_u32 v6, v4, 4, v6")
    a(f"v_lshrrev_b32 v{T+1}, 4, v{L}")
    a(f"v_and_b32 v{T+2}, 7, v{L}")
    a(f"v_xor_b32 v{T+2}, v{T+2}, v{T+1}")
    a(f"v_lshlrev_b32 v{T+2}, 4, v{T+2}")
    a(f"v_lshl_add_u32 v{T+2}, v5, 11, v{T+2}")
    a(f"s_lshl_b32 s{t0}, s{sRb}, 19")
    a(f"s_lshl_b32 s{t1}, s{sWave}, 17")
    a(f"s_add_u32 s{t0}, s{t0}, s{t1}")
    a(f"v_add_u32 v{vAd}, s{t0}, v{T+2}")
    a(f"v_xor_b32 v{vAd+1}, 64, v{vAd}")
    a(f"v_add_u32 v{vAd+3}, {3*15360}, v{vAd+1}")
    a(f"v_add_u32 v{vAd+1}, 15360, v{vAd+1}")
    a(f"v_add_u32 v{vAd+2}, {2*15360}, v{vAd}")
    a(f"s_lshl_b32 s{sM0A}, s{sWave}, 13")
    a(f"s_lshl_b32 s{sM0W}, s{sWave}, 12")
    a(f"s_add_u32 s{sM0W}, s{sM0W}, {LDS_W1}")
    a(f"s_lshl_b32 s{sKA}, s{sRb}, 8")
    ftp, gb, jj, qc = T + 3, T + 4, T + 5, 4
    a(f"v_lshrrev_b32 v{ftp}, 5, v{L}")
    a(f"v_bfe_u32 v{gb}, v{L}, 4, 1")
    a(f"v_bfe_u32 v{jj}, v{L}, 2, 2")
    a(f"s_lshl_b32 s{t0}, s{sWr}, 4")
    a(f"s_lshl_b32 s{t1}, s{sWc}, 2")
    a(f"s_add_u32 s{t0}, s{t0}, s{t1}")
    a(f"v_lshl_add_u32 v{T+6}, v{gb}, 3, v{jj}")
    a(f"v_add_u32 v{T+6}, s{t0}, v{T+6}")
    a(f"v_lshlrev_b32 v{T+7}, 1, v{gb}")
    a(f"v_xor_b32 v{T+7}, v{T+7}, v{qc}")
    a(f"v_lshlrev_b32 v{T+7}, 4, v{T+7}")
    a(f"v_lshl_add_u32 v{T+7}, v{ftp}, 6, v{T+7}")
    a(f"v_xor_b32 v{T+8}, v{gb}, v{qc}")
    a(f"v_lshlrev_b32 v{T+8}, 4, v{T+8}")
    a("s_waitcnt lgkmcnt(0)")
    stp(a, "p1")
    srd(a, sX, pX, 0, 4 * MB)
    srd(a, 88, pDbg, 248, 8)
    a(f"s_or_b32 s{t0}, s2, s{sWave}")
    a("s_cbranch_scc1 L_nonon")
    a("s_or_b32 s92, s92, 1")
    a("v_mov_b32 v8, s92")
    a("v_mov_b32 v9, s93")
    a("buffer_store_dwordx2 v[8:9], off, s[88:91], 0 sc1")
    a("L_nonon:")
    a(f"s_cmp_lt_u32 s{sCt}, 2")
    a("s_cbranch_scc0 L_g1_qkv")

    def code_addr(r):
        n = lab[0]; lab[0] += 1
        a(f"s_getpc_b64 s[{t0}:{t1}]")
        a(f"L_pc_{n}:")
        a(f"s_sub_u32 s{t0}, s{t0}, L_pc_{n}-{name}")
        a(f"s_subb_u32 s{t1}, s{t1}, 0")
        a(f"s_lshl_b32 s{t2}, s{sSlot}, 2")
        a(f"s_add_u32 s{t2}, s{t2}, s{sWave}")
        a(f"s_and_b32 s{t2}, s{t2}, 63")
        a(f"s_lshl_b32 s{t2}, s{t2}, 10")
        a(f"v_add_u32 v{r}, s{t2}, v{vL16}")
        a(f"v_min_u32 v{r}, L_code_end-{name}-16, v{r}")
        a(f"v_mov_b32 v{r+1}, s{t1}")
        a(f"v_add_co_u32 v{r}, vcc, s{t0}, v{r}")
        a("s_nop 1")
        a(f"v_addc_co_u32 v{r+1}, vcc, 0, v{r+1}, vcc")
    def code_pf(r):
        code_addr(r)
        a(f"global_load_dwordx4 a[120:123], v[{r}:{r+1}], off")
    def kvdma(q):
        return f"buffer_load_dwordx4 v{vDma}, {R(sKV)}, s{sSo} offen offset:{(q&3)*1024} {SC} lds"
    so_wrap = f"s_and_b32 s{sSo}, s{sSo}, {SZ_KV - 1}"
    def kv_groups(h0, h1):
        g = []
        for c in range(h0, h1):
            for q in range(4):
                pre = [f"s_add_u32 m0, s{sM0k}, {(c % 6)*16384}", "s_nop 0"] if q == 0 else []
                post = [f"s_add_u32 s{sSo}, s{sSo}, 16384"] if (q == 3) else []
                if q == 3 and c & 1: post.append(so_wrap)
                g.append(pre + [kvdma(q)] + post)
        return g
    def at_load_groups():
        g = kv_groups(0, 2)
        g[4:4] = [[f"buffer_load_dwordx4 v[{Q[x]+4*h}:{Q[x]+4*h+3}], v{vL16}, {WSR}, s{sQO} offen offset:{x*2048+h*1024} {SC}"]
                  for x in range(2) for h in range(2)]
        return g
    def at_init():
        a(f"v_mov_b32 v{vCur}, v{vL16}")
        for x in range(2): a(f"v_mfma_f32_32x32x16_bf16 v[{O[x]}:{O[x]+15}], a[128:131], a[128:131], 0")
        a(f"v_and_b32 v{U}, 7, v{L}")
        a(f"v_cmp_eq_u32 vcc, 0, v{U}")
        a(f"v_cmp_eq_u32 s[88:89], 4, v{U}")
        a(f"v_mov_b32 v{U+2}, 0x3f803f80")
        a(f"v_mov_b32 v{IDX}, 0xdddddddd")
        a(f"v_cndmask_b32 v{ONE}, 0, v{U+2}, vcc")
        a(f"v_cndmask_b32 v{ONE+2}, 0, v{U+2}, s[88:89]")
        a(f"v_mov_b32 v{ONE+1}, v{ONE}")
        a(f"v_mov_b32 v{ONE+3}, v{ONE+2}")
        a(f"s_add_u32 s{sMb}, s{sM0k}, 65536")
        a(f"s_mov_b32 s{sRing}, 0")
        for i in range(0, 8, 2): a(f"v_mov_b64 v[{Lr[0]+i}:{Lr[0]+i+1}], 0")
        for i in range(0, 8, 2): a(f"v_mov_b64 v[{D[1]+8+i}:{D[1]+9+i}], 0")
        for i in range(0, 4, 2): a(f"v_mov_b64 v[{Vf[1]+4+i}:{Vf[1]+5+i}], 0")
        a(f"s_lshr_b32 s{t0}, s{sXcd}, 1")
        a(f"s_lshl_b32 s{t0}, s{t0}, 2")
        a(f"s_and_b32 s{t1}, s{sSlot}, 3")
        a(f"s_add_u32 s{sRb2}, s{t0}, s{t1}")
        if G2MAP == 1:
            a(f"s_lshl_b32 s{t0}, s{sXcd}, 1")
            a(f"s_and_b32 s{t1}, s{sSlot}, 1")
            a(f"s_add_u32 s{sRb2}, s{t0}, s{t1}")
        if G2MAP == 2:
            a(f"s_lshr_b32 s{t0}, s{sXcd}, 2")
            a(f"s_lshl_b32 s{t0}, s{t0}, 3")
            a(f"s_and_b32 s{t1}, s{sSlot}, 7")
            a(f"s_add_u32 s{sRb2}, s{t0}, s{t1}")
        a(f"s_lshr_b32 s{t0}, s{sRb2}, 1")
        a(f"s_lshl_b32 s{t0}, s{t0}, 7")
        a(f"s_add_u32 s{t0}, s{t0}, {WS_FL + FH}")
        a(f"v_and_b32 v{U}, 15, v{L}")
        a(f"v_lshl_add_u32 v{vFa2}, v{U}, 3, s{t0}")
        srd(a, sW, pW2, 0, 3584 * 2048)
    def g2_setup():
        a(f"s_and_b32 s{t0}, s{sXcd}, 1")
        a(f"s_lshl_b32 s{t0}, s{t0}, 3")
        a(f"s_lshr_b32 s{t1}, s{sSlot}, 2")
        a(f"s_add_u32 s{sCb}, s{t0}, s{t1}")
        if G2MAP == 1: a(f"s_lshr_b32 s{sCb}, s{sSlot}, 1")
        if G2MAP == 2:
            a(f"s_and_b32 s{t0}, s{sXcd}, 3")
            a(f"s_lshl_b32 s{t0}, s{t0}, 2")
            a(f"s_lshr_b32 s{t1}, s{sSlot}, 3")
            a(f"s_add_u32 s{sCb}, s{t0}, s{t1}")
        a(f"s_lshl_b32 s{t0}, s{sRb2}, 13")
        for pi in range(4):
            a(f"s_add_u32 s{t1}, s{sWave}, {pi + 1}")
            a(f"s_and_b32 s{t1}, s{t1}, 3")
            a(f"s_lshl_b32 s{t1}, s{t1}, 11")
            a(f"s_add_u32 s{t1}, s{t1}, s{t0}")
            a(f"v_add_u32 v{vA[pi]}, s{t1}, v{vL16}")
        a(f"v_lshrrev_b32 v{U}, 5, v{L}")
        a(f"v_bfe_u32 v{U+1}, v{L}, 4, 1")
        a(f"v_bfe_u32 v{U+2}, v{L}, 2, 2")
        a(f"v_and_b32 v{U+3}, 3, v{L}")
        a(f"v_lshl_add_u32 v{vW}, v{U+1}, 2, v{U+2}")
        a(f"v_lshlrev_b32 v{vW}, 11, v{vW}")
        a(f"v_lshlrev_b32 v{vW+1}, 1, v{U+1}")
        a(f"v_xor_b32 v{vW+1}, v{vW+1}, v{U+3}")
        a(f"v_lshl_add_u32 v{vW}, v{vW+1}, 4, v{vW}")
        a(f"v_lshl_add_u32 v{vW}, v{U}, 6, v{vW}")
        a(f"s_lshl_b32 s{t0}, s{sCb}, 7")
        a(f"v_add_u32 v{vW}, s{t0}, v{vW}")
        for pc in range(1, 4): a(f"v_add_u32 v{vW+pc}, {pc*(16384-1024)}, v{vW}")
        a(f"s_lshl_b32 s{sM0g}, s{sWave}, 14")
        a(f"s_add_u32 s{sM0g}, s{sM0g}, {LDS_W1}")
        a(f"v_lshl_add_u32 v{vWe}, v{U}, 10, s{sM0g}")
        a(f"v_lshl_add_u32 v{vWe}, v{U+1}, 8, v{vWe}")
        a(f"v_lshl_add_u32 v{vWe}, v{U+2}, 6, v{vWe}")
        a(f"v_lshl_add_u32 v{vWe}, v{U+1}, 5, v{vWe}")
        a(f"v_lshl_add_u32 v{vWe}, v{U+3}, 3, v{vWe}")
        a(f"v_xor_b32 v{vWo}, 32, v{vWe}")
        a(f"s_and_b32 s{t0}, s{sSlot}, 7")
        a(f"s_lshl_b32 s{t0}, s{t0}, 2")
        a(f"s_add_u32 s{t0}, s{t0}, s{sWave}")
        a(f"s_lshl_b32 s{t0}, s{t0}, 8")
        a(f"s_add_u32 s{t0}, s{t0}, {WS_STAT + 16384}")
        a(f"v_and_b32 v{U+1}, 31, v{L}")
        a(f"v_lshlrev_b32 v{U+1}, 2, v{U+1}")
        for x in range(2):
            a(f"buffer_load_dword v{vSig+x}, v{U+1}, {WSR}, s{t0} offen offset:{x*128} sc1")
        if CPF: code_addr(248)
        a(f"s_mul_i32 s{sKA}, s{sWave}, {(28 if KQ else 1)*131072}")
        a(f"s_add_u32 s{sKA}, s{sKA}, {WS_A2 + 32*131072}")
        a(f"s_mul_i32 s{sKW}, s{sWave}, {(28 if KQ else 1)*65536}")
    def hstore(u, data):
        if u < 8:
            return [f"buffer_store_dwordx2 {data}, v{vO+2 + (u>>2)}, {R(sOut)}, s{sH2} offen offset:{(u&3)*1024} {SC}"]
        p, tt = divmod(u - 8, 8)
        return [f"buffer_store_dwordx4 {data}, v{vO + (tt>>2)}, {R(sOut)}, s{(sH1, t3, t4)[p]} offen offset:{(tt&3)*1024} {SC}"]
    direct = set(range(8, 8 + ND))
    parked = [u for u in range(32) if u not in direct]
    ool = []

    def g1(kind):
        ffn = kind == "ffn"
        NB = 7 if ffn else 6
        RS = 7168 if ffn else 6144
        nW = 4 if ffn else 3
        NF = 8 + NB
        def fr(buf, i): return buf * NF * 4 + i * 4
        def acc(tt, ft): return (ft * 8 + tt) * 4
        if ffn:
            srd(a, sW, pW1, -4096, 1024 * 7168 + 4096)
            a(f"s_mul_i32 s{t0}, s{sXcd}, 896")
            a(f"s_mul_i32 s{t1}, s{sCt}, 384")
            a(f"s_add_u32 s{t1}, s{t1}, s{t0}")
            a(f"s_lshl_b32 s{t2}, s{sCt}, 6")
            a(f"s_add_u32 s{t2}, s{t2}, s{t0}")
            a(f"s_add_u32 s{t2}, s{t2}, {768 + 4096 - 3072}")
            qstep = 128
        else:
            srd(a, sW, 6, -4096, 1024 * 6144 + 4096)
            a(f"s_lshl_b32 s{t1}, s{sXcd}, 1")
            a(f"s_add_u32 s{t1}, s{t1}, s{sCt}")
            a(f"s_sub_u32 s{t1}, s{t1}, 2")
            a(f"s_lshl_b32 s{t1}, s{t1}, 7")
            qstep = 2048
        a(f"s_mul_i32 s{sKW}, s{sRb}, {128 * RS}")
        a(f"v_mul_u32_u24 v{T+6}, {RS}, v{T+6}")
        a(f"v_add3_u32 v{T+7}, v{T+7}, v{T+6}, s{t1}")
        for q in range(3):
            a(f"v_add_u32 v{vWd+q}, {4096 + q*qstep - q*1024}, v{T+7}")
        if ffn:
            a(f"v_add3_u32 v{T+8}, v{T+8}, v{T+6}, s{t2}")
            a(f"v_lshlrev_b32 v{T+9}, 30, v{ftp}")
            a(f"v_or_b32 v{vWd+3}, v{T+8}, v{T+9}")
        srd(a, sKV, pX, 65536, 4 * MB - 65536)
        oplog = []
        def wdma_list(stage, pol=WNT):
            l = [[f"s_add_u32 m0, s{sM0W}, {(stage & 3)*16384}"]]
            for q in range(nW):
                l.append([f"buffer_load_dwordx4 v{vWd+q}, {R(sW)}, s{sKW} offen offset:{q*1024} {pol} lds"])
            l.append([f"s_add_u32 s{sKW}, s{sKW}, {32*RS}"])
            if stage & 3 == 3: l.append([f"s_cmp_eq_u32 s{sKW}, {1024 * RS}", f"s_cselect_b32 s{sKW}, 0, s{sKW}"])
            oplog.extend([f"W{stage}"] * nW)
            return l
        def adma_half(Dn, h):
            if Dn < 3: l = [[f"s_add_u32 m0, s{sM0A}, {Dn*32768 + h*4096}"]]
            else: l = [[f"s_add_u32 m0, s{sAw}, {h*4096}"]]
            for p in range(4):
                l.append([f"buffer_load_dwordx4 v{vAd+p}, {R(sKV if h else sX)}, s{sKA} offen offset:{p*1024} {XNT} lds"])
            if h:
                l.append([f"s_add_u32 s{sKA}, s{sKA}, 128"])
                if Dn & 1: l.append([f"s_and_b32 s{sKA}, s{sKA}, 2047"])
            oplog.extend([f"A{Dn}"] * 4)
            return l
        def need(*tags):
            idx = max(i for i, t in enumerate(oplog) if t in tags)
            return len(oplog) - 1 - idx
        def flat(l):
            out = []
            for x in l:
                out += x
                if x[-1].startswith("s_add_u32 m0"): out.append("s_nop 0")
            return out
        for i in range(4): a(f"v_mov_b32 v{12+i}, 0")
        z = [f"v_mfma_f32_32x32x16_bf16 a[{128+16*i}:{143+16*i}], v[12:15], v[12:15], 0" for i in range(8) if i != 2]
        z += [f"v_mfma_f32_32x32x16_bf16 v[{16*i}:{16*i+15}], v[12:15], v[12:15], 0" for i in range(1, 2 * NB)]
        k = 0
        for x in flat(wdma_list(0, PNT) + adma_half(0, 0) + adma_half(0, 1)):
            a(x)
            if x.startswith("buffer_") and k < len(z): a(z[k]); k += 1
        pre = Asm(); sv0 = a.lines; a.lines = pre.lines
        stp(a, "p2")
        srd(a, sWS, 4, 0, WS_END)
        a(f"v_and_b32 v{T+9}, 15, v{L}")
        a(f"v_lshrrev_b32 v{T+10}, 1, v{T+9}")
        a(f"v_xor_b32 v{T+10}, v{T+10}, v{T+1}")
        a(f"v_lshlrev_b32 v{T+10}, 4, v{T+10}")
        a(f"v_lshl_add_u32 v{T+10}, v{T+9}, 7, v{T+10}")
        a(f"s_lshl_b32 s{t0}, s{sWr}, 14")
        a(f"v_add_u32 v{vArB}, s{t0}, v{T+10}")
        a(f"v_mov_b32 v{vAr}, v{vArB}")
        a(f"v_xor_b32 v{vAr+1}, 64, v{vArB}")
        a(f"s_mov_b32 s{sArd}, 0")
        a(f"v_lshlrev_b32 v{T+10}, 13, v{ftp}")
        a(f"v_lshl_add_u32 v{T+10}, v{gb}, 8, v{T+10}")
        a(f"v_lshl_add_u32 v{T+10}, v{jj}, 6, v{T+10}")
        a(f"v_add_u32 v{T+10}, {LDS_W1}, v{T+10}")
        a(f"v_lshl_add_u32 v{T+11}, v{gb}, 5, v{T+10}")
        a(f"v_lshl_add_u32 v{T+11}, v{qc}, 3, v{T+11}")
        a(f"s_mul_i32 s{t0}, s{sWc}, {1536 if ffn else 512}")
        a(f"v_add_u32 v{vWe1}, s{t0}, v{T+11}")
        a(f"v_xor_b32 v{vWo1}, 32, v{vWe1}")
        if ffn:
            a(f"v_and_b32 v{T+11}, 1, v{qc}")
            a(f"v_lshlrev_b32 v{T+11}, 1, v{T+11}")
            a(f"v_add_u32 v{T+11}, s{sWc}, v{T+11}")
            a(f"v_xor_b32 v{T+11}, v{T+11}, v{gb}")
            a(f"v_lshl_add_u32 v{T+11}, v{T+11}, 4, v{T+10}")
            a(f"v_lshrrev_b32 v{T+10}, 1, v{qc}")
            a(f"v_lshl_add_u32 v{vWs1}, v{T+10}, 3, v{T+11}")
        a(f"v_mov_b32 v{T+10}, 0x3f803f80")
        for i in range(4): a(f"v_accvgpr_write_b32 a{124+i}, v{T+10}")
        a(f"s_lshl_b32 s{sTile}, s{sXcd}, 2")
        a(f"s_add_u32 s{sTile}, s{sTile}, s{sCt}")
        a(f"s_and_b32 s{t0}, s{sCt}, 1")
        a(f"s_lshl_b32 s{t0}, s{t0}, 1")
        a(f"s_lshl_b32 s{sHead}, s{sXcd}, 2")
        a(f"s_add_u32 s{sHead}, s{sHead}, s{t0}")
        if ffn: a(f"s_add_u32 s{sHead}, s{sHead}, 1")
        a(f"s_lshl_b32 s{t0}, s{sRb}, 2")
        a(f"s_add_u32 s{t0}, s{t0}, s{sWave}")
        a(f"s_lshl_b32 s{t0}, s{t0}, 12")
        a(f"s_lshl_b32 s{t1}, s{sHead}, 17")
        a(f"s_add_u32 s{sQO}, s{t0}, s{t1}")
        a(f"s_add_u32 s{sQO}, s{sQO}, {WS_Q}")
        a(f"s_lshl_b32 s{sSo}, s{sRb}, 15")
        a(f"s_lshl_b32 s{sM0k}, s{sWave}, 12")
        a(f"v_add_u32 v{vDma}, s{sM0k}, v{vL16}")
        a(f"s_lshr_b32 s{t0}, s{sHead}, 1")
        a(f"s_lshl_b32 s{t0}, s{t0}, 7")
        a(f"v_and_b32 v{vFa}, 7, v{L}")
        a(f"v_lshl_add_u32 v{vFa}, v{vFa}, 3, s{t0}")
        srd(a, sOut, pW2, 0, 3584 * 2048)
        a(f"s_lshl_b32 s{sPf}, s2, 2")
        a(f"s_add_u32 s{sPf}, s{sPf}, s{sWave}")
        a(f"s_lshl_b32 s{sPf}, s{sPf}, 10")
        a(f"v_and_b32 v{T+8}, 0x3b, v{L}")
        a(f"v_min_u32 v{T+8}, 1, v{T+8}")
        a(f"v_lshlrev_b32 v{T+8}, 30, v{T+8}")
        a(f"v_lshl_add_u32 v{T+8}, v3, 2, v{T+8}")
        a(f"v_mov_b32 v{T+3}, 0")
        a(f"v_mov_b32 v{T+4}, 0")
        a(f"s_lshl_b32 s{t0}, s{sXcd}, 1")
        a(f"s_add_u32 s{t0}, s{t0}, s{sCt}")
        if ffn:
            a(f"s_lshl_b32 s{t0}, s{t0}, 3")
            a(f"s_lshl_b32 s{t1}, s{sRb}, 7")
            a(f"s_add_u32 s{t0}, s{t0}, s{t1}")
            a(f"s_add_u32 s92, s{t0}, {WS_FL + FH}")
        else:
            a(f"s_sub_u32 s{sCt}, s{t0}, 2")
            a(f"s_lshl_b32 s{t0}, s{sCt}, 7")
            a(f"s_lshl_b32 s{t1}, s{sRb}, 3")
            a(f"s_add_u32 s92, s{t0}, s{t1}")
        a(f"s_lshl_b32 s{t0}, s{sRb}, 8")
        a(f"s_lshl_b32 s93, s{sHead}, 3")
        a(f"s_add_u32 s93, s93, s{t0}")
        a(f"s_add_u32 s93, s93, {WS_FL + FO}")

        a.lines = sv0
        xld = [[f"buffer_load_dwordx4 a[{160+4*i}:{163+4*i}], v6, {R(sX)}, 0 offen offset:{i*512}"] for i in range(4)]
        if PRO:
            more = wdma_list(1, PNT) + xld
            oplog.extend(["x"] * 4)
        elif XPOS == 0:
            oplog.extend(["x"] * 4)
            more = xld + wdma_list(1, PNT) + wdma_list(2, PNT) + adma_half(1, 0) + adma_half(1, 1)
        else:
            more = wdma_list(1, PNT) + wdma_list(2, PNT) + adma_half(1, 0) + adma_half(1, 1) + xld
            oplog.extend(["x"] * 4)
        nmore = len(more)
        gap = len(pre.lines) / (nmore + 1)
        for i, x in enumerate(pre.lines):
            a.lines.append(x)
            nxt = pre.lines[i + 1].op if i + 1 < len(pre.lines) else ""
            if nxt in ("s_addc_u32", "s_subb_u32"): continue
            if i % 5 == 4 and k < len(z): a(z[k]); k += 1
            if more and i + 1 >= gap * (nmore - len(more)): a.extend(more.pop(0))
        a.extend(flat(more))
        for x in z[k:]: a(x)
        if CPF == 2:
            code_pf(vFl); oplog.append("c")
        a("s_nop 1")
        a(f"v_mfma_f32_32x32x16_bf16 v[0:15], a[128:131], a[128:131], 0")
        st_ = Asm(); a.lines = st_.lines
        SU, SQ, TM = T + 3, T + 4, T + 5
        for j in range(16):
            r = T + 6 + (j & 1)
            a(f"v_accvgpr_read_b32 v{r}, a{160+j}")
            a(f"v_dot2c_f32_bf16 v{SU}, v{r}, v{T+10}")
            a(f"v_dot2c_f32_bf16 v{SQ}, v{r}, v{r}")
        a("s_nop 1")
        xreduce(a, SU, TM)
        xreduce(a, SQ, TM)
        a(f"v_mul_f32 v{SU}, {f2u(-1.0/1024):#x}, v{SU}")
        a(f"v_mul_f32 v{SQ}, {f2u(1.0/1024):#x}, v{SQ}")
        a(f"v_fma_f32 v{SQ}, -v{SU}, v{SU}, v{SQ}")
        a(f"v_max_f32 v{SQ}, 0, v{SQ}")
        bf16round(a, SU)
        bf16round(a, SQ)
        a(f"v_add_f32 v{SQ}, {f2u(1e-5):#x}, v{SQ}")
        bf16round(a, SQ)
        a(f"v_sqrt_f32 v{SQ}, v{SQ}")
        a(f"s_mov_b32 s{t2}, {WS_STAT}")
        bf16round(a, SQ)
        a(f"v_rcp_f32 v{TM}, v{SQ}")
        a(f"s_mov_b32 s{t3}, {WS_STAT + 8192}")
        a(f"s_mov_b32 s{t4}, {WS_STAT + 16384}")
        a(f"buffer_store_dword v{SU}, v{T+8}, {WSR}, s{t2} offen sc1")
        a(f"buffer_store_dword v{TM}, v{T+8}, {WSR}, s{t3} offen sc1")
        a(f"buffer_store_dword v{SQ}, v{T+8}, {WSR}, s{t4} offen sc1")
        a.lines = sv0
        stl = []
        for x in st_.lines:
            if stl and stl[-1][-1].startswith("s_nop"): stl[-1].append(x.text)
            else: stl.append([x.text])

        def read_list(step):
            buf = step & 1; so = (step & 3) * 16384
            rb = []
            for ft in range(NB):
                r = fr(buf, 8 + ft)
                if ffn and ft == 6: v = vWs1; off = 3072
                else:
                    v = vWo1 if ft & 1 else vWe1
                    off = (ft >> 1) * (512 if ffn else 1024)
                rb.append([f"ds_read_b64_tr_b16 a[{r+2*rd}:{r+2*rd+1}], v{v} offset:{so + rd*4096 + off}" for rd in range(2)])
            ra = [f"ds_read_b128 a[{fr(buf, tt)}:{fr(buf, tt)+3}], v{vAr + (step & 1)} offset:{tt*2048}" for tt in range(8)]
            l = rb[0] + ra
            for x in rb[1:]: l += x
            return l
        def mfmas(buf):
            l = []
            for ft in range(NB):
                for tt in (range(8) if ft % 2 == 0 else range(7, -1, -1)):
                    c = acc(tt, ft); w = fr(buf, 8 + ft); x = fr(buf, tt)
                    if (not ffn) and ft >= 4: w, x = x, w
                    l.append(f"v_mfma_f32_16x16x32_bf16 v[{c}:{c+3}], a[{w}:{w+3}], a[{x}:{x+3}], v[{c}:{c+3}]")
            return l
        ard_adv = [[f"s_add_u32 s{sAw}, s{sArd}, s{sM0A}"], [f"s_add_u32 s{sArd}, s{sArd}, 32768"], [f"s_cmp_eq_u32 s{sArd}, 98304", f"s_cselect_b32 s{sArd}, 0, s{sArd}"]]
        ard_set = [f"v_add_u32 v{vAr}, s{sArd}, v{vArB}", f"v_xor_b32 v{vAr+1}, 64, v{vAr}"]
        stp(a, "p5")
        a(f"s_waitcnt vmcnt({need('W0', 'A0')})")
        a("s_barrier")
        stp(a, "p6")
        a.extend(read_list(0))
        a(f"s_waitcnt vmcnt({need('W1')}) lgkmcnt(0)")
        a("s_barrier")
        def step(k4, dl, vm, reads=True, extra=(), cs=False, span=DMAF, tail=()):
            m = mfmas(k4 & 1)
            if cs:
                m = [f"v_mfma_f32_16x16x32_bf16 a[{128+4*ft}:{131+4*ft}], a[{fr(k4 & 1, 8 + ft)}:{fr(k4 & 1, 8 + ft)+3}], a[124:127], a[{128+4*ft}:{131+4*ft}]"
                     for ft in range(NB)] + m
            n = len(m)
            sr = []
            if reads:
                rl = read_list(k4 + 1)
                sr = [((i * int(n * RDF)) // len(rl), x) for i, x in enumerate(rl)]
            sd = [((i * int(n * span)) // len(dl), x) for i, x in enumerate(dl)]
            if reads and k4 % 2 == 0:
                sd += [(n - 12 + 2 * i, x) for i, x in enumerate(ard_adv + ard_set)]
            a.extend(sched(m, [sd, sr, list(extra)], BUD if not extra and span == DMAF else 8))
            a.extend(tail)
            if vm is not None:
                a(f"s_waitcnt vmcnt({vm}) lgkmcnt(0)")
                if not (XB and k4 & 1): a("s_barrier")
        def std_dl(k):
            return wdma_list(k + 4) + (adma_half((k + 5) // 2, 0) if k & 1 else adma_half((k + 4) // 2, 1))
        def std_need(k):
            return need(f"W{k+2}", f"A{(k+2)//2}")
        stp(a, "g1loop")
        stt = [x.text for x in st_.lines]
        dl = wdma_list(3, PNT) + adma_half(2, 0) + adma_half(2, 1) if not PRO else \
             wdma_list(2, PNT) + adma_half(1, 0) + adma_half(1, 1) + wdma_list(3, PNT)
        stt = [f"s_waitcnt vmcnt({need('x')})"] + stt
        oplog.extend(["st"] * 3)
        step(0, dl, std_need(0), cs=True, span=0.85, tail=stt)
        stp(a, "k1")
        dl = wdma_list(4) + wdma_list(5) + adma_half(3, 0) if not PRO else adma_half(2, 0) + adma_half(2, 1) + wdma_list(4) + wdma_list(5); step(1, dl, std_need(1), cs=True, span=0.85)
        stp(a, "k2")
        n1 = 9 * NB - 4
        dl = std_dl(2) if not PRO else wdma_list(6) + adma_half(3, 0) + adma_half(3, 1)
        step(2, dl, std_need(2), cs=True, span=0.75 if PRO else DMAF)
        e = [f"s_lshl_b32 s{t0}, s{sTile}, 13", f"s_lshl_b32 s{t1}, s{sRb}, 10", f"s_add_u32 s{t0}, s{t0}, s{t1}", f"s_mul_i32 s{t1}, s{sWc}, {NB*64}",
             f"s_add_u32 s{t0}, s{t0}, s{t1}", f"s_add_u32 s{t0}, s{t0}, {WS_CS}", f"v_and_b32 v{T}, 15, v{L}", f"v_or_b32 v{T}, s{sWr}, v{T}",
             f"v_lshlrev_b32 v{T}, 27, v{T}", f"v_and_b32 v{T+1}, 48, v{L}", f"v_or_b32 v{T}, v{T}, v{T+1}", f"s_mov_b32 s{sCnt}, 6"]
        stp(a, "k3")
        e += [flagld("off", "s[88:91]")]
        e += [f"buffer_store_dwordx4 a[{128+4*ft}:{131+4*ft}], v{T}, {WSR}, s{t0} offen offset:{ft*64} sc1" for ft in range(NB)]
        dl = std_dl(3); step(3, dl, std_need(3), cs=True, extra=[(12 + 2 * i, x) for i, x in enumerate(e)])
        stp(a, "h6")
        a(".p2align 6")
        a(f"L_g1_{kind}_loop:")
        pf = [f"buffer_load_dwordx4 a[120:123], v{vL16}, {R(sOut)}, s{sPf} offen", f"s_add_u32 s{sPf}, s{sPf}, {MB}"]
        for k4 in range(4):
            dl = std_dl(4 + k4)
            if k4 in (0, 2) and PFG1:
                dl += [[pf[0]], [pf[1]]]; oplog.append("pf")
            if k4 == 3:
                dl = [[f"s_cmp_eq_u32 s{sCnt}, 1", f"s_cselect_b32 s{sX+2}, 0, s{sX+2}"]] + dl + [[f"s_sub_u32 s{sCnt}, s{sCnt}, 1"], [f"s_bitcmp1_b32 0x3d, s{sCnt}"]]
            step(k4, dl, std_need(4 + k4))
        a(f"s_cbranch_scc0 L_g1_{kind}_loop")
        a(f"s_cmp_lg_u32 s{sCnt}, 0")
        a(f"s_cbranch_scc1 L_hk5_{kind}")
        b = Asm(); sv = a.lines; a.lines = b.lines
        a(f"L_hk5_{kind}:")
        a(f"s_cmp_lg_u32 s{sCnt}, 5")
        a(f"s_cbranch_scc1 L_hk4_{kind}")
        stp(a, "h5")
        for i in range(3): a(f"v_mfma_f32_32x32x16_bf16 a[{128+16*i}:{143+16*i}], a[176:179], a[176:179], 0")
        poll("off", True, "s[88:91]", "0", "eq")
        a(f"v_readfirstlane_b32 s{sN}, v{vFl}")
        a(f"v_readfirstlane_b32 s{sN+1}, v{vFl+1}")
        a(f"s_lshl_b32 s{t0}, s2, 5")
        a(f"s_add_u32 s{t0}, s{t0}, {WS_FL + F0}")
        publish(t0, T)
        if CPF == 1: code_pf(T + 2)
        a(f"s_branch L_g1_{kind}_loop")
        a(f"L_hk4_{kind}:")
        a(f"s_cmp_lg_u32 s{sCnt}, 4")
        a(f"s_cbranch_scc1 L_hk3_{kind}")
        a(f"s_lshl_b32 s{t0}, s{sRb}, 5")
        a(f"v_add_u32 v{T}, s{t0}, v{L}")
        a(f"s_and_b32 s{t0}, s2, 0xc7")
        a(f"v_and_b32 v{T+1}, 7, v{L}")
        a(f"v_lshl_add_u32 v{T+1}, v{T+1}, 3, s{t0}")
        a(f"v_cmp_gt_u32 vcc, 32, v{L}")
        a("s_nop 1")
        a(f"v_cndmask_b32 v{T+1}, v{T+1}, v{T}, vcc")
        a(f"v_lshlrev_b32 v{T+1}, 5, v{T+1}")
        a(f"v_add_u32 v{T+1}, {WS_FL + F0}, v{T+1}")
        a(flagld(f"v{T+1}"))
        if TPF:
            a(f"v_lshlrev_b32 v{T}, 19, v{L}")
            a(f"s_mov_b32 s{t0}, {WS_Q}")
            a(f"buffer_load_dword v{T+2}, v{T}, {WSR}, s{t0} offen")
            srd(a, 88, pOut, 0, 4 * MB)
            a(f"v_lshlrev_b32 v{T}, 16, v{L}")
            a(f"buffer_load_dword v{T+2}, v{T}, s[88:91], 0 offen")
        a(f"s_branch L_g1_{kind}_loop")
        a(f"L_hk3_{kind}:")
        a(f"s_cmp_eq_u32 s{sCnt}, 3")
        a(f"s_cbranch_scc1 L_hk3b_{kind}")
        stp(a, "h2")
        srd(a, sOut, pWO, 0, 1024 * 2048)
        a(f"s_and_b32 s{sPf}, s{sPf}, {MB - 1}")
        if CPF:
            code_addr(vFl)
            a(f"global_load_dwordx4 a[120:123], v[{vFl}:{vFl+1}], off")
        a(f"s_branch L_g1_{kind}_loop")
        a(f"L_hk3b_{kind}:")
        stp(a, "h1")
        poll(f"v{T+1}", True)
        a(f"s_lshl_b32 s{t0}, s{sWave}, 8")
        a(f"v_lshl_add_u32 v{T}, v{L}, 2, s{t0}")
        a(f"s_lshl_b32 s{t0}, s{sTile}, 13")
        a(f"s_add_u32 s{t0}, s{t0}, {WS_CS}")
        a(f"s_add_u32 s{t1}, s{t0}, 4096")
        for i in range(8):
            a(f"buffer_load_dword v{T+2+i}, v{T}, {WSR}, s{t0 if i < 4 else t1} offen offset:{(i&3)*1024} sc1")
        a(f"s_lshl_b32 s{t0}, s{sRb}, 10")
        a(f"s_add_u32 s{t0}, s{t0}, {WS_STAT}")
        a(f"s_add_u32 s{t1}, s{t0}, 8192")
        a(f"buffer_load_dword v{T+10}, v{T}, {WSR}, s{t0} offen sc1")
        a(f"buffer_load_dword v{T+11}, v{T}, {WSR}, s{t1} offen sc1")
        stp(a, "h1e")
        a(f"s_branch L_g1_{kind}_loop")
        ool.extend([x.text for x in b.lines]); a.lines = sv
        stp(a, "tail")
        adds = [f"v_add_f32 v{T+2+2*i}, v{T+2+2*i}, v{T+3+2*i}" for i in range(4)] + \
               [f"v_add_f32 v{T+2}, v{T+2}, v{T+4}", f"v_add_f32 v{T+6}, v{T+6}, v{T+8}", f"v_add_f32 v{T+2}, v{T+2}, v{T+6}",
                f"v_add_u32 v{T}, {LDS_SCR}, v{T}"]
        step(0, [], nW + 4, extra=[(2 + 3 * i, x) for i, x in enumerate(adds)])
        step(1, [], 4, extra=[(40, f"ds_write_b32 v{T}, v{T+2}"), (42, f"ds_write_b32 v{T}, v{T+10} offset:1024"), (44, f"ds_write_b32 v{T}, v{T+11} offset:2048")])
        e = Asm(); sv = a.lines; a.lines = e.lines
        if ffn:
            a(f"s_lshl_b32 s{t0}, s{sRb}, 14")
            a(f"s_lshl_b32 s{t1}, s{sWr}, 13")
            a(f"s_add_u32 s{t0}, s{t0}, s{t1}")
            a(f"v_add_u32 v{vO}, s{t0}, v{vL16}")
            a(f"v_add_u32 v{vO+1}, 4096, v{vO}")
            a(f"s_lshl_b32 s{t1}, s{sWc}, 9")
            a(f"s_add_u32 s{t0}, s{t0}, s{t1}")
            a(f"v_lshrrev_b32 v{vO+2}, 5, v{L}")
            a(f"v_lshl_add_u32 v{vO+2}, v{vO+2}, 8, s{t0}")
            a(f"v_and_b32 v{vO+3}, 15, v{L}")
            a(f"v_lshl_add_u32 v{vO+2}, v{vO+3}, 4, v{vO+2}")
            a(f"v_bfe_u32 v{vO+3}, v{L}, 4, 1")
            a(f"v_lshl_add_u32 v{vO+2}, v{vO+3}, 3, v{vO+2}")
            a(f"v_add_u32 v{vO+3}, 4096, v{vO+2}")
            a(f"s_mul_i32 s{t0}, s{sXcd}, 14")
            a(f"s_mul_i32 s{t1}, s{sCt}, 6")
            a(f"s_mul_i32 s{t2}, s{sWc}, 3")
            a(f"s_add_u32 s{t1}, s{t1}, s{t2}")
            a(f"s_add_u32 s{t1}, s{t1}, s{t0}")
            a(f"s_add_u32 s{t1}, s{t1}, {32 + WS_A2 // 131072}")
            a(f"s_lshl_b32 s{t1}, s{t1}, 17")
            a(f"s_add_u32 s{t2}, s{t0}, s{sCt}")
            a(f"s_add_u32 s{t2}, s{t2}, {44 + WS_A2 // 131072}")
            a(f"s_lshl_b32 s{t2}, s{t2}, 17")
            a(f"s_add_u32 s{t3}, s{t1}, 131072")
            a(f"s_add_u32 s{t4}, s{t1}, 262144")
        else:
            a(f"s_lshl_b32 s{t0}, s{sRb}, 3")
            a(f"s_lshl_b32 s{t1}, s{sWr}, 2")
            a(f"s_add_u32 s{t0}, s{t0}, s{t1}")
            a(f"s_lshl_b32 s{t0}, s{t0}, 11")
            a(f"s_lshl_b32 s{t3}, s{sCt}, 1")
            a(f"s_add_u32 s{t3}, s{t3}, s{sWc}")
            a(f"s_lshl_b32 s{t3}, s{t3}, 17")
            a(f"s_add_u32 s{t1}, s{t3}, s{t0}")
            a(f"s_lshl_b32 s{t2}, s{t1}, 1")
            a(f"s_add_u32 s{t2}, s{t2}, {WS_KV}")
            a(f"s_add_u32 s{t1}, s{t1}, {WS_Q}")
            a(f"v_lshrrev_b32 v{vO+2}, 4, v{L}")
            a(f"v_lshlrev_b32 v{vO+2}, 9, v{vO+2}")
            a(f"v_and_b32 v{vO+3}, 15, v{L}")
            a(f"v_lshl_add_u32 v{vO}, v{vO+3}, 4, v{vO+2}")
            a(f"v_bfe_u32 v{vO+3}, v{L}, 2, 2")
            a(f"v_lshl_add_u32 v{vO+2}, v{vO+3}, 7, v{vO+2}")
            a(f"v_and_b32 v{vO+3}, 3, v{L}")
            a(f"v_lshl_add_u32 v{vO+1}, v{vO+3}, 4, v{vO+2}")
            a(f"s_mov_b32 s{t4}, {f2u(QSCALE):#x}")
        a(f"s_lshl_b32 s{t5}, s{sHead}, 18")
        a(f"s_add_u32 s{t5}, s{t5}, {WS_KV}")
        a(f"s_add_u32 s{sKV}, s4, s{t5}")
        a(f"s_addc_u32 s{sKV+1}, s5, 0")
        a(f"s_mov_b32 s{sKV+2}, {SZ_KV}")
        if ffn:
            a(f"s_lshl_b32 s90, 0x01010101, s{sRb}")
            a(f"s_mov_b32 s91, 0")
        a(f"s_mul_i32 s{t5}, s{sWc}, {NB*64}")
        a(f"s_add_u32 s{t5}, s{t5}, {LDS_SCR}")
        a(f"v_and_b32 v248, 48, v{L}")
        a(f"v_add_u32 v248, s{t5}, v248")
        a(f"s_lshl_b32 s{t0}, s{sWr}, 9")
        a(f"s_add_u32 s{t0}, s{t0}, {LDS_SCR + 1024}")
        a(f"v_and_b32 v249, 15, v{L}")
        a(f"v_lshl_add_u32 v249, v249, 2, s{t0}")
        if not ffn:
            a(f"v_and_b32 v222, 15, v{L}")
            a(f"v_lshl_add_u32 v222, v222, 2, s{t5}")
            a(f"v_and_b32 v223, 48, v{L}")
            a(f"v_add_u32 v223, s{t0}, v223")
        el = []
        for x in e.lines:
            if x.op in ("s_addc_u32", "s_subb_u32", "s_cselect_b32"): el[-1].append(x.text)
            else: el.append([x.text])
        a.lines = sv
        n = 8 * NB
        step(2, [], 0, extra=[(2 + (i * (n - 12)) // len(el), x) for i, x in enumerate(el)])
        rds = []
        for tt in range(8):
            rds.append(f"ds_read_b32 v{ST+2*tt}, v249 offset:{tt*64}")
            if not ffn: rds.append(f"ds_read_b32 v{ST+2*tt+1}, v249 offset:{1024 + tt*64}")
        if ffn:
            rds.append(f"ds_read_b128 v[244:247], v248 offset:{6*64}")
        else:
            for ft in range(4): rds.append(f"ds_read_b128 v[{192+4*ft}:{195+4*ft}], v248 offset:{ft*64}")
            for vt in range(2): rds.append(f"ds_read_b32 v{208+2*vt}, v222 offset:{(4+vt)*64}")
        step(3, [], None, reads=False, extra=[(2 + 2 * i, x) for i, x in enumerate(rds)])
        stp(a, "g1end")
        BC = "op_sel_hi:[1,0,1]"
        if ffn:
            a("s_nop 0")
            a(f"s_mov_b32 s{sH1}, s{t1}")
            a(f"s_mov_b32 s{sH2}, s{t2}")
            a(f"s_mov_b32 s{sPub}, s92")
            srd(a, sOut, 4, 0, WS_END)
            a("s_waitcnt lgkmcnt(0)")
            pend = []
            for u in range(8):
                c = acc(u, 6)
                for h in range(2):
                    a(f"v_pk_fma_f32 v[{c+2*h}:{c+2*h+1}], v[{244+2*h}:{245+2*h}], v[{ST+2*u}:{ST+2*u+1}], v[{c+2*h}:{c+2*h+1}] {BC}")
                a(f"v_cvt_pk_bf16_f32 v{c}, v{c}, v{c+1}")
                a(f"v_cvt_pk_bf16_f32 v{c+1}, v{c+2}, v{c+3}")
                a(f"v_pk_max_i16 v{c}, v{c}, 0")
                a(f"v_pk_max_i16 v{c+1}, v{c+1}, 0")
                if u in direct: pend.append(hstore(u, f"v[{c}:{c+1}]"))
                else:
                    for e_ in range(2): a(f"v_accvgpr_write_b32 a{4*parked.index(u)+e_}, v{c+e_}")
                if u == 1:
                    a(f"ds_read_b64 v[194:195], v248 offset:64")
                    a(f"ds_read_b64 v[198:199], v248 offset:72")
                if u == 3:
                    a(f"ds_read_b64 v[202:203], v248 offset:0")
                    a(f"ds_read_b64 v[206:207], v248 offset:8")
            for i, r in enumerate((210, 214, 218, 222)):
                a(f"ds_read_b64 v[{r}:{r+1}], v248 offset:{128 + (i>>1)*64 + (i&1)*8}")
            a(f"ds_read_b128 v[244:247], v248 offset:{4*64}")
            CSM = {0: (202, 206), 1: (194, 198), 2: (210, 214), 3: (218, 222), 4: (244, 246), 5: (194, 198)}
            groups = at_load_groups()
            polled = False; after = []
            def drip(k):
                for _ in range(k):
                    if groups:
                        a.extend(groups.pop(0)); after.append("ld")
                    elif pend:
                        a.extend(pend.pop(0)); after.append("st")
            for u in range(8, 32):
                p, tt = divmod(u - 8, 8)
                if u == 8: a("s_waitcnt lgkmcnt(5)")
                if u == 16:
                    a("s_waitcnt lgkmcnt(0)")
                    a(f"ds_read_b64 v[194:195], v248 offset:{5*64}")
                    a(f"ds_read_b64 v[198:199], v248 offset:{5*64+8}")
                if u == 24: a("s_waitcnt lgkmcnt(0)")
                if u == EPOLL - ELEAD: a(flagld(f"v{vFa}"))
                c0, c1 = acc(tt, 2 * p), acc(tt, 2 * p + 1)
                for c, cs in ((c0, CSM[2 * p]), (c1, CSM[2 * p + 1])):
                    for h in range(2):
                        a(f"v_pk_fma_f32 v[{c+2*h}:{c+2*h+1}], v[{cs[h]}:{cs[h]+1}], v[{ST+2*tt}:{ST+2*tt+1}], v[{c+2*h}:{c+2*h+1}] {BC}")
                a(f"v_cvt_pk_bf16_f32 v{c0}, v{c0}, v{c0+1}")
                a(f"v_cvt_pk_bf16_f32 v{c0+1}, v{c0+2}, v{c0+3}")
                a(f"v_cvt_pk_bf16_f32 v{c0+2}, v{c1}, v{c1+1}")
                a(f"v_cvt_pk_bf16_f32 v{c0+3}, v{c1+2}, v{c1+3}")
                for e_ in range(4): a(f"v_pk_max_i16 v{c1+e_}, v{c0+e_}, 0")
                if u in direct: pend.append(hstore(u, f"v[{c1}:{c1+3}]"))
                else:
                    for e_ in range(4): a(f"v_accvgpr_write_b32 a{4*parked.index(u)+e_}, v{c1+e_}")
                if u == EPOLL:
                    stp(a, "e1")
                    a(f"s_waitcnt vmcnt(0)")
                    stp(a, "e2")
                    poll(f"v{vFa}", True, mask="s[90:91]")
                    stp(a, "e4")
                    polled = True
                if polled: drip(4)
            drip(64)
            a("s_nop 1")
            at_init(); g2_setup(); after += ["x"] * 2
            idx = [i for i, z in enumerate(after) if z == "ld"][7 if HALF else 11]
            a(f"s_waitcnt vmcnt({len(after) - 1 - idx})")
            a("s_branch L_at_entry")
        else:
            QSC = SC
            vLq, vLk, vLv = 209, 211, 222
            srd(a, sOut, 4, 0, WS_END)
            a(f"s_cmp_lg_u32 s{sWc}, 0")
            a(f"s_cselect_b32 s{sOut+2}, s{sOut+2}, 0")
            a(f"s_cselect_b64 vcc, -1, 0")
            a(f"s_lshl_b32 s{t0}, s{sWr}, 14")
            a(f"v_add_u32 v{vLk}, s{t0}, v{vO+1}")
            a(f"v_add_u32 v{vLv}, s{t0}, v{vO}")
            a(f"s_lshl_b32 s{t0}, s{sWr}, 13")
            a(f"s_add_u32 s{t0}, s{t0}, {LDS_W1}")
            a(f"v_add_u32 v{vLq}, s{t0}, v{vO}")
            def own(v, c0, off):
                if not OWN: return
                n = lab[0]; lab[0] += 1
                a(f"s_cbranch_vccnz L_ow{n}")
                a(f"ds_write_b128 v{v}, v[{c0}:{c0+3}] offset:{off}")
                a(f"L_ow{n}:")
            a(f"s_mov_b32 s{sPub}, 0")
            a("s_waitcnt lgkmcnt(0)")
            a("s_nop 4")
            for b_ in range(4):
                for e_ in range(2):
                    a(f"ds_read_b128 v[{212+4*e_}:{215+4*e_}], v223 offset:{(2*b_+e_)*64}")
                a(f"ds_read_b128 v[244:247], v223 offset:{1024 + (2*b_)*64}")
                a(f"ds_read_b64 v[220:221], v223 offset:{1024 + (2*b_+1)*64}")
                a(f"ds_read_b64 v[242:243], v223 offset:{1024 + (2*b_+1)*64 + 8}")
                for X in (1, 0):
                    for h in range(2):
                        tt = 2 * b_ + h
                        st_ = f"v[{ST+2*tt}:{ST+2*tt+1}]"
                        if X == 0: a(f"v_mul_f32 v{ST+2*tt+1}, s{t4}, v{ST+2*tt+1}")
                        c0 = acc(tt, 2 * X)
                        for e_ in range(2):
                            c = acc(tt, 2 * X + e_); cs = 192 + 4 * (2 * X + e_)
                            for h2 in range(2):
                                a(f"v_pk_fma_f32 v[{c+2*h2}:{c+2*h2+1}], v[{cs+2*h2}:{cs+2*h2+1}], {st_}, v[{c+2*h2}:{c+2*h2+1}] {BC}")
                            for h2 in range(2):
                                a(f"v_pk_mul_f32 v[{c+2*h2}:{c+2*h2+1}], v[{c+2*h2}:{c+2*h2+1}], {st_} op_sel:[0,1]")
                        c1 = acc(tt, 2 * X + 1)
                        a(f"v_cvt_pk_bf16_f32 v{c0}, v{c0}, v{c0+1}")
                        a(f"v_cvt_pk_bf16_f32 v{c0+1}, v{c0+2}, v{c0+3}")
                        a(f"v_cvt_pk_bf16_f32 v{c0+2}, v{c1}, v{c1+1}")
                        a(f"v_cvt_pk_bf16_f32 v{c0+3}, v{c1+2}, v{c1+3}")
                        if X: a(f"buffer_store_dwordx4 v[{c0}:{c0+3}], v{vO+1}, {WSR}, s{t2} offen offset:{h*64} {QSC}")
                        else: a(f"buffer_store_dwordx4 v[{c0}:{c0+3}], v{vO}, {R(sOut) if OWN else WSR}, s{t1} offen offset:{h*256} {QSC}")
                        if X: own(vLk, c0, b_ * 4096 + h * 64)
                        else: own(vLq, c0, b_ * 2048 + h * 256)
                a("s_waitcnt lgkmcnt(0)")
                for vt in range(2):
                    c0 = acc(2 * b_, 4 + vt)
                    for e_ in range(2):
                        c = acc(2 * b_ + e_, 4 + vt)
                        rs = ((244, 246), (220, 242))[e_]
                        for h2 in range(2):
                            a(f"v_pk_fma_f32 v[{c+2*h2}:{c+2*h2+1}], v[{212+4*e_+2*h2}:{213+4*e_+2*h2}], v[{208+2*vt}:{209+2*vt}], v[{c+2*h2}:{c+2*h2+1}] {BC}")
                        for h2 in range(2):
                            a(f"v_pk_mul_f32 v[{c+2*h2}:{c+2*h2+1}], v[{c+2*h2}:{c+2*h2+1}], v[{rs[h2]}:{rs[h2]+1}]")
                    c1 = acc(2 * b_ + 1, 4 + vt)
                    a(f"v_cvt_pk_bf16_f32 v{c0}, v{c0}, v{c0+1}")
                    a(f"v_cvt_pk_bf16_f32 v{c0+1}, v{c0+2}, v{c0+3}")
                    a(f"v_cvt_pk_bf16_f32 v{c0+2}, v{c1}, v{c1+1}")
                    a(f"v_cvt_pk_bf16_f32 v{c0+3}, v{c1+2}, v{c1+3}")
                    a(f"buffer_store_dwordx4 v[{c0}:{c0+3}], v{vO}, {WSR}, s{t2} offen offset:{2048 + vt*256} {QSC}")
                    own(vLv, c0, b_ * 4096 + 2048 + vt * 256)
                a(f"s_add_u32 s{t1}, s{t1}, 2048")
                a(f"s_add_u32 s{t2}, s{t2}, 4096")
            if OWN:
                stp(a, "e1")
                a("s_waitcnt lgkmcnt(0)")
                srd(a, sOut, 4, 0, 0)
                for r in (sH1, sH2, t3, t4): a(f"s_mov_b32 s{r}, 0")
                at_init(); g2_setup()
                a(f"s_add_u32 s{sSo}, s{sSo}, 32768")
                a(so_wrap)
                a(f"v_add_u32 v{U}, {LDS_W1}, v{vDma}")
                a(f"v_lshlrev_b32 v{U+1}, 7, v{L}")
                a(f"v_and_b32 v{U+2}, 0xf80, v{U+1}")
                a(f"s_add_u32 s{t1}, s{sQO}, 131072")
                a(f"s_sub_u32 s{t0}, s{t1}, {WS_Q}")
                a(f"s_lshl_b32 s{t0}, s{t0}, 1")
                a(f"s_add_u32 s{t0}, s{t0}, {WS_KV}")
                a("s_waitcnt vmcnt(0)")
                a("s_barrier")
                stp(a, "e2")
                publish(92, T)
                if WARM:
                    a(f"buffer_load_dword v{U+3}, v{U+2}, {WSR}, s{t1} offen sc1")
                    a(f"buffer_load_dword v{U+3}, v{U+1}, {WSR}, s{t0} offen sc1")
                stp(a, "e4")
                for x in range(2):
                    for h in range(2):
                        a(f"ds_read_b128 v[{Q[x]+4*h}:{Q[x]+4*h+3}], v{U} offset:{x*2048+h*1024}")
            else:
                stp(a, "e1")
                a("s_waitcnt vmcnt(0)")
                a("s_barrier")
                stp(a, "e2")
                publish(92, T)
                stp(a, "e4")
                for g_ in at_load_groups(): a.extend(g_)
                srd(a, sOut, 4, 0, 0)
                for r in (sH1, sH2, t3, t4): a(f"s_mov_b32 s{r}, 0")
                at_init(); g2_setup()
                a("s_waitcnt vmcnt(2)")
    g1("ffn")
    a("L_g1_qkv:")
    g1("qkv")

    a("L_at_entry:")
    stp(a, "atentry")
    a("s_barrier")
    def rdK(t, tl):
        b = Kf[t & 1]
        return [f"ds_read_b128 v[{b}:{b+3}], v{vCur} offset:{tl*4096}", f"ds_read_b128 v[{b+4}:{b+7}], v{vCur} offset:{tl*4096+1024}"]
    def rdV(t, tl):
        b = Vf[t & 1]
        return [f"ds_read_b128 v[{b}:{b+3}], v{vCur} offset:{tl*4096+2048}", f"ds_read_b128 v[{b+4}:{b+7}], v{vCur} offset:{tl*4096+3072}"]
    def qk(x, t, c0=None):
        s = S[x]; k = Kf[t & 1]; q = Q[x]
        c = f"v[{NM[x]}:{NM[x]+15}]" if c0 is None else c0
        return [f"v_mfma_f32_32x32x16_bf16 v[{s}:{s+15}], v[{k}:{k+3}], v[{q}:{q+3}], {c}",
                f"v_mfma_f32_32x32x16_bf16 v[{s}:{s+15}], v[{k+4}:{k+7}], v[{q+4}:{q+7}], v[{s}:{s+15}]"]
    def PV(x, t, h):
        v = Vf[t & 1]
        return f"v_smfmac_f32_32x32x32_bf16 v[{O[x]}:{O[x]+15}], v[{v+4*h}:{v+4*h+3}], v[{D[x]+8*h}:{D[x]+8*h+7}], v{IDX}"
    def LS(x, h):
        return f"v_smfmac_f32_16x16x64_bf16 v[{Lr[x]}:{Lr[x]+3}], v[{ONE}:{ONE+3}], v[{D[x]+8*h}:{D[x]+8*h+7}], v{IDX}"
    a.extend(rdK(0, 0))
    a.extend(rdV(0, 0))
    a("s_waitcnt lgkmcnt(0)")
    a.extend(qk(0, 0, "0"))
    a.extend(qk(1, 0, "0"))
    a("s_nop 7")
    a("s_nop 1")
    for x in range(2):
        s0 = S[x]
        a(f"v_max3_f32 v{U}, v{s0}, v{s0+1}, v{s0+2}")
        for i in range(3, 15, 2): a(f"v_max3_f32 v{U}, v{U}, v{s0+i}, v{s0+i+1}")
        a(f"v_max_f32 v{U}, v{U}, v{s0+15}")
        a(f"v_mov_b32 v{U+2}, v{U}")
        a("s_nop 1")
        a(f"v_permlane32_swap_b32 v{U}, v{U+2}")
        a(f"v_max_f32 v{U}, v{U}, v{U+2}")
        a(f"v_sub_f32 v{NM[x]}, 0, v{U}")
        a(f"v_sub_f32 v{NM[x]+1}, 0, v{U}")
        for i in range(2, 16, 2): a(f"v_mov_b64 v[{NM[x]+i}:{NM[x]+i+1}], v[{NM[x]}:{NM[x]+1}]")
        if x == 0:
            for i in range(0, 16, 2): a(f"v_pk_add_f32 v[{s0+i}:{s0+i+1}], v[{s0+i}:{s0+i+1}], v[{NM[x]}:{NM[x]+1}]")
    a("s_nop 1")
    stp(a, "atloop")

    def acc2(tt, ft): return 128 + (tt * 4 + ft) * 4
    def ab(buf, tt): return buf * 32 + tt * 4
    def gm(v, tt, ft):
        c = acc2(tt, ft); w = WF[v & 1] + ft * 4; x = ab(v, tt)
        return f"v_mfma_f32_16x16x32_bf16 a[{c}:{c+3}], v[{w}:{w+3}], a[{x}:{x+3}], a[{c}:{c+3}]"
    def aload(buf, tt):
        r = ab(buf, tt)
        return f"buffer_load_dwordx4 a[{r}:{r+3}], v{vA[tt>>1]}, {WSR}, s{sKA} offen offset:{(tt&1)*1024} {ASC}"
    def wdma(pc):
        return f"buffer_load_dwordx4 v{vW+pc}, {R(sW)}, s{sKW} offen offset:{pc*1024} lds"
    def wread(slot, buf, ft):
        r = WF[buf] + ft * 4
        return [f"ds_read_b64_tr_b16 v[{r+2*rd}:{r+2*rd+1}], v{vWo if ft&1 else vWe} offset:{slot*4096 + rd*2048 + (ft>>1)*512}" for rd in range(2)]
    W0 = "s_waitcnt lgkmcnt(0)"
    def phase(x, t, doqk=True, f=None):
        y = 1 - x
        f = f or {}
        E = lambda i: f"v_exp_f32 v{D[x]+i}, v{S[x]+i}"
        q = qk(y, t + x) if doqk else [None, None]
        g = lambda k: f.get(k, [])
        seq = [q[0]] + g(0) + [E(0), E(1), E(2), q[1]] + g(1) + [E(3), E(4), E(5), PV(y, t - 1 + x, 1)] + g(2) + [E(6), E(7), E(8),
               LS(y, 1)] + g(3) + [E(9), E(10), PV(x, t, 0)] + g(4) + [E(11), E(12), E(13), LS(x, 0)] + g(5) + [E(14), E(15)]
        a.extend([z for z in seq if z])
    ring_adv = [f"s_add_u32 s{sMb}, s{sRing}, s{sM0k}", f"s_add_u32 s{sRing}, s{sRing}, 32768", f"s_cmp_eq_u32 s{sRing}, 98304",
                f"s_cselect_b32 s{sRing}, 0, s{sRing}"]
    kv_sel = [f"s_cmp_gt_u32 s{sCntA}, 5", f"s_cselect_b32 s{sKV+2}, 0, {SZ_KV}"]
    hq = list(parked)
    kv0 = kv_groups(2, 4 if KVD else 6)
    kv1 = kv_groups(4, 8) if KVD else []
    def it_pure(c, j, lastpure):
        t = j + 1
        k = rdK(t + 1, j); v = rdV(t + 1, j)
        fa = {0: [k[0]], 1: [k[1]], 5: [W0]}
        fb = {0: [v[0]], 1: [v[1]], 5: [W0]}
        if j == 0:
            fa[2] = [f"s_mov_b32 m0, s{sMb}", so_wrap]
            if c > 5: fa[3] = [f"s_mov_b32 s{sKV+2}, 0"]
        if j == 4:
            fa[2] = [f"s_add_u32 m0, s{sMb}, 16384", f"s_add_u32 s{sSo}, s{sSo}, 16384"]
        fa[4] = [kvdma(j)]
        if j == 7:
            fa[2] = ring_adv[0:2]; fa[3] = ring_adv[2:4]
            fb[2] = [f"s_add_u32 s{sSo}, s{sSo}, 16384"]
        if c == 0:
            if j == 4: fa[2] = []
            if j == 7: fb[2] = []
            fa[4] = []
            if j == JLD: fa[4] = [flagld(f"v{vFa}")]
            if j > JCHK:
                for f in (fa, fb):
                    for sl in (3, 4):
                        if kv0: f[sl] = f.get(sl, []) + kv0.pop(0)
        if c == 1 and KVD:
            if j in (0, 4): fa[2] = []
            if j == 7: fb[2] = []
            fa[4] = kv1.pop(0); fb[4] = kv1.pop(0)
        for f in (fa, fb):
            for sl in (2, 3)[:SPP]:
                if hq and 8 * c + j >= HST and not any(" lds" in z for z in f.get(sl, [])):
                    u = hq.pop(0); r = 4 * parked.index(u)
                    f[sl] = f.get(sl, []) + hstore(u, f"a[{r}:{r+(1 if u < 8 else 3)}]")
        if lastpure and j == POLLAT:
            fb[4] = fb.get(4, []) + [flagld(f"v{vFa2}")]
        return fa, fb, t
    vK = [240, 241, 242, 243]; sStep, sMask = sT[0], sT[1]
    def kvdma2(q):
        return f"buffer_load_dwordx4 v{vK[q&3]}, {R(sKV)}, s{sSo} offen offset:{(q&3)*1024} {SC} lds"
    def kv_m0(j):
        return f"s_mov_b32 m0, s{sMb}" if j < 4 else f"s_add_u32 m0, s{sMb}, 16384"
    def trip_sa(j, x):
        l = []
        if j == 0 and x == 0: l += [f"s_and_b32 s{sSo}, s{sSo}, s{sMask}"]
        if j == 3 and x == 1: l += [f"s_add_u32 s{sSo}, s{sSo}, s{sStep}"]
        if j == 7 and x == 1: l += [f"s_add_u32 s{sSo}, s{sSo}, s{sStep}"] + ring_adv
        return l
    def kstep_adv():
        return [f"s_add_u32 s{sKA}, s{sKA}, {KS*131072}", f"s_add_u32 s{sKW}, s{sKW}, {KS*65536}"]
    def it_load(j):
        t = j + 1; v = j >> 1
        for x in range(2):
            ph = 2 * (j & 1) + x
            kv = rdK(t + 1, j) if x == 0 else rdV(t + 1, j)
            tr = wread(0, 0, ph) if v == 3 else []
            sa = trip_sa(j, x)
            wait = "s_waitcnt vmcnt(28) lgkmcnt(0)" if ph == 3 else W0
            f = {0: [kv[0], kv[1]], 1: sa[0:2] + tr, 2: [f"s_add_u32 m0, s{sM0g}, {v*4096}", aload(v, 2 * ph)], 3: sa[2:] + [wdma(ph)],
                 4: ([kv_m0(j)] if x == 0 else []), 5: [wait, aload(v, 2 * ph + 1)] + ([kvdma2(j)] if x == 0 else [])}
            if ph == 3: f[5] += kstep_adv()
            if j == 7 and x == 1:
                f[4] = [f"s_add_u32 s{sCntA}, s{sCntA}, 1"]
                f[5] += ["s_barrier", f"v_add_u32 v{vCur}, s{sRing}, v{vL16}"]
            phase(x, t, f=f)
    def it_comb(j):
        t = j + 1; v = j >> 1
        for x in range(2):
            y = 1 - x
            ph = 2 * (j & 1) + x
            E = lambda i: f"v_exp_f32 v{D[x]+i}, v{S[x]+i}"
            q = qk(y, t + x)
            kv = rdK(t + 1, j) if x == 0 else rdV(t + 1, j)
            tr = wread((v + 1) & 3, (v + 1) & 1, ph)
            Gm = [gm(v, 2 * ph, ft) for ft in range(4)] + [gm(v, 2 * ph + 1, ft) for ft in range(3, -1, -1)]
            sa = trip_sa(j, x) + [None] * 5
            wait = "s_waitcnt vmcnt(28) lgkmcnt(0)" if ph == 3 else W0
            last = (j == 7 and x == 1)
            seq = [Gm[0], kv[0], kv[1], q[0], sa[0], E(0), E(1), E(2), Gm[1], sa[1], E(3), q[1], sa[2], E(4), E(5), E(6), Gm[2], sa[3], E(7),
                   PV(y, t - 1 + x, 1), tr[0], E(8), E(9), LS(y, 1), tr[1], Gm[3], sa[4], E(10), PV(x, t, 0), aload(v, 2 * ph), E(11), E(12),
                   Gm[4], f"s_add_u32 m0, s{sM0g}, {v*4096}", E(13), LS(x, 0), wdma(ph), Gm[5],
                   kv_m0(j) if x == 0 else (f"s_add_u32 s{sCntA}, s{sCntA}, 1" if last else None), E(14), Gm[6], wait,
                   "s_barrier" if last else None, E(15), Gm[7], aload(v, 2 * ph + 1), kvdma2(j) if x == 0 else None]
            if CPF and j == 2 and x == 1: seq.append(f"global_load_dwordx4 v[{U+4}:{U+7}], v[248:249], off")
            if ph == 3: seq += kstep_adv()
            if last: seq += [f"v_add_u32 v{vCur}, s{sRing}, v{vL16}", f"s_bitcmp1_b32 {0x1c0 if L2T == 7 else 0x140}, s{sCntA}"]
            a.extend([z for z in seq if z])

    NPURE = 7 - NC
    seqs = []
    for c in range(NPURE):
        for j in range(1 if c == 0 else 0, 8):
            seqs.append((c, j) + it_pure(c, j, c == NPURE - 1))
    assert not hq and not kv0 and not kv1
    log = []
    def younger(pred):
        idx = [i for i, tag in enumerate(log) if pred(tag)]
        return len(log) - 1 - idx[-1] if idx else len(log)
    for (c, j, fa, fb, t) in seqs:
        for f in (fa, fb):
            for sl in range(5):
                for z in f.get(sl, []):
                    if z.startswith("buffer_"):
                        log.append("kv%d" % (sum(1 for g in log if g.startswith("kv")) // 8 - 1) if " lds" in z else ("st" if "store" in z else "poll"))
        need = 63
        pub = (8 * c + j == PUBAT)
        if j == 7: need = min(need, younger(lambda g: g == "kv%d" % (c - 1)))
        if pub: need = min(need, younger(lambda g: g == "st"))
        if j == 7 or pub:
            fb[5] = [f"s_waitcnt vmcnt({need}) lgkmcnt(0)", "s_barrier"]
            if j == 7: fb[5].append(f"v_add_u32 v{vCur}, s{sRing}, v{vL16}")
        phase(0, t, f=fa)
        phase(1, t, f=fb)
        if c == 0 and j == JCHK:
            a(f"s_waitcnt vmcnt({younger(lambda g: g == 'poll')})")
            poll(f"v{vFa}", True)
            if HALF:
                assert JCHK <= 3
                a("s_barrier")
            stp(a, "fqok")
        if pub:
            assert log.count("st") == len(parked)
            a(f"s_cmp_eq_u32 s{sPub}, 0")
            a("s_cbranch_scc1 L_at_np")
            publish(sPub, U)
            a("L_at_np:")
    stp(a, "pureend")
    a(f"s_mov_b32 s{sCntA}, {NPURE}")
    for q in range(4): a(f"v_mov_b32 v{vK[q]}, v{vDma}")
    a(f"s_mov_b32 s{sStep}, 16384")
    a(f"s_mov_b32 s{sMask}, {SZ_KV - 1}")
    a(f"s_waitcnt vmcnt({younger(lambda g: g == 'poll')})")
    poll(f"v{vFa2}", True)
    stp(a, "fhok")
    for j in range(8): it_load(j)
    if NC:
        stp(a, "cb0")
        a(".p2align 6")
        a("L_cb_loop:")
        for j in range(8): it_comb(j)
        a("s_cbranch_scc0 L_cb_loop")
        a(f"s_cmp_eq_u32 s{sCntA}, 6")
        a("s_cbranch_scc1 L_cb_sw")
        if L2T == 7:
            a(f"s_cmp_eq_u32 s{sCntA}, 7")
            a("s_cbranch_scc1 L_cb_t")
        o = Asm(); sv = a.lines; a.lines = o.lines
        a("L_cb_sw:")
        for q in range(4): a(f"v_mov_b32 v{vK[q]}, v{vW+q}")
        srd(a, sKV, pWO, 0, 1024 * 2048)
        a(f"s_lshl_b32 s{sSo}, s{sWave}, {19 if KQ else 16}")
        a(f"s_mov_b32 s{sStep}, {KS*65536}")
        a(f"s_mov_b32 s{sMask}, -1")
        if L2T != 6: a("s_branch L_cb_loop")
        if L2T:
            assert KQ and G2MAP == 0
            a("L_cb_t:")
            a(f"v_and_b32 v{U}, 31, v{L}")
            a(f"v_lshlrev_b32 v{U+1}, 11, v{U}")
            a(f"v_lshlrev_b32 v{U}, 7, v{U}")
            a(f"s_and_b32 s{t0}, s{sSlot}, 3")
            a(f"s_lshl_b32 s{t1}, s{sCb}, 7")
            a(f"s_mul_i32 s{t2}, s{sWave}, 28")
            a(f"s_add_u32 s{t2}, s{t2}, 24")
            a(f"s_add_u32 s{t3}, s{t2}, s{t0}")
            a(f"s_lshl_b32 s{t3}, s{t3}, 16")
            a(f"s_add_u32 s{t3}, s{t3}, s{t1}")
            a(f"buffer_load_dword v{U+3}, v{U+1}, {R(sW)}, s{t3} offen")
            a(f"s_lshr_b32 s{t3}, s{sSlot}, 3")
            a(f"s_add_u32 s{t2}, s{t2}, s{t3}")
            a(f"s_lshl_b32 s{t2}, s{t2}, 17")
            a(f"s_lshl_b32 s{t3}, s{sRb2}, 13")
            a(f"s_add_u32 s{t2}, s{t2}, s{t3}")
            a(f"s_and_b32 s{t3}, s{sSlot}, 4")
            a(f"s_lshl_b32 s{t3}, s{t3}, 10")
            a(f"s_add_u32 s{t2}, s{t2}, s{t3}")
            a(f"s_add_u32 s{t2}, s{t2}, {WS_A2 + 32*131072}")
            a(f"buffer_load_dword v{U+3}, v{U}, {WSR}, s{t2} offen sc1")
            a(f"s_lshl_b32 s{t2}, s{sWave}, 3")
            a(f"s_add_u32 s{t2}, s{t2}, s{t0}")
            a(f"s_add_u32 s{t2}, s{t2}, 4")
            a(f"s_lshl_b32 s{t2}, s{t2}, 16")
            a(f"s_add_u32 s{t2}, s{t2}, s{t1}")
            a(f"buffer_load_dword v{U+3}, v{U+1}, {R(sKV)}, s{t2} offen")
            srd(a, sX, pX, 0, 4 * MB)
            a(f"s_lshl_b32 s{t2}, s{sRb2}, 2")
            a(f"s_add_u32 s{t2}, s{t2}, s{sWave}")
            a(f"s_lshl_b32 s{t2}, s{t2}, 16")
            a(f"s_add_u32 s{t2}, s{t2}, s{t1}")
            a(f"buffer_load_dword v{U+3}, v{U+1}, {R(sX)}, s{t2} offen")
            a("s_branch L_cb_loop")
        ool.extend([z.text for z in o.lines]); a.lines = sv
    stp(a, "cb1")
    phase(0, 63)
    phase(1, 63, doqk=False)
    a("s_nop 1")
    a(PV(1, 63, 1)); a(LS(1, 1))
    stp(a, "atend")
    a(f"v_bfe_u32 v{U+2}, v{L}, 4, 1")
    a(f"v_lshlrev_b32 v{U+2}, 10, v{U+2}")
    a(f"v_lshrrev_b32 v{U+3}, 5, v{L}")
    a(f"v_lshl_add_u32 v{U+2}, v{U+3}, 8, v{U+2}")
    a(f"v_and_b32 v{U+3}, 15, v{L}")
    a(f"v_lshl_add_u32 v{U+2}, v{U+3}, 4, v{U+2}")
    a(f"s_lshr_b32 s{t0}, s{sRb2}, 1")
    a(f"s_lshl_b32 s{t0}, s{t0}, 8")
    a(f"s_add_u32 s{t0}, s{t0}, {WS_FL + FO}")
    a(f"v_and_b32 v{U+3}, 31, v{L}")
    a(f"v_lshl_add_u32 v{vFa2}, v{U+3}, 3, s{t0}")
    a(f"s_add_u32 s{sQO}, s{sQO}, {WS_A2 - WS_Q}")
    a(f"s_mov_b32 s{t0}, {f2u(2.0**40):#x}")
    a(f"v_pk_mul_f32 v[{U}:{U+1}], v[{O[0]}:{O[0]+1}], 0 op_sel_hi:[1,0]")
    for i in range(2, 32, 2):
        a(f"v_pk_fma_f32 v[{U}:{U+1}], v[{O[0]+i}:{O[0]+i+1}], 0, v[{U}:{U+1}] op_sel_hi:[1,0,1]")
    a(f"v_add_f32 v{U}, v{U}, v{U+1}")
    a(f"v_add3_u32 v{U+1}, 0, 0, 0") if False else None
    a(f"v_add_f32 v{U+1}, v{Lr[0]}, v{Lr[1]}")
    a(f"v_add_f32 v{U}, v{U}, v{U+1}")
    a(f"v_cmp_ngt_f32 vcc, s{t0}, v{U}")
    a("s_nop 1")
    a("s_cbranch_vccnz L_at_slow")
    a("L_at_fin:")
    for x in range(2):
        a(f"v_rcp_f32 v{U}, v{Lr[x]}")
        a("s_nop 0")
        a(f"v_mul_f32 v{U}, v{U}, v{vSig+x}")
        for i in range(0, 16, 2): a(f"v_pk_mul_f32 v[{O[x]+i}:{O[x]+i+1}], v[{O[x]+i}:{O[x]+i+1}], v[{U}:{U+1}] op_sel_hi:[1,0]")
        for u in range(2):
            for e in range(2):
                c = O[x] + 8 * e + 4 * u
                a(f"v_cvt_pk_bf16_f32 v{D[x]+4*u+2*e}, v{c}, v{c+1}")
                a(f"v_cvt_pk_bf16_f32 v{D[x]+4*u+2*e+1}, v{c+2}, v{c+3}")
            a(f"buffer_store_dwordx4 v[{D[x]+4*u}:{D[x]+4*u+3}], v{U+2}, {WSR}, s{sQO} offen offset:{x*2048+u*512} {SC}")

    assert 2 < NC <= 5
    S0 = 4 * NC
    X = 112; WF8 = [0, 16, 32, 48, 64, 80, 96, 128]
    vE = [220, 221, 236, 237]; vRd = [233, 234, 235]; vRw = 238; vXs = 239
    ol = ["old"] + ["ost"] * 4
    def need2(*tags):
        idx = [i for i, t in enumerate(ol) if t in tags or t == "old"]
        return min(63, len(ol) - 1 - idx[-1])
    def abuf(s_, tt):
        r = ab(s_ & 3, tt) if s_ < 28 else ab(tt & 3, s_ - 28)
        return f"a[{r}:{r+3}]"
    def wfr(s_): return WF8[s_ - 28] if s_ >= 28 else WF[s_ & 1]
    def gm2(s_, tt, ft):
        c = acc2(tt, ft); w = wfr(s_) + ft * 4
        return f"v_mfma_f32_16x16x32_bf16 a[{c}:{c+3}], v[{w}:{w+3}], {abuf(s_, tt)}, a[{c}:{c+3}]"
    def wloc(s_):
        if s_ < 28: return ("r", s_ & 3)
        return ("e", (4, 5, 0, 1, 2, 3)[s_ - 28]) if s_ < 34 else ("r", s_ - 34)
    def wrd(s_):
        k, sl = wloc(s_); l = []
        for ft in range(4):
            r = wfr(s_) + ft * 4
            if k == "r": v = vWo if ft & 1 else vWe; o = sl * 4096
            else: v = vE[(ft & 1) + 2 * (sl >> 2)]; o = (sl & 3) * 16384
            l += [f"ds_read_b64_tr_b16 v[{r+2*rd}:{r+2*rd+1}], v{v} offset:{o + rd*2048 + (ft>>1)*512}" for rd in range(2)]
        return l
    def wld(s_):
        k, sl = wloc(s_)
        g = [([f"s_add_u32 m0, s{sM0g}, {sl*4096}" if k == "r" else f"s_add_u32 m0, s{sM0k}, {sl*16384}"], None)]
        for pc in range(4):
            g.append(([f"buffer_load_dwordx4 v{vW+pc}, {R(sW if s_ < 28 else sKV)}, s{sKW if s_ < 28 else sSo} offen offset:{pc*1024} lds"], f"W{s_}"))
        g.append(([f"s_add_u32 s{sKW if s_ < 28 else sSo}, s{sKW if s_ < 28 else sSo}, {KS*65536}"], None))
        return g
    sO4 = [t0, t1, t2, t3, 88, 89, 90, 91]
    def ald(s_, tt):
        so = sO4[s_ - 28] if s_ >= 28 else sKA
        return ([f"buffer_load_dwordx4 {abuf(s_, tt)}, v{vA[tt>>1]}, {WSR}, s{so} offen offset:{(tt&1)*1024} {ASC}"], f"A{s_}_{tt}")
    def order(s_): return [(tt, ft) for tt in range(8) for ft in (range(4) if tt % 2 == 0 else range(3, -1, -1))]
    def emit(m, vm_groups, pos, ds=(), misc=(), bud=8, ds2=(), wr=()):
        for g, tag in vm_groups:
            if tag: ol.append(tag)
        sds = [(8 + 2 * i, x) for i, x in enumerate(ds)] + [((i * 26) // max(1, len(ds2)), x) for i, x in enumerate(ds2)] + list(wr)
        a.extend(sched(m, [[(p, g) for p, (g, tag) in zip(pos, vm_groups)], sds, list(misc)], bud))
    def begin(s_):
        stp(a, f"s{s_}")
        a(f"s_waitcnt vmcnt({need2(*([f'A{s_}_{tt}' for tt in range(8)] + [f'W{s_+1}']))}) lgkmcnt(0)")
    e = Asm(); sv = a.lines; a.lines = e.lines
    a(f"s_sub_u32 s{t4}, s{sM0k}, s{sM0g}")
    a(f"v_add_u32 v{vE[0]}, s{t4}, v{vWe}")
    a(f"v_add_u32 v{vE[1]}, s{t4}, v{vWo}")
    a(f"v_add_u32 v{vE[2]}, 0x10000, v{vE[0]}")
    a(f"v_add_u32 v{vE[3]}, 0x10000, v{vE[1]}")
    srd(a, sX, pX, 0, 4 * MB)
    srd(a, sOut, pOut, 0, 4 * MB)
    a(f"s_mov_b32 s{sPf}, 32768")
    a(f"s_lshl_b32 s{t4}, s{sRb2}, 7")
    a(f"s_lshl_b32 s{t5}, s{sWave}, 5")
    a(f"s_add_u32 s{t4}, s{t4}, s{t5}")
    a(f"s_lshl_b32 s{sH1}, s{t4}, 2")
    a(f"s_add_u32 s{sH1}, s{sH1}, {WS_STAT + 8192}")
    a(f"s_lshl_b32 s{t4}, s{t4}, 11")
    a(f"s_lshl_b32 s{t5}, s{sCb}, 7")
    a(f"s_add_u32 s{t4}, s{t4}, s{t5}")
    el1 = [x.text for x in e.lines]; e = Asm(); a.lines = e.lines
    a(f"v_and_b32 v{vRw}, 15, v{L}")
    a(f"v_lshl_add_u32 v{vX}, v{vRw}, 11, s{t4}")
    a(f"v_lshlrev_b32 v{vRd[0]}, 2, v{vRw}")
    a(f"v_bfe_u32 v{vRw}, v{L}, 4, 1")
    a(f"v_lshl_add_u32 v{vXs}, v{vRw}, 5, v{vX}")
    a(f"v_lshrrev_b32 v{vRw}, 5, v{L}")
    a(f"v_lshl_add_u32 v{vXs}, v{vRw}, 4, v{vXs}")
    a(f"v_add_u32 v{vRw}, s{sM0k}, v{vL16}")
    el2 = [x.text for x in e.lines]; e = Asm(); a.lines = e.lines
    for pi in range(3):
        a(f"s_sub_u32 s{t4}, s{sWave}, {pi + 1}")
        a(f"s_and_b32 s{t4}, s{t4}, 3")
        a(f"s_lshl_b32 s{t4}, s{t4}, 12")
        a(f"s_add_u32 s{t4}, s{t4}, {pi * 32768}")
        a(f"v_add_u32 v{vRd[pi]}, s{t4}, v{vL16}")
    a(f"s_lshl_b32 s{t4}, s{sWave}, {20 if KQ else 17}")
    for i in range(8): a(f"s_add_u32 s{sO4[i]}, s{t4}, {WS_A2 + i * KS * 131072}")
    el3 = [x.text for x in e.lines]; a.lines = sv
    def grp(l):
        out = []
        for z in l:
            if z.split()[0] in ("s_addc_u32", "s_subb_u32"): out[-1].append(z)
            else: out.append([z])
        return out
    for s_ in range(S0, 24):
        if s_ == S0: stp(a, "s20")
        begin(s_) if s_ > S0 else a("s_waitcnt lgkmcnt(0)")
        vg = wld(s_ + 4) + [ald(s_ + 4, tt) for tt in range(8)] + [([f"s_add_u32 s{sKA}, s{sKA}, {KS*131072}"], None)]
        pos = [0, 1, 2, 3, 4, 5] + [max(4 * tt + 3, 6 + tt) for tt in range(8)] + [31]
        misc = {S0: grp(el1), S0 + 1: grp(el2)}.get(s_, [])
        emit([gm2(s_, tt, ft) for tt, ft in order(s_)], vg, pos, wrd(s_ + 1), [(i + 1, g) for i, g in enumerate(misc)])
        if s_ == S0 + PUBSTEP:
            stp(a, "pb")
            a(f"s_waitcnt vmcnt({need2('ost')})")
            a("s_barrier")
            publish(93, 184)
        elif s_ < 20 + PUBSTEP:
            pass
    q = []
    for s_ in range(32, 36): q += wld(s_)
    xl = [([f"buffer_load_dwordx4 v[{X+(h*2+p)*4}:{X+(h*2+p)*4+3}], v{vXs}, {R(sX)}, {'0' if h == 0 else f's{sPf}'} offen offset:{p*64}"], "x")
          for h in range(2) for p in range(2)]
    xl += [([f"buffer_load_dword v{vRs2+h}, v{vRd[0]}, {WSR}, s{sH1} offen offset:{h*64} sc1"], "x") for h in range(2)]
    q = xl + q
    k = [i for i, (g, tag) in enumerate(q) if tag][POLLW]
    q.insert(k, ([flagld(f"v{vFa2}")], "poll"))
    def orow(tt): return [ald(s_, tt) for s_ in range(28, 36)]
    nq = CHK - 23
    per = (len(q) + nq - 1) // nq
    assert per >= 19 or nq > 1
    for s_ in range(24, 28):
        begin(s_)
        if s_ <= CHK: vg = q[:per]; q = q[per:]
        else: vg = orow(s_ - CHK - 1)
        ds = (wrd(s_ + 1) if s_ < 27 else []) + wrd(s_ + 4)
        emit([gm2(s_, tt, ft) for tt, ft in order(s_)], vg, [(i * 30) // len(vg) for i in range(len(vg))], [],
             [(i + 1, g) for i, g in enumerate(grp(el3))] if s_ == 25 else [], ds2=ds)
        if s_ == CHK:
            stp(a, "fopoll")
            a(f"s_waitcnt vmcnt({need2('poll')})")
            poll(f"v{vFa2}", True)
            stp(a, "fook")
    nrow = 27 - CHK
    for tt in range(nrow, 3):
        for g, tag in orow(tt): a.extend(g); ol.append(tag)
    a(f"s_waitcnt vmcnt({need2('W35')})")
    for s_ in range(32, 36): a.extend(wrd(s_))
    XF = 144; RB = [176, 0, 32]
    unp = [f"v_permlane16_swap_b32 v{X+4*i+j}, v{X+4*i+j+2}" for i in range(4) for j in range(2)]
    for i in range(16):
        unp += [f"v_lshlrev_b32 v{XF+2*i}, 16, v{X+i}", f"v_and_b32 v{XF+2*i+1}, 0xffff0000, v{X+i}"]
    for tt in range(8):
        stp(a, f"r{tt}")
        a(f"s_waitcnt vmcnt({need2(f'A35_{tt}')})" + (" lgkmcnt(0)" if tt == 0 else ""))
        m = [gm2(s_, tt, ft) for s_ in range(28, 36) for ft in (range(4) if s_ % 2 == 0 else range(3, -1, -1))]
        vg = orow(tt + 3) if tt + 3 < 8 else []
        wr = []
        if 1 <= tt <= 6:
            pt = tt - 1
            wr = [(8 + 4 * ft, f"ds_write_b128 v{vRw}, a[{acc2(pt, ft)}:{acc2(pt, ft)+3}] offset:{(pt & 3)*16384 + ft*1024}") for ft in range(4)]
            if pt == 3: wr.append((24, f"v_add_u32 v{vRw}, 0x10000, v{vRw}"))
        if tt == 6: wr.append((31, ["s_waitcnt lgkmcnt(0)", "s_barrier"]))
        mi = [(2 * i, z) for i, z in enumerate(unp[10 * tt:10 * tt + 10])] if tt < 4 else []
        if tt == 7:
            wr = [(8 * pi + i + (1 if pi else 0), f"ds_read_b128 v[{RB[pi]+4*i}:{RB[pi]+4*i+3}], v{vRd[pi]} offset:{(i >> 2)*16384 + (i & 3)*1024}")
                  for pi in range(3) for i in range(8)]
            mi = [(10 + i, f"v_accvgpr_read_b32 v{112+i}, a{acc2(6, 0)+i}") for i in range(16)]
        emit(m, vg, [4 * i + 1 for i in range(len(vg))], [], mi, ds2=[], wr=wr)
    stp(a, "g2end")
    a("s_waitcnt lgkmcnt(0)")
    for i in range(8):
        o_ = 112 + 4 * i if i < 4 else 64 + 4 * i
        if i == 2:
            for j in range(16): a(f"v_accvgpr_read_b32 v{80+j}, a{acc2(7, 0)+j}")
        for j in (0, 2): a(f"v_pk_add_f32 v[{RB[0]+4*i+j}:{RB[0]+4*i+j+1}], v[{RB[0]+4*i+j}:{RB[0]+4*i+j+1}], v[{RB[1]+4*i+j}:{RB[1]+4*i+j+1}]")
        for j in (0, 2): a(f"v_pk_add_f32 v[{o_+j}:{o_+j+1}], v[{o_+j}:{o_+j+1}], v[{RB[2]+4*i+j}:{RB[2]+4*i+j+1}]")
        for j in (0, 2): a(f"v_pk_add_f32 v[{o_+j}:{o_+j+1}], v[{o_+j}:{o_+j+1}], v[{RB[0]+4*i+j}:{RB[0]+4*i+j+1}]")
        sel = "op_sel_hi:[1,0,1]" if i < 4 else "op_sel:[0,1,0]"
        for j in (0, 2): a(f"v_pk_fma_f32 v[{o_+j}:{o_+j+1}], v[{o_+j}:{o_+j+1}], v[{vRs2}:{vRs2+1}], v[{XF+4*i+j}:{XF+4*i+j+1}] {sel}")
        a(f"v_cvt_pk_bf16_f32 v{128+2*i}, v{o_}, v{o_+1}")
        a(f"v_cvt_pk_bf16_f32 v{128+2*i+1}, v{o_+2}, v{o_+3}")
        if i & 1:
            r = 128 + 2 * (i - 1)
            a("s_nop 1")
            a(f"v_permlane16_swap_b32 v{r}, v{r+2}")
            a(f"v_permlane16_swap_b32 v{r+1}, v{r+3}")
            a(f"buffer_store_dwordx4 v[{r}:{r+3}], v{vXs}, {R(sOut)}, {'0' if i < 4 else f's{sPf}'} offen offset:{((i>>1)&1)*64} {OSC}")
    stp(a, "outst")
    if DBGST:
        n = len(STAMPS) + 1
        a("s_waitcnt vmcnt(0)")
        stamp(a, n - 1)
        a(f"s_cmp_lg_u32 s2, {DBGST - 1}")
        a("s_cbranch_scc1 L_end")
        a(f"s_cmp_lg_u32 s{sWave}, 0")
        a("s_cbranch_scc1 L_end")
        a("s_waitcnt lgkmcnt(0)")
        srd(a, 88, pDbg, 0, 256)
        for i in range(n):
            a(f"s_sub_u32 s92, s{60+2*i}, s60")
            a(f"v_mov_b32 v1, s92")
            a(f"buffer_store_dword v1, off, s[88:91], 0 offset:{4*i}")
    else:
        stamp_flush(a, 1, len(STAMPS) + 1, 0)
    a("L_end:")
    a("s_endpgm")
    a("L_at_slow:")
    a(f"s_lshl_b32 s{t5}, s{sHead}, 18")
    a(f"s_add_u32 s{t5}, s{t5}, {WS_KV}")
    for x in range(2): a(f"v_mov_b32 v{NM[x]}, 0xff800000")
    for i in range(40): a(f"v_mov_b32 v{O[0]+i}, 0")
    a(f"s_mov_b32 s{sCntA}, 0")
    a("L_at_sloop:")
    k = Kf[0]; v = Vf[0]
    a(f"buffer_load_dwordx4 v[{k}:{k+3}], v{vL16}, {WSR}, s{t5} offen {SC}")
    a(f"buffer_load_dwordx4 v[{k+4}:{k+7}], v{vL16}, {WSR}, s{t5} offen offset:1024 {SC}")
    a(f"buffer_load_dwordx4 v[{v}:{v+3}], v{vL16}, {WSR}, s{t5} offen offset:2048 {SC}")
    a(f"buffer_load_dwordx4 v[{v+4}:{v+7}], v{vL16}, {WSR}, s{t5} offen offset:3072 {SC}")
    a("s_waitcnt vmcnt(0)")
    for x in range(2):
        M = NM[x]; AL = NM[x] + 1; MN = NM[x] + 2; s = S[x]
        a.extend(qk(x, 0, "0"))
        a("s_nop 15")
        a(f"v_max3_f32 v{U}, v{s}, v{s+1}, v{s+2}")
        for i in range(3, 15, 2): a(f"v_max3_f32 v{U}, v{U}, v{s+i}, v{s+i+1}")
        a(f"v_max_f32 v{U}, v{U}, v{s+15}")
        a(f"v_mov_b32 v{U+1}, v{U}")
        a("s_nop 1")
        a(f"v_permlane32_swap_b32 v{U}, v{U+1}")
        a(f"v_max3_f32 v{MN}, v{U}, v{U+1}, v{M}")
        a(f"v_sub_f32 v{AL}, v{M}, v{MN}")
        a(f"v_exp_f32 v{AL}, v{AL}")
        a(f"v_mov_b32 v{M}, v{MN}")
        for i in range(16): a(f"v_sub_f32 v{s+i}, v{s+i}, v{MN}")
        for i in range(16): a(f"v_exp_f32 v{D[x]+i}, v{s+i}")
        for i in range(16): a(f"v_mul_f32 v{O[x]+i}, v{O[x]+i}, v{AL}")
        a(f"v_mul_f32 v{Lr[x]}, v{Lr[x]}, v{AL}")
        a("s_nop 1")
        a(LS(x, 0)); a(LS(x, 1))
        a(PV(x, 0, 0)); a(PV(x, 0, 1))
        a("s_nop 15")
    a(f"s_add_u32 s{t5}, s{t5}, 4096")
    a(f"s_add_u32 s{sCntA}, s{sCntA}, 1")
    a(f"s_cmp_lt_u32 s{sCntA}, 64")
    a("s_cbranch_scc1 L_at_sloop")
    a("s_branch L_at_fin")
    a.extend(ool)
    a(".p2align 4")
    a("L_code_end:")
    return a, descriptor(name, 512, 256, 102)

if __name__ == "__main__":
    path = sys.argv[1] if len(sys.argv) > 1 else "cdna_kernels/" + NAME + ".s"
    a, d = gen_main()
    ref = open(os.path.join(os.path.dirname(os.path.abspath(__file__)), "..", "cdna_kernels", NAME + ".s.ref")).read()
    head = [l for l in ref.split("\n") if l.startswith(";") and "@launch" not in l and "Override" not in l and "grid=ceil" not in l]
    out = "\n".join(head) + "\n; @launch grid=(256,1,1) block=(256,1,1) lds=163840\n"
    out += '.amdgcn_target "amdgcn-amd-amdhsa--gfx950"\n.text\n' + a.text() + '.section .rodata,"a"\n.p2align 6\n' + d
    open(path, "w").write(out)
    probs = a.check("main")
    for p in probs: print("HAZARD", p)
    print("written", path, "hazards:", len(probs))
```

```python
import sys, os
sys.path.insert(0, os.path.dirname(os.path.abspath(__file__)))
from asmdsl import Asm, weave, sched
from gen import (NAME, KA_X, KA_WQKV, KA_WO, KA_W1, KA_W2, KA_OUT, KA_DBG, KA_WS, MB, f2u, srd, header, descriptor,
                 stamp, stamp_flush, STAMP, xreduce, bf16round, QSCALE)

def env(k, d): return type(d)(os.environ.get(k, d))
WS_Q, WS_KV, WS_A2 = 4 * MB, 8 * MB, 16 * MB
SZ_KV = 262144
WS_FL = 0
FQ, FH, FO, F0 = 0, 2048, 4096, 8192
WS_STAT = 16384
WS_CS = 65536
WS_END = 35 * MB
LDS_W1 = 98304
LDS_SCR = 90112
NC = env("NC", 5); ND = env("ND", 2); SPP = env("SPP", 2); PUBAT = env("PUBAT", 10); POLLAT = env("POLLAT", 5)
L2T = env("L2T", 0); TPF = env("TPF", 0); PNT = env("PNT", ""); CPF = env("CPF", 2); QPLAIN = env("QPLAIN", 0); WNT = env("WNT", ""); PFG1 = env("PFG1", 1); DMAF = env("DMAF", 0.6); RDF = env("RDF", 0.75); BUD = env("BUD", 4)
POLLSTEP = env("POLLSTEP", 2); PUBSTEP = env("PUBSTEP", 0); DBGST = env("DBGST", 0); JLD = env("JLD", 1); JCHK = env("JCHK", 3); POLLW = env("POLLW", 8); CHK = env("CHK", 25); HST = env("HST", 0); EPOLL = env("EPOLL", 31); ELEAD = env("ELEAD", 10)
OT = env("OT", 0); OTP = env("OTP", 8); W2P = env("W2P", ""); ROT = env("ROT", 8); WARM = env("WARM", 1); KVD = env("KVD", 1); HALF = env("HALF", 1); OWN = env("OWN", 1); XB = env("XB", 0); OSC = env("OSC", "sc1"); PRO = env("PRO", 1); XPOS = env("XPOS", 1); XNT = env("XNT", ""); KQ = env("KQ", 1); KS = 1 if KQ else 4; SC = "sc1"; ASC = env("ASC", "sc1"); G2MAP = env("G2MAP", 0)
STAMPS = env("STAMPS", "start,g1loop,g1end,e4,atentry,atloop,pureend,fhok,atend,fopoll,fook,g2end,outst").split(",")
def stp(a, name):
    if name in STAMPS: stamp(a, STAMPS.index(name))

DOC = """; One persistent kernel, 256 workgroups (one per CU, 4 waves), generated by a hand-written scheduler script.
;  phase 0  row statistics (mean, 1/sigma) of 8 rows per workgroup; column sums of the weight tile over 1/8 of K
;  phase 1  GEMM1  x @ [wqkv | w1], 256 x 192 / 256 x 224 tiles; LayerNorm is applied in the epilogue as
;           rs * (acc - mean * colsum); h = relu(.) and o are kept divided by rs, the last epilogue multiplies it back
;  phase 2  attention for one (head, 256 queries); exp2 of (score - max of the first key tile); after the loop the row
;           sums and accumulators are checked and, if the stand-in max was unsafe (sum >= 2^40, inf or NaN), the wave
;           20 of the 36 K-steps of GEMM2 are interleaved with the attention loop
;  phase 3  rest of GEMM2  [o | h] @ [wo ; w2], 128 x 64 tile, K split over the waves, + residual
; Hand-offs between workgroups: write-through (sc1) stores, s_waitcnt vmcnt + barrier, then an 8-byte flag holding a
; launch nonce (published through d_debug); consumers poll the flags (bounded) and read with sc1 loads.
"""

def gen_main():
    a = Asm()
    name = NAME + "_kernel"
    header(a, name)
    sWS, sW, sKV, sX, sOut = 8, 12, 16, 20, 24
    pW1, pW2, pWO, pX, pOut, pDbg = 28, 30, 32, 34, 36, 38
    sWave, sXcd, sSlot = 40, 41, 42
    sKA, sKW, sM0A, sM0W, sCnt, sWr, sWc, sRb, sCt = 43, 44, 45, 46, 47, 48, 49, 50, 51
    t0, t1, t2, t3, t4, t5 = 52, 53, 54, 55, 56, 57
    sPf = 58; sN = 6; sT = [3, 47, 51]
    sSo, sM0k, sCntA, sRing, sMb, sQO, sHead, sPub = 94, 95, 96, 97, 98, 99, 100, 101
    sAw, sArd, sCs, sTile = 96, 97, 98, 101
    sM0g, sRb2, sCb, sH1, sH2 = 45, 46, 48, 49, 50
    WSR = f"s[{sWS}:{sWS+3}]"
    def R(s): return f"s[{s}:{s+3}]"
    vAd, vWd, vAr, vArB, vWe1, vWo1, vWs1 = 224, 228, 232, 234, 235, 236, 237
    T = 238
    L, vL16, vDma, vFa, vFl = 250, 251, 252, 253, 254
    ST = 224; vO = 240
    Q = [0, 8]; S = [16, 32]; NM = [48, 64]; O = [80, 96]; Lr = [112, 116]; D = [120, 136]
    Kf = [152, 160]; Vf = [168, 176]; ONE = 184; WF = [188, 204]
    vCur, IDX, vW, vWe, vWo, vFa2, vX = 220, 221, 224, 228, 229, 230, 231
    vA = [222, 223, 246, 247]
    U = 232; vSig = 244; vRs2 = 244
    lab = [0]
    def flagld(areg, srdr=WSR):
        return f"buffer_load_dwordx2 v[{vFl}:{vFl+1}], {areg}, {srdr}, 0 {'offen' if areg != 'off' else ''} sc1"
    def poll(areg, first_done, srdr=WSR, val=f"s[{sN}:{sN+1}]", cmp="ne", mask=None):
        n = lab[0]; lab[0] += 1
        a(f"s_mov_b32 s{t5}, 0")
        if first_done: a(f"s_branch L_pc{n}")
        a(f"L_pl{n}:")
        a(flagld(areg, srdr))
        a("s_waitcnt vmcnt(0)")
        a(f"L_pc{n}:")
        a(f"v_cmp_{cmp}_u64 vcc, {val}, v[{vFl}:{vFl+1}]")
        a(f"s_add_u32 s{t5}, s{t5}, 1")
        if mask:
            a(f"s_and_b64 vcc, vcc, {mask}")
            a(f"s_cbranch_scc0 L_pd{n}")
        else:
            a("s_nop 0")
            a(f"s_cbranch_vccz L_pd{n}")
        a("s_sleep 1")
        a(f"s_cmp_lt_u32 s{t5}, 0x40000")
        a(f"s_cbranch_scc1 L_pl{n}")
        a(f"L_pd{n}:")
    def publish(soff_reg, tmp):
        n = lab[0]; lab[0] += 1
        a(f"s_cmp_lg_u32 s{sWave}, 0")
        a(f"s_cbranch_scc1 L_pb{n}")
        a(f"v_mov_b32 v{tmp}, s{sN}")
        a(f"v_mov_b32 v{tmp+1}, s{sN+1}")
        a(f"buffer_store_dwordx2 v[{tmp}:{tmp+1}], off, {WSR}, s{soff_reg} sc1")
        a(f"L_pb{n}:")

    a("s_cmp_ge_u32 s2, 256")
    a("s_cbranch_scc1 L_end")
    stp(a, "start")
    a(f"s_load_dwordx2 s[{pX}:{pX+1}], s[0:1], {KA_X}")
    a(f"s_load_dwordx2 s[6:7], s[0:1], {KA_WQKV}")
    a(f"s_load_dwordx4 s[{pW1}:{pW1+3}], s[0:1], {KA_W1}")
    a(f"s_load_dwordx2 s[4:5], s[0:1], {KA_WS}")
    a(f"s_load_dwordx2 s[{pWO}:{pWO+1}], s[0:1], {KA_WO}")
    a(f"s_load_dwordx4 s[{pOut}:{pOut+3}], s[0:1], {KA_OUT}")
    a("s_memrealtime s[92:93]")
    a(f"v_lshrrev_b32 v{T}, 6, v0")
    a(f"v_and_b32 v{L}, 63, v0")
    a(f"v_readfirstlane_b32 s{sWave}, v{T}")
    a(f"v_lshlrev_b32 v{vL16}, 4, v{L}")
    a(f"s_and_b32 s{sXcd}, s2, 7")
    if STAMP: a(f"s_mov_b32 s59, s{sWave}")
    a(f"s_lshr_b32 s{sSlot}, s2, 3")
    a(f"s_and_b32 s{sRb}, s{sSlot}, 7")
    a(f"s_lshr_b32 s{sCt}, s{sSlot}, 3")
    a(f"s_lshr_b32 s{sWr}, s{sWave}, 1")
    a(f"s_and_b32 s{sWc}, s{sWave}, 1")
    a(f"v_bfe_u32 v3, v{L}, 2, 1")
    a(f"v_lshl_add_u32 v3, v{T}, 1, v3")
    a(f"s_lshl_b32 s{t0}, s2, 3")
    a(f"v_add_u32 v3, s{t0}, v3")
    a(f"v_and_b32 v4, 3, v{L}")
    a(f"v_lshrrev_b32 v5, 3, v{L}")
    a("v_lshlrev_b32 v6, 11, v3")
    a("v_lshl_add_u32 v6, v5, 6, v6")
    a("v_lshl_add_u32 v6, v4, 4, v6")
    a(f"v_lshrrev_b32 v{T+1}, 4, v{L}")
    a(f"v_and_b32 v{T+2}, 7, v{L}")
    a(f"v_xor_b32 v{T+2}, v{T+2}, v{T+1}")
    a(f"v_lshlrev_b32 v{T+2}, 4, v{T+2}")
    a(f"v_lshl_add_u32 v{T+2}, v5, 11, v{T+2}")
    a(f"s_lshl_b32 s{t0}, s{sRb}, 19")
    a(f"s_lshl_b32 s{t1}, s{sWave}, 17")
    a(f"s_add_u32 s{t0}, s{t0}, s{t1}")
    a(f"v_add_u32 v{vAd}, s{t0}, v{T+2}")
    a(f"v_xor_b32 v{vAd+1}, 64, v{vAd}")
    a(f"v_add_u32 v{vAd+3}, {3*15360}, v{vAd+1}")
    a(f"v_add_u32 v{vAd+1}, 15360, v{vAd+1}")
    a(f"v_add_u32 v{vAd+2}, {2*15360}, v{vAd}")
    a(f"s_lshl_b32 s{sM0A}, s{sWave}, 13")
    a(f"s_lshl_b32 s{sM0W}, s{sWave}, 12")
    a(f"s_add_u32 s{sM0W}, s{sM0W}, {LDS_W1}")
    a(f"s_and_b32 s{sCnt}, s{sRb}, {ROT - 1}")
    a(f"s_mul_i32 s{sCnt}, s{sCnt}, {8 // ROT}")
    a(f"s_lshl_b32 s{sKA}, s{sCnt}, 8")
    ftp, gb, jj, qc = T + 3, T + 4, T + 5, 4
    a(f"v_lshrrev_b32 v{ftp}, 5, v{L}")
    a(f"v_bfe_u32 v{gb}, v{L}, 4, 1")
    a(f"v_bfe_u32 v{jj}, v{L}, 2, 2")
    a(f"s_lshl_b32 s{t0}, s{sWr}, 4")
    a(f"s_lshl_b32 s{t1}, s{sWc}, 2")
    a(f"s_add_u32 s{t0}, s{t0}, s{t1}")
    a(f"v_lshl_add_u32 v{T+6}, v{gb}, 3, v{jj}")
    a(f"v_add_u32 v{T+6}, s{t0}, v{T+6}")
    a(f"v_lshlrev_b32 v{T+7}, 1, v{gb}")
    a(f"v_xor_b32 v{T+7}, v{T+7}, v{qc}")
    a(f"v_lshlrev_b32 v{T+7}, 4, v{T+7}")
    a(f"v_lshl_add_u32 v{T+7}, v{ftp}, 6, v{T+7}")
    a(f"v_xor_b32 v{T+8}, v{gb}, v{qc}")
    a(f"v_lshlrev_b32 v{T+8}, 4, v{T+8}")
    a(f"s_cmp_lt_u32 s{sCt}, 2")
    a("s_cbranch_scc0 L_g1_qkv")

    def code_addr(r):
        n = lab[0]; lab[0] += 1
        a(f"s_getpc_b64 s[{t0}:{t1}]")
        a(f"L_pc_{n}:")
        a(f"s_sub_u32 s{t0}, s{t0}, L_pc_{n}-{name}")
        a(f"s_subb_u32 s{t1}, s{t1}, 0")
        a(f"s_lshl_b32 s{t2}, s{sSlot}, 2")
        a(f"s_add_u32 s{t2}, s{t2}, s{sWave}")
        a(f"s_and_b32 s{t2}, s{t2}, 63")
        a(f"s_lshl_b32 s{t2}, s{t2}, 10")
        a(f"v_add_u32 v{r}, s{t2}, v{vL16}")
        a(f"v_min_u32 v{r}, L_code_end-{name}-16, v{r}")
        a(f"v_mov_b32 v{r+1}, s{t1}")
        a(f"v_add_co_u32 v{r}, vcc, s{t0}, v{r}")
        a("s_nop 1")
        a(f"v_addc_co_u32 v{r+1}, vcc, 0, v{r+1}, vcc")
    def code_pf(r):
        code_addr(r)
        a(f"global_load_dwordx4 a[120:123], v[{r}:{r+1}], off")
    def kvdma(q):
        return f"buffer_load_dwordx4 v{vDma}, {R(sKV)}, s{sSo} offen offset:{(q&3)*1024} {SC} lds"
    so_wrap = f"s_and_b32 s{sSo}, s{sSo}, {SZ_KV - 1}"
    def kv_groups(h0, h1):
        g = []
        for c in range(h0, h1):
            for q in range(4):
                pre = [f"s_add_u32 m0, s{sM0k}, {(c % 6)*16384}", "s_nop 0"] if q == 0 else []
                post = [f"s_add_u32 s{sSo}, s{sSo}, 16384"] if (q == 3) else []
                if q == 3 and c & 1: post.append(so_wrap)
                g.append(pre + [kvdma(q)] + post)
        return g
    def at_load_groups():
        g = kv_groups(0, 2)
        g[4:4] = [[f"buffer_load_dwordx4 v[{Q[x]+4*h}:{Q[x]+4*h+3}], v{vL16}, {WSR}, s{sQO} offen offset:{x*2048+h*1024} {SC}"]
                  for x in range(2) for h in range(2)]
        return g
    def at_init():
        a(f"v_mov_b32 v{vCur}, v{vL16}")
        for x in range(2): a(f"v_mfma_f32_32x32x16_bf16 v[{O[x]}:{O[x]+15}], a[128:131], a[128:131], 0")
        a(f"v_and_b32 v{U}, 7, v{L}")
        a(f"v_cmp_eq_u32 vcc, 0, v{U}")
        a(f"v_cmp_eq_u32 s[88:89], 4, v{U}")
        a(f"v_mov_b32 v{U+2}, 0x3f803f80")
        a(f"v_mov_b32 v{IDX}, 0xdddddddd")
        a(f"v_cndmask_b32 v{ONE}, 0, v{U+2}, vcc")
        a(f"v_cndmask_b32 v{ONE+2}, 0, v{U+2}, s[88:89]")
        a(f"v_mov_b32 v{ONE+1}, v{ONE}")
        a(f"v_mov_b32 v{ONE+3}, v{ONE+2}")
        a(f"s_add_u32 s{sMb}, s{sM0k}, 65536")
        a(f"s_mov_b32 s{sRing}, 0")
        for i in range(0, 8, 2): a(f"v_mov_b64 v[{Lr[0]+i}:{Lr[0]+i+1}], 0")
        for i in range(0, 8, 2): a(f"v_mov_b64 v[{D[1]+8+i}:{D[1]+9+i}], 0")
        for i in range(0, 4, 2): a(f"v_mov_b64 v[{Vf[1]+4+i}:{Vf[1]+5+i}], 0")
        a(f"s_lshr_b32 s{t0}, s{sXcd}, 1")
        a(f"s_lshl_b32 s{t0}, s{t0}, 2")
        a(f"s_and_b32 s{t1}, s{sSlot}, 3")
        a(f"s_add_u32 s{sRb2}, s{t0}, s{t1}")
        if G2MAP == 1:
            a(f"s_lshl_b32 s{t0}, s{sXcd}, 1")
            a(f"s_and_b32 s{t1}, s{sSlot}, 1")
            a(f"s_add_u32 s{sRb2}, s{t0}, s{t1}")
        if G2MAP == 2:
            a(f"s_lshr_b32 s{t0}, s{sXcd}, 2")
            a(f"s_lshl_b32 s{t0}, s{t0}, 3")
            a(f"s_and_b32 s{t1}, s{sSlot}, 7")
            a(f"s_add_u32 s{sRb2}, s{t0}, s{t1}")
        a(f"s_lshr_b32 s{t0}, s{sRb2}, 1")
        a(f"s_lshl_b32 s{t0}, s{t0}, 7")
        a(f"s_add_u32 s{t0}, s{t0}, {WS_FL + FH}")
        a(f"v_and_b32 v{U}, 15, v{L}")
        a(f"v_lshl_add_u32 v{vFa2}, v{U}, 3, s{t0}")
        srd(a, sW, pW2, 0, 3584 * 2048)
    def g2_setup():
        a(f"s_and_b32 s{t0}, s{sXcd}, 1")
        a(f"s_lshl_b32 s{t0}, s{t0}, 3")
        a(f"s_lshr_b32 s{t1}, s{sSlot}, 2")
        a(f"s_add_u32 s{sCb}, s{t0}, s{t1}")
        if G2MAP == 1: a(f"s_lshr_b32 s{sCb}, s{sSlot}, 1")
        if G2MAP == 2:
            a(f"s_and_b32 s{t0}, s{sXcd}, 3")
            a(f"s_lshl_b32 s{t0}, s{t0}, 2")
            a(f"s_lshr_b32 s{t1}, s{sSlot}, 3")
            a(f"s_add_u32 s{sCb}, s{t0}, s{t1}")
        a(f"s_lshl_b32 s{t0}, s{sRb2}, 13")
        for pi in range(4):
            a(f"s_add_u32 s{t1}, s{sWave}, {pi + 1}")
            a(f"s_and_b32 s{t1}, s{t1}, 3")
            a(f"s_lshl_b32 s{t1}, s{t1}, 11")
            a(f"s_add_u32 s{t1}, s{t1}, s{t0}")
            a(f"v_add_u32 v{vA[pi]}, s{t1}, v{vL16}")
        a(f"v_lshrrev_b32 v{U}, 5, v{L}")
        a(f"v_bfe_u32 v{U+1}, v{L}, 4, 1")
        a(f"v_bfe_u32 v{U+2}, v{L}, 2, 2")
        a(f"v_and_b32 v{U+3}, 3, v{L}")
        a(f"v_lshl_add_u32 v{vW}, v{U+1}, 2, v{U+2}")
        a(f"v_lshlrev_b32 v{vW}, 11, v{vW}")
        a(f"v_lshlrev_b32 v{vW+1}, 1, v{U+1}")
        a(f"v_xor_b32 v{vW+1}, v{vW+1}, v{U+3}")
        a(f"v_lshl_add_u32 v{vW}, v{vW+1}, 4, v{vW}")
        a(f"v_lshl_add_u32 v{vW}, v{U}, 6, v{vW}")
        a(f"s_lshl_b32 s{t0}, s{sCb}, 7")
        a(f"v_add_u32 v{vW}, s{t0}, v{vW}")
        for pc in range(1, 4): a(f"v_add_u32 v{vW+pc}, {pc*(16384-1024)}, v{vW}")
        a(f"s_lshl_b32 s{sM0g}, s{sWave}, 14")
        a(f"s_add_u32 s{sM0g}, s{sM0g}, {LDS_W1}")
        a(f"v_lshl_add_u32 v{vWe}, v{U}, 10, s{sM0g}")
        a(f"v_lshl_add_u32 v{vWe}, v{U+1}, 8, v{vWe}")
        a(f"v_lshl_add_u32 v{vWe}, v{U+2}, 6, v{vWe}")
        a(f"v_lshl_add_u32 v{vWe}, v{U+1}, 5, v{vWe}")
        a(f"v_lshl_add_u32 v{vWe}, v{U+3}, 3, v{vWe}")
        a(f"v_xor_b32 v{vWo}, 32, v{vWe}")
        a(f"s_and_b32 s{t0}, s{sSlot}, 7")
        a(f"s_lshl_b32 s{t0}, s{t0}, 2")
        a(f"s_add_u32 s{t0}, s{t0}, s{sWave}")
        a(f"s_lshl_b32 s{t0}, s{t0}, 8")
        a(f"s_add_u32 s{t0}, s{t0}, {WS_STAT + 16384}")
        a(f"v_and_b32 v{U+1}, 31, v{L}")
        a(f"v_lshlrev_b32 v{U+1}, 2, v{U+1}")
        for x in range(2):
            a(f"buffer_load_dword v{vSig+x}, v{U+1}, {WSR}, s{t0} offen offset:{x*128} sc1")
        if CPF: code_addr(248)
        a(f"s_mul_i32 s{sKA}, s{sWave}, {(28 if KQ else 1)*131072}")
        a(f"s_add_u32 s{sKA}, s{sKA}, {WS_A2 + 32*131072}")
        a(f"s_mul_i32 s{sKW}, s{sWave}, {(28 if KQ else 1)*65536}")
    def hstore(u, data):
        if u < 8:
            return [f"buffer_store_dwordx2 {data}, v{vO+2 + (u>>2)}, {R(sOut)}, s{sH2} offen offset:{(u&3)*1024} {SC}"]
        p, tt = divmod(u - 8, 8)
        return [f"buffer_store_dwordx4 {data}, v{vO + (tt>>2)}, {R(sOut)}, s{(sH1, t3, t4)[p]} offen offset:{(tt&3)*1024} {SC}"]
    direct = set(range(8, 8 + ND))
    parked = [u for u in range(32) if u not in direct]
    ool = []

    def g1(kind):
        ffn = kind == "ffn"
        NB = 7 if ffn else 6
        RS = 7168 if ffn else 6144
        nW = 4 if ffn else 3
        NF = 8 + NB
        def fr(buf, i): return buf * NF * 4 + i * 4
        def acc(tt, ft): return (ft * 8 + tt) * 4
        if ffn:
            a(f"s_mul_i32 s{t0}, s{sXcd}, 896")
            a(f"s_mul_i32 s{t1}, s{sCt}, 384")
            a(f"s_add_u32 s{t1}, s{t1}, s{t0}")
            a(f"s_lshl_b32 s{t2}, s{sCt}, 6")
            a(f"s_add_u32 s{t2}, s{t2}, s{t0}")
            a(f"s_add_u32 s{t2}, s{t2}, {768 + 4096 - 3072}")
            qstep = 128
        else:
            a(f"s_lshl_b32 s{t1}, s{sXcd}, 1")
            a(f"s_add_u32 s{t1}, s{t1}, s{sCt}")
            a(f"s_sub_u32 s{t1}, s{t1}, 2")
            a(f"s_lshl_b32 s{t1}, s{t1}, 7")
            qstep = 2048
        a(f"s_mul_i32 s{sKW}, s{sCnt}, {128 * RS}")
        a(f"v_mul_u32_u24 v{T+6}, {RS}, v{T+6}")
        a(f"v_add3_u32 v{T+7}, v{T+7}, v{T+6}, s{t1}")
        for q in range(3):
            a(f"v_add_u32 v{vWd+q}, {4096 + q*qstep - q*1024}, v{T+7}")
        if ffn:
            a(f"v_add3_u32 v{T+8}, v{T+8}, v{T+6}, s{t2}")
            a(f"v_lshlrev_b32 v{T+9}, 30, v{ftp}")
            a(f"v_or_b32 v{vWd+3}, v{T+8}, v{T+9}")
        oplog = []
        def wdma_list(stage, pol=WNT):
            l = [[f"s_add_u32 m0, s{sM0W}, {(stage & 3)*16384}"]]
            for q in range(nW):
                l.append([f"buffer_load_dwordx4 v{vWd+q}, {R(sW)}, s{sKW} offen offset:{q*1024} {pol} lds"])
            l.append([f"s_add_u32 s{sKW}, s{sKW}, {32*RS}"])
            if stage & 3 == 3: l.append([f"s_cmp_eq_u32 s{sKW}, {1024 * RS}", f"s_cselect_b32 s{sKW}, 0, s{sKW}"])
            oplog.extend([f"W{stage}"] * nW)
            return l
        def adma_half(Dn, h):
            if Dn < 3: l = [[f"s_add_u32 m0, s{sM0A}, {Dn*32768 + h*4096}"]]
            else: l = [[f"s_add_u32 m0, s{sAw}, {h*4096}"]]
            for p in range(4):
                l.append([f"buffer_load_dwordx4 v{vAd+p}, {R(sKV if h else sX)}, s{sKA} offen offset:{p*1024} {XNT} lds"])
            if h:
                l.append([f"s_add_u32 s{sKA}, s{sKA}, 128"])
                if Dn & 1: l.append([f"s_and_b32 s{sKA}, s{sKA}, 2047"])
            oplog.extend([f"A{Dn}"] * 4)
            return l
        def need(*tags):
            idx = max(i for i, t in enumerate(oplog) if t in tags)
            return len(oplog) - 1 - idx
        def flat(l):
            out = []
            for x in l:
                out += x
                if x[-1].startswith("s_add_u32 m0"): out.append("s_nop 0")
            return out
        for i in range(4): a(f"v_mov_b32 v{12+i}, 0")
        z = [f"v_mfma_f32_32x32x16_bf16 a[{128+16*i}:{143+16*i}], v[12:15], v[12:15], 0" for i in range(8) if i != 2]
        z += [f"v_mfma_f32_32x32x16_bf16 v[{16*i}:{16*i+15}], v[12:15], v[12:15], 0" for i in range(1, 2 * NB)]
        k = 0
        for r in (sX, sKV, sW): a(f"s_mov_b32 s{r+3}, 0x00020000")
        a(f"s_mov_b32 s{sX+2}, {4 * MB}")
        a(f"s_mov_b32 s{sKV+2}, {4 * MB - 65536}")
        a(f"s_mov_b32 s{sW+2}, {1024 * RS + 4096}")
        a("s_waitcnt lgkmcnt(0)")
        stp(a, "p1")
        first = [[f"s_mov_b32 s{sX}, s{pX}", f"s_mov_b32 s{sX+1}, s{pX+1}"]] + adma_half(0, 0)
        first += [[f"s_sub_u32 s{sW}, s{pW1 if ffn else 6}, 4096", f"s_subb_u32 s{sW+1}, s{(pW1 if ffn else 6)+1}, 0"]] + wdma_list(0, PNT)
        first += [[f"s_add_u32 s{sKV}, s{pX}, 65536", f"s_addc_u32 s{sKV+1}, s{pX+1}, 0"]] + adma_half(0, 1)
        for x in flat(first):
            a(x)
            if x.startswith("buffer_") and k < len(z): a(z[k]); k += 1
        srd(a, 88, pDbg, 248, 8)
        a(f"s_or_b32 s{t0}, s2, s{sWave}")
        a(f"s_cbranch_scc1 L_nonon_{kind}")
        a("s_or_b32 s92, s92, 1")
        a("v_mov_b32 v8, s92")
        a("v_mov_b32 v9, s93")
        a("buffer_store_dwordx2 v[8:9], off, s[88:91], 0 sc1")
        a(f"L_nonon_{kind}:")
        pre = Asm(); sv0 = a.lines; a.lines = pre.lines
        stp(a, "p2")
        srd(a, sWS, 4, 0, WS_END)
        a(f"v_and_b32 v{T+9}, 15, v{L}")
        a(f"v_lshrrev_b32 v{T+10}, 1, v{T+9}")
        a(f"v_xor_b32 v{T+10}, v{T+10}, v{T+1}")
        a(f"v_lshlrev_b32 v{T+10}, 4, v{T+10}")
        a(f"v_lshl_add_u32 v{T+10}, v{T+9}, 7, v{T+10}")
        a(f"s_lshl_b32 s{t0}, s{sWr}, 14")
        a(f"v_add_u32 v{vArB}, s{t0}, v{T+10}")
        a(f"v_mov_b32 v{vAr}, v{vArB}")
        a(f"v_xor_b32 v{vAr+1}, 64, v{vArB}")
        a(f"s_mov_b32 s{sArd}, 0")
        a(f"v_lshlrev_b32 v{T+10}, 13, v{ftp}")
        a(f"v_lshl_add_u32 v{T+10}, v{gb}, 8, v{T+10}")
        a(f"v_lshl_add_u32 v{T+10}, v{jj}, 6, v{T+10}")
        a(f"v_add_u32 v{T+10}, {LDS_W1}, v{T+10}")
        a(f"v_lshl_add_u32 v{T+11}, v{gb}, 5, v{T+10}")
        a(f"v_lshl_add_u32 v{T+11}, v{qc}, 3, v{T+11}")
        a(f"s_mul_i32 s{t0}, s{sWc}, {1536 if ffn else 512}")
        a(f"v_add_u32 v{vWe1}, s{t0}, v{T+11}")
        a(f"v_xor_b32 v{vWo1}, 32, v{vWe1}")
        if ffn:
            a(f"v_and_b32 v{T+11}, 1, v{qc}")
            a(f"v_lshlrev_b32 v{T+11}, 1, v{T+11}")
            a(f"v_add_u32 v{T+11}, s{sWc}, v{T+11}")
            a(f"v_xor_b32 v{T+11}, v{T+11}, v{gb}")
            a(f"v_lshl_add_u32 v{T+11}, v{T+11}, 4, v{T+10}")
            a(f"v_lshrrev_b32 v{T+10}, 1, v{qc}")
            a(f"v_lshl_add_u32 v{vWs1}, v{T+10}, 3, v{T+11}")
        a(f"v_mov_b32 v{T+10}, 0x3f803f80")
        for i in range(4): a(f"v_accvgpr_write_b32 a{124+i}, v{T+10}")
        a(f"s_lshl_b32 s{sTile}, s{sXcd}, 2")
        a(f"s_add_u32 s{sTile}, s{sTile}, s{sCt}")
        a(f"s_and_b32 s{t0}, s{sCt}, 1")
        a(f"s_lshl_b32 s{t0}, s{t0}, 1")
        a(f"s_lshl_b32 s{sHead}, s{sXcd}, 2")
        a(f"s_add_u32 s{sHead}, s{sHead}, s{t0}")
        if ffn: a(f"s_add_u32 s{sHead}, s{sHead}, 1")
        a(f"s_lshl_b32 s{t0}, s{sRb}, 2")
        a(f"s_add_u32 s{t0}, s{t0}, s{sWave}")
        a(f"s_lshl_b32 s{t0}, s{t0}, 12")
        a(f"s_lshl_b32 s{t1}, s{sHead}, 17")
        a(f"s_add_u32 s{sQO}, s{t0}, s{t1}")
        a(f"s_add_u32 s{sQO}, s{sQO}, {WS_Q}")
        a(f"s_lshl_b32 s{sSo}, s{sRb}, 15")
        a(f"s_lshl_b32 s{sM0k}, s{sWave}, 12")
        a(f"v_add_u32 v{vDma}, s{sM0k}, v{vL16}")
        a(f"s_lshr_b32 s{t0}, s{sHead}, 1")
        a(f"s_lshl_b32 s{t0}, s{t0}, 7")
        a(f"v_and_b32 v{vFa}, 7, v{L}")
        a(f"v_lshl_add_u32 v{vFa}, v{vFa}, 3, s{t0}")
        srd(a, sOut, pW2, 0, 3584 * 2048)
        a(f"s_lshl_b32 s{sPf}, s2, 2")
        a(f"s_add_u32 s{sPf}, s{sPf}, s{sWave}")
        a(f"s_lshl_b32 s{sPf}, s{sPf}, 10")
        a(f"v_and_b32 v{T+8}, 0x3b, v{L}")
        a(f"v_min_u32 v{T+8}, 1, v{T+8}")
        a(f"v_lshlrev_b32 v{T+8}, 30, v{T+8}")
        a(f"v_lshl_add_u32 v{T+8}, v3, 2, v{T+8}")
        a(f"v_mov_b32 v{T+3}, 0")
        a(f"v_mov_b32 v{T+4}, 0")
        a(f"s_lshl_b32 s{t0}, s{sXcd}, 1")
        a(f"s_add_u32 s{t0}, s{t0}, s{sCt}")
        if ffn:
            a(f"s_lshl_b32 s{t0}, s{t0}, 3")
            a(f"s_lshl_b32 s{t1}, s{sRb}, 7")
            a(f"s_add_u32 s{t0}, s{t0}, s{t1}")
            a(f"s_add_u32 s92, s{t0}, {WS_FL + FH}")
        else:
            a(f"s_sub_u32 s{sCt}, s{t0}, 2")
            a(f"s_lshl_b32 s{t0}, s{sCt}, 7")
            a(f"s_lshl_b32 s{t1}, s{sRb}, 3")
            a(f"s_add_u32 s92, s{t0}, s{t1}")
        a(f"s_lshl_b32 s{t0}, s{sRb}, 8")
        a(f"s_lshl_b32 s93, s{sHead}, 3")
        a(f"s_add_u32 s93, s93, s{t0}")
        a(f"s_add_u32 s93, s93, {WS_FL + FO}")

        a.lines = sv0
        xld = [[f"buffer_load_dwordx4 a[{160+4*i}:{163+4*i}], v6, {R(sX)}, 0 offen offset:{i*512}"] for i in range(4)]
        if PRO:
            more = wdma_list(1, PNT) + xld
            oplog.extend(["x"] * 4)
        elif XPOS == 0:
            oplog.extend(["x"] * 4)
            more = xld + wdma_list(1, PNT) + wdma_list(2, PNT) + adma_half(1, 0) + adma_half(1, 1)
        else:
            more = wdma_list(1, PNT) + wdma_list(2, PNT) + adma_half(1, 0) + adma_half(1, 1) + xld
            oplog.extend(["x"] * 4)
        nmore = len(more)
        gap = len(pre.lines) / (nmore + 1)
        for i, x in enumerate(pre.lines):
            a.lines.append(x)
            nxt = pre.lines[i + 1].op if i + 1 < len(pre.lines) else ""
            if nxt in ("s_addc_u32", "s_subb_u32"): continue
            if i % 5 == 4 and k < len(z): a(z[k]); k += 1
            if more and i + 1 >= gap * (nmore - len(more)): a.extend(more.pop(0))
        a.extend(flat(more))
        for x in z[k:]: a(x)
        if CPF == 2:
            code_pf(vFl); oplog.append("c")
        a("s_nop 1")
        a(f"v_mfma_f32_32x32x16_bf16 v[0:15], a[128:131], a[128:131], 0")
        st_ = Asm(); a.lines = st_.lines
        SU, SQ, TM = T + 3, T + 4, T + 5
        for j in range(16):
            r = T + 6 + (j & 1)
            a(f"v_accvgpr_read_b32 v{r}, a{160+j}")
            a(f"v_dot2c_f32_bf16 v{SU}, v{r}, v{T+10}")
            a(f"v_dot2c_f32_bf16 v{SQ}, v{r}, v{r}")
        a("s_nop 1")
        xreduce(a, SU, TM)
        xreduce(a, SQ, TM)
        a(f"v_mul_f32 v{SU}, {f2u(-1.0/1024):#x}, v{SU}")
        a(f"v_mul_f32 v{SQ}, {f2u(1.0/1024):#x}, v{SQ}")
        a(f"v_fma_f32 v{SQ}, -v{SU}, v{SU}, v{SQ}")
        a(f"v_max_f32 v{SQ}, 0, v{SQ}")
        bf16round(a, SU)
        bf16round(a, SQ)
        a(f"v_add_f32 v{SQ}, {f2u(1e-5):#x}, v{SQ}")
        bf16round(a, SQ)
        a(f"v_sqrt_f32 v{SQ}, v{SQ}")
        a(f"s_mov_b32 s{t2}, {WS_STAT}")
        bf16round(a, SQ)
        a(f"v_rcp_f32 v{TM}, v{SQ}")
        a(f"s_mov_b32 s{t3}, {WS_STAT + 8192}")
        a(f"s_mov_b32 s{t4}, {WS_STAT + 16384}")
        a(f"buffer_store_dword v{SU}, v{T+8}, {WSR}, s{t2} offen sc1")
        a(f"buffer_store_dword v{TM}, v{T+8}, {WSR}, s{t3} offen sc1")
        a(f"buffer_store_dword v{SQ}, v{T+8}, {WSR}, s{t4} offen sc1")
        a.lines = sv0
        stl = []
        for x in st_.lines:
            if stl and stl[-1][-1].startswith("s_nop"): stl[-1].append(x.text)
            else: stl.append([x.text])

        def read_list(step):
            buf = step & 1; so = (step & 3) * 16384
            rb = []
            for ft in range(NB):
                r = fr(buf, 8 + ft)
                if ffn and ft == 6: v = vWs1; off = 3072
                else:
                    v = vWo1 if ft & 1 else vWe1
                    off = (ft >> 1) * (512 if ffn else 1024)
                rb.append([f"ds_read_b64_tr_b16 a[{r+2*rd}:{r+2*rd+1}], v{v} offset:{so + rd*4096 + off}" for rd in range(2)])
            ra = [f"ds_read_b128 a[{fr(buf, tt)}:{fr(buf, tt)+3}], v{vAr + (step & 1)} offset:{tt*2048}" for tt in range(8)]
            l = rb[0] + ra
            for x in rb[1:]: l += x
            return l
        def mfmas(buf):
            l = []
            for ft in range(NB):
                for tt in (range(8) if ft % 2 == 0 else range(7, -1, -1)):
                    c = acc(tt, ft); w = fr(buf, 8 + ft); x = fr(buf, tt)
                    if (not ffn) and ft >= 4: w, x = x, w
                    l.append(f"v_mfma_f32_16x16x32_bf16 v[{c}:{c+3}], a[{w}:{w+3}], a[{x}:{x+3}], v[{c}:{c+3}]")
            return l
        ard_adv = [[f"s_add_u32 s{sAw}, s{sArd}, s{sM0A}"], [f"s_add_u32 s{sArd}, s{sArd}, 32768"], [f"s_cmp_eq_u32 s{sArd}, 98304", f"s_cselect_b32 s{sArd}, 0, s{sArd}"]]
        ard_set = [f"v_add_u32 v{vAr}, s{sArd}, v{vArB}", f"v_xor_b32 v{vAr+1}, 64, v{vAr}"]
        stp(a, "p5")
        a(f"s_waitcnt vmcnt({need('W0', 'A0')})")
        a("s_barrier")
        stp(a, "p6")
        a.extend(read_list(0))
        a(f"s_waitcnt vmcnt({need('W1')}) lgkmcnt(0)")
        a("s_barrier")
        def step(k4, dl, vm, reads=True, extra=(), cs=False, span=DMAF, tail=()):
            m = mfmas(k4 & 1)
            if cs:
                m = [f"v_mfma_f32_16x16x32_bf16 a[{128+4*ft}:{131+4*ft}], a[{fr(k4 & 1, 8 + ft)}:{fr(k4 & 1, 8 + ft)+3}], a[124:127], a[{128+4*ft}:{131+4*ft}]"
                     for ft in range(NB)] + m
            n = len(m)
            sr = []
            if reads:
                rl = read_list(k4 + 1)
                sr = [((i * int(n * RDF)) // len(rl), x) for i, x in enumerate(rl)]
            sd = [((i * int(n * span)) // len(dl), x) for i, x in enumerate(dl)]
            if reads and k4 % 2 == 0:
                sd += [(n - 12 + 2 * i, x) for i, x in enumerate(ard_adv + ard_set)]
            a.extend(sched(m, [sd, sr, list(extra)], BUD if not extra and span == DMAF else 8))
            a.extend(tail)
            if vm is not None:
                a(f"s_waitcnt vmcnt({vm}) lgkmcnt(0)")
                if not (XB and k4 & 1): a("s_barrier")
        def std_dl(k):
            return wdma_list(k + 4) + (adma_half((k + 5) // 2, 0) if k & 1 else adma_half((k + 4) // 2, 1))
        def std_need(k):
            return need(f"W{k+2}", f"A{(k+2)//2}")
        stp(a, "g1loop")
        stt = [x.text for x in st_.lines]
        dl = wdma_list(3, PNT) + adma_half(2, 0) + adma_half(2, 1) if not PRO else \
             wdma_list(2, PNT) + adma_half(1, 0) + adma_half(1, 1) + wdma_list(3, PNT)
        stt = [f"s_waitcnt vmcnt({need('x')})"] + stt
        oplog.extend(["st"] * 3)
        step(0, dl, std_need(0), cs=True, span=0.85, tail=stt)
        stp(a, "k1")
        dl = wdma_list(4) + wdma_list(5) + adma_half(3, 0) if not PRO else adma_half(2, 0) + adma_half(2, 1) + wdma_list(4) + wdma_list(5); step(1, dl, std_need(1), cs=True, span=0.85)
        stp(a, "k2")
        n1 = 9 * NB - 4
        dl = std_dl(2) if not PRO else wdma_list(6) + adma_half(3, 0) + adma_half(3, 1)
        step(2, dl, std_need(2), cs=True, span=0.75 if PRO else DMAF)
        e = [f"s_lshl_b32 s{t0}, s{sTile}, 13", f"s_lshl_b32 s{t1}, s{sRb}, 10", f"s_add_u32 s{t0}, s{t0}, s{t1}", f"s_mul_i32 s{t1}, s{sWc}, {NB*64}",
             f"s_add_u32 s{t0}, s{t0}, s{t1}", f"s_add_u32 s{t0}, s{t0}, {WS_CS}", f"v_and_b32 v{T}, 15, v{L}", f"v_or_b32 v{T}, s{sWr}, v{T}",
             f"v_lshlrev_b32 v{T}, 27, v{T}", f"v_and_b32 v{T+1}, 48, v{L}", f"v_or_b32 v{T}, v{T}, v{T+1}", f"s_mov_b32 s{sCnt}, 6"]
        stp(a, "k3")
        e += [flagld("off", "s[88:91]")]
        e += [f"buffer_store_dwordx4 a[{128+4*ft}:{131+4*ft}], v{T}, {WSR}, s{t0} offen offset:{ft*64} sc1" for ft in range(NB)]
        dl = std_dl(3); step(3, dl, std_need(3), cs=True, extra=[(12 + 2 * i, x) for i, x in enumerate(e)])
        stp(a, "h6")
        a(".p2align 6")
        a(f"L_g1_{kind}_loop:")
        pf = [f"buffer_load_dwordx4 a[120:123], v{vL16}, {R(sOut)}, s{sPf} offen", f"s_add_u32 s{sPf}, s{sPf}, {MB}"]
        for k4 in range(4):
            dl = std_dl(4 + k4)
            if k4 in (0, 2) and PFG1:
                dl += [[pf[0]], [pf[1]]]; oplog.append("pf")
            if k4 == 3:
                dl = [[f"s_cmp_eq_u32 s{sCnt}, 1", f"s_cselect_b32 s{sX+2}, 0, s{sX+2}"]] + dl + [[f"s_sub_u32 s{sCnt}, s{sCnt}, 1"], [f"s_bitcmp1_b32 0x3d, s{sCnt}"]]
            step(k4, dl, std_need(4 + k4))
        a(f"s_cbranch_scc0 L_g1_{kind}_loop")
        a(f"s_cmp_lg_u32 s{sCnt}, 0")
        a(f"s_cbranch_scc1 L_hk5_{kind}")
        b = Asm(); sv = a.lines; a.lines = b.lines
        a(f"L_hk5_{kind}:")
        a(f"s_cmp_lg_u32 s{sCnt}, 5")
        a(f"s_cbranch_scc1 L_hk4_{kind}")
        stp(a, "h5")
        for i in range(3): a(f"v_mfma_f32_32x32x16_bf16 a[{128+16*i}:{143+16*i}], a[176:179], a[176:179], 0")
        poll("off", True, "s[88:91]", "0", "eq")
        a(f"v_readfirstlane_b32 s{sN}, v{vFl}")
        a(f"v_readfirstlane_b32 s{sN+1}, v{vFl+1}")
        a(f"s_lshl_b32 s{t0}, s2, 5")
        a(f"s_add_u32 s{t0}, s{t0}, {WS_FL + F0}")
        publish(t0, T)
        if CPF == 1: code_pf(T + 2)
        a(f"s_branch L_g1_{kind}_loop")
        a(f"L_hk4_{kind}:")
        a(f"s_cmp_lg_u32 s{sCnt}, 4")
        a(f"s_cbranch_scc1 L_hk3_{kind}")
        a(f"s_lshl_b32 s{t0}, s{sRb}, 5")
        a(f"v_add_u32 v{T}, s{t0}, v{L}")
        a(f"s_and_b32 s{t0}, s2, 0xc7")
        a(f"v_and_b32 v{T+1}, 7, v{L}")
        a(f"v_lshl_add_u32 v{T+1}, v{T+1}, 3, s{t0}")
        a(f"v_cmp_gt_u32 vcc, 32, v{L}")
        a("s_nop 1")
        a(f"v_cndmask_b32 v{T+1}, v{T+1}, v{T}, vcc")
        a(f"v_lshlrev_b32 v{T+1}, 5, v{T+1}")
        a(f"v_add_u32 v{T+1}, {WS_FL + F0}, v{T+1}")
        a(flagld(f"v{T+1}"))
        if TPF:
            a(f"v_lshlrev_b32 v{T}, 19, v{L}")
            a(f"s_mov_b32 s{t0}, {WS_Q}")
            a(f"buffer_load_dword v{T+2}, v{T}, {WSR}, s{t0} offen")
            srd(a, 88, pOut, 0, 4 * MB)
            a(f"v_lshlrev_b32 v{T}, 16, v{L}")
            a(f"buffer_load_dword v{T+2}, v{T}, s[88:91], 0 offen")
        a(f"s_branch L_g1_{kind}_loop")
        a(f"L_hk3_{kind}:")
        a(f"s_cmp_eq_u32 s{sCnt}, 3")
        a(f"s_cbranch_scc1 L_hk3b_{kind}")
        stp(a, "h2")
        srd(a, sOut, pWO, 0, 1024 * 2048)
        a(f"s_and_b32 s{sPf}, s{sPf}, {MB - 1}")
        if CPF:
            code_addr(vFl)
            a(f"global_load_dwordx4 a[120:123], v[{vFl}:{vFl+1}], off")
        a(f"s_branch L_g1_{kind}_loop")
        a(f"L_hk3b_{kind}:")
        stp(a, "h1")
        poll(f"v{T+1}", True)
        a(f"s_lshl_b32 s{t0}, s{sWave}, 8")
        a(f"v_lshl_add_u32 v{T}, v{L}, 2, s{t0}")
        a(f"s_lshl_b32 s{t0}, s{sTile}, 13")
        a(f"s_add_u32 s{t0}, s{t0}, {WS_CS}")
        a(f"s_add_u32 s{t1}, s{t0}, 4096")
        for i in range(8):
            a(f"buffer_load_dword v{T+2+i}, v{T}, {WSR}, s{t0 if i < 4 else t1} offen offset:{(i&3)*1024} sc1")
        a(f"s_lshl_b32 s{t0}, s{sRb}, 10")
        a(f"s_add_u32 s{t0}, s{t0}, {WS_STAT}")
        a(f"s_add_u32 s{t1}, s{t0}, 8192")
        a(f"buffer_load_dword v{T+10}, v{T}, {WSR}, s{t0} offen sc1")
        a(f"buffer_load_dword v{T+11}, v{T}, {WSR}, s{t1} offen sc1")
        stp(a, "h1e")
        a(f"s_branch L_g1_{kind}_loop")
        ool.extend([x.text for x in b.lines]); a.lines = sv
        stp(a, "tail")
        adds = [f"v_add_f32 v{T+2+2*i}, v{T+2+2*i}, v{T+3+2*i}" for i in range(4)] + \
               [f"v_add_f32 v{T+2}, v{T+2}, v{T+4}", f"v_add_f32 v{T+6}, v{T+6}, v{T+8}", f"v_add_f32 v{T+2}, v{T+2}, v{T+6}",
                f"v_add_u32 v{T}, {LDS_SCR}, v{T}"]
        step(0, [], nW + 4, extra=[(2 + 3 * i, x) for i, x in enumerate(adds)])
        step(1, [], 4, extra=[(40, f"ds_write_b32 v{T}, v{T+2}"), (42, f"ds_write_b32 v{T}, v{T+10} offset:1024"), (44, f"ds_write_b32 v{T}, v{T+11} offset:2048")])
        e = Asm(); sv = a.lines; a.lines = e.lines
        if ffn:
            a(f"s_lshl_b32 s{t0}, s{sRb}, 14")
            a(f"s_lshl_b32 s{t1}, s{sWr}, 13")
            a(f"s_add_u32 s{t0}, s{t0}, s{t1}")
            a(f"v_add_u32 v{vO}, s{t0}, v{vL16}")
            a(f"v_add_u32 v{vO+1}, 4096, v{vO}")
            a(f"s_lshl_b32 s{t1}, s{sWc}, 9")
            a(f"s_add_u32 s{t0}, s{t0}, s{t1}")
            a(f"v_lshrrev_b32 v{vO+2}, 5, v{L}")
            a(f"v_lshl_add_u32 v{vO+2}, v{vO+2}, 8, s{t0}")
            a(f"v_and_b32 v{vO+3}, 15, v{L}")
            a(f"v_lshl_add_u32 v{vO+2}, v{vO+3}, 4, v{vO+2}")
            a(f"v_bfe_u32 v{vO+3}, v{L}, 4, 1")
            a(f"v_lshl_add_u32 v{vO+2}, v{vO+3}, 3, v{vO+2}")
            a(f"v_add_u32 v{vO+3}, 4096, v{vO+2}")
            a(f"s_mul_i32 s{t0}, s{sXcd}, 14")
            a(f"s_mul_i32 s{t1}, s{sCt}, 6")
            a(f"s_mul_i32 s{t2}, s{sWc}, 3")
            a(f"s_add_u32 s{t1}, s{t1}, s{t2}")
            a(f"s_add_u32 s{t1}, s{t1}, s{t0}")
            a(f"s_add_u32 s{t1}, s{t1}, {32 + WS_A2 // 131072}")
            a(f"s_lshl_b32 s{t1}, s{t1}, 17")
            a(f"s_add_u32 s{t2}, s{t0}, s{sCt}")
            a(f"s_add_u32 s{t2}, s{t2}, {44 + WS_A2 // 131072}")
            a(f"s_lshl_b32 s{t2}, s{t2}, 17")
            a(f"s_add_u32 s{t3}, s{t1}, 131072")
            a(f"s_add_u32 s{t4}, s{t1}, 262144")
        else:
            a(f"s_lshl_b32 s{t0}, s{sRb}, 3")
            a(f"s_lshl_b32 s{t1}, s{sWr}, 2")
            a(f"s_add_u32 s{t0}, s{t0}, s{t1}")
            a(f"s_lshl_b32 s{t0}, s{t0}, 11")
            a(f"s_lshl_b32 s{t3}, s{sCt}, 1")
            a(f"s_add_u32 s{t3}, s{t3}, s{sWc}")
            a(f"s_lshl_b32 s{t3}, s{t3}, 17")
            a(f"s_add_u32 s{t1}, s{t3}, s{t0}")
            a(f"s_lshl_b32 s{t2}, s{t1}, 1")
            a(f"s_add_u32 s{t2}, s{t2}, {WS_KV}")
            a(f"s_add_u32 s{t1}, s{t1}, {WS_Q}")
            a(f"v_lshrrev_b32 v{vO+2}, 4, v{L}")
            a(f"v_lshlrev_b32 v{vO+2}, 9, v{vO+2}")
            a(f"v_and_b32 v{vO+3}, 15, v{L}")
            a(f"v_lshl_add_u32 v{vO}, v{vO+3}, 4, v{vO+2}")
            a(f"v_bfe_u32 v{vO+3}, v{L}, 2, 2")
            a(f"v_lshl_add_u32 v{vO+2}, v{vO+3}, 7, v{vO+2}")
            a(f"v_and_b32 v{vO+3}, 3, v{L}")
            a(f"v_lshl_add_u32 v{vO+1}, v{vO+3}, 4, v{vO+2}")
            a(f"s_mov_b32 s{t4}, {f2u(QSCALE):#x}")
        a(f"s_lshl_b32 s{t5}, s{sHead}, 18")
        a(f"s_add_u32 s{t5}, s{t5}, {WS_KV}")
        a(f"s_add_u32 s{sKV}, s4, s{t5}")
        a(f"s_addc_u32 s{sKV+1}, s5, 0")
        a(f"s_mov_b32 s{sKV+2}, {SZ_KV}")
        if ffn:
            a(f"s_lshl_b32 s90, 0x01010101, s{sRb}")
            a(f"s_mov_b32 s91, 0")
        a(f"s_mul_i32 s{t5}, s{sWc}, {NB*64}")
        a(f"s_add_u32 s{t5}, s{t5}, {LDS_SCR}")
        a(f"v_and_b32 v248, 48, v{L}")
        a(f"v_add_u32 v248, s{t5}, v248")
        a(f"s_lshl_b32 s{t0}, s{sWr}, 9")
        a(f"s_add_u32 s{t0}, s{t0}, {LDS_SCR + 1024}")
        a(f"v_and_b32 v249, 15, v{L}")
        a(f"v_lshl_add_u32 v249, v249, 2, s{t0}")
        if not ffn:
            a(f"v_and_b32 v222, 15, v{L}")
            a(f"v_lshl_add_u32 v222, v222, 2, s{t5}")
            a(f"v_and_b32 v223, 48, v{L}")
            a(f"v_add_u32 v223, s{t0}, v223")
        el = []
        for x in e.lines:
            if x.op in ("s_addc_u32", "s_subb_u32", "s_cselect_b32"): el[-1].append(x.text)
            else: el.append([x.text])
        a.lines = sv
        n = 8 * NB
        step(2, [], 0, extra=[(2 + (i * (n - 12)) // len(el), x) for i, x in enumerate(el)])
        rds = []
        for tt in range(8):
            rds.append(f"ds_read_b32 v{ST+2*tt}, v249 offset:{tt*64}")
            if not ffn: rds.append(f"ds_read_b32 v{ST+2*tt+1}, v249 offset:{1024 + tt*64}")
        if ffn:
            rds.append(f"ds_read_b128 v[244:247], v248 offset:{6*64}")
        else:
            for ft in range(4): rds.append(f"ds_read_b128 v[{192+4*ft}:{195+4*ft}], v248 offset:{ft*64}")
            for vt in range(2): rds.append(f"ds_read_b32 v{208+2*vt}, v222 offset:{(4+vt)*64}")
        step(3, [], None, reads=False, extra=[(2 + 2 * i, x) for i, x in enumerate(rds)])
        stp(a, "g1end")
        BC = "op_sel_hi:[1,0,1]"
        if ffn:
            a("s_nop 0")
            a(f"s_mov_b32 s{sH1}, s{t1}")
            a(f"s_mov_b32 s{sH2}, s{t2}")
            a(f"s_mov_b32 s{sPub}, s92")
            srd(a, sOut, 4, 0, WS_END)
            a("s_waitcnt lgkmcnt(0)")
            pend = []
            for u in range(8):
                c = acc(u, 6)
                for h in range(2):
                    a(f"v_pk_fma_f32 v[{c+2*h}:{c+2*h+1}], v[{244+2*h}:{245+2*h}], v[{ST+2*u}:{ST+2*u+1}], v[{c+2*h}:{c+2*h+1}] {BC}")
                a(f"v_cvt_pk_bf16_f32 v{c}, v{c}, v{c+1}")
                a(f"v_cvt_pk_bf16_f32 v{c+1}, v{c+2}, v{c+3}")
                a(f"v_pk_max_i16 v{c}, v{c}, 0")
                a(f"v_pk_max_i16 v{c+1}, v{c+1}, 0")
                if u in direct: pend.append(hstore(u, f"v[{c}:{c+1}]"))
                else:
                    for e_ in range(2): a(f"v_accvgpr_write_b32 a{4*parked.index(u)+e_}, v{c+e_}")
                if u == 1:
                    a(f"ds_read_b64 v[194:195], v248 offset:64")
                    a(f"ds_read_b64 v[198:199], v248 offset:72")
                if u == 3:
                    a(f"ds_read_b64 v[202:203], v248 offset:0")
                    a(f"ds_read_b64 v[206:207], v248 offset:8")
            for i, r in enumerate((210, 214, 218, 222)):
                a(f"ds_read_b64 v[{r}:{r+1}], v248 offset:{128 + (i>>1)*64 + (i&1)*8}")
            a(f"ds_read_b128 v[244:247], v248 offset:{4*64}")
            CSM = {0: (202, 206), 1: (194, 198), 2: (210, 214), 3: (218, 222), 4: (244, 246), 5: (194, 198)}
            groups = at_load_groups()
            polled = False; after = []
            def drip(k):
                for _ in range(k):
                    if groups:
                        a.extend(groups.pop(0)); after.append("ld")
                    elif pend:
                        a.extend(pend.pop(0)); after.append("st")
            for u in range(8, 32):
                p, tt = divmod(u - 8, 8)
                if u == 8: a("s_waitcnt lgkmcnt(5)")
                if u == 16:
                    a("s_waitcnt lgkmcnt(0)")
                    a(f"ds_read_b64 v[194:195], v248 offset:{5*64}")
                    a(f"ds_read_b64 v[198:199], v248 offset:{5*64+8}")
                if u == 24: a("s_waitcnt lgkmcnt(0)")
                if u == EPOLL - ELEAD: a(flagld(f"v{vFa}"))
                c0, c1 = acc(tt, 2 * p), acc(tt, 2 * p + 1)
                for c, cs in ((c0, CSM[2 * p]), (c1, CSM[2 * p + 1])):
                    for h in range(2):
                        a(f"v_pk_fma_f32 v[{c+2*h}:{c+2*h+1}], v[{cs[h]}:{cs[h]+1}], v[{ST+2*tt}:{ST+2*tt+1}], v[{c+2*h}:{c+2*h+1}] {BC}")
                a(f"v_cvt_pk_bf16_f32 v{c0}, v{c0}, v{c0+1}")
                a(f"v_cvt_pk_bf16_f32 v{c0+1}, v{c0+2}, v{c0+3}")
                a(f"v_cvt_pk_bf16_f32 v{c0+2}, v{c1}, v{c1+1}")
                a(f"v_cvt_pk_bf16_f32 v{c0+3}, v{c1+2}, v{c1+3}")
                for e_ in range(4): a(f"v_pk_max_i16 v{c1+e_}, v{c0+e_}, 0")
                if u in direct: pend.append(hstore(u, f"v[{c1}:{c1+3}]"))
                else:
                    for e_ in range(4): a(f"v_accvgpr_write_b32 a{4*parked.index(u)+e_}, v{c1+e_}")
                if u == EPOLL:
                    stp(a, "e1")
                    a(f"s_waitcnt vmcnt(0)")
                    stp(a, "e2")
                    poll(f"v{vFa}", True, mask="s[90:91]")
                    stp(a, "e4")
                    polled = True
                if polled: drip(4)
            drip(64)
            a("s_nop 1")
            at_init(); g2_setup(); after += ["x"] * 2
            idx = [i for i, z in enumerate(after) if z == "ld"][7 if HALF else 11]
            a(f"s_waitcnt vmcnt({len(after) - 1 - idx})")
            a("s_branch L_at_entry")
        else:
            QSC = SC
            vLq, vLk, vLv = 209, 211, 222
            srd(a, sOut, 4, 0, WS_END)
            a(f"s_cmp_lg_u32 s{sWc}, 0")
            a(f"s_cselect_b32 s{sOut+2}, s{sOut+2}, 0")
            a(f"s_cselect_b64 vcc, -1, 0")
            a(f"s_lshl_b32 s{t0}, s{sWr}, 14")
            a(f"v_add_u32 v{vLk}, s{t0}, v{vO+1}")
            a(f"v_add_u32 v{vLv}, s{t0}, v{vO}")
            a(f"s_lshl_b32 s{t0}, s{sWr}, 13")
            a(f"s_add_u32 s{t0}, s{t0}, {LDS_W1}")
            a(f"v_add_u32 v{vLq}, s{t0}, v{vO}")
            def own(v, c0, off):
                if not OWN: return
                n = lab[0]; lab[0] += 1
                a(f"s_cbranch_vccnz L_ow{n}")
                a(f"ds_write_b128 v{v}, v[{c0}:{c0+3}] offset:{off}")
                a(f"L_ow{n}:")
            a(f"s_mov_b32 s{sPub}, 0")
            a("s_waitcnt lgkmcnt(0)")
            a("s_nop 4")
            for b_ in range(4):
                for e_ in range(2):
                    a(f"ds_read_b128 v[{212+4*e_}:{215+4*e_}], v223 offset:{(2*b_+e_)*64}")
                a(f"ds_read_b128 v[244:247], v223 offset:{1024 + (2*b_)*64}")
                a(f"ds_read_b64 v[220:221], v223 offset:{1024 + (2*b_+1)*64}")
                a(f"ds_read_b64 v[242:243], v223 offset:{1024 + (2*b_+1)*64 + 8}")
                for X in (1, 0):
                    for h in range(2):
                        tt = 2 * b_ + h
                        st_ = f"v[{ST+2*tt}:{ST+2*tt+1}]"
                        if X == 0: a(f"v_mul_f32 v{ST+2*tt+1}, s{t4}, v{ST+2*tt+1}")
                        c0 = acc(tt, 2 * X)
                        for e_ in range(2):
                            c = acc(tt, 2 * X + e_); cs = 192 + 4 * (2 * X + e_)
                            for h2 in range(2):
                                a(f"v_pk_fma_f32 v[{c+2*h2}:{c+2*h2+1}], v[{cs+2*h2}:{cs+2*h2+1}], {st_}, v[{c+2*h2}:{c+2*h2+1}] {BC}")
                            for h2 in range(2):
                                a(f"v_pk_mul_f32 v[{c+2*h2}:{c+2*h2+1}], v[{c+2*h2}:{c+2*h2+1}], {st_} op_sel:[0,1]")
                        c1 = acc(tt, 2 * X + 1)
                        a(f"v_cvt_pk_bf16_f32 v{c0}, v{c0}, v{c0+1}")
                        a(f"v_cvt_pk_bf16_f32 v{c0+1}, v{c0+2}, v{c0+3}")
                        a(f"v_cvt_pk_bf16_f32 v{c0+2}, v{c1}, v{c1+1}")
                        a(f"v_cvt_pk_bf16_f32 v{c0+3}, v{c1+2}, v{c1+3}")
                        if X: a(f"buffer_store_dwordx4 v[{c0}:{c0+3}], v{vO+1}, {WSR}, s{t2} offen offset:{h*64} {QSC}")
                        else: a(f"buffer_store_dwordx4 v[{c0}:{c0+3}], v{vO}, {R(sOut) if OWN else WSR}, s{t1} offen offset:{h*256} {QSC}")
                        if X: own(vLk, c0, b_ * 4096 + h * 64)
                        else: own(vLq, c0, b_ * 2048 + h * 256)
                a("s_waitcnt lgkmcnt(0)")
                for vt in range(2):
                    c0 = acc(2 * b_, 4 + vt)
                    for e_ in range(2):
                        c = acc(2 * b_ + e_, 4 + vt)
                        rs = ((244, 246), (220, 242))[e_]
                        for h2 in range(2):
                            a(f"v_pk_fma_f32 v[{c+2*h2}:{c+2*h2+1}], v[{212+4*e_+2*h2}:{213+4*e_+2*h2}], v[{208+2*vt}:{209+2*vt}], v[{c+2*h2}:{c+2*h2+1}] {BC}")
                        for h2 in range(2):
                            a(f"v_pk_mul_f32 v[{c+2*h2}:{c+2*h2+1}], v[{c+2*h2}:{c+2*h2+1}], v[{rs[h2]}:{rs[h2]+1}]")
                    c1 = acc(2 * b_ + 1, 4 + vt)
                    a(f"v_cvt_pk_bf16_f32 v{c0}, v{c0}, v{c0+1}")
                    a(f"v_cvt_pk_bf16_f32 v{c0+1}, v{c0+2}, v{c0+3}")
                    a(f"v_cvt_pk_bf16_f32 v{c0+2}, v{c1}, v{c1+1}")
                    a(f"v_cvt_pk_bf16_f32 v{c0+3}, v{c1+2}, v{c1+3}")
                    a(f"buffer_store_dwordx4 v[{c0}:{c0+3}], v{vO}, {WSR}, s{t2} offen offset:{2048 + vt*256} {QSC}")
                    own(vLv, c0, b_ * 4096 + 2048 + vt * 256)
                a(f"s_add_u32 s{t1}, s{t1}, 2048")
                a(f"s_add_u32 s{t2}, s{t2}, 4096")
            if OWN:
                stp(a, "e1")
                a("s_waitcnt lgkmcnt(0)")
                srd(a, sOut, 4, 0, 0)
                for r in (sH1, sH2, t3, t4): a(f"s_mov_b32 s{r}, 0")
                at_init(); g2_setup()
                a(f"s_add_u32 s{sSo}, s{sSo}, 32768")
                a(so_wrap)
                a(f"v_add_u32 v{U}, {LDS_W1}, v{vDma}")
                a(f"v_lshlrev_b32 v{U+1}, 7, v{L}")
                a(f"v_and_b32 v{U+2}, 0xf80, v{U+1}")
                a(f"s_add_u32 s{t1}, s{sQO}, 131072")
                a(f"s_sub_u32 s{t0}, s{t1}, {WS_Q}")
                a(f"s_lshl_b32 s{t0}, s{t0}, 1")
                a(f"s_add_u32 s{t0}, s{t0}, {WS_KV}")
                a("s_waitcnt vmcnt(0)")
                a("s_barrier")
                stp(a, "e2")
                publish(92, T)
                if WARM:
                    a(f"buffer_load_dword v{U+3}, v{U+2}, {WSR}, s{t1} offen sc1")
                    a(f"buffer_load_dword v{U+3}, v{U+1}, {WSR}, s{t0} offen sc1")
                stp(a, "e4")
                for x in range(2):
                    for h in range(2):
                        a(f"ds_read_b128 v[{Q[x]+4*h}:{Q[x]+4*h+3}], v{U} offset:{x*2048+h*1024}")
            else:
                stp(a, "e1")
                a("s_waitcnt vmcnt(0)")
                a("s_barrier")
                stp(a, "e2")
                publish(92, T)
                stp(a, "e4")
                for g_ in at_load_groups(): a.extend(g_)
                srd(a, sOut, 4, 0, 0)
                for r in (sH1, sH2, t3, t4): a(f"s_mov_b32 s{r}, 0")
                at_init(); g2_setup()
                a("s_waitcnt vmcnt(2)")
    g1("ffn")
    a("L_g1_qkv:")
    g1("qkv")

    a("L_at_entry:")
    stp(a, "atentry")
    a("s_barrier")
    def rdK(t, tl):
        b = Kf[t & 1]
        return [f"ds_read_b128 v[{b}:{b+3}], v{vCur} offset:{tl*4096}", f"ds_read_b128 v[{b+4}:{b+7}], v{vCur} offset:{tl*4096+1024}"]
    def rdV(t, tl):
        b = Vf[t & 1]
        return [f"ds_read_b128 v[{b}:{b+3}], v{vCur} offset:{tl*4096+2048}", f"ds_read_b128 v[{b+4}:{b+7}], v{vCur} offset:{tl*4096+3072}"]
    def qk(x, t, c0=None):
        s = S[x]; k = Kf[t & 1]; q = Q[x]
        c = f"v[{NM[x]}:{NM[x]+15}]" if c0 is None else c0
        return [f"v_mfma_f32_32x32x16_bf16 v[{s}:{s+15}], v[{k}:{k+3}], v[{q}:{q+3}], {c}",
                f"v_mfma_f32_32x32x16_bf16 v[{s}:{s+15}], v[{k+4}:{k+7}], v[{q+4}:{q+7}], v[{s}:{s+15}]"]
    def PV(x, t, h):
        v = Vf[t & 1]
        return f"v_smfmac_f32_32x32x32_bf16 v[{O[x]}:{O[x]+15}], v[{v+4*h}:{v+4*h+3}], v[{D[x]+8*h}:{D[x]+8*h+7}], v{IDX}"
    def LS(x, h):
        return f"v_smfmac_f32_16x16x64_bf16 v[{Lr[x]}:{Lr[x]+3}], v[{ONE}:{ONE+3}], v[{D[x]+8*h}:{D[x]+8*h+7}], v{IDX}"
    a.extend(rdK(0, 0))
    a.extend(rdV(0, 0))
    a("s_waitcnt lgkmcnt(0)")
    a.extend(qk(0, 0, "0"))
    a.extend(qk(1, 0, "0"))
    a("s_nop 7")
    a("s_nop 1")
    for x in range(2):
        s0 = S[x]
        a(f"v_max3_f32 v{U}, v{s0}, v{s0+1}, v{s0+2}")
        for i in range(3, 15, 2): a(f"v_max3_f32 v{U}, v{U}, v{s0+i}, v{s0+i+1}")
        a(f"v_max_f32 v{U}, v{U}, v{s0+15}")
        a(f"v_mov_b32 v{U+2}, v{U}")
        a("s_nop 1")
        a(f"v_permlane32_swap_b32 v{U}, v{U+2}")
        a(f"v_max_f32 v{U}, v{U}, v{U+2}")
        a(f"v_sub_f32 v{NM[x]}, 0, v{U}")
        a(f"v_sub_f32 v{NM[x]+1}, 0, v{U}")
        for i in range(2, 16, 2): a(f"v_mov_b64 v[{NM[x]+i}:{NM[x]+i+1}], v[{NM[x]}:{NM[x]+1}]")
        if x == 0:
            for i in range(0, 16, 2): a(f"v_pk_add_f32 v[{s0+i}:{s0+i+1}], v[{s0+i}:{s0+i+1}], v[{NM[x]}:{NM[x]+1}]")
    a("s_nop 1")
    stp(a, "atloop")

    def acc2(tt, ft): return 128 + (tt * 4 + ft) * 4
    def ab(buf, tt): return buf * 32 + tt * 4
    def gm(v, tt, ft):
        c = acc2(tt, ft); w = WF[v & 1] + ft * 4; x = ab(v, tt)
        return f"v_mfma_f32_16x16x32_bf16 a[{c}:{c+3}], v[{w}:{w+3}], a[{x}:{x+3}], a[{c}:{c+3}]"
    def aload(buf, tt):
        r = ab(buf, tt)
        return f"buffer_load_dwordx4 a[{r}:{r+3}], v{vA[tt>>1]}, {WSR}, s{sKA} offen offset:{(tt&1)*1024} {ASC}"
    def wdma(pc):
        return f"buffer_load_dwordx4 v{vW+pc}, {R(sW)}, s{sKW} offen offset:{pc*1024} {W2P} lds"
    def wread(slot, buf, ft):
        r = WF[buf] + ft * 4
        return [f"ds_read_b64_tr_b16 v[{r+2*rd}:{r+2*rd+1}], v{vWo if ft&1 else vWe} offset:{slot*4096 + rd*2048 + (ft>>1)*512}" for rd in range(2)]
    W0 = "s_waitcnt lgkmcnt(0)"
    def phase(x, t, doqk=True, f=None):
        y = 1 - x
        f = f or {}
        E = lambda i: f"v_exp_f32 v{D[x]+i}, v{S[x]+i}"
        q = qk(y, t + x) if doqk else [None, None]
        g = lambda k: f.get(k, [])
        seq = [q[0]] + g(0) + [E(0), E(1), E(2), q[1]] + g(1) + [E(3), E(4), E(5), PV(y, t - 1 + x, 1)] + g(2) + [E(6), E(7), E(8),
               LS(y, 1)] + g(3) + [E(9), E(10), PV(x, t, 0)] + g(4) + [E(11), E(12), E(13), LS(x, 0)] + g(5) + [E(14), E(15)]
        a.extend([z for z in seq if z])
    ring_adv = [f"s_add_u32 s{sMb}, s{sRing}, s{sM0k}", f"s_add_u32 s{sRing}, s{sRing}, 32768", f"s_cmp_eq_u32 s{sRing}, 98304",
                f"s_cselect_b32 s{sRing}, 0, s{sRing}"]
    kv_sel = [f"s_cmp_gt_u32 s{sCntA}, 5", f"s_cselect_b32 s{sKV+2}, 0, {SZ_KV}"]
    hq = list(parked)
    kv0 = kv_groups(2, 4 if KVD else 6)
    kv1 = kv_groups(4, 8) if KVD else []
    def it_pure(c, j, lastpure):
        t = j + 1
        k = rdK(t + 1, j); v = rdV(t + 1, j)
        fa = {0: [k[0]], 1: [k[1]], 5: [W0]}
        fb = {0: [v[0]], 1: [v[1]], 5: [W0]}
        if j == 0:
            fa[2] = [f"s_mov_b32 m0, s{sMb}", so_wrap]
            if c > 5: fa[3] = [f"s_mov_b32 s{sKV+2}, 0"]
        if j == 4:
            fa[2] = [f"s_add_u32 m0, s{sMb}, 16384", f"s_add_u32 s{sSo}, s{sSo}, 16384"]
        fa[4] = [kvdma(j)]
        if j == 7:
            fa[2] = ring_adv[0:2]; fa[3] = ring_adv[2:4]
            fb[2] = [f"s_add_u32 s{sSo}, s{sSo}, 16384"]
        if c == 0:
            if j == 4: fa[2] = []
            if j == 7: fb[2] = []
            fa[4] = []
            if j == JLD: fa[4] = [flagld(f"v{vFa}")]
            if j > JCHK:
                for f in (fa, fb):
                    for sl in (3, 4):
                        if kv0: f[sl] = f.get(sl, []) + kv0.pop(0)
        if c == 1 and KVD:
            if j in (0, 4): fa[2] = []
            if j == 7: fb[2] = []
            fa[4] = kv1.pop(0); fb[4] = kv1.pop(0)
        for f in (fa, fb):
            for sl in (2, 3)[:SPP]:
                if hq and 8 * c + j >= HST and not any(" lds" in z for z in f.get(sl, [])):
                    u = hq.pop(0); r = 4 * parked.index(u)
                    f[sl] = f.get(sl, []) + hstore(u, f"a[{r}:{r+(1 if u < 8 else 3)}]")
        if lastpure and j == POLLAT:
            fb[4] = fb.get(4, []) + [flagld(f"v{vFa2}")]
        return fa, fb, t
    vK = [240, 241, 242, 243]; sStep, sMask = sT[0], sT[1]
    def kvdma2(q):
        return f"buffer_load_dwordx4 v{vK[q&3]}, {R(sKV)}, s{sSo} offen offset:{(q&3)*1024} {SC} lds"
    def kv_m0(j):
        return f"s_mov_b32 m0, s{sMb}" if j < 4 else f"s_add_u32 m0, s{sMb}, 16384"
    def trip_sa(j, x):
        l = []
        if j == 0 and x == 0: l += [f"s_and_b32 s{sSo}, s{sSo}, s{sMask}"]
        if j == 3 and x == 1: l += [f"s_add_u32 s{sSo}, s{sSo}, s{sStep}"]
        if j == 7 and x == 1: l += [f"s_add_u32 s{sSo}, s{sSo}, s{sStep}"] + ring_adv
        return l
    def kstep_adv():
        return [f"s_add_u32 s{sKA}, s{sKA}, {KS*131072}", f"s_add_u32 s{sKW}, s{sKW}, {KS*65536}"]
    def it_load(j):
        t = j + 1; v = j >> 1
        for x in range(2):
            ph = 2 * (j & 1) + x
            kv = rdK(t + 1, j) if x == 0 else rdV(t + 1, j)
            tr = wread(0, 0, ph) if v == 3 else []
            sa = trip_sa(j, x)
            wait = "s_waitcnt vmcnt(28) lgkmcnt(0)" if ph == 3 else W0
            f = {0: [kv[0], kv[1]], 1: sa[0:2] + tr, 2: [f"s_add_u32 m0, s{sM0g}, {v*4096}", aload(v, 2 * ph)], 3: sa[2:] + [wdma(ph)],
                 4: ([kv_m0(j)] if x == 0 else []), 5: [wait, aload(v, 2 * ph + 1)] + ([kvdma2(j)] if x == 0 else [])}
            if ph == 3: f[5] += kstep_adv()
            if j == 7 and x == 1:
                f[4] = [f"s_add_u32 s{sCntA}, s{sCntA}, 1"]
                f[5] += ["s_barrier", f"v_add_u32 v{vCur}, s{sRing}, v{vL16}"]
            phase(x, t, f=f)
    def it_comb(j):
        t = j + 1; v = j >> 1
        for x in range(2):
            y = 1 - x
            ph = 2 * (j & 1) + x
            E = lambda i: f"v_exp_f32 v{D[x]+i}, v{S[x]+i}"
            q = qk(y, t + x)
            kv = rdK(t + 1, j) if x == 0 else rdV(t + 1, j)
            tr = wread((v + 1) & 3, (v + 1) & 1, ph)
            Gm = [gm(v, 2 * ph, ft) for ft in range(4)] + [gm(v, 2 * ph + 1, ft) for ft in range(3, -1, -1)]
            sa = trip_sa(j, x) + [None] * 5
            wait = "s_waitcnt vmcnt(28) lgkmcnt(0)" if ph == 3 else W0
            last = (j == 7 and x == 1)
            seq = [Gm[0], kv[0], kv[1], q[0], sa[0], E(0), E(1), E(2), Gm[1], sa[1], E(3), q[1], sa[2], E(4), E(5), E(6), Gm[2], sa[3], E(7),
                   PV(y, t - 1 + x, 1), tr[0], E(8), E(9), LS(y, 1), tr[1], Gm[3], sa[4], E(10), PV(x, t, 0), aload(v, 2 * ph), E(11), E(12),
                   Gm[4], f"s_add_u32 m0, s{sM0g}, {v*4096}", E(13), LS(x, 0), wdma(ph), Gm[5],
                   kv_m0(j) if x == 0 else (f"s_add_u32 s{sCntA}, s{sCntA}, 1" if last else None), E(14), Gm[6], wait,
                   "s_barrier" if last else None, E(15), Gm[7], aload(v, 2 * ph + 1), kvdma2(j) if x == 0 else None]
            if CPF and j == 2 and x == 1: seq.append(f"global_load_dwordx4 v[{U+4}:{U+7}], v[248:249], off")
            if ph == 3: seq += kstep_adv()
            if last: seq += [f"v_add_u32 v{vCur}, s{sRing}, v{vL16}", f"s_bitcmp1_b32 {0x1c0 if L2T == 7 else 0x140}, s{sCntA}"]
            a.extend([z for z in seq if z])

    NPURE = 7 - NC
    seqs = []
    for c in range(NPURE):
        for j in range(1 if c == 0 else 0, 8):
            seqs.append((c, j) + it_pure(c, j, c == NPURE - 1))
    assert not hq and not kv0 and not kv1
    log = []
    def younger(pred):
        idx = [i for i, tag in enumerate(log) if pred(tag)]
        return len(log) - 1 - idx[-1] if idx else len(log)
    for (c, j, fa, fb, t) in seqs:
        for f in (fa, fb):
            for sl in range(5):
                for z in f.get(sl, []):
                    if z.startswith("buffer_"):
                        log.append("kv%d" % (sum(1 for g in log if g.startswith("kv")) // 8 - 1) if " lds" in z else ("st" if "store" in z else "poll"))
        need = 63
        pub = (8 * c + j == PUBAT)
        if j == 7: need = min(need, younger(lambda g: g == "kv%d" % (c - 1)))
        if pub: need = min(need, younger(lambda g: g == "st"))
        if j == 7 or pub:
            fb[5] = [f"s_waitcnt vmcnt({need}) lgkmcnt(0)", "s_barrier"]
            if j == 7: fb[5].append(f"v_add_u32 v{vCur}, s{sRing}, v{vL16}")
        phase(0, t, f=fa)
        phase(1, t, f=fb)
        if c == 0 and j == JCHK:
            a(f"s_waitcnt vmcnt({younger(lambda g: g == 'poll')})")
            poll(f"v{vFa}", True)
            if HALF:
                assert JCHK <= 3
                a("s_barrier")
            stp(a, "fqok")
        if pub:
            assert log.count("st") == len(parked)
            a(f"s_cmp_eq_u32 s{sPub}, 0")
            a("s_cbranch_scc1 L_at_np")
            publish(sPub, U)
            a("L_at_np:")
    stp(a, "pureend")
    a(f"s_mov_b32 s{sCntA}, {NPURE}")
    for q in range(4): a(f"v_mov_b32 v{vK[q]}, v{vDma}")
    a(f"s_mov_b32 s{sStep}, 16384")
    a(f"s_mov_b32 s{sMask}, {SZ_KV - 1}")
    a(f"s_waitcnt vmcnt({younger(lambda g: g == 'poll')})")
    poll(f"v{vFa2}", True)
    stp(a, "fhok")
    for j in range(8): it_load(j)
    if NC:
        stp(a, "cb0")
        a(".p2align 6")
        a("L_cb_loop:")
        for j in range(8): it_comb(j)
        a("s_cbranch_scc0 L_cb_loop")
        a(f"s_cmp_eq_u32 s{sCntA}, 6")
        a("s_cbranch_scc1 L_cb_sw")
        if L2T == 7:
            a(f"s_cmp_eq_u32 s{sCntA}, 7")
            a("s_cbranch_scc1 L_cb_t")
        o = Asm(); sv = a.lines; a.lines = o.lines
        a("L_cb_sw:")
        for q in range(4): a(f"v_mov_b32 v{vK[q]}, v{vW+q}")
        srd(a, sKV, pWO, 0, 1024 * 2048)
        a(f"s_lshl_b32 s{sSo}, s{sWave}, {19 if KQ else 16}")
        a(f"s_mov_b32 s{sStep}, {KS*65536}")
        a(f"s_mov_b32 s{sMask}, -1")
        if L2T != 6: a("s_branch L_cb_loop")
        if L2T:
            assert KQ and G2MAP == 0
            a("L_cb_t:")
            a(f"v_and_b32 v{U}, 31, v{L}")
            a(f"v_lshlrev_b32 v{U+1}, 11, v{U}")
            a(f"v_lshlrev_b32 v{U}, 7, v{U}")
            a(f"s_and_b32 s{t0}, s{sSlot}, 3")
            a(f"s_lshl_b32 s{t1}, s{sCb}, 7")
            a(f"s_mul_i32 s{t2}, s{sWave}, 28")
            a(f"s_add_u32 s{t2}, s{t2}, 24")
            a(f"s_add_u32 s{t3}, s{t2}, s{t0}")
            a(f"s_lshl_b32 s{t3}, s{t3}, 16")
            a(f"s_add_u32 s{t3}, s{t3}, s{t1}")
            a(f"buffer_load_dword v{U+3}, v{U+1}, {R(sW)}, s{t3} offen")
            a(f"s_lshr_b32 s{t3}, s{sSlot}, 3")
            a(f"s_add_u32 s{t2}, s{t2}, s{t3}")
            a(f"s_lshl_b32 s{t2}, s{t2}, 17")
            a(f"s_lshl_b32 s{t3}, s{sRb2}, 13")
            a(f"s_add_u32 s{t2}, s{t2}, s{t3}")
            a(f"s_and_b32 s{t3}, s{sSlot}, 4")
            a(f"s_lshl_b32 s{t3}, s{t3}, 10")
            a(f"s_add_u32 s{t2}, s{t2}, s{t3}")
            a(f"s_add_u32 s{t2}, s{t2}, {WS_A2 + 32*131072}")
            a(f"buffer_load_dword v{U+3}, v{U}, {WSR}, s{t2} offen sc1")
            a(f"s_lshl_b32 s{t2}, s{sWave}, 3")
            a(f"s_add_u32 s{t2}, s{t2}, s{t0}")
            a(f"s_add_u32 s{t2}, s{t2}, 4")
            a(f"s_lshl_b32 s{t2}, s{t2}, 16")
            a(f"s_add_u32 s{t2}, s{t2}, s{t1}")
            a(f"buffer_load_dword v{U+3}, v{U+1}, {R(sKV)}, s{t2} offen")
            srd(a, sX, pX, 0, 4 * MB)
            a(f"s_lshl_b32 s{t2}, s{sRb2}, 2")
            a(f"s_add_u32 s{t2}, s{t2}, s{sWave}")
            a(f"s_lshl_b32 s{t2}, s{t2}, 16")
            a(f"s_add_u32 s{t2}, s{t2}, s{t1}")
            a(f"buffer_load_dword v{U+3}, v{U+1}, {R(sX)}, s{t2} offen")
            a("s_branch L_cb_loop")
        ool.extend([z.text for z in o.lines]); a.lines = sv
    stp(a, "cb1")
    phase(0, 63)
    phase(1, 63, doqk=False)
    a("s_nop 1")
    a(PV(1, 63, 1)); a(LS(1, 1))
    stp(a, "atend")
    a(f"v_bfe_u32 v{U+2}, v{L}, 4, 1")
    a(f"v_lshlrev_b32 v{U+2}, 10, v{U+2}")
    a(f"v_lshrrev_b32 v{U+3}, 5, v{L}")
    a(f"v_lshl_add_u32 v{U+2}, v{U+3}, 8, v{U+2}")
    a(f"v_and_b32 v{U+3}, 15, v{L}")
    a(f"v_lshl_add_u32 v{U+2}, v{U+3}, 4, v{U+2}")
    a(f"s_lshr_b32 s{t0}, s{sRb2}, 1")
    a(f"s_lshl_b32 s{t0}, s{t0}, 8")
    a(f"s_add_u32 s{t0}, s{t0}, {WS_FL + FO}")
    a(f"v_and_b32 v{U+3}, 31, v{L}")
    a(f"v_lshl_add_u32 v{vFa2}, v{U+3}, 3, s{t0}")
    a(f"s_add_u32 s{sQO}, s{sQO}, {WS_A2 - WS_Q}")
    a(f"s_mov_b32 s{t0}, {f2u(2.0**40):#x}")
    a(f"v_pk_mul_f32 v[{U}:{U+1}], v[{O[0]}:{O[0]+1}], 0 op_sel_hi:[1,0]")
    for i in range(2, 32, 2):
        a(f"v_pk_fma_f32 v[{U}:{U+1}], v[{O[0]+i}:{O[0]+i+1}], 0, v[{U}:{U+1}] op_sel_hi:[1,0,1]")
    a(f"v_add_f32 v{U}, v{U}, v{U+1}")
    a(f"v_add3_u32 v{U+1}, 0, 0, 0") if False else None
    a(f"v_add_f32 v{U+1}, v{Lr[0]}, v{Lr[1]}")
    a(f"v_add_f32 v{U}, v{U}, v{U+1}")
    a(f"v_cmp_ngt_f32 vcc, s{t0}, v{U}")
    a("s_nop 1")
    a("s_cbranch_vccnz L_at_slow")
    a("L_at_fin:")
    for x in range(2):
        a(f"v_rcp_f32 v{U}, v{Lr[x]}")
        a("s_nop 0")
        a(f"v_mul_f32 v{U}, v{U}, v{vSig+x}")
        for i in range(0, 16, 2): a(f"v_pk_mul_f32 v[{O[x]+i}:{O[x]+i+1}], v[{O[x]+i}:{O[x]+i+1}], v[{U}:{U+1}] op_sel_hi:[1,0]")
        for u in range(2):
            for e in range(2):
                c = O[x] + 8 * e + 4 * u
                a(f"v_cvt_pk_bf16_f32 v{D[x]+4*u+2*e}, v{c}, v{c+1}")
                a(f"v_cvt_pk_bf16_f32 v{D[x]+4*u+2*e+1}, v{c+2}, v{c+3}")
            a(f"buffer_store_dwordx4 v[{D[x]+4*u}:{D[x]+4*u+3}], v{U+2}, {WSR}, s{sQO} offen offset:{x*2048+u*512} {SC}")

    assert 2 < NC <= 5
    S0 = 4 * NC
    X = 112; WF8 = [0, 16, 32, 48, 64, 80, 96, 128]
    vE = [220, 221, 236, 237]; vRd = [233, 234, 235]; vRw = 238; vXs = 239
    ol = ["old"] + ["ost"] * 4
    def need2(*tags):
        idx = [i for i, t in enumerate(ol) if t in tags or t == "old"]
        return min(63, len(ol) - 1 - idx[-1])
    def abuf(s_, tt):
        r = ab(s_ & 3, tt) if s_ < 28 else ab(tt & 3, s_ - 28)
        return f"a[{r}:{r+3}]"
    def wfr(s_): return WF8[s_ - 28] if s_ >= 28 else WF[s_ & 1]
    def gm2(s_, tt, ft):
        c = acc2(tt, ft); w = wfr(s_) + ft * 4
        return f"v_mfma_f32_16x16x32_bf16 a[{c}:{c+3}], v[{w}:{w+3}], {abuf(s_, tt)}, a[{c}:{c+3}]"
    def wloc(s_):
        if s_ < 28: return ("r", s_ & 3)
        return ("e", (4, 5, 0, 1, 2, 3)[s_ - 28]) if s_ < 34 else ("r", s_ - 34)
    def wrd(s_):
        k, sl = wloc(s_); l = []
        for ft in range(4):
            r = wfr(s_) + ft * 4
            if k == "r": v = vWo if ft & 1 else vWe; o = sl * 4096
            else: v = vE[(ft & 1) + 2 * (sl >> 2)]; o = (sl & 3) * 16384
            l += [f"ds_read_b64_tr_b16 v[{r+2*rd}:{r+2*rd+1}], v{v} offset:{o + rd*2048 + (ft>>1)*512}" for rd in range(2)]
        return l
    def wld(s_):
        k, sl = wloc(s_)
        g = [([f"s_add_u32 m0, s{sM0g}, {sl*4096}" if k == "r" else f"s_add_u32 m0, s{sM0k}, {sl*16384}"], None)]
        for pc in range(4):
            g.append(([f"buffer_load_dwordx4 v{vW+pc}, {R(sW if s_ < 28 else sKV)}, s{sKW if s_ < 28 else sSo} offen offset:{pc*1024} lds"], f"W{s_}"))
        g.append(([f"s_add_u32 s{sKW if s_ < 28 else sSo}, s{sKW if s_ < 28 else sSo}, {KS*65536}"], None))
        return g
    sO4 = [t0, t1, t2, t3, 88, 89, 90, 91]
    def ald(s_, tt):
        so = sO4[s_ - 28] if s_ >= 28 else sKA
        return ([f"buffer_load_dwordx4 {abuf(s_, tt)}, v{vA[tt>>1]}, {WSR}, s{so} offen offset:{(tt&1)*1024} {ASC}"], f"A{s_}_{tt}")
    def order(s_): return [(tt, ft) for tt in range(8) for ft in (range(4) if tt % 2 == 0 else range(3, -1, -1))]
    def emit(m, vm_groups, pos, ds=(), misc=(), bud=8, ds2=(), wr=()):
        for g, tag in vm_groups:
            if tag: ol.append(tag)
        sds = [(8 + 2 * i, x) for i, x in enumerate(ds)] + [((i * 26) // max(1, len(ds2)), x) for i, x in enumerate(ds2)] + list(wr)
        a.extend(sched(m, [[(p, g) for p, (g, tag) in zip(pos, vm_groups)], sds, list(misc)], bud))
    def begin(s_):
        stp(a, f"s{s_}")
        a(f"s_waitcnt vmcnt({need2(*([f'A{s_}_{tt}' for tt in range(8)] + [f'W{s_+1}']))}) lgkmcnt(0)")
    e = Asm(); sv = a.lines; a.lines = e.lines
    a(f"s_sub_u32 s{t4}, s{sM0k}, s{sM0g}")
    a(f"v_add_u32 v{vE[0]}, s{t4}, v{vWe}")
    a(f"v_add_u32 v{vE[1]}, s{t4}, v{vWo}")
    a(f"v_add_u32 v{vE[2]}, 0x10000, v{vE[0]}")
    a(f"v_add_u32 v{vE[3]}, 0x10000, v{vE[1]}")
    srd(a, sX, pX, 0, 4 * MB)
    srd(a, sOut, pOut, 0, 4 * MB)
    a(f"s_mov_b32 s{sPf}, 32768")
    a(f"s_lshl_b32 s{t4}, s{sRb2}, 7")
    a(f"s_lshl_b32 s{t5}, s{sWave}, 5")
    a(f"s_add_u32 s{t4}, s{t4}, s{t5}")
    a(f"s_lshl_b32 s{sH1}, s{t4}, 2")
    a(f"s_add_u32 s{sH1}, s{sH1}, {WS_STAT + 8192}")
    a(f"s_lshl_b32 s{t4}, s{t4}, 11")
    a(f"s_lshl_b32 s{t5}, s{sCb}, 7")
    a(f"s_add_u32 s{t4}, s{t4}, s{t5}")
    el1 = [x.text for x in e.lines]; e = Asm(); a.lines = e.lines
    a(f"v_and_b32 v{vRw}, 15, v{L}")
    a(f"v_lshl_add_u32 v{vX}, v{vRw}, 11, s{t4}")
    a(f"v_lshlrev_b32 v{vRd[0]}, 2, v{vRw}")
    a(f"v_bfe_u32 v{vRw}, v{L}, 4, 1")
    a(f"v_lshl_add_u32 v{vXs}, v{vRw}, 5, v{vX}")
    a(f"v_lshrrev_b32 v{vRw}, 5, v{L}")
    a(f"v_lshl_add_u32 v{vXs}, v{vRw}, 4, v{vXs}")
    a(f"v_add_u32 v{vRw}, s{sM0k}, v{vL16}")
    if OT & 1:
        a(f"v_and_b32 v186, 31, v{L}")
        a(f"v_lshlrev_b32 v186, 11, v186")
        a(f"s_and_b32 s{t0}, s{sSlot}, 3")
        a(f"s_lshl_b32 s{t0}, s{t0}, 16")
        a(f"s_add_u32 s{t0}, s{t0}, s{sSo}")
        a(f"s_add_u32 s{t0}, s{t0}, s{t5}")
        a(f"buffer_load_dword v187, v186, {R(sKV)}, s{t0} offen")
        a(f"buffer_load_dword v187, v186, {R(sX)}, s{t4} offen")
    el2 = [x.text for x in e.lines]; e = Asm(); a.lines = e.lines
    for pi in range(3):
        a(f"s_sub_u32 s{t4}, s{sWave}, {pi + 1}")
        a(f"s_and_b32 s{t4}, s{t4}, 3")
        a(f"s_lshl_b32 s{t4}, s{t4}, 12")
        a(f"s_add_u32 s{t4}, s{t4}, {pi * 32768}")
        a(f"v_add_u32 v{vRd[pi]}, s{t4}, v{vL16}")
    a(f"s_lshl_b32 s{t4}, s{sWave}, {20 if KQ else 17}")
    for i in range(8): a(f"s_add_u32 s{sO4[i]}, s{t4}, {WS_A2 + i * KS * 131072}")
    if OT & 2:
        a(f"v_lshlrev_b32 v186, 7, v{L}")
        a(f"s_lshr_b32 s{sH2}, s{sSlot}, 2")
        a(f"s_lshl_b32 s{sH2}, s{sH2}, 17")
        a(f"s_add_u32 s{sH2}, s{sH2}, s{sO4[0]}")
        a(f"s_lshl_b32 s{t4}, s{sRb2}, 13")
        a(f"s_add_u32 s{sH2}, s{sH2}, s{t4}")
    el3 = [x.text for x in e.lines]; a.lines = sv
    def grp(l):
        out = []
        for z in l:
            if z.split()[0] in ("s_addc_u32", "s_subb_u32"): out[-1].append(z)
            else: out.append([z])
        return out
    for s_ in range(S0, 24):
        if s_ == S0: stp(a, "s20")
        begin(s_) if s_ > S0 else a("s_waitcnt lgkmcnt(0)")
        vg = wld(s_ + 4) + [ald(s_ + 4, tt) for tt in range(8)] + [([f"s_add_u32 s{sKA}, s{sKA}, {KS*131072}"], None)]
        pos = [0, 1, 2, 3, 4, 5] + [max(4 * tt + 3, 6 + tt) for tt in range(8)] + [31]
        misc = {S0: grp(el1), S0 + 1: grp(el2)}.get(s_, [])
        emit([gm2(s_, tt, ft) for tt, ft in order(s_)], vg, pos, wrd(s_ + 1), [(i + 1, g) for i, g in enumerate(misc)])
        if s_ == S0 + PUBSTEP:
            stp(a, "pb")
            a(f"s_waitcnt vmcnt({need2('ost')})")
            a("s_barrier")
            publish(93, 184)
        elif s_ < 20 + PUBSTEP:
            pass
    q = []
    for s_ in range(32, 36): q += wld(s_)
    xl = [([f"buffer_load_dwordx4 v[{X+(h*2+p)*4}:{X+(h*2+p)*4+3}], v{vXs}, {R(sX)}, {'0' if h == 0 else f's{sPf}'} offen offset:{p*64}"], "x")
          for h in range(2) for p in range(2)]
    xl += [([f"buffer_load_dword v{vRs2+h}, v{vRd[0]}, {WSR}, s{sH1} offen offset:{h*64} sc1"], "x") for h in range(2)]
    q = xl + q
    k = [i for i, (g, tag) in enumerate(q) if tag][POLLW]
    q.insert(k, ([flagld(f"v{vFa2}")], "poll"))
    def orow(tt): return [ald(s_, tt) for s_ in range(28, 36)]
    nq = CHK - 23
    per = (len(q) + nq - 1) // nq
    assert per >= 19 or nq > 1
    for s_ in range(24, 28):
        begin(s_)
        if s_ <= CHK: vg = q[:per]; q = q[per:]
        else:
            vg = orow(s_ - CHK - 1)
            if OT & 2 and s_ == CHK + 1:
                vg.insert(OTP, ([f"buffer_load_dword v187, v186, {WSR}, s{sH2} offen sc1"], "t"))
        ds = (wrd(s_ + 1) if s_ < 27 else []) + wrd(s_ + 4)
        emit([gm2(s_, tt, ft) for tt, ft in order(s_)], vg, [(i * 30) // len(vg) for i in range(len(vg))], [],
             [(i + 1, g) for i, g in enumerate(grp(el3))] if s_ == 25 else [], ds2=ds)
        if s_ == CHK:
            stp(a, "fopoll")
            a(f"s_waitcnt vmcnt({need2('poll')})")
            poll(f"v{vFa2}", True)
            stp(a, "fook")
    nrow = 27 - CHK
    for tt in range(nrow, 3):
        for g, tag in orow(tt): a.extend(g); ol.append(tag)
    a(f"s_waitcnt vmcnt({need2('W35')})")
    for s_ in range(32, 36): a.extend(wrd(s_))
    XF = 144; RB = [176, 0, 32]
    unp = [f"v_permlane16_swap_b32 v{X+4*i+j}, v{X+4*i+j+2}" for i in range(4) for j in range(2)]
    for i in range(16):
        unp += [f"v_lshlrev_b32 v{XF+2*i}, 16, v{X+i}", f"v_and_b32 v{XF+2*i+1}, 0xffff0000, v{X+i}"]
    for tt in range(8):
        stp(a, f"r{tt}")
        a(f"s_waitcnt vmcnt({need2(f'A35_{tt}')})" + (" lgkmcnt(0)" if tt == 0 else ""))
        m = [gm2(s_, tt, ft) for s_ in range(28, 36) for ft in (range(4) if s_ % 2 == 0 else range(3, -1, -1))]
        vg = orow(tt + 3) if tt + 3 < 8 else []
        wr = []
        if 1 <= tt <= 6:
            pt = tt - 1
            wr = [(8 + 4 * ft, f"ds_write_b128 v{vRw}, a[{acc2(pt, ft)}:{acc2(pt, ft)+3}] offset:{(pt & 3)*16384 + ft*1024}") for ft in range(4)]
            if pt == 3: wr.append((24, f"v_add_u32 v{vRw}, 0x10000, v{vRw}"))
        if tt == 6: wr.append((31, ["s_waitcnt lgkmcnt(0)", "s_barrier"]))
        mi = [(2 * i, z) for i, z in enumerate(unp[10 * tt:10 * tt + 10])] if tt < 4 else []
        if tt == 7:
            wr = [(8 * pi + i + (1 if pi else 0), f"ds_read_b128 v[{RB[pi]+4*i}:{RB[pi]+4*i+3}], v{vRd[pi]} offset:{(i >> 2)*16384 + (i & 3)*1024}")
                  for pi in range(3) for i in range(8)]
            mi = [(10 + i, f"v_accvgpr_read_b32 v{112+i}, a{acc2(6, 0)+i}") for i in range(16)]
        emit(m, vg, [4 * i + 1 for i in range(len(vg))], [], mi, ds2=[], wr=wr)
    stp(a, "g2end")
    a("s_waitcnt lgkmcnt(0)")
    for i in range(8):
        o_ = 112 + 4 * i if i < 4 else 64 + 4 * i
        if i == 2:
            for j in range(16): a(f"v_accvgpr_read_b32 v{80+j}, a{acc2(7, 0)+j}")
        for j in (0, 2): a(f"v_pk_add_f32 v[{RB[0]+4*i+j}:{RB[0]+4*i+j+1}], v[{RB[0]+4*i+j}:{RB[0]+4*i+j+1}], v[{RB[1]+4*i+j}:{RB[1]+4*i+j+1}]")
        for j in (0, 2): a(f"v_pk_add_f32 v[{o_+j}:{o_+j+1}], v[{o_+j}:{o_+j+1}], v[{RB[2]+4*i+j}:{RB[2]+4*i+j+1}]")
        for j in (0, 2): a(f"v_pk_add_f32 v[{o_+j}:{o_+j+1}], v[{o_+j}:{o_+j+1}], v[{RB[0]+4*i+j}:{RB[0]+4*i+j+1}]")
        sel = "op_sel_hi:[1,0,1]" if i < 4 else "op_sel:[0,1,0]"
        for j in (0, 2): a(f"v_pk_fma_f32 v[{o_+j}:{o_+j+1}], v[{o_+j}:{o_+j+1}], v[{vRs2}:{vRs2+1}], v[{XF+4*i+j}:{XF+4*i+j+1}] {sel}")
        a(f"v_cvt_pk_bf16_f32 v{128+2*i}, v{o_}, v{o_+1}")
        a(f"v_cvt_pk_bf16_f32 v{128+2*i+1}, v{o_+2}, v{o_+3}")
        if i & 1:
            r = 128 + 2 * (i - 1)
            a("s_nop 1")
            a(f"v_permlane16_swap_b32 v{r}, v{r+2}")
            a(f"v_permlane16_swap_b32 v{r+1}, v{r+3}")
            a(f"buffer_store_dwordx4 v[{r}:{r+3}], v{vXs}, {R(sOut)}, {'0' if i < 4 else f's{sPf}'} offen offset:{((i>>1)&1)*64} {OSC}")
    stp(a, "outst")
    if DBGST:
        n = len(STAMPS) + 1
        a("s_waitcnt vmcnt(0)")
        stamp(a, n - 1)
        a(f"s_cmp_lg_u32 s2, {DBGST - 1}")
        a("s_cbranch_scc1 L_end")
        a(f"s_cmp_lg_u32 s{sWave}, 0")
        a("s_cbranch_scc1 L_end")
        a("s_waitcnt lgkmcnt(0)")
        srd(a, 88, pDbg, 0, 256)
        for i in range(n):
            a(f"s_sub_u32 s92, s{60+2*i}, s60")
            a(f"v_mov_b32 v1, s92")
            a(f"buffer_store_dword v1, off, s[88:91], 0 offset:{4*i}")
    else:
        stamp_flush(a, 1, len(STAMPS) + 1, 0)
    a("L_end:")
    a("s_endpgm")
    a("L_at_slow:")
    a(f"s_lshl_b32 s{t5}, s{sHead}, 18")
    a(f"s_add_u32 s{t5}, s{t5}, {WS_KV}")
    for x in range(2): a(f"v_mov_b32 v{NM[x]}, 0xff800000")
    for i in range(40): a(f"v_mov_b32 v{O[0]+i}, 0")
    a(f"s_mov_b32 s{sCntA}, 0")
    a("L_at_sloop:")
    k = Kf[0]; v = Vf[0]
    a(f"buffer_load_dwordx4 v[{k}:{k+3}], v{vL16}, {WSR}, s{t5} offen {SC}")
    a(f"buffer_load_dwordx4 v[{k+4}:{k+7}], v{vL16}, {WSR}, s{t5} offen offset:1024 {SC}")
    a(f"buffer_load_dwordx4 v[{v}:{v+3}], v{vL16}, {WSR}, s{t5} offen offset:2048 {SC}")
    a(f"buffer_load_dwordx4 v[{v+4}:{v+7}], v{vL16}, {WSR}, s{t5} offen offset:3072 {SC}")
    a("s_waitcnt vmcnt(0)")
    for x in range(2):
        M = NM[x]; AL = NM[x] + 1; MN = NM[x] + 2; s = S[x]
        a.extend(qk(x, 0, "0"))
        a("s_nop 15")
        a(f"v_max3_f32 v{U}, v{s}, v{s+1}, v{s+2}")
        for i in range(3, 15, 2): a(f"v_max3_f32 v{U}, v{U}, v{s+i}, v{s+i+1}")
        a(f"v_max_f32 v{U}, v{U}, v{s+15}")
        a(f"v_mov_b32 v{U+1}, v{U}")
        a("s_nop 1")
        a(f"v_permlane32_swap_b32 v{U}, v{U+1}")
        a(f"v_max3_f32 v{MN}, v{U}, v{U+1}, v{M}")
        a(f"v_sub_f32 v{AL}, v{M}, v{MN}")
        a(f"v_exp_f32 v{AL}, v{AL}")
        a(f"v_mov_b32 v{M}, v{MN}")
        for i in range(16): a(f"v_sub_f32 v{s+i}, v{s+i}, v{MN}")
        for i in range(16): a(f"v_exp_f32 v{D[x]+i}, v{s+i}")
        for i in range(16): a(f"v_mul_f32 v{O[x]+i}, v{O[x]+i}, v{AL}")
        a(f"v_mul_f32 v{Lr[x]}, v{Lr[x]}, v{AL}")
        a("s_nop 1")
        a(LS(x, 0)); a(LS(x, 1))
        a(PV(x, 0, 0)); a(PV(x, 0, 1))
        a("s_nop 15")
    a(f"s_add_u32 s{t5}, s{t5}, 4096")
    a(f"s_add_u32 s{sCntA}, s{sCntA}, 1")
    a(f"s_cmp_lt_u32 s{sCntA}, 64")
    a("s_cbranch_scc1 L_at_sloop")
    a("s_branch L_at_fin")
    a.extend(ool)
    a(".p2align 4")
    a("L_code_end:")
    return a, descriptor(name, 512, 256, 102)

if __name__ == "__main__":
    path = sys.argv[1] if len(sys.argv) > 1 else "cdna_kernels/" + NAME + ".s"
    a, d = gen_main()
    ref = open(os.path.join(os.path.dirname(os.path.abspath(__file__)), "..", "cdna_kernels", NAME + ".s.ref")).read()
    head = [l for l in ref.split("\n") if l.startswith(";") and "@launch" not in l and "Override" not in l and "grid=ceil" not in l]
    out = "\n".join(head) + "\n; @launch grid=(256,1,1) block=(256,1,1) lds=163840\n"
    out += DOC
    out += '.amdgcn_target "amdgcn-amd-amdhsa--gfx950"\n.text\n' + a.text() + '.section .rodata,"a"\n.p2align 6\n' + d
    open(path, "w").write(out)
    probs = a.check("main")
    for p in probs: print("HAZARD", p)
    print("written", path, "hazards:", len(probs))
```

```python
import sys, os
sys.path.insert(0, os.path.dirname(os.path.abspath(__file__)))
from asmdsl import Asm, weave, sched
from gen import (NAME, KA_X, KA_WQKV, KA_WO, KA_W1, KA_W2, KA_OUT, KA_DBG, KA_WS, MB, f2u, srd, header, descriptor,
                 stamp, stamp_flush, STAMP, xreduce, bf16round, QSCALE)

def env(k, d): return type(d)(os.environ.get(k, d))
WS_Q, WS_KV, WS_A2 = 4 * MB, 8 * MB, 16 * MB
SZ_KV = 262144
WS_FL = 0
FQ, FH, FO, F0 = 0, 2048, 4096, 8192
WS_STAT = 16384
WS_CS = 65536
WS_END = 35 * MB
LDS_W1 = 98304
LDS_SCR = 90112
NC = env("NC", 5); ND = env("ND", 2); SPP = env("SPP", 2); PUBAT = env("PUBAT", 10); POLLAT = env("POLLAT", 5)
L2T = env("L2T", 0); TPF = env("TPF", 0); PNT = env("PNT", ""); CPF = env("CPF", 2); QPLAIN = env("QPLAIN", 0); WNT = env("WNT", ""); PFG1 = env("PFG1", 1); DMAF = env("DMAF", 0.6); RDF = env("RDF", 0.75); BUD = env("BUD", 4)
POLLSTEP = env("POLLSTEP", 2); PUBSTEP = env("PUBSTEP", 0); DBGST = env("DBGST", 0); JLD = env("JLD", 1); JCHK = env("JCHK", 3); POLLW = env("POLLW", 8); CHK = env("CHK", 25); HST = env("HST", 0); EPOLL = env("EPOLL", 31); ELEAD = env("ELEAD", 10)
XL = env("XL", 0); LAY = env("LAY", 0); QX = env("QX", 0); SLP = env("SLP", 6); OT = env("OT", 0); OTP = env("OTP", 8); W2P = env("W2P", ""); ROT = env("ROT", 8); WARM = env("WARM", 1); KVD = env("KVD", 1); HALF = env("HALF", 1); OWN = env("OWN", 1); XB = env("XB", 0); OSC = env("OSC", "sc1"); PRO = env("PRO", 1); XPOS = env("XPOS", 1); XNT = env("XNT", ""); KQ = env("KQ", 1); KS = 1 if KQ else 4; SC = "sc1"; ASC = env("ASC", "sc1"); G2MAP = env("G2MAP", 0)
STAMPS = env("STAMPS", "start,g1loop,g1end,e4,atentry,atloop,pureend,fhok,atend,fopoll,fook,g2end,outst").split(",")
def stp(a, name):
    if name in STAMPS: stamp(a, STAMPS.index(name))

DOC = """; One persistent kernel, 256 workgroups (one per CU, 4 waves), generated by a hand-written scheduler script.
;  phase 0  row statistics (mean, 1/sigma) of 8 rows per workgroup; column sums of the weight tile over 1/8 of K
;  phase 1  GEMM1  x @ [wqkv | w1], 256 x 192 / 256 x 224 tiles; LayerNorm is applied in the epilogue as
;           rs * (acc - mean * colsum); h = relu(.) and o are kept divided by rs, the last epilogue multiplies it back
;  phase 2  attention for one (head, 256 queries); exp2 of (score - max of the first key tile); after the loop the row
;           sums and accumulators are checked and, if the stand-in max was unsafe (sum >= 2^40, inf or NaN), the wave
;           20 of the 36 K-steps of GEMM2 are interleaved with the attention loop
;  phase 3  rest of GEMM2  [o | h] @ [wo ; w2], 128 x 64 tile, K split over the waves, + residual
; Hand-offs between workgroups: write-through (sc1) stores, s_waitcnt vmcnt + barrier, then an 8-byte flag holding a
; launch nonce (published through d_debug); consumers poll the flags (bounded) and read with sc1 loads.
"""

def gen_main():
    a = Asm()
    name = NAME + "_kernel"
    header(a, name)
    sWS, sW, sKV, sX, sOut = 8, 12, 16, 20, 24
    pW1, pW2, pWO, pX, pOut, pDbg = 28, 30, 32, 34, 36, 38
    sWave, sXcd, sSlot = 40, 41, 42
    sKA, sKW, sM0A, sM0W, sCnt, sWr, sWc, sRb, sCt = 43, 44, 45, 46, 47, 48, 49, 50, 51
    t0, t1, t2, t3, t4, t5 = 52, 53, 54, 55, 56, 57
    sPf = 58; sN = 6; sT = [3, 47, 51]
    sSo, sM0k, sCntA, sRing, sMb, sQO, sHead, sPub = 94, 95, 96, 97, 98, 99, 100, 101
    sAw, sArd, sCs, sTile = 96, 97, 98, 101
    sM0g, sRb2, sCb, sH1, sH2 = 45, 46, 48, 49, 50
    WSR = f"s[{sWS}:{sWS+3}]"
    def R(s): return f"s[{s}:{s+3}]"
    vAd, vWd, vAr, vArB, vWe1, vWo1, vWs1 = 224, 228, 232, 234, 235, 236, 237
    T = 238
    L, vL16, vDma, vFa, vFl = 250, 251, 252, 253, 254
    ST = 224; vO = 240
    Q = [0, 8]; S = [16, 32]; NM = [48, 64]; O = [80, 96]; Lr = [112, 116]; D = [120, 136]
    Kf = [152, 160]; Vf = [168, 176]; ONE = 184; WF = [188, 204]
    vCur, IDX, vW, vWe, vWo, vFa2, vX = 220, 221, 224, 228, 229, 230, 231
    vA = [222, 223, 246, 247]
    U = 232; vSig = 244; vRs2 = 244
    lab = [0]
    def flagld(areg, srdr=WSR):
        return f"buffer_load_dwordx2 v[{vFl}:{vFl+1}], {areg}, {srdr}, 0 {'offen' if areg != 'off' else ''} sc1"
    def poll(areg, first_done, srdr=WSR, val=f"s[{sN}:{sN+1}]", cmp="ne", mask=None):
        n = lab[0]; lab[0] += 1
        a(f"s_mov_b32 s{t5}, 0")
        if first_done: a(f"s_branch L_pc{n}")
        a(f"L_pl{n}:")
        a(flagld(areg, srdr))
        a("s_waitcnt vmcnt(0)")
        a(f"L_pc{n}:")
        a(f"v_cmp_{cmp}_u64 vcc, {val}, v[{vFl}:{vFl+1}]")
        a(f"s_add_u32 s{t5}, s{t5}, 1")
        if mask:
            a(f"s_and_b64 vcc, vcc, {mask}")
            a(f"s_cbranch_scc0 L_pd{n}")
        else:
            a("s_nop 0")
            a(f"s_cbranch_vccz L_pd{n}")
        a(f"s_sleep {SLP}")
        a(f"s_cmp_lt_u32 s{t5}, 0x40000")
        a(f"s_cbranch_scc1 L_pl{n}")
        a(f"L_pd{n}:")
    def publish(soff_reg, tmp):
        n = lab[0]; lab[0] += 1
        a(f"s_cmp_lg_u32 s{sWave}, 0")
        a(f"s_cbranch_scc1 L_pb{n}")
        a(f"v_mov_b32 v{tmp}, s{sN}")
        a(f"v_mov_b32 v{tmp+1}, s{sN+1}")
        a(f"buffer_store_dwordx2 v[{tmp}:{tmp+1}], off, {WSR}, s{soff_reg} sc1")
        a(f"L_pb{n}:")

    a("s_cmp_ge_u32 s2, 256")
    a("s_cbranch_scc1 L_end")
    stp(a, "start")
    a(f"s_load_dwordx2 s[{pX}:{pX+1}], s[0:1], {KA_X}")
    a(f"s_load_dwordx2 s[6:7], s[0:1], {KA_WQKV}")
    a(f"s_load_dwordx4 s[{pW1}:{pW1+3}], s[0:1], {KA_W1}")
    a(f"s_load_dwordx2 s[4:5], s[0:1], {KA_WS}")
    a(f"s_load_dwordx2 s[{pWO}:{pWO+1}], s[0:1], {KA_WO}")
    a(f"s_load_dwordx4 s[{pOut}:{pOut+3}], s[0:1], {KA_OUT}")
    a("s_memrealtime s[92:93]")
    a(f"v_lshrrev_b32 v{T}, 6, v0")
    a(f"v_and_b32 v{L}, 63, v0")
    a(f"v_readfirstlane_b32 s{sWave}, v{T}")
    a(f"v_lshlrev_b32 v{vL16}, 4, v{L}")
    a(f"s_and_b32 s{sXcd}, s2, 7")
    if STAMP: a(f"s_mov_b32 s59, s{sWave}")
    a(f"s_lshr_b32 s{sSlot}, s2, 3")
    a(f"s_and_b32 s{sRb}, s{sSlot}, 7")
    a(f"s_lshr_b32 s{sCt}, s{sSlot}, 3")
    a(f"s_lshr_b32 s{sWr}, s{sWave}, 1")
    a(f"s_and_b32 s{sWc}, s{sWave}, 1")
    a(f"v_bfe_u32 v3, v{L}, 2, 1")
    a(f"v_lshl_add_u32 v3, v{T}, 1, v3")
    a(f"s_lshl_b32 s{t0}, s2, 3")
    a(f"v_add_u32 v3, s{t0}, v3")
    a(f"v_and_b32 v4, 3, v{L}")
    a(f"v_lshrrev_b32 v5, 3, v{L}")
    a("v_lshlrev_b32 v6, 11, v3")
    a("v_lshl_add_u32 v6, v5, 6, v6")
    a("v_lshl_add_u32 v6, v4, 4, v6")
    a(f"v_lshrrev_b32 v{T+1}, 4, v{L}")
    a(f"v_and_b32 v{T+2}, 7, v{L}")
    a(f"v_xor_b32 v{T+2}, v{T+2}, v{T+1}")
    a(f"v_lshlrev_b32 v{T+2}, 4, v{T+2}")
    a(f"v_lshl_add_u32 v{T+2}, v5, 11, v{T+2}")
    a(f"s_lshl_b32 s{t0}, s{sRb}, 19")
    a(f"s_lshl_b32 s{t1}, s{sWave}, 17")
    a(f"s_add_u32 s{t0}, s{t0}, s{t1}")
    a(f"v_add_u32 v{vAd}, s{t0}, v{T+2}")
    a(f"v_xor_b32 v{vAd+1}, 64, v{vAd}")
    a(f"v_add_u32 v{vAd+3}, {3*15360}, v{vAd+1}")
    a(f"v_add_u32 v{vAd+1}, 15360, v{vAd+1}")
    a(f"v_add_u32 v{vAd+2}, {2*15360}, v{vAd}")
    a(f"s_lshl_b32 s{sM0A}, s{sWave}, 13")
    a(f"s_lshl_b32 s{sM0W}, s{sWave}, 12")
    a(f"s_add_u32 s{sM0W}, s{sM0W}, {LDS_W1}")
    a(f"s_and_b32 s{sCnt}, s{sRb}, {ROT - 1}")
    a(f"s_mul_i32 s{sCnt}, s{sCnt}, {8 // ROT}")
    a(f"s_lshl_b32 s{sKA}, s{sCnt}, 8")
    ftp, gb, jj, qc = T + 3, T + 4, T + 5, 4
    a(f"v_lshrrev_b32 v{ftp}, 5, v{L}")
    a(f"v_bfe_u32 v{gb}, v{L}, 4, 1")
    a(f"v_bfe_u32 v{jj}, v{L}, 2, 2")
    a(f"s_lshl_b32 s{t0}, s{sWr}, 4")
    a(f"s_lshl_b32 s{t1}, s{sWc}, 2")
    a(f"s_add_u32 s{t0}, s{t0}, s{t1}")
    a(f"v_lshl_add_u32 v{T+6}, v{gb}, 3, v{jj}")
    a(f"v_add_u32 v{T+6}, s{t0}, v{T+6}")
    a(f"v_lshlrev_b32 v{T+7}, 1, v{gb}")
    a(f"v_xor_b32 v{T+7}, v{T+7}, v{qc}")
    a(f"v_lshlrev_b32 v{T+7}, 4, v{T+7}")
    a(f"v_lshl_add_u32 v{T+7}, v{ftp}, 6, v{T+7}")
    a(f"v_xor_b32 v{T+8}, v{gb}, v{qc}")
    a(f"v_lshlrev_b32 v{T+8}, 4, v{T+8}")
    a(f"s_cmp_lt_u32 s{sCt}, 2")
    a("s_cbranch_scc0 L_g1_qkv")

    def code_addr(r):
        n = lab[0]; lab[0] += 1
        a(f"s_getpc_b64 s[{t0}:{t1}]")
        a(f"L_pc_{n}:")
        a(f"s_sub_u32 s{t0}, s{t0}, L_pc_{n}-{name}")
        a(f"s_subb_u32 s{t1}, s{t1}, 0")
        a(f"s_lshl_b32 s{t2}, s{sSlot}, 2")
        a(f"s_add_u32 s{t2}, s{t2}, s{sWave}")
        a(f"s_and_b32 s{t2}, s{t2}, 63")
        a(f"s_lshl_b32 s{t2}, s{t2}, 10")
        a(f"v_add_u32 v{r}, s{t2}, v{vL16}")
        a(f"v_min_u32 v{r}, L_code_end-{name}-16, v{r}")
        a(f"v_mov_b32 v{r+1}, s{t1}")
        a(f"v_add_co_u32 v{r}, vcc, s{t0}, v{r}")
        a("s_nop 1")
        a(f"v_addc_co_u32 v{r+1}, vcc, 0, v{r+1}, vcc")
    def code_pf(r):
        code_addr(r)
        a(f"global_load_dwordx4 a[120:123], v[{r}:{r+1}], off")
    def kvdma(q):
        return f"buffer_load_dwordx4 v{vDma}, {R(sKV)}, s{sSo} offen offset:{(q&3)*1024} {SC} lds"
    so_wrap = f"s_and_b32 s{sSo}, s{sSo}, {SZ_KV - 1}"
    def kv_groups(h0, h1):
        g = []
        for c in range(h0, h1):
            for q in range(4):
                pre = [f"s_add_u32 m0, s{sM0k}, {(c % 6)*16384}", "s_nop 0"] if q == 0 else []
                post = [f"s_add_u32 s{sSo}, s{sSo}, 16384"] if (q == 3) else []
                if q == 3 and c & 1: post.append(so_wrap)
                g.append(pre + [kvdma(q)] + post)
        return g
    def at_load_groups():
        g = kv_groups(0, 2)
        g[4:4] = [[f"buffer_load_dwordx4 v[{Q[x]+4*h}:{Q[x]+4*h+3}], v{vL16}, {WSR}, s{sQO} offen offset:{x*2048+h*1024} {SC}"]
                  for x in range(2) for h in range(2)]
        return g
    def at_init():
        a(f"v_mov_b32 v{vCur}, v{vL16}")
        for x in range(2): a(f"v_mfma_f32_32x32x16_bf16 v[{O[x]}:{O[x]+15}], a[128:131], a[128:131], 0")
        a(f"v_and_b32 v{U}, 7, v{L}")
        a(f"v_cmp_eq_u32 vcc, 0, v{U}")
        a(f"v_cmp_eq_u32 s[88:89], 4, v{U}")
        a(f"v_mov_b32 v{U+2}, 0x3f803f80")
        a(f"v_mov_b32 v{IDX}, 0xdddddddd")
        a(f"v_cndmask_b32 v{ONE}, 0, v{U+2}, vcc")
        a(f"v_cndmask_b32 v{ONE+2}, 0, v{U+2}, s[88:89]")
        a(f"v_mov_b32 v{ONE+1}, v{ONE}")
        a(f"v_mov_b32 v{ONE+3}, v{ONE+2}")
        a(f"s_add_u32 s{sMb}, s{sM0k}, 65536")
        a(f"s_mov_b32 s{sRing}, 0")
        for i in range(0, 8, 2): a(f"v_mov_b64 v[{Lr[0]+i}:{Lr[0]+i+1}], 0")
        for i in range(0, 8, 2): a(f"v_mov_b64 v[{D[1]+8+i}:{D[1]+9+i}], 0")
        for i in range(0, 4, 2): a(f"v_mov_b64 v[{Vf[1]+4+i}:{Vf[1]+5+i}], 0")
        a(f"s_lshr_b32 s{t0}, s{sXcd}, 1")
        a(f"s_lshl_b32 s{t0}, s{t0}, 2")
        a(f"s_and_b32 s{t1}, s{sSlot}, 3")
        a(f"s_add_u32 s{sRb2}, s{t0}, s{t1}")
        if G2MAP == 1:
            a(f"s_lshl_b32 s{t0}, s{sXcd}, 1")
            a(f"s_and_b32 s{t1}, s{sSlot}, 1")
            a(f"s_add_u32 s{sRb2}, s{t0}, s{t1}")
        if G2MAP == 2:
            a(f"s_lshr_b32 s{t0}, s{sXcd}, 2")
            a(f"s_lshl_b32 s{t0}, s{t0}, 3")
            a(f"s_and_b32 s{t1}, s{sSlot}, 7")
            a(f"s_add_u32 s{sRb2}, s{t0}, s{t1}")
        a(f"s_lshr_b32 s{t0}, s{sRb2}, 1")
        a(f"s_lshl_b32 s{t0}, s{t0}, 7")
        a(f"s_add_u32 s{t0}, s{t0}, {WS_FL + FH}")
        a(f"v_and_b32 v{U}, 15, v{L}")
        a(f"v_lshl_add_u32 v{vFa2}, v{U}, 3, s{t0}")
        srd(a, sW, pW2, 0, 3584 * 2048)
    def g2_setup():
        a(f"s_and_b32 s{t0}, s{sXcd}, 1")
        a(f"s_lshl_b32 s{t0}, s{t0}, 3")
        a(f"s_lshr_b32 s{t1}, s{sSlot}, 2")
        a(f"s_add_u32 s{sCb}, s{t0}, s{t1}")
        if G2MAP == 1: a(f"s_lshr_b32 s{sCb}, s{sSlot}, 1")
        if G2MAP == 2:
            a(f"s_and_b32 s{t0}, s{sXcd}, 3")
            a(f"s_lshl_b32 s{t0}, s{t0}, 2")
            a(f"s_lshr_b32 s{t1}, s{sSlot}, 3")
            a(f"s_add_u32 s{sCb}, s{t0}, s{t1}")
        a(f"s_lshl_b32 s{t0}, s{sRb2}, 13")
        for pi in range(4):
            a(f"s_add_u32 s{t1}, s{sWave}, {pi + 1}")
            a(f"s_and_b32 s{t1}, s{t1}, 3")
            a(f"s_lshl_b32 s{t1}, s{t1}, 11")
            a(f"s_add_u32 s{t1}, s{t1}, s{t0}")
            a(f"v_add_u32 v{vA[pi]}, s{t1}, v{vL16}")
        a(f"v_lshrrev_b32 v{U}, 5, v{L}")
        a(f"v_bfe_u32 v{U+1}, v{L}, 4, 1")
        a(f"v_bfe_u32 v{U+2}, v{L}, 2, 2")
        a(f"v_and_b32 v{U+3}, 3, v{L}")
        a(f"v_lshl_add_u32 v{vW}, v{U+1}, 2, v{U+2}")
        a(f"v_lshlrev_b32 v{vW}, 11, v{vW}")
        a(f"v_lshlrev_b32 v{vW+1}, 1, v{U+1}")
        a(f"v_xor_b32 v{vW+1}, v{vW+1}, v{U+3}")
        a(f"v_lshl_add_u32 v{vW}, v{vW+1}, 4, v{vW}")
        a(f"v_lshl_add_u32 v{vW}, v{U}, 6, v{vW}")
        a(f"s_lshl_b32 s{t0}, s{sCb}, 7")
        a(f"v_add_u32 v{vW}, s{t0}, v{vW}")
        for pc in range(1, 4): a(f"v_add_u32 v{vW+pc}, {pc*(16384-1024)}, v{vW}")
        a(f"s_lshl_b32 s{sM0g}, s{sWave}, 14")
        a(f"s_add_u32 s{sM0g}, s{sM0g}, {LDS_W1}")
        a(f"v_lshl_add_u32 v{vWe}, v{U}, 10, s{sM0g}")
        a(f"v_lshl_add_u32 v{vWe}, v{U+1}, 8, v{vWe}")
        a(f"v_lshl_add_u32 v{vWe}, v{U+2}, 6, v{vWe}")
        a(f"v_lshl_add_u32 v{vWe}, v{U+1}, 5, v{vWe}")
        a(f"v_lshl_add_u32 v{vWe}, v{U+3}, 3, v{vWe}")
        a(f"v_xor_b32 v{vWo}, 32, v{vWe}")
        a(f"s_and_b32 s{t0}, s{sSlot}, 7")
        a(f"s_lshl_b32 s{t0}, s{t0}, 2")
        a(f"s_add_u32 s{t0}, s{t0}, s{sWave}")
        a(f"s_lshl_b32 s{t0}, s{t0}, 8")
        a(f"s_add_u32 s{t0}, s{t0}, {WS_STAT + 16384}")
        a(f"v_and_b32 v{U+1}, 31, v{L}")
        a(f"v_lshlrev_b32 v{U+1}, 2, v{U+1}")
        for x in range(2):
            a(f"buffer_load_dword v{vSig+x}, v{U+1}, {WSR}, s{t0} offen offset:{x*128} sc1")
        if CPF: code_addr(248)
        a(f"s_mul_i32 s{sKA}, s{sWave}, {(28 if KQ else 1)*131072}")
        a(f"s_add_u32 s{sKA}, s{sKA}, {WS_A2 + 32*131072}")
        a(f"s_mul_i32 s{sKW}, s{sWave}, {(28 if KQ else 1)*65536}")
    def hstore(u, data):
        if u < 8:
            return [f"buffer_store_dwordx2 {data}, v{vO+2 + (u>>2)}, {R(sOut)}, s{sH2} offen offset:{(u&3)*1024} {SC}"]
        p, tt = divmod(u - 8, 8)
        return [f"buffer_store_dwordx4 {data}, v{vO + (tt>>2)}, {R(sOut)}, s{(sH1, t3, t4)[p]} offen offset:{(tt&3)*1024} {SC}"]
    direct = set(range(8, 8 + ND))
    parked = [u for u in range(32) if u not in direct]
    ool = []

    def g1(kind):
        ffn = kind == "ffn"
        NB = 7 if ffn else 6
        RS = 7168 if ffn else 6144
        nW = 4 if ffn else 3
        NF = 8 + NB
        def fr(buf, i): return buf * NF * 4 + i * 4
        def acc(tt, ft): return (ft * 8 + tt) * 4
        if ffn:
            a(f"s_mul_i32 s{t0}, s{sXcd}, 896")
            a(f"s_mul_i32 s{t1}, s{sCt}, 384")
            a(f"s_add_u32 s{t1}, s{t1}, s{t0}")
            a(f"s_lshl_b32 s{t2}, s{sCt}, 6")
            a(f"s_add_u32 s{t2}, s{t2}, s{t0}")
            a(f"s_add_u32 s{t2}, s{t2}, {768 + 4096 - 3072}")
            qstep = 128
        else:
            a(f"s_lshl_b32 s{t1}, s{sXcd}, 1")
            a(f"s_add_u32 s{t1}, s{t1}, s{sCt}")
            a(f"s_sub_u32 s{t1}, s{t1}, 2")
            a(f"s_lshl_b32 s{t1}, s{t1}, 7")
            qstep = 2048
        a(f"s_mul_i32 s{sKW}, s{sCnt}, {128 * RS}")
        a(f"v_mul_u32_u24 v{T+6}, {RS}, v{T+6}")
        a(f"v_add3_u32 v{T+7}, v{T+7}, v{T+6}, s{t1}")
        for q in range(3):
            a(f"v_add_u32 v{vWd+q}, {4096 + q*qstep - q*1024}, v{T+7}")
        if ffn:
            a(f"v_add3_u32 v{T+8}, v{T+8}, v{T+6}, s{t2}")
            a(f"v_lshlrev_b32 v{T+9}, 30, v{ftp}")
            a(f"v_or_b32 v{vWd+3}, v{T+8}, v{T+9}")
        oplog = []
        def wdma_list(stage, pol=WNT):
            l = [[f"s_add_u32 m0, s{sM0W}, {(stage & 3)*16384}"]]
            for q in range(nW):
                l.append([f"buffer_load_dwordx4 v{vWd+q}, {R(sW)}, s{sKW} offen offset:{q*1024} {pol} lds"])
            l.append([f"s_add_u32 s{sKW}, s{sKW}, {32*RS}"])
            if stage & 3 == 3: l.append([f"s_cmp_eq_u32 s{sKW}, {1024 * RS}", f"s_cselect_b32 s{sKW}, 0, s{sKW}"])
            oplog.extend([f"W{stage}"] * nW)
            return l
        def adma_half(Dn, h):
            if Dn < 3: l = [[f"s_add_u32 m0, s{sM0A}, {Dn*32768 + h*4096}"]]
            else: l = [[f"s_add_u32 m0, s{sAw}, {h*4096}"]]
            for p in range(4):
                l.append([f"buffer_load_dwordx4 v{vAd+p}, {R(sKV if h else sX)}, s{sKA} offen offset:{p*1024} {XNT} lds"])
            if h:
                l.append([f"s_add_u32 s{sKA}, s{sKA}, 128"])
                if Dn & 1: l.append([f"s_and_b32 s{sKA}, s{sKA}, 2047"])
            oplog.extend([f"A{Dn}"] * 4)
            return l
        def need(*tags):
            idx = max(i for i, t in enumerate(oplog) if t in tags)
            return len(oplog) - 1 - idx
        def flat(l):
            out = []
            for x in l:
                out += x
                if x[-1].startswith("s_add_u32 m0"): out.append("s_nop 0")
            return out
        for i in range(4): a(f"v_mov_b32 v{12+i}, 0")
        z = [f"v_mfma_f32_32x32x16_bf16 a[{128+16*i}:{143+16*i}], v[12:15], v[12:15], 0" for i in range(8) if i != 2]
        z += [f"v_mfma_f32_32x32x16_bf16 v[{16*i}:{16*i+15}], v[12:15], v[12:15], 0" for i in range(1, 2 * NB)]
        k = 0
        for r in (sX, sKV, sW): a(f"s_mov_b32 s{r+3}, 0x00020000")
        a(f"s_mov_b32 s{sX+2}, {4 * MB}")
        a(f"s_mov_b32 s{sKV+2}, {4 * MB - 65536}")
        a(f"s_mov_b32 s{sW+2}, {1024 * RS + 4096}")
        a("s_waitcnt lgkmcnt(0)")
        stp(a, "p1")
        first = [[f"s_mov_b32 s{sX}, s{pX}", f"s_mov_b32 s{sX+1}, s{pX+1}"]] + adma_half(0, 0)
        first += [[f"s_sub_u32 s{sW}, s{pW1 if ffn else 6}, 4096", f"s_subb_u32 s{sW+1}, s{(pW1 if ffn else 6)+1}, 0"]] + wdma_list(0, PNT)
        first += [[f"s_add_u32 s{sKV}, s{pX}, 65536", f"s_addc_u32 s{sKV+1}, s{pX+1}, 0"]] + adma_half(0, 1)
        for x in flat(first):
            a(x)
            if x.startswith("buffer_") and k < len(z): a(z[k]); k += 1
        srd(a, 88, pDbg, 248, 8)
        a(f"s_or_b32 s{t0}, s2, s{sWave}")
        a(f"s_cbranch_scc1 L_nonon_{kind}")
        a("s_or_b32 s92, s92, 1")
        a("v_mov_b32 v8, s92")
        a("v_mov_b32 v9, s93")
        a("buffer_store_dwordx2 v[8:9], off, s[88:91], 0 sc1")
        a(f"L_nonon_{kind}:")
        pre = Asm(); sv0 = a.lines; a.lines = pre.lines
        stp(a, "p2")
        srd(a, sWS, 4, 0, WS_END)
        a(f"v_and_b32 v{T+9}, 15, v{L}")
        a(f"v_lshrrev_b32 v{T+10}, 1, v{T+9}")
        a(f"v_xor_b32 v{T+10}, v{T+10}, v{T+1}")
        a(f"v_lshlrev_b32 v{T+10}, 4, v{T+10}")
        a(f"v_lshl_add_u32 v{T+10}, v{T+9}, 7, v{T+10}")
        a(f"s_lshl_b32 s{t0}, s{sWr}, 14")
        a(f"v_add_u32 v{vArB}, s{t0}, v{T+10}")
        a(f"v_mov_b32 v{vAr}, v{vArB}")
        a(f"v_xor_b32 v{vAr+1}, 64, v{vArB}")
        a(f"s_mov_b32 s{sArd}, 0")
        a(f"v_lshlrev_b32 v{T+10}, 13, v{ftp}")
        a(f"v_lshl_add_u32 v{T+10}, v{gb}, 8, v{T+10}")
        a(f"v_lshl_add_u32 v{T+10}, v{jj}, 6, v{T+10}")
        a(f"v_add_u32 v{T+10}, {LDS_W1}, v{T+10}")
        a(f"v_lshl_add_u32 v{T+11}, v{gb}, 5, v{T+10}")
        a(f"v_lshl_add_u32 v{T+11}, v{qc}, 3, v{T+11}")
        a(f"s_mul_i32 s{t0}, s{sWc}, {1536 if ffn else 512}")
        a(f"v_add_u32 v{vWe1}, s{t0}, v{T+11}")
        a(f"v_xor_b32 v{vWo1}, 32, v{vWe1}")
        if ffn:
            a(f"v_and_b32 v{T+11}, 1, v{qc}")
            a(f"v_lshlrev_b32 v{T+11}, 1, v{T+11}")
            a(f"v_add_u32 v{T+11}, s{sWc}, v{T+11}")
            a(f"v_xor_b32 v{T+11}, v{T+11}, v{gb}")
            a(f"v_lshl_add_u32 v{T+11}, v{T+11}, 4, v{T+10}")
            a(f"v_lshrrev_b32 v{T+10}, 1, v{qc}")
            a(f"v_lshl_add_u32 v{vWs1}, v{T+10}, 3, v{T+11}")
        a(f"v_mov_b32 v{T+10}, 0x3f803f80")
        for i in range(4): a(f"v_accvgpr_write_b32 a{124+i}, v{T+10}")
        a(f"s_lshl_b32 s{sTile}, s{sXcd}, 2")
        a(f"s_add_u32 s{sTile}, s{sTile}, s{sCt}")
        a(f"s_and_b32 s{t0}, s{sCt}, 1")
        a(f"s_lshl_b32 s{t0}, s{t0}, 1")
        a(f"s_lshl_b32 s{sHead}, s{sXcd}, 2")
        a(f"s_add_u32 s{sHead}, s{sHead}, s{t0}")
        if ffn: a(f"s_add_u32 s{sHead}, s{sHead}, 1")
        a(f"s_lshl_b32 s{t0}, s{sRb}, 2")
        a(f"s_add_u32 s{t0}, s{t0}, s{sWave}")
        a(f"s_lshl_b32 s{t0}, s{t0}, 12")
        a(f"s_lshl_b32 s{t1}, s{sHead}, 17")
        a(f"s_add_u32 s{sQO}, s{t0}, s{t1}")
        a(f"s_add_u32 s{sQO}, s{sQO}, {WS_Q}")
        a(f"s_lshl_b32 s{sSo}, s{sRb}, 15")
        a(f"s_lshl_b32 s{sM0k}, s{sWave}, 12")
        a(f"v_add_u32 v{vDma}, s{sM0k}, v{vL16}")
        a(f"s_lshr_b32 s{t0}, s{sHead}, 1")
        a(f"s_lshl_b32 s{t0}, s{t0}, 7")
        a(f"v_and_b32 v{vFa}, 7, v{L}")
        a(f"v_lshl_add_u32 v{vFa}, v{vFa}, 3, s{t0}")
        srd(a, sOut, pW2, 0, 3584 * 2048)
        a(f"s_lshl_b32 s{sPf}, s2, 2")
        a(f"s_add_u32 s{sPf}, s{sPf}, s{sWave}")
        a(f"s_lshl_b32 s{sPf}, s{sPf}, 10")
        a(f"v_and_b32 v{T+8}, 0x3b, v{L}")
        a(f"v_min_u32 v{T+8}, 1, v{T+8}")
        a(f"v_lshlrev_b32 v{T+8}, 30, v{T+8}")
        a(f"v_lshl_add_u32 v{T+8}, v3, 2, v{T+8}")
        a(f"v_mov_b32 v{T+3}, 0")
        a(f"v_mov_b32 v{T+4}, 0")
        a(f"s_lshl_b32 s{t0}, s{sXcd}, 1")
        a(f"s_add_u32 s{t0}, s{t0}, s{sCt}")
        if ffn:
            a(f"s_lshl_b32 s{t0}, s{t0}, 3")
            a(f"s_lshl_b32 s{t1}, s{sRb}, 7")
            a(f"s_add_u32 s{t0}, s{t0}, s{t1}")
            a(f"s_add_u32 s92, s{t0}, {WS_FL + FH}")
        else:
            a(f"s_sub_u32 s{sCt}, s{t0}, 2")
            a(f"s_lshl_b32 s{t0}, s{sCt}, 7")
            a(f"s_lshl_b32 s{t1}, s{sRb}, 3")
            a(f"s_add_u32 s92, s{t0}, s{t1}")
        a(f"s_lshl_b32 s{t0}, s{sRb}, 8")
        a(f"s_lshl_b32 s93, s{sHead}, 3")
        a(f"s_add_u32 s93, s93, s{t0}")
        a(f"s_add_u32 s93, s93, {WS_FL + FO}")

        a.lines = sv0
        xld = [[f"buffer_load_dwordx4 a[{160+4*i}:{163+4*i}], v6, {R(sX)}, 0 offen offset:{i*512}"] for i in range(4)]
        if PRO:
            more = wdma_list(1, PNT) + xld
            oplog.extend(["x"] * 4)
        elif XPOS == 0:
            oplog.extend(["x"] * 4)
            more = xld + wdma_list(1, PNT) + wdma_list(2, PNT) + adma_half(1, 0) + adma_half(1, 1)
        else:
            more = wdma_list(1, PNT) + wdma_list(2, PNT) + adma_half(1, 0) + adma_half(1, 1) + xld
            oplog.extend(["x"] * 4)
        nmore = len(more)
        gap = len(pre.lines) / (nmore + 1)
        for i, x in enumerate(pre.lines):
            a.lines.append(x)
            nxt = pre.lines[i + 1].op if i + 1 < len(pre.lines) else ""
            if nxt in ("s_addc_u32", "s_subb_u32"): continue
            if i % 5 == 4 and k < len(z): a(z[k]); k += 1
            if more and i + 1 >= gap * (nmore - len(more)): a.extend(more.pop(0))
        a.extend(flat(more))
        for x in z[k:]: a(x)
        if CPF == 2:
            code_pf(vFl); oplog.append("c")
        a("s_nop 1")
        a(f"v_mfma_f32_32x32x16_bf16 v[0:15], a[128:131], a[128:131], 0")
        st_ = Asm(); a.lines = st_.lines
        SU, SQ, TM = T + 3, T + 4, T + 5
        for j in range(16):
            r = T + 6 + (j & 1)
            a(f"v_accvgpr_read_b32 v{r}, a{160+j}")
            a(f"v_dot2c_f32_bf16 v{SU}, v{r}, v{T+10}")
            a(f"v_dot2c_f32_bf16 v{SQ}, v{r}, v{r}")
        a("s_nop 1")
        xreduce(a, SU, TM)
        xreduce(a, SQ, TM)
        a(f"v_mul_f32 v{SU}, {f2u(-1.0/1024):#x}, v{SU}")
        a(f"v_mul_f32 v{SQ}, {f2u(1.0/1024):#x}, v{SQ}")
        a(f"v_fma_f32 v{SQ}, -v{SU}, v{SU}, v{SQ}")
        a(f"v_max_f32 v{SQ}, 0, v{SQ}")
        bf16round(a, SU)
        bf16round(a, SQ)
        a(f"v_add_f32 v{SQ}, {f2u(1e-5):#x}, v{SQ}")
        bf16round(a, SQ)
        a(f"v_sqrt_f32 v{SQ}, v{SQ}")
        a(f"s_mov_b32 s{t2}, {WS_STAT}")
        bf16round(a, SQ)
        a(f"v_rcp_f32 v{TM}, v{SQ}")
        a(f"s_mov_b32 s{t3}, {WS_STAT + 8192}")
        a(f"s_mov_b32 s{t4}, {WS_STAT + 16384}")
        a(f"buffer_store_dword v{SU}, v{T+8}, {WSR}, s{t2} offen sc1")
        a(f"buffer_store_dword v{TM}, v{T+8}, {WSR}, s{t3} offen sc1")
        a(f"buffer_store_dword v{SQ}, v{T+8}, {WSR}, s{t4} offen sc1")
        a.lines = sv0
        stl = []
        for x in st_.lines:
            if stl and stl[-1][-1].startswith("s_nop"): stl[-1].append(x.text)
            else: stl.append([x.text])

        def read_list(step):
            buf = step & 1; so = (step & 3) * 16384
            rb = []
            for ft in range(NB):
                r = fr(buf, 8 + ft)
                if ffn and ft == 6: v = vWs1; off = 3072
                else:
                    v = vWo1 if ft & 1 else vWe1
                    off = (ft >> 1) * (512 if ffn else 1024)
                rb.append([f"ds_read_b64_tr_b16 a[{r+2*rd}:{r+2*rd+1}], v{v} offset:{so + rd*4096 + off}" for rd in range(2)])
            ra = [f"ds_read_b128 a[{fr(buf, tt)}:{fr(buf, tt)+3}], v{vAr + (step & 1)} offset:{tt*2048}" for tt in range(8)]
            l = rb[0] + ra
            for x in rb[1:]: l += x
            return l
        def mfmas(buf):
            l = []
            for ft in range(NB):
                for tt in (range(8) if ft % 2 == 0 else range(7, -1, -1)):
                    c = acc(tt, ft); w = fr(buf, 8 + ft); x = fr(buf, tt)
                    if (not ffn) and ft >= 4: w, x = x, w
                    l.append(f"v_mfma_f32_16x16x32_bf16 v[{c}:{c+3}], a[{w}:{w+3}], a[{x}:{x+3}], v[{c}:{c+3}]")
            return l
        ard_adv = [[f"s_add_u32 s{sAw}, s{sArd}, s{sM0A}"], [f"s_add_u32 s{sArd}, s{sArd}, 32768"], [f"s_cmp_eq_u32 s{sArd}, 98304", f"s_cselect_b32 s{sArd}, 0, s{sArd}"]]
        ard_set = [f"v_add_u32 v{vAr}, s{sArd}, v{vArB}", f"v_xor_b32 v{vAr+1}, 64, v{vAr}"]
        stp(a, "p5")
        a(f"s_waitcnt vmcnt({need('W0', 'A0')})")
        a("s_barrier")
        stp(a, "p6")
        a.extend(read_list(0))
        a(f"s_waitcnt vmcnt({need('W1')}) lgkmcnt(0)")
        a("s_barrier")
        def step(k4, dl, vm, reads=True, extra=(), cs=False, span=DMAF, tail=()):
            m = mfmas(k4 & 1)
            if cs:
                m = [f"v_mfma_f32_16x16x32_bf16 a[{128+4*ft}:{131+4*ft}], a[{fr(k4 & 1, 8 + ft)}:{fr(k4 & 1, 8 + ft)+3}], a[124:127], a[{128+4*ft}:{131+4*ft}]"
                     for ft in range(NB)] + m
            n = len(m)
            sr = []
            if reads:
                rl = read_list(k4 + 1)
                sr = [((i * int(n * RDF)) // len(rl), x) for i, x in enumerate(rl)]
            sd = [((i * int(n * span)) // len(dl), x) for i, x in enumerate(dl)]
            if reads and k4 % 2 == 0:
                sd += [(n - 12 + 2 * i, x) for i, x in enumerate(ard_adv + ard_set)]
            a.extend(sched(m, [sd, sr, list(extra)], BUD if not extra and span == DMAF else 8))
            a.extend(tail)
            if vm is not None:
                a(f"s_waitcnt vmcnt({vm}) lgkmcnt(0)")
                if not (XB and k4 & 1): a("s_barrier")
        def std_dl(k):
            return wdma_list(k + 4) + (adma_half((k + 5) // 2, 0) if k & 1 else adma_half((k + 4) // 2, 1))
        def std_need(k):
            return need(f"W{k+2}", f"A{(k+2)//2}")
        stp(a, "g1loop")
        stt = [x.text for x in st_.lines]
        dl = wdma_list(3, PNT) + adma_half(2, 0) + adma_half(2, 1) if not PRO else \
             wdma_list(2, PNT) + adma_half(1, 0) + adma_half(1, 1) + wdma_list(3, PNT)
        stt = [f"s_waitcnt vmcnt({need('x')})"] + stt
        oplog.extend(["st"] * 3)
        step(0, dl, std_need(0), cs=True, span=0.85, tail=stt)
        stp(a, "k1")
        dl = wdma_list(4) + wdma_list(5) + adma_half(3, 0) if not PRO else adma_half(2, 0) + adma_half(2, 1) + wdma_list(4) + wdma_list(5); step(1, dl, std_need(1), cs=True, span=0.85)
        stp(a, "k2")
        n1 = 9 * NB - 4
        dl = std_dl(2) if not PRO else wdma_list(6) + adma_half(3, 0) + adma_half(3, 1)
        step(2, dl, std_need(2), cs=True, span=0.75 if PRO else DMAF)
        e = [f"s_lshl_b32 s{t0}, s{sTile}, 13", f"s_lshl_b32 s{t1}, s{sRb}, 10", f"s_add_u32 s{t0}, s{t0}, s{t1}", f"s_mul_i32 s{t1}, s{sWc}, {NB*64}",
             f"s_add_u32 s{t0}, s{t0}, s{t1}", f"s_add_u32 s{t0}, s{t0}, {WS_CS}", f"v_and_b32 v{T}, 15, v{L}", f"v_or_b32 v{T}, s{sWr}, v{T}",
             f"v_lshlrev_b32 v{T}, 27, v{T}", f"v_and_b32 v{T+1}, 48, v{L}", f"v_or_b32 v{T}, v{T}, v{T+1}", f"s_mov_b32 s{sCnt}, 6"]
        stp(a, "k3")
        e += [flagld("off", "s[88:91]")]
        e += [f"buffer_store_dwordx4 a[{128+4*ft}:{131+4*ft}], v{T}, {WSR}, s{t0} offen offset:{ft*64} sc1" for ft in range(NB)]
        dl = std_dl(3); step(3, dl, std_need(3), cs=True, extra=[(12 + 2 * i, x) for i, x in enumerate(e)])
        stp(a, "h6")
        a(".p2align 6")
        a(f"L_g1_{kind}_loop:")
        pf = [f"buffer_load_dwordx4 a[120:123], v{vL16}, {R(sOut)}, s{sPf} offen", f"s_add_u32 s{sPf}, s{sPf}, {MB}"]
        for k4 in range(4):
            dl = std_dl(4 + k4)
            if k4 in (0, 2) and PFG1:
                dl += [[pf[0]], [pf[1]]]; oplog.append("pf")
            if k4 == 3:
                dl = [[f"s_cmp_eq_u32 s{sCnt}, 1", f"s_cselect_b32 s{sX+2}, 0, s{sX+2}"]] + dl + [[f"s_sub_u32 s{sCnt}, s{sCnt}, 1"], [f"s_bitcmp1_b32 0x3d, s{sCnt}"]]
            step(k4, dl, std_need(4 + k4))
        a(f"s_cbranch_scc0 L_g1_{kind}_loop")
        a(f"s_cmp_lg_u32 s{sCnt}, 0")
        a(f"s_cbranch_scc1 L_hk5_{kind}")
        b = Asm(); sv = a.lines; a.lines = b.lines
        a(f"L_hk5_{kind}:")
        a(f"s_cmp_lg_u32 s{sCnt}, 5")
        a(f"s_cbranch_scc1 L_hk4_{kind}")
        stp(a, "h5")
        for i in range(3): a(f"v_mfma_f32_32x32x16_bf16 a[{128+16*i}:{143+16*i}], a[176:179], a[176:179], 0")
        poll("off", True, "s[88:91]", "0", "eq")
        a(f"v_readfirstlane_b32 s{sN}, v{vFl}")
        a(f"v_readfirstlane_b32 s{sN+1}, v{vFl+1}")
        a(f"s_lshl_b32 s{t0}, s2, 5")
        a(f"s_add_u32 s{t0}, s{t0}, {WS_FL + F0}")
        publish(t0, T)
        if CPF == 1: code_pf(T + 2)
        a(f"s_branch L_g1_{kind}_loop")
        a(f"L_hk4_{kind}:")
        a(f"s_cmp_lg_u32 s{sCnt}, 4")
        a(f"s_cbranch_scc1 L_hk3_{kind}")
        a(f"s_lshl_b32 s{t0}, s{sRb}, 5")
        a(f"v_add_u32 v{T}, s{t0}, v{L}")
        a(f"s_and_b32 s{t0}, s2, 0xc7")
        a(f"v_and_b32 v{T+1}, 7, v{L}")
        a(f"v_lshl_add_u32 v{T+1}, v{T+1}, 3, s{t0}")
        a(f"v_cmp_gt_u32 vcc, 32, v{L}")
        a("s_nop 1")
        a(f"v_cndmask_b32 v{T+1}, v{T+1}, v{T}, vcc")
        a(f"v_lshlrev_b32 v{T+1}, 5, v{T+1}")
        a(f"v_add_u32 v{T+1}, {WS_FL + F0}, v{T+1}")
        a(flagld(f"v{T+1}"))
        if TPF:
            a(f"v_lshlrev_b32 v{T}, 19, v{L}")
            a(f"s_mov_b32 s{t0}, {WS_Q}")
            a(f"buffer_load_dword v{T+2}, v{T}, {WSR}, s{t0} offen")
            srd(a, 88, pOut, 0, 4 * MB)
            a(f"v_lshlrev_b32 v{T}, 16, v{L}")
            a(f"buffer_load_dword v{T+2}, v{T}, s[88:91], 0 offen")
        a(f"s_branch L_g1_{kind}_loop")
        a(f"L_hk3_{kind}:")
        a(f"s_cmp_eq_u32 s{sCnt}, 3")
        a(f"s_cbranch_scc1 L_hk3b_{kind}")
        stp(a, "h2")
        srd(a, sOut, pWO, 0, 1024 * 2048)
        a(f"s_and_b32 s{sPf}, s{sPf}, {MB - 1}")
        if CPF:
            code_addr(vFl)
            a(f"global_load_dwordx4 a[120:123], v[{vFl}:{vFl+1}], off")
        a(f"s_branch L_g1_{kind}_loop")
        a(f"L_hk3b_{kind}:")
        stp(a, "h1")
        poll(f"v{T+1}", True)
        a(f"s_lshl_b32 s{t0}, s{sWave}, 8")
        a(f"v_lshl_add_u32 v{T}, v{L}, 2, s{t0}")
        a(f"s_lshl_b32 s{t0}, s{sTile}, 13")
        a(f"s_add_u32 s{t0}, s{t0}, {WS_CS}")
        a(f"s_add_u32 s{t1}, s{t0}, 4096")
        for i in range(8):
            a(f"buffer_load_dword v{T+2+i}, v{T}, {WSR}, s{t0 if i < 4 else t1} offen offset:{(i&3)*1024} sc1")
        a(f"s_lshl_b32 s{t0}, s{sRb}, 10")
        a(f"s_add_u32 s{t0}, s{t0}, {WS_STAT}")
        a(f"s_add_u32 s{t1}, s{t0}, 8192")
        a(f"buffer_load_dword v{T+10}, v{T}, {WSR}, s{t0} offen sc1")
        a(f"buffer_load_dword v{T+11}, v{T}, {WSR}, s{t1} offen sc1")
        stp(a, "h1e")
        a(f"s_branch L_g1_{kind}_loop")
        ool.extend([x.text for x in b.lines]); a.lines = sv
        stp(a, "tail")
        adds = [f"v_add_f32 v{T+2+2*i}, v{T+2+2*i}, v{T+3+2*i}" for i in range(4)] + \
               [f"v_add_f32 v{T+2}, v{T+2}, v{T+4}", f"v_add_f32 v{T+6}, v{T+6}, v{T+8}", f"v_add_f32 v{T+2}, v{T+2}, v{T+6}",
                f"v_add_u32 v{T}, {LDS_SCR}, v{T}"]
        step(0, [], nW + 4, extra=[(2 + 3 * i, x) for i, x in enumerate(adds)])
        step(1, [], 4, extra=[(40, f"ds_write_b32 v{T}, v{T+2}"), (42, f"ds_write_b32 v{T}, v{T+10} offset:1024"), (44, f"ds_write_b32 v{T}, v{T+11} offset:2048")])
        e = Asm(); sv = a.lines; a.lines = e.lines
        if ffn:
            a(f"s_lshl_b32 s{t0}, s{sRb}, 14")
            a(f"s_lshl_b32 s{t1}, s{sWr}, 13")
            a(f"s_add_u32 s{t0}, s{t0}, s{t1}")
            a(f"v_add_u32 v{vO}, s{t0}, v{vL16}")
            a(f"v_add_u32 v{vO+1}, 4096, v{vO}")
            a(f"s_lshl_b32 s{t1}, s{sWc}, 9")
            a(f"s_add_u32 s{t0}, s{t0}, s{t1}")
            a(f"v_lshrrev_b32 v{vO+2}, 5, v{L}")
            a(f"v_lshl_add_u32 v{vO+2}, v{vO+2}, 8, s{t0}")
            a(f"v_and_b32 v{vO+3}, 15, v{L}")
            a(f"v_lshl_add_u32 v{vO+2}, v{vO+3}, 4, v{vO+2}")
            a(f"v_bfe_u32 v{vO+3}, v{L}, 4, 1")
            a(f"v_lshl_add_u32 v{vO+2}, v{vO+3}, 3, v{vO+2}")
            a(f"v_add_u32 v{vO+3}, 4096, v{vO+2}")
            a(f"s_mul_i32 s{t0}, s{sXcd}, 14")
            a(f"s_mul_i32 s{t1}, s{sCt}, 6")
            a(f"s_mul_i32 s{t2}, s{sWc}, 3")
            a(f"s_add_u32 s{t1}, s{t1}, s{t2}")
            a(f"s_add_u32 s{t1}, s{t1}, s{t0}")
            a(f"s_add_u32 s{t1}, s{t1}, {32 + WS_A2 // 131072}")
            a(f"s_lshl_b32 s{t1}, s{t1}, 17")
            a(f"s_add_u32 s{t2}, s{t0}, s{sCt}")
            a(f"s_add_u32 s{t2}, s{t2}, {44 + WS_A2 // 131072}")
            a(f"s_lshl_b32 s{t2}, s{t2}, 17")
            a(f"s_add_u32 s{t3}, s{t1}, 131072")
            a(f"s_add_u32 s{t4}, s{t1}, 262144")
        else:
            a(f"s_lshl_b32 s{t0}, s{sRb}, 3")
            a(f"s_lshl_b32 s{t1}, s{sWr}, 2")
            a(f"s_add_u32 s{t0}, s{t0}, s{t1}")
            a(f"s_lshl_b32 s{t0}, s{t0}, 11")
            a(f"s_lshl_b32 s{t3}, s{sCt}, 1")
            a(f"s_add_u32 s{t3}, s{t3}, s{sWc}")
            a(f"s_lshl_b32 s{t3}, s{t3}, 17")
            a(f"s_add_u32 s{t1}, s{t3}, s{t0}")
            a(f"s_lshl_b32 s{t2}, s{t1}, 1")
            a(f"s_add_u32 s{t2}, s{t2}, {WS_KV}")
            a(f"s_add_u32 s{t1}, s{t1}, {WS_Q}")
            a(f"v_lshrrev_b32 v{vO+2}, 4, v{L}")
            a(f"v_lshlrev_b32 v{vO+2}, 9, v{vO+2}")
            a(f"v_and_b32 v{vO+3}, 15, v{L}")
            a(f"v_lshl_add_u32 v{vO}, v{vO+3}, 4, v{vO+2}")
            a(f"v_bfe_u32 v{vO+3}, v{L}, 2, 2")
            a(f"v_lshl_add_u32 v{vO+2}, v{vO+3}, 7, v{vO+2}")
            a(f"v_and_b32 v{vO+3}, 3, v{L}")
            a(f"v_lshl_add_u32 v{vO+1}, v{vO+3}, 4, v{vO+2}")
            a(f"s_mov_b32 s{t4}, {f2u(QSCALE):#x}")
        a(f"s_lshl_b32 s{t5}, s{sHead}, 18")
        a(f"s_add_u32 s{t5}, s{t5}, {WS_KV}")
        a(f"s_add_u32 s{sKV}, s4, s{t5}")
        a(f"s_addc_u32 s{sKV+1}, s5, 0")
        a(f"s_mov_b32 s{sKV+2}, {SZ_KV}")
        if ffn:
            a(f"s_lshl_b32 s90, 0x01010101, s{sRb}")
            a(f"s_mov_b32 s91, 0")
        a(f"s_mul_i32 s{t5}, s{sWc}, {NB*64}")
        a(f"s_add_u32 s{t5}, s{t5}, {LDS_SCR}")
        a(f"v_and_b32 v248, 48, v{L}")
        a(f"v_add_u32 v248, s{t5}, v248")
        a(f"s_lshl_b32 s{t0}, s{sWr}, 9")
        a(f"s_add_u32 s{t0}, s{t0}, {LDS_SCR + 1024}")
        a(f"v_and_b32 v249, 15, v{L}")
        a(f"v_lshl_add_u32 v249, v249, 2, s{t0}")
        if not ffn:
            a(f"v_and_b32 v222, 15, v{L}")
            a(f"v_lshl_add_u32 v222, v222, 2, s{t5}")
            a(f"v_and_b32 v223, 48, v{L}")
            a(f"v_add_u32 v223, s{t0}, v223")
        el = []
        for x in e.lines:
            if x.op in ("s_addc_u32", "s_subb_u32", "s_cselect_b32"): el[-1].append(x.text)
            else: el.append([x.text])
        a.lines = sv
        n = 8 * NB
        step(2, [], 0, extra=[(2 + (i * (n - 12)) // len(el), x) for i, x in enumerate(el)])
        rds = []
        for tt in range(8):
            rds.append(f"ds_read_b32 v{ST+2*tt}, v249 offset:{tt*64}")
            if not ffn: rds.append(f"ds_read_b32 v{ST+2*tt+1}, v249 offset:{1024 + tt*64}")
        if ffn:
            rds.append(f"ds_read_b128 v[244:247], v248 offset:{6*64}")
        else:
            for ft in range(4): rds.append(f"ds_read_b128 v[{192+4*ft}:{195+4*ft}], v248 offset:{ft*64}")
            for vt in range(2): rds.append(f"ds_read_b32 v{208+2*vt}, v222 offset:{(4+vt)*64}")
        step(3, [], None, reads=False, extra=[(2 + 2 * i, x) for i, x in enumerate(rds)])
        stp(a, "g1end")
        BC = "op_sel_hi:[1,0,1]"
        if ffn:
            a("s_nop 0")
            a(f"s_mov_b32 s{sH1}, s{t1}")
            a(f"s_mov_b32 s{sH2}, s{t2}")
            a(f"s_mov_b32 s{sPub}, s92")
            srd(a, sOut, 4, 0, WS_END)
            a("s_waitcnt lgkmcnt(0)")
            pend = []
            for u in range(8):
                c = acc(u, 6)
                for h in range(2):
                    a(f"v_pk_fma_f32 v[{c+2*h}:{c+2*h+1}], v[{244+2*h}:{245+2*h}], v[{ST+2*u}:{ST+2*u+1}], v[{c+2*h}:{c+2*h+1}] {BC}")
                a(f"v_cvt_pk_bf16_f32 v{c}, v{c}, v{c+1}")
                a(f"v_cvt_pk_bf16_f32 v{c+1}, v{c+2}, v{c+3}")
                a(f"v_pk_max_i16 v{c}, v{c}, 0")
                a(f"v_pk_max_i16 v{c+1}, v{c+1}, 0")
                if u in direct: pend.append(hstore(u, f"v[{c}:{c+1}]"))
                else:
                    for e_ in range(2): a(f"v_accvgpr_write_b32 a{4*parked.index(u)+e_}, v{c+e_}")
                if u == 1:
                    a(f"ds_read_b64 v[194:195], v248 offset:64")
                    a(f"ds_read_b64 v[198:199], v248 offset:72")
                if u == 3:
                    a(f"ds_read_b64 v[202:203], v248 offset:0")
                    a(f"ds_read_b64 v[206:207], v248 offset:8")
            for i, r in enumerate((210, 214, 218, 222)):
                a(f"ds_read_b64 v[{r}:{r+1}], v248 offset:{128 + (i>>1)*64 + (i&1)*8}")
            a(f"ds_read_b128 v[244:247], v248 offset:{4*64}")
            CSM = {0: (202, 206), 1: (194, 198), 2: (210, 214), 3: (218, 222), 4: (244, 246), 5: (194, 198)}
            groups = at_load_groups()
            polled = False; after = []
            def drip(k):
                for _ in range(k):
                    if groups:
                        a.extend(groups.pop(0)); after.append("ld")
                    elif pend:
                        a.extend(pend.pop(0)); after.append("st")
            for u in range(8, 32):
                p, tt = divmod(u - 8, 8)
                if u == 8: a("s_waitcnt lgkmcnt(5)")
                if u == 16:
                    a("s_waitcnt lgkmcnt(0)")
                    a(f"ds_read_b64 v[194:195], v248 offset:{5*64}")
                    a(f"ds_read_b64 v[198:199], v248 offset:{5*64+8}")
                if u == 24: a("s_waitcnt lgkmcnt(0)")
                if u == EPOLL - ELEAD: a(flagld(f"v{vFa}"))
                c0, c1 = acc(tt, 2 * p), acc(tt, 2 * p + 1)
                for c, cs in ((c0, CSM[2 * p]), (c1, CSM[2 * p + 1])):
                    for h in range(2):
                        a(f"v_pk_fma_f32 v[{c+2*h}:{c+2*h+1}], v[{cs[h]}:{cs[h]+1}], v[{ST+2*tt}:{ST+2*tt+1}], v[{c+2*h}:{c+2*h+1}] {BC}")
                a(f"v_cvt_pk_bf16_f32 v{c0}, v{c0}, v{c0+1}")
                a(f"v_cvt_pk_bf16_f32 v{c0+1}, v{c0+2}, v{c0+3}")
                a(f"v_cvt_pk_bf16_f32 v{c0+2}, v{c1}, v{c1+1}")
                a(f"v_cvt_pk_bf16_f32 v{c0+3}, v{c1+2}, v{c1+3}")
                for e_ in range(4): a(f"v_pk_max_i16 v{c1+e_}, v{c0+e_}, 0")
                if u in direct: pend.append(hstore(u, f"v[{c1}:{c1+3}]"))
                else:
                    for e_ in range(4): a(f"v_accvgpr_write_b32 a{4*parked.index(u)+e_}, v{c1+e_}")
                if u == EPOLL:
                    stp(a, "e1")
                    a(f"s_waitcnt vmcnt(0)")
                    stp(a, "e2")
                    poll(f"v{vFa}", True, mask="s[90:91]")
                    stp(a, "e4")
                    polled = True
                if polled: drip(4)
            drip(64)
            a("s_nop 1")
            at_init(); g2_setup(); after += ["x"] * 2
            idx = [i for i, z in enumerate(after) if z == "ld"][7 if HALF else 11]
            a(f"s_waitcnt vmcnt({len(after) - 1 - idx})")
            a("s_branch L_at_entry")
        else:
            QSC = SC
            vLq, vLk, vLv = 209, 211, 222
            srd(a, sOut, 4, 0, WS_END)
            a(f"s_cmp_lg_u32 s{sWc}, 0")
            a(f"s_cselect_b32 s{sOut+2}, s{sOut+2}, 0")
            a(f"s_cselect_b64 vcc, -1, 0")
            a(f"s_lshl_b32 s{t0}, s{sWr}, 14")
            a(f"v_add_u32 v{vLk}, s{t0}, v{vO+1}")
            a(f"v_add_u32 v{vLv}, s{t0}, v{vO}")
            a(f"s_lshl_b32 s{t0}, s{sWr}, 13")
            a(f"s_add_u32 s{t0}, s{t0}, {LDS_W1}")
            a(f"v_add_u32 v{vLq}, s{t0}, v{vO}")
            def own(v, c0, off):
                if not OWN: return
                n = lab[0]; lab[0] += 1
                a(f"s_cbranch_vccnz L_ow{n}")
                a(f"ds_write_b128 v{v}, v[{c0}:{c0+3}] offset:{off}")
                a(f"L_ow{n}:")
            a(f"s_mov_b32 s{sPub}, 0")
            a("s_waitcnt lgkmcnt(0)")
            a("s_nop 4")
            for b_ in range(4):
                for e_ in range(2):
                    a(f"ds_read_b128 v[{212+4*e_}:{215+4*e_}], v223 offset:{(2*b_+e_)*64}")
                a(f"ds_read_b128 v[244:247], v223 offset:{1024 + (2*b_)*64}")
                a(f"ds_read_b64 v[220:221], v223 offset:{1024 + (2*b_+1)*64}")
                a(f"ds_read_b64 v[242:243], v223 offset:{1024 + (2*b_+1)*64 + 8}")
                for X in (1, 0):
                    for h in range(2):
                        tt = 2 * b_ + h
                        st_ = f"v[{ST+2*tt}:{ST+2*tt+1}]"
                        if X == 0: a(f"v_mul_f32 v{ST+2*tt+1}, s{t4}, v{ST+2*tt+1}")
                        c0 = acc(tt, 2 * X)
                        for e_ in range(2):
                            c = acc(tt, 2 * X + e_); cs = 192 + 4 * (2 * X + e_)
                            for h2 in range(2):
                                a(f"v_pk_fma_f32 v[{c+2*h2}:{c+2*h2+1}], v[{cs+2*h2}:{cs+2*h2+1}], {st_}, v[{c+2*h2}:{c+2*h2+1}] {BC}")
                            for h2 in range(2):
                                a(f"v_pk_mul_f32 v[{c+2*h2}:{c+2*h2+1}], v[{c+2*h2}:{c+2*h2+1}], {st_} op_sel:[0,1]")
                        c1 = acc(tt, 2 * X + 1)
                        a(f"v_cvt_pk_bf16_f32 v{c0}, v{c0}, v{c0+1}")
                        a(f"v_cvt_pk_bf16_f32 v{c0+1}, v{c0+2}, v{c0+3}")
                        a(f"v_cvt_pk_bf16_f32 v{c0+2}, v{c1}, v{c1+1}")
                        a(f"v_cvt_pk_bf16_f32 v{c0+3}, v{c1+2}, v{c1+3}")
                        if X: a(f"buffer_store_dwordx4 v[{c0}:{c0+3}], v{vO+1}, {WSR}, s{t2} offen offset:{h*64} {QSC}")
                        else: a(f"buffer_store_dwordx4 v[{c0}:{c0+3}], v{vO}, {R(sOut) if OWN else WSR}, s{t1} offen offset:{h*256} {QSC}")
                        if X: own(vLk, c0, b_ * 4096 + h * 64)
                        else: own(vLq, c0, b_ * 2048 + h * 256)
                a("s_waitcnt lgkmcnt(0)")
                for vt in range(2):
                    c0 = acc(2 * b_, 4 + vt)
                    for e_ in range(2):
                        c = acc(2 * b_ + e_, 4 + vt)
                        rs = ((244, 246), (220, 242))[e_]
                        for h2 in range(2):
                            a(f"v_pk_fma_f32 v[{c+2*h2}:{c+2*h2+1}], v[{212+4*e_+2*h2}:{213+4*e_+2*h2}], v[{208+2*vt}:{209+2*vt}], v[{c+2*h2}:{c+2*h2+1}] {BC}")
                        for h2 in range(2):
                            a(f"v_pk_mul_f32 v[{c+2*h2}:{c+2*h2+1}], v[{c+2*h2}:{c+2*h2+1}], v[{rs[h2]}:{rs[h2]+1}]")
                    c1 = acc(2 * b_ + 1, 4 + vt)
                    a(f"v_cvt_pk_bf16_f32 v{c0}, v{c0}, v{c0+1}")
                    a(f"v_cvt_pk_bf16_f32 v{c0+1}, v{c0+2}, v{c0+3}")
                    a(f"v_cvt_pk_bf16_f32 v{c0+2}, v{c1}, v{c1+1}")
                    a(f"v_cvt_pk_bf16_f32 v{c0+3}, v{c1+2}, v{c1+3}")
                    a(f"buffer_store_dwordx4 v[{c0}:{c0+3}], v{vO}, {WSR}, s{t2} offen offset:{2048 + vt*256} {QSC}")
                    own(vLv, c0, b_ * 4096 + 2048 + vt * 256)
                a(f"s_add_u32 s{t1}, s{t1}, 2048")
                a(f"s_add_u32 s{t2}, s{t2}, 4096")
            if OWN:
                stp(a, "e1")
                a("s_waitcnt lgkmcnt(0)")
                srd(a, sOut, 4, 0, 0)
                for r in (sH1, sH2, t3, t4): a(f"s_mov_b32 s{r}, 0")
                at_init(); g2_setup()
                a(f"s_add_u32 s{sSo}, s{sSo}, 32768")
                a(so_wrap)
                a(f"v_add_u32 v{U}, {LDS_W1}, v{vDma}")
                a(f"v_lshlrev_b32 v{U+1}, 7, v{L}")
                a(f"v_and_b32 v{U+2}, 0xf80, v{U+1}")
                a(f"s_add_u32 s{t1}, s{sQO}, 131072")
                a(f"s_sub_u32 s{t0}, s{t1}, {WS_Q}")
                a(f"s_lshl_b32 s{t0}, s{t0}, 1")
                a(f"s_add_u32 s{t0}, s{t0}, {WS_KV}")
                a("s_waitcnt vmcnt(0)")
                a("s_barrier")
                stp(a, "e2")
                publish(92, T)
                if WARM:
                    a(f"buffer_load_dword v{U+3}, v{U+2}, {WSR}, s{t1} offen sc1")
                    a(f"buffer_load_dword v{U+3}, v{U+1}, {WSR}, s{t0} offen sc1")
                stp(a, "e4")
                for x in range(2):
                    for h in range(2):
                        a(f"ds_read_b128 v[{Q[x]+4*h}:{Q[x]+4*h+3}], v{U} offset:{x*2048+h*1024}")
            else:
                stp(a, "e1")
                a("s_waitcnt vmcnt(0)")
                a("s_barrier")
                stp(a, "e2")
                publish(92, T)
                stp(a, "e4")
                for g_ in at_load_groups(): a.extend(g_)
                srd(a, sOut, 4, 0, 0)
                for r in (sH1, sH2, t3, t4): a(f"s_mov_b32 s{r}, 0")
                at_init(); g2_setup()
                a("s_waitcnt vmcnt(2)")
    g1("ffn")
    if LAY:
        assert a.lines[-1].text == "s_branch L_at_entry"
        a.lines.pop()
        qv = Asm(); svq = a.lines; a.lines = qv.lines
        a(".p2align 6")
        a("L_g1_qkv:")
        g1("qkv")
        a("s_branch L_at_entry")
        qcode = [z.text for z in a.lines]; a.lines = svq
    else:
        a("L_g1_qkv:")
        g1("qkv")

    a("L_at_entry:")
    stp(a, "atentry")
    a("s_barrier")
    def rdK(t, tl):
        b = Kf[t & 1]
        return [f"ds_read_b128 v[{b}:{b+3}], v{vCur} offset:{tl*4096}", f"ds_read_b128 v[{b+4}:{b+7}], v{vCur} offset:{tl*4096+1024}"]
    def rdV(t, tl):
        b = Vf[t & 1]
        return [f"ds_read_b128 v[{b}:{b+3}], v{vCur} offset:{tl*4096+2048}", f"ds_read_b128 v[{b+4}:{b+7}], v{vCur} offset:{tl*4096+3072}"]
    def qk(x, t, c0=None):
        s = S[x]; k = Kf[t & 1]; q = Q[x]
        c = f"v[{NM[x]}:{NM[x]+15}]" if c0 is None else c0
        return [f"v_mfma_f32_32x32x16_bf16 v[{s}:{s+15}], v[{k}:{k+3}], v[{q}:{q+3}], {c}",
                f"v_mfma_f32_32x32x16_bf16 v[{s}:{s+15}], v[{k+4}:{k+7}], v[{q+4}:{q+7}], v[{s}:{s+15}]"]
    def PV(x, t, h):
        v = Vf[t & 1]
        return f"v_smfmac_f32_32x32x32_bf16 v[{O[x]}:{O[x]+15}], v[{v+4*h}:{v+4*h+3}], v[{D[x]+8*h}:{D[x]+8*h+7}], v{IDX}"
    def LS(x, h):
        return f"v_smfmac_f32_16x16x64_bf16 v[{Lr[x]}:{Lr[x]+3}], v[{ONE}:{ONE+3}], v[{D[x]+8*h}:{D[x]+8*h+7}], v{IDX}"
    a.extend(rdK(0, 0))
    a.extend(rdV(0, 0))
    a("s_waitcnt lgkmcnt(0)")
    a.extend(qk(0, 0, "0"))
    a.extend(qk(1, 0, "0"))
    a("s_nop 7")
    a("s_nop 1")
    for x in range(2):
        s0 = S[x]
        a(f"v_max3_f32 v{U}, v{s0}, v{s0+1}, v{s0+2}")
        for i in range(3, 15, 2): a(f"v_max3_f32 v{U}, v{U}, v{s0+i}, v{s0+i+1}")
        a(f"v_max_f32 v{U}, v{U}, v{s0+15}")
        a(f"v_mov_b32 v{U+2}, v{U}")
        a("s_nop 1")
        a(f"v_permlane32_swap_b32 v{U}, v{U+2}")
        a(f"v_max_f32 v{U}, v{U}, v{U+2}")
        a(f"v_sub_f32 v{NM[x]}, 0, v{U}")
        a(f"v_sub_f32 v{NM[x]+1}, 0, v{U}")
        for i in range(2, 16, 2): a(f"v_mov_b64 v[{NM[x]+i}:{NM[x]+i+1}], v[{NM[x]}:{NM[x]+1}]")
        if x == 0:
            for i in range(0, 16, 2): a(f"v_pk_add_f32 v[{s0+i}:{s0+i+1}], v[{s0+i}:{s0+i+1}], v[{NM[x]}:{NM[x]+1}]")
    a("s_nop 1")
    stp(a, "atloop")

    def acc2(tt, ft): return 128 + (tt * 4 + ft) * 4
    def ab(buf, tt): return buf * 32 + tt * 4
    def gm(v, tt, ft):
        c = acc2(tt, ft); w = WF[v & 1] + ft * 4; x = ab(v, tt)
        return f"v_mfma_f32_16x16x32_bf16 a[{c}:{c+3}], v[{w}:{w+3}], a[{x}:{x+3}], a[{c}:{c+3}]"
    def aload(buf, tt):
        r = ab(buf, tt)
        return f"buffer_load_dwordx4 a[{r}:{r+3}], v{vA[tt>>1]}, {WSR}, s{sKA} offen offset:{(tt&1)*1024} {ASC}"
    def wdma(pc):
        return f"buffer_load_dwordx4 v{vW+pc}, {R(sW)}, s{sKW} offen offset:{pc*1024} {W2P} lds"
    def wread(slot, buf, ft):
        r = WF[buf] + ft * 4
        return [f"ds_read_b64_tr_b16 v[{r+2*rd}:{r+2*rd+1}], v{vWo if ft&1 else vWe} offset:{slot*4096 + rd*2048 + (ft>>1)*512}" for rd in range(2)]
    W0 = "s_waitcnt lgkmcnt(0)"
    def phase(x, t, doqk=True, f=None):
        y = 1 - x
        f = f or {}
        E = lambda i: f"v_exp_f32 v{D[x]+i}, v{S[x]+i}"
        q = qk(y, t + x) if doqk else [None, None]
        g = lambda k: f.get(k, [])
        seq = [q[0]] + g(0) + [E(0), E(1), E(2), q[1]] + g(1) + [E(3), E(4), E(5), PV(y, t - 1 + x, 1)] + g(2) + [E(6), E(7), E(8),
               LS(y, 1)] + g(3) + [E(9), E(10), PV(x, t, 0)] + g(4) + [E(11), E(12), E(13), LS(x, 0)] + g(5) + [E(14), E(15)]
        a.extend([z for z in seq if z])
    ring_adv = [f"s_add_u32 s{sMb}, s{sRing}, s{sM0k}", f"s_add_u32 s{sRing}, s{sRing}, 32768", f"s_cmp_eq_u32 s{sRing}, 98304",
                f"s_cselect_b32 s{sRing}, 0, s{sRing}"]
    kv_sel = [f"s_cmp_gt_u32 s{sCntA}, 5", f"s_cselect_b32 s{sKV+2}, 0, {SZ_KV}"]
    hq = list(parked)
    kv0 = kv_groups(2, 4 if KVD else 6)
    kv1 = kv_groups(4, 8) if KVD else []
    def it_pure(c, j, lastpure):
        t = j + 1
        k = rdK(t + 1, j); v = rdV(t + 1, j)
        fa = {0: [k[0]], 1: [k[1]], 5: [W0]}
        fb = {0: [v[0]], 1: [v[1]], 5: [W0]}
        if j == 0:
            fa[2] = [f"s_mov_b32 m0, s{sMb}", so_wrap]
            if c > 5: fa[3] = [f"s_mov_b32 s{sKV+2}, 0"]
        if j == 4:
            fa[2] = [f"s_add_u32 m0, s{sMb}, 16384", f"s_add_u32 s{sSo}, s{sSo}, 16384"]
        fa[4] = [kvdma(j)]
        if j == 7:
            fa[2] = ring_adv[0:2]; fa[3] = ring_adv[2:4]
            fb[2] = [f"s_add_u32 s{sSo}, s{sSo}, 16384"]
        if c == 0:
            if j == 4: fa[2] = []
            if j == 7: fb[2] = []
            fa[4] = []
            if j == JLD: fa[4] = [flagld(f"v{vFa}")]
            if j > JCHK:
                for f in (fa, fb):
                    for sl in (3, 4):
                        if kv0: f[sl] = f.get(sl, []) + kv0.pop(0)
        if c == 1 and KVD:
            if j in (0, 4): fa[2] = []
            if j == 7: fb[2] = []
            fa[4] = kv1.pop(0); fb[4] = kv1.pop(0)
        for f in (fa, fb):
            for sl in (2, 3)[:SPP]:
                if hq and 8 * c + j >= HST and not any(" lds" in z for z in f.get(sl, [])):
                    u = hq.pop(0); r = 4 * parked.index(u)
                    f[sl] = f.get(sl, []) + hstore(u, f"a[{r}:{r+(1 if u < 8 else 3)}]")
        if lastpure and j == POLLAT:
            fb[4] = fb.get(4, []) + [flagld(f"v{vFa2}")]
        return fa, fb, t
    vK = [240, 241, 242, 243]; sStep, sMask = sT[0], sT[1]
    def kvdma2(q):
        return f"buffer_load_dwordx4 v{vK[q&3]}, {R(sKV)}, s{sSo} offen offset:{(q&3)*1024} {SC} lds"
    def kv_m0(j):
        return f"s_mov_b32 m0, s{sMb}" if j < 4 else f"s_add_u32 m0, s{sMb}, 16384"
    def trip_sa(j, x):
        l = []
        if j == 0 and x == 0: l += [f"s_and_b32 s{sSo}, s{sSo}, s{sMask}"]
        if j == 3 and x == 1: l += [f"s_add_u32 s{sSo}, s{sSo}, s{sStep}"]
        if j == 7 and x == 1: l += [f"s_add_u32 s{sSo}, s{sSo}, s{sStep}"] + ring_adv
        return l
    def kstep_adv():
        return [f"s_add_u32 s{sKA}, s{sKA}, {KS*131072}", f"s_add_u32 s{sKW}, s{sKW}, {KS*65536}"]
    def it_load(j):
        t = j + 1; v = j >> 1
        for x in range(2):
            ph = 2 * (j & 1) + x
            kv = rdK(t + 1, j) if x == 0 else rdV(t + 1, j)
            tr = wread(0, 0, ph) if v == 3 else []
            sa = trip_sa(j, x)
            wait = "s_waitcnt vmcnt(28) lgkmcnt(0)" if ph == 3 else W0
            f = {0: [kv[0], kv[1]], 1: sa[0:2] + tr, 2: [f"s_add_u32 m0, s{sM0g}, {v*4096}", aload(v, 2 * ph)], 3: sa[2:] + [wdma(ph)],
                 4: ([kv_m0(j)] if x == 0 else []), 5: [wait, aload(v, 2 * ph + 1)] + ([kvdma2(j)] if x == 0 else [])}
            if ph == 3: f[5] += kstep_adv()
            if j == 7 and x == 1:
                f[4] = [f"s_add_u32 s{sCntA}, s{sCntA}, 1"]
                f[5] += ["s_barrier", f"v_add_u32 v{vCur}, s{sRing}, v{vL16}"]
            phase(x, t, f=f)
    def it_comb(j):
        t = j + 1; v = j >> 1
        for x in range(2):
            y = 1 - x
            ph = 2 * (j & 1) + x
            E = lambda i: f"v_exp_f32 v{D[x]+i}, v{S[x]+i}"
            q = qk(y, t + x)
            kv = rdK(t + 1, j) if x == 0 else rdV(t + 1, j)
            tr = wread((v + 1) & 3, (v + 1) & 1, ph)
            Gm = [gm(v, 2 * ph, ft) for ft in range(4)] + [gm(v, 2 * ph + 1, ft) for ft in range(3, -1, -1)]
            sa = trip_sa(j, x) + [None] * 5
            wait = "s_waitcnt vmcnt(28) lgkmcnt(0)" if ph == 3 else W0
            last = (j == 7 and x == 1)
            seq = [Gm[0], kv[0], kv[1], q[0], sa[0], E(0), E(1), E(2), Gm[1], sa[1], E(3), q[1], sa[2], E(4), E(5), E(6), Gm[2], sa[3], E(7),
                   PV(y, t - 1 + x, 1), tr[0], E(8), E(9), LS(y, 1), tr[1], Gm[3], sa[4], E(10), PV(x, t, 0), aload(v, 2 * ph), E(11), E(12),
                   Gm[4], f"s_add_u32 m0, s{sM0g}, {v*4096}", E(13), LS(x, 0), wdma(ph), Gm[5],
                   kv_m0(j) if x == 0 else (f"s_add_u32 s{sCntA}, s{sCntA}, 1" if last else None), E(14), Gm[6], wait,
                   "s_barrier" if last else None, E(15), Gm[7], aload(v, 2 * ph + 1), kvdma2(j) if x == 0 else None]
            if CPF and j == 2 and x == 1: seq.append(f"global_load_dwordx4 v[{U+4}:{U+7}], v[248:249], off")
            if ph == 3: seq += kstep_adv()
            if last: seq += [f"v_add_u32 v{vCur}, s{sRing}, v{vL16}", f"s_bitcmp1_b32 {0x1c0 if L2T == 7 else 0x140}, s{sCntA}"]
            a.extend([z for z in seq if z])

    NPURE = 7 - NC
    seqs = []
    for c in range(NPURE):
        for j in range(1 if c == 0 else 0, 8):
            seqs.append((c, j) + it_pure(c, j, c == NPURE - 1))
    assert not hq and not kv0 and not kv1
    log = []
    def younger(pred):
        idx = [i for i, tag in enumerate(log) if pred(tag)]
        return len(log) - 1 - idx[-1] if idx else len(log)
    for (c, j, fa, fb, t) in seqs:
        for f in (fa, fb):
            for sl in range(5):
                for z in f.get(sl, []):
                    if z.startswith("buffer_"):
                        log.append("kv%d" % (sum(1 for g in log if g.startswith("kv")) // 8 - 1) if " lds" in z else ("st" if "store" in z else "poll"))
        need = 63
        pub = (8 * c + j == PUBAT)
        if j == 7: need = min(need, younger(lambda g: g == "kv%d" % (c - 1)))
        if pub: need = min(need, younger(lambda g: g == "st"))
        if j == 7 or pub:
            fb[5] = [f"s_waitcnt vmcnt({need}) lgkmcnt(0)", "s_barrier"]
            if j == 7: fb[5].append(f"v_add_u32 v{vCur}, s{sRing}, v{vL16}")
        phase(0, t, f=fa)
        phase(1, t, f=fb)
        if c == 0 and j == JCHK:
            a(f"s_waitcnt vmcnt({younger(lambda g: g == 'poll')})")
            poll(f"v{vFa}", True)
            if HALF:
                assert JCHK <= 3
                a("s_barrier")
            stp(a, "fqok")
        if pub:
            assert log.count("st") == len(parked)
            a(f"s_cmp_eq_u32 s{sPub}, 0")
            a("s_cbranch_scc1 L_at_np")
            publish(sPub, U)
            a("L_at_np:")
    a(f"s_mov_b32 s{sCntA}, {NPURE}")
    npoll = younger(lambda g: g == 'poll')
    if QX:
        a(f"s_cmp_lg_u32 s{sPub}, 0")
        a("s_cbranch_scc1 L_at_nx")
        for j in range(8):
            fa, fb, t = it_pure(NPURE, j, True)
            if j == 7: fb[5] = ["s_waitcnt vmcnt(9) lgkmcnt(0)", "s_barrier", f"v_add_u32 v{vCur}, s{sRing}, v{vL16}"]
            phase(0, t, f=fa); phase(1, t, f=fb)
        a(f"s_mov_b32 s{sCntA}, {NPURE + 1}")
        a("L_at_nx:")
        npoll = min(npoll, 7 - POLLAT)
    stp(a, "pureend")
    for q in range(4): a(f"v_mov_b32 v{vK[q]}, v{vDma}")
    a(f"s_mov_b32 s{sStep}, 16384")
    a(f"s_mov_b32 s{sMask}, {SZ_KV - 1}")
    a(f"s_waitcnt vmcnt({npoll})")
    poll(f"v{vFa2}", True)
    stp(a, "fhok")
    for j in range(8): it_load(j)
    if NC:
        stp(a, "cb0")
        a(".p2align 6")
        a("L_cb_loop:")
        for j in range(8): it_comb(j)
        a("s_cbranch_scc0 L_cb_loop")
        a(f"s_cmp_eq_u32 s{sCntA}, 6")
        a("s_cbranch_scc1 L_cb_sw")
        if L2T == 7:
            a(f"s_cmp_eq_u32 s{sCntA}, 7")
            a("s_cbranch_scc1 L_cb_t")
        o = Asm(); sv = a.lines; a.lines = o.lines
        a("L_cb_sw:")
        for q in range(4): a(f"v_mov_b32 v{vK[q]}, v{vW+q}")
        srd(a, sKV, pWO, 0, 1024 * 2048)
        a(f"s_lshl_b32 s{sSo}, s{sWave}, {19 if KQ else 16}")
        a(f"s_mov_b32 s{sStep}, {KS*65536}")
        a(f"s_mov_b32 s{sMask}, -1")
        if L2T != 6: a("s_branch L_cb_loop")
        if L2T:
            assert KQ and G2MAP == 0
            a("L_cb_t:")
            a(f"v_and_b32 v{U}, 31, v{L}")
            a(f"v_lshlrev_b32 v{U+1}, 11, v{U}")
            a(f"v_lshlrev_b32 v{U}, 7, v{U}")
            a(f"s_and_b32 s{t0}, s{sSlot}, 3")
            a(f"s_lshl_b32 s{t1}, s{sCb}, 7")
            a(f"s_mul_i32 s{t2}, s{sWave}, 28")
            a(f"s_add_u32 s{t2}, s{t2}, 24")
            a(f"s_add_u32 s{t3}, s{t2}, s{t0}")
            a(f"s_lshl_b32 s{t3}, s{t3}, 16")
            a(f"s_add_u32 s{t3}, s{t3}, s{t1}")
            a(f"buffer_load_dword v{U+3}, v{U+1}, {R(sW)}, s{t3} offen")
            a(f"s_lshr_b32 s{t3}, s{sSlot}, 3")
            a(f"s_add_u32 s{t2}, s{t2}, s{t3}")
            a(f"s_lshl_b32 s{t2}, s{t2}, 17")
            a(f"s_lshl_b32 s{t3}, s{sRb2}, 13")
            a(f"s_add_u32 s{t2}, s{t2}, s{t3}")
            a(f"s_and_b32 s{t3}, s{sSlot}, 4")
            a(f"s_lshl_b32 s{t3}, s{t3}, 10")
            a(f"s_add_u32 s{t2}, s{t2}, s{t3}")
            a(f"s_add_u32 s{t2}, s{t2}, {WS_A2 + 32*131072}")
            a(f"buffer_load_dword v{U+3}, v{U}, {WSR}, s{t2} offen sc1")
            a(f"s_lshl_b32 s{t2}, s{sWave}, 3")
            a(f"s_add_u32 s{t2}, s{t2}, s{t0}")
            a(f"s_add_u32 s{t2}, s{t2}, 4")
            a(f"s_lshl_b32 s{t2}, s{t2}, 16")
            a(f"s_add_u32 s{t2}, s{t2}, s{t1}")
            a(f"buffer_load_dword v{U+3}, v{U+1}, {R(sKV)}, s{t2} offen")
            srd(a, sX, pX, 0, 4 * MB)
            a(f"s_lshl_b32 s{t2}, s{sRb2}, 2")
            a(f"s_add_u32 s{t2}, s{t2}, s{sWave}")
            a(f"s_lshl_b32 s{t2}, s{t2}, 16")
            a(f"s_add_u32 s{t2}, s{t2}, s{t1}")
            a(f"buffer_load_dword v{U+3}, v{U+1}, {R(sX)}, s{t2} offen")
            a("s_branch L_cb_loop")
        ool.extend([z.text for z in o.lines]); a.lines = sv
    stp(a, "cb1")
    phase(0, 63)
    phase(1, 63, doqk=False)
    a("s_nop 1")
    a(PV(1, 63, 1)); a(LS(1, 1))
    stp(a, "atend")
    a(f"v_bfe_u32 v{U+2}, v{L}, 4, 1")
    a(f"v_lshlrev_b32 v{U+2}, 10, v{U+2}")
    a(f"v_lshrrev_b32 v{U+3}, 5, v{L}")
    a(f"v_lshl_add_u32 v{U+2}, v{U+3}, 8, v{U+2}")
    a(f"v_and_b32 v{U+3}, 15, v{L}")
    a(f"v_lshl_add_u32 v{U+2}, v{U+3}, 4, v{U+2}")
    a(f"s_lshr_b32 s{t0}, s{sRb2}, 1")
    a(f"s_lshl_b32 s{t0}, s{t0}, 8")
    a(f"s_add_u32 s{t0}, s{t0}, {WS_FL + FO}")
    a(f"v_and_b32 v{U+3}, 31, v{L}")
    a(f"v_lshl_add_u32 v{vFa2}, v{U+3}, 3, s{t0}")
    a(f"s_add_u32 s{sQO}, s{sQO}, {WS_A2 - WS_Q}")
    a(f"s_mov_b32 s{t0}, {f2u(2.0**40):#x}")
    a(f"v_pk_mul_f32 v[{U}:{U+1}], v[{O[0]}:{O[0]+1}], 0 op_sel_hi:[1,0]")
    for i in range(2, 32, 2):
        a(f"v_pk_fma_f32 v[{U}:{U+1}], v[{O[0]+i}:{O[0]+i+1}], 0, v[{U}:{U+1}] op_sel_hi:[1,0,1]")
    a(f"v_add_f32 v{U}, v{U}, v{U+1}")
    a(f"v_add3_u32 v{U+1}, 0, 0, 0") if False else None
    a(f"v_add_f32 v{U+1}, v{Lr[0]}, v{Lr[1]}")
    a(f"v_add_f32 v{U}, v{U}, v{U+1}")
    a(f"v_cmp_ngt_f32 vcc, s{t0}, v{U}")
    a("s_nop 1")
    a("s_cbranch_vccnz L_at_slow")
    a("L_at_fin:")
    for x in range(2):
        a(f"v_rcp_f32 v{U}, v{Lr[x]}")
        a("s_nop 0")
        a(f"v_mul_f32 v{U}, v{U}, v{vSig+x}")
        for i in range(0, 16, 2): a(f"v_pk_mul_f32 v[{O[x]+i}:{O[x]+i+1}], v[{O[x]+i}:{O[x]+i+1}], v[{U}:{U+1}] op_sel_hi:[1,0]")
        for u in range(2):
            for e in range(2):
                c = O[x] + 8 * e + 4 * u
                a(f"v_cvt_pk_bf16_f32 v{D[x]+4*u+2*e}, v{c}, v{c+1}")
                a(f"v_cvt_pk_bf16_f32 v{D[x]+4*u+2*e+1}, v{c+2}, v{c+3}")
            a(f"buffer_store_dwordx4 v[{D[x]+4*u}:{D[x]+4*u+3}], v{U+2}, {WSR}, s{sQO} offen offset:{x*2048+u*512} {SC}")

    assert 2 < NC <= 5
    S0 = 4 * NC
    X = 112; WF8 = [0, 16, 32, 48, 64, 80, 96, 128]
    vE = [220, 221, 236, 237]; vRd = [233, 234, 235]; vRw = 238; vXs = 239
    ol = ["old"] + ["ost"] * 4
    def need2(*tags):
        idx = [i for i, t in enumerate(ol) if t in tags or t == "old"]
        return min(63, len(ol) - 1 - idx[-1])
    def abuf(s_, tt):
        r = ab(s_ & 3, tt) if s_ < 28 else ab(tt & 3, s_ - 28)
        return f"a[{r}:{r+3}]"
    def wfr(s_): return WF8[s_ - 28] if s_ >= 28 else WF[s_ & 1]
    def gm2(s_, tt, ft):
        c = acc2(tt, ft); w = wfr(s_) + ft * 4
        return f"v_mfma_f32_16x16x32_bf16 a[{c}:{c+3}], v[{w}:{w+3}], {abuf(s_, tt)}, a[{c}:{c+3}]"
    def wloc(s_):
        if s_ < 28: return ("r", s_ & 3)
        return ("e", (4, 5, 0, 1, 2, 3)[s_ - 28]) if s_ < 34 else ("r", s_ - 34)
    def wrd(s_):
        k, sl = wloc(s_); l = []
        for ft in range(4):
            r = wfr(s_) + ft * 4
            if k == "r": v = vWo if ft & 1 else vWe; o = sl * 4096
            else: v = vE[(ft & 1) + 2 * (sl >> 2)]; o = (sl & 3) * 16384
            l += [f"ds_read_b64_tr_b16 v[{r+2*rd}:{r+2*rd+1}], v{v} offset:{o + rd*2048 + (ft>>1)*512}" for rd in range(2)]
        return l
    def wld(s_):
        k, sl = wloc(s_)
        g = [([f"s_add_u32 m0, s{sM0g}, {sl*4096}" if k == "r" else f"s_add_u32 m0, s{sM0k}, {sl*16384}"], None)]
        for pc in range(4):
            g.append(([f"buffer_load_dwordx4 v{vW+pc}, {R(sW if s_ < 28 else sKV)}, s{sKW if s_ < 28 else sSo} offen offset:{pc*1024} lds"], f"W{s_}"))
        g.append(([f"s_add_u32 s{sKW if s_ < 28 else sSo}, s{sKW if s_ < 28 else sSo}, {KS*65536}"], None))
        return g
    sO4 = [t0, t1, t2, t3, 88, 89, 90, 91]
    def ald(s_, tt):
        so = sO4[s_ - 28] if s_ >= 28 else sKA
        return ([f"buffer_load_dwordx4 {abuf(s_, tt)}, v{vA[tt>>1]}, {WSR}, s{so} offen offset:{(tt&1)*1024} {ASC}"], f"A{s_}_{tt}")
    def order(s_): return [(tt, ft) for tt in range(8) for ft in (range(4) if tt % 2 == 0 else range(3, -1, -1))]
    def emit(m, vm_groups, pos, ds=(), misc=(), bud=8, ds2=(), wr=()):
        for g, tag in vm_groups:
            if tag: ol.append(tag)
        sds = [(8 + 2 * i, x) for i, x in enumerate(ds)] + [((i * 26) // max(1, len(ds2)), x) for i, x in enumerate(ds2)] + list(wr)
        a.extend(sched(m, [[(p, g) for p, (g, tag) in zip(pos, vm_groups)], sds, list(misc)], bud))
    def begin(s_):
        stp(a, f"s{s_}")
        a(f"s_waitcnt vmcnt({need2(*([f'A{s_}_{tt}' for tt in range(8)] + [f'W{s_+1}']))}) lgkmcnt(0)")
    e = Asm(); sv = a.lines; a.lines = e.lines
    a(f"s_sub_u32 s{t4}, s{sM0k}, s{sM0g}")
    a(f"v_add_u32 v{vE[0]}, s{t4}, v{vWe}")
    a(f"v_add_u32 v{vE[1]}, s{t4}, v{vWo}")
    a(f"v_add_u32 v{vE[2]}, 0x10000, v{vE[0]}")
    a(f"v_add_u32 v{vE[3]}, 0x10000, v{vE[1]}")
    srd(a, sX, pX, 0, 4 * MB)
    srd(a, sOut, pOut, 0, 4 * MB)
    a(f"s_mov_b32 s{sPf}, 32768")
    a(f"s_lshl_b32 s{t4}, s{sRb2}, 7")
    a(f"s_lshl_b32 s{t5}, s{sWave}, 5")
    a(f"s_add_u32 s{t4}, s{t4}, s{t5}")
    a(f"s_lshl_b32 s{sH1}, s{t4}, 2")
    a(f"s_add_u32 s{sH1}, s{sH1}, {WS_STAT + 8192}")
    a(f"s_lshl_b32 s{t4}, s{t4}, 11")
    a(f"s_lshl_b32 s{t5}, s{sCb}, 7")
    a(f"s_add_u32 s{t4}, s{t4}, s{t5}")
    el1 = [x.text for x in e.lines]; e = Asm(); a.lines = e.lines
    a(f"v_and_b32 v{vRw}, 15, v{L}")
    a(f"v_lshl_add_u32 v{vX}, v{vRw}, 11, s{t4}")
    a(f"v_lshlrev_b32 v{vRd[0]}, 2, v{vRw}")
    a(f"v_bfe_u32 v{vRw}, v{L}, 4, 1")
    a(f"v_lshl_add_u32 v{vXs}, v{vRw}, 5, v{vX}")
    a(f"v_lshrrev_b32 v{vRw}, 5, v{L}")
    a(f"v_lshl_add_u32 v{vXs}, v{vRw}, 4, v{vXs}")
    a(f"v_add_u32 v{vRw}, s{sM0k}, v{vL16}")
    if OT & 1:
        a(f"v_and_b32 v186, 31, v{L}")
        a(f"v_lshlrev_b32 v186, 11, v186")
        a(f"s_and_b32 s{t0}, s{sSlot}, 3")
        a(f"s_lshl_b32 s{t0}, s{t0}, 16")
        a(f"s_add_u32 s{t0}, s{t0}, s{sSo}")
        a(f"s_add_u32 s{t0}, s{t0}, s{t5}")
        a(f"buffer_load_dword v187, v186, {R(sKV)}, s{t0} offen")
        a(f"buffer_load_dword v187, v186, {R(sX)}, s{t4} offen")
    el2 = [x.text for x in e.lines]; e = Asm(); a.lines = e.lines
    for pi in range(3):
        a(f"s_sub_u32 s{t4}, s{sWave}, {pi + 1}")
        a(f"s_and_b32 s{t4}, s{t4}, 3")
        a(f"s_lshl_b32 s{t4}, s{t4}, 12")
        a(f"s_add_u32 s{t4}, s{t4}, {pi * 32768}")
        a(f"v_add_u32 v{vRd[pi]}, s{t4}, v{vL16}")
    a(f"s_lshl_b32 s{t4}, s{sWave}, {20 if KQ else 17}")
    for i in range(8): a(f"s_add_u32 s{sO4[i]}, s{t4}, {WS_A2 + i * KS * 131072}")
    if OT & 2:
        a(f"v_lshlrev_b32 v186, 7, v{L}")
        a(f"s_lshr_b32 s{sH2}, s{sSlot}, 2")
        a(f"s_lshl_b32 s{sH2}, s{sH2}, 17")
        a(f"s_add_u32 s{sH2}, s{sH2}, s{sO4[0]}")
        a(f"s_lshl_b32 s{t4}, s{sRb2}, 13")
        a(f"s_add_u32 s{sH2}, s{sH2}, s{t4}")
    el3 = [x.text for x in e.lines]; a.lines = sv
    def grp(l):
        out = []
        for z in l:
            if z.split()[0] in ("s_addc_u32", "s_subb_u32"): out[-1].append(z)
            else: out.append([z])
        return out
    def pubo():
        a(f"s_waitcnt vmcnt(12)")
        a("s_barrier")
        publish(93, 184)
    if QX:
        assert PUBSTEP == 0
        a(f"s_cmp_lg_u32 s{sPub}, 0")
        a("s_cbranch_scc1 L_g2_nx")
        for s_ in range(S0 - 4, S0):
            a("s_waitcnt vmcnt(32) lgkmcnt(0)")
            vg = wld(s_ + 4) + [ald(s_ + 4, tt) for tt in range(8)] + [([f"s_add_u32 s{sKA}, s{sKA}, {KS*131072}"], None)]
            pos = [0, 1, 2, 3, 4, 5] + [max(4 * tt + 3, 6 + tt) for tt in range(8)] + [31]
            emit([gm2(s_, tt, ft) for tt, ft in order(s_)], vg, pos, wrd(s_ + 1), [])
            if s_ == S0 - 4: pubo()
        a("L_g2_nx:")
        del ol[5:]
    for s_ in range(S0, 24):
        if s_ == S0: stp(a, "s20")
        if QX: a("s_waitcnt vmcnt(32) lgkmcnt(0)")
        else: begin(s_) if s_ > S0 else a("s_waitcnt lgkmcnt(0)")
        vg = wld(s_ + 4) + [ald(s_ + 4, tt) for tt in range(8)] + [([f"s_add_u32 s{sKA}, s{sKA}, {KS*131072}"], None)]
        pos = [0, 1, 2, 3, 4, 5] + [max(4 * tt + 3, 6 + tt) for tt in range(8)] + [31]
        misc = {S0: grp(el1), S0 + 1: grp(el2)}.get(s_, [])
        emit([gm2(s_, tt, ft) for tt, ft in order(s_)], vg, pos, wrd(s_ + 1), [(i + 1, g) for i, g in enumerate(misc)])
        if QX and s_ == S0:
            a(f"s_cmp_eq_u32 s{sPub}, 0")
            a("s_cbranch_scc1 L_g2_np")
            pubo()
            a("L_g2_np:")
        elif s_ == S0 + PUBSTEP:
            stp(a, "pb")
            a(f"s_waitcnt vmcnt({need2('ost')})")
            a("s_barrier")
            publish(93, 184)
        elif s_ < 20 + PUBSTEP:
            pass
    q = []
    for s_ in range(32, 36): q += wld(s_)
    xl = [([f"buffer_load_dwordx4 v[{X+(h*2+p)*4}:{X+(h*2+p)*4+3}], v{vXs}, {R(sX)}, {'0' if h == 0 else f's{sPf}'} offen offset:{p*64}"], "x")
          for h in range(2) for p in range(2)]
    xl += [([f"buffer_load_dword v{vRs2+h}, v{vRd[0]}, {WSR}, s{sH1} offen offset:{h*64} sc1"], "x") for h in range(2)]
    if XL: q = xl[4:] + q
    else: q = xl + q
    k = [i for i, (g, tag) in enumerate(q) if tag][POLLW]
    q.insert(k, ([flagld(f"v{vFa2}")], "poll"))
    def orow(tt): return [ald(s_, tt) for s_ in range(28, 36)]
    nq = CHK - 23
    per = (len(q) + nq - 1) // nq
    assert per >= 19 or nq > 1
    for s_ in range(24, 28):
        begin(s_)
        if s_ <= CHK: vg = q[:per]; q = q[per:]
        else:
            vg = orow(s_ - CHK - 1)
            if OT & 2 and s_ == CHK + 1:
                vg.insert(OTP, ([f"buffer_load_dword v187, v186, {WSR}, s{sH2} offen sc1"], "t"))
        ds = (wrd(s_ + 1) if s_ < 27 else []) + wrd(s_ + 4)
        emit([gm2(s_, tt, ft) for tt, ft in order(s_)], vg, [(i * 30) // len(vg) for i in range(len(vg))], [],
             [(i + 1, g) for i, g in enumerate(grp(el3))] if s_ == 25 else [], ds2=ds)
        if s_ == CHK:
            stp(a, "fopoll")
            a(f"s_waitcnt vmcnt({need2('poll')})")
            poll(f"v{vFa2}", True)
            stp(a, "fook")
    nrow = 27 - CHK
    for tt in range(nrow, 3):
        for g, tag in orow(tt): a.extend(g); ol.append(tag)
    a(f"s_waitcnt vmcnt({need2('W35')})")
    for s_ in range(32, 36): a.extend(wrd(s_))
    XF = 144; RB = [176, 0, 32]
    unp = [f"v_permlane16_swap_b32 v{X+4*i+j}, v{X+4*i+j+2}" for i in range(4) for j in range(2)]
    for i in range(16):
        unp += [f"v_lshlrev_b32 v{XF+2*i}, 16, v{X+i}", f"v_and_b32 v{XF+2*i+1}, 0xffff0000, v{X+i}"]
    for tt in range(8):
        stp(a, f"r{tt}")
        a(f"s_waitcnt vmcnt({need2(f'A35_{tt}', 'x' if (XL and tt == 6) else '-')})" + (" lgkmcnt(0)" if tt == 0 else ""))
        m = [gm2(s_, tt, ft) for s_ in range(28, 36) for ft in (range(4) if s_ % 2 == 0 else range(3, -1, -1))]
        vg = orow(tt + 3) if tt + 3 < 8 else []
        if XL and tt == XL: vg = vg + xl[:4]
        wr = []
        if 1 <= tt <= 6:
            pt = tt - 1
            wr = [(8 + 4 * ft, f"ds_write_b128 v{vRw}, a[{acc2(pt, ft)}:{acc2(pt, ft)+3}] offset:{(pt & 3)*16384 + ft*1024}") for ft in range(4)]
            if pt == 3: wr.append((24, f"v_add_u32 v{vRw}, 0x10000, v{vRw}"))
        if tt == 6: wr.append((31, ["s_waitcnt lgkmcnt(0)", "s_barrier"]))
        mi = [(2 * i, z) for i, z in enumerate(unp[10 * tt:10 * tt + 10])] if tt < 4 else []
        if XL: mi = [((3 * i) // 4, z) for i, z in enumerate(unp)] if tt == 6 else []
        if tt == 7:
            wr = [(8 * pi + i + (1 if pi else 0), f"ds_read_b128 v[{RB[pi]+4*i}:{RB[pi]+4*i+3}], v{vRd[pi]} offset:{(i >> 2)*16384 + (i & 3)*1024}")
                  for pi in range(3) for i in range(8)]
            mi = [(10 + i, f"v_accvgpr_read_b32 v{112+i}, a{acc2(6, 0)+i}") for i in range(16)]
        emit(m, vg, [(30 * i) // max(8, len(vg)) + 1 for i in range(len(vg))], [], mi, ds2=[], wr=wr)
    stp(a, "g2end")
    a("s_waitcnt lgkmcnt(0)")
    for i in range(8):
        o_ = 112 + 4 * i if i < 4 else 64 + 4 * i
        if i == 2:
            for j in range(16): a(f"v_accvgpr_read_b32 v{80+j}, a{acc2(7, 0)+j}")
        for j in (0, 2): a(f"v_pk_add_f32 v[{RB[0]+4*i+j}:{RB[0]+4*i+j+1}], v[{RB[0]+4*i+j}:{RB[0]+4*i+j+1}], v[{RB[1]+4*i+j}:{RB[1]+4*i+j+1}]")
        for j in (0, 2): a(f"v_pk_add_f32 v[{o_+j}:{o_+j+1}], v[{o_+j}:{o_+j+1}], v[{RB[2]+4*i+j}:{RB[2]+4*i+j+1}]")
        for j in (0, 2): a(f"v_pk_add_f32 v[{o_+j}:{o_+j+1}], v[{o_+j}:{o_+j+1}], v[{RB[0]+4*i+j}:{RB[0]+4*i+j+1}]")
        sel = "op_sel_hi:[1,0,1]" if i < 4 else "op_sel:[0,1,0]"
        for j in (0, 2): a(f"v_pk_fma_f32 v[{o_+j}:{o_+j+1}], v[{o_+j}:{o_+j+1}], v[{vRs2}:{vRs2+1}], v[{XF+4*i+j}:{XF+4*i+j+1}] {sel}")
        a(f"v_cvt_pk_bf16_f32 v{128+2*i}, v{o_}, v{o_+1}")
        a(f"v_cvt_pk_bf16_f32 v{128+2*i+1}, v{o_+2}, v{o_+3}")
        if i & 1:
            r = 128 + 2 * (i - 1)
            a("s_nop 1")
            a(f"v_permlane16_swap_b32 v{r}, v{r+2}")
            a(f"v_permlane16_swap_b32 v{r+1}, v{r+3}")
            a(f"buffer_store_dwordx4 v[{r}:{r+3}], v{vXs}, {R(sOut)}, {'0' if i < 4 else f's{sPf}'} offen offset:{((i>>1)&1)*64} {OSC}")
    stp(a, "outst")
    if DBGST:
        n = len(STAMPS) + 1
        a("s_waitcnt vmcnt(0)")
        stamp(a, n - 1)
        a(f"s_cmp_lg_u32 s2, {DBGST - 1}")
        a("s_cbranch_scc1 L_end")
        a(f"s_cmp_lg_u32 s{sWave}, 0")
        a("s_cbranch_scc1 L_end")
        a("s_waitcnt lgkmcnt(0)")
        srd(a, 88, pDbg, 0, 256)
        for i in range(n):
            a(f"s_sub_u32 s92, s{60+2*i}, s60")
            a(f"v_mov_b32 v1, s92")
            a(f"buffer_store_dword v1, off, s[88:91], 0 offset:{4*i}")
    else:
        stamp_flush(a, 1, len(STAMPS) + 1, 0)
    a("L_end:")
    a("s_endpgm")
    a("L_at_slow:")
    a(f"s_lshl_b32 s{t5}, s{sHead}, 18")
    a(f"s_add_u32 s{t5}, s{t5}, {WS_KV}")
    for x in range(2): a(f"v_mov_b32 v{NM[x]}, 0xff800000")
    for i in range(40): a(f"v_mov_b32 v{O[0]+i}, 0")
    a(f"s_mov_b32 s{sCntA}, 0")
    a("L_at_sloop:")
    k = Kf[0]; v = Vf[0]
    a(f"buffer_load_dwordx4 v[{k}:{k+3}], v{vL16}, {WSR}, s{t5} offen {SC}")
    a(f"buffer_load_dwordx4 v[{k+4}:{k+7}], v{vL16}, {WSR}, s{t5} offen offset:1024 {SC}")
    a(f"buffer_load_dwordx4 v[{v}:{v+3}], v{vL16}, {WSR}, s{t5} offen offset:2048 {SC}")
    a(f"buffer_load_dwordx4 v[{v+4}:{v+7}], v{vL16}, {WSR}, s{t5} offen offset:3072 {SC}")
    a("s_waitcnt vmcnt(0)")
    for x in range(2):
        M = NM[x]; AL = NM[x] + 1; MN = NM[x] + 2; s = S[x]
        a.extend(qk(x, 0, "0"))
        a("s_nop 15")
        a(f"v_max3_f32 v{U}, v{s}, v{s+1}, v{s+2}")
        for i in range(3, 15, 2): a(f"v_max3_f32 v{U}, v{U}, v{s+i}, v{s+i+1}")
        a(f"v_max_f32 v{U}, v{U}, v{s+15}")
        a(f"v_mov_b32 v{U+1}, v{U}")
        a("s_nop 1")
        a(f"v_permlane32_swap_b32 v{U}, v{U+1}")
        a(f"v_max3_f32 v{MN}, v{U}, v{U+1}, v{M}")
        a(f"v_sub_f32 v{AL}, v{M}, v{MN}")
        a(f"v_exp_f32 v{AL}, v{AL}")
        a(f"v_mov_b32 v{M}, v{MN}")
        for i in range(16): a(f"v_sub_f32 v{s+i}, v{s+i}, v{MN}")
        for i in range(16): a(f"v_exp_f32 v{D[x]+i}, v{s+i}")
        for i in range(16): a(f"v_mul_f32 v{O[x]+i}, v{O[x]+i}, v{AL}")
        a(f"v_mul_f32 v{Lr[x]}, v{Lr[x]}, v{AL}")
        a("s_nop 1")
        a(LS(x, 0)); a(LS(x, 1))
        a(PV(x, 0, 0)); a(PV(x, 0, 1))
        a("s_nop 15")
    a(f"s_add_u32 s{t5}, s{t5}, 4096")
    a(f"s_add_u32 s{sCntA}, s{sCntA}, 1")
    a(f"s_cmp_lt_u32 s{sCntA}, 64")
    a("s_cbranch_scc1 L_at_sloop")
    a("s_branch L_at_fin")
    a.extend(ool)
    if LAY: a.extend(qcode)
    a(".p2align 4")
    a("L_code_end:")
    return a, descriptor(name, 512, 256, 102)

if __name__ == "__main__":
    path = sys.argv[1] if len(sys.argv) > 1 else "cdna_kernels/" + NAME + ".s"
    a, d = gen_main()
    ref = open(os.path.join(os.path.dirname(os.path.abspath(__file__)), "..", "cdna_kernels", NAME + ".s.ref")).read()
    head = [l for l in ref.split("\n") if l.startswith(";") and "@launch" not in l and "Override" not in l and "grid=ceil" not in l]
    out = "\n".join(head) + "\n; @launch grid=(256,1,1) block=(256,1,1) lds=163840\n"
    out += DOC
    out += '.amdgcn_target "amdgcn-amd-amdhsa--gfx950"\n.text\n' + a.text() + '.section .rodata,"a"\n.p2align 6\n' + d
    open(path, "w").write(out)
    probs = a.check("main")
    for p in probs: print("HAZARD", p)
    print("written", path, "hazards:", len(probs))
```

```python
import sys, os
sys.path.insert(0, os.path.dirname(os.path.abspath(__file__)))
from asmdsl import Asm, weave, sched
from gen import (NAME, KA_X, KA_WQKV, KA_WO, KA_W1, KA_W2, KA_OUT, KA_DBG, KA_WS, MB, f2u, srd, header, descriptor,
                 stamp, stamp_flush, STAMP, xreduce, bf16round, QSCALE)

def env(k, d): return type(d)(os.environ.get(k, d))
WS_Q, WS_KV, WS_A2 = 4 * MB, 8 * MB, 16 * MB
SZ_KV = 262144
WS_FL = 0
FQ, FH, FO, F0 = 0, 2048, 4096, 8192
WS_STAT = 16384
WS_CS = 65536
WS_END = 35 * MB
LDS_W1 = 98304
LDS_SCR = 90112
NC = env("NC", 5); ND = env("ND", 2); SPP = env("SPP", 2); PUBAT = env("PUBAT", 10); POLLAT = env("POLLAT", 5)
L2T = env("L2T", 0); TPF = env("TPF", 0); PNT = env("PNT", ""); CPF = env("CPF", 2); QPLAIN = env("QPLAIN", 0); WNT = env("WNT", ""); PFG1 = env("PFG1", 1); DMAF = env("DMAF", 0.6); RDF = env("RDF", 0.75); BUD = env("BUD", 4)
POLLSTEP = env("POLLSTEP", 2); PUBSTEP = env("PUBSTEP", 0); DBGST = env("DBGST", 0); JLD = env("JLD", 1); JCHK = env("JCHK", 3); POLLW = env("POLLW", 8); CHK = env("CHK", 25); HST = env("HST", 0); EPOLL = env("EPOLL", 31); ELEAD = env("ELEAD", 10)
XL = env("XL", 0); LAY = env("LAY", 0); QX = env("QX", 0); SLP = env("SLP", 6); OT = env("OT", 0); OTP = env("OTP", 8); W2P = env("W2P", ""); ROT = env("ROT", 8); WARM = env("WARM", 1); KVD = env("KVD", 1); HALF = env("HALF", 1); OWN = env("OWN", 1); XB = env("XB", 0); OSC = env("OSC", "sc1"); PRO = env("PRO", 2); XPOS = env("XPOS", 1); XNT = env("XNT", ""); KQ = env("KQ", 1); KS = 1 if KQ else 4; SC = "sc1"; ASC = env("ASC", "sc1"); G2MAP = env("G2MAP", 0)
STAMPS = env("STAMPS", "start,g1loop,g1end,e4,atentry,atloop,pureend,fhok,atend,fopoll,fook,g2end,outst").split(",")
def stp(a, name):
    if name in STAMPS: stamp(a, STAMPS.index(name))

DOC = """; One persistent kernel, 256 workgroups (one per CU, 4 waves), generated by a hand-written scheduler script.
;  phase 0  row statistics (mean, 1/sigma) of 8 rows per workgroup; column sums of the weight tile over 1/8 of K
;  phase 1  GEMM1  x @ [wqkv | w1], 256 x 192 / 256 x 224 tiles; LayerNorm is applied in the epilogue as
;           rs * (acc - mean * colsum); h = relu(.) and o are kept divided by rs, the last epilogue multiplies it back
;  phase 2  attention for one (head, 256 queries); exp2 of (score - max of the first key tile); after the loop the row
;           sums and accumulators are checked and, if the stand-in max was unsafe (sum >= 2^40, inf or NaN), the wave
;           20 of the 36 K-steps of GEMM2 are interleaved with the attention loop
;  phase 3  rest of GEMM2  [o | h] @ [wo ; w2], 128 x 64 tile, K split over the waves, + residual
; Hand-offs between workgroups: write-through (sc1) stores, s_waitcnt vmcnt + barrier, then an 8-byte flag holding a
; launch nonce (published through d_debug); consumers poll the flags (bounded) and read with sc1 loads.
"""

def gen_main():
    a = Asm()
    name = NAME + "_kernel"
    header(a, name)
    sWS, sW, sKV, sX, sOut = 8, 12, 16, 20, 24
    pW1, pW2, pWO, pX, pOut, pDbg = 28, 30, 32, 34, 36, 38
    sWave, sXcd, sSlot = 40, 41, 42
    sKA, sKW, sM0A, sM0W, sCnt, sWr, sWc, sRb, sCt = 43, 44, 45, 46, 47, 48, 49, 50, 51
    t0, t1, t2, t3, t4, t5 = 52, 53, 54, 55, 56, 57
    sPf = 58; sN = 6; sT = [3, 47, 51]
    sSo, sM0k, sCntA, sRing, sMb, sQO, sHead, sPub = 94, 95, 96, 97, 98, 99, 100, 101
    sAw, sArd, sCs, sTile = 96, 97, 98, 101
    sM0g, sRb2, sCb, sH1, sH2 = 45, 46, 48, 49, 50
    WSR = f"s[{sWS}:{sWS+3}]"
    def R(s): return f"s[{s}:{s+3}]"
    vAd, vWd, vAr, vArB, vWe1, vWo1, vWs1 = 224, 228, 232, 234, 235, 236, 237
    T = 238
    L, vL16, vDma, vFa, vFl = 250, 251, 252, 253, 254
    ST = 224; vO = 240
    Q = [0, 8]; S = [16, 32]; NM = [48, 64]; O = [80, 96]; Lr = [112, 116]; D = [120, 136]
    Kf = [152, 160]; Vf = [168, 176]; ONE = 184; WF = [188, 204]
    vCur, IDX, vW, vWe, vWo, vFa2, vX = 220, 221, 224, 228, 229, 230, 231
    vA = [222, 223, 246, 247]
    U = 232; vSig = 244; vRs2 = 244
    lab = [0]
    def flagld(areg, srdr=WSR):
        return f"buffer_load_dwordx2 v[{vFl}:{vFl+1}], {areg}, {srdr}, 0 {'offen' if areg != 'off' else ''} sc1"
    def poll(areg, first_done, srdr=WSR, val=f"s[{sN}:{sN+1}]", cmp="ne", mask=None):
        n = lab[0]; lab[0] += 1
        a(f"s_mov_b32 s{t5}, 0")
        if first_done: a(f"s_branch L_pc{n}")
        a(f"L_pl{n}:")
        a(flagld(areg, srdr))
        a("s_waitcnt vmcnt(0)")
        a(f"L_pc{n}:")
        a(f"v_cmp_{cmp}_u64 vcc, {val}, v[{vFl}:{vFl+1}]")
        a(f"s_add_u32 s{t5}, s{t5}, 1")
        if mask:
            a(f"s_and_b64 vcc, vcc, {mask}")
            a(f"s_cbranch_scc0 L_pd{n}")
        else:
            a("s_nop 0")
            a(f"s_cbranch_vccz L_pd{n}")
        a(f"s_sleep {SLP}")
        a(f"s_cmp_lt_u32 s{t5}, 0x40000")
        a(f"s_cbranch_scc1 L_pl{n}")
        a(f"L_pd{n}:")
    def publish(soff_reg, tmp):
        n = lab[0]; lab[0] += 1
        a(f"s_cmp_lg_u32 s{sWave}, 0")
        a(f"s_cbranch_scc1 L_pb{n}")
        a(f"v_mov_b32 v{tmp}, s{sN}")
        a(f"v_mov_b32 v{tmp+1}, s{sN+1}")
        a(f"buffer_store_dwordx2 v[{tmp}:{tmp+1}], off, {WSR}, s{soff_reg} sc1")
        a(f"L_pb{n}:")

    a("s_cmp_ge_u32 s2, 256")
    a("s_cbranch_scc1 L_end")
    stp(a, "start")
    a(f"s_load_dwordx2 s[{pX}:{pX+1}], s[0:1], {KA_X}")
    a(f"s_load_dwordx2 s[6:7], s[0:1], {KA_WQKV}")
    a(f"s_load_dwordx4 s[{pW1}:{pW1+3}], s[0:1], {KA_W1}")
    a(f"s_load_dwordx2 s[4:5], s[0:1], {KA_WS}")
    a(f"s_load_dwordx2 s[{pWO}:{pWO+1}], s[0:1], {KA_WO}")
    a(f"s_load_dwordx4 s[{pOut}:{pOut+3}], s[0:1], {KA_OUT}")
    a("s_memrealtime s[92:93]")
    a(f"v_lshrrev_b32 v{T}, 6, v0")
    a(f"v_and_b32 v{L}, 63, v0")
    a(f"v_readfirstlane_b32 s{sWave}, v{T}")
    a(f"v_lshlrev_b32 v{vL16}, 4, v{L}")
    a(f"s_and_b32 s{sXcd}, s2, 7")
    if STAMP: a(f"s_mov_b32 s59, s{sWave}")
    a(f"s_lshr_b32 s{sSlot}, s2, 3")
    a(f"s_and_b32 s{sRb}, s{sSlot}, 7")
    a(f"s_lshr_b32 s{sCt}, s{sSlot}, 3")
    a(f"s_lshr_b32 s{sWr}, s{sWave}, 1")
    a(f"s_and_b32 s{sWc}, s{sWave}, 1")
    a(f"v_bfe_u32 v3, v{L}, 2, 1")
    a(f"v_lshl_add_u32 v3, v{T}, 1, v3")
    a(f"s_lshl_b32 s{t0}, s2, 3")
    a(f"v_add_u32 v3, s{t0}, v3")
    a(f"v_and_b32 v4, 3, v{L}")
    a(f"v_lshrrev_b32 v5, 3, v{L}")
    a("v_lshlrev_b32 v6, 11, v3")
    a("v_lshl_add_u32 v6, v5, 6, v6")
    a("v_lshl_add_u32 v6, v4, 4, v6")
    a(f"v_lshrrev_b32 v{T+1}, 4, v{L}")
    a(f"v_and_b32 v{T+2}, 7, v{L}")
    a(f"v_xor_b32 v{T+2}, v{T+2}, v{T+1}")
    a(f"v_lshlrev_b32 v{T+2}, 4, v{T+2}")
    a(f"v_lshl_add_u32 v{T+2}, v5, 11, v{T+2}")
    a(f"s_lshl_b32 s{t0}, s{sRb}, 19")
    a(f"s_lshl_b32 s{t1}, s{sWave}, 17")
    a(f"s_add_u32 s{t0}, s{t0}, s{t1}")
    a(f"v_add_u32 v{vAd}, s{t0}, v{T+2}")
    a(f"v_xor_b32 v{vAd+1}, 64, v{vAd}")
    a(f"v_add_u32 v{vAd+3}, {3*15360}, v{vAd+1}")
    a(f"v_add_u32 v{vAd+1}, 15360, v{vAd+1}")
    a(f"v_add_u32 v{vAd+2}, {2*15360}, v{vAd}")
    a(f"s_lshl_b32 s{sM0A}, s{sWave}, 13")
    a(f"s_lshl_b32 s{sM0W}, s{sWave}, 12")
    a(f"s_add_u32 s{sM0W}, s{sM0W}, {LDS_W1}")
    a(f"s_and_b32 s{sCnt}, s{sRb}, {ROT - 1}")
    a(f"s_mul_i32 s{sCnt}, s{sCnt}, {8 // ROT}")
    a(f"s_lshl_b32 s{sKA}, s{sCnt}, 8")
    ftp, gb, jj, qc = T + 3, T + 4, T + 5, 4
    a(f"v_lshrrev_b32 v{ftp}, 5, v{L}")
    a(f"v_bfe_u32 v{gb}, v{L}, 4, 1")
    a(f"v_bfe_u32 v{jj}, v{L}, 2, 2")
    a(f"s_lshl_b32 s{t0}, s{sWr}, 4")
    a(f"s_lshl_b32 s{t1}, s{sWc}, 2")
    a(f"s_add_u32 s{t0}, s{t0}, s{t1}")
    a(f"v_lshl_add_u32 v{T+6}, v{gb}, 3, v{jj}")
    a(f"v_add_u32 v{T+6}, s{t0}, v{T+6}")
    a(f"v_lshlrev_b32 v{T+7}, 1, v{gb}")
    a(f"v_xor_b32 v{T+7}, v{T+7}, v{qc}")
    a(f"v_lshlrev_b32 v{T+7}, 4, v{T+7}")
    a(f"v_lshl_add_u32 v{T+7}, v{ftp}, 6, v{T+7}")
    a(f"v_xor_b32 v{T+8}, v{gb}, v{qc}")
    a(f"v_lshlrev_b32 v{T+8}, 4, v{T+8}")
    a(f"s_cmp_lt_u32 s{sCt}, 2")
    a("s_cbranch_scc0 L_g1_qkv")

    def code_addr(r):
        n = lab[0]; lab[0] += 1
        a(f"s_getpc_b64 s[{t0}:{t1}]")
        a(f"L_pc_{n}:")
        a(f"s_sub_u32 s{t0}, s{t0}, L_pc_{n}-{name}")
        a(f"s_subb_u32 s{t1}, s{t1}, 0")
        a(f"s_lshl_b32 s{t2}, s{sSlot}, 2")
        a(f"s_add_u32 s{t2}, s{t2}, s{sWave}")
        a(f"s_and_b32 s{t2}, s{t2}, 63")
        a(f"s_lshl_b32 s{t2}, s{t2}, 10")
        a(f"v_add_u32 v{r}, s{t2}, v{vL16}")
        a(f"v_min_u32 v{r}, L_code_end-{name}-16, v{r}")
        a(f"v_mov_b32 v{r+1}, s{t1}")
        a(f"v_add_co_u32 v{r}, vcc, s{t0}, v{r}")
        a("s_nop 1")
        a(f"v_addc_co_u32 v{r+1}, vcc, 0, v{r+1}, vcc")
    def code_pf(r):
        code_addr(r)
        a(f"global_load_dwordx4 a[120:123], v[{r}:{r+1}], off")
    def kvdma(q):
        return f"buffer_load_dwordx4 v{vDma}, {R(sKV)}, s{sSo} offen offset:{(q&3)*1024} {SC} lds"
    so_wrap = f"s_and_b32 s{sSo}, s{sSo}, {SZ_KV - 1}"
    def kv_groups(h0, h1):
        g = []
        for c in range(h0, h1):
            for q in range(4):
                pre = [f"s_add_u32 m0, s{sM0k}, {(c % 6)*16384}", "s_nop 0"] if q == 0 else []
                post = [f"s_add_u32 s{sSo}, s{sSo}, 16384"] if (q == 3) else []
                if q == 3 and c & 1: post.append(so_wrap)
                g.append(pre + [kvdma(q)] + post)
        return g
    def at_load_groups():
        g = kv_groups(0, 2)
        g[4:4] = [[f"buffer_load_dwordx4 v[{Q[x]+4*h}:{Q[x]+4*h+3}], v{vL16}, {WSR}, s{sQO} offen offset:{x*2048+h*1024} {SC}"]
                  for x in range(2) for h in range(2)]
        return g
    def at_init():
        a(f"v_mov_b32 v{vCur}, v{vL16}")
        for x in range(2): a(f"v_mfma_f32_32x32x16_bf16 v[{O[x]}:{O[x]+15}], a[128:131], a[128:131], 0")
        a(f"v_and_b32 v{U}, 7, v{L}")
        a(f"v_cmp_eq_u32 vcc, 0, v{U}")
        a(f"v_cmp_eq_u32 s[88:89], 4, v{U}")
        a(f"v_mov_b32 v{U+2}, 0x3f803f80")
        a(f"v_mov_b32 v{IDX}, 0xdddddddd")
        a(f"v_cndmask_b32 v{ONE}, 0, v{U+2}, vcc")
        a(f"v_cndmask_b32 v{ONE+2}, 0, v{U+2}, s[88:89]")
        a(f"v_mov_b32 v{ONE+1}, v{ONE}")
        a(f"v_mov_b32 v{ONE+3}, v{ONE+2}")
        a(f"s_add_u32 s{sMb}, s{sM0k}, 65536")
        a(f"s_mov_b32 s{sRing}, 0")
        for i in range(0, 8, 2): a(f"v_mov_b64 v[{Lr[0]+i}:{Lr[0]+i+1}], 0")
        for i in range(0, 8, 2): a(f"v_mov_b64 v[{D[1]+8+i}:{D[1]+9+i}], 0")
        for i in range(0, 4, 2): a(f"v_mov_b64 v[{Vf[1]+4+i}:{Vf[1]+5+i}], 0")
        a(f"s_lshr_b32 s{t0}, s{sXcd}, 1")
        a(f"s_lshl_b32 s{t0}, s{t0}, 2")
        a(f"s_and_b32 s{t1}, s{sSlot}, 3")
        a(f"s_add_u32 s{sRb2}, s{t0}, s{t1}")
        if G2MAP == 1:
            a(f"s_lshl_b32 s{t0}, s{sXcd}, 1")
            a(f"s_and_b32 s{t1}, s{sSlot}, 1")
            a(f"s_add_u32 s{sRb2}, s{t0}, s{t1}")
        if G2MAP == 2:
            a(f"s_lshr_b32 s{t0}, s{sXcd}, 2")
            a(f"s_lshl_b32 s{t0}, s{t0}, 3")
            a(f"s_and_b32 s{t1}, s{sSlot}, 7")
            a(f"s_add_u32 s{sRb2}, s{t0}, s{t1}")
        a(f"s_lshr_b32 s{t0}, s{sRb2}, 1")
        a(f"s_lshl_b32 s{t0}, s{t0}, 7")
        a(f"s_add_u32 s{t0}, s{t0}, {WS_FL + FH}")
        a(f"v_and_b32 v{U}, 15, v{L}")
        a(f"v_lshl_add_u32 v{vFa2}, v{U}, 3, s{t0}")
        srd(a, sW, pW2, 0, 3584 * 2048)
    def g2_setup():
        a(f"s_and_b32 s{t0}, s{sXcd}, 1")
        a(f"s_lshl_b32 s{t0}, s{t0}, 3")
        a(f"s_lshr_b32 s{t1}, s{sSlot}, 2")
        a(f"s_add_u32 s{sCb}, s{t0}, s{t1}")
        if G2MAP == 1: a(f"s_lshr_b32 s{sCb}, s{sSlot}, 1")
        if G2MAP == 2:
            a(f"s_and_b32 s{t0}, s{sXcd}, 3")
            a(f"s_lshl_b32 s{t0}, s{t0}, 2")
            a(f"s_lshr_b32 s{t1}, s{sSlot}, 3")
            a(f"s_add_u32 s{sCb}, s{t0}, s{t1}")
        a(f"s_lshl_b32 s{t0}, s{sRb2}, 13")
        for pi in range(4):
            a(f"s_add_u32 s{t1}, s{sWave}, {pi + 1}")
            a(f"s_and_b32 s{t1}, s{t1}, 3")
            a(f"s_lshl_b32 s{t1}, s{t1}, 11")
            a(f"s_add_u32 s{t1}, s{t1}, s{t0}")
            a(f"v_add_u32 v{vA[pi]}, s{t1}, v{vL16}")
        a(f"v_lshrrev_b32 v{U}, 5, v{L}")
        a(f"v_bfe_u32 v{U+1}, v{L}, 4, 1")
        a(f"v_bfe_u32 v{U+2}, v{L}, 2, 2")
        a(f"v_and_b32 v{U+3}, 3, v{L}")
        a(f"v_lshl_add_u32 v{vW}, v{U+1}, 2, v{U+2}")
        a(f"v_lshlrev_b32 v{vW}, 11, v{vW}")
        a(f"v_lshlrev_b32 v{vW+1}, 1, v{U+1}")
        a(f"v_xor_b32 v{vW+1}, v{vW+1}, v{U+3}")
        a(f"v_lshl_add_u32 v{vW}, v{vW+1}, 4, v{vW}")
        a(f"v_lshl_add_u32 v{vW}, v{U}, 6, v{vW}")
        a(f"s_lshl_b32 s{t0}, s{sCb}, 7")
        a(f"v_add_u32 v{vW}, s{t0}, v{vW}")
        for pc in range(1, 4): a(f"v_add_u32 v{vW+pc}, {pc*(16384-1024)}, v{vW}")
        a(f"s_lshl_b32 s{sM0g}, s{sWave}, 14")
        a(f"s_add_u32 s{sM0g}, s{sM0g}, {LDS_W1}")
        a(f"v_lshl_add_u32 v{vWe}, v{U}, 10, s{sM0g}")
        a(f"v_lshl_add_u32 v{vWe}, v{U+1}, 8, v{vWe}")
        a(f"v_lshl_add_u32 v{vWe}, v{U+2}, 6, v{vWe}")
        a(f"v_lshl_add_u32 v{vWe}, v{U+1}, 5, v{vWe}")
        a(f"v_lshl_add_u32 v{vWe}, v{U+3}, 3, v{vWe}")
        a(f"v_xor_b32 v{vWo}, 32, v{vWe}")
        a(f"s_and_b32 s{t0}, s{sSlot}, 7")
        a(f"s_lshl_b32 s{t0}, s{t0}, 2")
        a(f"s_add_u32 s{t0}, s{t0}, s{sWave}")
        a(f"s_lshl_b32 s{t0}, s{t0}, 8")
        a(f"s_add_u32 s{t0}, s{t0}, {WS_STAT + 16384}")
        a(f"v_and_b32 v{U+1}, 31, v{L}")
        a(f"v_lshlrev_b32 v{U+1}, 2, v{U+1}")
        for x in range(2):
            a(f"buffer_load_dword v{vSig+x}, v{U+1}, {WSR}, s{t0} offen offset:{x*128} sc1")
        if CPF: code_addr(248)
        a(f"s_mul_i32 s{sKA}, s{sWave}, {(28 if KQ else 1)*131072}")
        a(f"s_add_u32 s{sKA}, s{sKA}, {WS_A2 + 32*131072}")
        a(f"s_mul_i32 s{sKW}, s{sWave}, {(28 if KQ else 1)*65536}")
    def hstore(u, data):
        if u < 8:
            return [f"buffer_store_dwordx2 {data}, v{vO+2 + (u>>2)}, {R(sOut)}, s{sH2} offen offset:{(u&3)*1024} {SC}"]
        p, tt = divmod(u - 8, 8)
        return [f"buffer_store_dwordx4 {data}, v{vO + (tt>>2)}, {R(sOut)}, s{(sH1, t3, t4)[p]} offen offset:{(tt&3)*1024} {SC}"]
    direct = set(range(8, 8 + ND))
    parked = [u for u in range(32) if u not in direct]
    ool = []

    def g1(kind):
        ffn = kind == "ffn"
        NB = 7 if ffn else 6
        RS = 7168 if ffn else 6144
        nW = 4 if ffn else 3
        NF = 8 + NB
        def fr(buf, i): return buf * NF * 4 + i * 4
        def acc(tt, ft): return (ft * 8 + tt) * 4
        if ffn:
            a(f"s_mul_i32 s{t0}, s{sXcd}, 896")
            a(f"s_mul_i32 s{t1}, s{sCt}, 384")
            a(f"s_add_u32 s{t1}, s{t1}, s{t0}")
            a(f"s_lshl_b32 s{t2}, s{sCt}, 6")
            a(f"s_add_u32 s{t2}, s{t2}, s{t0}")
            a(f"s_add_u32 s{t2}, s{t2}, {768 + 4096 - 3072}")
            qstep = 128
        else:
            a(f"s_lshl_b32 s{t1}, s{sXcd}, 1")
            a(f"s_add_u32 s{t1}, s{t1}, s{sCt}")
            a(f"s_sub_u32 s{t1}, s{t1}, 2")
            a(f"s_lshl_b32 s{t1}, s{t1}, 7")
            qstep = 2048
        a(f"s_mul_i32 s{sKW}, s{sCnt}, {128 * RS}")
        a(f"v_mul_u32_u24 v{T+6}, {RS}, v{T+6}")
        a(f"v_add3_u32 v{T+7}, v{T+7}, v{T+6}, s{t1}")
        for q in range(3):
            a(f"v_add_u32 v{vWd+q}, {4096 + q*qstep - q*1024}, v{T+7}")
        if ffn:
            a(f"v_add3_u32 v{T+8}, v{T+8}, v{T+6}, s{t2}")
            a(f"v_lshlrev_b32 v{T+9}, 30, v{ftp}")
            a(f"v_or_b32 v{vWd+3}, v{T+8}, v{T+9}")
        oplog = []
        def wdma_list(stage, pol=WNT):
            l = [[f"s_add_u32 m0, s{sM0W}, {(stage & 3)*16384}"]]
            for q in range(nW):
                l.append([f"buffer_load_dwordx4 v{vWd+q}, {R(sW)}, s{sKW} offen offset:{q*1024} {pol} lds"])
            l.append([f"s_add_u32 s{sKW}, s{sKW}, {32*RS}"])
            if stage & 3 == 3: l.append([f"s_cmp_eq_u32 s{sKW}, {1024 * RS}", f"s_cselect_b32 s{sKW}, 0, s{sKW}"])
            oplog.extend([f"W{stage}"] * nW)
            return l
        def adma_half(Dn, h):
            if Dn < 3: l = [[f"s_add_u32 m0, s{sM0A}, {Dn*32768 + h*4096}"]]
            else: l = [[f"s_add_u32 m0, s{sAw}, {h*4096}"]]
            for p in range(4):
                l.append([f"buffer_load_dwordx4 v{vAd+p}, {R(sKV if h else sX)}, s{sKA} offen offset:{p*1024} {XNT} lds"])
            if h:
                l.append([f"s_add_u32 s{sKA}, s{sKA}, 128"])
                if Dn & 1: l.append([f"s_and_b32 s{sKA}, s{sKA}, 2047"])
            oplog.extend([f"A{Dn}"] * 4)
            return l
        def need(*tags):
            idx = max(i for i, t in enumerate(oplog) if t in tags)
            return len(oplog) - 1 - idx
        def flat(l):
            out = []
            for x in l:
                out += x
                if x[-1].startswith("s_add_u32 m0"): out.append("s_nop 0")
            return out
        for i in range(4): a(f"v_mov_b32 v{12+i}, 0")
        z = [f"v_mfma_f32_32x32x16_bf16 a[{128+16*i}:{143+16*i}], v[12:15], v[12:15], 0" for i in range(8) if i != 2]
        z += [f"v_mfma_f32_32x32x16_bf16 v[{16*i}:{16*i+15}], v[12:15], v[12:15], 0" for i in range(1, 2 * NB)]
        k = 0
        for r in (sX, sKV, sW): a(f"s_mov_b32 s{r+3}, 0x00020000")
        a(f"s_mov_b32 s{sX+2}, {4 * MB}")
        a(f"s_mov_b32 s{sKV+2}, {4 * MB - 65536}")
        a(f"s_mov_b32 s{sW+2}, {1024 * RS + 4096}")
        a("s_waitcnt lgkmcnt(0)")
        stp(a, "p1")
        first = [[f"s_mov_b32 s{sX}, s{pX}", f"s_mov_b32 s{sX+1}, s{pX+1}"]] + adma_half(0, 0)
        first += [[f"s_sub_u32 s{sW}, s{pW1 if ffn else 6}, 4096", f"s_subb_u32 s{sW+1}, s{(pW1 if ffn else 6)+1}, 0"]] + wdma_list(0, PNT)
        first += [[f"s_add_u32 s{sKV}, s{pX}, 65536", f"s_addc_u32 s{sKV+1}, s{pX+1}, 0"]] + adma_half(0, 1)
        for x in flat(first):
            a(x)
            if x.startswith("buffer_") and k < len(z): a(z[k]); k += 1
        srd(a, 88, pDbg, 248, 8)
        a(f"s_or_b32 s{t0}, s2, s{sWave}")
        a(f"s_cbranch_scc1 L_nonon_{kind}")
        a("s_or_b32 s92, s92, 1")
        a("v_mov_b32 v8, s92")
        a("v_mov_b32 v9, s93")
        a("buffer_store_dwordx2 v[8:9], off, s[88:91], 0 sc1")
        a(f"L_nonon_{kind}:")
        pre = Asm(); sv0 = a.lines; a.lines = pre.lines
        stp(a, "p2")
        srd(a, sWS, 4, 0, WS_END)
        a(f"v_and_b32 v{T+9}, 15, v{L}")
        a(f"v_lshrrev_b32 v{T+10}, 1, v{T+9}")
        a(f"v_xor_b32 v{T+10}, v{T+10}, v{T+1}")
        a(f"v_lshlrev_b32 v{T+10}, 4, v{T+10}")
        a(f"v_lshl_add_u32 v{T+10}, v{T+9}, 7, v{T+10}")
        a(f"s_lshl_b32 s{t0}, s{sWr}, 14")
        a(f"v_add_u32 v{vArB}, s{t0}, v{T+10}")
        a(f"v_mov_b32 v{vAr}, v{vArB}")
        a(f"v_xor_b32 v{vAr+1}, 64, v{vArB}")
        a(f"s_mov_b32 s{sArd}, 0")
        a(f"v_lshlrev_b32 v{T+10}, 13, v{ftp}")
        a(f"v_lshl_add_u32 v{T+10}, v{gb}, 8, v{T+10}")
        a(f"v_lshl_add_u32 v{T+10}, v{jj}, 6, v{T+10}")
        a(f"v_add_u32 v{T+10}, {LDS_W1}, v{T+10}")
        a(f"v_lshl_add_u32 v{T+11}, v{gb}, 5, v{T+10}")
        a(f"v_lshl_add_u32 v{T+11}, v{qc}, 3, v{T+11}")
        a(f"s_mul_i32 s{t0}, s{sWc}, {1536 if ffn else 512}")
        a(f"v_add_u32 v{vWe1}, s{t0}, v{T+11}")
        a(f"v_xor_b32 v{vWo1}, 32, v{vWe1}")
        if ffn:
            a(f"v_and_b32 v{T+11}, 1, v{qc}")
            a(f"v_lshlrev_b32 v{T+11}, 1, v{T+11}")
            a(f"v_add_u32 v{T+11}, s{sWc}, v{T+11}")
            a(f"v_xor_b32 v{T+11}, v{T+11}, v{gb}")
            a(f"v_lshl_add_u32 v{T+11}, v{T+11}, 4, v{T+10}")
            a(f"v_lshrrev_b32 v{T+10}, 1, v{qc}")
            a(f"v_lshl_add_u32 v{vWs1}, v{T+10}, 3, v{T+11}")
        a(f"v_mov_b32 v{T+10}, 0x3f803f80")
        for i in range(4): a(f"v_accvgpr_write_b32 a{124+i}, v{T+10}")
        a(f"s_lshl_b32 s{sTile}, s{sXcd}, 2")
        a(f"s_add_u32 s{sTile}, s{sTile}, s{sCt}")
        a(f"s_and_b32 s{t0}, s{sCt}, 1")
        a(f"s_lshl_b32 s{t0}, s{t0}, 1")
        a(f"s_lshl_b32 s{sHead}, s{sXcd}, 2")
        a(f"s_add_u32 s{sHead}, s{sHead}, s{t0}")
        if ffn: a(f"s_add_u32 s{sHead}, s{sHead}, 1")
        a(f"s_lshl_b32 s{t0}, s{sRb}, 2")
        a(f"s_add_u32 s{t0}, s{t0}, s{sWave}")
        a(f"s_lshl_b32 s{t0}, s{t0}, 12")
        a(f"s_lshl_b32 s{t1}, s{sHead}, 17")
        a(f"s_add_u32 s{sQO}, s{t0}, s{t1}")
        a(f"s_add_u32 s{sQO}, s{sQO}, {WS_Q}")
        a(f"s_lshl_b32 s{sSo}, s{sRb}, 15")
        a(f"s_lshl_b32 s{sM0k}, s{sWave}, 12")
        a(f"v_add_u32 v{vDma}, s{sM0k}, v{vL16}")
        a(f"s_lshr_b32 s{t0}, s{sHead}, 1")
        a(f"s_lshl_b32 s{t0}, s{t0}, 7")
        a(f"v_and_b32 v{vFa}, 7, v{L}")
        a(f"v_lshl_add_u32 v{vFa}, v{vFa}, 3, s{t0}")
        srd(a, sOut, pW2, 0, 3584 * 2048)
        a(f"s_lshl_b32 s{sPf}, s2, 2")
        a(f"s_add_u32 s{sPf}, s{sPf}, s{sWave}")
        a(f"s_lshl_b32 s{sPf}, s{sPf}, 10")
        a(f"v_and_b32 v{T+8}, 0x3b, v{L}")
        a(f"v_min_u32 v{T+8}, 1, v{T+8}")
        a(f"v_lshlrev_b32 v{T+8}, 30, v{T+8}")
        a(f"v_lshl_add_u32 v{T+8}, v3, 2, v{T+8}")
        a(f"v_mov_b32 v{T+3}, 0")
        a(f"v_mov_b32 v{T+4}, 0")
        a(f"v_mov_b32 v{T+9}, v6")
        a(f"s_lshl_b32 s{t0}, s{sXcd}, 1")
        a(f"s_add_u32 s{t0}, s{t0}, s{sCt}")
        if ffn:
            a(f"s_lshl_b32 s{t0}, s{t0}, 3")
            a(f"s_lshl_b32 s{t1}, s{sRb}, 7")
            a(f"s_add_u32 s{t0}, s{t0}, s{t1}")
            a(f"s_add_u32 s92, s{t0}, {WS_FL + FH}")
        else:
            a(f"s_sub_u32 s{sCt}, s{t0}, 2")
            a(f"s_lshl_b32 s{t0}, s{sCt}, 7")
            a(f"s_lshl_b32 s{t1}, s{sRb}, 3")
            a(f"s_add_u32 s92, s{t0}, s{t1}")
        a(f"s_lshl_b32 s{t0}, s{sRb}, 8")
        a(f"s_lshl_b32 s93, s{sHead}, 3")
        a(f"s_add_u32 s93, s93, s{t0}")
        a(f"s_add_u32 s93, s93, {WS_FL + FO}")

        a.lines = sv0
        xld = [[f"buffer_load_dwordx4 a[{160+4*i}:{163+4*i}], v6, {R(sX)}, 0 offen offset:{i*512}"] for i in range(4)]
        if PRO == 2:
            more = wdma_list(1, PNT)
            xld = [[z[0].replace(", v6,", f", v{T+9},")] for z in xld]
        elif PRO:
            more = wdma_list(1, PNT) + xld
            oplog.extend(["x"] * 4)
        elif XPOS == 0:
            oplog.extend(["x"] * 4)
            more = xld + wdma_list(1, PNT) + wdma_list(2, PNT) + adma_half(1, 0) + adma_half(1, 1)
        else:
            more = wdma_list(1, PNT) + wdma_list(2, PNT) + adma_half(1, 0) + adma_half(1, 1) + xld
            oplog.extend(["x"] * 4)
        nmore = len(more)
        gap = len(pre.lines) / (nmore + 1)
        for i, x in enumerate(pre.lines):
            a.lines.append(x)
            nxt = pre.lines[i + 1].op if i + 1 < len(pre.lines) else ""
            if nxt in ("s_addc_u32", "s_subb_u32"): continue
            if i % 5 == 4 and k < len(z): a(z[k]); k += 1
            if more and i + 1 >= gap * (nmore - len(more)): a.extend(more.pop(0))
        a.extend(flat(more))
        for x in z[k:]: a(x)
        if CPF == 2 and PRO == 2: code_addr(vFl)
        elif CPF == 2:
            code_pf(vFl); oplog.append("c")
        a("s_nop 1")
        a(f"v_mfma_f32_32x32x16_bf16 v[0:15], a[128:131], a[128:131], 0")
        st_ = Asm(); a.lines = st_.lines
        SU, SQ, TM = T + 3, T + 4, T + 5
        for j in range(16):
            r = T + 6 + (j & 1)
            a(f"v_accvgpr_read_b32 v{r}, a{160+j}")
            a(f"v_dot2c_f32_bf16 v{SU}, v{r}, v{T+10}")
            a(f"v_dot2c_f32_bf16 v{SQ}, v{r}, v{r}")
        a("s_nop 1")
        xreduce(a, SU, TM)
        xreduce(a, SQ, TM)
        a(f"v_mul_f32 v{SU}, {f2u(-1.0/1024):#x}, v{SU}")
        a(f"v_mul_f32 v{SQ}, {f2u(1.0/1024):#x}, v{SQ}")
        a(f"v_fma_f32 v{SQ}, -v{SU}, v{SU}, v{SQ}")
        a(f"v_max_f32 v{SQ}, 0, v{SQ}")
        bf16round(a, SU)
        bf16round(a, SQ)
        a(f"v_add_f32 v{SQ}, {f2u(1e-5):#x}, v{SQ}")
        bf16round(a, SQ)
        a(f"v_sqrt_f32 v{SQ}, v{SQ}")
        a(f"s_mov_b32 s{t2}, {WS_STAT}")
        bf16round(a, SQ)
        a(f"v_rcp_f32 v{TM}, v{SQ}")
        a(f"s_mov_b32 s{t3}, {WS_STAT + 8192}")
        a(f"s_mov_b32 s{t4}, {WS_STAT + 16384}")
        a(f"buffer_store_dword v{SU}, v{T+8}, {WSR}, s{t2} offen sc1")
        a(f"buffer_store_dword v{TM}, v{T+8}, {WSR}, s{t3} offen sc1")
        a(f"buffer_store_dword v{SQ}, v{T+8}, {WSR}, s{t4} offen sc1")
        a.lines = sv0
        stl = []
        for x in st_.lines:
            if stl and stl[-1][-1].startswith("s_nop"): stl[-1].append(x.text)
            else: stl.append([x.text])

        def read_list(step):
            buf = step & 1; so = (step & 3) * 16384
            rb = []
            for ft in range(NB):
                r = fr(buf, 8 + ft)
                if ffn and ft == 6: v = vWs1; off = 3072
                else:
                    v = vWo1 if ft & 1 else vWe1
                    off = (ft >> 1) * (512 if ffn else 1024)
                rb.append([f"ds_read_b64_tr_b16 a[{r+2*rd}:{r+2*rd+1}], v{v} offset:{so + rd*4096 + off}" for rd in range(2)])
            ra = [f"ds_read_b128 a[{fr(buf, tt)}:{fr(buf, tt)+3}], v{vAr + (step & 1)} offset:{tt*2048}" for tt in range(8)]
            l = rb[0] + ra
            for x in rb[1:]: l += x
            return l
        def mfmas(buf):
            l = []
            for ft in range(NB):
                for tt in (range(8) if ft % 2 == 0 else range(7, -1, -1)):
                    c = acc(tt, ft); w = fr(buf, 8 + ft); x = fr(buf, tt)
                    if (not ffn) and ft >= 4: w, x = x, w
                    l.append(f"v_mfma_f32_16x16x32_bf16 v[{c}:{c+3}], a[{w}:{w+3}], a[{x}:{x+3}], v[{c}:{c+3}]")
            return l
        ard_adv = [[f"s_add_u32 s{sAw}, s{sArd}, s{sM0A}"], [f"s_add_u32 s{sArd}, s{sArd}, 32768"], [f"s_cmp_eq_u32 s{sArd}, 98304", f"s_cselect_b32 s{sArd}, 0, s{sArd}"]]
        ard_set = [f"v_add_u32 v{vAr}, s{sArd}, v{vArB}", f"v_xor_b32 v{vAr+1}, 64, v{vAr}"]
        stp(a, "p5")
        a(f"s_waitcnt vmcnt({need('W0', 'A0')})")
        a("s_barrier")
        stp(a, "p6")
        a.extend(read_list(0))
        if PRO == 2: a("s_waitcnt lgkmcnt(0)")
        else:
            a(f"s_waitcnt vmcnt({need('W1')}) lgkmcnt(0)")
            a("s_barrier")
        def step(k4, dl, vm, reads=True, extra=(), cs=False, span=DMAF, tail=()):
            m = mfmas(k4 & 1)
            if cs:
                m = [f"v_mfma_f32_16x16x32_bf16 a[{128+4*ft}:{131+4*ft}], a[{fr(k4 & 1, 8 + ft)}:{fr(k4 & 1, 8 + ft)+3}], a[124:127], a[{128+4*ft}:{131+4*ft}]"
                     for ft in range(NB)] + m
            n = len(m)
            sr = []
            if reads:
                rl = read_list(k4 + 1)
                sr = [((i * int(n * RDF)) // len(rl), x) for i, x in enumerate(rl)]
            sd = [((i * int(n * span)) // len(dl), x) for i, x in enumerate(dl)]
            if reads and k4 % 2 == 0:
                sd += [(n - 12 + 2 * i, x) for i, x in enumerate(ard_adv + ard_set)]
            a.extend(sched(m, [sd, sr, list(extra)], BUD if not extra and span == DMAF else 8))
            a.extend(tail)
            if vm is not None:
                a(f"s_waitcnt vmcnt({vm}) lgkmcnt(0)")
                if not (XB and k4 & 1): a("s_barrier")
        def std_dl(k):
            return wdma_list(k + 4) + (adma_half((k + 5) // 2, 0) if k & 1 else adma_half((k + 4) // 2, 1))
        def std_need(k):
            return need(f"W{k+2}", f"A{(k+2)//2}")
        stp(a, "g1loop")
        stt = [x.text for x in st_.lines]
        if PRO == 2:
            m = [f"v_mfma_f32_16x16x32_bf16 a[{128+4*ft}:{131+4*ft}], a[{fr(0, 8 + ft)}:{fr(0, 8 + ft)+3}], a[124:127], a[{128+4*ft}:{131+4*ft}]"
                 for ft in range(NB)] + mfmas(0)
            hf = len(m) // 2
            rl = read_list(1); ra = [z for z in rl if "b128" in z]; rw = [z for z in rl if "b128" not in z]
            dl = wdma_list(2, PNT) + adma_half(1, 0) + adma_half(1, 1)
            a.extend(sched(m[:hf], [[((i * (hf - 2)) // len(dl), x) for i, x in enumerate(dl)], [(2 + 3 * i, x) for i, x in enumerate(ra)]], 8))
            a(f"s_waitcnt vmcnt({need('W1')})")
            a("s_barrier")
            cl = [[f"global_load_dwordx4 a[120:123], v[{vFl}:{vFl+1}], off"]] if CPF == 2 else []
            oplog.extend(["c"] * len(cl) + ["x"] * 4)
            dl = cl + xld + wdma_list(3, PNT) + ard_adv + [[z] for z in ard_set]
            n2 = len(m) - hf
            a.extend(sched(m[hf:], [[((i * (n2 - 2)) // len(dl), x) for i, x in enumerate(dl)], [(i + i // 2, x) for i, x in enumerate(rw)]], 8))
            a(f"s_waitcnt vmcnt({std_need(0)}) lgkmcnt(0)")
            a("s_barrier")
            stp(a, "k1")
            dl = adma_half(2, 0) + adma_half(2, 1) + wdma_list(4) + wdma_list(5)
            stt = [f"s_waitcnt vmcnt({need('x')})"] + stt
            oplog.extend(["st"] * 3)
            step(1, dl, std_need(1), cs=True, span=0.85, tail=stt)
        else:
            dl = wdma_list(3, PNT) + adma_half(2, 0) + adma_half(2, 1) if not PRO else \
                 wdma_list(2, PNT) + adma_half(1, 0) + adma_half(1, 1) + wdma_list(3, PNT)
            stt = [f"s_waitcnt vmcnt({need('x')})"] + stt
            if STAMP and "k0a" in STAMPS:
                i_ = STAMPS.index("k0a"); tn = 's_memtime' if STAMP == 2 else 's_memrealtime'
                stt = [f"{tn} s[{60+2*i_}:{61+2*i_}]"] + stt + [f"{tn} s[{62+2*i_}:{63+2*i_}]"]
            oplog.extend(["st"] * 3)
            step(0, dl, std_need(0), cs=True, span=0.85, tail=stt)
            stp(a, "k1")
            dl = wdma_list(4) + wdma_list(5) + adma_half(3, 0) if not PRO else adma_half(2, 0) + adma_half(2, 1) + wdma_list(4) + wdma_list(5); step(1, dl, std_need(1), cs=True, span=0.85)
        stp(a, "k2")
        n1 = 9 * NB - 4
        dl = std_dl(2) if not PRO else wdma_list(6) + adma_half(3, 0) + adma_half(3, 1)
        step(2, dl, std_need(2), cs=True, span=0.75 if PRO else DMAF)
        e = [f"s_lshl_b32 s{t0}, s{sTile}, 13", f"s_lshl_b32 s{t1}, s{sRb}, 10", f"s_add_u32 s{t0}, s{t0}, s{t1}", f"s_mul_i32 s{t1}, s{sWc}, {NB*64}",
             f"s_add_u32 s{t0}, s{t0}, s{t1}", f"s_add_u32 s{t0}, s{t0}, {WS_CS}", f"v_and_b32 v{T}, 15, v{L}", f"v_or_b32 v{T}, s{sWr}, v{T}",
             f"v_lshlrev_b32 v{T}, 27, v{T}", f"v_and_b32 v{T+1}, 48, v{L}", f"v_or_b32 v{T}, v{T}, v{T+1}", f"s_mov_b32 s{sCnt}, 6"]
        stp(a, "k3")
        e += [flagld("off", "s[88:91]")]
        e += [f"buffer_store_dwordx4 a[{128+4*ft}:{131+4*ft}], v{T}, {WSR}, s{t0} offen offset:{ft*64} sc1" for ft in range(NB)]
        dl = std_dl(3); step(3, dl, std_need(3), cs=True, extra=[(12 + 2 * i, x) for i, x in enumerate(e)])
        stp(a, "h6")
        a(".p2align 6")
        a(f"L_g1_{kind}_loop:")
        pf = [f"buffer_load_dwordx4 a[120:123], v{vL16}, {R(sOut)}, s{sPf} offen", f"s_add_u32 s{sPf}, s{sPf}, {MB}"]
        for k4 in range(4):
            dl = std_dl(4 + k4)
            if k4 in (0, 2) and PFG1:
                dl += [[pf[0]], [pf[1]]]; oplog.append("pf")
            if k4 == 3:
                dl = [[f"s_cmp_eq_u32 s{sCnt}, 1", f"s_cselect_b32 s{sX+2}, 0, s{sX+2}"]] + dl + [[f"s_sub_u32 s{sCnt}, s{sCnt}, 1"], [f"s_bitcmp1_b32 0x3d, s{sCnt}"]]
            step(k4, dl, std_need(4 + k4))
        a(f"s_cbranch_scc0 L_g1_{kind}_loop")
        a(f"s_cmp_lg_u32 s{sCnt}, 0")
        a(f"s_cbranch_scc1 L_hk5_{kind}")
        b = Asm(); sv = a.lines; a.lines = b.lines
        a(f"L_hk5_{kind}:")
        a(f"s_cmp_lg_u32 s{sCnt}, 5")
        a(f"s_cbranch_scc1 L_hk4_{kind}")
        stp(a, "h5")
        for i in range(3): a(f"v_mfma_f32_32x32x16_bf16 a[{128+16*i}:{143+16*i}], a[176:179], a[176:179], 0")
        poll("off", True, "s[88:91]", "0", "eq")
        a(f"v_readfirstlane_b32 s{sN}, v{vFl}")
        a(f"v_readfirstlane_b32 s{sN+1}, v{vFl+1}")
        a(f"s_lshl_b32 s{t0}, s2, 5")
        a(f"s_add_u32 s{t0}, s{t0}, {WS_FL + F0}")
        publish(t0, T)
        if CPF == 1: code_pf(T + 2)
        a(f"s_branch L_g1_{kind}_loop")
        a(f"L_hk4_{kind}:")
        a(f"s_cmp_lg_u32 s{sCnt}, 4")
        a(f"s_cbranch_scc1 L_hk3_{kind}")
        a(f"s_lshl_b32 s{t0}, s{sRb}, 5")
        a(f"v_add_u32 v{T}, s{t0}, v{L}")
        a(f"s_and_b32 s{t0}, s2, 0xc7")
        a(f"v_and_b32 v{T+1}, 7, v{L}")
        a(f"v_lshl_add_u32 v{T+1}, v{T+1}, 3, s{t0}")
        a(f"v_cmp_gt_u32 vcc, 32, v{L}")
        a("s_nop 1")
        a(f"v_cndmask_b32 v{T+1}, v{T+1}, v{T}, vcc")
        a(f"v_lshlrev_b32 v{T+1}, 5, v{T+1}")
        a(f"v_add_u32 v{T+1}, {WS_FL + F0}, v{T+1}")
        a(flagld(f"v{T+1}"))
        if TPF:
            a(f"v_lshlrev_b32 v{T}, 19, v{L}")
            a(f"s_mov_b32 s{t0}, {WS_Q}")
            a(f"buffer_load_dword v{T+2}, v{T}, {WSR}, s{t0} offen")
            srd(a, 88, pOut, 0, 4 * MB)
            a(f"v_lshlrev_b32 v{T}, 16, v{L}")
            a(f"buffer_load_dword v{T+2}, v{T}, s[88:91], 0 offen")
        a(f"s_branch L_g1_{kind}_loop")
        a(f"L_hk3_{kind}:")
        a(f"s_cmp_eq_u32 s{sCnt}, 3")
        a(f"s_cbranch_scc1 L_hk3b_{kind}")
        stp(a, "h2")
        srd(a, sOut, pWO, 0, 1024 * 2048)
        a(f"s_and_b32 s{sPf}, s{sPf}, {MB - 1}")
        if CPF:
            code_addr(vFl)
            a(f"global_load_dwordx4 a[120:123], v[{vFl}:{vFl+1}], off")
        a(f"s_branch L_g1_{kind}_loop")
        a(f"L_hk3b_{kind}:")
        stp(a, "h1")
        poll(f"v{T+1}", True)
        a(f"s_lshl_b32 s{t0}, s{sWave}, 8")
        a(f"v_lshl_add_u32 v{T}, v{L}, 2, s{t0}")
        a(f"s_lshl_b32 s{t0}, s{sTile}, 13")
        a(f"s_add_u32 s{t0}, s{t0}, {WS_CS}")
        a(f"s_add_u32 s{t1}, s{t0}, 4096")
        for i in range(8):
            a(f"buffer_load_dword v{T+2+i}, v{T}, {WSR}, s{t0 if i < 4 else t1} offen offset:{(i&3)*1024} sc1")
        a(f"s_lshl_b32 s{t0}, s{sRb}, 10")
        a(f"s_add_u32 s{t0}, s{t0}, {WS_STAT}")
        a(f"s_add_u32 s{t1}, s{t0}, 8192")
        a(f"buffer_load_dword v{T+10}, v{T}, {WSR}, s{t0} offen sc1")
        a(f"buffer_load_dword v{T+11}, v{T}, {WSR}, s{t1} offen sc1")
        stp(a, "h1e")
        a(f"s_branch L_g1_{kind}_loop")
        ool.extend([x.text for x in b.lines]); a.lines = sv
        stp(a, "tail")
        adds = [f"v_add_f32 v{T+2+2*i}, v{T+2+2*i}, v{T+3+2*i}" for i in range(4)] + \
               [f"v_add_f32 v{T+2}, v{T+2}, v{T+4}", f"v_add_f32 v{T+6}, v{T+6}, v{T+8}", f"v_add_f32 v{T+2}, v{T+2}, v{T+6}",
                f"v_add_u32 v{T}, {LDS_SCR}, v{T}"]
        step(0, [], nW + 4, extra=[(2 + 3 * i, x) for i, x in enumerate(adds)])
        step(1, [], 4, extra=[(40, f"ds_write_b32 v{T}, v{T+2}"), (42, f"ds_write_b32 v{T}, v{T+10} offset:1024"), (44, f"ds_write_b32 v{T}, v{T+11} offset:2048")])
        e = Asm(); sv = a.lines; a.lines = e.lines
        if ffn:
            a(f"s_lshl_b32 s{t0}, s{sRb}, 14")
            a(f"s_lshl_b32 s{t1}, s{sWr}, 13")
            a(f"s_add_u32 s{t0}, s{t0}, s{t1}")
            a(f"v_add_u32 v{vO}, s{t0}, v{vL16}")
            a(f"v_add_u32 v{vO+1}, 4096, v{vO}")
            a(f"s_lshl_b32 s{t1}, s{sWc}, 9")
            a(f"s_add_u32 s{t0}, s{t0}, s{t1}")
            a(f"v_lshrrev_b32 v{vO+2}, 5, v{L}")
            a(f"v_lshl_add_u32 v{vO+2}, v{vO+2}, 8, s{t0}")
            a(f"v_and_b32 v{vO+3}, 15, v{L}")
            a(f"v_lshl_add_u32 v{vO+2}, v{vO+3}, 4, v{vO+2}")
            a(f"v_bfe_u32 v{vO+3}, v{L}, 4, 1")
            a(f"v_lshl_add_u32 v{vO+2}, v{vO+3}, 3, v{vO+2}")
            a(f"v_add_u32 v{vO+3}, 4096, v{vO+2}")
            a(f"s_mul_i32 s{t0}, s{sXcd}, 14")
            a(f"s_mul_i32 s{t1}, s{sCt}, 6")
            a(f"s_mul_i32 s{t2}, s{sWc}, 3")
            a(f"s_add_u32 s{t1}, s{t1}, s{t2}")
            a(f"s_add_u32 s{t1}, s{t1}, s{t0}")
            a(f"s_add_u32 s{t1}, s{t1}, {32 + WS_A2 // 131072}")
            a(f"s_lshl_b32 s{t1}, s{t1}, 17")
            a(f"s_add_u32 s{t2}, s{t0}, s{sCt}")
            a(f"s_add_u32 s{t2}, s{t2}, {44 + WS_A2 // 131072}")
            a(f"s_lshl_b32 s{t2}, s{t2}, 17")
            a(f"s_add_u32 s{t3}, s{t1}, 131072")
            a(f"s_add_u32 s{t4}, s{t1}, 262144")
        else:
            a(f"s_lshl_b32 s{t0}, s{sRb}, 3")
            a(f"s_lshl_b32 s{t1}, s{sWr}, 2")
            a(f"s_add_u32 s{t0}, s{t0}, s{t1}")
            a(f"s_lshl_b32 s{t0}, s{t0}, 11")
            a(f"s_lshl_b32 s{t3}, s{sCt}, 1")
            a(f"s_add_u32 s{t3}, s{t3}, s{sWc}")
            a(f"s_lshl_b32 s{t3}, s{t3}, 17")
            a(f"s_add_u32 s{t1}, s{t3}, s{t0}")
            a(f"s_lshl_b32 s{t2}, s{t1}, 1")
            a(f"s_add_u32 s{t2}, s{t2}, {WS_KV}")
            a(f"s_add_u32 s{t1}, s{t1}, {WS_Q}")
            a(f"v_lshrrev_b32 v{vO+2}, 4, v{L}")
            a(f"v_lshlrev_b32 v{vO+2}, 9, v{vO+2}")
            a(f"v_and_b32 v{vO+3}, 15, v{L}")
            a(f"v_lshl_add_u32 v{vO}, v{vO+3}, 4, v{vO+2}")
            a(f"v_bfe_u32 v{vO+3}, v{L}, 2, 2")
            a(f"v_lshl_add_u32 v{vO+2}, v{vO+3}, 7, v{vO+2}")
            a(f"v_and_b32 v{vO+3}, 3, v{L}")
            a(f"v_lshl_add_u32 v{vO+1}, v{vO+3}, 4, v{vO+2}")
            a(f"s_mov_b32 s{t4}, {f2u(QSCALE):#x}")
        a(f"s_lshl_b32 s{t5}, s{sHead}, 18")
        a(f"s_add_u32 s{t5}, s{t5}, {WS_KV}")
        a(f"s_add_u32 s{sKV}, s4, s{t5}")
        a(f"s_addc_u32 s{sKV+1}, s5, 0")
        a(f"s_mov_b32 s{sKV+2}, {SZ_KV}")
        if ffn:
            a(f"s_lshl_b32 s90, 0x01010101, s{sRb}")
            a(f"s_mov_b32 s91, 0")
        a(f"s_mul_i32 s{t5}, s{sWc}, {NB*64}")
        a(f"s_add_u32 s{t5}, s{t5}, {LDS_SCR}")
        a(f"v_and_b32 v248, 48, v{L}")
        a(f"v_add_u32 v248, s{t5}, v248")
        a(f"s_lshl_b32 s{t0}, s{sWr}, 9")
        a(f"s_add_u32 s{t0}, s{t0}, {LDS_SCR + 1024}")
        a(f"v_and_b32 v249, 15, v{L}")
        a(f"v_lshl_add_u32 v249, v249, 2, s{t0}")
        if not ffn:
            a(f"v_and_b32 v222, 15, v{L}")
            a(f"v_lshl_add_u32 v222, v222, 2, s{t5}")
            a(f"v_and_b32 v223, 48, v{L}")
            a(f"v_add_u32 v223, s{t0}, v223")
        el = []
        for x in e.lines:
            if x.op in ("s_addc_u32", "s_subb_u32", "s_cselect_b32"): el[-1].append(x.text)
            else: el.append([x.text])
        a.lines = sv
        n = 8 * NB
        step(2, [], 0, extra=[(2 + (i * (n - 12)) // len(el), x) for i, x in enumerate(el)])
        rds = []
        for tt in range(8):
            rds.append(f"ds_read_b32 v{ST+2*tt}, v249 offset:{tt*64}")
            if not ffn: rds.append(f"ds_read_b32 v{ST+2*tt+1}, v249 offset:{1024 + tt*64}")
        if ffn:
            rds.append(f"ds_read_b128 v[244:247], v248 offset:{6*64}")
        else:
            for ft in range(4): rds.append(f"ds_read_b128 v[{192+4*ft}:{195+4*ft}], v248 offset:{ft*64}")
            for vt in range(2): rds.append(f"ds_read_b32 v{208+2*vt}, v222 offset:{(4+vt)*64}")
        step(3, [], None, reads=False, extra=[(2 + 2 * i, x) for i, x in enumerate(rds)])
        stp(a, "g1end")
        BC = "op_sel_hi:[1,0,1]"
        if ffn:
            a("s_nop 0")
            a(f"s_mov_b32 s{sH1}, s{t1}")
            a(f"s_mov_b32 s{sH2}, s{t2}")
            a(f"s_mov_b32 s{sPub}, s92")
            srd(a, sOut, 4, 0, WS_END)
            a("s_waitcnt lgkmcnt(0)")
            pend = []
            for u in range(8):
                c = acc(u, 6)
                for h in range(2):
                    a(f"v_pk_fma_f32 v[{c+2*h}:{c+2*h+1}], v[{244+2*h}:{245+2*h}], v[{ST+2*u}:{ST+2*u+1}], v[{c+2*h}:{c+2*h+1}] {BC}")
                a(f"v_cvt_pk_bf16_f32 v{c}, v{c}, v{c+1}")
                a(f"v_cvt_pk_bf16_f32 v{c+1}, v{c+2}, v{c+3}")
                a(f"v_pk_max_i16 v{c}, v{c}, 0")
                a(f"v_pk_max_i16 v{c+1}, v{c+1}, 0")
                if u in direct: pend.append(hstore(u, f"v[{c}:{c+1}]"))
                else:
                    for e_ in range(2): a(f"v_accvgpr_write_b32 a{4*parked.index(u)+e_}, v{c+e_}")
                if u == 1:
                    a(f"ds_read_b64 v[194:195], v248 offset:64")
                    a(f"ds_read_b64 v[198:199], v248 offset:72")
                if u == 3:
                    a(f"ds_read_b64 v[202:203], v248 offset:0")
                    a(f"ds_read_b64 v[206:207], v248 offset:8")
            for i, r in enumerate((210, 214, 218, 222)):
                a(f"ds_read_b64 v[{r}:{r+1}], v248 offset:{128 + (i>>1)*64 + (i&1)*8}")
            a(f"ds_read_b128 v[244:247], v248 offset:{4*64}")
            CSM = {0: (202, 206), 1: (194, 198), 2: (210, 214), 3: (218, 222), 4: (244, 246), 5: (194, 198)}
            groups = at_load_groups()
            polled = False; after = []
            def drip(k):
                for _ in range(k):
                    if groups:
                        a.extend(groups.pop(0)); after.append("ld")
                    elif pend:
                        a.extend(pend.pop(0)); after.append("st")
            for u in range(8, 32):
                p, tt = divmod(u - 8, 8)
                if u == 8: a("s_waitcnt lgkmcnt(5)")
                if u == 16:
                    a("s_waitcnt lgkmcnt(0)")
                    a(f"ds_read_b64 v[194:195], v248 offset:{5*64}")
                    a(f"ds_read_b64 v[198:199], v248 offset:{5*64+8}")
                if u == 24: a("s_waitcnt lgkmcnt(0)")
                if u == EPOLL - ELEAD: a(flagld(f"v{vFa}"))
                c0, c1 = acc(tt, 2 * p), acc(tt, 2 * p + 1)
                for c, cs in ((c0, CSM[2 * p]), (c1, CSM[2 * p + 1])):
                    for h in range(2):
                        a(f"v_pk_fma_f32 v[{c+2*h}:{c+2*h+1}], v[{cs[h]}:{cs[h]+1}], v[{ST+2*tt}:{ST+2*tt+1}], v[{c+2*h}:{c+2*h+1}] {BC}")
                a(f"v_cvt_pk_bf16_f32 v{c0}, v{c0}, v{c0+1}")
                a(f"v_cvt_pk_bf16_f32 v{c0+1}, v{c0+2}, v{c0+3}")
                a(f"v_cvt_pk_bf16_f32 v{c0+2}, v{c1}, v{c1+1}")
                a(f"v_cvt_pk_bf16_f32 v{c0+3}, v{c1+2}, v{c1+3}")
                for e_ in range(4): a(f"v_pk_max_i16 v{c1+e_}, v{c0+e_}, 0")
                if u in direct: pend.append(hstore(u, f"v[{c1}:{c1+3}]"))
                else:
                    for e_ in range(4): a(f"v_accvgpr_write_b32 a{4*parked.index(u)+e_}, v{c1+e_}")
                if u == EPOLL:
                    stp(a, "e1")
                    a(f"s_waitcnt vmcnt(0)")
                    stp(a, "e2")
                    poll(f"v{vFa}", True, mask="s[90:91]")
                    stp(a, "e4")
                    polled = True
                if polled: drip(4)
            drip(64)
            a("s_nop 1")
            at_init(); g2_setup(); after += ["x"] * 2
            idx = [i for i, z in enumerate(after) if z == "ld"][7 if HALF else 11]
            a(f"s_waitcnt vmcnt({len(after) - 1 - idx})")
            a("s_branch L_at_entry")
        else:
            QSC = SC
            vLq, vLk, vLv = 209, 211, 222
            srd(a, sOut, 4, 0, WS_END)
            a(f"s_cmp_lg_u32 s{sWc}, 0")
            a(f"s_cselect_b32 s{sOut+2}, s{sOut+2}, 0")
            a(f"s_cselect_b64 vcc, -1, 0")
            a(f"s_lshl_b32 s{t0}, s{sWr}, 14")
            a(f"v_add_u32 v{vLk}, s{t0}, v{vO+1}")
            a(f"v_add_u32 v{vLv}, s{t0}, v{vO}")
            a(f"s_lshl_b32 s{t0}, s{sWr}, 13")
            a(f"s_add_u32 s{t0}, s{t0}, {LDS_W1}")
            a(f"v_add_u32 v{vLq}, s{t0}, v{vO}")
            def own(v, c0, off):
                if not OWN: return
                n = lab[0]; lab[0] += 1
                a(f"s_cbranch_vccnz L_ow{n}")
                a(f"ds_write_b128 v{v}, v[{c0}:{c0+3}] offset:{off}")
                a(f"L_ow{n}:")
            a(f"s_mov_b32 s{sPub}, 0")
            a("s_waitcnt lgkmcnt(0)")
            a("s_nop 4")
            for b_ in range(4):
                for e_ in range(2):
                    a(f"ds_read_b128 v[{212+4*e_}:{215+4*e_}], v223 offset:{(2*b_+e_)*64}")
                a(f"ds_read_b128 v[244:247], v223 offset:{1024 + (2*b_)*64}")
                a(f"ds_read_b64 v[220:221], v223 offset:{1024 + (2*b_+1)*64}")
                a(f"ds_read_b64 v[242:243], v223 offset:{1024 + (2*b_+1)*64 + 8}")
                for X in (1, 0):
                    for h in range(2):
                        tt = 2 * b_ + h
                        st_ = f"v[{ST+2*tt}:{ST+2*tt+1}]"
                        if X == 0: a(f"v_mul_f32 v{ST+2*tt+1}, s{t4}, v{ST+2*tt+1}")
                        c0 = acc(tt, 2 * X)
                        for e_ in range(2):
                            c = acc(tt, 2 * X + e_); cs = 192 + 4 * (2 * X + e_)
                            for h2 in range(2):
                                a(f"v_pk_fma_f32 v[{c+2*h2}:{c+2*h2+1}], v[{cs+2*h2}:{cs+2*h2+1}], {st_}, v[{c+2*h2}:{c+2*h2+1}] {BC}")
                            for h2 in range(2):
                                a(f"v_pk_mul_f32 v[{c+2*h2}:{c+2*h2+1}], v[{c+2*h2}:{c+2*h2+1}], {st_} op_sel:[0,1]")
                        c1 = acc(tt, 2 * X + 1)
                        a(f"v_cvt_pk_bf16_f32 v{c0}, v{c0}, v{c0+1}")
                        a(f"v_cvt_pk_bf16_f32 v{c0+1}, v{c0+2}, v{c0+3}")
                        a(f"v_cvt_pk_bf16_f32 v{c0+2}, v{c1}, v{c1+1}")
                        a(f"v_cvt_pk_bf16_f32 v{c0+3}, v{c1+2}, v{c1+3}")
                        if X: a(f"buffer_store_dwordx4 v[{c0}:{c0+3}], v{vO+1}, {WSR}, s{t2} offen offset:{h*64} {QSC}")
                        else: a(f"buffer_store_dwordx4 v[{c0}:{c0+3}], v{vO}, {R(sOut) if OWN else WSR}, s{t1} offen offset:{h*256} {QSC}")
                        if X: own(vLk, c0, b_ * 4096 + h * 64)
                        else: own(vLq, c0, b_ * 2048 + h * 256)
                a("s_waitcnt lgkmcnt(0)")
                for vt in range(2):
                    c0 = acc(2 * b_, 4 + vt)
                    for e_ in range(2):
                        c = acc(2 * b_ + e_, 4 + vt)
                        rs = ((244, 246), (220, 242))[e_]
                        for h2 in range(2):
                            a(f"v_pk_fma_f32 v[{c+2*h2}:{c+2*h2+1}], v[{212+4*e_+2*h2}:{213+4*e_+2*h2}], v[{208+2*vt}:{209+2*vt}], v[{c+2*h2}:{c+2*h2+1}] {BC}")
                        for h2 in range(2):
                            a(f"v_pk_mul_f32 v[{c+2*h2}:{c+2*h2+1}], v[{c+2*h2}:{c+2*h2+1}], v[{rs[h2]}:{rs[h2]+1}]")
                    c1 = acc(2 * b_ + 1, 4 + vt)
                    a(f"v_cvt_pk_bf16_f32 v{c0}, v{c0}, v{c0+1}")
                    a(f"v_cvt_pk_bf16_f32 v{c0+1}, v{c0+2}, v{c0+3}")
                    a(f"v_cvt_pk_bf16_f32 v{c0+2}, v{c1}, v{c1+1}")
                    a(f"v_cvt_pk_bf16_f32 v{c0+3}, v{c1+2}, v{c1+3}")
                    a(f"buffer_store_dwordx4 v[{c0}:{c0+3}], v{vO}, {WSR}, s{t2} offen offset:{2048 + vt*256} {QSC}")
                    own(vLv, c0, b_ * 4096 + 2048 + vt * 256)
                a(f"s_add_u32 s{t1}, s{t1}, 2048")
                a(f"s_add_u32 s{t2}, s{t2}, 4096")
            if OWN:
                stp(a, "e1")
                a("s_waitcnt lgkmcnt(0)")
                srd(a, sOut, 4, 0, 0)
                for r in (sH1, sH2, t3, t4): a(f"s_mov_b32 s{r}, 0")
                at_init(); g2_setup()
                a(f"s_add_u32 s{sSo}, s{sSo}, 32768")
                a(so_wrap)
                a(f"v_add_u32 v{U}, {LDS_W1}, v{vDma}")
                a(f"v_lshlrev_b32 v{U+1}, 7, v{L}")
                a(f"v_and_b32 v{U+2}, 0xf80, v{U+1}")
                a(f"s_add_u32 s{t1}, s{sQO}, 131072")
                a(f"s_sub_u32 s{t0}, s{t1}, {WS_Q}")
                a(f"s_lshl_b32 s{t0}, s{t0}, 1")
                a(f"s_add_u32 s{t0}, s{t0}, {WS_KV}")
                a("s_waitcnt vmcnt(0)")
                a("s_barrier")
                stp(a, "e2")
                publish(92, T)
                if WARM:
                    a(f"buffer_load_dword v{U+3}, v{U+2}, {WSR}, s{t1} offen sc1")
                    a(f"buffer_load_dword v{U+3}, v{U+1}, {WSR}, s{t0} offen sc1")
                stp(a, "e4")
                for x in range(2):
                    for h in range(2):
                        a(f"ds_read_b128 v[{Q[x]+4*h}:{Q[x]+4*h+3}], v{U} offset:{x*2048+h*1024}")
            else:
                stp(a, "e1")
                a("s_waitcnt vmcnt(0)")
                a("s_barrier")
                stp(a, "e2")
                publish(92, T)
                stp(a, "e4")
                for g_ in at_load_groups(): a.extend(g_)
                srd(a, sOut, 4, 0, 0)
                for r in (sH1, sH2, t3, t4): a(f"s_mov_b32 s{r}, 0")
                at_init(); g2_setup()
                a("s_waitcnt vmcnt(2)")
    g1("ffn")
    if LAY:
        assert a.lines[-1].text == "s_branch L_at_entry"
        a.lines.pop()
        qv = Asm(); svq = a.lines; a.lines = qv.lines
        a(".p2align 6")
        a("L_g1_qkv:")
        g1("qkv")
        a("s_branch L_at_entry")
        qcode = [z.text for z in a.lines]; a.lines = svq
    else:
        a("L_g1_qkv:")
        g1("qkv")

    a("L_at_entry:")
    stp(a, "atentry")
    a("s_barrier")
    def rdK(t, tl):
        b = Kf[t & 1]
        return [f"ds_read_b128 v[{b}:{b+3}], v{vCur} offset:{tl*4096}", f"ds_read_b128 v[{b+4}:{b+7}], v{vCur} offset:{tl*4096+1024}"]
    def rdV(t, tl):
        b = Vf[t & 1]
        return [f"ds_read_b128 v[{b}:{b+3}], v{vCur} offset:{tl*4096+2048}", f"ds_read_b128 v[{b+4}:{b+7}], v{vCur} offset:{tl*4096+3072}"]
    def qk(x, t, c0=None):
        s = S[x]; k = Kf[t & 1]; q = Q[x]
        c = f"v[{NM[x]}:{NM[x]+15}]" if c0 is None else c0
        return [f"v_mfma_f32_32x32x16_bf16 v[{s}:{s+15}], v[{k}:{k+3}], v[{q}:{q+3}], {c}",
                f"v_mfma_f32_32x32x16_bf16 v[{s}:{s+15}], v[{k+4}:{k+7}], v[{q+4}:{q+7}], v[{s}:{s+15}]"]
    def PV(x, t, h):
        v = Vf[t & 1]
        return f"v_smfmac_f32_32x32x32_bf16 v[{O[x]}:{O[x]+15}], v[{v+4*h}:{v+4*h+3}], v[{D[x]+8*h}:{D[x]+8*h+7}], v{IDX}"
    def LS(x, h):
        return f"v_smfmac_f32_16x16x64_bf16 v[{Lr[x]}:{Lr[x]+3}], v[{ONE}:{ONE+3}], v[{D[x]+8*h}:{D[x]+8*h+7}], v{IDX}"
    a.extend(rdK(0, 0))
    a.extend(rdV(0, 0))
    a("s_waitcnt lgkmcnt(0)")
    a.extend(qk(0, 0, "0"))
    a.extend(qk(1, 0, "0"))
    a("s_nop 7")
    a("s_nop 1")
    for x in range(2):
        s0 = S[x]
        a(f"v_max3_f32 v{U}, v{s0}, v{s0+1}, v{s0+2}")
        for i in range(3, 15, 2): a(f"v_max3_f32 v{U}, v{U}, v{s0+i}, v{s0+i+1}")
        a(f"v_max_f32 v{U}, v{U}, v{s0+15}")
        a(f"v_mov_b32 v{U+2}, v{U}")
        a("s_nop 1")
        a(f"v_permlane32_swap_b32 v{U}, v{U+2}")
        a(f"v_max_f32 v{U}, v{U}, v{U+2}")
        a(f"v_sub_f32 v{NM[x]}, 0, v{U}")
        a(f"v_sub_f32 v{NM[x]+1}, 0, v{U}")
        for i in range(2, 16, 2): a(f"v_mov_b64 v[{NM[x]+i}:{NM[x]+i+1}], v[{NM[x]}:{NM[x]+1}]")
        if x == 0:
            for i in range(0, 16, 2): a(f"v_pk_add_f32 v[{s0+i}:{s0+i+1}], v[{s0+i}:{s0+i+1}], v[{NM[x]}:{NM[x]+1}]")
    a("s_nop 1")
    stp(a, "atloop")

    def acc2(tt, ft): return 128 + (tt * 4 + ft) * 4
    def ab(buf, tt): return buf * 32 + tt * 4
    def gm(v, tt, ft):
        c = acc2(tt, ft); w = WF[v & 1] + ft * 4; x = ab(v, tt)
        return f"v_mfma_f32_16x16x32_bf16 a[{c}:{c+3}], v[{w}:{w+3}], a[{x}:{x+3}], a[{c}:{c+3}]"
    def aload(buf, tt):
        r = ab(buf, tt)
        return f"buffer_load_dwordx4 a[{r}:{r+3}], v{vA[tt>>1]}, {WSR}, s{sKA} offen offset:{(tt&1)*1024} {ASC}"
    def wdma(pc):
        return f"buffer_load_dwordx4 v{vW+pc}, {R(sW)}, s{sKW} offen offset:{pc*1024} {W2P} lds"
    def wread(slot, buf, ft):
        r = WF[buf] + ft * 4
        return [f"ds_read_b64_tr_b16 v[{r+2*rd}:{r+2*rd+1}], v{vWo if ft&1 else vWe} offset:{slot*4096 + rd*2048 + (ft>>1)*512}" for rd in range(2)]
    W0 = "s_waitcnt lgkmcnt(0)"
    def phase(x, t, doqk=True, f=None):
        y = 1 - x
        f = f or {}
        E = lambda i: f"v_exp_f32 v{D[x]+i}, v{S[x]+i}"
        q = qk(y, t + x) if doqk else [None, None]
        g = lambda k: f.get(k, [])
        seq = [q[0]] + g(0) + [E(0), E(1), E(2), q[1]] + g(1) + [E(3), E(4), E(5), PV(y, t - 1 + x, 1)] + g(2) + [E(6), E(7), E(8),
               LS(y, 1)] + g(3) + [E(9), E(10), PV(x, t, 0)] + g(4) + [E(11), E(12), E(13), LS(x, 0)] + g(5) + [E(14), E(15)]
        a.extend([z for z in seq if z])
    ring_adv = [f"s_add_u32 s{sMb}, s{sRing}, s{sM0k}", f"s_add_u32 s{sRing}, s{sRing}, 32768", f"s_cmp_eq_u32 s{sRing}, 98304",
                f"s_cselect_b32 s{sRing}, 0, s{sRing}"]
    kv_sel = [f"s_cmp_gt_u32 s{sCntA}, 5", f"s_cselect_b32 s{sKV+2}, 0, {SZ_KV}"]
    hq = list(parked)
    kv0 = kv_groups(2, 4 if KVD else 6)
    kv1 = kv_groups(4, 8) if KVD else []
    def it_pure(c, j, lastpure):
        t = j + 1
        k = rdK(t + 1, j); v = rdV(t + 1, j)
        fa = {0: [k[0]], 1: [k[1]], 5: [W0]}
        fb = {0: [v[0]], 1: [v[1]], 5: [W0]}
        if j == 0:
            fa[2] = [f"s_mov_b32 m0, s{sMb}", so_wrap]
            if c > 5: fa[3] = [f"s_mov_b32 s{sKV+2}, 0"]
        if j == 4:
            fa[2] = [f"s_add_u32 m0, s{sMb}, 16384", f"s_add_u32 s{sSo}, s{sSo}, 16384"]
        fa[4] = [kvdma(j)]
        if j == 7:
            fa[2] = ring_adv[0:2]; fa[3] = ring_adv[2:4]
            fb[2] = [f"s_add_u32 s{sSo}, s{sSo}, 16384"]
        if c == 0:
            if j == 4: fa[2] = []
            if j == 7: fb[2] = []
            fa[4] = []
            if j == JLD: fa[4] = [flagld(f"v{vFa}")]
            if j > JCHK:
                for f in (fa, fb):
                    for sl in (3, 4):
                        if kv0: f[sl] = f.get(sl, []) + kv0.pop(0)
        if c == 1 and KVD:
            if j in (0, 4): fa[2] = []
            if j == 7: fb[2] = []
            fa[4] = kv1.pop(0); fb[4] = kv1.pop(0)
        for f in (fa, fb):
            for sl in (2, 3)[:SPP]:
                if hq and 8 * c + j >= HST and not any(" lds" in z for z in f.get(sl, [])):
                    u = hq.pop(0); r = 4 * parked.index(u)
                    f[sl] = f.get(sl, []) + hstore(u, f"a[{r}:{r+(1 if u < 8 else 3)}]")
        if lastpure and j == POLLAT:
            fb[4] = fb.get(4, []) + [flagld(f"v{vFa2}")]
        return fa, fb, t
    vK = [240, 241, 242, 243]; sStep, sMask = sT[0], sT[1]
    def kvdma2(q):
        return f"buffer_load_dwordx4 v{vK[q&3]}, {R(sKV)}, s{sSo} offen offset:{(q&3)*1024} {SC} lds"
    def kv_m0(j):
        return f"s_mov_b32 m0, s{sMb}" if j < 4 else f"s_add_u32 m0, s{sMb}, 16384"
    def trip_sa(j, x):
        l = []
        if j == 0 and x == 0: l += [f"s_and_b32 s{sSo}, s{sSo}, s{sMask}"]
        if j == 3 and x == 1: l += [f"s_add_u32 s{sSo}, s{sSo}, s{sStep}"]
        if j == 7 and x == 1: l += [f"s_add_u32 s{sSo}, s{sSo}, s{sStep}"] + ring_adv
        return l
    def kstep_adv():
        return [f"s_add_u32 s{sKA}, s{sKA}, {KS*131072}", f"s_add_u32 s{sKW}, s{sKW}, {KS*65536}"]
    def it_load(j):
        t = j + 1; v = j >> 1
        for x in range(2):
            ph = 2 * (j & 1) + x
            kv = rdK(t + 1, j) if x == 0 else rdV(t + 1, j)
            tr = wread(0, 0, ph) if v == 3 else []
            sa = trip_sa(j, x)
            wait = "s_waitcnt vmcnt(28) lgkmcnt(0)" if ph == 3 else W0
            f = {0: [kv[0], kv[1]], 1: sa[0:2] + tr, 2: [f"s_add_u32 m0, s{sM0g}, {v*4096}", aload(v, 2 * ph)], 3: sa[2:] + [wdma(ph)],
                 4: ([kv_m0(j)] if x == 0 else []), 5: [wait, aload(v, 2 * ph + 1)] + ([kvdma2(j)] if x == 0 else [])}
            if ph == 3: f[5] += kstep_adv()
            if j == 7 and x == 1:
                f[4] = [f"s_add_u32 s{sCntA}, s{sCntA}, 1"]
                f[5] += ["s_barrier", f"v_add_u32 v{vCur}, s{sRing}, v{vL16}"]
            phase(x, t, f=f)
    def it_comb(j):
        t = j + 1; v = j >> 1
        for x in range(2):
            y = 1 - x
            ph = 2 * (j & 1) + x
            E = lambda i: f"v_exp_f32 v{D[x]+i}, v{S[x]+i}"
            q = qk(y, t + x)
            kv = rdK(t + 1, j) if x == 0 else rdV(t + 1, j)
            tr = wread((v + 1) & 3, (v + 1) & 1, ph)
            Gm = [gm(v, 2 * ph, ft) for ft in range(4)] + [gm(v, 2 * ph + 1, ft) for ft in range(3, -1, -1)]
            sa = trip_sa(j, x) + [None] * 5
            wait = "s_waitcnt vmcnt(28) lgkmcnt(0)" if ph == 3 else W0
            last = (j == 7 and x == 1)
            seq = [Gm[0], kv[0], kv[1], q[0], sa[0], E(0), E(1), E(2), Gm[1], sa[1], E(3), q[1], sa[2], E(4), E(5), E(6), Gm[2], sa[3], E(7),
                   PV(y, t - 1 + x, 1), tr[0], E(8), E(9), LS(y, 1), tr[1], Gm[3], sa[4], E(10), PV(x, t, 0), aload(v, 2 * ph), E(11), E(12),
                   Gm[4], f"s_add_u32 m0, s{sM0g}, {v*4096}", E(13), LS(x, 0), wdma(ph), Gm[5],
                   kv_m0(j) if x == 0 else (f"s_add_u32 s{sCntA}, s{sCntA}, 1" if last else None), E(14), Gm[6], wait,
                   "s_barrier" if last else None, E(15), Gm[7], aload(v, 2 * ph + 1), kvdma2(j) if x == 0 else None]
            if CPF and j == 2 and x == 1: seq.append(f"global_load_dwordx4 v[{U+4}:{U+7}], v[248:249], off")
            if ph == 3: seq += kstep_adv()
            if last: seq += [f"v_add_u32 v{vCur}, s{sRing}, v{vL16}", f"s_bitcmp1_b32 {0x1c0 if L2T == 7 else 0x140}, s{sCntA}"]
            a.extend([z for z in seq if z])

    NPURE = 7 - NC
    seqs = []
    for c in range(NPURE):
        for j in range(1 if c == 0 else 0, 8):
            seqs.append((c, j) + it_pure(c, j, c == NPURE - 1))
    assert not hq and not kv0 and not kv1
    log = []
    def younger(pred):
        idx = [i for i, tag in enumerate(log) if pred(tag)]
        return len(log) - 1 - idx[-1] if idx else len(log)
    for (c, j, fa, fb, t) in seqs:
        for f in (fa, fb):
            for sl in range(5):
                for z in f.get(sl, []):
                    if z.startswith("buffer_"):
                        log.append("kv%d" % (sum(1 for g in log if g.startswith("kv")) // 8 - 1) if " lds" in z else ("st" if "store" in z else "poll"))
        need = 63
        pub = (8 * c + j == PUBAT)
        if j == 7: need = min(need, younger(lambda g: g == "kv%d" % (c - 1)))
        if pub: need = min(need, younger(lambda g: g == "st"))
        if j == 7 or pub:
            fb[5] = [f"s_waitcnt vmcnt({need}) lgkmcnt(0)", "s_barrier"]
            if j == 7: fb[5].append(f"v_add_u32 v{vCur}, s{sRing}, v{vL16}")
        phase(0, t, f=fa)
        phase(1, t, f=fb)
        if c == 0 and j == JCHK:
            a(f"s_waitcnt vmcnt({younger(lambda g: g == 'poll')})")
            poll(f"v{vFa}", True)
            if HALF:
                assert JCHK <= 3
                a("s_barrier")
            stp(a, "fqok")
        if pub:
            assert log.count("st") == len(parked)
            a(f"s_cmp_eq_u32 s{sPub}, 0")
            a("s_cbranch_scc1 L_at_np")
            publish(sPub, U)
            a("L_at_np:")
    a(f"s_mov_b32 s{sCntA}, {NPURE}")
    npoll = younger(lambda g: g == 'poll')
    if QX:
        a(f"s_cmp_lg_u32 s{sPub}, 0")
        a("s_cbranch_scc1 L_at_nx")
        for j in range(8):
            fa, fb, t = it_pure(NPURE, j, True)
            if j == 7: fb[5] = ["s_waitcnt vmcnt(9) lgkmcnt(0)", "s_barrier", f"v_add_u32 v{vCur}, s{sRing}, v{vL16}"]
            phase(0, t, f=fa); phase(1, t, f=fb)
        a(f"s_mov_b32 s{sCntA}, {NPURE + 1}")
        a("L_at_nx:")
        npoll = min(npoll, 7 - POLLAT)
    stp(a, "pureend")
    for q in range(4): a(f"v_mov_b32 v{vK[q]}, v{vDma}")
    a(f"s_mov_b32 s{sStep}, 16384")
    a(f"s_mov_b32 s{sMask}, {SZ_KV - 1}")
    a(f"s_waitcnt vmcnt({npoll})")
    poll(f"v{vFa2}", True)
    stp(a, "fhok")
    for j in range(8): it_load(j)
    if NC:
        stp(a, "cb0")
        a(".p2align 6")
        a("L_cb_loop:")
        for j in range(8): it_comb(j)
        a("s_cbranch_scc0 L_cb_loop")
        a(f"s_cmp_eq_u32 s{sCntA}, 6")
        a("s_cbranch_scc1 L_cb_sw")
        if L2T == 7:
            a(f"s_cmp_eq_u32 s{sCntA}, 7")
            a("s_cbranch_scc1 L_cb_t")
        o = Asm(); sv = a.lines; a.lines = o.lines
        a("L_cb_sw:")
        for q in range(4): a(f"v_mov_b32 v{vK[q]}, v{vW+q}")
        srd(a, sKV, pWO, 0, 1024 * 2048)
        a(f"s_lshl_b32 s{sSo}, s{sWave}, {19 if KQ else 16}")
        a(f"s_mov_b32 s{sStep}, {KS*65536}")
        a(f"s_mov_b32 s{sMask}, -1")
        if L2T != 6: a("s_branch L_cb_loop")
        if L2T:
            assert KQ and G2MAP == 0
            a("L_cb_t:")
            a(f"v_and_b32 v{U}, 31, v{L}")
            a(f"v_lshlrev_b32 v{U+1}, 11, v{U}")
            a(f"v_lshlrev_b32 v{U}, 7, v{U}")
            a(f"s_and_b32 s{t0}, s{sSlot}, 3")
            a(f"s_lshl_b32 s{t1}, s{sCb}, 7")
            a(f"s_mul_i32 s{t2}, s{sWave}, 28")
            a(f"s_add_u32 s{t2}, s{t2}, 24")
            a(f"s_add_u32 s{t3}, s{t2}, s{t0}")
            a(f"s_lshl_b32 s{t3}, s{t3}, 16")
            a(f"s_add_u32 s{t3}, s{t3}, s{t1}")
            a(f"buffer_load_dword v{U+3}, v{U+1}, {R(sW)}, s{t3} offen")
            a(f"s_lshr_b32 s{t3}, s{sSlot}, 3")
            a(f"s_add_u32 s{t2}, s{t2}, s{t3}")
            a(f"s_lshl_b32 s{t2}, s{t2}, 17")
            a(f"s_lshl_b32 s{t3}, s{sRb2}, 13")
            a(f"s_add_u32 s{t2}, s{t2}, s{t3}")
            a(f"s_and_b32 s{t3}, s{sSlot}, 4")
            a(f"s_lshl_b32 s{t3}, s{t3}, 10")
            a(f"s_add_u32 s{t2}, s{t2}, s{t3}")
            a(f"s_add_u32 s{t2}, s{t2}, {WS_A2 + 32*131072}")
            a(f"buffer_load_dword v{U+3}, v{U}, {WSR}, s{t2} offen sc1")
            a(f"s_lshl_b32 s{t2}, s{sWave}, 3")
            a(f"s_add_u32 s{t2}, s{t2}, s{t0}")
            a(f"s_add_u32 s{t2}, s{t2}, 4")
            a(f"s_lshl_b32 s{t2}, s{t2}, 16")
            a(f"s_add_u32 s{t2}, s{t2}, s{t1}")
            a(f"buffer_load_dword v{U+3}, v{U+1}, {R(sKV)}, s{t2} offen")
            srd(a, sX, pX, 0, 4 * MB)
            a(f"s_lshl_b32 s{t2}, s{sRb2}, 2")
            a(f"s_add_u32 s{t2}, s{t2}, s{sWave}")
            a(f"s_lshl_b32 s{t2}, s{t2}, 16")
            a(f"s_add_u32 s{t2}, s{t2}, s{t1}")
            a(f"buffer_load_dword v{U+3}, v{U+1}, {R(sX)}, s{t2} offen")
            a("s_branch L_cb_loop")
        ool.extend([z.text for z in o.lines]); a.lines = sv
    stp(a, "cb1")
    phase(0, 63)
    phase(1, 63, doqk=False)
    a("s_nop 1")
    a(PV(1, 63, 1)); a(LS(1, 1))
    stp(a, "atend")
    a(f"v_bfe_u32 v{U+2}, v{L}, 4, 1")
    a(f"v_lshlrev_b32 v{U+2}, 10, v{U+2}")
    a(f"v_lshrrev_b32 v{U+3}, 5, v{L}")
    a(f"v_lshl_add_u32 v{U+2}, v{U+3}, 8, v{U+2}")
    a(f"v_and_b32 v{U+3}, 15, v{L}")
    a(f"v_lshl_add_u32 v{U+2}, v{U+3}, 4, v{U+2}")
    a(f"s_lshr_b32 s{t0}, s{sRb2}, 1")
    a(f"s_lshl_b32 s{t0}, s{t0}, 8")
    a(f"s_add_u32 s{t0}, s{t0}, {WS_FL + FO}")
    a(f"v_and_b32 v{U+3}, 31, v{L}")
    a(f"v_lshl_add_u32 v{vFa2}, v{U+3}, 3, s{t0}")
    a(f"s_add_u32 s{sQO}, s{sQO}, {WS_A2 - WS_Q}")
    a(f"s_mov_b32 s{t0}, {f2u(2.0**40):#x}")
    a(f"v_pk_mul_f32 v[{U}:{U+1}], v[{O[0]}:{O[0]+1}], 0 op_sel_hi:[1,0]")
    for i in range(2, 32, 2):
        a(f"v_pk_fma_f32 v[{U}:{U+1}], v[{O[0]+i}:{O[0]+i+1}], 0, v[{U}:{U+1}] op_sel_hi:[1,0,1]")
    a(f"v_add_f32 v{U}, v{U}, v{U+1}")
    a(f"v_add3_u32 v{U+1}, 0, 0, 0") if False else None
    a(f"v_add_f32 v{U+1}, v{Lr[0]}, v{Lr[1]}")
    a(f"v_add_f32 v{U}, v{U}, v{U+1}")
    a(f"v_cmp_ngt_f32 vcc, s{t0}, v{U}")
    a("s_nop 1")
    a("s_cbranch_vccnz L_at_slow")
    a("L_at_fin:")
    for x in range(2):
        a(f"v_rcp_f32 v{U}, v{Lr[x]}")
        a("s_nop 0")
        a(f"v_mul_f32 v{U}, v{U}, v{vSig+x}")
        for i in range(0, 16, 2): a(f"v_pk_mul_f32 v[{O[x]+i}:{O[x]+i+1}], v[{O[x]+i}:{O[x]+i+1}], v[{U}:{U+1}] op_sel_hi:[1,0]")
        for u in range(2):
            for e in range(2):
                c = O[x] + 8 * e + 4 * u
                a(f"v_cvt_pk_bf16_f32 v{D[x]+4*u+2*e}, v{c}, v{c+1}")
                a(f"v_cvt_pk_bf16_f32 v{D[x]+4*u+2*e+1}, v{c+2}, v{c+3}")
            a(f"buffer_store_dwordx4 v[{D[x]+4*u}:{D[x]+4*u+3}], v{U+2}, {WSR}, s{sQO} offen offset:{x*2048+u*512} {SC}")

    assert 2 < NC <= 5
    S0 = 4 * NC
    X = 112; WF8 = [0, 16, 32, 48, 64, 80, 96, 128]
    vE = [220, 221, 236, 237]; vRd = [233, 234, 235]; vRw = 238; vXs = 239
    ol = ["old"] + ["ost"] * 4
    def need2(*tags):
        idx = [i for i, t in enumerate(ol) if t in tags or t == "old"]
        return min(63, len(ol) - 1 - idx[-1])
    def abuf(s_, tt):
        r = ab(s_ & 3, tt) if s_ < 28 else ab(tt & 3, s_ - 28)
        return f"a[{r}:{r+3}]"
    def wfr(s_): return WF8[s_ - 28] if s_ >= 28 else WF[s_ & 1]
    def gm2(s_, tt, ft):
        c = acc2(tt, ft); w = wfr(s_) + ft * 4
        return f"v_mfma_f32_16x16x32_bf16 a[{c}:{c+3}], v[{w}:{w+3}], {abuf(s_, tt)}, a[{c}:{c+3}]"
    def wloc(s_):
        if s_ < 28: return ("r", s_ & 3)
        return ("e", (4, 5, 0, 1, 2, 3)[s_ - 28]) if s_ < 34 else ("r", s_ - 34)
    def wrd(s_):
        k, sl = wloc(s_); l = []
        for ft in range(4):
            r = wfr(s_) + ft * 4
            if k == "r": v = vWo if ft & 1 else vWe; o = sl * 4096
            else: v = vE[(ft & 1) + 2 * (sl >> 2)]; o = (sl & 3) * 16384
            l += [f"ds_read_b64_tr_b16 v[{r+2*rd}:{r+2*rd+1}], v{v} offset:{o + rd*2048 + (ft>>1)*512}" for rd in range(2)]
        return l
    def wld(s_):
        k, sl = wloc(s_)
        g = [([f"s_add_u32 m0, s{sM0g}, {sl*4096}" if k == "r" else f"s_add_u32 m0, s{sM0k}, {sl*16384}"], None)]
        for pc in range(4):
            g.append(([f"buffer_load_dwordx4 v{vW+pc}, {R(sW if s_ < 28 else sKV)}, s{sKW if s_ < 28 else sSo} offen offset:{pc*1024} lds"], f"W{s_}"))
        g.append(([f"s_add_u32 s{sKW if s_ < 28 else sSo}, s{sKW if s_ < 28 else sSo}, {KS*65536}"], None))
        return g
    sO4 = [t0, t1, t2, t3, 88, 89, 90, 91]
    def ald(s_, tt):
        so = sO4[s_ - 28] if s_ >= 28 else sKA
        return ([f"buffer_load_dwordx4 {abuf(s_, tt)}, v{vA[tt>>1]}, {WSR}, s{so} offen offset:{(tt&1)*1024} {ASC}"], f"A{s_}_{tt}")
    def order(s_): return [(tt, ft) for tt in range(8) for ft in (range(4) if tt % 2 == 0 else range(3, -1, -1))]
    def emit(m, vm_groups, pos, ds=(), misc=(), bud=8, ds2=(), wr=()):
        for g, tag in vm_groups:
            if tag: ol.append(tag)
        sds = [(8 + 2 * i, x) for i, x in enumerate(ds)] + [((i * 26) // max(1, len(ds2)), x) for i, x in enumerate(ds2)] + list(wr)
        a.extend(sched(m, [[(p, g) for p, (g, tag) in zip(pos, vm_groups)], sds, list(misc)], bud))
    def begin(s_):
        stp(a, f"s{s_}")
        a(f"s_waitcnt vmcnt({need2(*([f'A{s_}_{tt}' for tt in range(8)] + [f'W{s_+1}']))}) lgkmcnt(0)")
    e = Asm(); sv = a.lines; a.lines = e.lines
    a(f"s_sub_u32 s{t4}, s{sM0k}, s{sM0g}")
    a(f"v_add_u32 v{vE[0]}, s{t4}, v{vWe}")
    a(f"v_add_u32 v{vE[1]}, s{t4}, v{vWo}")
    a(f"v_add_u32 v{vE[2]}, 0x10000, v{vE[0]}")
    a(f"v_add_u32 v{vE[3]}, 0x10000, v{vE[1]}")
    srd(a, sX, pX, 0, 4 * MB)
    srd(a, sOut, pOut, 0, 4 * MB)
    a(f"s_mov_b32 s{sPf}, 32768")
    a(f"s_lshl_b32 s{t4}, s{sRb2}, 7")
    a(f"s_lshl_b32 s{t5}, s{sWave}, 5")
    a(f"s_add_u32 s{t4}, s{t4}, s{t5}")
    a(f"s_lshl_b32 s{sH1}, s{t4}, 2")
    a(f"s_add_u32 s{sH1}, s{sH1}, {WS_STAT + 8192}")
    a(f"s_lshl_b32 s{t4}, s{t4}, 11")
    a(f"s_lshl_b32 s{t5}, s{sCb}, 7")
    a(f"s_add_u32 s{t4}, s{t4}, s{t5}")
    el1 = [x.text for x in e.lines]; e = Asm(); a.lines = e.lines
    a(f"v_and_b32 v{vRw}, 15, v{L}")
    a(f"v_lshl_add_u32 v{vX}, v{vRw}, 11, s{t4}")
    a(f"v_lshlrev_b32 v{vRd[0]}, 2, v{vRw}")
    a(f"v_bfe_u32 v{vRw}, v{L}, 4, 1")
    a(f"v_lshl_add_u32 v{vXs}, v{vRw}, 5, v{vX}")
    a(f"v_lshrrev_b32 v{vRw}, 5, v{L}")
    a(f"v_lshl_add_u32 v{vXs}, v{vRw}, 4, v{vXs}")
    a(f"v_add_u32 v{vRw}, s{sM0k}, v{vL16}")
    if OT & 1:
        a(f"v_and_b32 v186, 31, v{L}")
        a(f"v_lshlrev_b32 v186, 11, v186")
        a(f"s_and_b32 s{t0}, s{sSlot}, 3")
        a(f"s_lshl_b32 s{t0}, s{t0}, 16")
        a(f"s_add_u32 s{t0}, s{t0}, s{sSo}")
        a(f"s_add_u32 s{t0}, s{t0}, s{t5}")
        a(f"buffer_load_dword v187, v186, {R(sKV)}, s{t0} offen")
        a(f"buffer_load_dword v187, v186, {R(sX)}, s{t4} offen")
    el2 = [x.text for x in e.lines]; e = Asm(); a.lines = e.lines
    for pi in range(3):
        a(f"s_sub_u32 s{t4}, s{sWave}, {pi + 1}")
        a(f"s_and_b32 s{t4}, s{t4}, 3")
        a(f"s_lshl_b32 s{t4}, s{t4}, 12")
        a(f"s_add_u32 s{t4}, s{t4}, {pi * 32768}")
        a(f"v_add_u32 v{vRd[pi]}, s{t4}, v{vL16}")
    a(f"s_lshl_b32 s{t4}, s{sWave}, {20 if KQ else 17}")
    for i in range(8): a(f"s_add_u32 s{sO4[i]}, s{t4}, {WS_A2 + i * KS * 131072}")
    if OT & 2:
        a(f"v_lshlrev_b32 v186, 7, v{L}")
        a(f"s_lshr_b32 s{sH2}, s{sSlot}, 2")
        a(f"s_lshl_b32 s{sH2}, s{sH2}, 17")
        a(f"s_add_u32 s{sH2}, s{sH2}, s{sO4[0]}")
        a(f"s_lshl_b32 s{t4}, s{sRb2}, 13")
        a(f"s_add_u32 s{sH2}, s{sH2}, s{t4}")
    el3 = [x.text for x in e.lines]; a.lines = sv
    def grp(l):
        out = []
        for z in l:
            if z.split()[0] in ("s_addc_u32", "s_subb_u32"): out[-1].append(z)
            else: out.append([z])
        return out
    def pubo():
        a(f"s_waitcnt vmcnt(12)")
        a("s_barrier")
        publish(93, 184)
    if QX:
        assert PUBSTEP == 0
        a(f"s_cmp_lg_u32 s{sPub}, 0")
        a("s_cbranch_scc1 L_g2_nx")
        for s_ in range(S0 - 4, S0):
            a("s_waitcnt vmcnt(32) lgkmcnt(0)")
            vg = wld(s_ + 4) + [ald(s_ + 4, tt) for tt in range(8)] + [([f"s_add_u32 s{sKA}, s{sKA}, {KS*131072}"], None)]
            pos = [0, 1, 2, 3, 4, 5] + [max(4 * tt + 3, 6 + tt) for tt in range(8)] + [31]
            emit([gm2(s_, tt, ft) for tt, ft in order(s_)], vg, pos, wrd(s_ + 1), [])
            if s_ == S0 - 4: pubo()
        a("L_g2_nx:")
        del ol[5:]
    for s_ in range(S0, 24):
        if s_ == S0: stp(a, "s20")
        if QX: a("s_waitcnt vmcnt(32) lgkmcnt(0)")
        else: begin(s_) if s_ > S0 else a("s_waitcnt lgkmcnt(0)")
        vg = wld(s_ + 4) + [ald(s_ + 4, tt) for tt in range(8)] + [([f"s_add_u32 s{sKA}, s{sKA}, {KS*131072}"], None)]
        pos = [0, 1, 2, 3, 4, 5] + [max(4 * tt + 3, 6 + tt) for tt in range(8)] + [31]
        misc = {S0: grp(el1), S0 + 1: grp(el2)}.get(s_, [])
        emit([gm2(s_, tt, ft) for tt, ft in order(s_)], vg, pos, wrd(s_ + 1), [(i + 1, g) for i, g in enumerate(misc)])
        if QX and s_ == S0:
            a(f"s_cmp_eq_u32 s{sPub}, 0")
            a("s_cbranch_scc1 L_g2_np")
            pubo()
            a("L_g2_np:")
        elif s_ == S0 + PUBSTEP:
            stp(a, "pb")
            a(f"s_waitcnt vmcnt({need2('ost')})")
            a("s_barrier")
            publish(93, 184)
        elif s_ < 20 + PUBSTEP:
            pass
    q = []
    for s_ in range(32, 36): q += wld(s_)
    xl = [([f"buffer_load_dwordx4 v[{X+(h*2+p)*4}:{X+(h*2+p)*4+3}], v{vXs}, {R(sX)}, {'0' if h == 0 else f's{sPf}'} offen offset:{p*64}"], "x")
          for h in range(2) for p in range(2)]
    xl += [([f"buffer_load_dword v{vRs2+h}, v{vRd[0]}, {WSR}, s{sH1} offen offset:{h*64} sc1"], "x") for h in range(2)]
    if XL: q = xl[4:] + q
    else: q = xl + q
    k = [i for i, (g, tag) in enumerate(q) if tag][POLLW]
    q.insert(k, ([flagld(f"v{vFa2}")], "poll"))
    def orow(tt): return [ald(s_, tt) for s_ in range(28, 36)]
    nq = CHK - 23
    per = (len(q) + nq - 1) // nq
    assert per >= 19 or nq > 1
    for s_ in range(24, 28):
        begin(s_)
        if s_ <= CHK: vg = q[:per]; q = q[per:]
        else:
            vg = orow(s_ - CHK - 1)
            if OT & 2 and s_ == CHK + 1:
                vg.insert(OTP, ([f"buffer_load_dword v187, v186, {WSR}, s{sH2} offen sc1"], "t"))
        ds = (wrd(s_ + 1) if s_ < 27 else []) + wrd(s_ + 4)
        emit([gm2(s_, tt, ft) for tt, ft in order(s_)], vg, [(i * 30) // len(vg) for i in range(len(vg))], [],
             [(i + 1, g) for i, g in enumerate(grp(el3))] if s_ == 25 else [], ds2=ds)
        if s_ == CHK:
            stp(a, "fopoll")
            a(f"s_waitcnt vmcnt({need2('poll')})")
            poll(f"v{vFa2}", True)
            stp(a, "fook")
    nrow = 27 - CHK
    for tt in range(nrow, 3):
        for g, tag in orow(tt): a.extend(g); ol.append(tag)
    a(f"s_waitcnt vmcnt({need2('W35')})")
    for s_ in range(32, 36): a.extend(wrd(s_))
    XF = 144; RB = [176, 0, 32]
    unp = [f"v_permlane16_swap_b32 v{X+4*i+j}, v{X+4*i+j+2}" for i in range(4) for j in range(2)]
    for i in range(16):
        unp += [f"v_lshlrev_b32 v{XF+2*i}, 16, v{X+i}", f"v_and_b32 v{XF+2*i+1}, 0xffff0000, v{X+i}"]
    for tt in range(8):
        stp(a, f"r{tt}")
        a(f"s_waitcnt vmcnt({need2(f'A35_{tt}', 'x' if (XL and tt == 6) else '-')})" + (" lgkmcnt(0)" if tt == 0 else ""))
        m = [gm2(s_, tt, ft) for s_ in range(28, 36) for ft in (range(4) if s_ % 2 == 0 else range(3, -1, -1))]
        vg = orow(tt + 3) if tt + 3 < 8 else []
        if XL and tt == XL: vg = vg + xl[:4]
        wr = []
        if 1 <= tt <= 6:
            pt = tt - 1
            wr = [(8 + 4 * ft, f"ds_write_b128 v{vRw}, a[{acc2(pt, ft)}:{acc2(pt, ft)+3}] offset:{(pt & 3)*16384 + ft*1024}") for ft in range(4)]
            if pt == 3: wr.append((24, f"v_add_u32 v{vRw}, 0x10000, v{vRw}"))
        if tt == 6: wr.append((31, ["s_waitcnt lgkmcnt(0)", "s_barrier"]))
        mi = [(2 * i, z) for i, z in enumerate(unp[10 * tt:10 * tt + 10])] if tt < 4 else []
        if XL: mi = [((3 * i) // 4, z) for i, z in enumerate(unp)] if tt == 6 else []
        if tt == 7:
            wr = [(8 * pi + i + (1 if pi else 0), f"ds_read_b128 v[{RB[pi]+4*i}:{RB[pi]+4*i+3}], v{vRd[pi]} offset:{(i >> 2)*16384 + (i & 3)*1024}")
                  for pi in range(3) for i in range(8)]
            mi = [(10 + i, f"v_accvgpr_read_b32 v{112+i}, a{acc2(6, 0)+i}") for i in range(16)]
        emit(m, vg, [(30 * i) // max(8, len(vg)) + 1 for i in range(len(vg))], [], mi, ds2=[], wr=wr)
    stp(a, "g2end")
    a("s_waitcnt lgkmcnt(0)")
    for i in range(8):
        o_ = 112 + 4 * i if i < 4 else 64 + 4 * i
        if i == 2:
            for j in range(16): a(f"v_accvgpr_read_b32 v{80+j}, a{acc2(7, 0)+j}")
        for j in (0, 2): a(f"v_pk_add_f32 v[{RB[0]+4*i+j}:{RB[0]+4*i+j+1}], v[{RB[0]+4*i+j}:{RB[0]+4*i+j+1}], v[{RB[1]+4*i+j}:{RB[1]+4*i+j+1}]")
        for j in (0, 2): a(f"v_pk_add_f32 v[{o_+j}:{o_+j+1}], v[{o_+j}:{o_+j+1}], v[{RB[2]+4*i+j}:{RB[2]+4*i+j+1}]")
        for j in (0, 2): a(f"v_pk_add_f32 v[{o_+j}:{o_+j+1}], v[{o_+j}:{o_+j+1}], v[{RB[0]+4*i+j}:{RB[0]+4*i+j+1}]")
        sel = "op_sel_hi:[1,0,1]" if i < 4 else "op_sel:[0,1,0]"
        for j in (0, 2): a(f"v_pk_fma_f32 v[{o_+j}:{o_+j+1}], v[{o_+j}:{o_+j+1}], v[{vRs2}:{vRs2+1}], v[{XF+4*i+j}:{XF+4*i+j+1}] {sel}")
        a(f"v_cvt_pk_bf16_f32 v{128+2*i}, v{o_}, v{o_+1}")
        a(f"v_cvt_pk_bf16_f32 v{128+2*i+1}, v{o_+2}, v{o_+3}")
        if i & 1:
            r = 128 + 2 * (i - 1)
            a("s_nop 1")
            a(f"v_permlane16_swap_b32 v{r}, v{r+2}")
            a(f"v_permlane16_swap_b32 v{r+1}, v{r+3}")
            a(f"buffer_store_dwordx4 v[{r}:{r+3}], v{vXs}, {R(sOut)}, {'0' if i < 4 else f's{sPf}'} offen offset:{((i>>1)&1)*64} {OSC}")
    stp(a, "outst")
    if DBGST:
        n = len(STAMPS) + 1
        a("s_waitcnt vmcnt(0)")
        stamp(a, n - 1)
        a(f"s_cmp_lg_u32 s2, {DBGST - 1}")
        a("s_cbranch_scc1 L_end")
        a(f"s_cmp_lg_u32 s{sWave}, 0")
        a("s_cbranch_scc1 L_end")
        a("s_waitcnt lgkmcnt(0)")
        srd(a, 88, pDbg, 0, 256)
        for i in range(n):
            a(f"s_sub_u32 s92, s{60+2*i}, s60")
            a(f"v_mov_b32 v1, s92")
            a(f"buffer_store_dword v1, off, s[88:91], 0 offset:{4*i}")
    else:
        stamp_flush(a, 1, len(STAMPS) + 1, 0)
    a("L_end:")
    a("s_endpgm")
    a("L_at_slow:")
    a(f"s_lshl_b32 s{t5}, s{sHead}, 18")
    a(f"s_add_u32 s{t5}, s{t5}, {WS_KV}")
    for x in range(2): a(f"v_mov_b32 v{NM[x]}, 0xff800000")
    for i in range(40): a(f"v_mov_b32 v{O[0]+i}, 0")
    a(f"s_mov_b32 s{sCntA}, 0")
    a("L_at_sloop:")
    k = Kf[0]; v = Vf[0]
    a(f"buffer_load_dwordx4 v[{k}:{k+3}], v{vL16}, {WSR}, s{t5} offen {SC}")
    a(f"buffer_load_dwordx4 v[{k+4}:{k+7}], v{vL16}, {WSR}, s{t5} offen offset:1024 {SC}")
    a(f"buffer_load_dwordx4 v[{v}:{v+3}], v{vL16}, {WSR}, s{t5} offen offset:2048 {SC}")
    a(f"buffer_load_dwordx4 v[{v+4}:{v+7}], v{vL16}, {WSR}, s{t5} offen offset:3072 {SC}")
    a("s_waitcnt vmcnt(0)")
    for x in range(2):
        M = NM[x]; AL = NM[x] + 1; MN = NM[x] + 2; s = S[x]
        a.extend(qk(x, 0, "0"))
        a("s_nop 15")
        a(f"v_max3_f32 v{U}, v{s}, v{s+1}, v{s+2}")
        for i in range(3, 15, 2): a(f"v_max3_f32 v{U}, v{U}, v{s+i}, v{s+i+1}")
        a(f"v_max_f32 v{U}, v{U}, v{s+15}")
        a(f"v_mov_b32 v{U+1}, v{U}")
        a("s_nop 1")
        a(f"v_permlane32_swap_b32 v{U}, v{U+1}")
        a(f"v_max3_f32 v{MN}, v{U}, v{U+1}, v{M}")
        a(f"v_sub_f32 v{AL}, v{M}, v{MN}")
        a(f"v_exp_f32 v{AL}, v{AL}")
        a(f"v_mov_b32 v{M}, v{MN}")
        for i in range(16): a(f"v_sub_f32 v{s+i}, v{s+i}, v{MN}")
        for i in range(16): a(f"v_exp_f32 v{D[x]+i}, v{s+i}")
        for i in range(16): a(f"v_mul_f32 v{O[x]+i}, v{O[x]+i}, v{AL}")
        a(f"v_mul_f32 v{Lr[x]}, v{Lr[x]}, v{AL}")
        a("s_nop 1")
        a(LS(x, 0)); a(LS(x, 1))
        a(PV(x, 0, 0)); a(PV(x, 0, 1))
        a("s_nop 15")
    a(f"s_add_u32 s{t5}, s{t5}, 4096")
    a(f"s_add_u32 s{sCntA}, s{sCntA}, 1")
    a(f"s_cmp_lt_u32 s{sCntA}, 64")
    a("s_cbranch_scc1 L_at_sloop")
    a("s_branch L_at_fin")
    a.extend(ool)
    if LAY: a.extend(qcode)
    a(".p2align 4")
    a("L_code_end:")
    return a, descriptor(name, 512, 256, 102)

if __name__ == "__main__":
    path = sys.argv[1] if len(sys.argv) > 1 else "cdna_kernels/" + NAME + ".s"
    a, d = gen_main()
    ref = open(os.path.join(os.path.dirname(os.path.abspath(__file__)), "..", "cdna_kernels", NAME + ".s.ref")).read()
    head = [l for l in ref.split("\n") if l.startswith(";") and "@launch" not in l and "Override" not in l and "grid=ceil" not in l]
    out = "\n".join(head) + "\n; @launch grid=(256,1,1) block=(256,1,1) lds=163840\n"
    out += DOC
    out += '.amdgcn_target "amdgcn-amd-amdhsa--gfx950"\n.text\n' + a.text() + '.section .rodata,"a"\n.p2align 6\n' + d
    open(path, "w").write(out)
    probs = a.check("main")
    for p in probs: print("HAZARD", p)
    print("written", path, "hazards:", len(probs))
```

```python
import sys, os
sys.path.insert(0, os.path.dirname(os.path.abspath(__file__)))
from asmdsl import Asm, weave, sched
from gen import (NAME, KA_X, KA_WQKV, KA_WO, KA_W1, KA_W2, KA_OUT, KA_DBG, KA_WS, MB, f2u, srd, header, descriptor,
                 stamp, stamp_flush, STAMP, xreduce, bf16round, QSCALE)

def env(k, d): return type(d)(os.environ.get(k, d))
WS_Q, WS_KV, WS_A2 = 4 * MB, 8 * MB, 16 * MB
SZ_KV = 262144
WS_FL = 0
FQ, FH, FO, F0 = 0, 2048, 4096, 8192
WS_STAT = 16384
WS_CS = 65536
WS_END = 35 * MB
LDS_W1 = 98304
LDS_SCR = 90112
NC = env("NC", 5); ND = env("ND", 2); SPP = env("SPP", 2); PUBAT = env("PUBAT", 10); POLLAT = env("POLLAT", 5)
L2T = env("L2T", 0); TPF = env("TPF", 0); PNT = env("PNT", ""); CPF = env("CPF", 2); QPLAIN = env("QPLAIN", 0); WNT = env("WNT", ""); PFG1 = env("PFG1", 1); DMAF = env("DMAF", 0.6); RDF = env("RDF", 0.75); BUD = env("BUD", 4)
POLLSTEP = env("POLLSTEP", 2); PUBSTEP = env("PUBSTEP", 0); DBGST = env("DBGST", 0); JLD = env("JLD", 1); JCHK = env("JCHK", 3); POLLW = env("POLLW", 8); CHK = env("CHK", 25); HST = env("HST", 0); EPOLL = env("EPOLL", 31); ELEAD = env("ELEAD", 10)
CO = env("CO", 0); TW = env("TW", 1); XL = env("XL", 0); LAY = env("LAY", 0); QX = env("QX", 0); SLP = env("SLP", 6); OT = env("OT", 0); OTP = env("OTP", 8); W2P = env("W2P", ""); ROT = env("ROT", 8); WARM = env("WARM", 1); KVD = env("KVD", 1); HALF = env("HALF", 1); OWN = env("OWN", 1); XB = env("XB", 0); OSC = env("OSC", "sc1"); PRO = env("PRO", 2); XPOS = env("XPOS", 1); XNT = env("XNT", ""); KQ = env("KQ", 1); KS = 1 if KQ else 4; SC = "sc1"; ASC = env("ASC", "sc1"); G2MAP = env("G2MAP", 3)
STAMPS = env("STAMPS", "start,g1loop,g1end,e4,atentry,atloop,pureend,fhok,atend,fopoll,fook,g2end,outst").split(",")
def stp(a, name):
    if name in STAMPS: stamp(a, STAMPS.index(name))

DOC = """; One persistent kernel, 256 workgroups (one per CU, 4 waves), generated by a hand-written scheduler script.
;  phase 0  row statistics (mean, 1/sigma) of 8 rows per workgroup; column sums of the weight tile over 1/8 of K
;  phase 1  GEMM1  x @ [wqkv | w1], 256 x 192 / 256 x 224 tiles; LayerNorm is applied in the epilogue as
;           rs * (acc - mean * colsum); h = relu(.) and o are kept divided by rs, the last epilogue multiplies it back
;  phase 2  attention for one (head, 256 queries); exp2 of (score - max of the first key tile); after the loop the row
;           sums and accumulators are checked and, if the stand-in max was unsafe (sum >= 2^40, inf or NaN), the wave
;           20 of the 36 K-steps of GEMM2 are interleaved with the attention loop
;  phase 3  rest of GEMM2  [o | h] @ [wo ; w2], 128 x 64 tile, K split over the waves, + residual
; Hand-offs between workgroups: write-through (sc1) stores, s_waitcnt vmcnt + barrier, then an 8-byte flag holding a
; launch nonce (published through d_debug); consumers poll the flags (bounded) and read with sc1 loads.
"""

def gen_main():
    a = Asm()
    name = NAME + "_kernel"
    header(a, name)
    sWS, sW, sKV, sX, sOut = 8, 12, 16, 20, 24
    pW1, pW2, pWO, pX, pOut, pDbg = 28, 30, 32, 34, 36, 38
    sWave, sXcd, sSlot = 40, 41, 42
    sKA, sKW, sM0A, sM0W, sCnt, sWr, sWc, sRb, sCt = 43, 44, 45, 46, 47, 48, 49, 50, 51
    t0, t1, t2, t3, t4, t5 = 52, 53, 54, 55, 56, 57
    sPf = 58; sN = 6; sT = [3, 47, 51]
    sSo, sM0k, sCntA, sRing, sMb, sQO, sHead, sPub = 94, 95, 96, 97, 98, 99, 100, 101
    sAw, sArd, sCs, sTile = 96, 97, 98, 101
    sM0g, sRb2, sCb, sH1, sH2 = 45, 46, 48, 49, 50
    WSR = f"s[{sWS}:{sWS+3}]"
    def R(s): return f"s[{s}:{s+3}]"
    vAd, vWd, vAr, vArB, vWe1, vWo1, vWs1 = 224, 228, 232, 234, 235, 236, 237
    T = 238
    L, vL16, vDma, vFa, vFl = 250, 251, 252, 253, 254
    ST = 224; vO = 240
    Q = [0, 8]; S = [16, 32]; NM = [48, 64]; O = [80, 96]; Lr = [112, 116]; D = [120, 136]
    Kf = [152, 160]; Vf = [168, 176]; ONE = 184; WF = [188, 204]
    vCur, IDX, vW, vWe, vWo, vFa2, vX = 220, 221, 224, 228, 229, 230, 231
    vA = [222, 223, 246, 247]
    U = 232; vSig = 244; vRs2 = 244
    lab = [0]
    def flagld(areg, srdr=WSR):
        return f"buffer_load_dwordx2 v[{vFl}:{vFl+1}], {areg}, {srdr}, 0 {'offen' if areg != 'off' else ''} sc1"
    def poll(areg, first_done, srdr=WSR, val=f"s[{sN}:{sN+1}]", cmp="ne", mask=None):
        n = lab[0]; lab[0] += 1
        a(f"s_mov_b32 s{t5}, 0")
        if first_done: a(f"s_branch L_pc{n}")
        a(f"L_pl{n}:")
        a(flagld(areg, srdr))
        a("s_waitcnt vmcnt(0)")
        a(f"L_pc{n}:")
        a(f"v_cmp_{cmp}_u64 vcc, {val}, v[{vFl}:{vFl+1}]")
        a(f"s_add_u32 s{t5}, s{t5}, 1")
        if mask:
            a(f"s_and_b64 vcc, vcc, {mask}")
            a(f"s_cbranch_scc0 L_pd{n}")
        else:
            a("s_nop 0")
            a(f"s_cbranch_vccz L_pd{n}")
        a(f"s_sleep {SLP}")
        a(f"s_cmp_lt_u32 s{t5}, 0x40000")
        a(f"s_cbranch_scc1 L_pl{n}")
        a(f"L_pd{n}:")
    def publish(soff_reg, tmp):
        n = lab[0]; lab[0] += 1
        a(f"s_cmp_lg_u32 s{sWave}, 0")
        a(f"s_cbranch_scc1 L_pb{n}")
        a(f"v_mov_b32 v{tmp}, s{sN}")
        a(f"v_mov_b32 v{tmp+1}, s{sN+1}")
        a(f"buffer_store_dwordx2 v[{tmp}:{tmp+1}], off, {WSR}, s{soff_reg} sc1")
        a(f"L_pb{n}:")

    a("s_cmp_ge_u32 s2, 256")
    a("s_cbranch_scc1 L_end")
    stp(a, "start")
    a(f"s_load_dwordx2 s[{pX}:{pX+1}], s[0:1], {KA_X}")
    a(f"s_load_dwordx2 s[6:7], s[0:1], {KA_WQKV}")
    a(f"s_load_dwordx4 s[{pW1}:{pW1+3}], s[0:1], {KA_W1}")
    a(f"s_load_dwordx2 s[4:5], s[0:1], {KA_WS}")
    a(f"s_load_dwordx2 s[{pWO}:{pWO+1}], s[0:1], {KA_WO}")
    a(f"s_load_dwordx4 s[{pOut}:{pOut+3}], s[0:1], {KA_OUT}")
    a("s_memrealtime s[92:93]")
    a(f"v_lshrrev_b32 v{T}, 6, v0")
    a(f"v_and_b32 v{L}, 63, v0")
    a(f"v_readfirstlane_b32 s{sWave}, v{T}")
    a(f"v_lshlrev_b32 v{vL16}, 4, v{L}")
    a(f"s_and_b32 s{sXcd}, s2, 7")
    if STAMP: a(f"s_mov_b32 s59, s{sWave}")
    a(f"s_lshr_b32 s{sSlot}, s2, 3")
    a(f"s_and_b32 s{sRb}, s{sSlot}, 7")
    a(f"s_lshr_b32 s{sCt}, s{sSlot}, 3")
    a(f"s_lshr_b32 s{sWr}, s{sWave}, 1")
    a(f"s_and_b32 s{sWc}, s{sWave}, 1")
    a(f"v_bfe_u32 v3, v{L}, 2, 1")
    a(f"v_lshl_add_u32 v3, v{T}, 1, v3")
    a(f"s_lshl_b32 s{t0}, s2, 3")
    a(f"v_add_u32 v3, s{t0}, v3")
    a(f"v_and_b32 v4, 3, v{L}")
    a(f"v_lshrrev_b32 v5, 3, v{L}")
    a("v_lshlrev_b32 v6, 11, v3")
    a("v_lshl_add_u32 v6, v5, 6, v6")
    a("v_lshl_add_u32 v6, v4, 4, v6")
    a(f"v_lshrrev_b32 v{T+1}, 4, v{L}")
    a(f"v_and_b32 v{T+2}, 7, v{L}")
    a(f"v_xor_b32 v{T+2}, v{T+2}, v{T+1}")
    a(f"v_lshlrev_b32 v{T+2}, 4, v{T+2}")
    a(f"v_lshl_add_u32 v{T+2}, v5, 11, v{T+2}")
    a(f"s_lshl_b32 s{t0}, s{sRb}, 19")
    a(f"s_lshl_b32 s{t1}, s{sWave}, 17")
    a(f"s_add_u32 s{t0}, s{t0}, s{t1}")
    a(f"v_add_u32 v{vAd}, s{t0}, v{T+2}")
    a(f"v_xor_b32 v{vAd+1}, 64, v{vAd}")
    a(f"v_add_u32 v{vAd+3}, {3*15360}, v{vAd+1}")
    a(f"v_add_u32 v{vAd+1}, 15360, v{vAd+1}")
    a(f"v_add_u32 v{vAd+2}, {2*15360}, v{vAd}")
    a(f"s_lshl_b32 s{sM0A}, s{sWave}, 13")
    a(f"s_lshl_b32 s{sM0W}, s{sWave}, 12")
    a(f"s_add_u32 s{sM0W}, s{sM0W}, {LDS_W1}")
    a(f"s_and_b32 s{sCnt}, s{sRb}, {ROT - 1}")
    a(f"s_mul_i32 s{sCnt}, s{sCnt}, {8 // ROT}")
    a(f"s_lshl_b32 s{sKA}, s{sCnt}, 8")
    ftp, gb, jj, qc = T + 3, T + 4, T + 5, 4
    a(f"v_lshrrev_b32 v{ftp}, 5, v{L}")
    a(f"v_bfe_u32 v{gb}, v{L}, 4, 1")
    a(f"v_bfe_u32 v{jj}, v{L}, 2, 2")
    a(f"s_lshl_b32 s{t0}, s{sWr}, 4")
    a(f"s_lshl_b32 s{t1}, s{sWc}, 2")
    a(f"s_add_u32 s{t0}, s{t0}, s{t1}")
    a(f"v_lshl_add_u32 v{T+6}, v{gb}, 3, v{jj}")
    a(f"v_add_u32 v{T+6}, s{t0}, v{T+6}")
    a(f"v_lshlrev_b32 v{T+7}, 1, v{gb}")
    a(f"v_xor_b32 v{T+7}, v{T+7}, v{qc}")
    a(f"v_lshlrev_b32 v{T+7}, 4, v{T+7}")
    a(f"v_lshl_add_u32 v{T+7}, v{ftp}, 6, v{T+7}")
    a(f"v_xor_b32 v{T+8}, v{gb}, v{qc}")
    a(f"v_lshlrev_b32 v{T+8}, 4, v{T+8}")
    a(f"s_cmp_lt_u32 s{sCt}, 2")
    a("s_cbranch_scc0 L_g1_qkv")

    def code_addr(r):
        n = lab[0]; lab[0] += 1
        a(f"s_getpc_b64 s[{t0}:{t1}]")
        a(f"L_pc_{n}:")
        a(f"s_sub_u32 s{t0}, s{t0}, L_pc_{n}-{name}")
        a(f"s_subb_u32 s{t1}, s{t1}, 0")
        a(f"s_lshl_b32 s{t2}, s{sSlot}, 2")
        a(f"s_add_u32 s{t2}, s{t2}, s{sWave}")
        a(f"s_and_b32 s{t2}, s{t2}, 63")
        a(f"s_lshl_b32 s{t2}, s{t2}, 10")
        a(f"v_add_u32 v{r}, s{t2}, v{vL16}")
        a(f"v_min_u32 v{r}, L_code_end-{name}-16, v{r}")
        a(f"v_mov_b32 v{r+1}, s{t1}")
        a(f"v_add_co_u32 v{r}, vcc, s{t0}, v{r}")
        a("s_nop 1")
        a(f"v_addc_co_u32 v{r+1}, vcc, 0, v{r+1}, vcc")
    def code_pf(r):
        code_addr(r)
        a(f"global_load_dwordx4 a[120:123], v[{r}:{r+1}], off")
    def kvdma(q):
        return f"buffer_load_dwordx4 v{vDma}, {R(sKV)}, s{sSo} offen offset:{(q&3)*1024} {SC} lds"
    so_wrap = f"s_and_b32 s{sSo}, s{sSo}, {SZ_KV - 1}"
    def kv_groups(h0, h1):
        g = []
        for c in range(h0, h1):
            for q in range(4):
                pre = [f"s_add_u32 m0, s{sM0k}, {(c % 6)*16384}", "s_nop 0"] if q == 0 else []
                post = [f"s_add_u32 s{sSo}, s{sSo}, 16384"] if (q == 3) else []
                if q == 3 and c & 1: post.append(so_wrap)
                g.append(pre + [kvdma(q)] + post)
        return g
    def at_load_groups():
        g = kv_groups(0, 2)
        g[4:4] = [[f"buffer_load_dwordx4 v[{Q[x]+4*h}:{Q[x]+4*h+3}], v{vL16}, {WSR}, s{sQO} offen offset:{x*2048+h*1024} {SC}"]
                  for x in range(2) for h in range(2)]
        return g
    def at_init():
        a(f"v_mov_b32 v{vCur}, v{vL16}")
        for x in range(2): a(f"v_mfma_f32_32x32x16_bf16 v[{O[x]}:{O[x]+15}], a[128:131], a[128:131], 0")
        a(f"v_and_b32 v{U}, 7, v{L}")
        a(f"v_cmp_eq_u32 vcc, 0, v{U}")
        a(f"v_cmp_eq_u32 s[88:89], 4, v{U}")
        a(f"v_mov_b32 v{U+2}, 0x3f803f80")
        a(f"v_mov_b32 v{IDX}, 0xdddddddd")
        a(f"v_cndmask_b32 v{ONE}, 0, v{U+2}, vcc")
        a(f"v_cndmask_b32 v{ONE+2}, 0, v{U+2}, s[88:89]")
        a(f"v_mov_b32 v{ONE+1}, v{ONE}")
        a(f"v_mov_b32 v{ONE+3}, v{ONE+2}")
        a(f"s_add_u32 s{sMb}, s{sM0k}, 65536")
        a(f"s_mov_b32 s{sRing}, 0")
        for i in range(0, 8, 2): a(f"v_mov_b64 v[{Lr[0]+i}:{Lr[0]+i+1}], 0")
        for i in range(0, 8, 2): a(f"v_mov_b64 v[{D[1]+8+i}:{D[1]+9+i}], 0")
        for i in range(0, 4, 2): a(f"v_mov_b64 v[{Vf[1]+4+i}:{Vf[1]+5+i}], 0")
        a(f"s_lshr_b32 s{t0}, s{sXcd}, 1")
        a(f"s_lshl_b32 s{t0}, s{t0}, 2")
        a(f"s_and_b32 s{t1}, s{sSlot}, 3")
        a(f"s_add_u32 s{sRb2}, s{t0}, s{t1}")
        if G2MAP == 1:
            a(f"s_lshl_b32 s{t0}, s{sXcd}, 1")
            a(f"s_and_b32 s{t1}, s{sSlot}, 1")
            a(f"s_add_u32 s{sRb2}, s{t0}, s{t1}")
        if G2MAP == 2:
            a(f"s_lshr_b32 s{t0}, s{sXcd}, 2")
            a(f"s_lshl_b32 s{t0}, s{t0}, 3")
            a(f"s_and_b32 s{t1}, s{sSlot}, 7")
            a(f"s_add_u32 s{sRb2}, s{t0}, s{t1}")
        a(f"s_lshr_b32 s{t0}, s{sRb2}, 1")
        a(f"s_lshl_b32 s{t0}, s{t0}, 7")
        a(f"s_add_u32 s{t0}, s{t0}, {WS_FL + FH}")
        a(f"v_and_b32 v{U}, 15, v{L}")
        a(f"v_lshl_add_u32 v{vFa2}, v{U}, 3, s{t0}")
        srd(a, sW, pW2, 0, 3584 * 2048)
    def g2_setup():
        a(f"s_and_b32 s{t0}, s{sXcd}, 1")
        a(f"s_lshl_b32 s{t0}, s{t0}, 3")
        a(f"s_lshr_b32 s{t1}, s{sSlot}, 2")
        a(f"s_add_u32 s{sCb}, s{t0}, s{t1}")
        if G2MAP == 3: a(f"s_xor_b32 s{sCb}, s{sCb}, 4")
        if G2MAP == 1: a(f"s_lshr_b32 s{sCb}, s{sSlot}, 1")
        if G2MAP == 2:
            a(f"s_and_b32 s{t0}, s{sXcd}, 3")
            a(f"s_lshl_b32 s{t0}, s{t0}, 2")
            a(f"s_lshr_b32 s{t1}, s{sSlot}, 3")
            a(f"s_add_u32 s{sCb}, s{t0}, s{t1}")
        a(f"s_lshl_b32 s{t0}, s{sRb2}, 13")
        for pi in range(4):
            a(f"s_add_u32 s{t1}, s{sWave}, {pi + 1}")
            a(f"s_and_b32 s{t1}, s{t1}, 3")
            a(f"s_lshl_b32 s{t1}, s{t1}, 11")
            a(f"s_add_u32 s{t1}, s{t1}, s{t0}")
            a(f"v_add_u32 v{vA[pi]}, s{t1}, v{vL16}")
        a(f"v_lshrrev_b32 v{U}, 5, v{L}")
        a(f"v_bfe_u32 v{U+1}, v{L}, 4, 1")
        a(f"v_bfe_u32 v{U+2}, v{L}, 2, 2")
        a(f"v_and_b32 v{U+3}, 3, v{L}")
        a(f"v_lshl_add_u32 v{vW}, v{U+1}, 2, v{U+2}")
        a(f"v_lshlrev_b32 v{vW}, 11, v{vW}")
        a(f"v_lshlrev_b32 v{vW+1}, 1, v{U+1}")
        a(f"v_xor_b32 v{vW+1}, v{vW+1}, v{U+3}")
        a(f"v_lshl_add_u32 v{vW}, v{vW+1}, 4, v{vW}")
        a(f"v_lshl_add_u32 v{vW}, v{U}, 6, v{vW}")
        a(f"s_lshl_b32 s{t0}, s{sCb}, 7")
        a(f"v_add_u32 v{vW}, s{t0}, v{vW}")
        for pc in range(1, 4): a(f"v_add_u32 v{vW+pc}, {pc*(16384-1024)}, v{vW}")
        a(f"s_lshl_b32 s{sM0g}, s{sWave}, 14")
        a(f"s_add_u32 s{sM0g}, s{sM0g}, {LDS_W1}")
        a(f"v_lshl_add_u32 v{vWe}, v{U}, 10, s{sM0g}")
        a(f"v_lshl_add_u32 v{vWe}, v{U+1}, 8, v{vWe}")
        a(f"v_lshl_add_u32 v{vWe}, v{U+2}, 6, v{vWe}")
        a(f"v_lshl_add_u32 v{vWe}, v{U+1}, 5, v{vWe}")
        a(f"v_lshl_add_u32 v{vWe}, v{U+3}, 3, v{vWe}")
        a(f"v_xor_b32 v{vWo}, 32, v{vWe}")
        a(f"s_and_b32 s{t0}, s{sSlot}, 7")
        a(f"s_lshl_b32 s{t0}, s{t0}, 2")
        a(f"s_add_u32 s{t0}, s{t0}, s{sWave}")
        a(f"s_lshl_b32 s{t0}, s{t0}, 8")
        a(f"s_add_u32 s{t0}, s{t0}, {WS_STAT + 16384}")
        a(f"v_and_b32 v{U+1}, 31, v{L}")
        a(f"v_lshlrev_b32 v{U+1}, 2, v{U+1}")
        for x in range(2):
            a(f"buffer_load_dword v{vSig+x}, v{U+1}, {WSR}, s{t0} offen offset:{x*128} sc1")
        if CPF: code_addr(248)
        a(f"s_mul_i32 s{sKA}, s{sWave}, {(28 if KQ else 1)*131072}")
        a(f"s_add_u32 s{sKA}, s{sKA}, {WS_A2 + 32*131072}")
        a(f"s_mul_i32 s{sKW}, s{sWave}, {(28 if KQ else 1)*65536}")
    def hstore(u, data):
        if u < 8:
            return [f"buffer_store_dwordx2 {data}, v{vO+2 + (u>>2)}, {R(sOut)}, s{sH2} offen offset:{(u&3)*1024} {SC}"]
        p, tt = divmod(u - 8, 8)
        return [f"buffer_store_dwordx4 {data}, v{vO + (tt>>2)}, {R(sOut)}, s{(sH1, t3, t4)[p]} offen offset:{(tt&3)*1024} {SC}"]
    direct = set(range(8, 8 + ND))
    parked = [u for u in range(32) if u not in direct]
    ool = []

    def g1(kind):
        ffn = kind == "ffn"
        NB = 7 if ffn else 6
        RS = 7168 if ffn else 6144
        nW = 4 if ffn else 3
        NF = 8 + NB
        def fr(buf, i): return buf * NF * 4 + i * 4
        def acc(tt, ft): return (ft * 8 + tt) * 4
        if ffn:
            a(f"s_mul_i32 s{t0}, s{sXcd}, 896")
            a(f"s_mul_i32 s{t1}, s{sCt}, 384")
            a(f"s_add_u32 s{t1}, s{t1}, s{t0}")
            a(f"s_lshl_b32 s{t2}, s{sCt}, 6")
            a(f"s_add_u32 s{t2}, s{t2}, s{t0}")
            a(f"s_add_u32 s{t2}, s{t2}, {768 + 4096 - 3072}")
            qstep = 128
        else:
            a(f"s_lshl_b32 s{t1}, s{sXcd}, 1")
            a(f"s_add_u32 s{t1}, s{t1}, s{sCt}")
            a(f"s_sub_u32 s{t1}, s{t1}, 2")
            a(f"s_lshl_b32 s{t1}, s{t1}, 7")
            qstep = 2048
        a(f"s_mul_i32 s{sKW}, s{sCnt}, {128 * RS}")
        a(f"v_mul_u32_u24 v{T+6}, {RS}, v{T+6}")
        a(f"v_add3_u32 v{T+7}, v{T+7}, v{T+6}, s{t1}")
        for q in range(3):
            a(f"v_add_u32 v{vWd+q}, {4096 + q*qstep - q*1024}, v{T+7}")
        if ffn:
            a(f"v_add3_u32 v{T+8}, v{T+8}, v{T+6}, s{t2}")
            a(f"v_lshlrev_b32 v{T+9}, 30, v{ftp}")
            a(f"v_or_b32 v{vWd+3}, v{T+8}, v{T+9}")
        oplog = []
        def wdma_list(stage, pol=WNT):
            l = [[f"s_add_u32 m0, s{sM0W}, {(stage & 3)*16384}"]]
            for q in range(nW):
                l.append([f"buffer_load_dwordx4 v{vWd+q}, {R(sW)}, s{sKW} offen offset:{q*1024} {pol} lds"])
            l.append([f"s_add_u32 s{sKW}, s{sKW}, {32*RS}"])
            if stage & 3 == 3: l.append([f"s_cmp_eq_u32 s{sKW}, {1024 * RS}", f"s_cselect_b32 s{sKW}, 0, s{sKW}"])
            oplog.extend([f"W{stage}"] * nW)
            return l
        def adma_half(Dn, h):
            if Dn < 3: l = [[f"s_add_u32 m0, s{sM0A}, {Dn*32768 + h*4096}"]]
            else: l = [[f"s_add_u32 m0, s{sAw}, {h*4096}"]]
            for p in range(4):
                l.append([f"buffer_load_dwordx4 v{vAd+p}, {R(sKV if h else sX)}, s{sKA} offen offset:{p*1024} {XNT} lds"])
            if h:
                l.append([f"s_add_u32 s{sKA}, s{sKA}, 128"])
                if Dn & 1: l.append([f"s_and_b32 s{sKA}, s{sKA}, 2047"])
            oplog.extend([f"A{Dn}"] * 4)
            return l
        def need(*tags):
            idx = max(i for i, t in enumerate(oplog) if t in tags)
            return len(oplog) - 1 - idx
        def flat(l):
            out = []
            for x in l:
                out += x
                if x[-1].startswith("s_add_u32 m0"): out.append("s_nop 0")
            return out
        for i in range(4): a(f"v_mov_b32 v{12+i}, 0")
        z = [f"v_mfma_f32_32x32x16_bf16 a[{128+16*i}:{143+16*i}], v[12:15], v[12:15], 0" for i in range(8) if i != 2]
        z += [f"v_mfma_f32_32x32x16_bf16 v[{16*i}:{16*i+15}], v[12:15], v[12:15], 0" for i in range(1, 2 * NB)]
        k = 0
        for r in (sX, sKV, sW): a(f"s_mov_b32 s{r+3}, 0x00020000")
        a(f"s_mov_b32 s{sX+2}, {4 * MB}")
        a(f"s_mov_b32 s{sKV+2}, {4 * MB - 65536}")
        a(f"s_mov_b32 s{sW+2}, {1024 * RS + 4096}")
        a("s_waitcnt lgkmcnt(0)")
        stp(a, "p1")
        first = [[f"s_mov_b32 s{sX}, s{pX}", f"s_mov_b32 s{sX+1}, s{pX+1}"]] + adma_half(0, 0)
        first += [[f"s_sub_u32 s{sW}, s{pW1 if ffn else 6}, 4096", f"s_subb_u32 s{sW+1}, s{(pW1 if ffn else 6)+1}, 0"]] + wdma_list(0, PNT)
        first += [[f"s_add_u32 s{sKV}, s{pX}, 65536", f"s_addc_u32 s{sKV+1}, s{pX+1}, 0"]] + adma_half(0, 1)
        for x in flat(first):
            a(x)
            if x.startswith("buffer_") and k < len(z): a(z[k]); k += 1
        srd(a, 88, pDbg, 248, 8)
        a(f"s_or_b32 s{t0}, s2, s{sWave}")
        a(f"s_cbranch_scc1 L_nonon_{kind}")
        a("s_or_b32 s92, s92, 1")
        a("v_mov_b32 v8, s92")
        a("v_mov_b32 v9, s93")
        a("buffer_store_dwordx2 v[8:9], off, s[88:91], 0 sc1")
        a(f"L_nonon_{kind}:")
        pre = Asm(); sv0 = a.lines; a.lines = pre.lines
        stp(a, "p2")
        srd(a, sWS, 4, 0, WS_END)
        a(f"v_and_b32 v{T+9}, 15, v{L}")
        a(f"v_lshrrev_b32 v{T+10}, 1, v{T+9}")
        a(f"v_xor_b32 v{T+10}, v{T+10}, v{T+1}")
        a(f"v_lshlrev_b32 v{T+10}, 4, v{T+10}")
        a(f"v_lshl_add_u32 v{T+10}, v{T+9}, 7, v{T+10}")
        a(f"s_lshl_b32 s{t0}, s{sWr}, 14")
        a(f"v_add_u32 v{vArB}, s{t0}, v{T+10}")
        a(f"v_mov_b32 v{vAr}, v{vArB}")
        a(f"v_xor_b32 v{vAr+1}, 64, v{vArB}")
        a(f"s_mov_b32 s{sArd}, 0")
        a(f"v_lshlrev_b32 v{T+10}, 13, v{ftp}")
        a(f"v_lshl_add_u32 v{T+10}, v{gb}, 8, v{T+10}")
        a(f"v_lshl_add_u32 v{T+10}, v{jj}, 6, v{T+10}")
        a(f"v_add_u32 v{T+10}, {LDS_W1}, v{T+10}")
        a(f"v_lshl_add_u32 v{T+11}, v{gb}, 5, v{T+10}")
        a(f"v_lshl_add_u32 v{T+11}, v{qc}, 3, v{T+11}")
        a(f"s_mul_i32 s{t0}, s{sWc}, {1536 if ffn else 512}")
        a(f"v_add_u32 v{vWe1}, s{t0}, v{T+11}")
        a(f"v_xor_b32 v{vWo1}, 32, v{vWe1}")
        if ffn:
            a(f"v_and_b32 v{T+11}, 1, v{qc}")
            a(f"v_lshlrev_b32 v{T+11}, 1, v{T+11}")
            a(f"v_add_u32 v{T+11}, s{sWc}, v{T+11}")
            a(f"v_xor_b32 v{T+11}, v{T+11}, v{gb}")
            a(f"v_lshl_add_u32 v{T+11}, v{T+11}, 4, v{T+10}")
            a(f"v_lshrrev_b32 v{T+10}, 1, v{qc}")
            a(f"v_lshl_add_u32 v{vWs1}, v{T+10}, 3, v{T+11}")
        a(f"v_mov_b32 v{T+10}, 0x3f803f80")
        for i in range(4): a(f"v_accvgpr_write_b32 a{124+i}, v{T+10}")
        a(f"s_lshl_b32 s{sTile}, s{sXcd}, 2")
        a(f"s_add_u32 s{sTile}, s{sTile}, s{sCt}")
        a(f"s_and_b32 s{t0}, s{sCt}, 1")
        a(f"s_lshl_b32 s{t0}, s{t0}, 1")
        a(f"s_lshl_b32 s{sHead}, s{sXcd}, 2")
        a(f"s_add_u32 s{sHead}, s{sHead}, s{t0}")
        if ffn: a(f"s_add_u32 s{sHead}, s{sHead}, 1")
        a(f"s_lshl_b32 s{t0}, s{sRb}, 2")
        a(f"s_add_u32 s{t0}, s{t0}, s{sWave}")
        a(f"s_lshl_b32 s{t0}, s{t0}, 12")
        a(f"s_lshl_b32 s{t1}, s{sHead}, 17")
        a(f"s_add_u32 s{sQO}, s{t0}, s{t1}")
        a(f"s_add_u32 s{sQO}, s{sQO}, {WS_Q}")
        a(f"s_lshl_b32 s{sSo}, s{sRb}, 15")
        a(f"s_lshl_b32 s{sM0k}, s{sWave}, 12")
        a(f"v_add_u32 v{vDma}, s{sM0k}, v{vL16}")
        a(f"s_lshr_b32 s{t0}, s{sHead}, 1")
        a(f"s_lshl_b32 s{t0}, s{t0}, 7")
        a(f"v_and_b32 v{vFa}, 7, v{L}")
        a(f"v_lshl_add_u32 v{vFa}, v{vFa}, 3, s{t0}")
        srd(a, sOut, pW2, 0, 3584 * 2048)
        a(f"s_lshl_b32 s{sPf}, s2, 2")
        a(f"s_add_u32 s{sPf}, s{sPf}, s{sWave}")
        a(f"s_lshl_b32 s{sPf}, s{sPf}, 10")
        a(f"v_and_b32 v{T+8}, 0x3b, v{L}")
        a(f"v_min_u32 v{T+8}, 1, v{T+8}")
        a(f"v_lshlrev_b32 v{T+8}, 30, v{T+8}")
        a(f"v_lshl_add_u32 v{T+8}, v3, 2, v{T+8}")
        a(f"v_mov_b32 v{T+3}, 0")
        a(f"v_mov_b32 v{T+4}, 0")
        a(f"v_mov_b32 v{T+9}, v6")
        a(f"s_lshl_b32 s{t0}, s{sXcd}, 1")
        a(f"s_add_u32 s{t0}, s{t0}, s{sCt}")
        if ffn:
            a(f"s_lshl_b32 s{t0}, s{t0}, 3")
            a(f"s_lshl_b32 s{t1}, s{sRb}, 7")
            a(f"s_add_u32 s{t0}, s{t0}, s{t1}")
            a(f"s_add_u32 s92, s{t0}, {WS_FL + FH}")
        else:
            a(f"s_sub_u32 s{sCt}, s{t0}, 2")
            a(f"s_lshl_b32 s{t0}, s{sCt}, 7")
            a(f"s_lshl_b32 s{t1}, s{sRb}, 3")
            a(f"s_add_u32 s92, s{t0}, s{t1}")
        a(f"s_lshl_b32 s{t0}, s{sRb}, 8")
        a(f"s_lshl_b32 s93, s{sHead}, 3")
        a(f"s_add_u32 s93, s93, s{t0}")
        a(f"s_add_u32 s93, s93, {WS_FL + FO}")

        a.lines = sv0
        xld = [[f"buffer_load_dwordx4 a[{160+4*i}:{163+4*i}], v6, {R(sX)}, 0 offen offset:{i*512}"] for i in range(4)]
        if PRO == 2:
            more = wdma_list(1, PNT)
            xld = [[z[0].replace(", v6,", f", v{T+9},")] for z in xld]
        elif PRO:
            more = wdma_list(1, PNT) + xld
            oplog.extend(["x"] * 4)
        elif XPOS == 0:
            oplog.extend(["x"] * 4)
            more = xld + wdma_list(1, PNT) + wdma_list(2, PNT) + adma_half(1, 0) + adma_half(1, 1)
        else:
            more = wdma_list(1, PNT) + wdma_list(2, PNT) + adma_half(1, 0) + adma_half(1, 1) + xld
            oplog.extend(["x"] * 4)
        nmore = len(more)
        gap = len(pre.lines) / (nmore + 1)
        for i, x in enumerate(pre.lines):
            a.lines.append(x)
            nxt = pre.lines[i + 1].op if i + 1 < len(pre.lines) else ""
            if nxt in ("s_addc_u32", "s_subb_u32"): continue
            if i % 5 == 4 and k < len(z): a(z[k]); k += 1
            if more and i + 1 >= gap * (nmore - len(more)): a.extend(more.pop(0))
        a.extend(flat(more))
        for x in z[k:]: a(x)
        if CPF == 2 and PRO == 2: code_addr(vFl)
        elif CPF == 2:
            code_pf(vFl); oplog.append("c")
        a("s_nop 1")
        a(f"v_mfma_f32_32x32x16_bf16 v[0:15], a[128:131], a[128:131], 0")
        st_ = Asm(); a.lines = st_.lines
        SU, SQ, TM = T + 3, T + 4, T + 5
        for j in range(16):
            r = T + 6 + (j & 1)
            a(f"v_accvgpr_read_b32 v{r}, a{160+j}")
            a(f"v_dot2c_f32_bf16 v{SU}, v{r}, v{T+10}")
            a(f"v_dot2c_f32_bf16 v{SQ}, v{r}, v{r}")
        a("s_nop 1")
        xreduce(a, SU, TM)
        xreduce(a, SQ, TM)
        a(f"v_mul_f32 v{SU}, {f2u(-1.0/1024):#x}, v{SU}")
        a(f"v_mul_f32 v{SQ}, {f2u(1.0/1024):#x}, v{SQ}")
        a(f"v_fma_f32 v{SQ}, -v{SU}, v{SU}, v{SQ}")
        a(f"v_max_f32 v{SQ}, 0, v{SQ}")
        bf16round(a, SU)
        bf16round(a, SQ)
        a(f"v_add_f32 v{SQ}, {f2u(1e-5):#x}, v{SQ}")
        bf16round(a, SQ)
        a(f"v_sqrt_f32 v{SQ}, v{SQ}")
        a(f"s_mov_b32 s{t2}, {WS_STAT}")
        bf16round(a, SQ)
        a(f"v_rcp_f32 v{TM}, v{SQ}")
        a(f"s_mov_b32 s{t3}, {WS_STAT + 8192}")
        a(f"s_mov_b32 s{t4}, {WS_STAT + 16384}")
        a(f"buffer_store_dword v{SU}, v{T+8}, {WSR}, s{t2} offen sc1")
        a(f"buffer_store_dword v{TM}, v{T+8}, {WSR}, s{t3} offen sc1")
        a(f"buffer_store_dword v{SQ}, v{T+8}, {WSR}, s{t4} offen sc1")
        a.lines = sv0
        stl = []
        for x in st_.lines:
            if stl and stl[-1][-1].startswith("s_nop"): stl[-1].append(x.text)
            else: stl.append([x.text])

        def read_list(step):
            buf = step & 1; so = (step & 3) * 16384
            rb = []
            for ft in range(NB):
                r = fr(buf, 8 + ft)
                if ffn and ft == 6: v = vWs1; off = 3072
                else:
                    v = vWo1 if ft & 1 else vWe1
                    off = (ft >> 1) * (512 if ffn else 1024)
                rb.append([f"ds_read_b64_tr_b16 a[{r+2*rd}:{r+2*rd+1}], v{v} offset:{so + rd*4096 + off}" for rd in range(2)])
            ra = [f"ds_read_b128 a[{fr(buf, tt)}:{fr(buf, tt)+3}], v{vAr + (step & 1)} offset:{tt*2048}" for tt in range(8)]
            l = rb[0] + ra
            for x in rb[1:]: l += x
            return l
        def mfmas(buf):
            l = []
            for ft in range(NB):
                for tt in (range(8) if ft % 2 == 0 else range(7, -1, -1)):
                    c = acc(tt, ft); w = fr(buf, 8 + ft); x = fr(buf, tt)
                    if (not ffn) and ft >= 4: w, x = x, w
                    l.append(f"v_mfma_f32_16x16x32_bf16 v[{c}:{c+3}], a[{w}:{w+3}], a[{x}:{x+3}], v[{c}:{c+3}]")
            return l
        ard_adv = [[f"s_add_u32 s{sAw}, s{sArd}, s{sM0A}"], [f"s_add_u32 s{sArd}, s{sArd}, 32768"], [f"s_cmp_eq_u32 s{sArd}, 98304", f"s_cselect_b32 s{sArd}, 0, s{sArd}"]]
        ard_set = [f"v_add_u32 v{vAr}, s{sArd}, v{vArB}", f"v_xor_b32 v{vAr+1}, 64, v{vAr}"]
        stp(a, "p5")
        a(f"s_waitcnt vmcnt({need('W0', 'A0')})")
        a("s_barrier")
        stp(a, "p6")
        a.extend(read_list(0))
        if PRO == 2: a("s_waitcnt lgkmcnt(0)")
        else:
            a(f"s_waitcnt vmcnt({need('W1')}) lgkmcnt(0)")
            a("s_barrier")
        def step(k4, dl, vm, reads=True, extra=(), cs=False, span=DMAF, tail=()):
            m = mfmas(k4 & 1)
            if cs:
                m = [f"v_mfma_f32_16x16x32_bf16 a[{128+4*ft}:{131+4*ft}], a[{fr(k4 & 1, 8 + ft)}:{fr(k4 & 1, 8 + ft)+3}], a[124:127], a[{128+4*ft}:{131+4*ft}]"
                     for ft in range(NB)] + m
            n = len(m)
            sr = []
            if reads:
                rl = read_list(k4 + 1)
                sr = [((i * int(n * RDF)) // len(rl), x) for i, x in enumerate(rl)]
            sd = [((i * int(n * span)) // len(dl), x) for i, x in enumerate(dl)]
            if reads and k4 % 2 == 0:
                sd += [(n - 12 + 2 * i, x) for i, x in enumerate(ard_adv + ard_set)]
            a.extend(sched(m, [sd, sr, list(extra)], BUD if not extra and span == DMAF else 8))
            a.extend(tail)
            if vm is not None:
                a(f"s_waitcnt vmcnt({vm}) lgkmcnt(0)")
                if not (XB and k4 & 1): a("s_barrier")
        def std_dl(k):
            return wdma_list(k + 4) + (adma_half((k + 5) // 2, 0) if k & 1 else adma_half((k + 4) // 2, 1))
        def std_need(k):
            return need(f"W{k+2}", f"A{(k+2)//2}")
        stp(a, "g1loop")
        stt = [x.text for x in st_.lines]
        if PRO == 2:
            m = [f"v_mfma_f32_16x16x32_bf16 a[{128+4*ft}:{131+4*ft}], a[{fr(0, 8 + ft)}:{fr(0, 8 + ft)+3}], a[124:127], a[{128+4*ft}:{131+4*ft}]"
                 for ft in range(NB)] + mfmas(0)
            hf = len(m) // 2
            rl = read_list(1); ra = [z for z in rl if "b128" in z]; rw = [z for z in rl if "b128" not in z]
            dl = wdma_list(2, PNT) + adma_half(1, 0) + adma_half(1, 1)
            a.extend(sched(m[:hf], [[((i * (hf - 2)) // len(dl), x) for i, x in enumerate(dl)], [(2 + 3 * i, x) for i, x in enumerate(ra)]], 8))
            a(f"s_waitcnt vmcnt({need('W1')})")
            a("s_barrier")
            cl = [[f"global_load_dwordx4 a[120:123], v[{vFl}:{vFl+1}], off"]] if CPF == 2 else []
            oplog.extend(["c"] * len(cl) + ["x"] * 4)
            dl = cl + xld + wdma_list(3, PNT) + ard_adv + [[z] for z in ard_set]
            n2 = len(m) - hf
            a.extend(sched(m[hf:], [[((i * (n2 - 2)) // len(dl), x) for i, x in enumerate(dl)], [(i + i // 2, x) for i, x in enumerate(rw)]], 8))
            a(f"s_waitcnt vmcnt({std_need(0)}) lgkmcnt(0)")
            a("s_barrier")
            stp(a, "k1")
            dl = adma_half(2, 0) + adma_half(2, 1) + wdma_list(4) + wdma_list(5)
            stt = [f"s_waitcnt vmcnt({need('x')})"] + stt
            oplog.extend(["st"] * 3)
            step(1, dl, std_need(1), cs=True, span=0.85, tail=stt)
        else:
            dl = wdma_list(3, PNT) + adma_half(2, 0) + adma_half(2, 1) if not PRO else \
                 wdma_list(2, PNT) + adma_half(1, 0) + adma_half(1, 1) + wdma_list(3, PNT)
            stt = [f"s_waitcnt vmcnt({need('x')})"] + stt
            if STAMP and "k0a" in STAMPS:
                i_ = STAMPS.index("k0a"); tn = 's_memtime' if STAMP == 2 else 's_memrealtime'
                stt = [f"{tn} s[{60+2*i_}:{61+2*i_}]"] + stt + [f"{tn} s[{62+2*i_}:{63+2*i_}]"]
            oplog.extend(["st"] * 3)
            step(0, dl, std_need(0), cs=True, span=0.85, tail=stt)
            stp(a, "k1")
            dl = wdma_list(4) + wdma_list(5) + adma_half(3, 0) if not PRO else adma_half(2, 0) + adma_half(2, 1) + wdma_list(4) + wdma_list(5); step(1, dl, std_need(1), cs=True, span=0.85)
        stp(a, "k2")
        n1 = 9 * NB - 4
        dl = std_dl(2) if not PRO else wdma_list(6) + adma_half(3, 0) + adma_half(3, 1)
        step(2, dl, std_need(2), cs=True, span=0.75 if PRO else DMAF)
        e = [f"s_lshl_b32 s{t0}, s{sTile}, 13", f"s_lshl_b32 s{t1}, s{sRb}, 10", f"s_add_u32 s{t0}, s{t0}, s{t1}", f"s_mul_i32 s{t1}, s{sWc}, {NB*64}",
             f"s_add_u32 s{t0}, s{t0}, s{t1}", f"s_add_u32 s{t0}, s{t0}, {WS_CS}", f"v_and_b32 v{T}, 15, v{L}", f"v_or_b32 v{T}, s{sWr}, v{T}",
             f"v_lshlrev_b32 v{T}, 27, v{T}", f"v_and_b32 v{T+1}, 48, v{L}", f"v_or_b32 v{T}, v{T}, v{T+1}", f"s_mov_b32 s{sCnt}, 6"]
        stp(a, "k3")
        e += [flagld("off", "s[88:91]")]
        e += [f"buffer_store_dwordx4 a[{128+4*ft}:{131+4*ft}], v{T}, {WSR}, s{t0} offen offset:{ft*64} sc1" for ft in range(NB)]
        dl = std_dl(3); step(3, dl, std_need(3), cs=True, extra=[(12 + 2 * i, x) for i, x in enumerate(e)])
        stp(a, "h6")
        a(".p2align 6")
        a(f"L_g1_{kind}_loop:")
        pf = [f"buffer_load_dwordx4 a[120:123], v{vL16}, {R(sOut)}, s{sPf} offen", f"s_add_u32 s{sPf}, s{sPf}, {MB}"]
        for k4 in range(4):
            dl = std_dl(4 + k4)
            if k4 in (0, 2) and PFG1:
                dl += [[pf[0]], [pf[1]]]; oplog.append("pf")
            if k4 == 3:
                dl = [[f"s_cmp_eq_u32 s{sCnt}, 1", f"s_cselect_b32 s{sX+2}, 0, s{sX+2}"]] + dl + [[f"s_sub_u32 s{sCnt}, s{sCnt}, 1"], [f"s_bitcmp1_b32 0x3d, s{sCnt}"]]
            step(k4, dl, std_need(4 + k4))
        a(f"s_cbranch_scc0 L_g1_{kind}_loop")
        a(f"s_cmp_lg_u32 s{sCnt}, 0")
        a(f"s_cbranch_scc1 L_hk5_{kind}")
        b = Asm(); sv = a.lines; a.lines = b.lines
        a(f"L_hk5_{kind}:")
        a(f"s_cmp_lg_u32 s{sCnt}, 5")
        a(f"s_cbranch_scc1 L_hk4_{kind}")
        stp(a, "h5")
        for i in range(3): a(f"v_mfma_f32_32x32x16_bf16 a[{128+16*i}:{143+16*i}], a[176:179], a[176:179], 0")
        poll("off", True, "s[88:91]", "0", "eq")
        a(f"v_readfirstlane_b32 s{sN}, v{vFl}")
        a(f"v_readfirstlane_b32 s{sN+1}, v{vFl+1}")
        a(f"s_lshl_b32 s{t0}, s2, 5")
        a(f"s_add_u32 s{t0}, s{t0}, {WS_FL + F0}")
        publish(t0, T)
        if CPF == 1: code_pf(T + 2)
        a(f"s_branch L_g1_{kind}_loop")
        a(f"L_hk4_{kind}:")
        a(f"s_cmp_lg_u32 s{sCnt}, 4")
        a(f"s_cbranch_scc1 L_hk3_{kind}")
        a(f"s_lshl_b32 s{t0}, s{sRb}, 5")
        a(f"v_add_u32 v{T}, s{t0}, v{L}")
        a(f"s_and_b32 s{t0}, s2, 0xc7")
        a(f"v_and_b32 v{T+1}, 7, v{L}")
        a(f"v_lshl_add_u32 v{T+1}, v{T+1}, 3, s{t0}")
        a(f"v_cmp_gt_u32 vcc, 32, v{L}")
        a("s_nop 1")
        a(f"v_cndmask_b32 v{T+1}, v{T+1}, v{T}, vcc")
        a(f"v_lshlrev_b32 v{T+1}, 5, v{T+1}")
        a(f"v_add_u32 v{T+1}, {WS_FL + F0}, v{T+1}")
        a(flagld(f"v{T+1}"))
        if TPF:
            a(f"v_lshlrev_b32 v{T}, 19, v{L}")
            a(f"s_mov_b32 s{t0}, {WS_Q}")
            a(f"buffer_load_dword v{T+2}, v{T}, {WSR}, s{t0} offen")
            srd(a, 88, pOut, 0, 4 * MB)
            a(f"v_lshlrev_b32 v{T}, 16, v{L}")
            a(f"buffer_load_dword v{T+2}, v{T}, s[88:91], 0 offen")
        a(f"s_branch L_g1_{kind}_loop")
        a(f"L_hk3_{kind}:")
        a(f"s_cmp_eq_u32 s{sCnt}, 3")
        a(f"s_cbranch_scc1 L_hk3b_{kind}")
        stp(a, "h2")
        srd(a, sOut, pWO, 0, 1024 * 2048)
        a(f"s_and_b32 s{sPf}, s{sPf}, {MB - 1}")
        if CPF:
            code_addr(vFl)
            a(f"global_load_dwordx4 a[120:123], v[{vFl}:{vFl+1}], off")
        a(f"s_branch L_g1_{kind}_loop")
        a(f"L_hk3b_{kind}:")
        stp(a, "h1")
        poll(f"v{T+1}", True)
        a(f"s_lshl_b32 s{t0}, s{sWave}, 8")
        a(f"v_lshl_add_u32 v{T}, v{L}, 2, s{t0}")
        a(f"s_lshl_b32 s{t0}, s{sTile}, 13")
        a(f"s_add_u32 s{t0}, s{t0}, {WS_CS}")
        a(f"s_add_u32 s{t1}, s{t0}, 4096")
        for i in range(8):
            a(f"buffer_load_dword v{T+2+i}, v{T}, {WSR}, s{t0 if i < 4 else t1} offen offset:{(i&3)*1024} sc1")
        a(f"s_lshl_b32 s{t0}, s{sRb}, 10")
        a(f"s_add_u32 s{t0}, s{t0}, {WS_STAT}")
        a(f"s_add_u32 s{t1}, s{t0}, 8192")
        a(f"buffer_load_dword v{T+10}, v{T}, {WSR}, s{t0} offen sc1")
        a(f"buffer_load_dword v{T+11}, v{T}, {WSR}, s{t1} offen sc1")
        stp(a, "h1e")
        a(f"s_branch L_g1_{kind}_loop")
        ool.extend([x.text for x in b.lines]); a.lines = sv
        stp(a, "tail")
        adds = [f"v_add_f32 v{T+2+2*i}, v{T+2+2*i}, v{T+3+2*i}" for i in range(4)] + \
               [f"v_add_f32 v{T+2}, v{T+2}, v{T+4}", f"v_add_f32 v{T+6}, v{T+6}, v{T+8}", f"v_add_f32 v{T+2}, v{T+2}, v{T+6}",
                f"v_add_u32 v{T}, {LDS_SCR}, v{T}"]
        step(0, [], nW + 4, extra=[(2 + 3 * i, x) for i, x in enumerate(adds)])
        step(1, [], 4, extra=[(40, f"ds_write_b32 v{T}, v{T+2}"), (42, f"ds_write_b32 v{T}, v{T+10} offset:1024"), (44, f"ds_write_b32 v{T}, v{T+11} offset:2048")])
        e = Asm(); sv = a.lines; a.lines = e.lines
        if ffn:
            a(f"s_lshl_b32 s{t0}, s{sRb}, 14")
            a(f"s_lshl_b32 s{t1}, s{sWr}, 13")
            a(f"s_add_u32 s{t0}, s{t0}, s{t1}")
            a(f"v_add_u32 v{vO}, s{t0}, v{vL16}")
            a(f"v_add_u32 v{vO+1}, 4096, v{vO}")
            a(f"s_lshl_b32 s{t1}, s{sWc}, 9")
            a(f"s_add_u32 s{t0}, s{t0}, s{t1}")
            a(f"v_lshrrev_b32 v{vO+2}, 5, v{L}")
            a(f"v_lshl_add_u32 v{vO+2}, v{vO+2}, 8, s{t0}")
            a(f"v_and_b32 v{vO+3}, 15, v{L}")
            a(f"v_lshl_add_u32 v{vO+2}, v{vO+3}, 4, v{vO+2}")
            a(f"v_bfe_u32 v{vO+3}, v{L}, 4, 1")
            a(f"v_lshl_add_u32 v{vO+2}, v{vO+3}, 3, v{vO+2}")
            a(f"v_add_u32 v{vO+3}, 4096, v{vO+2}")
            a(f"s_mul_i32 s{t0}, s{sXcd}, 14")
            a(f"s_mul_i32 s{t1}, s{sCt}, 6")
            a(f"s_mul_i32 s{t2}, s{sWc}, 3")
            a(f"s_add_u32 s{t1}, s{t1}, s{t2}")
            a(f"s_add_u32 s{t1}, s{t1}, s{t0}")
            a(f"s_add_u32 s{t1}, s{t1}, {32 + WS_A2 // 131072}")
            a(f"s_lshl_b32 s{t1}, s{t1}, 17")
            a(f"s_add_u32 s{t2}, s{t0}, s{sCt}")
            a(f"s_add_u32 s{t2}, s{t2}, {44 + WS_A2 // 131072}")
            a(f"s_lshl_b32 s{t2}, s{t2}, 17")
            a(f"s_add_u32 s{t3}, s{t1}, 131072")
            a(f"s_add_u32 s{t4}, s{t1}, 262144")
        else:
            a(f"s_lshl_b32 s{t0}, s{sRb}, 3")
            a(f"s_lshl_b32 s{t1}, s{sWr}, 2")
            a(f"s_add_u32 s{t0}, s{t0}, s{t1}")
            a(f"s_lshl_b32 s{t0}, s{t0}, 11")
            a(f"s_lshl_b32 s{t3}, s{sCt}, 1")
            a(f"s_add_u32 s{t3}, s{t3}, s{sWc}")
            a(f"s_lshl_b32 s{t3}, s{t3}, 17")
            a(f"s_add_u32 s{t1}, s{t3}, s{t0}")
            a(f"s_lshl_b32 s{t2}, s{t1}, 1")
            a(f"s_add_u32 s{t2}, s{t2}, {WS_KV}")
            a(f"s_add_u32 s{t1}, s{t1}, {WS_Q}")
            a(f"v_lshrrev_b32 v{vO+2}, 4, v{L}")
            a(f"v_lshlrev_b32 v{vO+2}, 9, v{vO+2}")
            a(f"v_and_b32 v{vO+3}, 15, v{L}")
            a(f"v_lshl_add_u32 v{vO}, v{vO+3}, 4, v{vO+2}")
            a(f"v_bfe_u32 v{vO+3}, v{L}, 2, 2")
            a(f"v_lshl_add_u32 v{vO+2}, v{vO+3}, 7, v{vO+2}")
            a(f"v_and_b32 v{vO+3}, 3, v{L}")
            a(f"v_lshl_add_u32 v{vO+1}, v{vO+3}, 4, v{vO+2}")
            a(f"s_mov_b32 s{t4}, {f2u(QSCALE):#x}")
        a(f"s_lshl_b32 s{t5}, s{sHead}, 18")
        a(f"s_add_u32 s{t5}, s{t5}, {WS_KV}")
        a(f"s_add_u32 s{sKV}, s4, s{t5}")
        a(f"s_addc_u32 s{sKV+1}, s5, 0")
        a(f"s_mov_b32 s{sKV+2}, {SZ_KV}")
        if ffn:
            a(f"s_lshl_b32 s90, 0x01010101, s{sRb}")
            a(f"s_mov_b32 s91, 0")
        a(f"s_mul_i32 s{t5}, s{sWc}, {NB*64}")
        a(f"s_add_u32 s{t5}, s{t5}, {LDS_SCR}")
        a(f"v_and_b32 v248, 48, v{L}")
        a(f"v_add_u32 v248, s{t5}, v248")
        a(f"s_lshl_b32 s{t0}, s{sWr}, 9")
        a(f"s_add_u32 s{t0}, s{t0}, {LDS_SCR + 1024}")
        a(f"v_and_b32 v249, 15, v{L}")
        a(f"v_lshl_add_u32 v249, v249, 2, s{t0}")
        if not ffn:
            a(f"v_and_b32 v222, 15, v{L}")
            a(f"v_lshl_add_u32 v222, v222, 2, s{t5}")
            a(f"v_and_b32 v223, 48, v{L}")
            a(f"v_add_u32 v223, s{t0}, v223")
        el = []
        for x in e.lines:
            if x.op in ("s_addc_u32", "s_subb_u32", "s_cselect_b32"): el[-1].append(x.text)
            else: el.append([x.text])
        a.lines = sv
        n = 8 * NB
        step(2, [], 0, extra=[(2 + (i * (n - 12)) // len(el), x) for i, x in enumerate(el)])
        rds = []
        for tt in range(8):
            rds.append(f"ds_read_b32 v{ST+2*tt}, v249 offset:{tt*64}")
            if not ffn: rds.append(f"ds_read_b32 v{ST+2*tt+1}, v249 offset:{1024 + tt*64}")
        if ffn:
            rds.append(f"ds_read_b128 v[244:247], v248 offset:{6*64}")
        else:
            for ft in range(4): rds.append(f"ds_read_b128 v[{192+4*ft}:{195+4*ft}], v248 offset:{ft*64}")
            for vt in range(2): rds.append(f"ds_read_b32 v{208+2*vt}, v222 offset:{(4+vt)*64}")
        step(3, [], None, reads=False, extra=[(2 + 2 * i, x) for i, x in enumerate(rds)])
        stp(a, "g1end")
        BC = "op_sel_hi:[1,0,1]"
        if ffn:
            a("s_nop 0")
            a(f"s_mov_b32 s{sH1}, s{t1}")
            a(f"s_mov_b32 s{sH2}, s{t2}")
            a(f"s_mov_b32 s{sPub}, s92")
            srd(a, sOut, 4, 0, WS_END)
            a("s_waitcnt lgkmcnt(0)")
            pend = []
            for u in range(8):
                c = acc(u, 6)
                for h in range(2):
                    a(f"v_pk_fma_f32 v[{c+2*h}:{c+2*h+1}], v[{244+2*h}:{245+2*h}], v[{ST+2*u}:{ST+2*u+1}], v[{c+2*h}:{c+2*h+1}] {BC}")
                a(f"v_cvt_pk_bf16_f32 v{c}, v{c}, v{c+1}")
                a(f"v_cvt_pk_bf16_f32 v{c+1}, v{c+2}, v{c+3}")
                a(f"v_pk_max_i16 v{c}, v{c}, 0")
                a(f"v_pk_max_i16 v{c+1}, v{c+1}, 0")
                if u in direct: pend.append(hstore(u, f"v[{c}:{c+1}]"))
                else:
                    for e_ in range(2): a(f"v_accvgpr_write_b32 a{4*parked.index(u)+e_}, v{c+e_}")
                if u == 1:
                    a(f"ds_read_b64 v[194:195], v248 offset:64")
                    a(f"ds_read_b64 v[198:199], v248 offset:72")
                if u == 3:
                    a(f"ds_read_b64 v[202:203], v248 offset:0")
                    a(f"ds_read_b64 v[206:207], v248 offset:8")
            for i, r in enumerate((210, 214, 218, 222)):
                a(f"ds_read_b64 v[{r}:{r+1}], v248 offset:{128 + (i>>1)*64 + (i&1)*8}")
            a(f"ds_read_b128 v[244:247], v248 offset:{4*64}")
            CSM = {0: (202, 206), 1: (194, 198), 2: (210, 214), 3: (218, 222), 4: (244, 246), 5: (194, 198)}
            groups = at_load_groups()
            polled = False; after = []
            def drip(k):
                for _ in range(k):
                    if groups:
                        a.extend(groups.pop(0)); after.append("ld")
                    elif pend:
                        a.extend(pend.pop(0)); after.append("st")
            for u in range(8, 32):
                p, tt = divmod(u - 8, 8)
                if u == 8: a("s_waitcnt lgkmcnt(5)")
                if u == 16:
                    a("s_waitcnt lgkmcnt(0)")
                    a(f"ds_read_b64 v[194:195], v248 offset:{5*64}")
                    a(f"ds_read_b64 v[198:199], v248 offset:{5*64+8}")
                if u == 24: a("s_waitcnt lgkmcnt(0)")
                if u == EPOLL - ELEAD: a(flagld(f"v{vFa}"))
                c0, c1 = acc(tt, 2 * p), acc(tt, 2 * p + 1)
                for c, cs in ((c0, CSM[2 * p]), (c1, CSM[2 * p + 1])):
                    for h in range(2):
                        a(f"v_pk_fma_f32 v[{c+2*h}:{c+2*h+1}], v[{cs[h]}:{cs[h]+1}], v[{ST+2*tt}:{ST+2*tt+1}], v[{c+2*h}:{c+2*h+1}] {BC}")
                a(f"v_cvt_pk_bf16_f32 v{c0}, v{c0}, v{c0+1}")
                a(f"v_cvt_pk_bf16_f32 v{c0+1}, v{c0+2}, v{c0+3}")
                a(f"v_cvt_pk_bf16_f32 v{c0+2}, v{c1}, v{c1+1}")
                a(f"v_cvt_pk_bf16_f32 v{c0+3}, v{c1+2}, v{c1+3}")
                for e_ in range(4): a(f"v_pk_max_i16 v{c1+e_}, v{c0+e_}, 0")
                if u in direct: pend.append(hstore(u, f"v[{c1}:{c1+3}]"))
                else:
                    for e_ in range(4): a(f"v_accvgpr_write_b32 a{4*parked.index(u)+e_}, v{c1+e_}")
                if u == EPOLL:
                    stp(a, "e1")
                    a(f"s_waitcnt vmcnt(0)")
                    stp(a, "e2")
                    poll(f"v{vFa}", True, mask="s[90:91]")
                    stp(a, "e4")
                    polled = True
                if polled: drip(4)
            drip(64)
            a("s_nop 1")
            at_init(); g2_setup(); after += ["x"] * 2
            idx = [i for i, z in enumerate(after) if z == "ld"][7 if HALF else 11]
            a(f"s_waitcnt vmcnt({len(after) - 1 - idx})")
            a("s_branch L_at_entry")
        else:
            QSC = SC
            vLq, vLk, vLv = 209, 211, 222
            srd(a, sOut, 4, 0, WS_END)
            a(f"s_cmp_lg_u32 s{sWc}, 0")
            a(f"s_cselect_b32 s{sOut+2}, s{sOut+2}, 0")
            a(f"s_cselect_b64 vcc, -1, 0")
            a(f"s_lshl_b32 s{t0}, s{sWr}, 14")
            a(f"v_add_u32 v{vLk}, s{t0}, v{vO+1}")
            a(f"v_add_u32 v{vLv}, s{t0}, v{vO}")
            a(f"s_lshl_b32 s{t0}, s{sWr}, 13")
            a(f"s_add_u32 s{t0}, s{t0}, {LDS_W1}")
            a(f"v_add_u32 v{vLq}, s{t0}, v{vO}")
            def own(v, c0, off):
                if not OWN: return
                n = lab[0]; lab[0] += 1
                a(f"s_cbranch_vccnz L_ow{n}")
                a(f"ds_write_b128 v{v}, v[{c0}:{c0+3}] offset:{off}")
                a(f"L_ow{n}:")
            a(f"s_mov_b32 s{sPub}, 0")
            a("s_waitcnt lgkmcnt(0)")
            a("s_nop 4")
            for b_ in range(4):
                for e_ in range(2):
                    a(f"ds_read_b128 v[{212+4*e_}:{215+4*e_}], v223 offset:{(2*b_+e_)*64}")
                a(f"ds_read_b128 v[244:247], v223 offset:{1024 + (2*b_)*64}")
                a(f"ds_read_b64 v[220:221], v223 offset:{1024 + (2*b_+1)*64}")
                a(f"ds_read_b64 v[242:243], v223 offset:{1024 + (2*b_+1)*64 + 8}")
                for X in (1, 0):
                    for h in range(2):
                        tt = 2 * b_ + h
                        st_ = f"v[{ST+2*tt}:{ST+2*tt+1}]"
                        if X == 0: a(f"v_mul_f32 v{ST+2*tt+1}, s{t4}, v{ST+2*tt+1}")
                        c0 = acc(tt, 2 * X)
                        for e_ in range(2):
                            c = acc(tt, 2 * X + e_); cs = 192 + 4 * (2 * X + e_)
                            for h2 in range(2):
                                a(f"v_pk_fma_f32 v[{c+2*h2}:{c+2*h2+1}], v[{cs+2*h2}:{cs+2*h2+1}], {st_}, v[{c+2*h2}:{c+2*h2+1}] {BC}")
                            for h2 in range(2):
                                a(f"v_pk_mul_f32 v[{c+2*h2}:{c+2*h2+1}], v[{c+2*h2}:{c+2*h2+1}], {st_} op_sel:[0,1]")
                        c1 = acc(tt, 2 * X + 1)
                        a(f"v_cvt_pk_bf16_f32 v{c0}, v{c0}, v{c0+1}")
                        a(f"v_cvt_pk_bf16_f32 v{c0+1}, v{c0+2}, v{c0+3}")
                        a(f"v_cvt_pk_bf16_f32 v{c0+2}, v{c1}, v{c1+1}")
                        a(f"v_cvt_pk_bf16_f32 v{c0+3}, v{c1+2}, v{c1+3}")
                        if X: a(f"buffer_store_dwordx4 v[{c0}:{c0+3}], v{vO+1}, {WSR}, s{t2} offen offset:{h*64} {QSC}")
                        else: a(f"buffer_store_dwordx4 v[{c0}:{c0+3}], v{vO}, {R(sOut) if OWN else WSR}, s{t1} offen offset:{h*256} {QSC}")
                        if X: own(vLk, c0, b_ * 4096 + h * 64)
                        else: own(vLq, c0, b_ * 2048 + h * 256)
                a("s_waitcnt lgkmcnt(0)")
                for vt in range(2):
                    c0 = acc(2 * b_, 4 + vt)
                    for e_ in range(2):
                        c = acc(2 * b_ + e_, 4 + vt)
                        rs = ((244, 246), (220, 242))[e_]
                        for h2 in range(2):
                            a(f"v_pk_fma_f32 v[{c+2*h2}:{c+2*h2+1}], v[{212+4*e_+2*h2}:{213+4*e_+2*h2}], v[{208+2*vt}:{209+2*vt}], v[{c+2*h2}:{c+2*h2+1}] {BC}")
                        for h2 in range(2):
                            a(f"v_pk_mul_f32 v[{c+2*h2}:{c+2*h2+1}], v[{c+2*h2}:{c+2*h2+1}], v[{rs[h2]}:{rs[h2]+1}]")
                    c1 = acc(2 * b_ + 1, 4 + vt)
                    a(f"v_cvt_pk_bf16_f32 v{c0}, v{c0}, v{c0+1}")
                    a(f"v_cvt_pk_bf16_f32 v{c0+1}, v{c0+2}, v{c0+3}")
                    a(f"v_cvt_pk_bf16_f32 v{c0+2}, v{c1}, v{c1+1}")
                    a(f"v_cvt_pk_bf16_f32 v{c0+3}, v{c1+2}, v{c1+3}")
                    a(f"buffer_store_dwordx4 v[{c0}:{c0+3}], v{vO}, {WSR}, s{t2} offen offset:{2048 + vt*256} {QSC}")
                    own(vLv, c0, b_ * 4096 + 2048 + vt * 256)
                a(f"s_add_u32 s{t1}, s{t1}, 2048")
                a(f"s_add_u32 s{t2}, s{t2}, 4096")
            if OWN:
                stp(a, "e1")
                a("s_waitcnt lgkmcnt(0)")
                srd(a, sOut, 4, 0, 0)
                for r in (sH1, sH2, t3, t4): a(f"s_mov_b32 s{r}, 0")
                at_init(); g2_setup()
                a(f"s_add_u32 s{sSo}, s{sSo}, 32768")
                a(so_wrap)
                a(f"v_add_u32 v{U}, {LDS_W1}, v{vDma}")
                a(f"v_lshlrev_b32 v{U+1}, 7, v{L}")
                a(f"v_and_b32 v{U+2}, 0xf80, v{U+1}")
                a(f"s_add_u32 s{t1}, s{sQO}, 131072")
                a(f"s_sub_u32 s{t0}, s{t1}, {WS_Q}")
                a(f"s_lshl_b32 s{t0}, s{t0}, 1")
                a(f"s_add_u32 s{t0}, s{t0}, {WS_KV}")
                a("s_waitcnt vmcnt(0)")
                a("s_barrier")
                stp(a, "e2")
                publish(92, T)
                if WARM:
                    a(f"buffer_load_dword v{U+3}, v{U+2}, {WSR}, s{t1} offen sc1")
                    a(f"buffer_load_dword v{U+3}, v{U+1}, {WSR}, s{t0} offen sc1")
                stp(a, "e4")
                for x in range(2):
                    for h in range(2):
                        a(f"ds_read_b128 v[{Q[x]+4*h}:{Q[x]+4*h+3}], v{U} offset:{x*2048+h*1024}")
            else:
                stp(a, "e1")
                a("s_waitcnt vmcnt(0)")
                a("s_barrier")
                stp(a, "e2")
                publish(92, T)
                stp(a, "e4")
                for g_ in at_load_groups(): a.extend(g_)
                srd(a, sOut, 4, 0, 0)
                for r in (sH1, sH2, t3, t4): a(f"s_mov_b32 s{r}, 0")
                at_init(); g2_setup()
                a("s_waitcnt vmcnt(2)")
    g1("ffn")
    if LAY:
        assert a.lines[-1].text == "s_branch L_at_entry"
        a.lines.pop()
        qv = Asm(); svq = a.lines; a.lines = qv.lines
        a(".p2align 6")
        a("L_g1_qkv:")
        g1("qkv")
        a("s_branch L_at_entry")
        qcode = [z.text for z in a.lines]; a.lines = svq
    else:
        a("L_g1_qkv:")
        g1("qkv")

    a("L_at_entry:")
    stp(a, "atentry")
    a("s_barrier")
    def rdK(t, tl):
        b = Kf[t & 1]
        return [f"ds_read_b128 v[{b}:{b+3}], v{vCur} offset:{tl*4096}", f"ds_read_b128 v[{b+4}:{b+7}], v{vCur} offset:{tl*4096+1024}"]
    def rdV(t, tl):
        b = Vf[t & 1]
        return [f"ds_read_b128 v[{b}:{b+3}], v{vCur} offset:{tl*4096+2048}", f"ds_read_b128 v[{b+4}:{b+7}], v{vCur} offset:{tl*4096+3072}"]
    def qk(x, t, c0=None):
        s = S[x]; k = Kf[t & 1]; q = Q[x]
        c = f"v[{NM[x]}:{NM[x]+15}]" if c0 is None else c0
        return [f"v_mfma_f32_32x32x16_bf16 v[{s}:{s+15}], v[{k}:{k+3}], v[{q}:{q+3}], {c}",
                f"v_mfma_f32_32x32x16_bf16 v[{s}:{s+15}], v[{k+4}:{k+7}], v[{q+4}:{q+7}], v[{s}:{s+15}]"]
    def PV(x, t, h):
        v = Vf[t & 1]
        return f"v_smfmac_f32_32x32x32_bf16 v[{O[x]}:{O[x]+15}], v[{v+4*h}:{v+4*h+3}], v[{D[x]+8*h}:{D[x]+8*h+7}], v{IDX}"
    def LS(x, h):
        return f"v_smfmac_f32_16x16x64_bf16 v[{Lr[x]}:{Lr[x]+3}], v[{ONE}:{ONE+3}], v[{D[x]+8*h}:{D[x]+8*h+7}], v{IDX}"
    a.extend(rdK(0, 0))
    a.extend(rdV(0, 0))
    a("s_waitcnt lgkmcnt(0)")
    a.extend(qk(0, 0, "0"))
    a.extend(qk(1, 0, "0"))
    a("s_nop 7")
    a("s_nop 1")
    for x in range(2):
        s0 = S[x]
        a(f"v_max3_f32 v{U}, v{s0}, v{s0+1}, v{s0+2}")
        for i in range(3, 15, 2): a(f"v_max3_f32 v{U}, v{U}, v{s0+i}, v{s0+i+1}")
        a(f"v_max_f32 v{U}, v{U}, v{s0+15}")
        a(f"v_mov_b32 v{U+2}, v{U}")
        a("s_nop 1")
        a(f"v_permlane32_swap_b32 v{U}, v{U+2}")
        a(f"v_max_f32 v{U}, v{U}, v{U+2}")
        a(f"v_sub_f32 v{NM[x]}, 0, v{U}")
        a(f"v_sub_f32 v{NM[x]+1}, 0, v{U}")
        for i in range(2, 16, 2): a(f"v_mov_b64 v[{NM[x]+i}:{NM[x]+i+1}], v[{NM[x]}:{NM[x]+1}]")
        if x == 0:
            for i in range(0, 16, 2): a(f"v_pk_add_f32 v[{s0+i}:{s0+i+1}], v[{s0+i}:{s0+i+1}], v[{NM[x]}:{NM[x]+1}]")
    a("s_nop 1")
    stp(a, "atloop")

    def acc2(tt, ft): return 128 + (tt * 4 + ft) * 4
    def ab(buf, tt): return buf * 32 + tt * 4
    def gm(v, tt, ft):
        c = acc2(tt, ft); w = WF[v & 1] + ft * 4; x = ab(v, tt)
        return f"v_mfma_f32_16x16x32_bf16 a[{c}:{c+3}], v[{w}:{w+3}], a[{x}:{x+3}], a[{c}:{c+3}]"
    def aload(buf, tt):
        r = ab(buf, tt)
        return f"buffer_load_dwordx4 a[{r}:{r+3}], v{vA[tt>>1]}, {WSR}, s{sKA} offen offset:{(tt&1)*1024} {ASC}"
    def wdma(pc):
        return f"buffer_load_dwordx4 v{vW+pc}, {R(sW)}, s{sKW} offen offset:{pc*1024} {W2P} lds"
    def wread(slot, buf, ft):
        r = WF[buf] + ft * 4
        return [f"ds_read_b64_tr_b16 v[{r+2*rd}:{r+2*rd+1}], v{vWo if ft&1 else vWe} offset:{slot*4096 + rd*2048 + (ft>>1)*512}" for rd in range(2)]
    W0 = "s_waitcnt lgkmcnt(0)"
    def phase(x, t, doqk=True, f=None):
        y = 1 - x
        f = f or {}
        E = lambda i: f"v_exp_f32 v{D[x]+i}, v{S[x]+i}"
        q = qk(y, t + x) if doqk else [None, None]
        g = lambda k: f.get(k, [])
        seq = [q[0]] + g(0) + [E(0), E(1), E(2), q[1]] + g(1) + [E(3), E(4), E(5), PV(y, t - 1 + x, 1)] + g(2) + [E(6), E(7), E(8),
               LS(y, 1)] + g(3) + [E(9), E(10), PV(x, t, 0)] + g(4) + [E(11), E(12), E(13), LS(x, 0)] + g(5) + [E(14), E(15)]
        a.extend([z for z in seq if z])
    ring_adv = [f"s_add_u32 s{sMb}, s{sRing}, s{sM0k}", f"s_add_u32 s{sRing}, s{sRing}, 32768", f"s_cmp_eq_u32 s{sRing}, 98304",
                f"s_cselect_b32 s{sRing}, 0, s{sRing}"]
    kv_sel = [f"s_cmp_gt_u32 s{sCntA}, 5", f"s_cselect_b32 s{sKV+2}, 0, {SZ_KV}"]
    hq = list(parked)
    kv0 = kv_groups(2, 4 if KVD else 6)
    kv1 = kv_groups(4, 8) if KVD else []
    def it_pure(c, j, lastpure):
        t = j + 1
        k = rdK(t + 1, j); v = rdV(t + 1, j)
        fa = {0: [k[0]], 1: [k[1]], 5: [W0]}
        fb = {0: [v[0]], 1: [v[1]], 5: [W0]}
        if j == 0:
            fa[2] = [f"s_mov_b32 m0, s{sMb}", so_wrap]
            if c > 5: fa[3] = [f"s_mov_b32 s{sKV+2}, 0"]
        if j == 4:
            fa[2] = [f"s_add_u32 m0, s{sMb}, 16384", f"s_add_u32 s{sSo}, s{sSo}, 16384"]
        fa[4] = [kvdma(j)]
        if j == 7:
            fa[2] = ring_adv[0:2]; fa[3] = ring_adv[2:4]
            fb[2] = [f"s_add_u32 s{sSo}, s{sSo}, 16384"]
        if c == 0:
            if j == 4: fa[2] = []
            if j == 7: fb[2] = []
            fa[4] = []
            if j == JLD: fa[4] = [flagld(f"v{vFa}")]
            if j > JCHK:
                for f in (fa, fb):
                    for sl in (3, 4):
                        if kv0: f[sl] = f.get(sl, []) + kv0.pop(0)
        if c == 1 and KVD:
            if j in (0, 4): fa[2] = []
            if j == 7: fb[2] = []
            fa[4] = kv1.pop(0); fb[4] = kv1.pop(0)
        for f in (fa, fb):
            for sl in (2, 3)[:SPP]:
                if hq and 8 * c + j >= HST and not any(" lds" in z for z in f.get(sl, [])):
                    u = hq.pop(0); r = 4 * parked.index(u)
                    f[sl] = f.get(sl, []) + hstore(u, f"a[{r}:{r+(1 if u < 8 else 3)}]")
        if lastpure and j == POLLAT:
            fb[4] = fb.get(4, []) + [flagld(f"v{vFa2}")]
        return fa, fb, t
    vK = [240, 241, 242, 243]; sStep, sMask = sT[0], sT[1]
    def kvdma2(q):
        return f"buffer_load_dwordx4 v{vK[q&3]}, {R(sKV)}, s{sSo} offen offset:{(q&3)*1024} {SC} lds"
    def kv_m0(j):
        return f"s_mov_b32 m0, s{sMb}" if j < 4 else f"s_add_u32 m0, s{sMb}, 16384"
    def trip_sa(j, x):
        l = []
        if j == 0 and x == 0: l += [f"s_and_b32 s{sSo}, s{sSo}, s{sMask}"]
        if j == 3 and x == 1: l += [f"s_add_u32 s{sSo}, s{sSo}, s{sStep}"]
        if j == 7 and x == 1: l += [f"s_add_u32 s{sSo}, s{sSo}, s{sStep}"] + ring_adv
        return l
    def kstep_adv():
        return [f"s_add_u32 s{sKA}, s{sKA}, {KS*131072}", f"s_add_u32 s{sKW}, s{sKW}, {KS*65536}"]
    def it_load(j):
        t = j + 1; v = j >> 1
        for x in range(2):
            ph = 2 * (j & 1) + x
            kv = rdK(t + 1, j) if x == 0 else rdV(t + 1, j)
            tr = wread(0, 0, ph) if v == 3 else []
            sa = trip_sa(j, x)
            wait = "s_waitcnt vmcnt(28) lgkmcnt(0)" if ph == 3 else W0
            f = {0: [kv[0], kv[1]], 1: sa[0:2] + tr, 2: [f"s_add_u32 m0, s{sM0g}, {v*4096}", aload(v, 2 * ph)], 3: sa[2:] + [wdma(ph)],
                 4: ([kv_m0(j)] if x == 0 else []), 5: [wait, aload(v, 2 * ph + 1)] + ([kvdma2(j)] if x == 0 else [])}
            if ph == 3: f[5] += kstep_adv()
            if j == 7 and x == 1:
                f[4] = [f"s_add_u32 s{sCntA}, s{sCntA}, 1"]
                f[5] += ["s_barrier", f"v_add_u32 v{vCur}, s{sRing}, v{vL16}"]
            phase(x, t, f=f)
    def it_comb(j):
        t = j + 1; v = j >> 1
        for x in range(2):
            y = 1 - x
            ph = 2 * (j & 1) + x
            E = lambda i: f"v_exp_f32 v{D[x]+i}, v{S[x]+i}"
            q = qk(y, t + x)
            kv = rdK(t + 1, j) if x == 0 else rdV(t + 1, j)
            tr = wread((v + 1) & 3, (v + 1) & 1, ph)
            Gm = [gm(v, 2 * ph, ft) for ft in range(4)] + [gm(v, 2 * ph + 1, ft) for ft in range(3, -1, -1)]
            sa = trip_sa(j, x) + [None] * 5
            wait = "s_waitcnt vmcnt(28) lgkmcnt(0)" if ph == 3 else W0
            last = (j == 7 and x == 1)
            seq = [Gm[0], kv[0], kv[1], q[0], sa[0], E(0), E(1), E(2), Gm[1], sa[1], E(3), q[1], sa[2], E(4), E(5), E(6), Gm[2], sa[3], E(7),
                   PV(y, t - 1 + x, 1), tr[0], E(8), E(9), LS(y, 1), tr[1], Gm[3], sa[4], E(10), PV(x, t, 0), aload(v, 2 * ph), E(11), E(12),
                   Gm[4], f"s_add_u32 m0, s{sM0g}, {v*4096}", E(13), LS(x, 0), wdma(ph), Gm[5],
                   kv_m0(j) if x == 0 else (f"s_add_u32 s{sCntA}, s{sCntA}, 1" if last else None), E(14), Gm[6], wait,
                   "s_barrier" if last else None, E(15), Gm[7], aload(v, 2 * ph + 1), kvdma2(j) if x == 0 else None]
            if CO == 1:
                seq[3:19] = [q[0], sa[0], E(0), E(1), E(2), q[1], sa[1], E(3), E(4), E(5), Gm[1], sa[2], E(6), Gm[2], sa[3], E(7)]
            if CO == 2:
                tl = seq[-8:]
                seq = [q[0], sa[0], E(0), E(1), E(2), q[1], sa[1], E(3), E(4), E(5), Gm[0], kv[0], kv[1], Gm[1], sa[2], E(6), Gm[2], sa[3], E(7), Gm[3], sa[4], E(8),
                       PV(y, t - 1 + x, 1), tr[0], E(9), E(10), LS(y, 1), tr[1], PV(x, t, 0), aload(v, 2 * ph), f"s_add_u32 m0, s{sM0g}, {v*4096}", E(11), E(12),
                       LS(x, 0), wdma(ph), Gm[4], E(13), Gm[5], seq[-9]] + tl
            if CPF and j == 2 and x == 1: seq.append(f"global_load_dwordx4 v[{U+4}:{U+7}], v[248:249], off")
            if ph == 3: seq += kstep_adv()
            if last: seq += [f"v_add_u32 v{vCur}, s{sRing}, v{vL16}", f"s_bitcmp1_b32 {0x1c0 if L2T == 7 else 0x140}, s{sCntA}"]
            a.extend([z for z in seq if z])

    NPURE = 7 - NC
    seqs = []
    for c in range(NPURE):
        for j in range(1 if c == 0 else 0, 8):
            seqs.append((c, j) + it_pure(c, j, c == NPURE - 1))
    assert not hq and not kv0 and not kv1
    log = []
    def younger(pred):
        idx = [i for i, tag in enumerate(log) if pred(tag)]
        return len(log) - 1 - idx[-1] if idx else len(log)
    for (c, j, fa, fb, t) in seqs:
        for f in (fa, fb):
            for sl in range(5):
                for z in f.get(sl, []):
                    if z.startswith("buffer_"):
                        log.append("kv%d" % (sum(1 for g in log if g.startswith("kv")) // 8 - 1) if " lds" in z else ("st" if "store" in z else "poll"))
        need = 63
        pub = (8 * c + j == PUBAT)
        if j == 7: need = min(need, younger(lambda g: g == "kv%d" % (c - 1)))
        if pub: need = min(need, younger(lambda g: g == "st"))
        if j == 7 or pub:
            fb[5] = [f"s_waitcnt vmcnt({need}) lgkmcnt(0)", "s_barrier"]
            if j == 7: fb[5].append(f"v_add_u32 v{vCur}, s{sRing}, v{vL16}")
        phase(0, t, f=fa)
        phase(1, t, f=fb)
        if c == 0 and j == JCHK:
            a(f"s_waitcnt vmcnt({younger(lambda g: g == 'poll')})")
            poll(f"v{vFa}", True)
            if HALF:
                assert JCHK <= 3
                a("s_barrier")
            stp(a, "fqok")
        if pub:
            assert log.count("st") == len(parked)
            a(f"s_cmp_eq_u32 s{sPub}, 0")
            a("s_cbranch_scc1 L_at_np")
            publish(sPub, U)
            a("L_at_np:")
    a(f"s_mov_b32 s{sCntA}, {NPURE}")
    npoll = younger(lambda g: g == 'poll')
    if QX:
        a(f"s_cmp_lg_u32 s{sPub}, 0")
        a("s_cbranch_scc1 L_at_nx")
        for j in range(8):
            fa, fb, t = it_pure(NPURE, j, True)
            if j == 7: fb[5] = ["s_waitcnt vmcnt(9) lgkmcnt(0)", "s_barrier", f"v_add_u32 v{vCur}, s{sRing}, v{vL16}"]
            phase(0, t, f=fa); phase(1, t, f=fb)
        a(f"s_mov_b32 s{sCntA}, {NPURE + 1}")
        a("L_at_nx:")
        npoll = min(npoll, 7 - POLLAT)
    stp(a, "pureend")
    for q in range(4): a(f"v_mov_b32 v{vK[q]}, v{vDma}")
    a(f"s_mov_b32 s{sStep}, 16384")
    a(f"s_mov_b32 s{sMask}, {SZ_KV - 1}")
    a(f"s_waitcnt vmcnt({npoll})")
    poll(f"v{vFa2}", True)
    stp(a, "fhok")
    for j in range(8): it_load(j)
    if NC:
        stp(a, "cb0")
        a(".p2align 6")
        a("L_cb_loop:")
        for j in range(8): it_comb(j)
        a("s_cbranch_scc0 L_cb_loop")
        a(f"s_cmp_eq_u32 s{sCntA}, 6")
        a("s_cbranch_scc1 L_cb_sw")
        if L2T == 7:
            a(f"s_cmp_eq_u32 s{sCntA}, 7")
            a("s_cbranch_scc1 L_cb_t")
        o = Asm(); sv = a.lines; a.lines = o.lines
        a("L_cb_sw:")
        for q in range(4): a(f"v_mov_b32 v{vK[q]}, v{vW+q}")
        srd(a, sKV, pWO, 0, 1024 * 2048)
        a(f"s_lshl_b32 s{sSo}, s{sWave}, {19 if KQ else 16}")
        a(f"s_mov_b32 s{sStep}, {KS*65536}")
        a(f"s_mov_b32 s{sMask}, -1")
        if L2T != 6: a("s_branch L_cb_loop")
        if L2T:
            assert KQ and G2MAP == 0
            a("L_cb_t:")
            a(f"v_and_b32 v{U}, 31, v{L}")
            a(f"v_lshlrev_b32 v{U+1}, 11, v{U}")
            a(f"v_lshlrev_b32 v{U}, 7, v{U}")
            a(f"s_and_b32 s{t0}, s{sSlot}, 3")
            a(f"s_lshl_b32 s{t1}, s{sCb}, 7")
            a(f"s_mul_i32 s{t2}, s{sWave}, 28")
            a(f"s_add_u32 s{t2}, s{t2}, 24")
            a(f"s_add_u32 s{t3}, s{t2}, s{t0}")
            a(f"s_lshl_b32 s{t3}, s{t3}, 16")
            a(f"s_add_u32 s{t3}, s{t3}, s{t1}")
            a(f"buffer_load_dword v{U+3}, v{U+1}, {R(sW)}, s{t3} offen")
            a(f"s_lshr_b32 s{t3}, s{sSlot}, 3")
            a(f"s_add_u32 s{t2}, s{t2}, s{t3}")
            a(f"s_lshl_b32 s{t2}, s{t2}, 17")
            a(f"s_lshl_b32 s{t3}, s{sRb2}, 13")
            a(f"s_add_u32 s{t2}, s{t2}, s{t3}")
            a(f"s_and_b32 s{t3}, s{sSlot}, 4")
            a(f"s_lshl_b32 s{t3}, s{t3}, 10")
            a(f"s_add_u32 s{t2}, s{t2}, s{t3}")
            a(f"s_add_u32 s{t2}, s{t2}, {WS_A2 + 32*131072}")
            a(f"buffer_load_dword v{U+3}, v{U}, {WSR}, s{t2} offen sc1")
            a(f"s_lshl_b32 s{t2}, s{sWave}, 3")
            a(f"s_add_u32 s{t2}, s{t2}, s{t0}")
            a(f"s_add_u32 s{t2}, s{t2}, 4")
            a(f"s_lshl_b32 s{t2}, s{t2}, 16")
            a(f"s_add_u32 s{t2}, s{t2}, s{t1}")
            a(f"buffer_load_dword v{U+3}, v{U+1}, {R(sKV)}, s{t2} offen")
            srd(a, sX, pX, 0, 4 * MB)
            a(f"s_lshl_b32 s{t2}, s{sRb2}, 2")
            a(f"s_add_u32 s{t2}, s{t2}, s{sWave}")
            a(f"s_lshl_b32 s{t2}, s{t2}, 16")
            a(f"s_add_u32 s{t2}, s{t2}, s{t1}")
            a(f"buffer_load_dword v{U+3}, v{U+1}, {R(sX)}, s{t2} offen")
            a("s_branch L_cb_loop")
        ool.extend([z.text for z in o.lines]); a.lines = sv
    stp(a, "cb1")
    phase(0, 63)
    phase(1, 63, doqk=False)
    a("s_nop 1")
    a(PV(1, 63, 1)); a(LS(1, 1))
    stp(a, "atend")
    a(f"v_bfe_u32 v{U+2}, v{L}, 4, 1")
    a(f"v_lshlrev_b32 v{U+2}, 10, v{U+2}")
    a(f"v_lshrrev_b32 v{U+3}, 5, v{L}")
    a(f"v_lshl_add_u32 v{U+2}, v{U+3}, 8, v{U+2}")
    a(f"v_and_b32 v{U+3}, 15, v{L}")
    a(f"v_lshl_add_u32 v{U+2}, v{U+3}, 4, v{U+2}")
    a(f"s_lshr_b32 s{t0}, s{sRb2}, 1")
    a(f"s_lshl_b32 s{t0}, s{t0}, 8")
    a(f"s_add_u32 s{t0}, s{t0}, {WS_FL + FO}")
    a(f"v_and_b32 v{U+3}, 31, v{L}")
    a(f"v_lshl_add_u32 v{vFa2}, v{U+3}, 3, s{t0}")
    a(f"s_add_u32 s{sQO}, s{sQO}, {WS_A2 - WS_Q}")
    a(f"s_mov_b32 s{t0}, {f2u(2.0**40):#x}")
    a(f"v_pk_mul_f32 v[{U}:{U+1}], v[{O[0]}:{O[0]+1}], 0 op_sel_hi:[1,0]")
    for i in range(2, 32, 2):
        a(f"v_pk_fma_f32 v[{U}:{U+1}], v[{O[0]+i}:{O[0]+i+1}], 0, v[{U}:{U+1}] op_sel_hi:[1,0,1]")
    a(f"v_add_f32 v{U}, v{U}, v{U+1}")
    a(f"v_add3_u32 v{U+1}, 0, 0, 0") if False else None
    a(f"v_add_f32 v{U+1}, v{Lr[0]}, v{Lr[1]}")
    a(f"v_add_f32 v{U}, v{U}, v{U+1}")
    a(f"v_cmp_ngt_f32 vcc, s{t0}, v{U}")
    a("s_nop 1")
    a("s_cbranch_vccnz L_at_slow")
    a("L_at_fin:")
    for x in range(2):
        a(f"v_rcp_f32 v{U}, v{Lr[x]}")
        a("s_nop 0")
        a(f"v_mul_f32 v{U}, v{U}, v{vSig+x}")
        for i in range(0, 16, 2): a(f"v_pk_mul_f32 v[{O[x]+i}:{O[x]+i+1}], v[{O[x]+i}:{O[x]+i+1}], v[{U}:{U+1}] op_sel_hi:[1,0]")
        for u in range(2):
            for e in range(2):
                c = O[x] + 8 * e + 4 * u
                a(f"v_cvt_pk_bf16_f32 v{D[x]+4*u+2*e}, v{c}, v{c+1}")
                a(f"v_cvt_pk_bf16_f32 v{D[x]+4*u+2*e+1}, v{c+2}, v{c+3}")
            a(f"buffer_store_dwordx4 v[{D[x]+4*u}:{D[x]+4*u+3}], v{U+2}, {WSR}, s{sQO} offen offset:{x*2048+u*512} {SC}")

    assert 2 < NC <= 5
    S0 = 4 * NC
    X = 112; WF8 = [0, 16, 32, 48, 64, 80, 96, 128]
    vE = [220, 221, 236, 237]; vRd = [233, 234, 235]; vRw = 238; vXs = 239
    ol = ["old"] + ["ost"] * 4
    def need2(*tags):
        idx = [i for i, t in enumerate(ol) if t in tags or t == "old"]
        return min(63, len(ol) - 1 - idx[-1])
    def abuf(s_, tt):
        r = ab(s_ & 3, tt) if s_ < 28 else ab(tt & 3, s_ - 28)
        return f"a[{r}:{r+3}]"
    def wfr(s_): return WF8[s_ - 28] if s_ >= 28 else WF[s_ & 1]
    def gm2(s_, tt, ft):
        c = acc2(tt, ft); w = wfr(s_) + ft * 4
        return f"v_mfma_f32_16x16x32_bf16 a[{c}:{c+3}], v[{w}:{w+3}], {abuf(s_, tt)}, a[{c}:{c+3}]"
    def wloc(s_):
        if s_ < 28: return ("r", s_ & 3)
        return ("e", (4, 5, 0, 1, 2, 3)[s_ - 28]) if s_ < 34 else ("r", s_ - 34)
    def wrd(s_):
        k, sl = wloc(s_); l = []
        for ft in range(4):
            r = wfr(s_) + ft * 4
            if k == "r": v = vWo if ft & 1 else vWe; o = sl * 4096
            else: v = vE[(ft & 1) + 2 * (sl >> 2)]; o = (sl & 3) * 16384
            l += [f"ds_read_b64_tr_b16 v[{r+2*rd}:{r+2*rd+1}], v{v} offset:{o + rd*2048 + (ft>>1)*512}" for rd in range(2)]
        return l
    def wld(s_):
        k, sl = wloc(s_)
        g = [([f"s_add_u32 m0, s{sM0g}, {sl*4096}" if k == "r" else f"s_add_u32 m0, s{sM0k}, {sl*16384}"], None)]
        for pc in range(4):
            g.append(([f"buffer_load_dwordx4 v{vW+pc}, {R(sW if s_ < 28 else sKV)}, s{sKW if s_ < 28 else sSo} offen offset:{pc*1024} lds"], f"W{s_}"))
        g.append(([f"s_add_u32 s{sKW if s_ < 28 else sSo}, s{sKW if s_ < 28 else sSo}, {KS*65536}"], None))
        return g
    sO4 = [t0, t1, t2, t3, 88, 89, 90, 91]
    def ald(s_, tt):
        so = sO4[s_ - 28] if s_ >= 28 else sKA
        return ([f"buffer_load_dwordx4 {abuf(s_, tt)}, v{vA[tt>>1]}, {WSR}, s{so} offen offset:{(tt&1)*1024} {ASC}"], f"A{s_}_{tt}")
    def order(s_): return [(tt, ft) for tt in range(8) for ft in (range(4) if tt % 2 == 0 else range(3, -1, -1))]
    def emit(m, vm_groups, pos, ds=(), misc=(), bud=8, ds2=(), wr=()):
        for g, tag in vm_groups:
            if tag: ol.append(tag)
        sds = [(8 + 2 * i, x) for i, x in enumerate(ds)] + [((i * 26) // max(1, len(ds2)), x) for i, x in enumerate(ds2)] + list(wr)
        a.extend(sched(m, [[(p, g) for p, (g, tag) in zip(pos, vm_groups)], sds, list(misc)], bud))
    def begin(s_):
        stp(a, f"s{s_}")
        ex = [f'W{s_+7 if s_ == 26 else 35}'] if (TW and s_ in (26, 27)) else []
        a(f"s_waitcnt vmcnt({need2(*([f'A{s_}_{tt}' for tt in range(8)] + [f'W{s_+1}'] + ex))}) lgkmcnt(0)")
    e = Asm(); sv = a.lines; a.lines = e.lines
    a(f"s_sub_u32 s{t4}, s{sM0k}, s{sM0g}")
    a(f"v_add_u32 v{vE[0]}, s{t4}, v{vWe}")
    a(f"v_add_u32 v{vE[1]}, s{t4}, v{vWo}")
    a(f"v_add_u32 v{vE[2]}, 0x10000, v{vE[0]}")
    a(f"v_add_u32 v{vE[3]}, 0x10000, v{vE[1]}")
    srd(a, sX, pX, 0, 4 * MB)
    srd(a, sOut, pOut, 0, 4 * MB)
    a(f"s_mov_b32 s{sPf}, 32768")
    a(f"s_lshl_b32 s{t4}, s{sRb2}, 7")
    a(f"s_lshl_b32 s{t5}, s{sWave}, 5")
    a(f"s_add_u32 s{t4}, s{t4}, s{t5}")
    a(f"s_lshl_b32 s{sH1}, s{t4}, 2")
    a(f"s_add_u32 s{sH1}, s{sH1}, {WS_STAT + 8192}")
    a(f"s_lshl_b32 s{t4}, s{t4}, 11")
    a(f"s_lshl_b32 s{t5}, s{sCb}, 7")
    a(f"s_add_u32 s{t4}, s{t4}, s{t5}")
    el1 = [x.text for x in e.lines]; e = Asm(); a.lines = e.lines
    a(f"v_and_b32 v{vRw}, 15, v{L}")
    a(f"v_lshl_add_u32 v{vX}, v{vRw}, 11, s{t4}")
    a(f"v_lshlrev_b32 v{vRd[0]}, 2, v{vRw}")
    a(f"v_bfe_u32 v{vRw}, v{L}, 4, 1")
    a(f"v_lshl_add_u32 v{vXs}, v{vRw}, 5, v{vX}")
    a(f"v_lshrrev_b32 v{vRw}, 5, v{L}")
    a(f"v_lshl_add_u32 v{vXs}, v{vRw}, 4, v{vXs}")
    a(f"v_add_u32 v{vRw}, s{sM0k}, v{vL16}")
    if OT & 1:
        a(f"v_and_b32 v186, 31, v{L}")
        a(f"v_lshlrev_b32 v186, 11, v186")
        a(f"s_and_b32 s{t0}, s{sSlot}, 3")
        a(f"s_lshl_b32 s{t0}, s{t0}, 16")
        a(f"s_add_u32 s{t0}, s{t0}, s{sSo}")
        a(f"s_add_u32 s{t0}, s{t0}, s{t5}")
        a(f"buffer_load_dword v187, v186, {R(sKV)}, s{t0} offen")
        a(f"buffer_load_dword v187, v186, {R(sX)}, s{t4} offen")
    el2 = [x.text for x in e.lines]; e = Asm(); a.lines = e.lines
    for pi in range(3):
        a(f"s_sub_u32 s{t4}, s{sWave}, {pi + 1}")
        a(f"s_and_b32 s{t4}, s{t4}, 3")
        a(f"s_lshl_b32 s{t4}, s{t4}, 12")
        a(f"s_add_u32 s{t4}, s{t4}, {pi * 32768}")
        a(f"v_add_u32 v{vRd[pi]}, s{t4}, v{vL16}")
    a(f"s_lshl_b32 s{t4}, s{sWave}, {20 if KQ else 17}")
    for i in range(8): a(f"s_add_u32 s{sO4[i]}, s{t4}, {WS_A2 + i * KS * 131072}")
    if OT & 2:
        a(f"v_lshlrev_b32 v186, 7, v{L}")
        a(f"s_lshr_b32 s{sH2}, s{sSlot}, 2")
        a(f"s_lshl_b32 s{sH2}, s{sH2}, 17")
        a(f"s_add_u32 s{sH2}, s{sH2}, s{sO4[0]}")
        a(f"s_lshl_b32 s{t4}, s{sRb2}, 13")
        a(f"s_add_u32 s{sH2}, s{sH2}, s{t4}")
    el3 = [x.text for x in e.lines]; a.lines = sv
    def grp(l):
        out = []
        for z in l:
            if z.split()[0] in ("s_addc_u32", "s_subb_u32"): out[-1].append(z)
            else: out.append([z])
        return out
    def pubo():
        a(f"s_waitcnt vmcnt(12)")
        a("s_barrier")
        publish(93, 184)
    if QX:
        assert PUBSTEP == 0
        a(f"s_cmp_lg_u32 s{sPub}, 0")
        a("s_cbranch_scc1 L_g2_nx")
        for s_ in range(S0 - 4, S0):
            a("s_waitcnt vmcnt(32) lgkmcnt(0)")
            vg = wld(s_ + 4) + [ald(s_ + 4, tt) for tt in range(8)] + [([f"s_add_u32 s{sKA}, s{sKA}, {KS*131072}"], None)]
            pos = [0, 1, 2, 3, 4, 5] + [max(4 * tt + 3, 6 + tt) for tt in range(8)] + [31]
            emit([gm2(s_, tt, ft) for tt, ft in order(s_)], vg, pos, wrd(s_ + 1), [])
            if s_ == S0 - 4: pubo()
        a("L_g2_nx:")
        del ol[5:]
    for s_ in range(S0, 24):
        if s_ == S0: stp(a, "s20")
        if QX: a("s_waitcnt vmcnt(32) lgkmcnt(0)")
        else: begin(s_) if s_ > S0 else a("s_waitcnt lgkmcnt(0)")
        vg = wld(s_ + 4) + [ald(s_ + 4, tt) for tt in range(8)] + [([f"s_add_u32 s{sKA}, s{sKA}, {KS*131072}"], None)]
        pos = [0, 1, 2, 3, 4, 5] + [max(4 * tt + 3, 6 + tt) for tt in range(8)] + [31]
        misc = {S0: grp(el1), S0 + 1: grp(el2)}.get(s_, [])
        emit([gm2(s_, tt, ft) for tt, ft in order(s_)], vg, pos, wrd(s_ + 1), [(i + 1, g) for i, g in enumerate(misc)])
        if QX and s_ == S0:
            a(f"s_cmp_eq_u32 s{sPub}, 0")
            a("s_cbranch_scc1 L_g2_np")
            pubo()
            a("L_g2_np:")
        elif s_ == S0 + PUBSTEP:
            stp(a, "pb")
            a(f"s_waitcnt vmcnt({need2('ost')})")
            a("s_barrier")
            publish(93, 184)
        elif s_ < 20 + PUBSTEP:
            pass
    q = []
    for s_ in range(32, 36): q += wld(s_)
    xl = [([f"buffer_load_dwordx4 v[{X+(h*2+p)*4}:{X+(h*2+p)*4+3}], v{vXs}, {R(sX)}, {'0' if h == 0 else f's{sPf}'} offen offset:{p*64}"], "x")
          for h in range(2) for p in range(2)]
    xl += [([f"buffer_load_dword v{vRs2+h}, v{vRd[0]}, {WSR}, s{sH1} offen offset:{h*64} sc1"], "x") for h in range(2)]
    if XL: q = xl[4:] + q
    else: q = xl + q
    k = [i for i, (g, tag) in enumerate(q) if tag][POLLW]
    q.insert(k, ([flagld(f"v{vFa2}")], "poll"))
    def orow(tt): return [ald(s_, tt) for s_ in range(28, 36)]
    nq = CHK - 23
    per = (len(q) + nq - 1) // nq
    assert per >= 19 or nq > 1
    for s_ in range(24, 28):
        begin(s_)
        if s_ <= CHK: vg = q[:per]; q = q[per:]
        else:
            vg = orow(s_ - CHK - 1)
            if TW: vg = (orow(0) + orow(1)[:4]) if s_ == 26 else (orow(1)[4:] + orow(2))
            if OT & 2 and s_ == CHK + 1:
                vg.insert(OTP, ([f"buffer_load_dword v187, v186, {WSR}, s{sH2} offen sc1"], "t"))
        ds = (wrd(s_ + 1) if s_ < 27 else []) + wrd(s_ + 4)
        if TW:
            assert CHK == 25
            ds = (wrd(s_ + 1) if s_ < 27 else []) + wrd(2 * s_ - 20) + wrd(2 * s_ - 19)
        emit([gm2(s_, tt, ft) for tt, ft in order(s_)], vg, [(i * 30) // len(vg) for i in range(len(vg))], [],
             [(i + 1, g) for i, g in enumerate(grp(el3))] if s_ == 25 else [], ds2=ds)
        if s_ == CHK:
            stp(a, "fopoll")
            a(f"s_waitcnt vmcnt({need2('poll')})")
            poll(f"v{vFa2}", True)
            stp(a, "fook")
    nrow = 27 - CHK
    if not TW:
        for tt in range(nrow, 3):
            for g, tag in orow(tt): a.extend(g); ol.append(tag)
        a(f"s_waitcnt vmcnt({need2('W35')})")
        for s_ in range(32, 36): a.extend(wrd(s_))
    XF = 144; RB = [176, 0, 32]
    unp = [f"v_permlane16_swap_b32 v{X+4*i+j}, v{X+4*i+j+2}" for i in range(4) for j in range(2)]
    for i in range(16):
        unp += [f"v_lshlrev_b32 v{XF+2*i}, 16, v{X+i}", f"v_and_b32 v{XF+2*i+1}, 0xffff0000, v{X+i}"]
    for tt in range(8):
        stp(a, f"r{tt}")
        a(f"s_waitcnt vmcnt({need2(f'A35_{tt}', 'x' if (XL and tt == 6) else '-')})" + (" lgkmcnt(0)" if tt == 0 else ""))
        m = [gm2(s_, tt, ft) for s_ in range(28, 36) for ft in (range(4) if s_ % 2 == 0 else range(3, -1, -1))]
        vg = orow(tt + 3) if tt + 3 < 8 else []
        if XL and tt == XL: vg = vg + xl[:4]
        wr = []
        if 1 <= tt <= 6:
            pt = tt - 1
            wr = [(8 + 4 * ft, f"ds_write_b128 v{vRw}, a[{acc2(pt, ft)}:{acc2(pt, ft)+3}] offset:{(pt & 3)*16384 + ft*1024}") for ft in range(4)]
            if pt == 3: wr.append((24, f"v_add_u32 v{vRw}, 0x10000, v{vRw}"))
        if tt == 6: wr.append((31, ["s_waitcnt lgkmcnt(0)", "s_barrier"]))
        mi = [(2 * i, z) for i, z in enumerate(unp[10 * tt:10 * tt + 10])] if tt < 4 else []
        if XL: mi = [((3 * i) // 4, z) for i, z in enumerate(unp)] if tt == 6 else []
        if tt == 7:
            wr = [(8 * pi + i + (1 if pi else 0), f"ds_read_b128 v[{RB[pi]+4*i}:{RB[pi]+4*i+3}], v{vRd[pi]} offset:{(i >> 2)*16384 + (i & 3)*1024}")
                  for pi in range(3) for i in range(8)]
            mi = [(10 + i, f"v_accvgpr_read_b32 v{112+i}, a{acc2(6, 0)+i}") for i in range(16)]
        emit(m, vg, [(30 * i) // max(8, len(vg)) + 1 for i in range(len(vg))], [], mi, ds2=[], wr=wr)
    stp(a, "g2end")
    a("s_waitcnt lgkmcnt(0)")
    for i in range(8):
        o_ = 112 + 4 * i if i < 4 else 64 + 4 * i
        if i == 2:
            for j in range(16): a(f"v_accvgpr_read_b32 v{80+j}, a{acc2(7, 0)+j}")
        for j in (0, 2): a(f"v_pk_add_f32 v[{RB[0]+4*i+j}:{RB[0]+4*i+j+1}], v[{RB[0]+4*i+j}:{RB[0]+4*i+j+1}], v[{RB[1]+4*i+j}:{RB[1]+4*i+j+1}]")
        for j in (0, 2): a(f"v_pk_add_f32 v[{o_+j}:{o_+j+1}], v[{o_+j}:{o_+j+1}], v[{RB[2]+4*i+j}:{RB[2]+4*i+j+1}]")
        for j in (0, 2): a(f"v_pk_add_f32 v[{o_+j}:{o_+j+1}], v[{o_+j}:{o_+j+1}], v[{RB[0]+4*i+j}:{RB[0]+4*i+j+1}]")
        sel = "op_sel_hi:[1,0,1]" if i < 4 else "op_sel:[0,1,0]"
        for j in (0, 2): a(f"v_pk_fma_f32 v[{o_+j}:{o_+j+1}], v[{o_+j}:{o_+j+1}], v[{vRs2}:{vRs2+1}], v[{XF+4*i+j}:{XF+4*i+j+1}] {sel}")
        a(f"v_cvt_pk_bf16_f32 v{128+2*i}, v{o_}, v{o_+1}")
        a(f"v_cvt_pk_bf16_f32 v{128+2*i+1}, v{o_+2}, v{o_+3}")
        if i & 1:
            r = 128 + 2 * (i - 1)
            a("s_nop 1")
            a(f"v_permlane16_swap_b32 v{r}, v{r+2}")
            a(f"v_permlane16_swap_b32 v{r+1}, v{r+3}")
            a(f"buffer_store_dwordx4 v[{r}:{r+3}], v{vXs}, {R(sOut)}, {'0' if i < 4 else f's{sPf}'} offen offset:{((i>>1)&1)*64} {OSC}")
    stp(a, "outst")
    if DBGST:
        n = len(STAMPS) + 1
        a("s_waitcnt vmcnt(0)")
        stamp(a, n - 1)
        a(f"s_cmp_lg_u32 s2, {DBGST - 1}")
        a("s_cbranch_scc1 L_end")
        a(f"s_cmp_lg_u32 s{sWave}, 0")
        a("s_cbranch_scc1 L_end")
        a("s_waitcnt lgkmcnt(0)")
        srd(a, 88, pDbg, 0, 256)
        for i in range(n):
            a(f"s_sub_u32 s92, s{60+2*i}, s60")
            a(f"v_mov_b32 v1, s92")
            a(f"buffer_store_dword v1, off, s[88:91], 0 offset:{4*i}")
    else:
        stamp_flush(a, 1, len(STAMPS) + 1, 0)
    a("L_end:")
    a("s_endpgm")
    a("L_at_slow:")
    a(f"s_lshl_b32 s{t5}, s{sHead}, 18")
    a(f"s_add_u32 s{t5}, s{t5}, {WS_KV}")
    for x in range(2): a(f"v_mov_b32 v{NM[x]}, 0xff800000")
    for i in range(40): a(f"v_mov_b32 v{O[0]+i}, 0")
    a(f"s_mov_b32 s{sCntA}, 0")
    a("L_at_sloop:")
    k = Kf[0]; v = Vf[0]
    a(f"buffer_load_dwordx4 v[{k}:{k+3}], v{vL16}, {WSR}, s{t5} offen {SC}")
    a(f"buffer_load_dwordx4 v[{k+4}:{k+7}], v{vL16}, {WSR}, s{t5} offen offset:1024 {SC}")
    a(f"buffer_load_dwordx4 v[{v}:{v+3}], v{vL16}, {WSR}, s{t5} offen offset:2048 {SC}")
    a(f"buffer_load_dwordx4 v[{v+4}:{v+7}], v{vL16}, {WSR}, s{t5} offen offset:3072 {SC}")
    a("s_waitcnt vmcnt(0)")
    for x in range(2):
        M = NM[x]; AL = NM[x] + 1; MN = NM[x] + 2; s = S[x]
        a.extend(qk(x, 0, "0"))
        a("s_nop 15")
        a(f"v_max3_f32 v{U}, v{s}, v{s+1}, v{s+2}")
        for i in range(3, 15, 2): a(f"v_max3_f32 v{U}, v{U}, v{s+i}, v{s+i+1}")
        a(f"v_max_f32 v{U}, v{U}, v{s+15}")
        a(f"v_mov_b32 v{U+1}, v{U}")
        a("s_nop 1")
        a(f"v_permlane32_swap_b32 v{U}, v{U+1}")
        a(f"v_max3_f32 v{MN}, v{U}, v{U+1}, v{M}")
        a(f"v_sub_f32 v{AL}, v{M}, v{MN}")
        a(f"v_exp_f32 v{AL}, v{AL}")
        a(f"v_mov_b32 v{M}, v{MN}")
        for i in range(16): a(f"v_sub_f32 v{s+i}, v{s+i}, v{MN}")
        for i in range(16): a(f"v_exp_f32 v{D[x]+i}, v{s+i}")
        for i in range(16): a(f"v_mul_f32 v{O[x]+i}, v{O[x]+i}, v{AL}")
        a(f"v_mul_f32 v{Lr[x]}, v{Lr[x]}, v{AL}")
        a("s_nop 1")
        a(LS(x, 0)); a(LS(x, 1))
        a(PV(x, 0, 0)); a(PV(x, 0, 1))
        a("s_nop 15")
    a(f"s_add_u32 s{t5}, s{t5}, 4096")
    a(f"s_add_u32 s{sCntA}, s{sCntA}, 1")
    a(f"s_cmp_lt_u32 s{sCntA}, 64")
    a("s_cbranch_scc1 L_at_sloop")
    a("s_branch L_at_fin")
    a.extend(ool)
    if LAY: a.extend(qcode)
    a(".p2align 4")
    a("L_code_end:")
    return a, descriptor(name, 512, 256, 102)

if __name__ == "__main__":
    path = sys.argv[1] if len(sys.argv) > 1 else "cdna_kernels/" + NAME + ".s"
    a, d = gen_main()
    ref = open(os.path.join(os.path.dirname(os.path.abspath(__file__)), "..", "cdna_kernels", NAME + ".s.ref")).read()
    head = [l for l in ref.split("\n") if l.startswith(";") and "@launch" not in l and "Override" not in l and "grid=ceil" not in l]
    out = "\n".join(head) + "\n; @launch grid=(256,1,1) block=(256,1,1) lds=163840\n"
    out += DOC
    out += '.amdgcn_target "amdgcn-amd-amdhsa--gfx950"\n.text\n' + a.text() + '.section .rodata,"a"\n.p2align 6\n' + d
    open(path, "w").write(out)
    probs = a.check("main")
    for p in probs: print("HAZARD", p)
    print("written", path, "hazards:", len(probs))
```
